```python
import torch

def _softmax(x, axis=-1):
    return torch.softmax(x, dim=axis)
def _gelu(x):
    return torch.nn.functional.gelu(x, approximate="tanh")
def _silu(x):
    return torch.nn.functional.silu(x)
def _sigmoid(x):
    return torch.sigmoid(x)
def _layernorm(x, axis=-1, eps=1e-5):
    m = x.mean(dim=axis, keepdim=True)
    v = x.var(dim=axis, keepdim=True, unbiased=False)
    return (x - m) / torch.sqrt(v + eps)
def _scatter_add(tgt, idx, src, axis=0):
    return tgt.clone().index_add_(axis, idx, src)
def _segment_sum(src, seg, n):
    out = torch.zeros((n,) + src.shape[1:], dtype=src.dtype)
    return out.index_add_(0, seg, src)
def _pad(x, pw):
    flat = tuple(v for pair in reversed(pw) for v in pair)
    return torch.nn.functional.pad(x, flat)

kernel_name = 'sequential_preLN__linear_kernel_hedgehog__mixer_s_mlp__prompt'

def setup_inputs():

    _w = (lambda a: (lambda t: t.to(torch.bfloat16) if t.is_floating_point() else t)(torch.as_tensor(a)))
    def _A_setup():
        B, S, D, H = 1, 2048, 448, 16
        Dh = D // H
        return {
            "x": _w((lambda *s: torch.randn(*s, dtype=torch.bfloat16) * 0.05)(B, S, D)),
            "wqkv": _w((lambda *s: torch.randn(*s, dtype=torch.bfloat16) * 0.2)(D, 3 * D)),
            "w_phi": _w((lambda *s: torch.randn(*s, dtype=torch.bfloat16) * 0.2)(H, Dh, Dh) * (Dh ** -0.5)),
            "wo": _w((lambda *s: torch.randn(*s, dtype=torch.bfloat16) * 0.05)(D, D)),
        }
    _A_in = _A_setup()

    def _B_setup():
        B, S, D, F = 1, 2048, 448, 1792
        return {
            "x":  _w((lambda *s: torch.randn(*s, dtype=torch.bfloat16) * 0.05)(B, S, D)),
            "w1": _w((lambda *s: torch.randn(*s, dtype=torch.bfloat16) * 3.2)(D, D) * (D ** -0.5)),
            "w2": _w((lambda *s: torch.randn(*s, dtype=torch.bfloat16) * 3.2)(D, D) * (D ** -0.5)),
            "w3": _w((lambda *s: torch.randn(*s, dtype=torch.bfloat16) * 3.2)(D, F) * (D ** -0.5)),
            "w4": _w((lambda *s: torch.randn(*s, dtype=torch.bfloat16) * 3.2)(F, D) * (F ** -0.5)),
        }
    _B_in = _B_setup()

    return {
        "A_x": _A_in["x"],
        "A_wqkv": _A_in["wqkv"],
        "A_w_phi": _A_in["w_phi"],
        "A_wo": _A_in["wo"],
        "B_x": _B_in["x"],
        "B_w1": _B_in["w1"],
        "B_w2": _B_in["w2"],
        "B_w3": _B_in["w3"],
        "B_w4": _B_in["w4"],
    }

def reference(A_x, A_wqkv, A_w_phi, A_wo, B_x, B_w1, B_w2, B_w3, B_w4):
    def _A_ref(x, wqkv, w_phi, wo):
        B, S, D = x.shape
        H = 16; Dh = D // H
        qkv = (lambda x, *d: x.permute(*d))((x @ wqkv).reshape(B, S, 3, H, Dh), 2, 0, 3, 1, 4)
        q, k, v = qkv[0], qkv[1], qkv[2]
        pq = torch.einsum("bhsd,hdf->bhsf", q, w_phi)
        pk = torch.einsum("bhsd,hdf->bhsf", k, w_phi)
        phi_q = torch.concatenate([_softmax(pq, axis=-1), _softmax(-pq, axis=-1)], axis=-1)
        phi_k = torch.concatenate([_softmax(pk, axis=-1), _softmax(-pk, axis=-1)], axis=-1)
        kv = torch.einsum("bhsf,bhsd->bhfd", phi_k, v)
        z  = torch.einsum("bhsf->bhf", phi_k)
        num = torch.einsum("bhqf,bhfd->bhqd", phi_q, kv)
        den = torch.einsum("bhqf,bhf->bhq", phi_q, z)[..., None] + 1e-6
        o = num / den
        return (lambda x, *d: x.permute(*d))(o, 0, 2, 1, 3).reshape(B, S, D) @ wo

    def _B_ref(x, w1, w2, w3, w4):
        B, S, D = x.shape
        h = _gelu(_layernorm(x, axis=-1) @ w1)
        c = D // 4
        g0 = _pad(h[:, :, 0*c:1*c], ((0, 0), (1, 0), (0, 0)))[:, :S, :]
        g1 = _pad(h[:, :, 1*c:2*c], ((0, 0), (0, 1), (0, 0)))[:, 1:, :]
        g2 = _pad(h[:, :, 2*c:3*c], ((0, 0), (2, 0), (0, 0)))[:, :S, :]
        g3 = _pad(h[:, :, 3*c:   ], ((0, 0), (0, 2), (0, 0)))[:, 2:, :]
        hs = torch.concatenate([g0, g1, g2, g3], axis=-1) @ w2
        x1 = x + hs
        h2 = _gelu(_layernorm(x1, axis=-1) @ w3) @ w4
        return x1 + h2

    x = A_x
    h = x + _A_ref(_layernorm(x, axis=-1), A_wqkv, A_w_phi, A_wo)
    h2 = h + _B_ref(_layernorm(h, axis=-1), B_w1, B_w2, B_w3, B_w4)
    return h2
```

```python
import re, copy

REG = re.compile(r'\b([vs])(?:(\d+)|\[(\d+):(\d+)\])')

def regs_of(op):
    out = set()
    for m in REG.finditer(op):
        k = m.group(1)
        if m.group(2) is not None:
            out.add((k, int(m.group(2))))
        else:
            for i in range(int(m.group(3)), int(m.group(4)) + 1):
                out.add((k, i))
    if re.search(r'\bvcc(_lo|_hi)?\b', op): out.add(('vcc', 0))
    if re.search(r'\bexec(_lo|_hi)?\b', op): out.add(('exec', 0))
    if re.search(r'\bm0\b', op): out.add(('m0', 0))
    return out

TRANS = ('v_exp_f32', 'v_log_f32', 'v_rcp_f32', 'v_rsq_f32', 'v_sqrt_f32', 'v_sin_f32', 'v_cos_f32', 'v_rcp_iflag_f32')
NODST_S = ('s_cmp', 's_cbranch', 's_branch', 's_waitcnt', 's_barrier', 's_nop', 's_setprio', 's_sleep', 's_endpgm', 's_bitcmp', 's_setreg', 's_sendmsg')

class Ins:
    __slots__ = ('text', 'mn', 'kind', 'dst', 'src', 'passes', 'ab', 'c', 'wide', 'pos', 'trans', 'dot', 'shape')

def split_ops(s):
    ops, depth, cur = [], 0, ''
    for ch in s:
        if ch in '[(': depth += 1
        if ch in '])': depth -= 1
        if ch == ',' and depth == 0:
            ops.append(cur.strip()); cur = ''
        else:
            cur += ch
    if cur.strip(): ops.append(cur.strip())
    return ops

def parse(text):
    t = text.split(';')[0].strip()
    mn, _, rest = t.partition(' ')
    ops = split_ops(rest)
    i = Ins(); i.text = text; i.mn = mn; i.dst = set(); i.src = set(); i.passes = 0
    i.ab = set(); i.c = set(); i.wide = False; i.trans = False; i.dot = False; i.shape = None
    base = re.sub(r'_e(32|64)$', '', mn)
    if mn.startswith('v_mfma'):
        i.kind = 'mfma'; i.passes = 8 if '32x32' in mn else 4; i.shape = mn
        i.dst = regs_of(ops[0]); i.ab = regs_of(ops[1]) | regs_of(ops[2]); i.c = regs_of(ops[3]); i.src = i.ab | i.c
    elif mn.startswith('v_permlane'):
        i.kind = 'valu'; i.dst = regs_of(ops[0]) | regs_of(ops[1]); i.src = set(i.dst)
    elif mn.startswith('v_'):
        i.kind = 'valu'
        nd = 2 if re.match(r'v_(add|sub|subrev|addc|subb)_co_', mn) or mn.startswith('v_mad_u64') else 1
        for o in ops[:nd]: i.dst |= regs_of(o)
        for o in ops[nd:]: i.src |= regs_of(o)
        if base in ('v_fmac_f32', 'v_dot2c_f32_bf16', 'v_writelane_b32', 'v_pk_fmac_f16') : i.src |= i.dst
        i.trans = base in TRANS
        i.dot = base.startswith('v_dot')
    elif mn.startswith('buffer_load') or mn.startswith('global_load'):
        if re.search(r'\blds\b', t) or '_lds_' in mn:
            i.kind = 'dma'
            for o in ops: i.src |= regs_of(o)
            i.src.add(('m0', 0))
        else:
            i.kind = 'vload'; i.dst = regs_of(ops[0])
            for o in ops[1:]: i.src |= regs_of(o)
            if 'd16' in mn: i.src |= i.dst
    elif mn.startswith('buffer_store') or mn.startswith('global_store') or mn.startswith('buffer_atomic'):
        i.kind = 'vstore'
        for o in ops: i.src |= regs_of(o)
        i.wide = mn.endswith('x3') or mn.endswith('x4')
        dop = ops[0] if mn.startswith('buffer') else ops[1]
        i.c = regs_of(dop)
    elif mn.startswith('ds_read') or mn.startswith('ds_bpermute') or mn.startswith('ds_swizzle'):
        i.kind = 'dsr'; i.dst = regs_of(ops[0])
        for o in ops[1:]: i.src |= regs_of(o)
    elif mn.startswith('ds_write'):
        i.kind = 'dsw'
        for o in ops: i.src |= regs_of(o)
    elif mn.startswith('s_load') or mn.startswith('s_memtime') or mn.startswith('s_memrealtime'):
        i.kind = 'smem'; i.dst = regs_of(ops[0])
        for o in ops[1:]: i.src |= regs_of(o)
    elif mn.startswith('s_'):
        i.kind = 'salu'
        if any(mn.startswith(p) for p in NODST_S):
            for o in ops: i.src |= regs_of(o)
            if 'vccz' in mn or 'vccnz' in mn: i.src.add(('vcc', 0))
        else:
            i.dst = regs_of(ops[0])
            for o in ops[1:]: i.src |= regs_of(o)
            if 'saveexec' in mn: i.dst.add(('exec', 0)); i.src.add(('exec', 0))
            if mn.startswith('s_addk') or mn.startswith('s_mulk'): i.src |= i.dst
    else:
        raise ValueError('unknown instr ' + text)
    return i

def vonly(s): return {r for r in s if r[0] == 'v'}
def sonly(s): return {r for r in s if r[0] in ('s', 'vcc')}

class Emit:
    def __init__(self):
        self.out = []
        self.ool = []
        self.hist = []
        self.pos = 0
        self.vm = []
        self.lg = []
        self.nlab = 0
        self.nins = 0
        self.nnop = 0
    def snap(self):
        return (list(self.hist), self.pos, copy.deepcopy(self.vm), copy.deepcopy(self.lg))
    def restore(self, s):
        self.hist, self.pos, self.vm, self.lg = list(s[0]), s[1], copy.deepcopy(s[2]), copy.deepcopy(s[3])
    def newlabel(self, p='L'):
        self.nlab += 1
        return f'{p}_{self.nlab}'
    def raw(self, t): self.out.append(t)
    def label(self, l): self.out.append(l + ':')
    def comment(self, t): self.out.append('  ; ' + t)
    def _emit(self, text, states=1):
        self.out.append('  ' + text); self.pos += states; self.nins += 1
    def _wait(self, vmn=None, lgn=None):
        parts = []
        if vmn is not None: parts.append(f'vmcnt({min(vmn, 63)})')
        if lgn is not None: parts.append(f'lgkmcnt({min(lgn, 15)})')
        if parts: self._emit('s_waitcnt ' + ' '.join(parts))
    def _vm_need(self, idx):
        n = sum(1 for e in self.vm[idx + 1:] if not e['maybe'])
        self.vm = self.vm[idx + 1:]
        return n
    def _lg_need(self, idx):
        if any(e['smem'] for e in self.lg):
            self.lg = []; return 0
        n = len(self.lg) - idx - 1
        self.lg = self.lg[idx + 1:]
        return n
    def wait_tag(self, tag):
        vi = max([k for k, e in enumerate(self.vm) if e['tag'] == tag], default=None)
        li = max([k for k, e in enumerate(self.lg) if e['tag'] == tag], default=None)
        vn = self._vm_need(vi) if vi is not None else None
        ln = self._lg_need(li) if li is not None else None
        self._wait(vn, ln)
    def wait_vm0(self):
        self.vm = []; self._wait(0, None)
    def wait_lg0(self):
        self.lg = []; self._wait(None, 0)
    def wait_all(self):
        self.vm = []; self.lg = []; self._wait(0, 0)
    def barrier(self):
        self._emit('s_barrier')
    def nop(self, n):
        while n > 0:
            k = min(n, 16)
            self._emit(f's_nop {k-1}', k); n -= k; self.nnop += 1
    def I(self, text, tag=None, maybe=False):
        i = parse(text)
        assert not (i.mn.startswith('v_pk_') and 'op_sel:' in text), 'hi->lo select is unreliable next to 16x16x32 MFMA: ' + text
        touch = i.src | i.dst
        vi = max([k for k, e in enumerate(self.vm) if e['dst'] & touch], default=None)
        li = max([k for k, e in enumerate(self.lg) if e['dst'] & touch], default=None)
        vn = self._vm_need(vi) if vi is not None else None
        ln = self._lg_need(li) if li is not None else None
        self._wait(vn, ln)
        need = 0
        for p in self.hist:
            d = self.pos - p.pos - 1
            r = self.req(p, i)
            if r > d: need = max(need, r - d)
        if need: self.nop(need)
        i.pos = self.pos
        self._emit(text)
        self.hist.append(i)
        self.hist = [p for p in self.hist if self.pos - p.pos <= 24]
        if i.kind in ('vload', 'dma', 'vstore'):
            self.vm.append(dict(dst=set(i.dst), tag=tag, maybe=maybe))
            assert len(self.vm) <= 63, 'vmcnt overflow'
        elif i.kind in ('dsr', 'dsw', 'smem'):
            self.lg.append(dict(dst=set(i.dst), tag=tag, smem=i.kind == 'smem'))
        return i
    @staticmethod
    def req(p, i):
        r = 0
        mem = i.kind in ('vload', 'dma', 'vstore', 'dsr', 'dsw')
        if p.kind == 'mfma':
            big = p.passes == 8
            if i.kind == 'mfma':
                if p.dst & i.ab: r = max(r, 12 if big else 8)
                if p.dst & i.c:
                    if not (p.dst == i.c and p.shape == i.shape): r = max(r, 10 if big else 6)
                if p.dst & i.dst and not (p.dst & i.c): r = max(r, 12 if big else 8)
            elif i.kind == 'valu' or mem:
                if p.dst & (i.src | i.dst): r = max(r, 12 if big else 8)
                if p.c & i.dst: r = max(r, 7 if big else 3)
        elif p.kind == 'valu':
            pv = vonly(p.dst); ps = sonly(p.dst)
            if i.kind == 'mfma' and pv & i.src: r = max(r, 3 if p.dot else 2)
            if i.kind == 'valu':
                if i.mn.startswith('v_permlane') and pv & i.src: r = max(r, 2)
                if ('dpp' in i.text or 'row_' in i.text or 'quad_perm' in i.text) and pv & i.src: r = max(r, 2)
                if (i.mn.startswith('v_readlane') or i.mn.startswith('v_readfirstlane')) and pv & i.src: r = max(r, 1)
                if p.trans and pv & i.src: r = max(r, 1)
                if ps & i.src:
                    r = max(r, 4 if (i.mn.startswith('v_readlane') or i.mn.startswith('v_writelane')) else 2)
                if p.dot and pv & (i.src | i.dst):
                    same_c = (i.mn == p.mn) and not (pv & (i.src - i.dst)) and (pv & i.dst)
                    if not same_c: r = max(r, 3)
                if 'op_sel' in p.text and not p.mn.startswith('v_pk_') and pv & i.src: r = max(r, 1)
            if p.dot and mem and pv & i.src: r = max(r, 3)
            if i.kind in ('vload', 'dma', 'vstore') and ps & i.src: r = max(r, 5)
            if i.kind == 'salu' and ps & i.src: r = max(r, 1)
        elif p.kind == 'salu':
            if ('m0', 0) in p.dst and i.kind == 'dma': r = max(r, 1)
        elif p.kind == 'vstore':
            if p.wide and p.c & i.dst: r = max(r, 2)
        return r
    def text(self):
        return '\n'.join(self.out + self.ool) + '\n'
```

```python
from gen import *

sGC, sONE = 88, 90
L_CS1 = 161280
F_O, F_T, F_P = G_FLG, G_FLG + 0x100, G_FLG + 0x200
MF16 = 'v_mfma_f32_16x16x32_bf16'
MF32 = 'v_mfma_f32_32x32x16_bf16'

def gelu_consts(k):
    I = k.I
    I(f's_mov_b32 s{sGC}, 0xbdd2d3e8')
    I(f's_mov_b32 s{sGC+1}, 0xc013575f')
    I(f's_mov_b32 s{sONE}, 1.0'); I(f's_mov_b32 s{sONE+1}, 1.0')

def gelu_ops(x, T, n):
    L = []
    g = f's[{sGC}:{sGC+1}]'
    for i in range(0, n, 2): L.append(f'v_pk_mul_f32 {vr(T+i,2)}, {vr(x+i,2)}, {vr(x+i,2)}')
    for i in range(0, n, 2): L.append(f'v_pk_fma_f32 {vr(T+i,2)}, {vr(T+i,2)}, {g}, {g} op_sel:[0,0,1] op_sel_hi:[1,0,1]')
    for i in range(0, n, 2): L.append(f'v_pk_mul_f32 {vr(T+i,2)}, {vr(T+i,2)}, {vr(x+i,2)}')
    for i in range(n): L.append(f'v_exp_f32 v{T+i}, v{T+i}')
    for i in range(0, n, 2): L.append(f'v_pk_add_f32 {vr(T+i,2)}, {vr(T+i,2)}, s[{sONE}:{sONE+1}]')
    for i in range(n): L.append(f'v_rcp_f32 v{T+i}, v{T+i}')
    for i in range(0, n, 2): L.append(f'v_pk_mul_f32 {vr(x+i,2)}, {vr(x+i,2)}, {vr(T+i,2)}')
    return L

vZ, vSIG, vTAG, vB, vST = 13, 26, 27, 28, 29
SB = [5, 6, 7, 8]
BF = 76
AR = 148
NSLOT = 6
HR = 60
ACC = 44
CS1 = 132

def a_read(k, m, t):
    b = AR + 16*(m % NSLOT) + 4*t
    k.I(f'ds_read_b64_tr_b16 {vr(b,2)}, v{SB[t]} offset:{m*4096}')
    k.I(f'ds_read_b64_tr_b16 {vr(b+2,2)}, v{SB[t]} offset:{m*4096+512}')

def a_preload(k):
    for m in range(NSLOT):
        for t in range(4): a_read(k, m, t)

def b_loads(k, region, addr=None):
    I = k.I
    for m in range(14):
        so = sT[4 + (m >> 2)]
        if m % 4 == 0: I(f's_mov_b32 s{so}, {region + (m >> 2)*4096}')
        va = vB if addr is None else addr[m]
        I(f'buffer_load_dwordx4 {vr(BF+4*m,4)}, v{va}, {srd("ws")}, s{so} offen offset:{(m&3)*1024} sc1')

def gemm(k, acc, zero, hook=None):
    I = k.I
    for m in range(14):
        for t in range(4):
            b = AR + 16*(m % NSLOT) + 4*t
            c = '0' if (zero and m == 0) else vr(acc+4*t, 4)
            I(f'{MF16} {vr(acc+4*t,4)}, {vr(b,4)}, {vr(BF+4*m,4)}, {c}')
            if m + NSLOT < 14: a_read(k, m + NSLOT, t)
        if hook: hook(m)

def pack_pairs(k, src, P):
    k.cvt(P, src, 16)
    for pp in range(2):
        k.I(f'v_permlane16_swap_b32 v{P+4*pp}, v{P+4*pp+2}')
        k.I(f'v_permlane16_swap_b32 v{P+4*pp+1}, v{P+4*pp+3}')

def publish_stats(k, src, region, streg, T):
    e, I = k.e, k.I
    P = T
    pack_pairs(k, src, P)
    so = sT[4]
    I(f's_mov_b32 s{so}, {region}')
    k.stores([f'buffer_store_dwordx4 {vr(P,4)}, v{vST}, {srd("ws")}, s{so} offen',
              f'buffer_store_dwordx4 {vr(P+4,4)}, v{vST}, {srd("ws")}, s{so} offen offset:1024'])
    S = T + 8
    I(f'v_pk_add_f32 {vr(S,2)}, {vr(src,2)}, {vr(src+2,2)}')
    I(f'v_pk_mul_f32 {vr(S+2,2)}, {vr(src,2)}, {vr(src,2)}')
    I(f'v_pk_fma_f32 {vr(S+2,2)}, {vr(src+2,2)}, {vr(src+2,2)}, {vr(S+2,2)}')
    for i in range(4, 16, 2):
        I(f'v_pk_add_f32 {vr(S,2)}, {vr(S,2)}, {vr(src+i,2)}')
        I(f'v_pk_fma_f32 {vr(S+2,2)}, {vr(src+i,2)}, {vr(src+i,2)}, {vr(S+2,2)}')
    I(f'v_add_f32 v{S+4}, v{S}, v{S+1}')
    I(f'v_add_f32 v{S+5}, v{S+2}, v{S+3}')
    k.allred2(S+4, S+5, S, 'v_add_f32')
    I(f'v_mov_b32 v{S+6}, v{vTAG}')
    I(f's_mov_b32 s{so}, {streg}')
    e.wait_vm0()
    k.stores([f'buffer_store_dwordx3 {vr(S+4,3)}, v9, {srd("ws")}, s{so} offen'])

def poll_stats(k, streg, name, D, va, vb):
    I = k.I
    so = sT[4]
    I(f's_mov_b32 s{so}, {streg}')
    def chk():
        I(f'v_cmp_ne_u32 vcc, s{sTAG}, v{D+2}')
        I(f'v_cmp_ne_u32 s[{sT[2]}:{sT[3]}], s{sTAG}, v{D+6}')
        I(f's_or_b64 vcc, vcc, s[{sT[2]}:{sT[3]}]')
    k.poll([f'buffer_load_dwordx3 {vr(D,3)}, v{va}, {srd("ws")}, s{so} offen sc1',
            f'buffer_load_dwordx3 {vr(D+4,3)}, v{vb}, {srd("ws")}, s{so} offen sc1'], chk, name)

def row_stats(k, D):
    I = k.I
    I(f'v_fmac_f32 v{D}, v{D+4}, v22')
    I(f'v_fmac_f32 v{D+1}, v{D+5}, v22')
    k.allred2(D, D+1, D+2, 'v_add_f32')
    I(f'v_mul_f32 v{D}, s{sC448}, v{D}')
    I(f'v_mul_f32 v{D+2}, v{D}, v{D}')
    I(f'v_fma_f32 v{D+1}, v{D+1}, s{sC448}, -v{D+2}')

def stat_addrs(k, n_sreg, va, vb):
    I = k.I
    t0 = sT[0]
    I(f's_lshl_b32 s{t0}, s{n_sreg}, 11'); I(f's_add_u32 s{t0}, s{t0}, s{sGB}')
    I(f'v_add_u32 v{va}, s{t0}, v4')
    I(f'v_add_u32 v{vb}, 1024, v{va}')
    I('v_cmp_eq_u32 vcc, 3, v3')
    I(f'v_cndmask_b32 v{vb}, v{vb}, v{va}, vcc')

def main_pre(k):
    I = k.I
    t0, t1 = sT[0], sT[1]
    I(f's_lshl_b32 s{t0}, s{sG}, 6'); I(f's_lshl_b32 s{t1}, s{sW}, 4'); I(f's_add_u32 s{t0}, s{t0}, s{t1}')
    I(f'v_add_u32 v15, s{t0}, v2'); I('v_mul_u32_u24 v30, 896, v15')
    I(f's_lshl_b32 s{t0}, s{sJ}, 7')
    I(f'v_add_u32 v30, s{t0}, v30')
    I('v_lshl_add_u32 v15, v3, 3, v30')
    for t in range(4):
        I(f'buffer_load_dwordx2 {vr(36+2*t,2)}, v15, {srd("x")}, 0 offen offset:{t*32}')

def main_rest(k):
    e, I = k.e, k.I
    t0, t1, t2, t3 = sT[0:4]
    I(f's_cmp_eq_u32 s{sJ}, 7')
    I('s_cbranch_scc1 Lmfin')
    gelu_consts(k)
    I(f's_mul_i32 s{t0}, s{sW}, {TILE}'); I(f's_add_u32 s{t0}, s{t0}, s{sGB}')
    I(f'v_add_u32 v{vB}, s{t0}, v4')
    I(f's_lshl_b32 s{t1}, s{sJ}, 11'); I(f's_add_u32 s{t0}, s{t0}, s{t1}')
    I(f'v_lshlrev_b32 v31, 8, v{vSIG}'); I('v_lshl_add_u32 v31, v2, 4, v31')
    I(f'v_add_u32 v{vST}, s{t0}, v31')
    I(f'v_lshl_add_u32 v30, v{vSIG}, 4, v30')
    I(f's_lshl_b32 s{t0}, s{sW}, 3'); I(f's_add_u32 s{t0}, s{t0}, s{sJ}'); I(f's_lshl_b32 s{t0}, s{t0}, 8')
    I(f's_add_u32 s{t0}, s{t0}, s{sGB}')
    I(f'v_add_u32 v9, s{t0}, v4'); I(f'v_mov_b32 v20, {BIG}')
    I('v_cmp_eq_u32 vcc, 0, v3'); I('v_cndmask_b32 v9, v20, v9, vcc')
    stat_addrs(k, sW, 10, 11)
    I('v_bfe_u32 v15, v1, 2, 2')
    I('v_lshl_add_u32 v16, v3, 3, v15'); I('v_lshlrev_b32 v16, 7, v16')
    I('v_and_b32 v17, 3, v1'); I('v_lshl_add_u32 v16, v17, 3, v16')
    I('v_lshrrev_b32 v15, 1, v15'); I('v_and_b32 v17, 1, v3'); I('v_lshl_add_u32 v15, v17, 1, v15')
    I(f'v_lshl_add_u32 v{SB[0]}, v15, 5, v16')
    for t in range(1, 4): I(f'v_xor_b32 v{SB[t]}, {t*32}, v{SB[0]}')
    for t in range(4):
        for d in range(2):
            I(f'v_lshlrev_b32 v{HR+4*t+2*d}, 16, v{36+2*t+d}')
            I(f'v_and_b32 v{HR+4*t+2*d+1}, 0xffff0000, v{36+2*t+d}')
    e.barrier()
    k.stamp('b5')
    a_preload(k)
    I(f's_lshl_b32 s{t0}, s{sW}, 6'); I(f's_add_u32 s{t0}, s{t0}, s{sGB}'); I(f's_add_u32 s{t0}, s{t0}, {F_O}')
    I('v_lshlrev_b32 v15, 2, v2')
    def chk(): I(f'v_cmp_ne_u32 vcc, s{sTAG}, v16')
    k.poll([f'buffer_load_dword v16, v15, {srd("ws")}, s{t0} offen sc1'], chk, 'o')
    k.stamp('po')
    b_loads(k, G_O)
    gemm(k, HR, False)
    k.stamp('hg')
    publish_stats(k, HR, G_H, G_STH, BF)
    k.stamp('hp')
    if k.stop == 'h': e.label('Lmfin'); return
    for t in range(4): I(f'v_add_u32 v{SB[t]}, {RB}, v{SB[t]}')
    e.wait_lg0(); e.barrier()
    a_preload(k)
    D = 32
    poll_stats(k, G_STH, 'h', D, 10, 11)
    k.stamp('ph')
    b_loads(k, G_H)
    row_stats(k, D)
    I(f'v_add_f32 v{D+2}, 0x3727c5ac, v{D+1}'); I(f'v_rsq_f32 v{D+4}, v{D+2}')
    I(f'v_mul_f32 v{D+2}, v{D+4}, v{D+4}'); I(f'v_mul_f32 v{D+2}, v{D+2}, v{D+1}')
    I(f'v_add_f32 v{D+2}, 0x3727c5ac, v{D+2}'); I(f'v_rsq_f32 v{D+2}, v{D+2}')
    I(f'v_mul_f32_e64 v{D+5}, -v{D}, v{D+4}')
    I(f'v_mul_f32 v{D+6}, v{D+4}, v{D+2}')
    I(f'v_mul_f32 v{D+7}, v{D+5}, v{D+2}')
    I('v_lshlrev_b32 v15, 4, v3'); I(f'v_add_u32 v15, {L_CS1}, v15')
    def hook(m):
        if m == 11:
            e.barrier()
            for t in range(4): I(f'ds_read_b128 {vr(CS1+4*t,4)}, v15 offset:{t*64}')
    gemm(k, ACC, True, hook)
    k.stamp('tg')
    T = BF
    k.lnfix(ACC, CS1, 16, D+6, T)
    for t in gelu_ops(ACC, T, 16): I(t)
    P = T + 16
    pack_pairs(k, ACC, P)
    for i in (0, 3, 4, 7): I(f'v_min_u32 v{P+i}, -2, v{P+i}')
    so = sT[4]
    I(f's_mov_b32 s{so}, {G_T+TILE}')
    k.stores([f'buffer_store_dwordx4 {vr(P,4)}, v{vST}, {srd("ws")}, s{so} offen',
              f'buffer_store_dwordx4 {vr(P+4,4)}, v{vST}, {srd("ws")}, s{so} offen offset:1024'], tag='tl')
    I(f's_add_u32 s{t0}, s{sG}, 1'); I(f's_mul_i32 s{t0}, s{t0}, {GS}'); I(f's_add_u32 s{t0}, s{t0}, {WS_G+G_T}')
    I(f's_cmp_eq_u32 s{sG}, 31'); I(f's_cselect_b32 s{t0}, {BIG}, s{t0}')
    I(f's_sub_u32 s{t1}, s{sG}, 1'); I(f's_mul_i32 s{t1}, s{t1}, {GS}'); I(f's_add_u32 s{t1}, s{t1}, {WS_G+G_T+5*TILE}')
    I(f's_cmp_eq_u32 s{sG}, 0'); I(f's_cselect_b32 s{t1}, {BIG}, s{t1}')
    I(f's_cmp_eq_u32 s{sW}, 3'); I(f's_cselect_b32 s{t0}, s{t0}, s{t1}')
    I(f's_cselect_b32 s{t2}, 0xc000c000, 0')
    I(f's_cmp_eq_u32 s{sW}, 0'); I(f's_cselect_b32 s{t2}, 0x00030003, s{t2}'); I(f's_mov_b32 s{t3}, s{t2}')
    I(f's_lshl_b32 s{t1}, s{sJ}, 11'); I(f's_add_u32 s{t0}, s{t0}, s{t1}')
    I(f'v_add_u32 v15, s{t0}, v31')
    I(f'v_cndmask_b32 v15, v20, v15, s[{t2}:{t3}]')
    I(f'buffer_store_dwordx4 {vr(P,4)}, v15, {srd("ws")}, 0 offen sc1')
    I(f'buffer_store_dwordx4 {vr(P+4,4)}, v15, {srd("ws")}, 0 offen offset:1024 sc1')
    I(f's_lshl_b32 s{t0}, s{sW}, 5'); I(f's_lshl_b32 s{t1}, s{sJ}, 2'); I(f's_add_u32 s{t0}, s{t0}, s{t1}')
    I(f's_add_u32 s{t0}, s{t0}, s{sGB}'); I(f's_add_u32 s{t0}, s{t0}, {F_T}')
    I('v_cmp_eq_u32 vcc, 0, v1'); I(f'v_cndmask_b32 v21, v20, v{vZ}, vcc')
    e.wait_tag('tl')
    k.stores([f'buffer_store_dword v{vTAG}, v21, {srd("ws")}, s{t0} offen'])
    k.stamp('tp')
    for i in range(0, 16, 2):
        I(f'v_pk_fma_f32 {vr(ACC+i,2)}, {vr(HR+i,2)}, {vr(D+4,2)}, {vr(D+4,2)} op_sel:[0,0,1] op_sel_hi:[1,0,1]')
    if k.stop == 't': e.label('Lmfin'); return
    for t in range(4): I(f'v_subrev_u32 v{SB[t]}, {RB}, v{SB[t]}')
    I(f's_lshl_b32 s{t0}, s{sW}, 4'); I(f's_add_u32 s{t0}, s{t0}, 16')
    I(f'v_add_u32 v15, s{t0}, v2')
    I(f'v_lshlrev_b32 v16, 8, v3'); I(f'v_add_u32 v16, s{sGB}, v16')
    for i, d in enumerate((-1, 1, -2, 2)):
        I(f'v_add_u32 v17, {d}, v15')
        I('v_lshrrev_b32 v18, 4, v17'); I(f'v_mul_u32_u24 v18, {TILE}, v18')
        I('v_and_b32 v17, 15, v17'); I('v_lshl_add_u32 v18, v17, 4, v18')
        I(f'v_add_u32 v{32+i}, v18, v16')
    I('v_cmp_gt_u32 vcc, 2, v3')
    I('v_cndmask_b32 v36, v33, v32, vcc'); I('v_cndmask_b32 v37, v35, v34, vcc')
    addr = [32]*3 + [36] + [33]*3 + [34]*3 + [37] + [35]*3
    I('v_lshrrev_b32 v15, 3, v1'); I(f'v_add_u32 v15, s{sW}, v15'); I('v_add_u32 v15, -1, v15')
    I(f's_add_u32 s{t0}, s{sW}, 1'); I(f's_min_u32 s{t0}, s{t0}, 3')
    I(f'v_med3_i32 v15, v15, 0, s{t0}')
    I('v_and_b32 v16, 7, v1'); I('v_min_u32 v16, 6, v16'); I('v_lshlrev_b32 v16, 2, v16')
    I('v_lshl_add_u32 v15, v15, 5, v16'); I(f'v_add_u32 v15, {F_T}, v15')
    I(f's_cmp_eq_u32 s{sW}, 0'); I(f's_cselect_b32 s{t0}, {G_T+236}, {0}')
    I(f's_cmp_eq_u32 s{sW}, 3'); I(f's_cselect_b32 s{t0}, {G_T+5*TILE+12}, s{t0}')
    I(f's_cmp_eq_u32 s{t0}, 0'); I(f's_cselect_b32 s{t0}, {BIG}, s{t0}')
    I('v_lshlrev_b32 v17, 8, v1'); I(f'v_add_u32 v17, s{t0}, v17')
    I('v_cmp_gt_u32 vcc, 56, v1'); I('v_cndmask_b32 v17, v20, v17, vcc')
    e.wait_lg0(); e.barrier()
    a_preload(k)
    def chk():
        I('v_max_u32 v18, v18, v19')
        I(f'v_cmp_ne_u32 vcc, s{sTAG}, v16')
        I(f'v_cmp_eq_u32 s[{t2}:{t3}], -1, v18')
        I(f's_or_b64 vcc, vcc, s[{t2}:{t3}]')
    k.poll([f'buffer_load_dword v16, v15, {srd("ws")}, s{sGB} offen sc1',
            f'buffer_load_dwordx2 v[18:19], v17, {srd("ws")}, s{sGB} offen sc1'], chk, 't')
    k.stamp('pt')
    b_loads(k, G_T, addr)
    gemm(k, ACC, False)
    k.stamp('xg')
    publish_stats(k, ACC, G_X1, G_STX, BF)
    k.stamp('xp')
    for i in range(0, 16, 2):
        I(f'v_pk_add_f32 {vr(HR+i,2)}, {vr(HR+i,2)}, {vr(ACC+i,2)}')
    if k.stop == 'x1': e.label('Lmfin'); return
    for pp in range(2):
        for r in range(4): I(f'v_permlane16_swap_b32 v{HR+8*pp+r}, v{HR+8*pp+4+r}')
    poll_stats(k, G_STX, 'x', D, 10, 11)
    k.stamp('px')
    x1_dma(k, sW, 0, vB)
    row_stats(k, D)
    I(f'v_add_f32 v{D+2}, 0x3727c5ac, v{D+1}'); I(f'v_rsq_f32 v{D+4}, v{D+2}')
    I(f'v_mul_f32_e64 v{D+5}, -v{D}, v{D+4}')
    I(f's_lshl_b32 s{t0}, s{sW}, 7'); I(f's_add_u32 s{t0}, s{t0}, {L_STAT}')
    I('v_lshlrev_b32 v15, 3, v2'); I(f'v_add_u32 v15, s{t0}, v15')
    I(f'ds_write_b64 v15, {vr(D+4,2)}')
    W4O = 5
    I(f's_mul_i32 s{t0}, s{sW}, 224')
    for i in range(7):
        I(f'v_add_u32 v15, {64*i}, v1')
        I('v_mul_u32_u24 v16, 4682, v15'); I('v_lshrrev_b32 v16, 16, v16')
        I('v_mul_u32_u24 v16, 672, v16')
        I('v_lshl_add_u32 v16, v15, 4, v16')
        I(f'v_add_u32 v{W4O+i}, s{t0}, v16')
    I('v_lshrrev_b32 v15, 1, v3'); I('v_lshlrev_b32 v15, 4, v15')
    I('v_and_b32 v16, 1, v3'); I('v_lshl_add_u32 v15, v16, 2, v15')
    I('v_bfe_u32 v16, v1, 2, 2'); I('v_add_u32 v15, v15, v16')
    I('v_mul_u32_u24 v15, 224, v15')
    I('v_and_b32 v16, 3, v1'); I('v_lshl_add_u32 v15, v16, 3, v15')
    sRING = sT[8]
    I(f's_mul_i32 s{sRING}, s{sW}, 14336')
    I(f's_and_b32 s{t1}, s{sW}, 1')
    I(f's_lshl_b32 s{t2}, s{t1}, 5'); I(f's_add_u32 s{t2}, s{t2}, s{sRING}')
    I(f'v_add_u32 v12, s{t2}, v15')
    I(f's_cmp_eq_u32 s{t1}, 1'); I(f's_cselect_b32 s{t2}, 0, 192'); I(f's_add_u32 s{t2}, s{t2}, s{sRING}')
    I(f'v_add_u32 v14, s{t2}, v15')
    I(f'v_add_u32 v23, {RC}, v4')
    I(f's_mul_i32 s{t0}, s{sJ}, {0xE000}'); I(f's_add_u32 s{t0}, s{t0}, s{sGB}'); I(f's_add_u32 s{t0}, s{t0}, {G_PART}')
    I(f's_mul_i32 s{t2}, s{sW}, {14*256}'); I(f's_add_u32 s{t0}, s{t0}, s{t2}')
    I(f's_lshl_b32 s{t2}, s{t1}, 9'); I(f's_add_u32 s{t2}, s{t2}, s{t0}')
    I(f'v_add_u32 v24, s{t2}, v31')
    I(f's_cmp_eq_u32 s{t1}, 1'); I(f's_cselect_b32 s{t2}, 0, {12*256}'); I(f's_add_u32 s{t2}, s{t2}, s{t0}')
    I('v_lshrrev_b32 v15, 1, v3'); I('v_lshlrev_b32 v15, 8, v15'); I('v_lshl_add_u32 v15, v2, 4, v15')
    I('v_and_b32 v16, 1, v3'); I('v_lshl_add_u32 v15, v16, 3, v15')
    I(f'v_add_u32 v25, s{t2}, v15')
    sW4 = sT[9]
    I(f's_mul_i32 s{sW4}, s{sJ}, {256*896}')
    e.wait_all(); e.barrier()
    k.stamp('b8')
    DA = 144
    A4 = [32, 76, 104]
    UB = 132
    UBR = [132, 136, 140, 16]
    def blk_row(b): return (b & 3)*64 + (b >> 2)*32
    def w4_dma(b):
        I(f's_add_u32 s{t0}, s{sW4}, {blk_row(b)*896}')
        for i in range(7):
            I(f's_add_u32 m0, s{sRING}, {RA + (b & 1)*7168 + i*1024}')
            I(f'buffer_load_dwordx4 v{W4O+i}, {srd("w4")}, s{t0} offen lds', tag=f'w4_{b}')
    def w4_rd(b, lam):
        a = A4[b % 3] + 4*lam
        vb, off = (12, lam*32) if lam < 6 else (14, 0)
        off += (b & 1)*7168
        I(f'ds_read_b64_tr_b16 {vr(a,2)}, v{vb} offset:{off}', tag=f'r4_{b}')
        I(f'ds_read_b64_tr_b16 {vr(a+2,2)}, v{vb} offset:{off+8*224}', tag=f'r4_{b}')
    def w4_take(b):
        e.wait_tag(f'w4_{b}')
        for lam in range(7): w4_rd(b, lam)
        e.wait_tag(f'r4_{b}')
        if b + 2 < 8: w4_dma(b + 2)
    def u_rd(b, n):
        ft = (b & 3)*2 + (b >> 2)
        I(f'ds_read_b128 {vr(UBR[n],4)}, v23 offset:{ft*4096 + n*1024}')
    w4_dma(0); w4_dma(1)
    w4_take(0); w4_take(1); w4_take(2)
    for b in range(8):
        if b in (0, 4):
            e.barrier()
            k.stamp('b9' if b == 0 else 'b10')
            for n in range(4): u_rd(b, n)
        for n in range(4):
            for lam in range(7):
                acc = DA + 16*lam + 4*n
                I(f'{MF16} {vr(acc,4)}, {vr(A4[b%3]+4*lam,4)}, {vr(UBR[n],4)}, ' + ('0' if b == 0 else vr(acc, 4)))
            if b + 1 < 8 and b + 1 != 4: u_rd(b + 1, n)
        if b + 3 < 8: w4_take(b + 3)
    k.stamp('dg')
    st = []
    PK = 32
    for n in range(4):
        I(f's_mov_b32 s{sT[4+n]}, {n*TILE}')
    for n in range(4):
        for pp in range(3):
            P = PK + 16*n + 4*pp if n < 1 else 76 + 16*(n-1) + 4*pp
            a, b_ = DA + 16*(2*pp) + 4*n, DA + 16*(2*pp+1) + 4*n
            k.cvt(P, a, 4); k.cvt(P+2, b_, 4)
            I(f'v_permlane16_swap_b32 v{P}, v{P+2}'); I(f'v_permlane16_swap_b32 v{P+1}, v{P+3}')
            st.append(f'buffer_store_dwordx4 {vr(P,4)}, v24, {srd("ws")}, s{sT[4+n]} offen offset:{pp*1024}')
        P = PK + 12 if n < 1 else 76 + 16*(n-1) + 12
        k.cvt(P, DA + 16*6 + 4*n, 4)
        st.append(f'buffer_store_dwordx2 {vr(P,2)}, v25, {srd("ws")}, s{sT[4+n]} offen')
        k.stores(st); st = []
    I(f's_lshl_b32 s{t0}, s{sJ}, 4'); I(f's_lshl_b32 s{t1}, s{sW}, 2'); I(f's_add_u32 s{t0}, s{t0}, s{t1}')
    I(f's_add_u32 s{t0}, s{t0}, s{sGB}'); I(f's_add_u32 s{t0}, s{t0}, {F_P}')
    e.wait_vm0()
    k.stores([f'buffer_store_dword v{vTAG}, v21, {srd("ws")}, s{t0} offen'])
    k.stamp('pp')
    if k.stop == 'part': e.label('Lmfin'); return
    I('v_min_u32 v15, 27, v1'); I('v_lshlrev_b32 v15, 2, v15'); I(f'v_add_u32 v15, {F_P}, v15')
    def chk(): I(f'v_cmp_ne_u32 vcc, s{sTAG}, v16')
    k.poll([f'buffer_load_dword v16, v15, {srd("ws")}, s{sGB} offen sc1'], chk, 'p')
    k.stamp('pf')
    for j in range(7):
        so = sT[4 + (j & 3)]
        I(f's_mov_b32 s{so}, {G_PART + j*0xE000}')
        for pp in range(2):
            I(f'buffer_load_dwordx4 {vr(BF+8*j+4*pp,4)}, v{vST}, {srd("ws")}, s{so} offen offset:{pp*1024} sc1')
    TT = 144
    for j in range(7):
        for pp in range(2):
            for d in range(4):
                src = BF + 8*j + 4*pp + d
                tt = TT + 2*((4*pp + d) & 7)
                I(f'v_lshlrev_b32 v{tt}, 16, v{src}')
                I(f'v_and_b32 v{tt+1}, 0xffff0000, v{src}')
            for d in range(4):
                tt = TT + 2*((4*pp + d) & 7)
                I(f'v_pk_add_f32 {vr(HR+8*pp+2*d,2)}, {vr(HR+8*pp+2*d,2)}, {vr(tt,2)}')
    k.cvt(32, HR, 16)
    I(f'buffer_store_dwordx4 v[32:35], v30, {srd("out")}, 0 offen')
    I(f'buffer_store_dwordx4 v[36:39], v30, {srd("out")}, 0 offen offset:64')
    k.stamp('end')
    e.label('Lmfin')

def x1_dma(k, n_sreg, m0_, vaddr):
    I = k.I
    t0, t1 = sT[0], sT[1]
    I(f's_mul_i32 s{t0}, s{n_sreg}, {TILE}')
    for i in range(7):
        m = m0_ + i
        I(f's_mov_b32 s{t1}, {G_X1 + m*1024}')
        I(f's_add_u32 m0, s{t0}, {RB + m*1024}')
        I(f'buffer_load_dwordx4 v{vaddr}, {srd("ws")}, s{t1} offen sc1 lds')

sA = 87
def sq_dma(k, name, region, tag, rng=range(14)):
    I = k.I
    t0, t1 = sT[0], sT[1]
    for t in rng:
        I(f's_add_u32 m0, s{sT[4]}, {region + t*4096}')
        I(f's_mov_b32 s{t1}, {t*32*896}')
        I(f'buffer_load_dwordx4 v5, {srd(name)}, s{t1} offen lds', tag=tag)

def aux_pre(k):
    I = k.I
    t0, t1 = sT[0], sT[1]
    I(f's_sub_u32 s{sA}, s{sW}, 4')
    I('v_lshrrev_b32 v5, 3, v1'); I(f's_lshl_b32 s{t0}, s{sA}, 3'); I(f'v_add_u32 v5, s{t0}, v5')
    I('v_mul_u32_u24 v5, 896, v5')
    I('v_bfe_u32 v15, v1, 4, 1'); I('v_lshlrev_b32 v15, 1, v15')
    I(f's_and_b32 s{t0}, s{sA}, 1'); I(f's_lshl_b32 s{t0}, s{t0}, 2')
    I('v_and_b32 v16, 7, v1'); I('v_xor_b32 v15, v15, v16'); I(f'v_xor_b32 v15, s{t0}, v15')
    I('v_lshl_add_u32 v5, v15, 4, v5')
    I(f's_min_u32 s{t0}, s{sJ}, 6'); I(f's_lshl_b32 s{t0}, s{t0}, 7'); I(f'v_add_u32 v5, s{t0}, v5')
    I(f's_lshl_b32 s{sT[4]}, s{sA}, 10')
    sq_dma(k, 'wo', RA, 'wo')

def aux_rest(k):
    e, I = k.e, k.I
    t0, t1, t2, t3 = sT[0:4]
    I(f's_cmp_eq_u32 s{sJ}, 7')
    I('s_cbranch_scc1 Lafin')
    gelu_consts(k)
    sq_dma(k, 'w1', RB, 'w1')
    sCA = sT[5]
    I(f's_lshl_b32 s{sCA}, s{sA}, 13'); I(f's_add_u32 s{sCA}, s{sCA}, {RC}')
    I(f's_lshl_b32 s{t0}, s{sJ}, 9'); I(f's_lshl_b32 s{t1}, s{sA}, 7'); I(f's_add_u32 s{t0}, s{t0}, s{t1}')
    I('v_lshrrev_b32 v15, 3, v1'); I('v_mul_u32_u24 v6, 3584, v15')
    I('v_bfe_u32 v15, v1, 4, 1'); I('v_lshlrev_b32 v15, 2, v15'); I('v_and_b32 v16, 7, v1'); I('v_xor_b32 v15, v15, v16')
    I('v_lshl_add_u32 v6, v15, 4, v6'); I(f'v_add_u32 v6, s{t0}, v6')
    I('v_lshrrev_b32 v15, 2, v1'); I('v_mul_u32_u24 v7, 3584, v15')
    I('v_and_b32 v16, 3, v1'); I('v_lshl_add_u32 v7, v16, 4, v7'); I(f'v_add_u32 v7, s{t0}, v7')
    I('v_lshrrev_b32 v15, 5, v1'); I('v_lshlrev_b32 v15, 3, v15')
    I('v_bfe_u32 v17, v1, 2, 2'); I('v_add_u32 v15, v15, v17')
    I('v_and_b32 v18, 1, v3'); I('v_lshlrev_b32 v18, 5, v18'); I('v_lshl_add_u32 v18, v16, 3, v18')
    I(f'v_add_u32 v18, s{sCA}, v18')
    I('v_lshl_add_u32 v10, v15, 6, v18')
    I('v_lshl_add_u32 v8, v15, 7, v18')
    I('v_lshrrev_b32 v17, 1, v17'); I('v_lshl_add_u32 v8, v17, 6, v8')
    I('v_xor_b32 v9, 64, v8')
    A0, A1, AC0, BB = 32, 144, 224, 14
    def w3_dma(c):
        for i in range(4):
            I(f's_add_u32 m0, s{sCA}, {(c & 1)*4096 + i*1024}')
            if c < 10:
                I(f's_mov_b32 s{t1}, {(32*c + 8*i)*3584}')
                I(f'buffer_load_dwordx4 v6, {srd("w3")}, s{t1} offen lds', tag=f'w3_{c}')
            else:
                I(f's_mov_b32 s{t1}, {(320 + 64*(c & 1) + 16*i)*3584 + (64 if c >= 12 else 0)}')
                I(f'buffer_load_dwordx4 v7, {srd("w3")}, s{t1} offen lds', tag=f'w3_{c}')
    def tr2(dst, vb, off, step, tag=None):
        I(f'ds_read_b64_tr_b16 {vr(dst,2)}, v{vb} offset:{off}', tag=tag)
        I(f'ds_read_b64_tr_b16 {vr(dst+2,2)}, v{vb} offset:{off+step}', tag=tag)
    def w3_take(c):
        e.wait_tag(f'w3_{c}')
        if c < 10:
            for mm in range(2):
                tr2(A0 + 4*(2*c+mm), 8, (c & 1)*4096 + mm*2048, 512, 'r3')
                tr2(A1 + 4*(2*c+mm), 9, (c & 1)*4096 + mm*2048, 512, 'r3')
        else:
            for mm in range(4):
                tr2(A0 + 4*(20 + 4*(c & 1) + mm), 10, (c & 1)*4096 + mm*1024, 256, 'r3')
        e.wait_tag('r3')
        if c + 2 < 14: w3_dma(c + 2)
    e.wait_tag('wo'); e.barrier()
    if k.stop == 'h': e.label('Lafin'); return
    w3_dma(0); w3_dma(1)
    for c in range(0, 2): w3_take(c)
    e.wait_tag('w1'); e.barrier()
    sq_dma(k, 'w2', RA, 'w2')
    I('v_bfe_u32 v15, v1, 2, 2')
    I('v_lshl_add_u32 v16, v3, 3, v15'); I('v_lshlrev_b32 v16, 7, v16')
    I('v_and_b32 v17, 3, v1'); I('v_lshl_add_u32 v16, v17, 3, v16')
    I('v_lshrrev_b32 v15, 1, v15'); I('v_and_b32 v17, 1, v3'); I('v_lshl_add_u32 v15, v17, 1, v15')
    I(f'v_xor_b32 v15, s{sA}, v15')
    I('v_lshl_add_u32 v11, v15, 5, v16'); I(f'v_add_u32 v11, {RB}, v11')
    ONE = 26
    for i in range(4): I(f'v_mov_b32 v{ONE+i}, 0x3f803f80')
    CB = AC0 + 4
    for m in range(5): tr2(CB + 4*(m % 6), 11, m*4096, 512)
    for m in range(14):
        if m + 5 < 14: tr2(CB + 4*((m+5) % 6), 11, (m+5)*4096, 512)
        I(f'{MF16} {vr(AC0,4)}, {vr(CB+4*(m%6),4)}, {vr(ONE,4)}, ' + ('0' if m == 0 else vr(AC0, 4)))
    I(f's_lshl_b32 s{t0}, s{sA}, 6'); I(f's_add_u32 s{t0}, s{t0}, {L_CS1}')
    I('v_lshlrev_b32 v15, 4, v3'); I(f'v_add_u32 v15, s{t0}, v15')
    I(f'ds_write_b128 v15, {vr(AC0,4)}')
    e.wait_lg0(); e.barrier()
    if k.stop == 't': e.label('Lafin'); return
    for c in range(2, 6): w3_take(c)
    e.wait_tag('w2'); e.barrier()
    if k.stop == 'x1': e.label('Lafin'); return
    for c in range(6, 12): w3_take(c)
    I(f's_lshl_b32 s{t0}, s{sA}, 8'); I(f's_add_u32 s{t0}, s{t0}, {L_CS3}')
    I('v_lshrrev_b32 v12, 5, v1'); I('v_lshlrev_b32 v12, 6, v12'); I(f'v_add_u32 v12, s{t0}, v12')
    for mt in range(2):
        for m in range(28):
            if mt == 0: a = A0 + 4*m
            elif m < 20: a = A1 + 4*m
            else:
                if m == 20: e.wait_tag('w3_12'); e.wait_tag('w3_13')
                a = AC0 + 16 + 4*(m & 3)
                tr2(a, 10, (m - 20)*1024, 256)
            I(f'{MF32} {vr(AC0,16)}, {vr(a,4)}, {vr(ONE,4)}, ' + ('0' if m == 0 else vr(AC0, 16)))
        for i in range(4):
            I(f'ds_write_b128 v12, {vr(AC0+4*i,4)} offset:{mt*128 + i*16}')
    stat_addrs(k, sA, 30, 31)
    poll_stats(k, G_STX, 'xa', BB, 30, 31)
    I(f's_mul_i32 s{t0}, s{sA}, {TILE}'); I(f's_add_u32 s{t0}, s{t0}, s{sGB}')
    I(f'v_add_u32 v30, s{t0}, v4')
    x1_dma(k, sA, 7, 30)
    I('v_bfe_u32 v15, v1, 4, 1'); I(f'v_mul_u32_u24 v11, {TILE}, v15')
    I('v_lshl_add_u32 v11, v2, 4, v11')
    I('v_lshrrev_b32 v16, 5, v1'); I('v_lshl_add_u32 v11, v16, 8, v11'); I(f'v_add_u32 v11, {RB}, v11')
    I('v_and_b32 v30, 31, v1'); I('v_lshlrev_b32 v30, 3, v30'); I(f'v_add_u32 v30, {L_STAT}, v30')
    I('v_lshlrev_b32 v31, 10, v15'); I('v_lshl_add_u32 v31, v2, 4, v31'); I('v_lshl_add_u32 v31, v16, 8, v31')
    I(f'v_add_u32 v31, s{sCA}, v31')
    e.wait_all(); e.barrier()
    k.stamp('b8')
    def b_rd(m, b):
        I(f'ds_read_b128 {vr(BB + 8*(m&1) + 4*b,4)}, v11 offset:{b*2*TILE + m*512}')
    def up(acc, afn, fill):
        fill = list(fill)
        per = (len(fill) + 55) // 56
        b_rd(0, 0); b_rd(0, 1)
        for m in range(28):
            for b in range(2):
                if m + 1 < 28: b_rd(m + 1, b)
                I(f'{MF32} {vr(acc+16*b,16)}, {vr(afn(m),4)}, {vr(BB+8*(m&1)+4*b,4)}, ' + ('0' if m == 0 else vr(acc+16*b, 16)))
                for _ in range(per):
                    if fill: I(fill.pop(0))
        for t in fill: I(t)
    AC1, TAIL, GT, CSR, STR = 32, 64, 96, 112, 128
    def epi(acc, mt):
        L = []
        for i in range(4): L.append(f'ds_read_b128 {vr(CSR+4*i,4)}, v12 offset:{mt*128 + i*16}')
        for b in range(2):
            R = STR + 2*b
            x = acc + 16*b
            for i in range(0, 16, 2):
                L.append(f'v_pk_mul_f32 {vr(GT+i,2)}, {vr(CSR+i,2)}, {vr(R,2)} op_sel:[0,1] op_sel_hi:[1,1]')
            for i in range(0, 16, 2):
                L.append(f'v_pk_fma_f32 {vr(x+i,2)}, {vr(x+i,2)}, {vr(R,2)}, {vr(GT+i,2)} op_sel_hi:[1,0,1]')
            L += gelu_ops(x, GT, 16)
            P = 132 + 4*0
            for gp in range(2):
                P = 132 + 4*gp
                for i in range(4):
                    L.append(f'v_cvt_pk_bf16_f32 v{P+i}, v{x+8*gp+2*i}, v{x+8*gp+2*i+1}')
                L.append(f'ds_write_b128 v31, {vr(P,4)} offset:{mt*4096 + b*2048 + gp*512}')
        return L
    up(AC0, lambda m: A0 + 4*m, [])
    k.stamp('u0')
    for m in range(8): tr2(TAIL + 4*m, 10, m*1024, 256)
    I(f'ds_read_b64 {vr(STR,2)}, v30'); I(f'ds_read_b64 {vr(STR+2,2)}, v30 offset:256')
    e.wait_lg0()
    up(AC1, lambda m: A1 + 4*m if m < 20 else TAIL + 4*(m-20), epi(AC0, 0))
    k.stamp('u1')
    e.wait_lg0(); e.barrier()
    for t in epi(AC1, 1): I(t)
    e.wait_lg0(); e.barrier()
    k.stamp('b10')
    e.label('Lafin')
```

```python
import sys
from emit import Emit

KN = "sequential_preLN__linear_kernel_hedgehog__mixer_s_mlp__prompt_kernel"

WS_HELLO = 0x1000
WS_KVP = 0x10000
WS_G = 0x200000
GS = 0xA6000
G_O, G_H, G_X1, G_T, G_FLG, G_STH, G_STX, G_PART = 0, 0xE000, 0x1C000, 0x2A000, 0x3F000, 0x40000, 0x42000, 0x44000
TILE = 14336
WS_STAMP = 0x3000000
BIG = 0x7fff0000
RA, RB, RC = 0, 57344, 114688
L_PHI, L_ZERO, L_CS = 86016, 88064, 90112
L_STG = RC
L_KVR = 147456
L_PQ = 151552
L_STAT = 159744
L_CS3 = 160256
LDS_BYTES = 163840

sL, sRB, sH, sG, sJ, sW, sTAG, sMODE, sSPIN = 3, 4, 5, 6, 7, 8, 9, 10, 11
SRD = dict(x=40, wqkv=44, phi=48, wo=52, w1=56, w2=60, w3=64, w4=68, out=72, ws=76)
PTR = dict(x=16, wqkv=18, phi=20, wo=22, w1=26, w2=28, w3=30, w4=32, out=34, dbg=36, ws=38)
SIZE = dict(x=2048*448*2, wqkv=448*1344*2, phi=16*28*28*2, wo=448*448*2, w1=448*448*2, w2=448*448*2,
            w3=448*1792*2, w4=1792*448*2, out=2048*448*2, ws=268435456)
def srd(n): return f's[{SRD[n]}:{SRD[n]+3}]'
sGB = 80
sODD = 81
sC448, sL2E, sNL2E, sSELLO, sSELHI = 82, 83, 84, 85, 86
sM0, sM1 = 88, 90
sT = [12, 13, 14, 15, 92, 93, 94, 95, 96, 97, 98, 99]

def vr(a, n=1): return f'v{a}' if n == 1 else f'v[{a}:{a+n-1}]'

class K:
    def __init__(self, stop=None, force_slow=False, opts=None):
        self.e = Emit(); self.stop = stop; self.force_slow = force_slow
        self.o = dict(rotw=1, rotx=1); self.o.update(opts or {})
    def I(self, *a, **k): return self.e.I(*a, **k)

    def stamp(self, name):
        st = self.o.get('stamps')
        if not st: return
        names = ['0'] + st.split('+')
        name = str(name)
        if name not in names: return
        k = names.index(name)
        r = 100 if k == 0 else 14 + 2*k
        assert k <= 12
        self.I(f's_memrealtime s[{r}:{r+1}]')

    def dump_stamps(self):
        if not self.o.get('stamps'): return
        I = self.I
        self.e.wait_all()
        I('v_mov_b32 v15, 0')
        for k in range(13):
            r = 100 if k == 0 else 14 + 2*k
            I(f'v_writelane_b32 v15, s{r}, {k}')
        I(f's_lshl_b32 s12, s{sL}, 3'); I(f's_add_u32 s12, s12, s{sW}'); I('s_lshl_b32 s12, s12, 8')
        I(f's_add_u32 s12, s12, {WS_STAMP}')
        I('v_lshlrev_b32 v16, 2, v1')
        I(f'buffer_store_dword v15, v16, {srd("ws")}, s12 offen')

    def build_srd(self, n):
        b, p = SRD[n], PTR[n]
        self.I(f's_mov_b32 s{b}, s{p}')
        self.I(f's_and_b32 s{b+1}, s{p+1}, 0xffff')
        self.I(f's_mov_b32 s{b+2}, {SIZE[n]}')
        self.I(f's_mov_b32 s{b+3}, 0x20000')

    def stores(self, texts, tag=None):
        e = self.e
        slow, back = e.newlabel('Lslow'), e.newlabel('Lback')
        self.I(f's_cmp_lg_u32 s{sMODE}, 0')
        e.nop(1)
        from emit import parse
        for t in texts:
            i = parse(t)
            touch = i.src
            vi = max([k for k, x in enumerate(e.vm) if x['dst'] & touch], default=None)
            li = max([k for k, x in enumerate(e.lg) if x['dst'] & touch], default=None)
            vn = e._vm_need(vi) if vi is not None else None
            ln = e._lg_need(li) if li is not None else None
            e._wait(vn, ln)
            need = 0
            for p in e.hist:
                d = e.pos - p.pos - 1
                r = e.req(p, i)
                if r > d + 1: need = max(need, r - d - 1)
            if need: e.nop(need)
        self.I(f's_cbranch_scc1 {slow}')
        for t in texts: self.I(t, tag=tag)
        e.label(back)
        e.ool.append(slow + ':')
        for t in texts: e.ool.append('  ' + t + ' sc1')
        e.ool.append('  s_branch ' + back)

    def poll(self, loads, check, name):
        e = self.e
        top, done = e.newlabel('Lpoll' + name), e.newlabel('Lpd' + name)
        e.wait_vm0() if e.vm else None
        e.label(top)
        for t in loads: self.I(t)
        check()
        self.I(f's_cbranch_vccz {done}')
        self.I(f's_sub_u32 s{sSPIN}, s{sSPIN}, 1')
        self.I(f's_cbranch_scc0 {top}')
        self.I(f's_mov_b32 s{sSPIN}, 0')
        e.label(done)

    def allred2(self, X, Y, T, op):
        self.I(f'v_permlane32_swap_b32 v{X}, v{Y}')
        self.I(f'{op} v{X}, v{X}, v{Y}')
        self.I(f'v_mov_b32 v{T}, v{X}')
        self.I(f'v_permlane16_swap_b32 v{X}, v{T}')
        self.I(f'{op} v{X}, v{X}, v{T}')
        self.I(f'v_mov_b32 v{Y}, v{X}')
        self.I(f'v_permlane32_swap_b32 v{X}, v{Y}')

    def lnfix(self, acc, cs, n, R, T):
        for i in range(0, n, 2):
            self.I(f'v_pk_mul_f32 {vr(T+i,2)}, {vr(cs+i,2)}, {vr(R,2)} op_sel:[0,1] op_sel_hi:[1,1]')
        for i in range(0, n, 2):
            self.I(f'v_pk_fma_f32 {vr(acc+i,2)}, {vr(acc+i,2)}, {vr(R,2)}, {vr(T+i,2)} op_sel_hi:[1,0,1]')

    def cvt(self, dst, src, n):
        for i in range(0, n, 2):
            self.I(f'v_cvt_pk_bf16_f32 v{dst+i//2}, v{src+i}, v{src+i+1}')

    def softmax2(self, P, OUT, T, vM):
        X, Y, Z = T, T+1, T+2
        E = T+4
        self.I(f'v_max3_f32 v{X}, v{P}, v{P+1}, v{P+2}')
        self.I(f'v_max3_f32 v{Y}, -v{P}, -v{P+1}, -v{P+2}')
        self.I(f'v_max3_f32 v{X}, v{X}, v{P+3}, v{P+4}')
        self.I(f'v_max3_f32 v{Y}, v{Y}, -v{P+3}, -v{P+4}')
        self.I(f'v_max3_f32 v{X}, v{X}, v{P+5}, v{P+6}')
        self.I(f'v_max3_f32 v{Y}, v{Y}, -v{P+5}, -v{P+6}')
        self.I(f'v_max_f32 v{X}, v{X}, v{P+7}')
        self.I(f'v_max_f32_e64 v{Y}, v{Y}, -v{P+7}')
        self.allred2(X, Y, Z, 'v_max_f32')
        self.I(f'v_mul_f32 v{X}, s{sNL2E}, v{X}')
        self.I(f'v_mul_f32 v{Y}, s{sNL2E}, v{Y}')
        for i in range(8):
            self.I(f'v_fma_f32 v{E+i}, v{P+i}, s{sL2E}, v{X}')
            self.I(f'v_fma_f32 v{E+8+i}, v{P+i}, s{sNL2E}, v{Y}')
        for i in range(16):
            self.I(f'v_exp_f32 v{E+i}, v{E+i}')
        A, B = T+20, T+21
        for (S, b) in ((X, E), (Y, E+8)):
            self.I(f'v_add_f32 v{S}, v{b}, v{b+1}')
            self.I(f'v_add_f32 v{A}, v{b+4}, v{b+5}')
            self.I(f'v_add_f32 v{Z}, v{b+2}, v{b+3}')
            self.I(f'v_add_f32 v{B}, v{b+6}, v{b+7}')
            self.I(f'v_add_f32 v{S}, v{S}, v{Z}')
            self.I(f'v_add_f32 v{A}, v{A}, v{B}')
            self.I(f'v_fmac_f32 v{S}, v{A}, v{vM}')
        self.allred2(X, Y, Z, 'v_add_f32')
        self.I(f'v_rcp_f32 v{X}, v{X}')
        self.I(f'v_rcp_f32 v{Y}, v{Y}')
        self.I(f'v_mul_f32 v{A}, v{X}, v{vM}')
        self.I(f'v_mul_f32 v{B}, v{Y}, v{vM}')
        for i in (0, 2):
            self.I(f'v_pk_mul_f32 {vr(E+i,2)}, {vr(E+i,2)}, {vr(X,2)} op_sel_hi:[1,0]')
            self.I(f'v_pk_mul_f32 {vr(E+8+i,2)}, {vr(E+8+i,2)}, {vr(X,2)} op_sel:[0,1] op_sel_hi:[1,1]')
        for i in (4, 6):
            self.I(f'v_pk_mul_f32 {vr(E+i,2)}, {vr(E+i,2)}, {vr(A,2)} op_sel_hi:[1,0]')
            self.I(f'v_pk_mul_f32 {vr(E+8+i,2)}, {vr(E+8+i,2)}, {vr(A,2)} op_sel:[0,1] op_sel_hi:[1,1]')
        self.cvt(OUT, E, 16)

    def p1(self):
        e, I = self.e, self.I
        t0, t1, t2, t3 = sT[0:4]
        I('s_cmp_ge_u32 s2, 256')
        I('s_cbranch_scc1 Lend')
        self.stamp(0)
        I('s_load_dwordx16 s[16:31], s[0:1], 0')
        I('s_load_dwordx8 s[32:39], s[0:1], 64')
        I(f's_and_b32 s{t0}, s2, 7')
        I(f's_lshr_b32 s{t1}, s2, 3')
        I(f's_lshl_b32 s{sL}, s{t0}, 5')
        I(f's_or_b32 s{sL}, s{sL}, s{t1}')
        I(f's_lshr_b32 s{sRB}, s{sL}, 4')
        I(f's_and_b32 s{sH}, s{sL}, 15')
        I(f's_lshr_b32 s{sG}, s{sL}, 3')
        I(f's_and_b32 s{sJ}, s{sL}, 7')
        I(f's_and_b32 s{sODD}, s{sL}, 1')
        I('v_lshrrev_b32 v5, 6, v0')
        I('v_and_b32 v1, 63, v0')
        I(f'v_readfirstlane_b32 s{sW}, v5')
        I('v_and_b32 v2, 15, v1')
        I('v_lshrrev_b32 v3, 4, v1')
        I('v_lshlrev_b32 v4, 4, v1')
        I('v_lshrrev_b32 v9, 2, v1')
        I('v_mul_u32_u24 v9, 2688, v9')
        I('v_lshrrev_b32 v10, 5, v1')
        I('v_lshlrev_b32 v10, 1, v10')
        I('v_and_b32 v11, 3, v1')
        I('v_xor_b32 v10, v10, v11')
        I('v_lshl_add_u32 v9, v10, 4, v9')
        I(f's_lshl_b32 s{t0}, s{sRB}, 7')
        I(f's_lshl_b32 s{t1}, s{sW}, 4')
        I(f's_add_u32 s{t0}, s{t0}, s{t1}')
        I(f'v_add_u32 v12, s{t0}, v2')
        I('v_mul_u32_u24 v12, 896, v12')
        I('v_lshl_add_u32 v12, v3, 4, v12')
        I('v_mov_b32 v13, 0')
        sWB, sRR, sSO = sT[4], sT[5], sT[6]
        I(f's_mul_i32 s{sWB}, s{sH}, 56')
        I(f's_andn2_b32 s{sWB}, s{sWB}, 15')
        if self.o['rotw']:
            I(f's_and_b32 s{t0}, s{sH}, 3')
            I(f's_mul_i32 s{t0}, s{t0}, 7')
            I(f's_and_b32 s{t1}, s{sRB}, 1')
            I(f's_mul_i32 s{t1}, s{t1}, 3')
            I(f's_add_u32 s{t0}, s{t0}, s{t1}')
            I(f's_add_u32 s{sRR}, s{t0}, s{sW}')
        else:
            I(f's_mov_b32 s{sRR}, s{sW}')
        I(f's_mul_i32 s{sGB}, s{sG}, {GS}')
        I(f's_add_u32 s{sGB}, s{sGB}, {WS_G}')
        I(f's_mov_b32 s{sSPIN}, 0x8000')
        e.wait_lg0()
        self.build_srd('wqkv'); self.build_srd('ws')
        I(f'buffer_load_dword v14, v13, {srd("ws")}, 0 offen sc1')
        def wdma(maybe=False):
            I(f's_cmp_ge_u32 s{sRR}, 28')
            I(f's_cselect_b32 s{t0}, 28, 0')
            I(f's_sub_u32 s{sRR}, s{sRR}, s{t0}')
            I(f's_mul_i32 s{sSO}, s{sRR}, 43008')
            I(f's_add_u32 s{sSO}, s{sSO}, s{sWB}')
            I(f's_lshl_b32 s{t1}, s{sRR}, 10')
            for p in (1, 2, 0):
                I(f's_add_u32 m0, s{t1}, {p*(28672-896)}')
                I(f'buffer_load_dwordx4 v9, {srd("wqkv")}, s{sSO} offen offset:{p*896} lds', tag='W', maybe=maybe)
            I(f's_add_u32 s{sRR}, s{sRR}, 8')
        for t in range(3): wdma()
        self.build_srd('x'); self.build_srd('phi')
        I(f's_cmp_ge_u32 s{sW}, 4')
        I('s_cbranch_scc1 Lx4')
        sn = e.snap()
        wdma(maybe=True)
        e.label('Lxj')
        sj = e.snap()
        main_out = e.out; e.out = []
        e.restore(sn)
        e.label('Lx4')
        I(f's_cmp_eq_u32 s{sW}, 4'); I('s_cbranch_scc0 Lx5')
        I(f's_mul_i32 s{t0}, s{sH}, 1568')
        I(f's_mov_b32 m0, {L_PHI}')
        I(f'buffer_load_dwordx4 v4, {srd("phi")}, s{t0} offen lds')
        I(f'buffer_load_dwordx4 v4, {srd("phi")}, s{t0} offen offset:1024 lds')
        I('s_branch Lxj')
        e.label('Lx5')
        I(f's_cmp_eq_u32 s{sW}, 5'); I('s_cbranch_scc0 Lx6')
        I(f'v_lshlrev_b32 v15, 2, v1')
        I(f'v_add_u32 v15, {L_ZERO}, v15')
        I('ds_write_b32 v15, v13')
        I('s_branch Lxj')
        e.label('Lx6')
        I(f's_cmp_eq_u32 s{sW}, 6'); I('s_cbranch_scc0 Lx7')
        I(f's_getpc_b64 s[{sM0}:{sM0+1}]')
        e.label('Lpc')
        I(f's_add_u32 s{sM0}, s{sM0}, {KN}-Lpc')
        I(f's_addc_u32 s{sM0+1}, s{sM0+1}, -1')
        I('v_lshlrev_b32 v15, 7, v1')
        for i in range(self.o.get('npf', 6)):
            I(f'v_min_u32 v16, Lcodeend-{KN}, v15')
            I(f'global_load_dword v{244+(i&7)}, v16, s[{sM0}:{sM0+1}]')
            I('v_add_u32 v15, 8192, v15')
        I('s_branch Lxj')
        e.label('Lx7')
        for i in range(4): I(f'v_mov_b32 v{16+i}, -1')
        I(f's_lshl_b32 s{t0}, s{sH}, 4')
        I(f's_or_b32 s{t0}, s{t0}, s{sRB}')
        I(f's_lshl_b32 s{t0}, s{t0}, 12')
        I(f's_add_u32 s{t0}, s{t0}, {WS_KVP}')
        for i in range(4):
            I(f'buffer_store_dwordx4 v[16:19], v4, {srd("ws")}, s{t0} offen offset:{i*1024} sc1')
        self.halo_addr(20, 21, 22)
        I('s_nop 1')
        for i in range(4): I(f'v_cndmask_b32 v{24+i}, -1, v13, vcc')
        I(f'buffer_store_dwordx4 v[24:27], v20, {srd("ws")}, 0 offen sc1')
        I('s_branch Lxj')
        e.ool += e.out; e.out = main_out
        e.restore(sj)
        e.nop(2)
        X = 76
        sPI = sT[4]
        sXO = sT[5:12]
        if self.o['rotx']:
            I(f's_cmp_ge_u32 s{sH}, 7'); I(f's_cselect_b32 s{t0}, 7, 0'); I(f's_sub_u32 s{sPI}, s{sH}, s{t0}')
            I(f's_cmp_ge_u32 s{sPI}, 7'); I(f's_cselect_b32 s{t0}, 7, 0'); I(f's_sub_u32 s{sPI}, s{sPI}, s{t0}')
        else:
            I(f's_mov_b32 s{sPI}, 0')
        for t in range(7):
            I(f's_lshl_b32 s{sXO[t]}, s{sPI}, 7')
            I(f'buffer_load_dwordx4 {vr(X+8*t,4)}, v12, {srd("x")}, s{sXO[t]} offen')
            I(f'buffer_load_dwordx4 {vr(X+8*t+4,4)}, v12, {srd("x")}, s{sXO[t]} offen offset:64')
            if t < 6:
                I(f's_add_u32 s{sPI}, s{sPI}, 1'); I(f's_cmp_ge_u32 s{sPI}, 7'); I(f's_cselect_b32 s{sPI}, 0, s{sPI}')
        for n in ('wo', 'w1', 'w2', 'w3', 'w4', 'out'): self.build_srd(n)
        I(f's_mov_b32 s{sC448}, 0x3b124925')
        I(f's_mov_b32 s{sL2E}, 0x3fb8aa3b')
        I(f's_mov_b32 s{sNL2E}, 0xbfb8aa3b')
        I(f's_mov_b32 s{sSELLO}, 0x00003f80')
        I(f's_mov_b32 s{sSELHI}, 0x3f800000')
        for i in range(4): I(f'v_mov_b32 v{32+i}, 0x3f803f80')
        I('v_bfe_u32 v10, v1, 2, 2')
        I('v_and_b32 v11, 3, v1')
        I('v_lshl_add_u32 v15, v3, 3, v10')
        I('v_lshlrev_b32 v15, 6, v15')
        I('v_lshl_add_u32 v15, v11, 3, v15')
        I('v_and_b32 v16, 1, v3')
        I('v_lshl_add_u32 v5, v16, 5, v15')
        I('v_xor_b32 v6, 32, v5')
        I(f's_cmp_ge_u32 s{sW}, 6'); I(f's_cselect_b32 s{t0}, 6, 0'); I(f's_sub_u32 s{t0}, s{sW}, s{t0}')
        I(f's_lshr_b32 s{t1}, s{t0}, 1'); I(f's_mul_i32 s{t1}, s{t1}, 28672')
        I(f's_and_b32 s{t2}, s{t0}, 1'); I(f's_lshl_b32 s{t2}, s{t2}, 5')
        I(f'v_xor_b32 v7, s{t2}, v5')
        I(f'v_add_u32 v7, s{t1}, v7')
        I(f's_lshl_b32 s{t0}, s{t0}, 10'); I(f's_add_u32 s{t0}, s{t0}, {L_CS}')
        I(f'v_add_u32 v8, s{t0}, v4')
        I('v_lshl_add_u32 v15, v3, 2, v10')
        I(f's_lshl_b32 s{t0}, s{sODD}, 2')
        I(f'v_subrev_u32 v15, s{t0}, v15')
        I('v_mul_i32_i24 v15, 56, v15')
        I(f'v_add_u32 v15, {L_PHI}, v15')
        I('v_lshl_add_u32 v17, v11, 3, v15')
        I('v_add_u32 v16, 4, v11'); I('v_min_u32 v16, 6, v16')
        I('v_lshl_add_u32 v18, v16, 3, v15')
        I('v_add_u32 v19, 896, v17')
        I('v_add_u32 v20, 896, v18')
        I(f's_cmp_eq_u32 s{sODD}, 1')
        I(f's_cselect_b32 s{sM0}, 0xffff, 0'); I(f's_mov_b32 s{sM0+1}, 0')
        I(f's_cselect_b32 s{sM1+1}, 0, 0xffff0000'); I(f's_mov_b32 s{sM1}, 0')
        I(f'v_mov_b32 v21, {L_ZERO}')
        I(f'v_cndmask_b32 v17, v17, v21, s[{sM0}:{sM0+1}]')
        I(f'v_cndmask_b32 v18, v18, v21, s[{sM0}:{sM0+1}]')
        I(f'v_cndmask_b32 v19, v19, v21, s[{sM1}:{sM1+1}]')
        I(f'v_cndmask_b32 v20, v20, v21, s[{sM1}:{sM1+1}]')
        I('v_cmp_ne_u32 vcc, 3, v3')
        I('v_cndmask_b32 v22, 0, v32, vcc'); I('v_and_b32 v22, 0xffff0000, v22')
        I(f's_lshl_b32 s{t0}, s{sW}, 4')
        I(f'v_add_u32 v23, s{t0}, v2')
        I('v_mul_u32_u24 v23, 224, v23')
        I('v_bfe_u32 v15, v1, 2, 2')
        I('v_xor_b32 v15, v15, v3')
        I('v_lshl_add_u32 v23, v15, 3, v23')
        I(f'v_add_u32 v23, {L_STG}, v23')
        I('v_lshrrev_b32 v15, 2, v1')
        I('v_mul_u32_u24 v15, 224, v15')
        I('v_xor_b32 v16, v11, v3')
        I('v_lshl_add_u32 v15, v16, 3, v15')
        I(f's_lshr_b32 s{t0}, s{sW}, 1'); I(f's_lshl_b32 s{t0}, s{t0}, 5'); I(f's_add_u32 s{t0}, s{t0}, {L_STG}')
        I(f'v_add_u32 v24, s{t0}, v15')
        I(f's_and_b32 s{t0}, s{sW}, 1'); I(f's_lshl_b32 s{t0}, s{t0}, 5'); I(f's_add_u32 s{t0}, s{t0}, {L_STG+128}')
        I(f'v_add_u32 v25, s{t0}, v15')
        for i in range(4): I(f'v_mov_b32 v{72+i}, 0')
        e.wait_tag('W')
        if self.o.get('xfirst'): e.wait_vm0()
        e.wait_lg0()
        I(f'v_readfirstlane_b32 s{sTAG}, v14')
        I(f's_add_u32 s{sTAG}, s{sTAG}, 0x9E3779B9')
        I(f's_andn2_b32 s{sTAG}, s{sTAG}, 15')
        I(f's_getreg_b32 s{sMODE}, hwreg(HW_REG_XCC_ID)')
        I(f's_and_b32 s{sMODE}, s{sMODE}, 15')
        I(f's_or_b32 s{sMODE}, s{sMODE}, s{sTAG}')
        I(f's_cmp_eq_u32 s{sW}, 7')
        I('s_cbranch_scc0 Lnohello')
        I(f'v_mov_b32 v15, s{sMODE}')
        I(f's_lshl_b32 s{t0}, s{sL}, 6'); I(f's_add_u32 s{t0}, s{t0}, {WS_HELLO}')
        I('v_cmp_eq_u32 vcc, 0, v1')
        I(f'v_mov_b32 v16, {BIG}')
        I('v_cndmask_b32 v16, v16, v13, vcc')
        I(f'buffer_store_dword v15, v16, {srd("ws")}, s{t0} offen sc1', maybe=True)
        e.label('Lnohello')
        self.stamp(1)
        e.barrier()
        self.stamp(10)
        A0, A1 = 132, 156
        CSA = 204
        def csrd(m):
            b = A0 + 4*(m % 6)
            I(f'ds_read_b64_tr_b16 {vr(b,2)}, v7 offset:{m*2048}')
            I(f'ds_read_b64_tr_b16 {vr(b+2,2)}, v7 offset:{m*2048+256}')
        for m in range(5): csrd(m)
        for m in range(14):
            if m + 5 < 14: csrd(m + 5)
            b = A0 + 4*(m % 6)
            I(f'v_mfma_f32_16x16x32_bf16 {vr(CSA,4)}, {vr(b,4)}, v[32:35], ' + ('0' if m == 0 else vr(CSA, 4)))
        I('ds_read_b64_tr_b16 v[36:37], v17'); I('ds_read_b64_tr_b16 v[38:39], v19')
        I('ds_read_b64_tr_b16 v[40:41], v18'); I('ds_read_b64_tr_b16 v[42:43], v20')
        I(f'ds_write_b128 v8, {vr(CSA,4)}')
        self.stamp(11)
        ACC = {0: 44, 1: 52, 2: 60}
        order = [(1, 0), (1, 1), (2, 0), (2, 1), (0, 0), (0, 1)]
        BASE = [(26, 27), (28, 29)]
        def setbase(pair):
            b0, b1 = BASE[pair & 1]
            I(f's_lshl_b32 s{t0}, s{sXO[pair]}, 5')
            I(f'v_add_u32 v{b0}, s{t0}, v5'); I(f'v_add_u32 v{b1}, s{t0}, v6')
        def ard(i, ti):
            p, t = order[ti]
            b = (A0, A1)[i & 1] + 4*ti
            vb = BASE[(i >> 1) & 1][t]
            off = p*28672 + (i & 1)*2048
            I(f'ds_read_b64_tr_b16 {vr(b,2)}, v{vb} offset:{off}')
            I(f'ds_read_b64_tr_b16 {vr(b+2,2)}, v{vb} offset:{off+256}')
        setbase(0)
        for ti in range(6): ard(0, ti)
        for i in range(14):
            if i + 1 < 14 and (i + 1) % 2 == 0: setbase((i + 1) >> 1)
            xb = X + 4*i
            for ti in range(6):
                if i + 1 < 14: ard(i + 1, ti)
                p, t = order[ti]
                b = (A0, A1)[i & 1] + 4*ti
                acc = ACC[p] + 4*t
                I(f'v_mfma_f32_16x16x32_bf16 {vr(acc,4)}, {vr(b,4)}, {vr(xb,4)}, ' + ('0' if i == 0 else vr(acc, 4)))
                if ti < 4 and not self.o.get('nodot'): I(f'v_dot2c_f32_bf16 v{72+ti}, v{xb+ti}, v{xb+ti}')
            I(f'v_mfma_f32_16x16x32_bf16 v[68:71], v[32:35], {vr(xb,4)}, ' + ('0' if i == 0 else 'v[68:71]'))
            if i == 6:
                e.wait_lg0(); e.barrier()
                self.stamp(12)
                I(f'v_add_u32 v15, {L_CS}, v4')
                for tau in range(6):
                    I(f'ds_read_b128 {vr(180+4*tau,4)}, v15 offset:{tau*1024}')
        self.stamp(2)
        R = 30
        I('v_add_f32 v72, v72, v73'); I('v_add_f32 v74, v74, v75'); I('v_add_f32 v72, v72, v74')
        I('v_mov_b32 v73, v72')
        I('v_permlane32_swap_b32 v72, v73'); I('v_add_f32 v72, v72, v73'); I('v_mov_b32 v73, v72')
        I('v_permlane16_swap_b32 v72, v73'); I('v_add_f32 v72, v72, v73')
        I(f'v_mul_f32 v73, s{sC448}, v68')
        I('v_mul_f32 v74, v73, v73')
        I(f'v_fma_f32 v74, v72, s{sC448}, -v74')
        I('v_add_f32 v74, 0x3727c5ac, v74')
        I(f'v_rsq_f32 v{R}, v74')
        I(f'v_mul_f32_e64 v{R+1}, -v73, v{R}')
        T = 204
        self.lnfix(52, 180+8, 8, R, T)
        self.cvt(T+8, 52, 8)
        I(f'v_mfma_f32_16x16x32_bf16 v[52:55], v[36:39], {vr(T+8,4)}, 0')
        I(f'v_mfma_f32_16x16x32_bf16 v[56:59], v[40:43], {vr(T+8,4)}, 0')
        self.lnfix(60, 180+16, 8, R, T)
        I(f'v_cndmask_b32 v60, v60, 1.0, s[{sM0}:{sM0+1}]')
        I(f'v_cndmask_b32 v64, v64, 1.0, s[{sM1}:{sM1+1}]')
        self.cvt(T+12, 60, 8)
        I(f'ds_write_b64 v23, {vr(T+12,2)} offset:128')
        I(f'ds_write_b64 v23, {vr(T+14,2)} offset:160')
        PH = 132
        self.softmax2(52, PH, T+16, 22)
        for t in range(4):
            I(f'ds_write_b64 v23, {vr(PH+2*t,2)} offset:{t*32}')
        self.lnfix(44, 180, 8, R, T)
        self.cvt(T+8, 44, 8)
        I(f'v_mfma_f32_16x16x32_bf16 v[44:47], v[36:39], {vr(T+8,4)}, 0')
        I(f'v_mfma_f32_16x16x32_bf16 v[48:51], v[40:43], {vr(T+8,4)}, 0')
        e.wait_lg0(); e.barrier()
        self.stamp(3)
        KA, KB = 140, 156
        for ks in range(4):
            for ee in range(2):
                I(f'ds_read_b64_tr_b16 {vr(KA+4*ks+2*ee,2)}, v24 offset:{ks*7168+ee*3584}')
            for ee in range(2):
                I(f'ds_read_b64_tr_b16 {vr(KB+4*ks+2*ee,2)}, v25 offset:{ks*7168+ee*3584}')
        for ks in range(4):
            I(f'v_mfma_f32_16x16x32_bf16 v[52:55], {vr(KA+4*ks,4)}, {vr(KB+4*ks,4)}, ' + ('0' if ks == 0 else 'v[52:55]'))
        I(f's_lshl_b32 s{t0}, s{sH}, 4'); I(f's_or_b32 s{t0}, s{t0}, s{sRB}'); I(f's_lshl_b32 s{t0}, s{t0}, 12')
        I(f's_lshl_b32 s{t1}, s{sW}, 9'); I(f's_add_u32 s{t0}, s{t0}, s{t1}'); I(f's_add_u32 s{t0}, s{t0}, {WS_KVP}')
        I('v_lshlrev_b32 v15, 3, v1')
        self.cvt(56, 52, 4)
        I('v_min_u32 v56, -2, v56'); I('v_min_u32 v57, -2, v57')
        I(f'buffer_store_dwordx2 v[56:57], v15, {srd("ws")}, s{t0} offen sc1')
        self.stamp(4)

    def halo_addr(self, V, T1, T2):
        I = self.I
        t0, t1, t2, t3 = sT[0:4]
        I(f's_add_u32 s{t0}, s{sG}, 1'); I(f's_and_b32 s{t0}, s{t0}, 31'); I(f's_mul_i32 s{t0}, s{t0}, {GS}')
        I(f's_add_u32 s{t0}, s{t0}, {WS_G+G_T+14*16}')
        I(f's_sub_u32 s{t1}, s{sG}, 1'); I(f's_and_b32 s{t1}, s{t1}, 31'); I(f's_mul_i32 s{t1}, s{t1}, {GS}')
        I(f's_add_u32 s{t1}, s{t1}, {WS_G+G_T+5*TILE}')
        I(f's_cmp_eq_u32 s{sJ}, 7')
        I(f's_cselect_b32 s{t0}, {BIG}, s{t0}'); I(f's_cselect_b32 s{t1}, {BIG}, s{t1}')
        I(f'v_mov_b32 v{T1}, s{t0}'); I(f'v_mov_b32 v{T2}, s{t1}')
        I('v_cmp_eq_u32 vcc, 0, v3')
        I(f'v_cndmask_b32 v{V}, v{T2}, v{T1}, vcc')
        I(f'v_mov_b32 v{T1}, {BIG}')
        I('v_cmp_gt_u32 vcc, 2, v3')
        I(f'v_cndmask_b32 v{V}, v{T1}, v{V}, vcc')
        I(f'v_and_b32 v{T1}, 7, v1')
        I(f's_lshl_b32 s{t2}, s{sJ}, 3')
        I(f'v_add_u32 v{T1}, s{t2}, v{T1}')
        I(f'v_lshl_add_u32 v{V}, v{T1}, 8, v{V}')
        I(f'v_bfe_u32 v{T1}, v1, 3, 1')
        I(f'v_lshl_add_u32 v{V}, v{T1}, 4, v{V}')
        I(f's_cmp_eq_u32 s{sG}, 31'); I(f's_cselect_b32 s{t2}, 0xffff, 0')
        I(f's_cmp_eq_u32 s{sG}, 0'); I(f's_cselect_b32 s{t3}, 0xffff0000, 0')
        I(f's_or_b32 vcc_lo, s{t2}, s{t3}'); I('s_mov_b32 vcc_hi, 0')

    def main_o(self):
        e, I = self.e, self.I
        t0, t1, t2, t3 = sT[0:4]
        I(f's_lshl_b32 s{t0}, s{sRB}, 4')
        I(f'v_add_u32 v15, s{t0}, v2')
        I('v_lshlrev_b32 v16, 4, v2'); I(f'v_add_u32 v16, s{sH}, v16')
        I('v_cmp_eq_u32 vcc, 1, v3')
        I('v_cndmask_b32 v15, v15, v16, vcc')
        I('v_and_b32 v16, 8, v2'); I('v_lshlrev_b32 v16, 1, v16')
        I('v_and_b32 v17, 7, v2'); I('v_add_u32 v16, v16, v17')
        I(f's_lshl_b32 s{t0}, s{sG}, 3'); I(f's_sub_u32 s{t0}, s{t0}, 8')
        I(f'v_add_u32 v16, s{t0}, v16'); I('v_and_b32 v16, 255, v16')
        I('v_cmp_eq_u32 vcc, 2, v3')
        I('v_cndmask_b32 v15, v15, v16, vcc')
        I('v_lshlrev_b32 v15, 6, v15')
        I(f's_mov_b32 s{t1}, {WS_HELLO}')
        def chk():
            I('v_and_b32 v17, -16, v16')
            I(f'v_cmp_ne_u32 vcc, s{sTAG}, v17')
        self.poll([f'buffer_load_dword v16, v15, {srd("ws")}, s{t1} offen sc1'], chk, 'hello')
        I(f'v_cmp_ne_u32 vcc, s{sMODE}, v16')
        I(f's_and_b32 s{sMODE}, vcc_lo, 0xffff')
        if self.force_slow: I(f's_mov_b32 s{sMODE}, 1')
        self.stamp(5)
        I(f's_lshl_b32 s{t0}, s{sH}, 16'); I(f's_lshl_b32 s{t1}, s{sW}, 10'); I(f's_add_u32 s{t0}, s{t0}, s{t1}')
        I(f's_add_u32 s{t0}, s{t0}, {WS_KVP}')
        I('v_lshrrev_b32 v15, 2, v1'); I('v_lshlrev_b32 v15, 12, v15')
        I('v_and_b32 v16, 3, v1'); I('v_lshl_add_u32 v15, v16, 8, v15')
        def chk2():
            I('v_cmp_eq_u32 vcc, -1, v16')
        self.poll([f'buffer_load_dword v16, v15, {srd("ws")}, s{t0} offen offset:252 sc1'], chk2, 'kvp')
        self.stamp(6)
        G = 76
        I(f'v_add_u32 v15, s{t0}, v4')
        loads = []
        for p in range(16):
            loads.append(f's_mov_b32 s{sT[4+(p&3)]}, {p*4096}')
            loads.append(f'buffer_load_dwordx4 {vr(G+4*p,4)}, v15, {srd("ws")}, s{sT[4+(p&3)]} offen sc1')
        AC = 140
        def chk3():
            for i in range(8): I(f'v_mov_b32 v{AC+i}, 0')
            I('v_mov_b32 v17, 0')
            for p in range(16):
                b = G + 4*p
                for d in range(4):
                    I(f'v_dot2c_f32_bf16 v{AC+2*d}, s{sSELLO}, v{b+d}')
                    I(f'v_dot2c_f32_bf16 v{AC+2*d+1}, s{sSELHI}, v{b+d}')
                I(f'v_max3_u32 v17, v17, v{b}, v{b+1}')
                I(f'v_max3_u32 v17, v17, v{b+2}, v{b+3}')
            I('v_cmp_eq_u32 vcc, -1, v17')
        self.poll(loads, chk3, 'kvg')
        self.stamp(7)
        self.cvt(148, AC, 8)
        I(f's_lshl_b32 s{t0}, s{sW}, 10'); I(f's_add_u32 s{t0}, s{t0}, {L_KVR}')
        I(f'v_add_u32 v15, s{t0}, v4')
        I('ds_write_b128 v15, v[148:151]')
        I('v_lshlrev_b32 v15, 3, v1'); I(f'v_add_u32 v15, {L_KVR}, v15')
        I(f's_cmp_eq_u32 s{sODD}, 1')
        I(f's_cselect_b32 s{t0}, 0, {512+12*8}'); I(f's_add_u32 s{t0}, s{t0}, {L_KVR}')
        I('v_lshlrev_b32 v16, 7, v3'); I(f'v_add_u32 v16, s{t0}, v16')
        I(f's_lshl_b32 s{t0}, s{sW}, 11'); I(f's_add_u32 s{t0}, s{t0}, {L_PQ}')
        I(f'v_add_u32 v17, s{t0}, v4')
        I(f's_mul_i32 s{t0}, s{sH}, 7'); I(f's_lshr_b32 s{t0}, s{t0}, 1')
        I('v_and_b32 v18, 1, v3'); I('v_lshrrev_b32 v19, 1, v3'); I('v_lshl_add_u32 v26, v18, 1, v19')
        I(f'v_add_u32 v18, s{t0}, v26')
        I('v_lshlrev_b32 v18, 8, v18'); I('v_lshl_add_u32 v18, v2, 4, v18')
        I(f's_mul_i32 s{t0}, s{sW}, {TILE}')
        I(f'v_add_u32 v18, s{t0}, v18')
        I('v_add_u32 v19, 8, v18')
        I(f'v_mov_b32 v20, {BIG}')
        I(f'v_cndmask_b32 v18, v18, v20, s[{sM0}:{sM0+1}]')
        I(f'v_cndmask_b32 v19, v19, v20, s[{sM1}:{sM1+1}]')
        I(f's_lshl_b32 s{t0}, s{sW}, 6'); I(f's_lshl_b32 s{t1}, s{sH}, 2'); I(f's_add_u32 s{t0}, s{t0}, s{t1}')
        I(f's_add_u32 s{t0}, s{t0}, {G_FLG}')
        I(f'v_mul_u32_u24 v21, {GS}, v1'); I(f'v_add_u32 v21, s{t0}, v21')
        I('v_cmp_gt_u32 vcc, 2, v1')
        I('v_cndmask_b32 v21, v20, v21, vcc')
        I(f'v_mov_b32 v27, s{sTAG}')
        sOA, sOB = sT[4], sT[5]
        I(f's_mul_i32 s{sOA}, s{sRB}, {2*GS}'); I(f's_add_u32 s{sOA}, s{sOA}, {WS_G+G_O}'); I(f's_add_u32 s{sOB}, s{sOA}, {GS}')
        e.wait_lg0(); e.barrier()
        KF = 76
        for a in range(2):
            for dt in range(2):
                I(f'ds_read2st64_b64 {vr(KF+4*(2*a+dt),4)}, v15 offset0:{4*a+dt} offset1:{4*a+2+dt}')
            I(f'ds_read2st64_b64 {vr(KF+16+4*a,4)}, v16 offset0:{4*a} offset1:{4*a+2}')
        I('ds_read_b128 v[68:71], v17'); I('ds_read_b128 v[72:75], v17 offset:1024')
        for st, (ph, ac) in enumerate(((60, 100), (68, 112))):
            for a in range(2):
                for dt in range(2):
                    I(f'v_mfma_f32_16x16x32_bf16 {vr(ac+4*dt,4)}, {vr(KF+4*(2*a+dt),4)}, {vr(ph+4*a,4)}, ' + ('0' if a == 0 else vr(ac+4*dt, 4)))
                I(f'v_mfma_f32_16x16x32_bf16 {vr(ac+8,4)}, {vr(KF+16+4*a,4)}, {vr(ph+4*a,4)}, ' + ('0' if a == 0 else vr(ac+8, 4)))
        st_list = []
        for st, (ac, pk, so) in enumerate(((100, 124, sOA), (112, 128, sOB))):
            I(f'v_add_f32 v{ac+8}, 0x358637bd, v{ac+8}')
            I(f'v_rcp_f32 v{ac+8}, v{ac+8}')
            for i in range(0, 8, 2):
                I(f'v_pk_mul_f32 {vr(ac+i,2)}, {vr(ac+i,2)}, {vr(ac+8,2)} op_sel_hi:[1,0]')
            self.cvt(pk, ac, 8)
            I(f'v_permlane16_swap_b32 v{pk}, v{pk+2}')
            I(f'v_permlane16_swap_b32 v{pk+1}, v{pk+3}')
            st_list.append(f'buffer_store_dwordx2 {vr(pk,2)}, v18, {srd("ws")}, s{so} offen')
            st_list.append(f'buffer_store_dwordx2 {vr(pk+2,2)}, v19, {srd("ws")}, s{so} offen')
        self.stamp(8)
        self.stores(st_list)
        e.wait_vm0()
        self.stamp(9)
        I(f's_sub_u32 s{sOA}, s{sOA}, {G_O}') if G_O else None
        self.stores([f'buffer_store_dword v27, v21, {srd("ws")}, s{sOA} offen'])

    def aux_o(self):
        e, I = self.e, self.I
        t0 = sT[0]
        I(f's_lshl_b32 s{t0}, s{sW}, 11'); I(f's_add_u32 s{t0}, s{t0}, {L_PQ - 4*2048}')
        I(f'v_add_u32 v17, s{t0}, v4')
        I('ds_write_b128 v17, v[60:63]'); I('ds_write_b128 v17, v[64:67] offset:1024')
        e.wait_lg0(); e.barrier()

    def finish(self):
        e, I = self.e, self.I
        self.dump_stamps()
        I(f's_or_b32 s{sT[0]}, s{sL}, s{sW}')
        I(f's_cmp_eq_u32 s{sT[0]}, 0')
        I(f's_cbranch_scc0 Lend')
        I(f'v_mov_b32 v15, s{sTAG}')
        I('v_cmp_eq_u32 vcc, 0, v1')
        I(f'v_mov_b32 v16, {BIG}')
        I('v_cndmask_b32 v16, v16, v13, vcc')
        I(f'buffer_store_dword v15, v16, {srd("ws")}, 0 offen sc1')
        I('s_branch Lend')

    def build(self):
        e, I = self.e, self.I
        self.p1()
        I(f's_cmp_ge_u32 s{sW}, 4')
        I('s_cbranch_scc1 Laux')
        sn = e.snap()
        import gen2
        gen2.main_pre(self)
        self.softmax2(44, 60, 220, 22)
        self.main_o()
        if self.stop != 'o':
            gen2.main_rest(self)
        self.finish()
        e.restore(sn)
        e.label('Laux')
        gen2.aux_pre(self)
        self.softmax2(44, 60, 220, 22)
        self.aux_o()
        if self.stop != 'o':
            gen2.aux_rest(self)
        self.dump_stamps()
        e.label('Lend')
        e.raw('  s_endpgm')
        head = f"""; fused persistent kernel (generated)
; @launch grid=(256,1,1) block=(512,1,1) lds={LDS_BYTES}
.amdgcn_target "amdgcn-amd-amdhsa--gfx950"
.text
.globl {KN}
.p2align 8
.type {KN},@function
{KN}:
"""
        tail = f"""
  s_endpgm
Lcodeend:
.fill {self.o.get('pad', 64)}, 4, 0xbf800000
.section .rodata,"a"
.p2align 6
.amdhsa_kernel {KN}
  .amdhsa_next_free_vgpr 256
  .amdhsa_next_free_sgpr 102
  .amdhsa_accum_offset 256
  .amdhsa_group_segment_fixed_size 0
  .amdhsa_kernarg_size 96
  .amdhsa_user_sgpr_count 2
  .amdhsa_user_sgpr_kernarg_segment_ptr 1
  .amdhsa_system_sgpr_workgroup_id_x 1
.end_amdhsa_kernel
"""
        return head + e.text() + tail

if __name__ == '__main__':
    import argparse
    ap = argparse.ArgumentParser()
    ap.add_argument('-o', default='k.s'); ap.add_argument('--stop'); ap.add_argument('--slow', action='store_true')
    ap.add_argument('--opt', action='append', default=[])
    a = ap.parse_args()
    opts = {}
    for kv in a.opt:
        k, v = kv.split('='); opts[k] = int(v) if v.lstrip('-').isdigit() and k != 'stamps' else v
    k = K(stop=a.stop, force_slow=a.slow, opts=opts)
    s = k.build()
    open(a.o, 'w').write(s)
    print('instrs', k.e.nins, 'nops', k.e.nnop, 'bytes(src)', len(s))
```

```python
from gen import *

sGC, sONE = 88, 90
L_CS1 = 161280
F_O, F_T, F_P = G_FLG, G_FLG + 0x100, G_FLG + 0x200
MF16 = 'v_mfma_f32_16x16x32_bf16'
MF32 = 'v_mfma_f32_32x32x16_bf16'

def gelu_consts(k):
    I = k.I
    I(f's_mov_b32 s{sGC}, 0xbdd2d3e8')
    I(f's_mov_b32 s{sGC+1}, 0xc013575f')
    I(f's_mov_b32 s{sONE}, 1.0'); I(f's_mov_b32 s{sONE+1}, 1.0')

def gelu_ops(x, T, n):
    L = []
    g = f's[{sGC}:{sGC+1}]'
    for i in range(0, n, 2): L.append(f'v_pk_mul_f32 {vr(T+i,2)}, {vr(x+i,2)}, {vr(x+i,2)}')
    for i in range(0, n, 2): L.append(f'v_pk_fma_f32 {vr(T+i,2)}, {vr(T+i,2)}, {g}, {g} op_sel:[0,0,1] op_sel_hi:[1,0,1]')
    for i in range(0, n, 2): L.append(f'v_pk_mul_f32 {vr(T+i,2)}, {vr(T+i,2)}, {vr(x+i,2)}')
    for i in range(n): L.append(f'v_exp_f32 v{T+i}, v{T+i}')
    for i in range(0, n, 2): L.append(f'v_pk_add_f32 {vr(T+i,2)}, {vr(T+i,2)}, s[{sONE}:{sONE+1}]')
    for i in range(n): L.append(f'v_rcp_f32 v{T+i}, v{T+i}')
    for i in range(0, n, 2): L.append(f'v_pk_mul_f32 {vr(x+i,2)}, {vr(x+i,2)}, {vr(T+i,2)}')
    return L

vZ, vSIG, vTAG, vB, vST = 13, 26, 27, 28, 29
SB = [5, 6, 7, 8]
BF = 76
AR = 148
NSLOT = 6
HR = 60
ACC = 44
CS1 = 132

def a_read(k, m, t):
    b = AR + 16*(m % NSLOT) + 4*t
    k.I(f'ds_read_b64_tr_b16 {vr(b,2)}, v{SB[t]} offset:{m*4096}')
    k.I(f'ds_read_b64_tr_b16 {vr(b+2,2)}, v{SB[t]} offset:{m*4096+512}')

def a_preload(k):
    for m in range(NSLOT):
        for t in range(4): a_read(k, m, t)

def b_loads(k, region, addr=None):
    I = k.I
    for m in range(14):
        so = sT[4 + (m >> 2)]
        if m % 4 == 0: I(f's_mov_b32 s{so}, {region + (m >> 2)*4096}')
        va = vB if addr is None else addr[m]
        I(f'buffer_load_dwordx4 {vr(BF+4*m,4)}, v{va}, {srd("ws")}, s{so} offen offset:{(m&3)*1024} sc1')

def gemm(k, acc, zero, hook=None):
    I = k.I
    for m in range(14):
        for t in range(4):
            b = AR + 16*(m % NSLOT) + 4*t
            c = '0' if (zero and m == 0) else vr(acc+4*t, 4)
            I(f'{MF16} {vr(acc+4*t,4)}, {vr(b,4)}, {vr(BF+4*m,4)}, {c}')
            if m + NSLOT < 14: a_read(k, m + NSLOT, t)
        if hook: hook(m)

def pack_pairs(k, src, P):
    k.cvt(P, src, 16)
    for pp in range(2):
        k.I(f'v_permlane16_swap_b32 v{P+4*pp}, v{P+4*pp+2}')
        k.I(f'v_permlane16_swap_b32 v{P+4*pp+1}, v{P+4*pp+3}')

def publish_stats(k, src, region, streg, T):
    e, I = k.e, k.I
    P = T
    pack_pairs(k, src, P)
    so = sT[4]
    I(f's_mov_b32 s{so}, {region}')
    k.stores([f'buffer_store_dwordx4 {vr(P,4)}, v{vST}, {srd("ws")}, s{so} offen',
              f'buffer_store_dwordx4 {vr(P+4,4)}, v{vST}, {srd("ws")}, s{so} offen offset:1024'])
    S = T + 8
    I(f'v_pk_add_f32 {vr(S,2)}, {vr(src,2)}, {vr(src+2,2)}')
    I(f'v_pk_mul_f32 {vr(S+2,2)}, {vr(src,2)}, {vr(src,2)}')
    I(f'v_pk_fma_f32 {vr(S+2,2)}, {vr(src+2,2)}, {vr(src+2,2)}, {vr(S+2,2)}')
    for i in range(4, 16, 2):
        I(f'v_pk_add_f32 {vr(S,2)}, {vr(S,2)}, {vr(src+i,2)}')
        I(f'v_pk_fma_f32 {vr(S+2,2)}, {vr(src+i,2)}, {vr(src+i,2)}, {vr(S+2,2)}')
    I(f'v_add_f32 v{S+4}, v{S}, v{S+1}')
    I(f'v_add_f32 v{S+5}, v{S+2}, v{S+3}')
    k.allred2(S+4, S+5, S, 'v_add_f32')
    I(f'v_mov_b32 v{S+6}, v{vTAG}')
    I(f's_mov_b32 s{so}, {streg}')
    e.wait_vm0()
    k.stores([f'buffer_store_dwordx3 {vr(S+4,3)}, v9, {srd("ws")}, s{so} offen'])

def poll_stats(k, streg, name, D, va, vb):
    I = k.I
    so = sT[4]
    I(f's_mov_b32 s{so}, {streg}')
    def chk():
        I(f'v_cmp_ne_u32 vcc, s{sTAG}, v{D+2}')
        I(f'v_cmp_ne_u32 s[{sT[2]}:{sT[3]}], s{sTAG}, v{D+6}')
        I(f's_or_b64 vcc, vcc, s[{sT[2]}:{sT[3]}]')
    k.poll([f'buffer_load_dwordx3 {vr(D,3)}, v{va}, {srd("ws")}, s{so} offen sc1',
            f'buffer_load_dwordx3 {vr(D+4,3)}, v{vb}, {srd("ws")}, s{so} offen sc1'], chk, name)

def row_stats(k, D):
    I = k.I
    I(f'v_fmac_f32 v{D}, v{D+4}, v22')
    I(f'v_fmac_f32 v{D+1}, v{D+5}, v22')
    k.allred2(D, D+1, D+2, 'v_add_f32')
    I(f'v_mul_f32 v{D}, s{sC448}, v{D}')
    I(f'v_mul_f32 v{D+2}, v{D}, v{D}')
    I(f'v_fma_f32 v{D+1}, v{D+1}, s{sC448}, -v{D+2}')

def stat_addrs(k, n_sreg, va, vb):
    I = k.I
    t0 = sT[0]
    I(f's_lshl_b32 s{t0}, s{n_sreg}, 11'); I(f's_add_u32 s{t0}, s{t0}, s{sGB}')
    I(f'v_add_u32 v{va}, s{t0}, v4')
    I(f'v_add_u32 v{vb}, 1024, v{va}')
    I('v_cmp_eq_u32 vcc, 3, v3')
    I(f'v_cndmask_b32 v{vb}, v{vb}, v{va}, vcc')

def main_pre(k):
    I = k.I
    t0, t1 = sT[0], sT[1]
    I(f's_lshl_b32 s{t0}, s{sG}, 6'); I(f's_lshl_b32 s{t1}, s{sW}, 4'); I(f's_add_u32 s{t0}, s{t0}, s{t1}')
    I(f'v_add_u32 v15, s{t0}, v2'); I('v_mul_u32_u24 v30, 896, v15')
    I(f's_lshl_b32 s{t0}, s{sJ}, 7')
    I(f'v_add_u32 v30, s{t0}, v30')
    I('v_lshl_add_u32 v15, v3, 3, v30')
    for t in range(4):
        I(f'buffer_load_dwordx2 {vr(36+2*t,2)}, v15, {srd("x")}, 0 offen offset:{t*32}')

def main_rest(k):
    e, I = k.e, k.I
    t0, t1, t2, t3 = sT[0:4]
    I(f's_cmp_eq_u32 s{sJ}, 7')
    I('s_cbranch_scc1 Lmfin')
    gelu_consts(k)
    I(f's_mul_i32 s{t0}, s{sW}, {TILE}'); I(f's_add_u32 s{t0}, s{t0}, s{sGB}')
    I(f'v_add_u32 v{vB}, s{t0}, v4')
    I(f's_lshl_b32 s{t1}, s{sJ}, 11'); I(f's_add_u32 s{t0}, s{t0}, s{t1}')
    I(f'v_lshlrev_b32 v31, 8, v{vSIG}'); I('v_lshl_add_u32 v31, v2, 4, v31')
    I(f'v_add_u32 v{vST}, s{t0}, v31')
    I(f'v_lshl_add_u32 v30, v{vSIG}, 4, v30')
    I(f's_lshl_b32 s{t0}, s{sW}, 3'); I(f's_add_u32 s{t0}, s{t0}, s{sJ}'); I(f's_lshl_b32 s{t0}, s{t0}, 8')
    I(f's_add_u32 s{t0}, s{t0}, s{sGB}')
    I(f'v_add_u32 v9, s{t0}, v4'); I(f'v_mov_b32 v20, {BIG}')
    I('v_cmp_eq_u32 vcc, 0, v3'); I('v_cndmask_b32 v9, v20, v9, vcc')
    stat_addrs(k, sW, 10, 11)
    I('v_bfe_u32 v15, v1, 2, 2')
    I('v_lshl_add_u32 v16, v3, 3, v15'); I('v_lshlrev_b32 v16, 7, v16')
    I('v_and_b32 v17, 3, v1'); I('v_lshl_add_u32 v16, v17, 3, v16')
    I('v_lshrrev_b32 v15, 1, v15'); I('v_and_b32 v17, 1, v3'); I('v_lshl_add_u32 v15, v17, 1, v15')
    I(f'v_lshl_add_u32 v{SB[0]}, v15, 5, v16')
    for t in range(1, 4): I(f'v_xor_b32 v{SB[t]}, {t*32}, v{SB[0]}')
    if k.o.get('touch'):
        fl = ' sc1' if k.o.get('touch') == 2 else ''
        I(f's_mul_i32 s{t0}, s{sJ}, {0xE000}'); I(f's_mul_i32 s{t1}, s{sW}, {TILE}'); I(f's_add_u32 s{t0}, s{t0}, s{t1}')
        I(f's_add_u32 s{t0}, s{t0}, s{sGB}'); I(f's_add_u32 s{t0}, s{t0}, {G_PART}')
        I('v_lshlrev_b32 v15, 7, v1'); I('v_add_u32 v16, 8192, v15'); I(f'v_min_u32 v16, {TILE-128}, v16')
        I(f'buffer_load_dword v250, v15, {srd("ws")}, s{t0} offen' + fl)
        I(f'buffer_load_dword v251, v16, {srd("ws")}, s{t0} offen' + fl)
        I(f'v_lshlrev_b32 v15, 7, v2')
        I(f'v_mul_u32_u24 v16, {G_X1-G_H}, v3'); I('v_add_u32 v15, v15, v16')
        I(f'v_add_u32 v16, {TILE}, v15'); I('v_cmp_eq_u32 vcc, 2, v3'); I('v_cndmask_b32 v15, v15, v16, vcc')
        I('v_cmp_eq_u32 vcc, 3, v3'); I('v_cndmask_b32 v15, v15, v20, vcc')
        I(f's_mul_i32 s{t0}, s{sW}, {TILE}'); I(f's_lshl_b32 s{t1}, s{sJ}, 11'); I(f's_add_u32 s{t0}, s{t0}, s{t1}')
        I(f's_add_u32 s{t0}, s{t0}, s{sGB}'); I(f's_add_u32 s{t0}, s{t0}, {G_H}')
        I(f'buffer_load_dword v252, v15, {srd("ws")}, s{t0} offen' + fl)
    for t in range(4):
        for d in range(2):
            I(f'v_lshlrev_b32 v{HR+4*t+2*d}, 16, v{36+2*t+d}')
            I(f'v_and_b32 v{HR+4*t+2*d+1}, 0xffff0000, v{36+2*t+d}')
    e.barrier()
    k.stamp('b5')
    a_preload(k)
    I(f's_lshl_b32 s{t0}, s{sW}, 6'); I(f's_add_u32 s{t0}, s{t0}, s{sGB}'); I(f's_add_u32 s{t0}, s{t0}, {F_O}')
    I('v_lshlrev_b32 v15, 2, v2')
    def chk(): I(f'v_cmp_ne_u32 vcc, s{sTAG}, v16')
    k.poll([f'buffer_load_dword v16, v15, {srd("ws")}, s{t0} offen sc1'], chk, 'o')
    k.stamp('po')
    b_loads(k, G_O)
    gemm(k, HR, False)
    k.stamp('hg')
    publish_stats(k, HR, G_H, G_STH, BF)
    k.stamp('hp')
    if k.stop == 'h': e.label('Lmfin'); return
    for t in range(4): I(f'v_add_u32 v{SB[t]}, {RB}, v{SB[t]}')
    e.wait_lg0(); e.barrier()
    a_preload(k)
    D = 32
    poll_stats(k, G_STH, 'h', D, 10, 11)
    k.stamp('ph')
    b_loads(k, G_H)
    row_stats(k, D)
    I(f'v_add_f32 v{D+2}, 0x3727c5ac, v{D+1}'); I(f'v_rsq_f32 v{D+4}, v{D+2}')
    I(f'v_mul_f32 v{D+2}, v{D+4}, v{D+4}'); I(f'v_mul_f32 v{D+2}, v{D+2}, v{D+1}')
    I(f'v_add_f32 v{D+2}, 0x3727c5ac, v{D+2}'); I(f'v_rsq_f32 v{D+2}, v{D+2}')
    I(f'v_mul_f32_e64 v{D+5}, -v{D}, v{D+4}')
    I(f'v_mul_f32 v{D+6}, v{D+4}, v{D+2}')
    I(f'v_mul_f32 v{D+7}, v{D+5}, v{D+2}')
    I('v_lshlrev_b32 v15, 4, v3'); I(f'v_add_u32 v15, {L_CS1}, v15')
    def hook(m):
        if m == 11:
            e.barrier()
            for t in range(4): I(f'ds_read_b128 {vr(CS1+4*t,4)}, v15 offset:{t*64}')
    gemm(k, ACC, True, hook)
    k.stamp('tg')
    T = BF
    k.lnfix(ACC, CS1, 16, D+6, T)
    for t in gelu_ops(ACC, T, 16): I(t)
    P = T + 16
    pack_pairs(k, ACC, P)
    for i in (0, 3, 4, 7): I(f'v_min_u32 v{P+i}, -2, v{P+i}')
    so = sT[4]
    I(f's_mov_b32 s{so}, {G_T+TILE}')
    k.stores([f'buffer_store_dwordx4 {vr(P,4)}, v{vST}, {srd("ws")}, s{so} offen',
              f'buffer_store_dwordx4 {vr(P+4,4)}, v{vST}, {srd("ws")}, s{so} offen offset:1024'], tag='tl')
    I(f's_add_u32 s{t0}, s{sG}, 1'); I(f's_mul_i32 s{t0}, s{t0}, {GS}'); I(f's_add_u32 s{t0}, s{t0}, {WS_G+G_T}')
    I(f's_cmp_eq_u32 s{sG}, 31'); I(f's_cselect_b32 s{t0}, {BIG}, s{t0}')
    I(f's_sub_u32 s{t1}, s{sG}, 1'); I(f's_mul_i32 s{t1}, s{t1}, {GS}'); I(f's_add_u32 s{t1}, s{t1}, {WS_G+G_T+5*TILE}')
    I(f's_cmp_eq_u32 s{sG}, 0'); I(f's_cselect_b32 s{t1}, {BIG}, s{t1}')
    I(f's_cmp_eq_u32 s{sW}, 3'); I(f's_cselect_b32 s{t0}, s{t0}, s{t1}')
    I(f's_cselect_b32 s{t2}, 0xc000c000, 0')
    I(f's_cmp_eq_u32 s{sW}, 0'); I(f's_cselect_b32 s{t2}, 0x00030003, s{t2}'); I(f's_mov_b32 s{t3}, s{t2}')
    I(f's_lshl_b32 s{t1}, s{sJ}, 11'); I(f's_add_u32 s{t0}, s{t0}, s{t1}')
    I(f'v_add_u32 v15, s{t0}, v31')
    I(f'v_cndmask_b32 v15, v20, v15, s[{t2}:{t3}]')
    I(f'buffer_store_dwordx4 {vr(P,4)}, v15, {srd("ws")}, 0 offen sc1')
    I(f'buffer_store_dwordx4 {vr(P+4,4)}, v15, {srd("ws")}, 0 offen offset:1024 sc1')
    I(f's_lshl_b32 s{t0}, s{sW}, 5'); I(f's_lshl_b32 s{t1}, s{sJ}, 2'); I(f's_add_u32 s{t0}, s{t0}, s{t1}')
    I(f's_add_u32 s{t0}, s{t0}, s{sGB}'); I(f's_add_u32 s{t0}, s{t0}, {F_T}')
    I('v_cmp_eq_u32 vcc, 0, v1'); I(f'v_cndmask_b32 v21, v20, v{vZ}, vcc')
    e.wait_tag('tl')
    k.stores([f'buffer_store_dword v{vTAG}, v21, {srd("ws")}, s{t0} offen'])
    k.stamp('tp')
    for i in range(0, 16, 2):
        I(f'v_pk_fma_f32 {vr(ACC+i,2)}, {vr(HR+i,2)}, {vr(D+4,2)}, {vr(D+4,2)} op_sel:[0,0,1] op_sel_hi:[1,0,1]')
    if k.stop == 't': e.label('Lmfin'); return
    for t in range(4): I(f'v_subrev_u32 v{SB[t]}, {RB}, v{SB[t]}')
    I(f's_lshl_b32 s{t0}, s{sW}, 4'); I(f's_add_u32 s{t0}, s{t0}, 16')
    I(f'v_add_u32 v15, s{t0}, v2')
    I(f'v_lshlrev_b32 v16, 8, v3'); I(f'v_add_u32 v16, s{sGB}, v16')
    for i, d in enumerate((-1, 1, -2, 2)):
        I(f'v_add_u32 v17, {d}, v15')
        I('v_lshrrev_b32 v18, 4, v17'); I(f'v_mul_u32_u24 v18, {TILE}, v18')
        I('v_and_b32 v17, 15, v17'); I('v_lshl_add_u32 v18, v17, 4, v18')
        I(f'v_add_u32 v{32+i}, v18, v16')
    I('v_cmp_gt_u32 vcc, 2, v3')
    I('v_cndmask_b32 v36, v33, v32, vcc'); I('v_cndmask_b32 v37, v35, v34, vcc')
    addr = [32]*3 + [36] + [33]*3 + [34]*3 + [37] + [35]*3
    I('v_lshrrev_b32 v15, 3, v1'); I(f'v_add_u32 v15, s{sW}, v15'); I('v_add_u32 v15, -1, v15')
    I(f's_add_u32 s{t0}, s{sW}, 1'); I(f's_min_u32 s{t0}, s{t0}, 3')
    I(f'v_med3_i32 v15, v15, 0, s{t0}')
    I('v_and_b32 v16, 7, v1'); I('v_min_u32 v16, 6, v16'); I('v_lshlrev_b32 v16, 2, v16')
    I('v_lshl_add_u32 v15, v15, 5, v16'); I(f'v_add_u32 v15, {F_T}, v15')
    I(f's_cmp_eq_u32 s{sW}, 0'); I(f's_cselect_b32 s{t0}, {G_T+236}, {0}')
    I(f's_cmp_eq_u32 s{sW}, 3'); I(f's_cselect_b32 s{t0}, {G_T+5*TILE+12}, s{t0}')
    I(f's_cmp_eq_u32 s{t0}, 0'); I(f's_cselect_b32 s{t0}, {BIG}, s{t0}')
    I('v_lshlrev_b32 v17, 8, v1'); I(f'v_add_u32 v17, s{t0}, v17')
    I('v_cmp_gt_u32 vcc, 56, v1'); I('v_cndmask_b32 v17, v20, v17, vcc')
    e.wait_lg0(); e.barrier()
    a_preload(k)
    def chk():
        I('v_max_u32 v18, v18, v19')
        I(f'v_cmp_ne_u32 vcc, s{sTAG}, v16')
        I(f'v_cmp_eq_u32 s[{t2}:{t3}], -1, v18')
        I(f's_or_b64 vcc, vcc, s[{t2}:{t3}]')
    k.poll([f'buffer_load_dword v16, v15, {srd("ws")}, s{sGB} offen sc1',
            f'buffer_load_dwordx2 v[18:19], v17, {srd("ws")}, s{sGB} offen sc1'], chk, 't')
    k.stamp('pt')
    b_loads(k, G_T, addr)
    gemm(k, ACC, False)
    k.stamp('xg')
    publish_stats(k, ACC, G_X1, G_STX, BF)
    k.stamp('xp')
    for i in range(0, 16, 2):
        I(f'v_pk_add_f32 {vr(HR+i,2)}, {vr(HR+i,2)}, {vr(ACC+i,2)}')
    if k.stop == 'x1': e.label('Lmfin'); return
    for pp in range(2):
        for r in range(4): I(f'v_permlane16_swap_b32 v{HR+8*pp+r}, v{HR+8*pp+4+r}')
    poll_stats(k, G_STX, 'x', D, 10, 11)
    k.stamp('px')
    x1_dma(k, sW, 0, vB)
    row_stats(k, D)
    I(f'v_add_f32 v{D+2}, 0x3727c5ac, v{D+1}'); I(f'v_rsq_f32 v{D+4}, v{D+2}')
    I(f'v_mul_f32_e64 v{D+5}, -v{D}, v{D+4}')
    I(f's_lshl_b32 s{t0}, s{sW}, 7'); I(f's_add_u32 s{t0}, s{t0}, {L_STAT}')
    I('v_lshlrev_b32 v15, 3, v2'); I(f'v_add_u32 v15, s{t0}, v15')
    I(f'ds_write_b64 v15, {vr(D+4,2)}')
    W4O = 5
    I(f's_mul_i32 s{t0}, s{sW}, 224')
    for i in range(7):
        I(f'v_add_u32 v15, {64*i}, v1')
        I('v_mul_u32_u24 v16, 4682, v15'); I('v_lshrrev_b32 v16, 16, v16')
        I('v_mul_u32_u24 v16, 672, v16')
        I('v_lshl_add_u32 v16, v15, 4, v16')
        I(f'v_add_u32 v{W4O+i}, s{t0}, v16')
    I('v_lshrrev_b32 v15, 1, v3'); I('v_lshlrev_b32 v15, 4, v15')
    I('v_and_b32 v16, 1, v3'); I('v_lshl_add_u32 v15, v16, 2, v15')
    I('v_bfe_u32 v16, v1, 2, 2'); I('v_add_u32 v15, v15, v16')
    I('v_mul_u32_u24 v15, 224, v15')
    I('v_and_b32 v16, 3, v1'); I('v_lshl_add_u32 v15, v16, 3, v15')
    sRING = sT[8]
    I(f's_mul_i32 s{sRING}, s{sW}, 14336')
    I(f's_and_b32 s{t1}, s{sW}, 1')
    I(f's_lshl_b32 s{t2}, s{t1}, 5'); I(f's_add_u32 s{t2}, s{t2}, s{sRING}')
    I(f'v_add_u32 v12, s{t2}, v15')
    I(f's_cmp_eq_u32 s{t1}, 1'); I(f's_cselect_b32 s{t2}, 0, 192'); I(f's_add_u32 s{t2}, s{t2}, s{sRING}')
    I(f'v_add_u32 v14, s{t2}, v15')
    I(f'v_add_u32 v23, {RC}, v4')
    I(f's_mul_i32 s{t0}, s{sJ}, {0xE000}'); I(f's_add_u32 s{t0}, s{t0}, s{sGB}'); I(f's_add_u32 s{t0}, s{t0}, {G_PART}')
    I(f's_mul_i32 s{t2}, s{sW}, {14*256}'); I(f's_add_u32 s{t0}, s{t0}, s{t2}')
    I(f's_lshl_b32 s{t2}, s{t1}, 9'); I(f's_add_u32 s{t2}, s{t2}, s{t0}')
    I(f'v_add_u32 v24, s{t2}, v31')
    I(f's_cmp_eq_u32 s{t1}, 1'); I(f's_cselect_b32 s{t2}, 0, {12*256}'); I(f's_add_u32 s{t2}, s{t2}, s{t0}')
    I('v_lshrrev_b32 v15, 1, v3'); I('v_lshlrev_b32 v15, 8, v15'); I('v_lshl_add_u32 v15, v2, 4, v15')
    I('v_and_b32 v16, 1, v3'); I('v_lshl_add_u32 v15, v16, 3, v15')
    I(f'v_add_u32 v25, s{t2}, v15')
    sW4 = sT[9]
    I(f's_mul_i32 s{sW4}, s{sJ}, {256*896}')
    e.wait_all(); e.barrier()
    k.stamp('b8')
    DA = 144
    A4 = [32, 76, 104]
    UB = 132
    UBR = [132, 136, 140, 16]
    def blk_row(b): return (b & 3)*64 + (b >> 2)*32
    def w4_dma(b):
        I(f's_add_u32 s{t0}, s{sW4}, {blk_row(b)*896}')
        for i in range(7):
            I(f's_add_u32 m0, s{sRING}, {RA + (b & 1)*7168 + i*1024}')
            I(f'buffer_load_dwordx4 v{W4O+i}, {srd("w4")}, s{t0} offen lds', tag=f'w4_{b}')
    def w4_rd(b, lam):
        a = A4[b % 3] + 4*lam
        vb, off = (12, lam*32) if lam < 6 else (14, 0)
        off += (b & 1)*7168
        I(f'ds_read_b64_tr_b16 {vr(a,2)}, v{vb} offset:{off}', tag=f'r4_{b}')
        I(f'ds_read_b64_tr_b16 {vr(a+2,2)}, v{vb} offset:{off+8*224}', tag=f'r4_{b}')
    def w4_take(b):
        e.wait_tag(f'w4_{b}')
        for lam in range(7): w4_rd(b, lam)
        e.wait_tag(f'r4_{b}')
        if b + 2 < 8: w4_dma(b + 2)
    def u_rd(b, n):
        ft = (b & 3)*2 + (b >> 2)
        I(f'ds_read_b128 {vr(UBR[n],4)}, v23 offset:{ft*4096 + n*1024}')
    w4_dma(0); w4_dma(1)
    w4_take(0); w4_take(1); w4_take(2)
    for b in range(8):
        if b in (0, 4):
            e.barrier()
            k.stamp('b9' if b == 0 else 'b10')
            for n in range(4): u_rd(b, n)
        for n in range(4):
            for lam in range(7):
                acc = DA + 16*lam + 4*n
                I(f'{MF16} {vr(acc,4)}, {vr(A4[b%3]+4*lam,4)}, {vr(UBR[n],4)}, ' + ('0' if b == 0 else vr(acc, 4)))
            if b + 1 < 8 and b + 1 != 4: u_rd(b + 1, n)
        if b + 3 < 8: w4_take(b + 3)
    k.stamp('dg')
    st = []
    PK = 32
    for n in range(4):
        I(f's_mov_b32 s{sT[4+n]}, {n*TILE}')
    for n in range(4):
        for pp in range(3):
            P = PK + 16*n + 4*pp if n < 1 else 76 + 16*(n-1) + 4*pp
            a, b_ = DA + 16*(2*pp) + 4*n, DA + 16*(2*pp+1) + 4*n
            k.cvt(P, a, 4); k.cvt(P+2, b_, 4)
            I(f'v_permlane16_swap_b32 v{P}, v{P+2}'); I(f'v_permlane16_swap_b32 v{P+1}, v{P+3}')
            st.append(f'buffer_store_dwordx4 {vr(P,4)}, v24, {srd("ws")}, s{sT[4+n]} offen offset:{pp*1024}')
        P = PK + 12 if n < 1 else 76 + 16*(n-1) + 12
        k.cvt(P, DA + 16*6 + 4*n, 4)
        st.append(f'buffer_store_dwordx2 {vr(P,2)}, v25, {srd("ws")}, s{sT[4+n]} offen')
        k.stores(st); st = []
    I(f's_lshl_b32 s{t0}, s{sJ}, 4'); I(f's_lshl_b32 s{t1}, s{sW}, 2'); I(f's_add_u32 s{t0}, s{t0}, s{t1}')
    I(f's_add_u32 s{t0}, s{t0}, s{sGB}'); I(f's_add_u32 s{t0}, s{t0}, {F_P}')
    e.wait_vm0()
    k.stores([f'buffer_store_dword v{vTAG}, v21, {srd("ws")}, s{t0} offen'])
    k.stamp('pp')
    if k.stop == 'part': e.label('Lmfin'); return
    I('v_min_u32 v15, 27, v1'); I('v_lshlrev_b32 v15, 2, v15'); I(f'v_add_u32 v15, {F_P}, v15')
    def chk(): I(f'v_cmp_ne_u32 vcc, s{sTAG}, v16')
    k.poll([f'buffer_load_dword v16, v15, {srd("ws")}, s{sGB} offen sc1'], chk, 'p')
    k.stamp('pf')
    for j in range(7):
        so = sT[4 + (j & 3)]
        I(f's_mov_b32 s{so}, {G_PART + j*0xE000}')
        for pp in range(2):
            I(f'buffer_load_dwordx4 {vr(BF+8*j+4*pp,4)}, v{vST}, {srd("ws")}, s{so} offen offset:{pp*1024} sc1')
    TT = 144
    for j in range(7):
        for pp in range(2):
            for d in range(4):
                src = BF + 8*j + 4*pp + d
                tt = TT + 2*((4*pp + d) & 7)
                I(f'v_lshlrev_b32 v{tt}, 16, v{src}')
                I(f'v_and_b32 v{tt+1}, 0xffff0000, v{src}')
            for d in range(4):
                tt = TT + 2*((4*pp + d) & 7)
                I(f'v_pk_add_f32 {vr(HR+8*pp+2*d,2)}, {vr(HR+8*pp+2*d,2)}, {vr(tt,2)}')
    k.cvt(32, HR, 16)
    I(f'buffer_store_dwordx4 v[32:35], v30, {srd("out")}, 0 offen')
    I(f'buffer_store_dwordx4 v[36:39], v30, {srd("out")}, 0 offen offset:64')
    k.stamp('end')
    e.label('Lmfin')

def x1_dma(k, n_sreg, m0_, vaddr):
    I = k.I
    t0, t1 = sT[0], sT[1]
    I(f's_mul_i32 s{t0}, s{n_sreg}, {TILE}')
    for i in range(7):
        m = m0_ + i
        I(f's_mov_b32 s{t1}, {G_X1 + m*1024}')
        I(f's_add_u32 m0, s{t0}, {RB + m*1024}')
        I(f'buffer_load_dwordx4 v{vaddr}, {srd("ws")}, s{t1} offen sc1 lds')

sA = 87
def sq_dma(k, name, region, tag, rng=range(14)):
    I = k.I
    t0, t1 = sT[0], sT[1]
    for t in rng:
        I(f's_add_u32 m0, s{sT[4]}, {region + t*4096}')
        I(f's_mov_b32 s{t1}, {t*32*896}')
        I(f'buffer_load_dwordx4 v5, {srd(name)}, s{t1} offen lds', tag=tag)

def aux_pre(k):
    I = k.I
    t0, t1 = sT[0], sT[1]
    I(f's_sub_u32 s{sA}, s{sW}, 4')
    I('v_lshrrev_b32 v5, 3, v1'); I(f's_lshl_b32 s{t0}, s{sA}, 3'); I(f'v_add_u32 v5, s{t0}, v5')
    I('v_mul_u32_u24 v5, 896, v5')
    I('v_bfe_u32 v15, v1, 4, 1'); I('v_lshlrev_b32 v15, 1, v15')
    I(f's_and_b32 s{t0}, s{sA}, 1'); I(f's_lshl_b32 s{t0}, s{t0}, 2')
    I('v_and_b32 v16, 7, v1'); I('v_xor_b32 v15, v15, v16'); I(f'v_xor_b32 v15, s{t0}, v15')
    I('v_lshl_add_u32 v5, v15, 4, v5')
    I(f's_min_u32 s{t0}, s{sJ}, 6'); I(f's_lshl_b32 s{t0}, s{t0}, 7'); I(f'v_add_u32 v5, s{t0}, v5')
    I(f's_lshl_b32 s{sT[4]}, s{sA}, 10')
    sq_dma(k, 'wo', RA, 'wo')

def aux_rest(k):
    e, I = k.e, k.I
    t0, t1, t2, t3 = sT[0:4]
    I(f's_cmp_eq_u32 s{sJ}, 7')
    I('s_cbranch_scc1 Lafin')
    gelu_consts(k)
    sq_dma(k, 'w1', RB, 'w1')
    sCA = sT[5]
    I(f's_lshl_b32 s{sCA}, s{sA}, 13'); I(f's_add_u32 s{sCA}, s{sCA}, {RC}')
    I(f's_lshl_b32 s{t0}, s{sJ}, 9'); I(f's_lshl_b32 s{t1}, s{sA}, 7'); I(f's_add_u32 s{t0}, s{t0}, s{t1}')
    I('v_lshrrev_b32 v15, 3, v1'); I('v_mul_u32_u24 v6, 3584, v15')
    I('v_bfe_u32 v15, v1, 4, 1'); I('v_lshlrev_b32 v15, 2, v15'); I('v_and_b32 v16, 7, v1'); I('v_xor_b32 v15, v15, v16')
    I('v_lshl_add_u32 v6, v15, 4, v6'); I(f'v_add_u32 v6, s{t0}, v6')
    I('v_lshrrev_b32 v15, 2, v1'); I('v_mul_u32_u24 v7, 3584, v15')
    I('v_and_b32 v16, 3, v1'); I('v_lshl_add_u32 v7, v16, 4, v7'); I(f'v_add_u32 v7, s{t0}, v7')
    I('v_lshrrev_b32 v15, 5, v1'); I('v_lshlrev_b32 v15, 3, v15')
    I('v_bfe_u32 v17, v1, 2, 2'); I('v_add_u32 v15, v15, v17')
    I('v_and_b32 v18, 1, v3'); I('v_lshlrev_b32 v18, 5, v18'); I('v_lshl_add_u32 v18, v16, 3, v18')
    I(f'v_add_u32 v18, s{sCA}, v18')
    I('v_lshl_add_u32 v10, v15, 6, v18')
    I('v_lshl_add_u32 v8, v15, 7, v18')
    I('v_lshrrev_b32 v17, 1, v17'); I('v_lshl_add_u32 v8, v17, 6, v8')
    I('v_xor_b32 v9, 64, v8')
    A0, A1, AC0, BB = 32, 144, 224, 14
    def w3_dma(c):
        for i in range(4):
            I(f's_add_u32 m0, s{sCA}, {(c & 1)*4096 + i*1024}')
            if c < 10:
                I(f's_mov_b32 s{t1}, {(32*c + 8*i)*3584}')
                I(f'buffer_load_dwordx4 v6, {srd("w3")}, s{t1} offen lds', tag=f'w3_{c}')
            else:
                I(f's_mov_b32 s{t1}, {(320 + 64*(c & 1) + 16*i)*3584 + (64 if c >= 12 else 0)}')
                I(f'buffer_load_dwordx4 v7, {srd("w3")}, s{t1} offen lds', tag=f'w3_{c}')
    def tr2(dst, vb, off, step, tag=None):
        I(f'ds_read_b64_tr_b16 {vr(dst,2)}, v{vb} offset:{off}', tag=tag)
        I(f'ds_read_b64_tr_b16 {vr(dst+2,2)}, v{vb} offset:{off+step}', tag=tag)
    def w3_take(c):
        e.wait_tag(f'w3_{c}')
        if c < 10:
            for mm in range(2):
                tr2(A0 + 4*(2*c+mm), 8, (c & 1)*4096 + mm*2048, 512, 'r3')
                tr2(A1 + 4*(2*c+mm), 9, (c & 1)*4096 + mm*2048, 512, 'r3')
        else:
            for mm in range(4):
                tr2(A0 + 4*(20 + 4*(c & 1) + mm), 10, (c & 1)*4096 + mm*1024, 256, 'r3')
        e.wait_tag('r3')
        if c + 2 < 14: w3_dma(c + 2)
    e.wait_tag('wo'); e.barrier()
    if k.stop == 'h': e.label('Lafin'); return
    w3_dma(0); w3_dma(1)
    for c in range(0, 2): w3_take(c)
    e.wait_tag('w1'); e.barrier()
    sq_dma(k, 'w2', RA, 'w2')
    I('v_bfe_u32 v15, v1, 2, 2')
    I('v_lshl_add_u32 v16, v3, 3, v15'); I('v_lshlrev_b32 v16, 7, v16')
    I('v_and_b32 v17, 3, v1'); I('v_lshl_add_u32 v16, v17, 3, v16')
    I('v_lshrrev_b32 v15, 1, v15'); I('v_and_b32 v17, 1, v3'); I('v_lshl_add_u32 v15, v17, 1, v15')
    I(f'v_xor_b32 v15, s{sA}, v15')
    I('v_lshl_add_u32 v11, v15, 5, v16'); I(f'v_add_u32 v11, {RB}, v11')
    ONE = 26
    for i in range(4): I(f'v_mov_b32 v{ONE+i}, 0x3f803f80')
    CB = AC0 + 4
    for m in range(5): tr2(CB + 4*(m % 6), 11, m*4096, 512)
    for m in range(14):
        if m + 5 < 14: tr2(CB + 4*((m+5) % 6), 11, (m+5)*4096, 512)
        I(f'{MF16} {vr(AC0,4)}, {vr(CB+4*(m%6),4)}, {vr(ONE,4)}, ' + ('0' if m == 0 else vr(AC0, 4)))
    I(f's_lshl_b32 s{t0}, s{sA}, 6'); I(f's_add_u32 s{t0}, s{t0}, {L_CS1}')
    I('v_lshlrev_b32 v15, 4, v3'); I(f'v_add_u32 v15, s{t0}, v15')
    I(f'ds_write_b128 v15, {vr(AC0,4)}')
    e.wait_lg0(); e.barrier()
    if k.stop == 't': e.label('Lafin'); return
    for c in range(2, 6): w3_take(c)
    e.wait_tag('w2'); e.barrier()
    if k.stop == 'x1': e.label('Lafin'); return
    for c in range(6, 12): w3_take(c)
    I(f's_lshl_b32 s{t0}, s{sA}, 8'); I(f's_add_u32 s{t0}, s{t0}, {L_CS3}')
    I('v_lshrrev_b32 v12, 5, v1'); I('v_lshlrev_b32 v12, 6, v12'); I(f'v_add_u32 v12, s{t0}, v12')
    for mt in range(2):
        for m in range(28):
            if mt == 0: a = A0 + 4*m
            elif m < 20: a = A1 + 4*m
            else:
                if m == 20: e.wait_tag('w3_12'); e.wait_tag('w3_13')
                a = AC0 + 16 + 4*(m & 3)
                tr2(a, 10, (m - 20)*1024, 256)
            I(f'{MF32} {vr(AC0,16)}, {vr(a,4)}, {vr(ONE,4)}, ' + ('0' if m == 0 else vr(AC0, 16)))
        for i in range(4):
            I(f'ds_write_b128 v12, {vr(AC0+4*i,4)} offset:{mt*128 + i*16}')
    stat_addrs(k, sA, 30, 31)
    poll_stats(k, G_STX, 'xa', BB, 30, 31)
    I(f's_mul_i32 s{t0}, s{sA}, {TILE}'); I(f's_add_u32 s{t0}, s{t0}, s{sGB}')
    I(f'v_add_u32 v30, s{t0}, v4')
    x1_dma(k, sA, 7, 30)
    I('v_bfe_u32 v15, v1, 4, 1'); I(f'v_mul_u32_u24 v11, {TILE}, v15')
    I('v_lshl_add_u32 v11, v2, 4, v11')
    I('v_lshrrev_b32 v16, 5, v1'); I('v_lshl_add_u32 v11, v16, 8, v11'); I(f'v_add_u32 v11, {RB}, v11')
    I('v_and_b32 v30, 31, v1'); I('v_lshlrev_b32 v30, 3, v30'); I(f'v_add_u32 v30, {L_STAT}, v30')
    I('v_lshlrev_b32 v31, 10, v15'); I('v_lshl_add_u32 v31, v2, 4, v31'); I('v_lshl_add_u32 v31, v16, 8, v31')
    I(f'v_add_u32 v31, s{sCA}, v31')
    e.wait_all(); e.barrier()
    k.stamp('b8')
    def b_rd(m, b):
        I(f'ds_read_b128 {vr(BB + 8*(m&1) + 4*b,4)}, v11 offset:{b*2*TILE + m*512}')
    def up(acc, afn, fill):
        fill = list(fill)
        per = (len(fill) + 55) // 56
        b_rd(0, 0); b_rd(0, 1)
        for m in range(28):
            for b in range(2):
                if m + 1 < 28: b_rd(m + 1, b)
                I(f'{MF32} {vr(acc+16*b,16)}, {vr(afn(m),4)}, {vr(BB+8*(m&1)+4*b,4)}, ' + ('0' if m == 0 else vr(acc+16*b, 16)))
                for _ in range(per):
                    if fill: I(fill.pop(0))
        for t in fill: I(t)
    AC1, TAIL, GT, CSR, STR = 32, 64, 96, 112, 128
    def epi(acc, mt):
        L = []
        for i in range(4): L.append(f'ds_read_b128 {vr(CSR+4*i,4)}, v12 offset:{mt*128 + i*16}')
        for b in range(2):
            R = STR + 2*b
            x = acc + 16*b
            for i in range(0, 16, 2):
                L.append(f'v_pk_mul_f32 {vr(GT+i,2)}, {vr(CSR+i,2)}, {vr(R,2)} op_sel:[0,1] op_sel_hi:[1,1]')
            for i in range(0, 16, 2):
                L.append(f'v_pk_fma_f32 {vr(x+i,2)}, {vr(x+i,2)}, {vr(R,2)}, {vr(GT+i,2)} op_sel_hi:[1,0,1]')
            L += gelu_ops(x, GT, 16)
            P = 132 + 4*0
            for gp in range(2):
                P = 132 + 4*gp
                for i in range(4):
                    L.append(f'v_cvt_pk_bf16_f32 v{P+i}, v{x+8*gp+2*i}, v{x+8*gp+2*i+1}')
                L.append(f'ds_write_b128 v31, {vr(P,4)} offset:{mt*4096 + b*2048 + gp*512}')
        return L
    up(AC0, lambda m: A0 + 4*m, [])
    k.stamp('u0')
    for m in range(8): tr2(TAIL + 4*m, 10, m*1024, 256)
    I(f'ds_read_b64 {vr(STR,2)}, v30'); I(f'ds_read_b64 {vr(STR+2,2)}, v30 offset:256')
    e.wait_lg0()
    up(AC1, lambda m: A1 + 4*m if m < 20 else TAIL + 4*(m-20), epi(AC0, 0))
    k.stamp('u1')
    e.wait_lg0(); e.barrier()
    for t in epi(AC1, 1): I(t)
    e.wait_lg0(); e.barrier()
    k.stamp('b10')
    e.label('Lafin')
```

```python
import sys
from emit import Emit, parse

KN = "sequential_preLN__linear_kernel_hedgehog__mixer_s_mlp__prompt_kernel"
MF16 = 'v_mfma_f32_16x16x32_bf16'
MF32 = 'v_mfma_f32_32x32x16_bf16'

WS_HELLO = 0x1000
WS_KVP = 0x10000
WS_G = 0x200000
TILE = 14336
AS = 5*TILE
WS_STAMP = 0x3000000
BIG = 0x7fff0000
class Lay:
    def __init__(s, dbg):
        s.X1 = 0; s.P0 = AS; s.FLG = 2*AS + 4*TILE; s.ST = s.FLG + 0x400
        if dbg: s.GS = 0xD0000; s.O = 0x8C000; s.H = 0x9A000; s.T0 = 0xA8000 + TILE
        else: s.GS = 0x8C000; s.O = AS; s.H = 0; s.T0 = AS
        s.F_O = s.FLG; s.F_T = s.FLG + 0x100; s.F_P = s.FLG + 0x200
RA, RB, RC = 0, 57344, 114688
XB, XS = 57344, 12288
L_PHI = 155648
L_CS = 157696
L_CSQ = L_CS + 1024
L_KVR = 159744
L_CS1 = 155648
L_STAT = 156160
US = 10240
LDS_BYTES = 163840

sL, sRB, sH, sG, sJ, sW, sTAG, sMODE, sSPIN = 3, 4, 5, 6, 7, 8, 9, 10, 11
SRD = dict(x=40, wqkv=44, phi=48, wo=52, w1=56, w2=60, w3=64, w4=68, out=72, ws=76)
PTR = dict(x=16, wqkv=18, phi=20, wo=22, w1=26, w2=28, w3=30, w4=32, out=34, dbg=36, ws=38)
SIZE = dict(x=2048*448*2, wqkv=448*1344*2, phi=16*28*28*2, wo=448*448*2, w1=448*448*2, w2=448*448*2,
            w3=448*1792*2, w4=1792*448*2, out=2048*448*2, ws=268435456)
def srd(n): return f's[{SRD[n]}:{SRD[n]+3}]'
WS = srd('ws')
sGB, sODD = 80, 81
sC448, sL2E, sA, sN = 82, 83, 84, 85
sX0, sX1 = 86, 87
sM0, sM1 = 88, 90
sT = [12, 13, 14, 15, 92, 93, 94, 95, 96, 97, 98, 99]

def vr(a, n=1): return f'v{a}' if n == 1 else f'v[{a}:{a+n-1}]'

class K:
    def __init__(self, stop=None, force_slow=False, opts=None):
        self.e = Emit(); self.stop = stop; self.force_slow = force_slow
        self.o = dict(pf='o1g32', pfq=1); self.o.update(opts or {})
        self.L = Lay(self.o.get('dbg'))
    def I(self, *a, **k): return self.e.I(*a, **k)

    def stamp(self, name):
        st = self.o.get('stamps')
        if not st: return
        names = ['0'] + st.split('+')
        name = str(name)
        if name not in names: return
        k = names.index(name)
        r = 100 if k == 0 else 14 + 2*k
        assert k <= 12
        self.I(f's_memrealtime s[{r}:{r+1}]')

    def dump_stamps(self):
        if not self.o.get('stamps'): return
        I = self.I
        self.e.wait_all()
        I('v_mov_b32 v15, 0')
        for k in range(13):
            r = 100 if k == 0 else 14 + 2*k
            I(f'v_writelane_b32 v15, s{r}, {k}')
        I(f's_lshl_b32 s12, s{sL}, 3'); I(f's_add_u32 s12, s12, s{sW}'); I('s_lshl_b32 s12, s12, 8')
        I(f's_add_u32 s12, s12, {WS_STAMP}')
        I('v_mbcnt_lo_u32_b32 v16, -1, 0'); I('v_mbcnt_hi_u32_b32 v16, -1, v16')
        I('v_lshlrev_b32 v16, 2, v16')
        I(f'buffer_store_dword v15, v16, {WS}, s12 offen')

    def build_srd(self, n):
        b, p = SRD[n], PTR[n]
        self.I(f's_mov_b32 s{b}, s{p}')
        self.I(f's_and_b32 s{b+1}, s{p+1}, 0xffff')
        self.I(f's_mov_b32 s{b+2}, {SIZE[n]}')
        self.I(f's_mov_b32 s{b+3}, 0x20000')

    def stores(self, texts, tag=None):
        e = self.e
        slow, back = e.newlabel('Lslow'), e.newlabel('Lback')
        self.I(f's_cmp_lg_u32 s{sMODE}, 0')
        for t in texts:
            i = parse(t)
            touch = i.src
            vi = max([k for k, x in enumerate(e.vm) if x['dst'] & touch], default=None)
            li = max([k for k, x in enumerate(e.lg) if x['dst'] & touch], default=None)
            vn = e._vm_need(vi) if vi is not None else None
            ln = e._lg_need(li) if li is not None else None
            e._wait(vn, ln)
            need = 0
            for p in e.hist:
                d = e.pos - p.pos - 1
                r = e.req(p, i)
                if r > d + 1: need = max(need, r - d - 1)
            if need: e.nop(need)
        self.I(f's_cbranch_scc1 {slow}')
        for t in texts: self.I(t, tag=tag)
        e.label(back)
        e.ool.append(slow + ':')
        for t in texts: e.ool.append('  ' + t + ' sc1')
        e.ool.append('  s_branch ' + back)

    def poll(self, loads, check, name, first_issued=False):
        e = self.e
        top, done, chk = e.newlabel('Lpoll' + name), e.newlabel('Lpd' + name), e.newlabel('Lpc' + name)
        if first_issued:
            check()
            self.I(f's_cbranch_vccz {done}')
        if e.vm: e.wait_vm0()
        e.label(top)
        for t in loads: self.I(t)
        check()
        self.I(f's_cbranch_vccz {done}')
        self.I(f's_sub_u32 s{sSPIN}, s{sSPIN}, 1')
        self.I(f's_cbranch_scc0 {top}')
        self.I(f's_mov_b32 s{sSPIN}, 0')
        e.label(done)

    def allred2(self, X, Y, T, op):
        I = self.I
        I(f'v_permlane32_swap_b32 v{X}, v{Y}')
        I(f'{op} v{X}, v{X}, v{Y}')
        I(f'v_mov_b32 v{T}, v{X}')
        I(f'v_permlane16_swap_b32 v{X}, v{T}')
        I(f'{op} v{X}, v{X}, v{T}')
        I(f'v_mov_b32 v{Y}, v{X}')
        I(f'v_permlane32_swap_b32 v{X}, v{Y}')

    def cvt(self, dst, src, n):
        for i in range(0, n, 2):
            self.I(f'v_cvt_pk_bf16_f32 v{dst+i//2}, v{src+i}, v{src+i+1}')

    def split_a(self, c, D, T):
        I = self.I
        I(f'v_cvt_pk_bf16_f32 v{D+1}, v{c}, v{c}')
        I(f'v_and_b32 v{T}, 0xffff0000, v{D+1}')
        I(f'v_sub_f32 v{T}, v{c}, v{T}')
        I(f'v_cvt_pk_bf16_f32 v{D}, v{c}, v{T}')
    def split_b(self, m, D, T):
        I = self.I
        I(f'v_cvt_pk_bf16_f32 v{D}, v{m}, v{m}')
        I(f'v_and_b32 v{T}, 0xffff0000, v{D}')
        I(f'v_sub_f32 v{T}, v{m}, v{T}')
        I(f'v_cvt_pk_bf16_f32 v{D+1}, v{T}, 0')

    def sel_mat(self, D, T):
        I = self.I
        I(f'v_and_b32 v{T}, 1, v2'); I(f'v_lshlrev_b32 v{T}, 4, v{T}')
        I(f'v_mov_b32 v{D}, 0x3f80'); I(f'v_lshlrev_b32 v{T}, v{T}, v{D}')
        I(f'v_and_b32 v{T+1}, 1, v3'); I(f'v_lshlrev_b32 v{T+1}, 2, v{T+1}')
        I(f'v_lshrrev_b32 v{D}, 1, v2'); I(f'v_sub_u32 v{T+1}, v{D}, v{T+1}')
        for i in range(4):
            I(f'v_cmp_eq_u32 vcc, {i}, v{T+1}')
            I(f'v_cndmask_b32 v{D+i}, 0, v{T}, vcc')

    def softmax2(self, P, OUT, T, vM, C):
        I = self.I
        X, Y, Z = T, T+1, T+2
        E = T+4
        I(f'v_max3_f32 v{X}, v{P}, v{P+1}, v{P+2}')
        I(f'v_max3_f32 v{Y}, -v{P}, -v{P+1}, -v{P+2}')
        I(f'v_max3_f32 v{X}, v{X}, v{P+3}, v{P+4}')
        I(f'v_max3_f32 v{Y}, v{Y}, -v{P+3}, -v{P+4}')
        I(f'v_max3_f32 v{X}, v{X}, v{P+5}, v{P+6}')
        I(f'v_max3_f32 v{Y}, v{Y}, -v{P+5}, -v{P+6}')
        I(f'v_max_f32 v{X}, v{X}, v{P+7}')
        I(f'v_max_f32_e64 v{Y}, v{Y}, -v{P+7}')
        self.allred2(X, Y, Z, 'v_max_f32')
        I(f'v_pk_mul_f32 {vr(X,2)}, {vr(X,2)}, {vr(C,2)} op_sel_hi:[1,0] neg_lo:[1,0] neg_hi:[1,0]')
        for i in range(0, 8, 2):
            I(f'v_pk_fma_f32 {vr(E+i,2)}, {vr(P+i,2)}, {vr(C,2)}, {vr(X,2)} op_sel_hi:[1,0,0]')
            I(f'v_pk_fma_f32 {vr(E+8+i,2)}, {vr(P+i,2)}, {vr(C,2)}, {vr(X,2)} op_sel:[0,0,1] op_sel_hi:[1,0,1] neg_lo:[1,0,0] neg_hi:[1,0,0]')
        for i in range(16):
            I(f'v_exp_f32 v{E+i}, v{E+i}')
        A, B = T+20, T+22
        for (S, b) in ((X, E), (Y, E+8)):
            I(f'v_pk_add_f32 {vr(A,2)}, {vr(b,2)}, {vr(b+2,2)}')
            I(f'v_pk_add_f32 {vr(B,2)}, {vr(b+4,2)}, {vr(b+6,2)}')
            I(f'v_pk_fma_f32 {vr(A,2)}, {vr(B,2)}, {vr(vM,2)}, {vr(A,2)} op_sel_hi:[1,0,1]')
            I(f'v_add_f32 v{S}, v{A}, v{A+1}')
        self.allred2(X, Y, Z, 'v_add_f32')
        I(f'v_rcp_f32 v{X}, v{X}')
        I(f'v_rcp_f32 v{Y}, v{Y}')
        I(f'v_pk_mul_f32 {vr(A,2)}, {vr(X,2)}, {vr(vM,2)} op_sel_hi:[1,0]')
        for i in (0, 2):
            I(f'v_pk_mul_f32 {vr(E+i,2)}, {vr(E+i,2)}, {vr(X,2)} op_sel_hi:[1,0]')
            I(f'v_pk_mul_f32 {vr(E+8+i,2)}, {vr(E+8+i,2)}, {vr(X,2)} op_sel:[0,1] op_sel_hi:[1,1]')
        for i in (4, 6):
            I(f'v_pk_mul_f32 {vr(E+i,2)}, {vr(E+i,2)}, {vr(A,2)} op_sel_hi:[1,0]')
            I(f'v_pk_mul_f32 {vr(E+8+i,2)}, {vr(E+8+i,2)}, {vr(A,2)} op_sel:[0,1] op_sel_hi:[1,1]')
        self.cvt(OUT, E, 16)

    def halo_addr(self, V, T1, T2):
        I = self.I; L = self.L
        t0, t1, t2, t3 = sT[0:4]
        I(f's_add_u32 s{t0}, s{sG}, 1'); I(f's_and_b32 s{t0}, s{t0}, 31'); I(f's_mul_i32 s{t0}, s{t0}, {L.GS}')
        I(f's_add_u32 s{t0}, s{t0}, {WS_G+L.T0-TILE+14*16}')
        I(f's_sub_u32 s{t1}, s{sG}, 1'); I(f's_and_b32 s{t1}, s{t1}, 31'); I(f's_mul_i32 s{t1}, s{t1}, {L.GS}')
        I(f's_add_u32 s{t1}, s{t1}, {WS_G+L.T0+4*TILE}')
        I(f's_cmp_eq_u32 s{sJ}, 7')
        I(f's_cselect_b32 s{t0}, {BIG}, s{t0}'); I(f's_cselect_b32 s{t1}, {BIG}, s{t1}')
        I(f's_cmp_eq_u32 s{sW}, 7')
        I(f's_cselect_b32 s{t0}, s{t0}, {BIG}'); I(f's_cselect_b32 s{t1}, s{t1}, {BIG}')
        I(f'v_mov_b32 v{T1}, s{t0}'); I(f'v_mov_b32 v{T2}, s{t1}')
        I('v_cmp_eq_u32 vcc, 0, v3')
        I(f'v_cndmask_b32 v{V}, v{T2}, v{T1}, vcc')
        I(f'v_mov_b32 v{T1}, {BIG}')
        I('v_cmp_gt_u32 vcc, 2, v3')
        I(f'v_cndmask_b32 v{V}, v{T1}, v{V}, vcc')
        I(f'v_and_b32 v{T1}, 7, v1')
        I(f's_lshl_b32 s{t2}, s{sJ}, 3')
        I(f'v_add_u32 v{T1}, s{t2}, v{T1}')
        I(f'v_lshl_add_u32 v{V}, v{T1}, 8, v{V}')
        I(f'v_bfe_u32 v{T1}, v1, 3, 1')
        I(f'v_lshl_add_u32 v{V}, v{T1}, 4, v{V}')
        I(f's_cmp_eq_u32 s{sG}, 31'); I(f's_cselect_b32 s{t2}, 0xffff, 0')
        I(f's_cmp_eq_u32 s{sG}, 0'); I(f's_cselect_b32 s{t3}, 0xffff0000, 0')
        I(f's_or_b32 vcc_lo, s{t2}, s{t3}'); I('s_mov_b32 vcc_hi, 0')

    def p1(self):
        e, I, L = self.e, self.I, self.L
        t0, t1, t2, t3 = sT[0:4]
        I('s_cmp_ge_u32 s2, 256')
        I('s_cbranch_scc1 Lend')
        self.stamp(0)
        I('s_load_dwordx4 s[16:19], s[0:1], 0')
        I('s_load_dwordx4 s[36:39], s[0:1], 80')
        I('s_load_dwordx8 s[20:27], s[0:1], 16')
        I('s_load_dwordx8 s[28:35], s[0:1], 48')
        I('v_lshrrev_b32 v5, 6, v0')
        I('v_and_b32 v1, 63, v0')
        I(f's_and_b32 s{t0}, s2, 7')
        I(f's_lshr_b32 s{t1}, s2, 3')
        I(f'v_readfirstlane_b32 s{sW}, v5')
        I(f's_lshl_b32 s{sL}, s{t0}, 5')
        I(f's_or_b32 s{sL}, s{sL}, s{t1}')
        I(f's_lshr_b32 s{sRB}, s{sL}, 4')
        I(f's_and_b32 s{sH}, s{sL}, 15')
        I('v_and_b32 v2, 15, v1')
        I('v_lshrrev_b32 v3, 4, v1')
        sCX = sT[5:12]; sCW = [82, 83, 84, 85, 86, 87, 88]
        I(f's_and_b32 s{t0}, s{sRB}, 1'); I(f's_mul_i32 s{t0}, s{t0}, 3'); I(f's_add_u32 s{t0}, s{t0}, s{sH}')
        I(f's_mul_i32 s{t1}, s{t0}, 37'); I(f's_lshr_b32 s{t1}, s{t1}, 8'); I(f's_mul_i32 s{t1}, s{t1}, 7')
        I(f's_sub_u32 s{t0}, s{t0}, s{t1}')
        if self.o.get('norot'): I(f's_mov_b32 s{t0}, 0')
        I(f's_lshl_b32 s{sCX[0]}, s{t0}, 7')
        for i in range(1, 7):
            I(f's_add_u32 s{sCX[i]}, s{sCX[i-1]}, 128'); I(f's_cmp_eq_u32 s{sCX[i]}, 896'); I(f's_cselect_b32 s{sCX[i]}, 0, s{sCX[i]}')
        for i in range(7): I(f's_mul_i32 s{sCW[i]}, s{sCX[i]}, 1344')
        I('v_lshrrev_b32 v9, 2, v1')
        I('v_mul_u32_u24 v9, 2688, v9')
        I('v_lshrrev_b32 v10, 5, v1')
        I('v_lshlrev_b32 v10, 1, v10')
        I('v_and_b32 v11, 3, v1')
        I('v_xor_b32 v10, v10, v11')
        I('v_lshl_add_u32 v9, v10, 4, v9')
        I(f's_mul_i32 s{t0}, s{sH}, 56'); I(f's_andn2_b32 s{t0}, s{t0}, 15')
        I(f'v_add_u32 v0, s{t0}, v9')
        I(f's_lshr_b32 s{t1}, s{sW}, 1'); I(f's_and_b32 s{t2}, s{sW}, 1')
        I(f's_mul_i32 s{t0}, s{t1}, 43008'); I(f's_mul_i32 s{t3}, s{t2}, 896'); I(f's_add_u32 s{t0}, s{t0}, s{t3}')
        I(f's_add_u32 s{t0}, s{t0}, 896')
        I(f'v_add_u32 v9, s{t0}, v0')
        sMW, sMX = sT[4], 89
        I(f's_mul_i32 s{sMW}, s{t2}, 28672'); I(f's_lshl_b32 s{t1}, s{t1}, 10'); I(f's_add_u32 s{sMW}, s{sMW}, s{t1}')
        I(f's_lshl_b32 s{t0}, s{sRB}, 7'); I(f's_lshl_b32 s{t1}, s{sW}, 4'); I(f's_add_u32 s{t0}, s{t0}, s{t1}')
        I('v_lshrrev_b32 v10, 3, v1'); I(f'v_add_u32 v10, s{t0}, v10'); I('v_mul_u32_u24 v10, 896, v10')
        I('v_and_b32 v11, 7, v1'); I('v_xor_b32 v11, v11, v3')
        I('v_lshl_add_u32 v10, v11, 4, v10')
        I('v_xor_b32 v11, 64, v10'); I(f'v_add_u32 v11, {8*896-1024}, v11')
        I(f's_mul_i32 s{sMX}, s{sW}, {XS}'); I(f's_add_u32 s{sMX}, s{sMX}, {XB}')
        I('v_lshlrev_b32 v4, 4, v1')
        I('v_mov_b32 v13, 0')
        e.wait_lg0()
        self.build_srd('wqkv'); self.build_srd('x')
        def xdma(i):
            I(f's_add_u32 m0, s{sMX}, {(i % 6)*2048}')
            I(f'buffer_load_dwordx4 v10, {srd("x")}, s{sCX[i]} offen lds', tag=f'c{i}')
            I(f'buffer_load_dwordx4 v11, {srd("x")}, s{sCX[i]} offen offset:1024 lds', tag=f'c{i}')
        for i in range(7):
            I(f's_add_u32 m0, s{sMW}, {i*4096}')
            I(f'buffer_load_dwordx4 v9, {srd("wqkv")}, s{sCW[i]} offen lds', tag=f'c{i}')
            if i < 6: xdma(i)
        self.stamp('is')
        sWQ = [82, 83, 84, 85]
        I(f's_cmp_ge_u32 s{sW}, 4')
        for i in range(3): I(f's_cselect_b32 s{sWQ[i]}, s{sCW[2*i+1]}, s{sCW[2*i]}')
        I(f's_cselect_b32 s{sWQ[3]}, {BIG}, s{sCW[6]}')
        self.build_srd('ws'); self.build_srd('phi')
        I(f's_lshr_b32 s{sG}, s{sL}, 3')
        I(f's_and_b32 s{sJ}, s{sL}, 7')
        I(f's_and_b32 s{sODD}, s{sL}, 1')
        I(f'buffer_load_dword v14, v13, {WS}, 0 offen sc1')
        I(f's_lshl_b32 s{t0}, s{sH}, 4'); I(f's_or_b32 s{t0}, s{t0}, s{sRB}'); I(f's_lshl_b32 s{t0}, s{t0}, 12')
        I(f's_lshl_b32 s{t1}, s{sW}, 9'); I(f's_add_u32 s{t0}, s{t0}, s{t1}'); I(f's_add_u32 s{t0}, s{t0}, {WS_KVP}')
        I('v_lshrrev_b32 v15, 1, v3'); I('v_lshlrev_b32 v15, 8, v15'); I('v_lshl_add_u32 v15, v2, 4, v15')
        I('v_and_b32 v16, 1, v3'); I('v_lshl_add_u32 v15, v16, 3, v15')
        I(f'v_add_u32 v31, s{t0}, v15')
        I('v_mov_b32 v24, -1'); I('v_mov_b32 v25, -1')
        I(f'buffer_store_dwordx2 v[24:25], v31, {WS}, 0 offen sc1')
        I(f's_mul_i32 s{t0}, s{sH}, 1568'); I(f's_lshl_b32 s{t1}, s{sW}, 8'); I(f's_add_u32 s{t0}, s{t0}, s{t1}')
        I(f's_add_u32 m0, s{t1}, {L_PHI}')
        I('v_lshlrev_b32 v16, 2, v1')
        I(f'buffer_load_dword v16, {srd("phi")}, s{t0} offen lds')
        sIDX = sX1
        I(f's_and_b32 s{sIDX}, s{sL}, 31')
        I(f'v_mov_b32 v20, {BIG}')
        if self.o['pfq']:
            I(f's_mul_i32 s{t0}, s{sIDX}, 14'); I(f's_lshl_b32 s{t1}, s{sW}, 1'); I(f's_add_u32 s{t0}, s{t0}, s{t1}')
            I(f's_mul_i32 s{t0}, s{t0}, 2688')
            I(f's_cmp_eq_u32 s{sW}, 7'); I(f's_cselect_b32 s{t0}, {BIG}, s{t0}')
            I('v_lshrrev_b32 v15, 3, v1'); I('v_mul_u32_u24 v15, 2688, v15'); I('v_and_b32 v16, 7, v1'); I('v_min_u32 v16, 6, v16')
            I('v_lshl_add_u32 v15, v16, 7, v15'); I(f'v_add_u32 v15, s{t0}, v15')
            I('v_cmp_gt_u32 vcc, 16, v1'); I('v_cndmask_b32 v15, v20, v15, vcc')
            I(f'buffer_load_dword v250, v15, {srd("wqkv")}, 0 offen')
        I(f's_getpc_b64 s[{sM1}:{sM1+1}]')
        e.label('Lpc')
        I(f's_add_u32 s{sM1}, s{sM1}, {KN}-Lpc')
        I(f's_addc_u32 s{sM1+1}, s{sM1+1}, -1')
        I(f's_lshl_b32 s{t0}, s{sIDX}, 3'); I(f's_add_u32 s{t0}, s{t0}, s{sW}'); I(f's_lshl_b32 s{t0}, s{t0}, 8')
        I('v_and_b32 v15, 1, v1'); I('v_lshlrev_b32 v15, 7, v15'); I(f'v_add_u32 v15, s{t0}, v15')
        I(f'v_min_u32 v15, Lcodeend-{KN}, v15')
        I(f'global_load_dword v251, v15, s[{sM1}:{sM1+1}]')
        self.halo_addr(21, 22, 23)
        I('s_nop 1')
        for i in range(4): I(f'v_cndmask_b32 v{24+i}, -1, v13, vcc')
        I(f'buffer_store_dwordx4 v[24:27], v21, {WS}, 0 offen sc1')
        for n in ('wo', 'w1', 'w2', 'w3', 'w4', 'out'): self.build_srd(n)
        I(f's_mul_i32 s{sGB}, s{sG}, {L.GS}')
        I(f's_add_u32 s{sGB}, s{sGB}, {WS_G}')
        I(f's_mov_b32 s{sSPIN}, 0x8000')
        for i in range(4): I(f'v_mov_b32 v{32+i}, 0x3f803f80')
        I('v_bfe_u32 v28, v1, 2, 2')
        I('v_and_b32 v29, 3, v1')
        I('v_lshl_add_u32 v15, v3, 3, v28')
        I('v_lshlrev_b32 v15, 6, v15')
        I('v_lshl_add_u32 v15, v29, 3, v15')
        I('v_and_b32 v16, 1, v3')
        I('v_lshl_add_u32 v5, v16, 5, v15')
        I('v_xor_b32 v6, 32, v5')
        I(f's_and_b32 s{t0}, s{sW}, 1'); I(f's_lshl_b32 s{t0}, s{t0}, 5')
        I(f'v_xor_b32 v7, s{t0}, v5')
        I(f's_bfe_u32 s{t0}, s{sW}, 0x10001'); I(f's_mul_i32 s{t0}, s{t0}, 28672')
        I(f's_lshr_b32 s{t1}, s{sW}, 2'); I(f's_lshl_b32 s{t2}, s{t1}, 11'); I(f's_add_u32 s{t0}, s{t0}, s{t2}')
        I(f'v_add_u32 v7, s{t0}, v7')
        I(f's_and_b32 s{t0}, s{sW}, 3'); I(f's_lshl_b32 s{t0}, s{t0}, 8'); I(f's_lshl_b32 s{t1}, s{t1}, 7')
        I(f's_add_u32 s{t0}, s{t0}, s{t1}'); I(f's_add_u32 s{t0}, s{t0}, {L_CS}')
        I(f'v_lshlrev_b32 v8, 3, v2'); I(f'v_add_u32 v8, s{t0}, v8')
        I('v_lshrrev_b32 v15, 1, v2'); I('v_xor_b32 v15, v15, v3'); I('v_lshlrev_b32 v15, 4, v15')
        I('v_lshl_add_u32 v12, v2, 7, v15'); I(f'v_add_u32 v12, s{sMX}, v12')
        I('v_xor_b32 v21, 64, v12')
        I('v_lshl_add_u32 v15, v3, 2, v28')
        I(f's_lshl_b32 s{t0}, s{sODD}, 2')
        I(f'v_subrev_u32 v15, s{t0}, v15')
        I('v_mul_i32_i24 v15, 56, v15')
        I(f'v_add_u32 v15, {L_PHI}, v15')
        I('v_lshl_add_u32 v17, v29, 3, v15')
        I('v_add_u32 v16, 4, v29'); I('v_min_u32 v16, 6, v16')
        I('v_lshl_add_u32 v18, v16, 3, v15')
        I('v_cmp_ne_u32 vcc, 3, v3')
        I('v_cndmask_b32 v22, 0, 1.0, vcc')
        I('v_mul_u32_u24 v23, 224, v2')
        I('v_xor_b32 v15, v28, v3')
        I('v_lshl_add_u32 v23, v15, 3, v23')
        I(f's_add_u32 s{t0}, s{sMX}, 8192')
        I(f'v_add_u32 v23, s{t0}, v23')
        I('v_lshrrev_b32 v15, 2, v1')
        I('v_mul_u32_u24 v15, 224, v15')
        I('v_xor_b32 v16, v29, v3')
        I('v_lshl_add_u32 v15, v16, 3, v15')
        I(f's_lshr_b32 s{t0}, s{sW}, 1'); I(f's_lshl_b32 s{t0}, s{t0}, 5'); I(f's_add_u32 s{t0}, s{t0}, {XB+8192}')
        I(f'v_add_u32 v24, s{t0}, v15')
        I(f's_and_b32 s{t0}, s{sW}, 1'); I(f's_lshl_b32 s{t0}, s{t0}, 5'); I(f's_add_u32 s{t0}, s{t0}, {XB+8192+128}')
        I(f'v_add_u32 v25, s{t0}, v15')
        I(f'v_add_u32 v26, {4*XS}, v24'); I(f'v_add_u32 v27, {4*XS}, v25')
        I('v_and_b32 v28, 31, v1'); I('v_lshlrev_b32 v28, 3, v28'); I(f'v_add_u32 v28, {L_CS}, v28')
        I('v_cmp_gt_u32 vcc, 2, v3'); I('v_mov_b32 v15, 0xbb124925')
        I('v_cndmask_b32 v29, 0, v15, vcc')
        I('v_lshlrev_b32 v15, 2, v3'); I('v_sub_u32 v15, v2, v15')
        for r in range(4):
            I(f'v_cmp_eq_u32 vcc, {r}, v15'); I(f'v_cndmask_b32 v{252+r}, 0, 1.0, vcc')
        AX, BX = 208, 224
        for t in range(4): I(f'v_mov_b32 v{AX+4*t+2}, 0'); I(f'v_mov_b32 v{AX+4*t+3}, 0')
        I(f'v_mov_b32 v{BX+2}, 0'); I(f'v_mov_b32 v{BX+3}, 0')
        I(f's_and_b32 s{t0}, s{sW}, 3'); I(f's_mul_i32 s{t0}, s{t0}, 43008')
        I(f'v_add_u32 v0, s{t0}, v0')
        I(f's_mul_i32 s{t0}, s{sW}, 13'); I(f'v_add_u32 v15, s{t0}, v1')
        I(f's_mul_i32 s{t0}, s{sIDX}, 98'); I(f'v_add_u32 v16, s{t0}, v15'); I('v_lshlrev_b32 v16, 7, v16')
        I('v_cmp_gt_u32 vcc, 98, v15'); I('v_cndmask_b32 v16, v20, v16, vcc')
        I('v_cmp_gt_u32 vcc, 13, v1'); I('v_cndmask_b32 v246, v20, v16, vcc')
        I(f's_lshl_b32 s{t0}, s{sIDX}, 3'); I(f's_add_u32 s{t0}, s{t0}, s{sW}'); I(f's_mul_i32 s{t0}, s{t0}, 49')
        I(f'v_add_u32 v16, s{t0}, v1'); I('v_lshlrev_b32 v16, 7, v16')
        I('v_cmp_gt_u32 vcc, 49, v1'); I('v_cndmask_b32 v247, v20, v16, vcc')
        I(f's_lshl_b32 s{t0}, s{sJ}, 3'); I(f's_add_u32 s{t0}, s{t0}, s{sW}')
        I(f's_mul_i32 s{t1}, s{t0}, {7*128}'); I(f's_lshl_b32 s{t2}, s{t0}, 8'); I(f's_min_u32 s{t2}, s{t2}, {70*128}')
        I(f's_add_u32 s{t2}, s{t2}, {L.FLG}')
        I('v_and_b32 v15, 7, v1'); I('v_min_u32 v15, 6, v15'); I('v_lshlrev_b32 v15, 7, v15'); I(f'v_add_u32 v15, s{t1}, v15')
        I('v_bfe_u32 v16, v1, 3, 1'); I(f'v_mul_u32_u24 v16, {AS}, v16'); I('v_add_u32 v15, v15, v16')
        I('v_and_b32 v16, 1, v1'); I('v_lshlrev_b32 v16, 7, v16'); I(f'v_add_u32 v16, s{t2}, v16')
        I('v_cmp_gt_u32 vcc, 16, v1'); I('v_cndmask_b32 v248, v16, v15, vcc')
        I('v_add_u32 v19, 896, v17'); I('v_add_u32 v20, 896, v18')
        I(f's_mov_b32 s{sX0}, s{sMX}'); sMX = sX0
        I(f's_cmp_eq_u32 s{sODD}, 1')
        I(f's_cselect_b32 s{sM0}, 0xffff, 0'); I(f's_mov_b32 s{sM0+1}, 0')
        I(f's_cselect_b32 s{sM1+1}, 0, 0xffff0000'); I(f's_mov_b32 s{sM1}, 0')
        self.stamp('su')
        X, AR, CF, CSA = 76, 132, 196, 204
        ACCK, ACCV = 52, 60
        def reads(i):
            I(f'ds_read_b64_tr_b16 {vr(CF+4*(i&1),2)}, v7 offset:{i*4096}')
            I(f'ds_read_b64_tr_b16 {vr(CF+4*(i&1)+2,2)}, v7 offset:{i*4096+256}')
            for ee in range(2):
                m = 2*i + ee
                I(f'ds_read_b128 {vr(X+4*m,4)}, v{(12,21)[ee]} offset:{(i%6)*2048}')
                for ti in range(4):
                    b = AR + 16*(m & 3) + 4*ti
                    off = (ti >> 1)*28672 + m*2048
                    I(f'ds_read_b64_tr_b16 {vr(b,2)}, v{5+(ti&1)} offset:{off}')
                    I(f'ds_read_b64_tr_b16 {vr(b+2,2)}, v{5+(ti&1)} offset:{off+256}')
        def kstep(m):
            xb = vr(X+4*m, 4)
            z = m == 0
            I(f'{MF16} v[72:75], {xb}, {xb}, ' + ('0' if z else 'v[72:75]'))
            I(f'{MF16} v[68:71], v[32:35], {xb}, ' + ('0' if z else 'v[68:71]'))
            for ti in range(4):
                acc = vr(ACCK + 4*ti, 4)
                I(f'{MF16} {acc}, {vr(AR+16*(m&3)+4*ti,4)}, {xb}, ' + ('0' if z else acc))
        e.wait_tag('c0'); e.barrier()
        self.stamp('c0')
        reads(0)
        for i in range(7):
            I(f'{MF16} {vr(CSA,4)}, v[32:35], {vr(CF+4*(i&1),4)}, ' + ('0' if i == 0 else vr(CSA, 4)))
            kstep(2*i)
            if i == 6:
                self.split_a(CSA, CF, CF+2)
                I(f'ds_write_b64 v8, {vr(CF,2)}')
            if i < 6:
                e.wait_tag(f'c{i+1}'); e.barrier()
                self.stamp(f'c{i+1}')
                reads(i + 1)
            kstep(2*i + 1)
            if i == 0:
                xdma(6)
            if i == 3:
                for b in range(4):
                    I(f's_add_u32 m0, s{sMX}, {4096 + b*1024}')
                    I(f'buffer_load_dwordx4 v0, {srd("wqkv")}, s{sWQ[b]} offen lds', tag='wq')
                for ch in self.o['pf']:
                    if ch == 'o': I(f'buffer_load_dword v0, v246, {srd("wo")}, 0 offen')
                    if ch == '1': I(f'buffer_load_dword v0, v246, {srd("w1")}, 0 offen')
                    if ch == '2': I(f'buffer_load_dword v0, v246, {srd("w2")}, 0 offen')
                    if ch == '3': I(f'buffer_load_dword v0, v247, {srd("w3")}, 0 offen')
                    if ch == '4': I(f'buffer_load_dword v0, v247, {srd("w4")}, 0 offen')
                    if ch == 'g': I(f'buffer_load_dword v0, v248, {WS}, s{sGB} offen sc1')
                    e.vm[-1]['dst'] = set()
            if i == 5:
                I(f'v_readfirstlane_b32 s{sTAG}, v14')
                I(f's_add_u32 s{sTAG}, s{sTAG}, 0x9E3779B9')
                I(f's_andn2_b32 s{sTAG}, s{sTAG}, 15')
                I(f's_getreg_b32 s{sMODE}, hwreg(HW_REG_XCC_ID)')
                I(f's_and_b32 s{sMODE}, s{sMODE}, 15')
                I(f's_or_b32 s{sMODE}, s{sMODE}, s{sTAG}')
                I(f'v_mov_b32 v15, s{sMODE}')
                I(f's_lshl_b32 s{t0}, s{sL}, 6'); I(f's_add_u32 s{t0}, s{t0}, {WS_HELLO}')
                I(f's_cmp_eq_u32 s{sW}, 7'); I(f's_cselect_b32 s{t0}, s{t0}, {BIG}')
                I(f'v_mov_b32 v16, s{t0}')
                I(f'buffer_store_dword v15, v16, {WS}, 0 offen sc1')
                I('ds_read_b64_tr_b16 v[36:37], v17'); I('ds_read_b64_tr_b16 v[38:39], v19')
                I('ds_read_b64_tr_b16 v[40:41], v18'); I('ds_read_b64_tr_b16 v[42:43], v20')
        I(f's_mov_b32 s{sC448}, 0x3b124925')
        I(f's_mov_b32 s{sL2E}, 0x3fb8aa3b')
        for r in (36, 37, 40, 41): I(f'v_cndmask_b32 v{r}, v{r}, v13, s[{sM0}:{sM0+1}]')
        for r in (38, 39, 42, 43): I(f'v_cndmask_b32 v{r}, v{r}, v13, s[{sM1}:{sM1+1}]')
        e.wait_lg0(); e.barrier()
        for t in range(4): I(f'ds_read_b64 {vr(AX+4*t,2)}, v28 offset:{t*256}')
        self.stamp(2)
        T = 228
        I(f'v_mul_f32 v{T}, v68, v29')
        self.split_b(T, BX, T+1)
        I(f'v_pk_mul_f32 v[72:73], v[72:73], v[252:253]')
        I(f'v_pk_fma_f32 v[72:73], v[74:75], v[254:255], v[72:73]')
        for ti in range(4):
            acc = vr(ACCK + 4*ti, 4)
            I(f'{MF16} {acc}, {vr(AX+4*ti,4)}, {vr(BX,4)}, {acc}')
        I('v_add_f32 v72, v72, v73')
        I('v_mov_b32 v73, v72')
        I('v_permlane32_swap_b32 v72, v73'); I('v_add_f32 v72, v72, v73'); I('v_mov_b32 v73, v72')
        I('v_permlane16_swap_b32 v72, v73'); I('v_add_f32 v72, v72, v73')
        self.cvt(T+4, ACCK, 8)
        I(f'{MF16} v[52:55], v[36:39], {vr(T+4,4)}, 0')
        I(f'{MF16} v[56:59], v[40:43], {vr(T+4,4)}, 0')
        I(f'v_mul_f32 v73, s{sC448}, v68')
        I('v_mul_f32 v74, v73, v73')
        I(f'v_fma_f32 v74, v72, s{sC448}, -v74')
        I('v_add_f32 v74, 0x3727c5ac, v74')
        I('v_rsq_f32 v70, v74')
        I(f'v_mul_f32 v30, s{sL2E}, v70')
        for i in range(0, 8, 2):
            I(f'v_pk_mul_f32 {vr(ACCV+i,2)}, {vr(ACCV+i,2)}, v[70:71] op_sel_hi:[1,0]')
        I(f'v_cndmask_b32 v60, v60, 1.0, s[{sM0}:{sM0+1}]')
        I(f'v_cndmask_b32 v64, v64, 1.0, s[{sM1}:{sM1+1}]')
        self.cvt(72, ACCV, 8)
        I('ds_write_b64 v23, v[72:73] offset:128')
        I('ds_write_b64 v23, v[74:75] offset:160')
        PH = 60
        self.softmax2(52, PH, T, 22, 30)
        for t in range(4):
            I(f'ds_write_b64 v23, {vr(PH+2*t,2)} offset:{t*32}')
        e.wait_tag('wq')
        e.wait_lg0(); e.barrier()
        self.stamp(3)
        KA, KB = 132, 148
        for ks in range(4):
            a, b = (24, 25) if ks < 2 else (26, 27)
            for ee in range(2):
                I(f'ds_read_b64_tr_b16 {vr(KA+4*ks+2*ee,2)}, v{a} offset:{((2*ks+ee)&3)*XS}')
            for ee in range(2):
                I(f'ds_read_b64_tr_b16 {vr(KB+4*ks+2*ee,2)}, v{b} offset:{((2*ks+ee)&3)*XS}')
        I('v_lshrrev_b32 v15, 1, v3'); I(f'v_mul_u32_u24 v15, {XS-1024}, v15'); I(f'v_add_u32 v15, {XB+4096}, v15')
        I('v_add_u32 v5, v5, v15'); I('v_add_u32 v6, v6, v15')
        for ks in range(4):
            I(f'{MF16} v[52:55], {vr(KA+4*ks,4)}, {vr(KB+4*ks,4)}, ' + ('0' if ks == 0 else 'v[52:55]'))
        I(f'v_add_u32 v9, {6*XS}, v5'); I(f'v_add_u32 v10, {6*XS}, v6')
        I(f's_and_b32 s{t0}, s{sW}, 1'); I(f's_lshl_b32 s{t1}, s{t0}, 5')
        I(f'v_xor_b32 v7, s{t1}, v5')
        I(f's_lshr_b32 s{t1}, s{sW}, 1'); I(f's_mul_i32 s{t2}, s{t1}, {2*XS}')
        I(f'v_add_u32 v7, s{t2}, v7')
        self.cvt(56, 52, 4)
        I(f'buffer_store_dwordx2 v[56:57], v31, {WS}, 0 offen sc1')
        self.stamp(4)
        I(f's_lshl_b32 s{t0}, s{t0}, 9'); I(f's_lshl_b32 s{t1}, s{t1}, 7'); I(f's_add_u32 s{t0}, s{t0}, s{t1}')
        I(f's_add_u32 s{t0}, s{t0}, {L_CSQ}')
        I(f'v_lshlrev_b32 v8, 3, v2'); I(f'v_add_u32 v8, s{t0}, v8')
        QC = 164
        for i in range(4):
            I(f'ds_read_b64_tr_b16 {vr(QC+4*i,2)}, v7 offset:{i*1024}')
            I(f'ds_read_b64_tr_b16 {vr(QC+4*i+2,2)}, v7 offset:{i*1024+256}')
        QR = [132, 140, 148, 156, 180, 188]
        def qread(m):
            for t in range(2):
                b = QR[m % 6] + 4*t
                vb = (5, 6)[t] if (m & 3) < 3 else (9, 10)[t]
                off = ((2*m) & 7)*XS + (m >> 2)*1024 if (m & 3) < 3 else (m >> 2)*1024
                I(f'ds_read_b64_tr_b16 {vr(b,2)}, v{vb} offset:{off}')
                I(f'ds_read_b64_tr_b16 {vr(b+2,2)}, v{vb} offset:{off+256}')
        qread(0); qread(1)
        I(f's_and_b32 s{sA}, s{sW}, 3')
        I('v_lshrrev_b32 v11, 3, v1'); I(f's_lshl_b32 s{t0}, s{sA}, 3'); I(f'v_add_u32 v11, s{t0}, v11')
        I('v_mul_u32_u24 v11, 896, v11')
        I('v_bfe_u32 v15, v1, 4, 1'); I('v_lshlrev_b32 v15, 1, v15')
        I(f's_and_b32 s{t0}, s{sA}, 1'); I(f's_lshl_b32 s{t0}, s{t0}, 2')
        I('v_and_b32 v16, 7, v1'); I('v_xor_b32 v15, v15, v16'); I(f'v_xor_b32 v15, s{t0}, v15')
        I('v_lshl_add_u32 v11, v15, 4, v11')
        I(f's_min_u32 s{t0}, s{sJ}, 6'); I(f's_lshl_b32 s{t0}, s{t0}, 7'); I(f'v_add_u32 v11, s{t0}, v11')
        sQM, sQS = sT[4], sT[5]
        I(f's_lshl_b32 s{sQM}, s{sW}, 10')
        I(f's_lshr_b32 s{sQS}, s{sW}, 2'); I(f's_mul_i32 s{sQS}, s{sQS}, {32*896}')
        def sq8(name, region, tag):
            for t in range(7):
                I(f's_add_u32 m0, s{sQM}, {region + t*8192}')
                I(f's_add_u32 s{t1}, s{sQS}, {t*64*896}')
                I(f'buffer_load_dwordx4 v11, {srd(name)}, s{t1} offen lds', tag=tag)
        sq8('wo', RA, 'wo')
        for i in range(4):
            I(f'{MF16} {vr(CSA,4)}, v[32:35], {vr(QC+4*i,4)}, ' + ('0' if i == 0 else vr(CSA, 4)))
        for m in range(2, 5): qread(m)
        for m in range(14):
            if m + 5 < 14: qread(m + 5)
            for t in range(2):
                acc = vr(44 + 4*t, 4)
                I(f'{MF16} {acc}, {vr(QR[m%6]+4*t,4)}, {vr(X+4*m,4)}, ' + ('0' if m == 0 else acc))
            if m == 1:
                self.split_a(CSA, CF, CF+2)
                I(f'ds_write_b64 v8, {vr(CF,2)}')
            if m == 3:
                I(f'v_mul_f32 v{T}, 0xbb124925, v68')
                self.split_b(T, BX, T+1)
                I('v_lshlrev_b32 v28, 3, v1'); I(f'v_add_u32 v28, {L_CSQ}, v28')
            if m == 5:
                self.w3_addr()
        e.wait_lg0(); e.barrier()
        self.stamp('3b')
        for t in range(2): I(f'ds_read_b64 {vr(AX+4*t,2)}, v28 offset:{t*512}')
        sq8('w1', RB, 'w1')
        for t in range(2):
            acc = vr(44 + 4*t, 4)
            I(f'{MF16} {acc}, {vr(AX+4*t,4)}, {vr(BX,4)}, {acc}')
        I(f's_mul_i32 s{t2}, s{sA}, {US}'); I(f's_lshr_b32 s{t3}, s{sW}, 2'); I(f's_lshl_b32 s{t0}, s{t3}, 10')
        I(f's_add_u32 s{t2}, s{t2}, s{t0}'); I(f's_mul_i32 s{t3}, s{t3}, {8*3584}')
        for u in range(5):
            I(f's_add_u32 m0, s{t2}, {RC + u*2048}')
            I(f's_add_u32 s{t1}, s{t3}, {16*u*3584}')
            I(f'buffer_load_dwordx4 v12, {srd("w3")}, s{t1} offen lds', tag='w3')
        self.cvt(T+4, 44, 8)
        I(f'{MF16} v[44:47], v[36:39], {vr(T+4,4)}, 0')
        I(f'{MF16} v[48:51], v[40:43], {vr(T+4,4)}, 0')

    def w3_addr(self):
        I = self.I
        t0, t1 = sT[0], sT[1]
        I(f's_min_u32 s{t0}, s{sJ}, 6'); I(f's_lshl_b32 s{t0}, s{t0}, 9'); I(f's_lshl_b32 s{t1}, s{sA}, 7'); I(f's_add_u32 s{t0}, s{t0}, s{t1}')
        I('v_lshrrev_b32 v15, 3, v1'); I('v_mul_u32_u24 v12, 3584, v15')
        I('v_bfe_u32 v15, v1, 4, 1'); I('v_lshlrev_b32 v15, 2, v15'); I('v_and_b32 v16, 7, v1'); I('v_xor_b32 v15, v15, v16')
        I('v_lshl_add_u32 v12, v15, 4, v12'); I(f'v_add_u32 v12, s{t0}, v12')

    def pre_o(self):
        e, I, L = self.e, self.I, self.L
        t0, t1, t2, t3 = sT[0:4]
        I(f's_lshl_b32 s{t0}, s{sRB}, 4')
        I(f'v_add_u32 v15, s{t0}, v2')
        I('v_lshlrev_b32 v16, 4, v2'); I(f'v_add_u32 v16, s{sH}, v16')
        I('v_cmp_eq_u32 vcc, 1, v3')
        I('v_cndmask_b32 v15, v15, v16, vcc')
        I('v_and_b32 v16, 8, v2'); I('v_lshlrev_b32 v16, 1, v16')
        I('v_and_b32 v17, 7, v2'); I('v_add_u32 v16, v16, v17')
        I(f's_lshl_b32 s{t0}, s{sG}, 3'); I(f's_sub_u32 s{t0}, s{t0}, 8')
        I(f'v_add_u32 v16, s{t0}, v16'); I('v_and_b32 v16, 255, v16')
        I('v_cmp_eq_u32 vcc, 2, v3')
        I('v_cndmask_b32 v15, v15, v16, vcc')
        I('v_lshlrev_b32 v14, 6, v15'); I(f'v_add_u32 v14, {WS_HELLO}, v14')
        ld = f'buffer_load_dword v0, v14, {WS}, 0 offen sc1'
        I(ld)
        self.softmax2(44, 60, 228, 22, 30)
        I(f'v_add_u32 v23, {L_KVR}, v4')
        I(f's_cmp_eq_u32 s{sODD}, 1')
        I(f's_cselect_b32 s{t0}, 0, {1024+12*16}'); I(f's_add_u32 s{t0}, s{t0}, {L_KVR}')
        I('v_lshlrev_b32 v24, 8, v3'); I(f'v_add_u32 v24, s{t0}, v24')
        I(f's_mul_i32 s{t0}, s{sH}, 7'); I(f's_lshr_b32 s{t0}, s{t0}, 1')
        I('v_and_b32 v18, 1, v3'); I('v_lshrrev_b32 v19, 1, v3'); I('v_lshl_add_u32 v26, v18, 1, v19')
        I(f'v_add_u32 v18, s{t0}, v26')
        I('v_lshlrev_b32 v18, 8, v18'); I('v_lshl_add_u32 v18, v2, 4, v18')
        sOG = sX0
        I(f's_lshl_b32 s{t1}, s{sRB}, 1'); I(f's_lshr_b32 s{t2}, s{sW}, 2'); I(f's_add_u32 s{t1}, s{t1}, s{t2}')
        I(f's_mul_i32 s{sOG}, s{t1}, {L.GS}'); I(f's_add_u32 s{sOG}, s{sOG}, {WS_G}')
        I(f's_mul_i32 s{t0}, s{sA}, {TILE}'); I(f's_add_u32 s{t0}, s{t0}, {L.O}')
        I(f'v_add_u32 v18, s{t0}, v18')
        I('v_add_u32 v19, 8, v18')
        I(f'v_mov_b32 v20, {BIG}')
        I(f'v_cndmask_b32 v18, v18, v20, s[{sM0}:{sM0+1}]')
        I(f'v_cndmask_b32 v19, v19, v20, s[{sM1}:{sM1+1}]')
        I('v_cmp_eq_u32 vcc, 0, v1'); I('v_cndmask_b32 v21, v20, v13, vcc')
        I(f's_lshl_b32 s{t0}, s{sA}, 6'); I(f's_lshl_b32 s{t1}, s{sH}, 2'); I(f's_add_u32 s{t0}, s{t0}, s{t1}')
        I(f's_add_u32 s{t0}, s{t0}, {L.F_O}'); I(f's_add_u32 s{sX1}, s{t0}, s{sOG}')
        I(f'v_mov_b32 v27, s{sTAG}')
        def chk():
            I('v_and_b32 v17, -16, v0')
            I(f'v_cmp_ne_u32 vcc, s{sTAG}, v17')
        self.poll([ld], chk, 'hello', first_issued=True)
        I(f'v_cmp_ne_u32 vcc, s{sMODE}, v0')
        I(f's_and_b32 s{sMODE}, vcc_lo, 0xffff')
        if self.force_slow: I(f's_mov_b32 s{sMODE}, 1')
        self.stamp(5)

    def gather(self, shadow):
        e, I = self.e, self.I
        t0, t1, t2, t3 = sT[0:4]
        G, SEL, AC = 76, 140, 144
        I(f's_lshr_b32 s{t0}, s{sW}, 1'); I(f's_lshl_b32 s{t0}, s{t0}, 11'); I(f's_and_b32 s{t1}, s{sW}, 1'); I(f's_lshl_b32 s{t1}, s{t1}, 9')
        I(f's_add_u32 s{t0}, s{t0}, s{t1}'); I(f's_lshl_b32 s{t1}, s{sH}, 16'); I(f's_add_u32 s{t0}, s{t0}, s{t1}')
        I(f's_add_u32 s{t0}, s{t0}, {WS_KVP}')
        I('v_and_b32 v15, 31, v1'); I('v_lshlrev_b32 v15, 4, v15'); I('v_lshrrev_b32 v16, 5, v1')
        I('v_lshl_add_u32 v15, v16, 15, v15'); I(f'v_add_u32 v25, s{t0}, v15')
        for p in range(8): I(f's_mov_b32 s{sT[4+p]}, {p*4096}')
        if self.o.get('probe'):
            I('v_lshrrev_b32 v15, 2, v1'); I('v_lshlrev_b32 v15, 12, v15')
            I('v_and_b32 v16, 1, v1'); I('v_lshl_add_u32 v15, v16, 10, v15')
            I('v_bfe_u32 v16, v1, 1, 1'); I('v_lshl_add_u32 v15, v16, 8, v15')
            def chk2(): I('v_cmp_eq_u32 vcc, -1, v16')
            self.poll([f'buffer_load_dword v16, v15, {WS}, s{t0} offen offset:252 sc1'], chk2, 'kvp')
        self.stamp(6)
        loads = []
        for p in range(8):
            for t in range(2):
                loads.append(f'buffer_load_dwordx4 {vr(G+8*p+4*t,4)}, v25, {WS}, s{sT[4+p]} offen offset:{t*1024} sc1')
        def chk3():
            for p in range(8):
                for t in range(2):
                    acc = vr(AC+4*t, 4)
                    I(f'{MF16} {acc}, {vr(SEL,4)}, {vr(G+8*p+4*t,4)}, ' + ('0' if p == 0 else acc))
            I(f'v_cmp_u_f32 vcc, v{AC}, v{AC+4}')
        for t in loads: I(t)
        self.sel_mat(SEL, 15)
        shadow()
        self.poll(loads, chk3, 'kvg', first_issued=True)
        self.stamp(7)
        self.cvt(152, AC, 8)
        I(f's_lshl_b32 s{t0}, s{sW}, 10')
        I(f'v_add_u32 v15, s{t0}, v23')
        I('ds_write_b128 v15, v[152:155]')

    def o_phase(self):
        e, I = self.e, self.I
        KF, ac, pk, ph = 76, 100, 112, 60
        for a in range(2):
            for dt in range(2):
                I(f'ds_read_b128 {vr(KF+4*(2*a+dt),4)}, v23 offset:{(2*a+dt)*1024}')
            I(f'ds_read_b128 {vr(KF+16+4*a,4)}, v24 offset:{a*2048}')
        for a in range(2):
            I(f'{MF16} {vr(ac+8,4)}, {vr(KF+16+4*a,4)}, {vr(ph+4*a,4)}, ' + ('0' if a == 0 else vr(ac+8, 4)))
            for dt in range(2):
                I(f'{MF16} {vr(ac+4*dt,4)}, {vr(KF+4*(2*a+dt),4)}, {vr(ph+4*a,4)}, ' + ('0' if a == 0 else vr(ac+4*dt, 4)))
        I(f'v_add_f32 v{ac+8}, 0x358637bd, v{ac+8}')
        I(f'v_rcp_f32 v{ac+8}, v{ac+8}')
        for i in range(0, 8, 2):
            I(f'v_pk_mul_f32 {vr(ac+i,2)}, {vr(ac+i,2)}, {vr(ac+8,2)} op_sel_hi:[1,0]')
        self.cvt(pk, ac, 8)
        I(f'v_permlane16_swap_b32 v{pk}, v{pk+2}')
        I(f'v_permlane16_swap_b32 v{pk+1}, v{pk+3}')
        self.stamp(8)
        self.stores([f'buffer_store_dwordx2 {vr(pk,2)}, v18, {WS}, s{sX0} offen',
                     f'buffer_store_dwordx2 {vr(pk+2,2)}, v19, {WS}, s{sX0} offen'])

    def o_flag(self):
        self.e.wait_vm0()
        self.stores([f'buffer_store_dword v27, v21, {WS}, s{sX1} offen'])
        self.stamp(9)

    def finish(self):
        e, I = self.e, self.I
        self.dump_stamps()
        I(f's_or_b32 s{sT[0]}, s{sL}, s{sW}')
        I(f's_cmp_eq_u32 s{sT[0]}, 0')
        I(f's_cbranch_scc0 Lend')
        I(f'v_mov_b32 v15, s{sTAG}')
        I(f'buffer_store_dword v15, v21, {WS}, 0 offen sc1')
        I('s_branch Lend')

    def build(self):
        e, I = self.e, self.I
        import g4
        self.p1()
        self.pre_o()
        I(f's_cmp_ge_u32 s{sW}, 4')
        I('s_cbranch_scc1 LB4')
        self.gather(lambda: g4.main_pre(self))
        e.label('LB4')
        e.wait_all(); e.barrier()
        e.nop(2)
        self.o_phase()
        I(f's_cmp_eq_u32 s{sJ}, 7')
        I('s_cbranch_scc1 Lj7')
        I(f's_cmp_ge_u32 s{sW}, 4')
        I('s_cbranch_scc1 Laux')
        sn = e.snap()
        if self.stop != 'o': g4.main_rest(self)
        else: self.o_flag()
        self.finish()
        e.restore(sn)
        e.label('Laux')
        if self.stop != 'o': g4.aux_rest(self)
        else: self.o_flag()
        self.dump_stamps()
        I('s_branch Lend')
        e.restore(sn)
        e.label('Lj7')
        self.o_flag()
        g4.j7_jobs(self)
        self.dump_stamps()
        e.label('Lend')
        e.raw('  s_endpgm')
        head = f"""; fused persistent kernel (generated)
; @launch grid=(256,1,1) block=(512,1,1) lds={LDS_BYTES}
.amdgcn_target "amdgcn-amd-amdhsa--gfx950"
.text
.globl {KN}
.p2align 8
.type {KN},@function
{KN}:
"""
        tail = f"""
  s_endpgm
Lcodeend:
.fill {self.o.get('pad', 64)}, 4, 0xbf800000
.section .rodata,"a"
.p2align 6
.amdhsa_kernel {KN}
  .amdhsa_next_free_vgpr 256
  .amdhsa_next_free_sgpr 102
  .amdhsa_accum_offset 256
  .amdhsa_group_segment_fixed_size 0
  .amdhsa_kernarg_size 96
  .amdhsa_user_sgpr_count 2
  .amdhsa_user_sgpr_kernarg_segment_ptr 1
  .amdhsa_system_sgpr_workgroup_id_x 1
.end_amdhsa_kernel
"""
        return head + e.text() + tail

if __name__ == '__main__':
    import argparse
    ap = argparse.ArgumentParser()
    ap.add_argument('-o', default='k.s'); ap.add_argument('--stop'); ap.add_argument('--slow', action='store_true')
    ap.add_argument('--opt', action='append', default=[])
    a = ap.parse_args()
    opts = {}
    for kv in a.opt:
        k, v = kv.split('='); opts[k] = int(v) if v.lstrip('-').isdigit() and k not in ('stamps', 'pf') else v
    k = K(stop=a.stop, force_slow=a.slow, opts=opts)
    s = k.build()
    open(a.o, 'w').write(s)
    print('instrs', k.e.nins, 'nops', k.e.nnop, 'bytes(src)', len(s))
```

```python
from g3 import *

GA, GB_ = -2.302208198, -0.1029432397
import struct
def f32(x): return '0x%08x' % struct.unpack('<I', struct.pack('<f', x))[0]

vZ, vBIG, vL0, vSIG, vTAG, vB, vST = 13, 20, 21, 26, 27, 28, 29
SB = [5, 6, 7, 8]
BF = 76
AR = 148
NSLOT = 6
HR = 60
ACC = 44
CS1 = 132
BXT = 40
XA = 244
vTP, vHP, vHS, vTF, vOP = 250, 251, 252, 253, 254
RES = 240

def a_read(k, m, t):
    b = AR + 16*(m % NSLOT) + 4*t
    k.I(f'ds_read_b64_tr_b16 {vr(b,2)}, v{SB[t]} offset:{m*4096}')
    k.I(f'ds_read_b64_tr_b16 {vr(b+2,2)}, v{SB[t]} offset:{m*4096+512}')

def a_preload(k):
    for m in range(NSLOT):
        for t in range(4): a_read(k, m, t)

def b_soff(k, region):
    for i in range(4): k.I(f's_mov_b32 s{sT[4+i]}, {region + i*4096}')

def b_loads(k, addr=None):
    for m in range(14):
        va = vB if addr is None else addr[m]
        k.I(f'buffer_load_dwordx4 {vr(BF+4*m,4)}, v{va}, {WS}, s{sT[4+(m>>2)]} offen offset:{(m&3)*1024} sc1')

def gemm(k, acc):
    I = k.I
    for m in range(14):
        for t in range(4):
            b = AR + 16*(m % NSLOT) + 4*t
            I(f'{MF16} {vr(acc+4*t,4)}, {vr(b,4)}, {vr(BF+4*m,4)}, {vr(acc+4*t,4)}')
            if m + NSLOT < 14: a_read(k, m + NSLOT, t)

def pack_pairs(k, src, P):
    for pp in range(2):
        k.cvt(P+4*pp, src+8*pp, 8)
        k.I(f'v_permlane16_swap_b32 v{P+4*pp}, v{P+4*pp+2}')
        k.I(f'v_permlane16_swap_b32 v{P+4*pp+1}, v{P+4*pp+3}')

def publish_stats(k, src, sreg, tagbits, T, mid=None):
    e, I = k.e, k.I
    P = T
    pack_pairs(k, src, P)
    k.stores([f'buffer_store_dwordx4 {vr(P,4)}, v{vST}, {WS}, s{sreg} offen',
              f'buffer_store_dwordx4 {vr(P+4,4)}, v{vST}, {WS}, s{sreg} offen offset:1024'])
    S = T + 8
    I(f'v_pk_add_f32 {vr(S,2)}, {vr(src,2)}, {vr(src+2,2)}')
    I(f'v_pk_mul_f32 {vr(S+2,2)}, {vr(src,2)}, {vr(src,2)}')
    I(f'v_pk_fma_f32 {vr(S+2,2)}, {vr(src+2,2)}, {vr(src+2,2)}, {vr(S+2,2)}')
    for i in range(4, 16, 2):
        I(f'v_pk_add_f32 {vr(S,2)}, {vr(S,2)}, {vr(src+i,2)}')
        I(f'v_pk_fma_f32 {vr(S+2,2)}, {vr(src+i,2)}, {vr(src+i,2)}, {vr(S+2,2)}')
    I(f'v_add_f32 v{S+4}, v{S}, v{S+1}')
    I(f'v_add_f32 v{S+5}, v{S+2}, v{S+3}')
    k.allred2(S+4, S+5, S, 'v_add_f32')
    I(f'v_or_b32 v{S+6}, {tagbits}, v{vTAG}')
    if mid: mid()
    e.wait_vm0()
    k.stores([f'buffer_store_dwordx3 {vr(S+4,3)}, v9, {WS}, 0 offen'])

def poll_stats(k, tagbits, name, D, va, vb):
    I = k.I
    I(f's_or_b32 s{sN}, s{sTAG}, {tagbits}')
    def chk():
        I(f'v_cmp_ne_u32 vcc, s{sN}, v{D+2}')
        I(f'v_cmp_ne_u32 s[{sT[2]}:{sT[3]}], s{sN}, v{D+6}')
        I(f's_or_b64 vcc, vcc, s[{sT[2]}:{sT[3]}]')
    k.poll([f'buffer_load_dwordx3 {vr(D,3)}, v{va}, {WS}, 0 offen sc1',
            f'buffer_load_dwordx3 {vr(D+4,3)}, v{vb}, {WS}, 0 offen sc1'], chk, name)

def row_stats(k, D):
    I = k.I
    I(f'v_fmac_f32 v{D}, v{D+4}, v22')
    I(f'v_fmac_f32 v{D+1}, v{D+5}, v22')
    k.allred2(D, D+1, D+2, 'v_add_f32')
    I(f'v_mul_f32 v{D}, s{sC448}, v{D}')
    I(f'v_mul_f32 v{D+2}, v{D}, v{D}')
    I(f'v_fma_f32 v{D+1}, v{D+1}, s{sC448}, -v{D+2}')

def stat_addrs(k, va, vb):
    I = k.I
    t0 = sT[0]
    I(f's_lshl_b32 s{t0}, s{sA}, 11'); I(f's_add_u32 s{t0}, s{t0}, s{sGB}'); I(f's_add_u32 s{t0}, s{t0}, {k.L.ST}')
    I(f'v_add_u32 v{va}, s{t0}, v4')
    I(f'v_add_u32 v{vb}, 1024, v{va}')
    I('v_cmp_eq_u32 vcc, 3, v3')
    I(f'v_cndmask_b32 v{vb}, v{vb}, v{va}, vcc')

def gelu_consts(k, c, G):
    I = k.I
    I(f'v_mul_f32 v{G+1}, v{c}, v{c}')
    I(f'v_mul_f32 v{G}, {f32(GA)}, v{c}')
    I(f'v_mul_f32 v{G+1}, v{G+1}, v{c}')
    I(f'v_rcp_f32 v{G+2}, v{c}')
    I(f'v_mul_f32 v{G+1}, {f32(GB_)}, v{G+1}')

def main_pre(k):
    I, L = k.I, k.L
    t0, t1, t2, t3 = sT[0:4]
    I(f's_lshl_b32 s{t0}, s{sG}, 6'); I(f's_lshl_b32 s{t1}, s{sW}, 4'); I(f's_add_u32 s{t0}, s{t0}, s{t1}')
    I(f'v_add_u32 v15, s{t0}, v2'); I('v_mul_u32_u24 v15, 896, v15')
    I(f's_lshl_b32 s{t0}, s{sJ}, 7')
    I('v_lshl_add_u32 v15, v3, 3, v15')
    for t in range(4):
        I(f'buffer_load_dwordx2 {vr(36+2*t,2)}, v15, {srd("x")}, s{t0} offen offset:{t*32}')
    I(f's_mul_i32 s{t0}, s{sW}, {TILE}'); I(f's_add_u32 s{t0}, s{t0}, s{sGB}')
    I(f'v_add_u32 v{vB}, s{t0}, v4')
    I(f's_lshl_b32 s{t1}, s{sJ}, 11'); I(f's_add_u32 s{t0}, s{t0}, s{t1}')
    I(f'v_lshlrev_b32 v31, 8, v{vSIG}'); I('v_lshl_add_u32 v31, v2, 4, v31')
    I(f'v_add_u32 v{vST}, s{t0}, v31')
    I(f's_lshl_b32 s{t0}, s{sW}, 3'); I(f's_add_u32 s{t0}, s{t0}, s{sJ}'); I(f's_lshl_b32 s{t0}, s{t0}, 8')
    I(f's_add_u32 s{t0}, s{t0}, s{sGB}'); I(f's_add_u32 s{t0}, s{t0}, {L.ST}')
    I(f'v_add_u32 v9, s{t0}, v4')
    I('v_cmp_eq_u32 vcc, 0, v3'); I(f'v_cndmask_b32 v9, v{vBIG}, v9, vcc')
    stat_addrs(k, 10, 11)
    I('v_bfe_u32 v15, v1, 2, 2')
    I('v_lshl_add_u32 v16, v3, 3, v15'); I('v_lshlrev_b32 v16, 7, v16')
    I('v_and_b32 v17, 3, v1'); I('v_lshl_add_u32 v16, v17, 3, v16')
    I('v_lshrrev_b32 v15, 1, v15'); I('v_and_b32 v17, 1, v3'); I('v_lshl_add_u32 v15, v17, 1, v15')
    I(f'v_lshl_add_u32 v{SB[0]}, v15, 5, v16')
    for t in range(1, 4): I(f'v_xor_b32 v{SB[t]}, {t*32}, v{SB[0]}')
    I(f's_lshl_b32 s{t0}, s{sW}, 6'); I(f's_add_u32 s{t0}, s{t0}, s{sGB}'); I(f's_add_u32 s{t0}, s{t0}, {L.F_O}')
    I(f'v_lshlrev_b32 v{vOP}, 2, v2'); I(f'v_add_u32 v{vOP}, s{t0}, v{vOP}')
    I(f's_add_u32 s{t0}, s{sGB}, {L.GS + L.T0 - TILE}')
    I(f's_cmp_eq_u32 s{sG}, 31'); I(f's_cselect_b32 s{t0}, {BIG}, s{t0}')
    I(f's_sub_u32 s{t1}, s{sGB}, {L.GS - L.T0 - 4*TILE}')
    I(f's_cmp_eq_u32 s{sG}, 0'); I(f's_cselect_b32 s{t1}, {BIG}, s{t1}')
    I(f's_cmp_eq_u32 s{sW}, 3'); I(f's_cselect_b32 s{t0}, s{t0}, s{t1}')
    I(f's_cselect_b32 s{t2}, 0xc000c000, 0')
    I(f's_cmp_eq_u32 s{sW}, 0'); I(f's_cselect_b32 s{t2}, 0x00030003, s{t2}'); I(f's_mov_b32 s{t3}, s{t2}')
    I(f's_lshl_b32 s{t1}, s{sJ}, 11'); I(f's_add_u32 s{t0}, s{t0}, s{t1}')
    I(f'v_add_u32 v15, s{t0}, v31')
    I(f'v_cndmask_b32 v{vHS}, v{vBIG}, v15, s[{t2}:{t3}]')
    I(f's_lshl_b32 s{t0}, s{sW}, 5'); I(f's_lshl_b32 s{t1}, s{sJ}, 2'); I(f's_add_u32 s{t0}, s{t0}, s{t1}')
    I(f's_add_u32 s{t0}, s{t0}, s{sGB}'); I(f's_add_u32 s{t0}, s{t0}, {L.F_T}')
    I(f'v_add_u32 v{vTF}, s{t0}, v{vL0}')
    I(f's_lshl_b32 s{t0}, s{sW}, 4'); I(f's_add_u32 s{t0}, s{t0}, 16')
    I(f'v_add_u32 v15, s{t0}, v2')
    I(f'v_lshlrev_b32 v16, 8, v3'); I(f'v_add_u32 v16, s{sGB}, v16')
    for i, d in enumerate((-1, 1, -2, 2)):
        I(f'v_add_u32 v17, {d}, v15')
        I(f'v_lshrrev_b32 v{XA+i}, 4, v17'); I(f'v_mul_u32_u24 v{XA+i}, {TILE}, v{XA+i}')
        I('v_and_b32 v17, 15, v17'); I(f'v_lshl_add_u32 v{XA+i}, v17, 4, v{XA+i}')
        I(f'v_add_u32 v{XA+i}, v{XA+i}, v16')
    I('v_cmp_gt_u32 vcc, 2, v3')
    I(f'v_cndmask_b32 v{XA+4}, v{XA+1}, v{XA}, vcc'); I(f'v_cndmask_b32 v{XA+5}, v{XA+3}, v{XA+2}, vcc')
    I('v_lshrrev_b32 v15, 3, v1'); I(f'v_add_u32 v15, s{sW}, v15'); I('v_add_u32 v15, -1, v15')
    I(f's_add_u32 s{t0}, s{sW}, 1'); I(f's_min_u32 s{t0}, s{t0}, 3')
    I(f'v_med3_i32 v15, v15, 0, s{t0}')
    I('v_and_b32 v16, 7, v1'); I('v_min_u32 v16, 6, v16'); I('v_lshlrev_b32 v16, 2, v16')
    I('v_lshl_add_u32 v15, v15, 5, v16'); I(f'v_add_u32 v{vTP}, {L.F_T}, v15')
    I(f's_mov_b32 s{t0}, {BIG}')
    I(f's_cmp_eq_u32 s{sW}, 0'); I(f's_cselect_b32 s{t0}, {L.T0-TILE+236}, s{t0}')
    I(f's_cmp_eq_u32 s{sW}, 3'); I(f's_cselect_b32 s{t0}, {L.T0+4*TILE+12}, s{t0}')
    I('v_lshlrev_b32 v17, 8, v1'); I(f'v_add_u32 v17, s{t0}, v17')
    I('v_cmp_gt_u32 vcc, 56, v1'); I(f'v_cndmask_b32 v{vHP}, v{vBIG}, v17, vcc')

def main_rest(k):
    e, I, L = k.e, k.I, k.L
    t0, t1, t2, t3 = sT[0:4]
    sR = sT[8]
    bpos = k.o.get('bpos', 1)
    def bar():
        e.wait_lg0(); e.barrier()
    a_preload(k)
    for t in range(4):
        for d in range(2):
            I(f'v_lshlrev_b32 v{HR+4*t+2*d}, 16, v{36+2*t+d}')
            I(f'v_and_b32 v{HR+4*t+2*d+1}, 0xffff0000, v{36+2*t+d}')
    b_soff(k, L.O)
    I(f's_mov_b32 s{sR}, {L.H}')
    k.o_flag()
    for t in range(4): I(f'v_mov_b32 v{CS1+4*t+2}, 0'); I(f'v_mov_b32 v{CS1+4*t+3}, 0')
    I(f'v_mov_b32 v{BXT+2}, 0'); I(f'v_mov_b32 v{BXT+3}, 0')
    def chk(): I(f'v_cmp_ne_u32 vcc, s{sTAG}, v16')
    k.poll([f'buffer_load_dword v16, v{vOP}, {WS}, 0 offen sc1'], chk, 'o')
    k.stamp('po')
    b_loads(k)
    gemm(k, HR)
    k.stamp('hg')
    if bpos == 0: bar()
    def mid():
        for t in range(4): I(f'v_add_u32 v{SB[t]}, {RB}, v{SB[t]}')
        I('v_lshlrev_b32 v15, 3, v2'); I(f'v_add_u32 v15, {L_CS1}, v15')
        b_soff(k, L.H)
        if bpos == 1: bar()
        a_preload(k)
    publish_stats(k, HR, sR, 1, BF, mid)
    k.stamp('hp')
    if bpos == 2: bar()
    if k.stop == 'h': return
    for t in range(4): I(f'ds_read_b64 {vr(CS1+4*t,2)}, v15 offset:{t*128}')
    I(f's_mov_b32 s{sR}, {L.T0}')
    D = 32
    poll_stats(k, 1, 'h', D, 10, 11)
    k.stamp('ph')
    b_loads(k)
    row_stats(k, D)
    I('v_cmp_eq_u32 vcc, 0, v3')
    I(f'v_cndmask_b32_e64 v{D+3}, 0, -v{D}, vcc')
    k.split_b(D+3, BXT, D+2)
    for t in range(4):
        I(f'{MF16} {vr(ACC+4*t,4)}, {vr(CS1+4*t,4)}, {vr(BXT,4)}, 0')
    I(f'v_add_f32 v{D+2}, 0x3727c5ac, v{D+1}'); I(f'v_rsq_f32 v{D+4}, v{D+2}')
    I(f'v_mul_f32 v{D+2}, v{D+4}, v{D+4}'); I(f'v_mul_f32 v{D+2}, v{D+2}, v{D+1}')
    I(f'v_add_f32 v{D+2}, 0x3727c5ac, v{D+2}'); I(f'v_rsq_f32 v{D+2}, v{D+2}')
    I(f'v_mul_f32_e64 v{D+5}, -v{D}, v{D+4}')
    I(f'v_mul_f32 v{D+6}, v{D+4}, v{D+2}')
    G = D
    gelu_consts(k, D+6, G)
    gemm(k, ACC)
    k.stamp('tg')
    if bpos == 0: bar()
    T = BF
    P = T + 16
    for h in range(2):
        x = ACC + 8*h; tt = T + 8*h
        for i in range(0, 8, 2): I(f'v_pk_mul_f32 {vr(tt+i,2)}, {vr(x+i,2)}, {vr(x+i,2)}')
        for i in range(0, 8, 2): I(f'v_pk_fma_f32 {vr(tt+i,2)}, {vr(tt+i,2)}, {vr(G,2)}, {vr(G,2)} op_sel:[0,1,0] op_sel_hi:[1,1,0]')
        for i in range(0, 8, 2): I(f'v_pk_mul_f32 {vr(tt+i,2)}, {vr(tt+i,2)}, {vr(x+i,2)}')
        for i in range(8): I(f'v_exp_f32 v{tt+i}, v{tt+i}')
        for i in range(0, 8, 2): I(f'v_pk_fma_f32 {vr(tt+i,2)}, {vr(tt+i,2)}, {vr(G+2,2)}, {vr(G+2,2)} op_sel_hi:[1,0,0]')
        for i in range(8): I(f'v_rcp_f32 v{tt+i}, v{tt+i}')
        for i in range(0, 8, 2): I(f'v_pk_mul_f32 {vr(x+i,2)}, {vr(x+i,2)}, {vr(tt+i,2)}')
        k.cvt(P+4*h, x, 8)
        I(f'v_permlane16_swap_b32 v{P+4*h}, v{P+4*h+2}')
        I(f'v_permlane16_swap_b32 v{P+4*h+1}, v{P+4*h+3}')
        k.stores([f'buffer_store_dwordx4 {vr(P+4*h,4)}, v{vST}, {WS}, s{sR} offen offset:{h*1024}'], tag='tl')
    I(f'buffer_store_dwordx4 {vr(P,4)}, v{vHS}, {WS}, 0 offen sc1')
    I(f'buffer_store_dwordx4 {vr(P+4,4)}, v{vHS}, {WS}, 0 offen offset:1024 sc1')
    for i in range(0, 16, 2):
        I(f'v_pk_fma_f32 {vr(ACC+i,2)}, {vr(HR+i,2)}, {vr(D+4,2)}, {vr(D+4,2)} op_sel:[0,0,1] op_sel_hi:[1,0,1]')
    for t in range(4): I(f'v_subrev_u32 v{SB[t]}, {RB}, v{SB[t]}')
    b_soff(k, L.T0 - TILE)
    I(f's_mov_b32 s{sR}, {L.X1}')
    if bpos == 1: bar()
    if bpos < 2: a_preload(k)
    e.wait_tag('tl')
    k.stores([f'buffer_store_dword v{vTAG}, v{vTF}, {WS}, 0 offen'])
    k.stamp('tp')
    if bpos == 2: bar(); a_preload(k)
    if k.stop == 't': return
    addr = [XA]*3 + [XA+4] + [XA+1]*3 + [XA+2]*3 + [XA+5] + [XA+3]*3
    def chk():
        I('v_max_u32 v18, v18, v19')
        I(f'v_cmp_ne_u32 vcc, s{sTAG}, v16')
        I(f'v_cmp_eq_u32 s[{t2}:{t3}], -1, v18')
        I(f's_or_b64 vcc, vcc, s[{t2}:{t3}]')
    pl = [f'buffer_load_dword v16, v{vTP}, {WS}, s{sGB} offen sc1',
          f'buffer_load_dwordx2 v[18:19], v{vHP}, {WS}, s{sGB} offen sc1']
    k.poll(pl, chk, 't')
    k.stamp('pt')
    b_loads(k, addr)
    sRING, sW4 = sT[9], sT[10]
    I('v_mul_u32_u24 v15, 4682, v1'); I('v_lshrrev_b32 v15, 16, v15')
    I('v_mul_u32_u24 v15, 672, v15'); I('v_add_u32 v15, v15, v4')
    I(f's_mul_i32 s{t0}, s{sW}, 224'); I(f'v_add_u32 v12, s{t0}, v15')
    I('v_lshrrev_b32 v15, 1, v3'); I('v_lshlrev_b32 v15, 4, v15')
    I('v_and_b32 v16, 1, v3'); I('v_lshl_add_u32 v15, v16, 2, v15')
    I('v_bfe_u32 v16, v1, 2, 2'); I('v_add_u32 v15, v15, v16')
    I('v_mul_u32_u24 v15, 224, v15')
    I('v_and_b32 v16, 3, v1'); I('v_lshl_add_u32 v15, v16, 3, v15')
    I(f's_mul_i32 s{sRING}, s{sW}, 14336')
    I(f's_and_b32 s{t1}, s{sW}, 1')
    I(f's_lshl_b32 s{t2}, s{t1}, 5'); I(f's_add_u32 s{t2}, s{t2}, s{sRING}')
    I(f'v_add_u32 v14, s{t2}, v15')
    I(f's_cmp_eq_u32 s{t1}, 1'); I(f's_cselect_b32 s{t2}, 0, 192'); I(f's_add_u32 s{t2}, s{t2}, s{sRING}')
    I(f'v_add_u32 v0, s{t2}, v15')
    I(f's_mul_i32 s{sW4}, s{sJ}, {256*896}')
    gemm(k, ACC)
    k.stamp('xg')
    def blk_row(b): return (b & 3)*64 + (b >> 2)*32
    def w4_dma(b):
        I('s_mov_b32 exec_hi, 0x00ffffff')
        for i in range(8):
            I(f's_add_u32 m0, s{sRING}, {RA + (b & 1)*7168 + i*896}')
            I(f's_add_u32 s{t0}, s{sW4}, {(blk_row(b) + 4*i)*896}')
            I(f'buffer_load_dwordx4 v12, {srd("w4")}, s{t0} offen lds', tag=f'w4_{b}')
        I('s_mov_b32 exec_hi, -1')
    if bpos == 0: bar()
    def mid():
        for i in range(0, 16, 2):
            I(f'v_pk_add_f32 {vr(RES+i,2)}, {vr(HR+i,2)}, {vr(ACC+i,2)}')
        if bpos == 1: bar()
    publish_stats(k, ACC, sR, 2, BF, mid)
    k.stamp('xp')
    if bpos == 2: bar()
    if k.stop == 'x1': return
    poll_stats(k, 2, 'x', D, 10, 11)
    k.stamp('px')
    x1_dma(k, 0, vB)
    w4_dma(0); w4_dma(1)
    row_stats(k, D)
    SR = 40
    I(f'v_mul_f32 v{D+3}, -1.0, v{D}')
    k.split_b(D+3, SR, D+2)
    I(f'v_add_f32 v{D+2}, 0x3727c5ac, v{D+1}'); I(f'v_rsq_f32 v{D+4}, v{D+2}')
    gelu_consts(k, D+4, SR+4)
    I(f's_lshl_b32 s{t0}, s{sW}, 9'); I(f's_add_u32 s{t0}, s{t0}, {L_STAT}')
    I('v_lshlrev_b32 v15, 5, v2'); I(f'v_add_u32 v15, s{t0}, v15')
    I(f'ds_write_b128 v15, {vr(SR,4)}'); I(f'ds_write_b128 v15, {vr(SR+4,4)} offset:16')
    I(f's_mul_i32 s{t0}, s{sJ}, {AS}'); I(f's_add_u32 s{t0}, s{t0}, s{sGB}'); I(f's_add_u32 s{t0}, s{t0}, {L.P0}')
    I(f's_mul_i32 s{t2}, s{sW}, {14*256}'); I(f's_add_u32 s{t0}, s{t0}, s{t2}')
    I(f's_and_b32 s{t1}, s{sW}, 1')
    I(f's_lshl_b32 s{t2}, s{t1}, 9'); I(f's_add_u32 s{t2}, s{t2}, s{t0}')
    I(f'v_add_u32 v9, s{t2}, v31')
    I(f's_cmp_eq_u32 s{t1}, 1'); I(f's_cselect_b32 s{t2}, 0, {12*256}'); I(f's_add_u32 s{t2}, s{t2}, s{t0}')
    I('v_lshrrev_b32 v15, 1, v3'); I('v_lshlrev_b32 v15, 8, v15'); I('v_lshl_add_u32 v15, v2, 4, v15')
    I('v_and_b32 v16, 1, v3'); I('v_lshl_add_u32 v15, v16, 3, v15')
    I(f'v_add_u32 v10, s{t2}, v15')
    I(f'v_add_u32 v8, {RC}, v4')
    I(f's_lshl_b32 s{t0}, s{sW}, 12'); I(f's_add_u32 s{t0}, s{t0}, {RB}'); I(f'v_add_u32 v11, s{t0}, v4')
    I(f's_lshl_b32 s{t0}, s{sJ}, 4'); I(f's_lshl_b32 s{t1}, s{sW}, 2'); I(f's_add_u32 s{t0}, s{t0}, s{t1}')
    I(f's_add_u32 s{t0}, s{t0}, s{sGB}'); I(f's_add_u32 s{t0}, s{t0}, {L.F_P}')
    I(f'v_add_u32 v5, s{t0}, v{vL0}')
    for n in range(4): I(f's_mov_b32 s{sT[4+n]}, {n*TILE}')
    e.wait_tag('x1'); e.wait_lg0(); e.barrier()
    k.stamp('b8')
    DA = 144
    def A4(b): return 32 + 28*(b & 3)
    UBR = [16, 22, 28]
    def w4_take(b):
        e.wait_tag(f'w4_{b}')
        for lam in range(7):
            a = A4(b) + 4*lam
            vb, off = (14, lam*32) if lam < 6 else (0, 0)
            off += (b & 1)*7168
            I(f'ds_read_b64_tr_b16 {vr(a,2)}, v{vb} offset:{off}', tag=f'r4_{b}')
            I(f'ds_read_b64_tr_b16 {vr(a+2,2)}, v{vb} offset:{off+8*224}', tag=f'r4_{b}')
    def w4_next(b):
        if b + 2 < 8:
            e.wait_tag(f'r4_{b}')
            w4_dma(b + 2)
    for b in range(4):
        w4_take(b); w4_next(b)
    seq = [(b, n) for b in range(4) for n in range(4)] + [(b, n) for n in range(4) for b in range(4, 8)]
    def u_rd(i):
        b, n = seq[i]
        I(f'ds_read_b128 {vr(UBR[i%3],4)}, v8 offset:{(b&3)*US + (b>>2)*4096 + n*1024}')
    def pack_list(n):
        Lq = []
        for pp in range(3):
            a = DA + 28*n + 8*pp
            for i in range(4): Lq.append(f'v_cvt_pk_bf16_f32 v{a+i}, v{a+2*i}, v{a+2*i+1}')
            Lq.append(f'v_permlane16_swap_b32 v{a}, v{a+2}'); Lq.append(f'v_permlane16_swap_b32 v{a+1}, v{a+3}')
            Lq.append(('st', f'buffer_store_dwordx4 {vr(a,4)}, v9, {WS}, s{sT[4+n]} offen offset:{pp*1024}', n))
        a = DA + 28*n + 24
        for i in range(2): Lq.append(f'v_cvt_pk_bf16_f32 v{a+i}, v{a+2*i}, v{a+2*i+1}')
        Lq.append(('st', f'buffer_store_dwordx2 {vr(a,2)}, v10, {WS}, s{sT[4+n]} offen', n))
        return Lq
    def run_fill(x):
        if isinstance(x, tuple):
            if x[0] == 'st': k.stores([x[1]], tag=f'p{x[2]}')
            else:
                e.wait_tag(f'p{x[1]}')
                k.stores([f'buffer_store_dword v{vTAG}, v5, {WS}, 0 offen offset:{x[1]*128}'])
        else: I(x)
    fill = []
    for i, (b, n) in enumerate(seq):
        if i in (0, 16):
            e.wait_lg0(); e.barrier()
            k.stamp('b9' if i == 0 else 'b10')
            u_rd(i); u_rd(i + 1)
            if i == 0:
                for t in range(4): I(f'ds_write_b128 v11, {vr(RES+4*t,4)} offset:{t*1024}')
        if i + 2 < 32 and i + 2 not in (16, 17): u_rd(i + 2)
        for lam in range(7):
            acc = DA + 28*n + 4*lam
            I(f'{MF16} {vr(acc,4)}, {vr(A4(b)+4*lam,4)}, {vr(UBR[i%3],4)}, ' + ('0' if b == 0 else vr(acc, 4)))
            if fill and not (b == 4 and lam < 2): run_fill(fill.pop(0))
        if (b, n) in ((0, 3), (1, 3), (3, 3)): w4_take(b + 4)
        if (b, n) == (3, 1): w4_take(6)
        if (b, n) in ((1, 0), (2, 0)): w4_next(b + 3)
        if b == 7:
            assert not fill
            if n > 0: run_fill(('fl', n - 1))
            fill = pack_list(n)
    k.stamp('dg')
    for x in fill: run_fill(x)
    run_fill(('fl', 3))
    k.stamp('pp')

def x1_dma(k, m0_, vaddr):
    I = k.I
    t0, t1 = sT[0], sT[1]
    I(f's_mul_i32 s{t0}, s{sA}, {TILE}')
    for i in range(7):
        m = m0_ + i
        if i % 4 == 0:
            I(f's_mov_b32 s{t1}, {k.L.X1 + m*1024}')
            I(f's_add_u32 m0, s{t0}, {RB + m*1024}')
        I(f'buffer_load_dwordx4 v{vaddr}, {WS}, s{t1} offen offset:{(i&3)*1024} sc1 lds', tag='x1')

def aux_rest(k):
    e, I, L = k.e, k.I, k.L
    t0, t1, t2, t3 = sT[0:4]
    sCA, sTB = sT[5], sT[6]
    I(f's_mul_i32 s{sCA}, s{sA}, {US}'); I(f's_add_u32 s{sCA}, s{sCA}, {RC}')
    I(f's_mul_i32 s{sTB}, s{sA}, {TILE}'); I(f's_add_u32 s{sTB}, s{sTB}, {RB}')
    I('v_lshrrev_b32 v15, 5, v1'); I('v_lshlrev_b32 v15, 3, v15')
    I('v_bfe_u32 v17, v1, 2, 2'); I('v_add_u32 v15, v15, v17')
    I('v_and_b32 v16, 3, v1')
    I('v_and_b32 v14, 1, v3'); I('v_lshlrev_b32 v14, 5, v14'); I('v_lshl_add_u32 v14, v16, 3, v14')
    I('v_lshl_add_u32 v10, v15, 6, v14')
    I('v_lshl_add_u32 v8, v15, 7, v14'); I(f'v_add_u32 v8, s{sCA}, v8')
    I('v_lshrrev_b32 v17, 1, v17'); I('v_lshl_add_u32 v8, v17, 6, v8')
    I('v_xor_b32 v9, 64, v8')
    A0, A1, AC0, BB = 32, 144, 224, 14
    PAT, C0, C1, ONE = 224, 228, 232, 236
    def tr2(dst, vb, off, step, tag=None):
        I(f'ds_read_b64_tr_b16 {vr(dst,2)}, v{vb} offset:{off}', tag=tag)
        I(f'ds_read_b64_tr_b16 {vr(dst+2,2)}, v{vb} offset:{off+step}', tag=tag)
    def units_rd(u0):
        for u in range(u0, u0 + 5):
            tr2(A0 + 4*u, 8, (u % 5)*2048, 512, 'r3')
            tr2(A1 + 4*u, 9, (u % 5)*2048, 512, 'r3')
    def units_cs(u0):
        for u in range(u0, u0 + 5):
            I(f'{MF16} {vr(C0,4)}, {vr(PAT,4)}, {vr(A0+4*u,4)}, ' + ('0' if u == 0 else vr(C0, 4)))
            I(f'{MF16} {vr(C1,4)}, {vr(PAT,4)}, {vr(A1+4*u,4)}, ' + ('0' if u == 0 else vr(C1, 4)))
    def units_dma(u0):
        for u in range(u0, u0 + 5):
            for hf in range(2):
                I(f's_add_u32 m0, s{sCA}, {(u % 5)*2048 + hf*1024}')
                I(f's_mov_b32 s{t1}, {(16*u + 8*hf)*3584}')
                I(f'buffer_load_dwordx4 v12, {srd("w3")}, s{t1} offen lds', tag='w3')
    def tail_dma(mt, sbase):
        for i in range(8):
            I(f's_add_u32 m0, s{sbase}, {i*1024}')
            I(f's_mov_b32 s{t1}, {(320 + 16*i)*3584 + 64*mt}')
            I(f'buffer_load_dwordx4 v7, {srd("w3")}, s{t1} offen lds', tag=f'w3t{mt}')
    def pat(P):
        I('v_lshrrev_b32 v15, 2, v2'); I('v_and_b32 v16, 1, v3'); I('v_cmp_eq_u32 vcc, v15, v16')
        I(f'v_mov_b32 v15, 0x3f803f80')
        for i in range(4): I(f'v_cndmask_b32 v{P+i}, 0, v15, vcc')
    units_rd(0)
    k.o_flag()
    e.wait_tag('r3')
    units_dma(5)
    I(f's_lshl_b32 s{t0}, s{sJ}, 9'); I(f's_lshl_b32 s{t1}, s{sA}, 7'); I(f's_add_u32 s{t0}, s{t0}, s{t1}')
    I('v_lshrrev_b32 v15, 2, v1'); I('v_mul_u32_u24 v7, 3584, v15')
    I('v_and_b32 v16, 3, v1'); I('v_lshl_add_u32 v7, v16, 4, v7'); I(f'v_add_u32 v7, s{t0}, v7')
    I('v_bfe_u32 v15, v1, 2, 2')
    I('v_lshl_add_u32 v16, v3, 3, v15'); I('v_lshlrev_b32 v16, 7, v16')
    I('v_and_b32 v17, 3, v1'); I('v_lshl_add_u32 v16, v17, 3, v16')
    I('v_lshrrev_b32 v15, 1, v15'); I('v_and_b32 v17, 1, v3'); I('v_lshl_add_u32 v15, v17, 1, v15')
    I(f'v_xor_b32 v15, s{sA}, v15')
    I('v_lshl_add_u32 v6, v15, 5, v16'); I(f'v_add_u32 v6, {RB}, v6')
    CB = 84
    for m in range(14): tr2(CB + 4*m, 6, m*4096, 512)
    for i in range(4): I(f'v_mov_b32 v{ONE+i}, 0x3f803f80')
    pat(PAT)
    for m in range(14):
        I(f'{MF16} v[240:243], {vr(ONE,4)}, {vr(CB+4*m,4)}, ' + ('0' if m == 0 else 'v[240:243]'))
    units_cs(0)
    k.split_a(240, 244, 246)
    I(f's_lshl_b32 s{t0}, s{sA}, 7'); I(f's_add_u32 s{t0}, s{t0}, {L_CS1}')
    I('v_lshlrev_b32 v15, 3, v2'); I(f'v_add_u32 v15, s{t0}, v15')
    I('ds_write_b64 v15, v[244:245]')
    e.wait_tag('w3'); units_rd(5)
    e.wait_lg0()
    k.stamp('a6')
    e.barrier()
    if k.stop == 'h': return
    I(f's_lshl_b32 s{t2}, s{sA}, 10')
    for t in range(14):
        I(f's_add_u32 m0, s{t2}, {RA + t*4096}')
        I(f's_mov_b32 s{t1}, {t*32*896}')
        I(f'buffer_load_dwordx4 v11, {srd("w2")}, s{t1} offen lds', tag='w2')
    units_dma(10)
    units_cs(5)
    e.wait_tag('w3'); units_rd(10)
    e.wait_lg0()
    k.stamp('a7')
    e.barrier()
    if k.stop == 't': return
    units_dma(15)
    tail_dma(0, sTB)
    units_cs(10)
    I(f'v_add_u32 v6, s{sTB}, v10'); I(f'v_add_u32 v10, s{sCA}, v10')
    stat_addrs(k, 0, 5)
    I(f's_mul_i32 s{t0}, s{sA}, {TILE}'); I(f's_add_u32 s{t0}, s{t0}, s{sGB}')
    I(f'v_add_u32 v11, s{t0}, v4')
    e.wait_tag('w3'); units_rd(15)
    e.wait_tag('w3t0')
    for i in range(8): tr2(A0 + 4*(20+i), 6, i*1024, 256)
    e.wait_lg0()
    k.stamp('a8')
    e.barrier()
    if k.stop == 'x1': return
    units_cs(15)
    for i in range(8):
        I(f'{MF16} {vr(C0,4)}, {vr(PAT,4)}, {vr(A0+4*(20+i),4)}, {vr(C0,4)}')
    poll_stats(k, 2, 'xa', BB, 0, 5)
    x1_dma(k, 7, 11)
    tail_dma(1, sCA)
    k.split_a(C0, 30, 15)
    I(f'v_mov_b32 v13, v{C1}')
    I('v_bfe_u32 v15, v1, 4, 1'); I(f'v_mul_u32_u24 v11, {TILE}, v15')
    I('v_lshl_add_u32 v11, v2, 4, v11')
    I('v_lshrrev_b32 v16, 5, v1'); I('v_lshl_add_u32 v11, v16, 8, v11'); I(f'v_add_u32 v11, {RB}, v11')
    I('v_and_b32 v0, 31, v1'); I('v_lshlrev_b32 v0, 5, v0'); I(f'v_add_u32 v0, {L_STAT}, v0')
    I('v_lshlrev_b32 v12, 10, v15'); I('v_lshl_add_u32 v12, v2, 4, v12'); I('v_lshl_add_u32 v12, v16, 8, v12')
    I(f'v_add_u32 v12, s{sCA}, v12')
    if k.o.get('prio', 1): I('s_setprio 1')
    e.wait_tag('x1'); e.barrier()
    k.stamp('b8')
    def b_rd(m, b):
        d = vr(BB + 8*(m&1) + 4*b, 4)
        if m < 28: I(f'ds_read_b128 {d}, v11 offset:{b*2*TILE + m*512}')
        else: I(f'ds_read_b128 {d}, v0 offset:{b*1024}')
    def up(acc, afn, fill):
        fill = list(fill)
        per = (len(fill) + 55) // 56
        b_rd(0, 0); b_rd(0, 1)
        for m in range(29):
            for b in range(2):
                if m + 1 < 29: b_rd(m + 1, b)
                I(f'{MF32} {vr(acc+16*b,16)}, {vr(afn(m),4)}, {vr(BB+8*(m&1)+4*b,4)}, ' + ('0' if m == 0 else vr(acc+16*b, 16)))
                for _ in range(per):
                    if fill: I(fill.pop(0))
        for t in fill: I(t)
    AC1, TAIL, GT, GC, PK, P2, C2, AX1 = 32, 64, 96, 112, 120, 128, 132, 136
    def epi(acc, mt):
        Lq = []
        for b in range(2):
            G = GC + 4*b
            for gp in range(2):
                x = acc + 16*b + 8*gp; tt = GT + 8*gp
                for i in range(8): Lq.append(f'v_mul_f32 v{tt+i}, v{x+i}, v{x+i}')
                for i in range(8): Lq.append(f'v_fma_f32 v{tt+i}, v{tt+i}, v{G+1}, v{G}')
                for i in range(8): Lq.append(f'v_mul_f32 v{tt+i}, v{tt+i}, v{x+i}')
                for i in range(8): Lq.append(f'v_exp_f32 v{tt+i}, v{tt+i}')
                for i in range(8): Lq.append(f'v_fma_f32 v{tt+i}, v{tt+i}, v{G+2}, v{G+2}')
                for i in range(8): Lq.append(f'v_rcp_f32 v{tt+i}, v{tt+i}')
                for i in range(8): Lq.append(f'v_mul_f32 v{x+i}, v{x+i}, v{tt+i}')
                P = PK + 4*gp
                for i in range(4): Lq.append(f'v_cvt_pk_bf16_f32 v{P+i}, v{x+2*i}, v{x+2*i+1}')
                Lq.append(f'ds_write_b128 v12, {vr(P,4)} offset:{mt*4096 + b*2048 + gp*512}')
        return Lq
    up(AC0, lambda m: A0 + 4*m if m < 28 else 30, [])
    k.stamp('u0')
    e.wait_tag('w3t1')
    for m in range(8): tr2(TAIL + 4*m, 10, m*1024, 256)
    I(f'ds_read_b128 {vr(GC,4)}, v0 offset:16'); I(f'ds_read_b128 {vr(GC+4,4)}, v0 offset:1040')
    pat(P2)
    I(f'v_mov_b32 v{C2}, v13')
    pre = [f'{MF16} {vr(C2,4)}, {vr(P2,4)}, {vr(TAIL+4*m,4)}, {vr(C2,4)}' for m in range(8)]
    post = [f'v_cvt_pk_bf16_f32 v{AX1+1}, v{C2}, v{C2}', f'v_and_b32 v{C2+1}, 0xffff0000, v{AX1+1}',
            f'v_sub_f32 v{C2+1}, v{C2}, v{C2+1}', f'v_cvt_pk_bf16_f32 v{AX1}, v{C2}, v{C2+1}']
    ep = epi(AC0, 0)
    up(AC1, lambda m: A1 + 4*m if m < 20 else (TAIL + 4*(m-20) if m < 28 else AX1), ep[:40] + pre + ep[40:100] + post + ep[100:])
    k.stamp('u1')
    e.wait_lg0(); e.barrier()
    for t in epi(AC1, 1): I(t)
    e.wait_lg0(); e.barrier()
    k.stamp('b10')
    R, SEL, LD = 32, 48, 64
    I(f's_lshl_b32 s{t0}, s{sA}, 12'); I(f's_add_u32 s{t0}, s{t0}, {RB}'); I(f'v_add_u32 v15, s{t0}, v4')
    for t in range(4): I(f'ds_read_b128 {vr(R+4*t,4)}, v15 offset:{t*1024}')
    k.sel_mat(SEL, 16)
    I(f's_mul_i32 s{t0}, s{sA}, {TILE}'); I(f's_lshl_b32 s{t1}, s{sJ}, 11'); I(f's_add_u32 s{t0}, s{t0}, s{t1}')
    I(f's_add_u32 s{t0}, s{t0}, s{sGB}'); I(f's_add_u32 s{t0}, s{t0}, {L.P0}')
    I('v_and_b32 v5, 31, v1'); I('v_lshlrev_b32 v5, 4, v5'); I(f'v_add_u32 v5, s{t0}, v5')
    I('v_lshrrev_b32 v16, 5, v1'); I(f'v_mul_u32_u24 v17, {AS}, v16'); I('v_add_u32 v6, v5, v17')
    I(f'v_mov_b32 v17, {BIG}'); I('v_cmp_eq_u32 vcc, 0, v16'); I('v_cndmask_b32 v5, v17, v5, vcc')
    for i in range(4): I(f's_mov_b32 s{sT[4+i]}, {2*i*AS}')
    I(f's_lshl_b32 s{t0}, s{sG}, 6'); I(f's_lshl_b32 s{t1}, s{sA}, 4'); I(f's_add_u32 s{t0}, s{t0}, s{t1}')
    I(f'v_add_u32 v7, s{t0}, v2'); I('v_mul_u32_u24 v7, 896, v7')
    I('v_and_b32 v16, 1, v3'); I('v_lshrrev_b32 v17, 1, v3'); I('v_lshl_add_u32 v16, v16, 1, v17')
    I('v_lshl_add_u32 v7, v16, 4, v7')
    I(f's_lshl_b32 s{sT[8]}, s{sJ}, 7')
    I(f's_lshl_b32 s{t0}, s{sA}, 7'); I(f's_add_u32 s{t0}, s{t0}, {L.F_P}')
    I('v_min_u32 v15, 27, v1'); I('v_lshlrev_b32 v15, 2, v15'); I(f'v_add_u32 v15, s{t0}, v15')
    if k.o.get('prio', 1): I('s_setprio 0')
    def chk(): I(f'v_cmp_ne_u32 vcc, s{sTAG}, v16')
    k.poll([f'buffer_load_dword v16, v15, {WS}, s{sGB} offen sc1'], chk, 'p')
    k.stamp('pf')
    for i in range(4):
        for t in range(4):
            I(f'buffer_load_dwordx4 {vr(LD+16*i+4*t,4)}, v{6 if i < 3 else 5}, {WS}, s{sT[4+i]} offen offset:{t*512} sc1')
    for i in range(4):
        for t in range(4):
            I(f'{MF16} {vr(R+4*t,4)}, {vr(SEL,4)}, {vr(LD+16*i+4*t,4)}, {vr(R+4*t,4)}')
    pack_pairs(k, R, 52)
    of = k.o.get('outf', '')
    I(f'buffer_store_dwordx4 v[52:55], v7, {srd("out")}, s{sT[8]} offen {of}')
    I(f'buffer_store_dwordx4 v[56:59], v7, {srd("out")}, s{sT[8]} offen offset:64 {of}')
    k.stamp('end')

def j7_jobs(k):
    e, I, L = k.e, k.I, k.L
    t0, t1 = sT[0], sT[1]
    I(f's_mul_i32 s{t0}, s{sW}, 56'); I(f'v_add_u32 v15, s{t0}, v1'); I('v_lshlrev_b32 v15, 7, v15')
    I('v_cmp_gt_u32 vcc, 56, v1'); I(f'v_cndmask_b32 v15, v{vBIG}, v15, vcc')
    for ch in k.o.get('j7', '4p'):
        if ch in '34':
            I(f's_and_b32 s{t0}, s{sG}, 3'); I(f's_mul_i32 s{t0}, s{t0}, {7*57344}')
            for i in range(7):
                I(f's_add_u32 s{t1}, s{t0}, {i*57344}')
                I(f'buffer_load_dword v{32+i}, v15, {srd("w"+ch)}, s{t1} offen')
        if ch == 'p':
            for i in range(1, 7):
                I(f's_add_u32 s{t1}, s{sGB}, {L.P0 + i*AS}')
                I(f'buffer_load_dword v{40+i}, v15, {WS}, s{t1} offen sc1')
    e.wait_vm0()
```

```python
from g5 import *
import g4
from g4 import GA, GB_, f32, pack_pairs, row_stats, stat_addrs, gelu_consts

vZ, vBIG, vL0, vSIG, vTAG, vB, vST = 13, 20, 21, 26, 27, 28, 29
SB = [5, 6, 7, 8]
BF = 76
AR = 148
NSLOT = 5
HR = 60
ACC = 44
CS1 = 132
BXT = 40
XA = 244
vTP, vHP, vHS, vTF, vOP = 250, 251, 252, 253, 254
RES = 240
W3P = 228
U0, U1 = RC + 28672, RB + 28672
STEP_REG = [0, 28672, RC, 0, 28672, RB, RC, 0]

def main_pre(k):
    I = k.I
    t0, t1 = sT[0:2]
    I(f's_lshl_b32 s{t0}, s{sG}, 6'); I(f's_lshl_b32 s{t1}, s{sW}, 4'); I(f's_add_u32 s{t0}, s{t0}, s{t1}')
    I(f'v_add_u32 v15, s{t0}, v2'); I('v_mul_u32_u24 v15, 896, v15')
    I(f's_lshl_b32 s{t0}, s{sJ}, 7')
    I('v_lshl_add_u32 v15, v3, 3, v15')
    for t in range(4):
        I(f'buffer_load_dwordx2 {vr(52+2*t,2)}, v15, {srd("x")}, s{t0} offen offset:{t*32}')

def main_addr1(k):
    I, L = k.I, k.L
    t0, t1 = sT[0:2]
    I('v_bfe_u32 v15, v1, 2, 2')
    I('v_lshl_add_u32 v16, v3, 3, v15'); I('v_lshlrev_b32 v16, 7, v16')
    I('v_and_b32 v17, 3, v1'); I('v_lshl_add_u32 v16, v17, 3, v16')
    I('v_lshrrev_b32 v15, 1, v15'); I('v_and_b32 v17, 1, v3'); I('v_lshl_add_u32 v15, v17, 1, v15')
    I(f'v_lshl_add_u32 v{SB[0]}, v15, 5, v16')
    for t in range(1, 4): I(f'v_xor_b32 v{SB[t]}, {t*32}, v{SB[0]}')
    I(f's_mul_i32 s{t0}, s{sW}, {TILE}'); I(f's_add_u32 s{t0}, s{t0}, s{sGB}')
    I(f'v_add_u32 v{vB}, s{t0}, v4')
    I(f's_lshl_b32 s{t0}, s{sW}, 6'); I(f's_add_u32 s{t0}, s{t0}, s{sGB}'); I(f's_add_u32 s{t0}, s{t0}, {L.F_O}')
    I(f'v_lshlrev_b32 v{vOP}, 2, v2'); I(f'v_add_u32 v{vOP}, s{t0}, v{vOP}')

def main_addr2(k):
    I, L = k.I, k.L
    t0, t1, t2, t3 = sT[0:4]
    I(f's_mul_i32 s{t0}, s{sW}, {TILE}'); I(f's_add_u32 s{t0}, s{t0}, s{sGB}')
    I(f's_lshl_b32 s{t1}, s{sJ}, 11'); I(f's_add_u32 s{t0}, s{t0}, s{t1}')
    I(f'v_lshlrev_b32 v31, 8, v{vSIG}'); I('v_lshl_add_u32 v31, v2, 4, v31')
    I(f'v_add_u32 v{vST}, s{t0}, v31')
    I(f's_lshl_b32 s{t0}, s{sW}, 3'); I(f's_add_u32 s{t0}, s{t0}, s{sJ}'); I(f's_lshl_b32 s{t0}, s{t0}, 8')
    I(f's_add_u32 s{t0}, s{t0}, s{sGB}'); I(f's_add_u32 s{t0}, s{t0}, {L.ST}')
    I(f'v_add_u32 v9, s{t0}, v4')
    I('v_cmp_eq_u32 vcc, 0, v3'); I(f'v_cndmask_b32 v9, v{vBIG}, v9, vcc')
    stat_addrs(k, 10, 11)
    for t in range(4): I(f'v_mov_b32 v{CS1+4*t+2}, 0'); I(f'v_mov_b32 v{CS1+4*t+3}, 0')
    I(f'v_mov_b32 v{BXT+2}, 0'); I(f'v_mov_b32 v{BXT+3}, 0')
    I(f's_add_u32 s{t0}, s{sGB}, {L.GS + L.T0 - TILE}')
    I(f's_cmp_eq_u32 s{sG}, 31'); I(f's_cselect_b32 s{t0}, {BIG}, s{t0}')
    I(f's_sub_u32 s{t1}, s{sGB}, {L.GS - L.T0 - 4*TILE}')
    I(f's_cmp_eq_u32 s{sG}, 0'); I(f's_cselect_b32 s{t1}, {BIG}, s{t1}')
    I(f's_cmp_eq_u32 s{sW}, 3'); I(f's_cselect_b32 s{t0}, s{t0}, s{t1}')
    I(f's_cselect_b32 s{t2}, 0xc000c000, 0')
    I(f's_cmp_eq_u32 s{sW}, 0'); I(f's_cselect_b32 s{t2}, 0x00030003, s{t2}'); I(f's_mov_b32 s{t3}, s{t2}')
    I(f's_lshl_b32 s{t1}, s{sJ}, 11'); I(f's_add_u32 s{t0}, s{t0}, s{t1}')
    I(f'v_add_u32 v15, s{t0}, v31')
    I(f'v_cndmask_b32 v{vHS}, v{vBIG}, v15, s[{t2}:{t3}]')
    I(f's_lshl_b32 s{t0}, s{sW}, 5'); I(f's_lshl_b32 s{t1}, s{sJ}, 2'); I(f's_add_u32 s{t0}, s{t0}, s{t1}')
    I(f's_add_u32 s{t0}, s{t0}, s{sGB}'); I(f's_add_u32 s{t0}, s{t0}, {L.F_T}')
    I(f'v_add_u32 v{vTF}, s{t0}, v{vL0}')
    I(f's_lshl_b32 s{t0}, s{sW}, 4'); I(f's_add_u32 s{t0}, s{t0}, 16')
    I(f'v_add_u32 v15, s{t0}, v2')
    I(f'v_lshlrev_b32 v16, 8, v3'); I(f'v_add_u32 v16, s{sGB}, v16')
    for i, d in enumerate((-1, 1, -2, 2)):
        I(f'v_add_u32 v17, {d}, v15')
        I(f'v_lshrrev_b32 v{XA+i}, 4, v17'); I(f'v_mul_u32_u24 v{XA+i}, {TILE}, v{XA+i}')
        I('v_and_b32 v17, 15, v17'); I(f'v_lshl_add_u32 v{XA+i}, v17, 4, v{XA+i}')
        I(f'v_add_u32 v{XA+i}, v{XA+i}, v16')
    I('v_cmp_gt_u32 vcc, 2, v3')
    I(f'v_cndmask_b32 v{XA+4}, v{XA+1}, v{XA}, vcc'); I(f'v_cndmask_b32 v{XA+5}, v{XA+3}, v{XA+2}, vcc')
    I('v_lshrrev_b32 v15, 3, v1'); I(f'v_add_u32 v15, s{sW}, v15'); I('v_add_u32 v15, -1, v15')
    I(f's_add_u32 s{t0}, s{sW}, 1'); I(f's_min_u32 s{t0}, s{t0}, 3')
    I(f'v_med3_i32 v15, v15, 0, s{t0}')
    I('v_and_b32 v16, 7, v1'); I('v_min_u32 v16, 6, v16'); I('v_lshlrev_b32 v16, 2, v16')
    I('v_lshl_add_u32 v15, v15, 5, v16'); I(f'v_add_u32 v{vTP}, {L.F_T}, v15')
    I(f's_mov_b32 s{t0}, {BIG}')
    I(f's_cmp_eq_u32 s{sW}, 0'); I(f's_cselect_b32 s{t0}, {L.T0-TILE+236}, s{t0}')
    I(f's_cmp_eq_u32 s{sW}, 3'); I(f's_cselect_b32 s{t0}, {L.T0+4*TILE+12}, s{t0}')
    I('v_lshlrev_b32 v17, 8, v1'); I(f'v_add_u32 v17, s{t0}, v17')
    I('v_cmp_gt_u32 vcc, 56, v1'); I(f'v_cndmask_b32 v{vHP}, v{vBIG}, v17, vcc')


def a_read(k, m, t):
    b = AR + 16*(m % NSLOT) + 4*t
    k.I(f'ds_read_b64_tr_b16 {vr(b,2)}, v{SB[t]} offset:{m*4096}')
    k.I(f'ds_read_b64_tr_b16 {vr(b+2,2)}, v{SB[t]} offset:{m*4096+512}')
def a_preload(k):
    for m in range(NSLOT):
        for t in range(4): a_read(k, m, t)
def b_soff(k, region):
    for i in range(4): k.I(f's_mov_b32 s{sT[4+i]}, {region + i*4096}')
def b_loads(k, addr=None):
    for m in range(14):
        va = vB if addr is None else addr[m]
        k.I(f'buffer_load_dwordx4 {vr(BF+4*m,4)}, v{va}, {WS}, s{sT[4+(m>>2)]} offen offset:{(m&3)*1024} sc1')
def gemm(k, acc, vf=(), pre=0):
    I = k.I
    vf = list(vf)
    for _ in range(pre):
        if vf: I(vf.pop(0))
    per = (len(vf) + 47) // 48
    for m in range(14):
        for t in range(4):
            b = AR + 16*(m % NSLOT) + 4*t
            I(f'{MF16} {vr(acc+4*t,4)}, {vr(b,4)}, {vr(BF+4*m,4)}, {vr(acc+4*t,4)}')
            if m + NSLOT < 14: a_read(k, m + NSLOT, t)
            for _ in range(per):
                if vf: I(vf.pop(0))
def poll_stats(k, tagbits, name, D, va, vb):
    I = k.I
    I(f's_or_b32 s{sN}, s{sTAG}, {tagbits}')
    def chk():
        I(f'v_cmp_ne_u32 vcc, s{sN}, v{D+2}')
        I(f'v_cmp_ne_u32 s[{sT[2]}:{sT[3]}], s{sN}, v{D+6}')
        I(f's_or_b64 vcc, vcc, s[{sT[2]}:{sT[3]}]')
    k.poll3([f'buffer_load_dwordx3 {vr(D,3)}, v{va}, {WS}, 0 offen sc1',
             f'buffer_load_dwordx3 {vr(D+4,3)}, v{vb}, {WS}, 0 offen sc1'], chk, name)

def tr2(k, dst, vb, off, step, tag=None):
    k.I(f'ds_read_b64_tr_b16 {vr(dst,2)}, v{vb} offset:{off}', tag=tag)
    k.I(f'ds_read_b64_tr_b16 {vr(dst+2,2)}, v{vb} offset:{off+step}', tag=tag)

def w3_src(k, V):
    I = k.I
    t0, t1 = sT[0], sT[1]
    I(f's_lshl_b32 s{t0}, s{sJ}, 9'); I(f's_lshr_b32 s{t1}, s{sA}, 1'); I(f's_lshl_b32 s{t1}, s{t1}, 7'); I(f's_add_u32 s{t0}, s{t0}, s{t1}')
    I(f's_and_b32 s{t1}, s{sA}, 1'); I(f's_mul_i32 s{t1}, s{t1}, {8*3584}'); I(f's_add_u32 s{t0}, s{t0}, s{t1}')
    I(f's_cmp_eq_u32 s{sJ}, 7'); I(f's_cselect_b32 s{t0}, {BIG}, s{t0}')
    I(f'v_lshrrev_b32 v15, 3, v1'); I(f'v_mul_u32_u24 v{V}, 3584, v15')
    I('v_bfe_u32 v15, v1, 4, 1'); I('v_lshlrev_b32 v15, 2, v15'); I('v_and_b32 v16, 7, v1'); I('v_xor_b32 v15, v15, v16')
    I(f'v_lshl_add_u32 v{V}, v15, 4, v{V}'); I(f'v_add_u32 v{V}, s{t0}, v{V}')
def w3_rd_base(k, V, base):
    I = k.I
    t0, t1 = sT[0], sT[1]
    I('v_lshrrev_b32 v15, 5, v1'); I('v_lshlrev_b32 v15, 3, v15')
    I('v_bfe_u32 v17, v1, 2, 2'); I('v_add_u32 v15, v15, v17')
    I('v_and_b32 v16, 3, v1')
    I(f'v_and_b32 v{V}, 1, v3'); I(f'v_lshlrev_b32 v{V}, 5, v{V}'); I(f'v_lshl_add_u32 v{V}, v16, 3, v{V}')
    I(f'v_lshl_add_u32 v{V}, v15, 7, v{V}')
    I('v_lshrrev_b32 v17, 1, v17'); I(f'v_lshl_add_u32 v{V}, v17, 6, v{V}')
    I(f's_and_b32 s{t0}, s{sA}, 1'); I(f's_lshl_b32 s{t0}, s{t0}, 6'); I(f'v_xor_b32 v{V}, s{t0}, v{V}')
    I(f's_lshr_b32 s{t0}, s{sA}, 1'); I(f's_lshl_b32 s{t0}, s{t0}, 11'); I(f's_add_u32 s{t0}, s{t0}, {base}')
    I(f'v_add_u32 v{V}, s{t0}, v{V}')
def w3_dma(k, V, sM, m, half, dest, tag):
    I = k.I
    t1 = sT[1]
    I(f's_add_u32 m0, s{sM}, {dest}')
    I(f's_mov_b32 s{t1}, {m*16*3584 + half*256}')
    I(f'buffer_load_dwordx4 v{V}, {srd("w3")}, s{t1} offen lds', tag=tag)
def w4_src(k, V):
    I = k.I
    t0, t1 = sT[0], sT[1]
    I(f's_lshl_b32 s{t0}, s{sJ}, 8'); I(f's_lshl_b32 s{t1}, s{sA}, 3'); I(f's_add_u32 s{t0}, s{t0}, s{t1}')
    I(f'v_lshrrev_b32 v15, 3, v1'); I(f'v_add_u32 v15, s{t0}, v15'); I(f'v_mul_u32_u24 v{V}, 896, v15')
    I('v_lshlrev_b32 v15, 1, v3'); I('v_and_b32 v16, 7, v1'); I('v_xor_b32 v15, v15, v16')
    I(f'v_lshl_add_u32 v{V}, v15, 4, v{V}')
def w4_dma_list(k, V, sM, sS, b):
    I = k.I
    out = []
    for lc in range(7):
        def f(lc=lc):
            if lc == 0: I(f's_mov_b32 s{sS}, {b*32*896}')
            I(f's_add_u32 m0, s{sM}, {STEP_REG[b] + lc*4096 - lc*128}')
            I(f'buffer_load_dwordx4 v{V}, {srd("w4")}, s{sS} offen offset:{lc*128} lds', tag=f'w4_{b}')
        out.append(f)
    return out
def pat(k, P):
    I = k.I
    I('v_lshrrev_b32 v15, 2, v2'); I('v_and_b32 v16, 1, v3'); I('v_cmp_eq_u32 vcc, v15, v16')
    I(f'v_mov_b32 v15, 0x3f803f80')
    for i in range(4): I(f'v_cndmask_b32 v{P+i}, 0, v15, vcc')
def up_addrs(k, vX, vS, vU, ubase):
    I = k.I
    t0 = sT[0]
    I('v_bfe_u32 v15, v1, 4, 1'); I(f'v_mul_u32_u24 v{vX}, {TILE}, v15')
    I(f'v_lshl_add_u32 v{vX}, v2, 4, v{vX}')
    I('v_lshrrev_b32 v16, 5, v1'); I(f'v_lshl_add_u32 v{vX}, v16, 8, v{vX}'); I(f'v_add_u32 v{vX}, {RB}, v{vX}')
    I(f'v_and_b32 v{vS}, 31, v1'); I(f'v_lshlrev_b32 v{vS}, 5, v{vS}'); I(f'v_add_u32 v{vS}, {L_STAT}, v{vS}')
    I(f'v_lshlrev_b32 v{vU}, 10, v15'); I(f'v_lshl_add_u32 v{vU}, v2, 4, v{vU}'); I(f'v_lshl_add_u32 v{vU}, v16, 8, v{vU}')
    I(f's_lshl_b32 s{t0}, s{sA}, 12'); I(f's_add_u32 s{t0}, s{t0}, {ubase}')
    I(f'v_add_u32 v{vU}, s{t0}, v{vU}')
def up(k, acc, afn, BB, vX, vS, hooks, pre=True):
    I = k.I
    def b_rd(m, b):
        d = vr(BB + 8*(m&1) + 4*b, 4)
        if m < 28: I(f'ds_read_b128 {d}, v{vX} offset:{b*2*TILE + m*512}')
        else: I(f'ds_read_b128 {d}, v{vS} offset:{b*1024}')
    if pre: b_rd(0, 0); b_rd(0, 1)
    for m in range(29):
        for b in range(2):
            if m + 1 < 29: b_rd(m + 1, b)
            I(f'{MF32} {vr(acc+16*b,16)}, {vr(afn(m),4)}, {vr(BB+8*(m&1)+4*b,4)}, ' + ('0' if m == 0 else vr(acc+16*b, 16)))
        if m in hooks: hooks[m]()
def gelu_groups(acc, GT, GC, PK, npk):
    out = []
    for b in range(2):
        G = GC + 4*b
        for gp in range(2):
            Lq = []
            x = acc + 16*b + 8*gp; tt = GT + 8*gp
            for i in range(8): Lq.append(f'v_mul_f32 v{tt+i}, v{x+i}, v{x+i}')
            for i in range(8): Lq.append(f'v_fma_f32 v{tt+i}, v{tt+i}, v{G+1}, v{G}')
            for i in range(8): Lq.append(f'v_mul_f32 v{tt+i}, v{tt+i}, v{x+i}')
            for i in range(8): Lq.append(f'v_exp_f32 v{tt+i}, v{tt+i}')
            for i in range(8): Lq.append(f'v_fma_f32 v{tt+i}, v{tt+i}, v{G+2}, v{G+2}')
            for i in range(8): Lq.append(f'v_rcp_f32 v{tt+i}, v{tt+i}')
            for i in range(8): Lq.append(f'v_mul_f32 v{x+i}, v{x+i}, v{tt+i}')
            P = PK + 4*((2*b + gp) % npk)
            for i in range(4): Lq.append(f'v_cvt_pk_bf16_f32 v{P+i}, v{x+2*i}, v{x+2*i+1}')
            out.append((Lq, P, b*2048 + gp*512))
    return out

def publish_stats(k, src, sreg, tagbits, T, mid=None):
    e, I = k.e, k.I
    P = T
    pack_pairs(k, src, P)
    k.stores([f'buffer_store_dwordx4 {vr(P,4)}, v{vST}, {WS}, s{sreg} offen',
              f'buffer_store_dwordx4 {vr(P+4,4)}, v{vST}, {WS}, s{sreg} offen offset:1024'])
    S = T + 8
    I(f'v_pk_add_f32 {vr(S,2)}, {vr(src,2)}, {vr(src+2,2)}')
    I(f'v_pk_mul_f32 {vr(S+2,2)}, {vr(src,2)}, {vr(src,2)}')
    I(f'v_pk_fma_f32 {vr(S+2,2)}, {vr(src+2,2)}, {vr(src+2,2)}, {vr(S+2,2)}')
    for i in range(4, 16, 2):
        I(f'v_pk_add_f32 {vr(S,2)}, {vr(S,2)}, {vr(src+i,2)}')
        I(f'v_pk_fma_f32 {vr(S+2,2)}, {vr(src+i,2)}, {vr(src+i,2)}, {vr(S+2,2)}')
    I(f'v_add_f32 v{S+4}, v{S}, v{S+1}')
    I(f'v_add_f32 v{S+5}, v{S+2}, v{S+3}')
    k.allred2(S+4, S+5, S, 'v_add_f32')
    I(f'v_or_b32 v{S+6}, {tagbits}, v{vTAG}')
    e.wait_vm0()
    k.stores([f'buffer_store_dwordx3 {vr(S+4,3)}, v9, {WS}, 0 offen'])
    if mid: mid()

def x1_dma(k, m0_, vaddr):
    I = k.I
    t0, t1 = sT[0], sT[1]
    I(f's_mul_i32 s{t0}, s{sA}, {TILE}')
    for i in range(7):
        m = m0_ + i
        if i % 4 == 0:
            I(f's_mov_b32 s{t1}, {k.L.X1 + m*1024}')
            I(f's_add_u32 m0, s{t0}, {RB + m*1024}')
        I(f'buffer_load_dwordx4 v{vaddr}, {WS}, s{t1} offen offset:{(i&3)*1024} sc1 lds', tag='x1')

def main_rest(k):
    e, I, L, o = k.e, k.I, k.L, k.o
    t0, t1, t2, t3 = sT[0:4]
    sR = sT[8]
    main_addr1(k)
    for t in range(4):
        for d in range(2):
            I(f'v_lshlrev_b32 v{HR+4*t+2*d}, 16, v{52+2*t+d}')
            I(f'v_and_b32 v{HR+4*t+2*d+1}, 0xffff0000, v{52+2*t+d}')
    b_soff(k, L.O)
    I(f's_mov_b32 s{sR}, {L.H}')
    k.o_flag()
    k.bar()
    a_preload(k)
    def chk(): I(f'v_cmp_ne_u32 vcc, s{sTAG}, v16')
    k.poll3([f'buffer_load_dword v16, v{vOP}, {WS}, 0 offen sc1'], chk, 'o')
    k.stamp('po')
    b_loads(k)
    k.bar()
    gemm(k, HR, k.capture(lambda: main_addr2(k)), 30)
    k.stamp('hg')
    def mid():
        for t in range(4): I(f'v_add_u32 v{SB[t]}, {RB}, v{SB[t]}')
        I('v_lshlrev_b32 v15, 3, v2'); I(f'v_add_u32 v15, {L_CS1}, v15')
        b_soff(k, L.H)
        a_preload(k)
    publish_stats(k, HR, sR, 1, BF, mid)
    k.stamp('hp')
    k.bar()
    if k.stop == 'h': return
    for t in range(4): I(f'ds_read_b64 {vr(CS1+4*t,2)}, v15 offset:{t*128}')
    I(f's_mov_b32 s{sR}, {L.T0}')
    D = 32
    poll_stats(k, 1, 'h', D, 10, 11)
    k.stamp('ph')
    b_loads(k)
    k.bar()
    row_stats(k, D)
    I('v_cmp_eq_u32 vcc, 0, v3')
    I(f'v_cndmask_b32_e64 v{D+3}, 0, -v{D}, vcc')
    k.split_b(D+3, BXT, D+2)
    for t in range(4):
        I(f'{MF16} {vr(ACC+4*t,4)}, {vr(CS1+4*t,4)}, {vr(BXT,4)}, 0')
    I(f'v_add_f32 v{D+2}, 0x3727c5ac, v{D+1}'); I(f'v_rsq_f32 v{D+4}, v{D+2}')
    I(f'v_mul_f32 v{D+2}, v{D+4}, v{D+4}'); I(f'v_mul_f32 v{D+2}, v{D+2}, v{D+1}')
    I(f'v_add_f32 v{D+2}, 0x3727c5ac, v{D+2}'); I(f'v_rsq_f32 v{D+2}, v{D+2}')
    I(f'v_mul_f32_e64 v{D+5}, -v{D}, v{D+4}')
    I(f'v_mul_f32 v{D+6}, v{D+4}, v{D+2}')
    G = D
    gelu_consts(k, D+6, G)
    gemm(k, ACC)
    k.stamp('tg')
    T = BF
    P = T + 16
    for h in range(2):
        x = ACC + 8*h; tt = T + 8*h
        for i in range(0, 8, 2): I(f'v_pk_mul_f32 {vr(tt+i,2)}, {vr(x+i,2)}, {vr(x+i,2)}')
        for i in range(0, 8, 2): I(f'v_pk_fma_f32 {vr(tt+i,2)}, {vr(tt+i,2)}, {vr(G,2)}, {vr(G,2)} op_sel:[0,1,0] op_sel_hi:[1,1,0]')
        for i in range(0, 8, 2): I(f'v_pk_mul_f32 {vr(tt+i,2)}, {vr(tt+i,2)}, {vr(x+i,2)}')
        for i in range(8): I(f'v_exp_f32 v{tt+i}, v{tt+i}')
        for i in range(0, 8, 2): I(f'v_pk_fma_f32 {vr(tt+i,2)}, {vr(tt+i,2)}, {vr(G+2,2)}, {vr(G+2,2)} op_sel_hi:[1,0,0]')
        for i in range(8): I(f'v_rcp_f32 v{tt+i}, v{tt+i}')
        for i in range(0, 8, 2): I(f'v_pk_mul_f32 {vr(x+i,2)}, {vr(x+i,2)}, {vr(tt+i,2)}')
        k.cvt(P+4*h, x, 8)
        I(f'v_permlane16_swap_b32 v{P+4*h}, v{P+4*h+2}')
        I(f'v_permlane16_swap_b32 v{P+4*h+1}, v{P+4*h+3}')
        k.stores([f'buffer_store_dwordx4 {vr(P+4*h,4)}, v{vST}, {WS}, s{sR} offen offset:{h*1024}'], tag='tl')
    I(f'buffer_store_dwordx4 {vr(P,4)}, v{vHS}, {WS}, 0 offen sc1')
    I(f'buffer_store_dwordx4 {vr(P+4,4)}, v{vHS}, {WS}, 0 offen offset:1024 sc1')
    for i in range(0, 16, 2):
        I(f'v_pk_fma_f32 {vr(ACC+i,2)}, {vr(HR+i,2)}, {vr(D+4,2)}, {vr(D+4,2)} op_sel:[0,0,1] op_sel_hi:[1,0,1]')
    for t in range(4): I(f'v_subrev_u32 v{SB[t]}, {RB}, v{SB[t]}')
    b_soff(k, L.T0 - TILE)
    I(f's_mov_b32 s{sR}, {L.X1}')
    w3_rd_base(k, 14, RC)
    e.wait_tag('tl')
    k.stores([f'buffer_store_dword v{vTAG}, v{vTF}, {WS}, 0 offen'])
    k.stamp('tp')
    k.bar()
    if k.stop == 't': return
    a_preload(k)
    for i in range(3): tr2(k, W3P + 4*i, 14, i*4096, 512)
    addr = [XA]*3 + [XA+4] + [XA+1]*3 + [XA+2]*3 + [XA+5] + [XA+3]*3
    def chk():
        I('v_max_u32 v18, v18, v19')
        I(f'v_cmp_ne_u32 vcc, s{sTAG}, v16')
        I(f'v_cmp_eq_u32 s[{t2}:{t3}], -1, v18')
        I(f's_or_b64 vcc, vcc, s[{t2}:{t3}]')
    pl = [f'buffer_load_dword v16, v{vTP}, {WS}, s{sGB} offen sc1',
          f'buffer_load_dwordx2 v[18:19], v{vHP}, {WS}, s{sGB} offen sc1']
    k.poll3(pl, chk, 't')
    k.stamp('pt')
    b_loads(k, addr)
    e.wait_lg0(); k.bar()
    sM, sS = sT[9], sT[10]
    I(f's_lshl_b32 s{sM}, s{sA}, 10')
    gemm(k, ACC, k.capture(lambda: (w3_src(k, 12), w4_src(k, 0))), 30)
    k.stamp('xg')
    def mid():
        for i in range(0, 16, 2):
            I(f'v_pk_add_f32 {vr(RES+i,2)}, {vr(HR+i,2)}, {vr(ACC+i,2)}')
    publish_stats(k, ACC, sR, 2, BF, mid)
    k.stamp('xp')
    k.bar()
    if k.stop == 'x1': return
    def F(m): return W3P + 4*m if m < 3 else 128 + 4*(m - 3)
    AC, BB, GT, GC, PK, PAT, C, AXT = 44, 76, 92, 108, 116, 124, 32, 36
    vX, vS, vU = 5, 6, 7
    ne = o.get('early', 0)
    for m in range(3, 3 + ne): w3_dma(k, 12, sM, m, 1, RA + (m-3)*4096, 'L0')
    pat(k, PAT)
    up_addrs(k, vX, vS, vU, U1)
    I(f'v_subrev_u32 v8, {RC}, v14')
    poll_stats(k, 2, 'x', D, 10, 11)
    k.stamp('px')
    x1_dma(k, 0, vB)
    for m in range(3 + ne, 17): w3_dma(k, 12, sM, m, 1, RA + (m-3)*4096, 'L0')
    row_stats(k, D)
    SR = 40
    I(f'v_mul_f32 v{D+3}, -1.0, v{D}')
    k.split_b(D+3, SR, D+2)
    I(f'v_add_f32 v{D+2}, 0x3727c5ac, v{D+1}'); I(f'v_rsq_f32 v{D+4}, v{D+2}')
    gelu_consts(k, D+4, SR+4)
    I(f's_lshl_b32 s{t0}, s{sW}, 9'); I(f's_add_u32 s{t0}, s{t0}, {L_STAT}')
    I('v_lshlrev_b32 v15, 5, v2'); I(f'v_add_u32 v15, s{t0}, v15')
    I(f'ds_write_b128 v15, {vr(SR,4)}'); I(f'ds_write_b128 v15, {vr(SR+4,4)} offset:16')
    def cs(m): I(f'{MF16} {vr(C,4)}, {vr(PAT,4)}, {vr(F(m),4)}, ' + ('0' if m == 0 else vr(C, 4)))
    for m in range(3): cs(m)
    e.wait_tag('x1'); e.wait_lg0(); k.bar('b8')
    for m in range(17, 28): w3_dma(k, 12, sM, m, 1, RC + (m-17)*4096, 'L1')
    I(f'v_mov_b32 v{AXT+2}, 0'); I(f'v_mov_b32 v{AXT+3}, 0')
    I(f'ds_read_b128 {vr(GC,4)}, v{vS} offset:16'); I(f'ds_read_b128 {vr(GC+4,4)}, v{vS} offset:1040')
    e.wait_tag('L0'); k.bar('m1')
    for m in range(3, 17): tr2(k, F(m), 8, (m-3)*4096, 512)
    e.wait_lg0(); k.bar('m2a')
    for b in range(2):
        for f in w4_dma_list(k, 0, sM, sS, b): f()
    for m in range(3, 17): cs(m)
    I(f'ds_read_b128 {vr(BB,4)}, v{vX}'); I(f'ds_read_b128 {vr(BB+4,4)}, v{vX} offset:{2*TILE}')
    I('s_setprio 1')
    e.wait_tag('L1'); k.bar('m2b')
    hooks = {}
    def rd(ms):
        def f():
            for m in ms: tr2(k, F(m), 14, (m-17)*4096, 512, 'r1')
        return f
    for i in range(4): hooks[i] = rd(range(17 + 3*i, min(28, 20 + 3*i)))
    m3 = o.get('m3', 7); m5 = o.get('m5', 21)
    def h3(): e.wait_tag('r1'); k.bar('m3')
    hooks[m3] = h3
    for i in range(11): hooks[m3 + 1 + i] = (lambda m=17+i: cs(m))
    assert m5 > m3 + 11
    def h5(): e.wait_tag('w4_1'); k.bar('m5')
    hooks[m5] = h5
    hooks[m5 + 2] = lambda: k.split_a(C, AXT, C+1)
    up(k, AC, lambda m: F(m) if m < 28 else AXT, BB, vX, vS, hooks, pre=False)
    I('s_setprio 0')
    k.bar('m6')
    dm = []
    for b in (3, 4, 5, 6): dm += w4_dma_list(k, 0, sM, sS, b)
    for _ in range(4): dm.pop(0)()
    cnt = 0
    m7 = o.get('m7', 3)
    for gi, (Lq, Pk, off) in enumerate(gelu_groups(AC, GT, GC, PK, 2)):
        if gi == m7:
            while len(dm) > 14: dm.pop(0)()
            e.wait_tag('w4_4'); k.bar('m7')
        for t in Lq:
            I(t); cnt += 1
            if cnt % o.get('dper', 7) == 0 and dm: dm.pop(0)()
        I(f'ds_write_b128 v{vU}, {vr(Pk,4)} offset:{off}')
    while dm: dm.pop(0)()
    e.wait_tag('w4_5'); e.wait_lg0(); k.bar('m9')
    for f in w4_dma_list(k, 0, sM, sS, 7): f()
    SEL, LD = 32, 76
    k.sel_mat(SEL, 16)
    I(f's_mul_i32 s{t0}, s{sA}, {TILE}'); I(f's_lshl_b32 s{t1}, s{sJ}, 11'); I(f's_add_u32 s{t0}, s{t0}, s{t1}')
    I(f's_add_u32 s{t0}, s{t0}, s{sGB}'); I(f's_add_u32 s{t0}, s{t0}, {L.P0}')
    I('v_and_b32 v5, 31, v1'); I('v_lshlrev_b32 v5, 4, v5'); I(f'v_add_u32 v5, s{t0}, v5')
    I('v_lshrrev_b32 v16, 5, v1'); I(f'v_mul_u32_u24 v17, {AS}, v16'); I('v_add_u32 v6, v5, v17')
    I('v_cmp_eq_u32 vcc, 0, v16'); I(f'v_cndmask_b32 v5, v{vBIG}, v5, vcc')
    for i in range(4): I(f's_mov_b32 s{sT[4+i]}, {2*i*AS}')
    I(f's_lshl_b32 s{t0}, s{sG}, 6'); I(f's_lshl_b32 s{t1}, s{sA}, 4'); I(f's_add_u32 s{t0}, s{t0}, s{t1}')
    I(f'v_add_u32 v7, s{t0}, v2'); I('v_mul_u32_u24 v7, 896, v7')
    I(f'v_lshl_add_u32 v7, v{vSIG}, 4, v7')
    I(f's_lshl_b32 s{sT[8]}, s{sJ}, 7')
    I(f's_lshl_b32 s{t0}, s{sA}, 7'); I(f's_add_u32 s{t0}, s{t0}, {L.F_P}')
    I('v_min_u32 v15, 27, v1'); I('v_lshlrev_b32 v15, 2, v15'); I(f'v_add_u32 v15, s{t0}, v15')
    e.wait_vm0(); k.bar('m10')
    if o.get('m11', 1): k.bar()
    def chk(): I(f'v_cmp_ne_u32 vcc, s{sTAG}, v16')
    k.poll3([f'buffer_load_dword v16, v15, {WS}, s{sGB} offen sc1'], chk, 'p')
    k.stamp('pf')
    for i in range(4):
        for t in range(4):
            I(f'buffer_load_dwordx4 {vr(LD+16*i+4*t,4)}, v{6 if i < 3 else 5}, {WS}, s{sT[4+i]} offen offset:{t*512} sc1')
    for i in range(4):
        for t in range(4):
            I(f'{MF16} {vr(RES+4*t,4)}, {vr(SEL,4)}, {vr(LD+16*i+4*t,4)}, {vr(RES+4*t,4)}')
    pack_pairs(k, RES, 52)
    of = o.get('outf', '')
    I(f'buffer_store_dwordx4 v[52:55], v7, {srd("out")}, s{sT[8]} offen {of}')
    I(f'buffer_store_dwordx4 v[56:59], v7, {srd("out")}, s{sT[8]} offen offset:64 {of}')
    k.stamp('end')

def aux_burst2(k):
    I, o = k.I, k.o
    for m in range(o['n1'], 14): k.sq_dma('w1', RB, m, 'w1')
    w3_src(k, 12)
    for m in range(o['w2a']): w3_dma(k, 12, k.sMW, m, 0, RC + m*4096, 'w3')

def aux_pre(k): pass

def aux_rest(k):
    e, I, L, o = k.e, k.I, k.L, k.o
    t0, t1, t2, t3 = sT[0:4]
    sM = k.sMW; sS = sT[5]
    A0, AC, BB, GT, GC, PK, PAT, C, AXT, ONE = 32, 144, 176, 192, 208, 216, 232, 236, 240, 244
    n0 = o['w2a']; nH = o.get('nH', 11); nX = 28 - n0 - nH
    assert nX <= 11
    def rd(m0, n):
        for i in range(n): tr2(k, A0 + 4*(m0+i), 8, i*4096, 512)
    def cs(m0, n):
        for m in range(m0, m0 + n):
            I(f'{MF16} {vr(C,4)}, {vr(PAT,4)}, {vr(A0+4*m,4)}, ' + ('0' if m == 0 else vr(C, 4)))
    def dma(m0, n):
        for i in range(n): w3_dma(k, 12, sM, m0 + i, 0, RC + i*4096, 'w3')
    w3_rd_base(k, 8, RC)
    k.o_flag()
    k.bar()
    rd(0, n0)
    I('v_bfe_u32 v15, v1, 2, 2')
    I('v_lshl_add_u32 v16, v3, 3, v15'); I('v_lshlrev_b32 v16, 7, v16')
    I('v_and_b32 v17, 3, v1'); I('v_lshl_add_u32 v16, v17, 3, v16')
    I('v_lshrrev_b32 v15, 1, v15'); I('v_and_b32 v17, 1, v3'); I('v_lshl_add_u32 v15, v17, 1, v15')
    I(f'v_xor_b32 v15, s{sA}, v15')
    I('v_lshl_add_u32 v6, v15, 5, v16'); I(f'v_add_u32 v6, {RB}, v6')
    CB = 144
    for m in range(14): tr2(k, CB + 4*m, 6, m*4096, 512)
    for i in range(4): I(f'v_mov_b32 v{ONE+i}, 0x3f803f80')
    pat(k, PAT)
    for m in range(14):
        I(f'{MF16} v[248:251], {vr(ONE,4)}, {vr(CB+4*m,4)}, ' + ('0' if m == 0 else 'v[248:251]'))
    cs(0, n0)
    k.split_a(248, 252, 254)
    I(f's_lshl_b32 s{t0}, s{sA}, 7'); I(f's_add_u32 s{t0}, s{t0}, {L_CS1}')
    I('v_lshlrev_b32 v15, 3, v2'); I(f'v_add_u32 v15, s{t0}, v15')
    I('ds_write_b64 v15, v[252:253]')
    e.wait_lg0(); k.bar()
    dma(n0, nH)
    e.wait_vm0(); k.stamp('a6'); k.bar()
    if k.stop == 'h': return
    rd(n0, nH); cs(n0, nH)
    e.wait_lg0(); k.bar()
    for m in range(14): k.sq_dma('w2', RA, m, 'w2')
    for m in range(3): w3_dma(k, 12, sM, m, 1, RC + m*4096, 'w3')
    stat_addrs(k, 0, 5)
    I(f's_mul_i32 s{t0}, s{sA}, {TILE}'); I(f's_add_u32 s{t0}, s{t0}, s{sGB}')
    I(f'v_add_u32 v9, s{t0}, v4')
    e.wait_vm0(); k.stamp('a7'); k.bar()
    if k.stop == 't': return
    k.bar()
    dma(n0 + nH, nX)
    vX, vS, vU = 10, 11, 14
    up_addrs(k, vX, vS, vU, U0)
    I(f'v_mov_b32 v{AXT+2}, 0'); I(f'v_mov_b32 v{AXT+3}, 0')
    e.wait_vm0(); k.stamp('a8'); k.bar()
    if k.stop == 'x1': return
    rd(n0 + nH, nX); cs(n0 + nH, nX)
    w4_src(k, 12)
    poll_stats(k, 2, 'xa', BB, 0, 5)
    x1_dma(k, 7, 9)
    k.split_a(C, AXT, C+1)
    I('s_setprio 1')
    e.wait_tag('x1'); e.wait_lg0(); k.bar('b8')
    hooks = {o.get('m1', 15): lambda: k.bar('m1'), o.get('m2a', 21): lambda: k.bar('m2a'),
             26: lambda: (I(f'ds_read_b128 {vr(GC,4)}, v{vS} offset:16'), I(f'ds_read_b128 {vr(GC+4,4)}, v{vS} offset:1040'))}
    m2b = o.get('m2b', 27)
    hooks[m2b] = lambda: k.bar('m2b')
    up(k, AC, lambda m: A0 + 4*m if m < 28 else AXT, BB, vX, vS, hooks)
    I('s_setprio 0')
    k.stamp('u0')
    VB, VB2 = 5, 28
    I('v_bfe_u32 v15, v1, 2, 2'); I('v_and_b32 v16, 1, v3')
    I('v_lshl_add_u32 v17, v16, 2, v15'); I('v_lshlrev_b32 v18, 7, v17')
    I('v_lshrrev_b32 v17, 1, v17'); I('v_lshl_add_u32 v18, v17, 5, v18')
    I('v_and_b32 v17, 3, v1'); I('v_lshl_add_u32 v18, v17, 3, v18')
    I('v_lshrrev_b32 v17, 1, v3'); I('v_lshl_add_u32 v18, v17, 11, v18')
    I(f's_mul_i32 s{t0}, s{sA}, 7')
    for i in range(4):
        I(f's_add_u32 s{t1}, s{t0}, {i}'); I(f's_and_b32 s{t2}, s{t1}, 3'); I(f's_lshl_b32 s{t2}, s{t2}, 5')
        I(f's_lshr_b32 s{t1}, s{t1}, 2'); I(f's_lshl_b32 s{t1}, s{t1}, 12')
        I(f'v_xor_b32 v{VB+i}, s{t2}, v18'); I(f'v_add_u32 v{VB+i}, s{t1}, v{VB+i}')
        I(f'v_add_u32 v{VB2+i}, {RC}, v{VB+i}')
    def A4(b): return 32 + 28*(b & 3)
    def take_list(b):
        out = []
        for lam in range(7):
            reg = STEP_REG[b]
            vb = (VB2 if reg == RC else VB) + (lam & 3)
            off = (0 if reg == RC else reg) + (lam >> 2)*4096
            out.append(lambda lam=lam, vb=vb, off=off: tr2(k, A4(b) + 4*lam, vb, off, 1024, f'r4_{b}'))
        return out
    gg = gelu_groups(AC, GT, GC, PK, 4)
    pend = []
    a3 = o.get('a3', 1)
    for gi, (Lq, Pk, off) in enumerate(gg):
        dm = []
        if gi == a3:
            k.bar('m3')
            dm = w4_dma_list(k, 12, sM, sS, 2)
        for n, t in enumerate(Lq):
            I(t)
            if n % 4 == 3 and dm: dm.pop(0)()
        pend.append(f'ds_write_b128 v{vU}, {vr(Pk,4)} offset:{off}')
        if gi >= a3:
            for t in pend: I(t)
            pend = []
    I(f's_mul_i32 s{t0}, s{sJ}, {AS}'); I(f's_add_u32 s{t0}, s{t0}, s{sGB}'); I(f's_add_u32 s{t0}, s{t0}, {L.P0}')
    I(f's_mul_i32 s{t2}, s{sA}, {14*256}'); I(f's_add_u32 s{t0}, s{t0}, s{t2}')
    e.wait_tag('w4_2'); k.bar('m5')
    for b in range(3):
        for f in take_list(b): f()
    I(f'v_lshlrev_b32 v9, 8, v{vSIG}'); I('v_lshl_add_u32 v9, v2, 4, v9'); I(f'v_add_u32 v9, s{t0}, v9')
    I(f's_add_u32 s{t0}, s{t0}, {12*256}')
    I('v_lshrrev_b32 v15, 1, v3'); I('v_lshlrev_b32 v15, 8, v15'); I('v_lshl_add_u32 v15, v2, 4, v15')
    I('v_and_b32 v16, 1, v3'); I('v_lshl_add_u32 v15, v16, 3, v15')
    I(f'v_add_u32 v10, s{t0}, v15')
    I(f's_lshl_b32 s{t0}, s{sJ}, 4'); I(f's_lshl_b32 s{t1}, s{sA}, 2'); I(f's_add_u32 s{t0}, s{t0}, s{t1}')
    I(f's_add_u32 s{t0}, s{t0}, s{sGB}'); I(f's_add_u32 s{t0}, s{t0}, {L.F_P}')
    I(f'v_add_u32 v11, s{t0}, v{vL0}')
    I(f'v_mov_b32 v13, s{sTAG}')
    I(f'v_add_u32 v14, {U0}, v4'); I(f'v_add_u32 v0, {U1}, v4')
    for n in range(4): I(f's_mov_b32 s{sT[8+n]}, {n*TILE}')
    I('s_setprio 1')
    e.wait_lg0(); k.bar('m6')
    DA = 144
    UBR = [16, 20, 24]
    nk = o.get('nk', 6)
    seq = [(b, n) for b in range(nk) for n in range(4)] + [(b, n) for n in range(4) for b in range(nk, 8)]
    def u_rd(i):
        b, n = seq[i]
        I(f'ds_read_b128 {vr(UBR[i%3],4)}, v{14 if b < 4 else 0} offset:{(b&3)*4096 + n*1024}')
    def pack_list(n):
        Lq = []
        for pp in range(3):
            a = DA + 28*n + 8*pp
            for i in range(4): Lq.append(f'v_cvt_pk_bf16_f32 v{a+i}, v{a+2*i}, v{a+2*i+1}')
            Lq.append(f'v_permlane16_swap_b32 v{a}, v{a+2}'); Lq.append(f'v_permlane16_swap_b32 v{a+1}, v{a+3}')
            Lq.append(('st', f'buffer_store_dwordx4 {vr(a,4)}, v9, {WS}, s{sT[8+n]} offen offset:{pp*1024}', n))
        a = DA + 28*n + 24
        for i in range(2): Lq.append(f'v_cvt_pk_bf16_f32 v{a+i}, v{a+2*i}, v{a+2*i+1}')
        Lq.append(('st', f'buffer_store_dwordx2 {vr(a,2)}, v10, {WS}, s{sT[8+n]} offen', n))
        return Lq
    def run_fill(x):
        if callable(x): x()
        elif isinstance(x, tuple):
            if x[0] == 'st': k.stores([x[1]], tag=f'p{x[2]}')
            else:
                e.wait_tag(f'p{x[1]}')
                k.stores([f'buffer_store_dword v13, v11, {WS}, 0 offen offset:{x[1]*128}'])
        else: I(x)
    fill = []
    d7 = o.get('d7', 9); d10 = o.get('d10', 21)
    per = (24 + 7*(8-nk) - 3) // (7*(8-nk) - 2)
    for i, (b, n) in enumerate(seq):
        if i == d7:
            k.bar('m7'); fill = take_list(3) + take_list(4)
        if i == 16:
            assert not fill
            e.wait_lg0(); k.bar('m9')
            fill = take_list(5)
        if i == d10:
            assert not fill
            k.bar('m10'); fill = take_list(6) + take_list(7)
        if i in (0, 16): u_rd(i); u_rd(i + 1)
        if i + 2 < 32 and i + 2 not in (16, 17): u_rd(i + 2)
        for lam in range(7):
            acc = DA + 28*n + 4*lam
            I(f'{MF16} {vr(acc,4)}, {vr(A4(b)+4*lam,4)}, {vr(UBR[i%3],4)}, ' + ('0' if b == 0 else vr(acc, 4)))
            if i >= 4*nk:
                if not (b == nk and lam < 2):
                    for _ in range(per):
                        if fill: run_fill(fill.pop(0))
            elif fill: run_fill(fill.pop(0))
        if b == 7:
            assert not fill, len(fill)
            if n == 1 and o.get('m11', 1): k.bar()
            if n > 1: run_fill(('fl', n - 2))
            fill = pack_list(n)
    k.stamp('dg')
    for x in fill: run_fill(x)
    run_fill(('fl', 2))
    run_fill(('fl', 3))
    k.stamp('pp')

def j7_jobs(k):
    e, I, L = k.e, k.I, k.L
    t0, t1 = sT[0], sT[1]
    I(f's_and_b32 s{t0}, s{sG}, 3'); I(f's_lshl_b32 s{t0}, s{t0}, 3'); I(f's_add_u32 s{t0}, s{t0}, s{sW}')
    I(f's_mul_i32 s{t0}, s{t0}, 49'); I(f'v_add_u32 v15, s{t0}, v1')
    I('v_lshrrev_b32 v16, 1, v15'); I('v_lshlrev_b32 v16, 9, v16'); I('v_and_b32 v17, 1, v15'); I('v_lshl_add_u32 v16, v17, 7, v16')
    I('v_lshrrev_b32 v17, 5, v15'); I('v_mul_u32_u24 v17, 9363, v17'); I('v_lshrrev_b32 v17, 16, v17')
    I(f'v_mul_u32_u24 v17, {229376 - 224*128}, v17'); I('v_lshl_add_u32 v17, v15, 7, v17')
    I('v_cmp_gt_u32 vcc, 49, v1'); I(f'v_cndmask_b32 v16, v{vBIG}, v16, vcc'); I(f'v_cndmask_b32 v17, v{vBIG}, v17, vcc')
    I(f's_mul_i32 s{t0}, s{sW}, 56'); I(f'v_add_u32 v15, s{t0}, v1'); I('v_lshlrev_b32 v15, 7, v15')
    I('v_cmp_gt_u32 vcc, 56, v1'); I(f'v_cndmask_b32 v15, v{vBIG}, v15, vcc')
    for ch in k.o.get('j7', 'b4p'):
        if ch in 'ab':
            for i in range(4):
                I(f's_mov_b32 s{t1}, {i*784*512 + (256 if ch == "b" else 0)}')
                I(f'buffer_load_dword v{32+i}, v16, {srd("w3")}, s{t1} offen')
        if ch == '4':
            for b in range(8):
                I(f's_mov_b32 s{t1}, {b*28672}')
                I(f'buffer_load_dword v{36+b}, v17, {srd("w4")}, s{t1} offen')
        if ch == 'p':
            for i in range(1, 7):
                I(f's_add_u32 s{t1}, s{sGB}, {L.P0 + i*AS}')
                I(f'buffer_load_dword v{44+i}, v15, {WS}, s{t1} offen sc1')
    e.wait_vm0()
```

```python
import sys
from emit import Emit, parse
import g3
from g3 import (KN, MF16, MF32, WS_HELLO, WS_KVP, WS_G, TILE, AS, WS_STAMP, BIG, Lay, SRD, PTR, SIZE, srd, WS, vr,
                sL, sRB, sH, sG, sJ, sW, sTAG, sMODE, sSPIN, sGB, sODD, sC448, sL2E, sA, sN, sX0, sX1, sM0, sM1, sT)

RA, RB, RC = 0, 57344, 114688
RXA, MISC = 114688, 147456
L_PHI = 161792
L_CS = RXA + 7168
L_CSQ = 162816
L_KVR = 158720
L_CS1 = 159744
L_STAT = 160256
LDS_BYTES = 163840
NONSTR = 0xD5AB

class K(g3.K):
    def __init__(self, stop=None, force_slow=False, opts=None):
        self.e = Emit(); self.stop = stop; self.force_slow = force_slow
        self.o = dict(pf='o123g', n1=14, w2a=6); self.o.update(opts or {})
        self.L = Lay(self.o.get('dbg'))
        self.nbar = 0

    def bar(self, name=None):
        self.e.barrier(); self.nbar += 1
        if name: self.stamp(name)

    def softmax2s(self, P, OUT, T, vM, C):
        I = self.I
        X, Y, Z = T, T+1, T+2
        E = T+4
        I(f'v_max3_f32 v{X}, v{P}, v{P+1}, v{P+2}')
        I(f'v_max3_f32 v{Y}, -v{P}, -v{P+1}, -v{P+2}')
        I(f'v_max3_f32 v{X}, v{X}, v{P+3}, v{P+4}')
        I(f'v_max3_f32 v{Y}, v{Y}, -v{P+3}, -v{P+4}')
        I(f'v_max3_f32 v{X}, v{X}, v{P+5}, v{P+6}')
        I(f'v_max3_f32 v{Y}, v{Y}, -v{P+5}, -v{P+6}')
        I(f'v_max_f32 v{X}, v{X}, v{P+7}')
        I(f'v_max_f32_e64 v{Y}, v{Y}, -v{P+7}')
        self.allred2(X, Y, Z, 'v_max_f32')
        I(f'v_mul_f32_e64 v{X}, -v{X}, v{C}'); I(f'v_mul_f32_e64 v{Y}, -v{Y}, v{C}')
        for i in range(8):
            I(f'v_fma_f32 v{E+i}, v{P+i}, v{C}, v{X}')
            I(f'v_fma_f32 v{E+8+i}, -v{P+i}, v{C}, v{Y}')
        for i in range(16):
            I(f'v_exp_f32 v{E+i}, v{E+i}')
        A, B = T+20, T+22
        for n, (S, b) in enumerate(((X, E), (Y, E+8))):
            I(f'v_add_f32 v{A+n}, v{b}, v{b+1}'); I(f'v_add_f32 v{B+n}, v{b+4}, v{b+5}')
        for n, (S, b) in enumerate(((X, E), (Y, E+8))):
            I(f'v_add_f32 v{A+n}, v{A+n}, v{b+2}'); I(f'v_add_f32 v{B+n}, v{B+n}, v{b+6}')
        for n, (S, b) in enumerate(((X, E), (Y, E+8))):
            I(f'v_add_f32 v{A+n}, v{A+n}, v{b+3}'); I(f'v_add_f32 v{B+n}, v{B+n}, v{b+7}')
        for n, (S, b) in enumerate(((X, E), (Y, E+8))):
            I(f'v_fma_f32 v{S}, v{B+n}, v{vM}, v{A+n}')
        self.allred2(X, Y, Z, 'v_add_f32')
        I(f'v_rcp_f32 v{X}, v{X}')
        I(f'v_rcp_f32 v{Y}, v{Y}')
        I(f'v_mul_f32 v{A}, v{X}, v{vM}'); I(f'v_mul_f32 v{A+1}, v{Y}, v{vM}')
        for i in range(8):
            I(f'v_mul_f32 v{E+i}, v{E+i}, v{X if i < 4 else A}')
            I(f'v_mul_f32 v{E+8+i}, v{E+8+i}, v{Y if i < 4 else A+1}')
        self.cvt(OUT, E, 16)

    def prologue(self):
        e, I, L = self.e, self.I, self.L
        t0, t1, t2, t3 = sT[0:4]
        I('s_load_dwordx4 s[16:19], s[0:1], 0')
        I('s_cmp_ge_u32 s2, 256')
        I('s_cbranch_scc1 Lend')
        self.stamp(0)
        I('s_load_dwordx4 s[36:39], s[0:1], 80')
        I('s_load_dwordx8 s[20:27], s[0:1], 16')
        I('s_load_dwordx8 s[28:35], s[0:1], 48')
        I('v_lshrrev_b32 v5, 6, v0')
        I('v_and_b32 v1, 63, v0')
        I(f's_and_b32 s{t0}, s2, 7')
        I(f's_lshr_b32 s{t1}, s2, 3')
        I(f'v_readfirstlane_b32 s{sW}, v5')
        I(f's_lshl_b32 s{sL}, s{t0}, 5')
        I(f's_or_b32 s{sL}, s{sL}, s{t1}')
        I(f's_getpc_b64 s[{sM1}:{sM1+1}]')
        e.label('Lpc')
        I(f's_add_u32 s{sM1}, s{sM1}, {KN}-Lpc')
        I(f's_addc_u32 s{sM1+1}, s{sM1+1}, -1')
        I(f's_lshl_b32 s{t0}, s{sW}, 5'); I(f's_add_u32 s{t0}, s{t0}, s{t1}'); I(f's_lshl_b32 s{t0}, s{t0}, 8')
        I('v_and_b32 v15, 1, v1'); I('v_lshlrev_b32 v15, 7, v15'); I(f'v_add_u32 v15, s{t0}, v15')
        I(f'v_min_u32 v15, Lcodeend-{KN}, v15')
        I(f'global_load_dword v251, v15, s[{sM1}:{sM1+1}]')
        I(f's_lshr_b32 s{sRB}, s{sL}, 4')
        I(f's_and_b32 s{sH}, s{sL}, 15')
        I('v_and_b32 v2, 15, v1')
        I('v_lshrrev_b32 v3, 4, v1')
        I(f's_and_b32 s{sA}, s{sW}, 3')
        sCx, sCw, sMX, sMW = self.sCx, self.sCw, self.sMX, self.sMW
        I(f's_and_b32 s{t0}, s{sRB}, 1'); I(f's_mul_i32 s{t0}, s{t0}, 3'); I(f's_add_u32 s{t0}, s{t0}, s{sH}')
        if self.o.get('rx'):
            I(f's_lshr_b32 s{t1}, s{sL}, 5'); I(f's_add_u32 s{t0}, s{t0}, s{t1}')
        I(f's_mul_i32 s{t1}, s{t0}, 37'); I(f's_lshr_b32 s{t1}, s{t1}, 8'); I(f's_mul_i32 s{t1}, s{t1}, 7')
        I(f's_sub_u32 s{t0}, s{t0}, s{t1}')
        if self.o.get('norot'): I(f's_mov_b32 s{t0}, 0')
        I(f's_lshl_b32 s{sCx}, s{t0}, 7')
        I(f's_mov_b32 s{self.sCb}, s{sCx}')
        I('v_lshrrev_b32 v9, 2, v1')
        I('v_mul_u32_u24 v9, 2688, v9')
        I('v_lshrrev_b32 v10, 5, v1')
        I('v_lshlrev_b32 v10, 1, v10')
        I('v_and_b32 v11, 3, v1')
        I('v_xor_b32 v10, v10, v11')
        I('v_lshl_add_u32 v9, v10, 4, v9')
        I(f's_mul_i32 s{t0}, s{sH}, 56'); I(f's_andn2_b32 s{t0}, s{t0}, 15')
        I(f's_mul_i32 s{t1}, s{sA}, 43008'); I(f's_add_u32 s{t0}, s{t0}, s{t1}')
        I(f'v_add_u32 v9, s{t0}, v9')
        I(f's_lshl_b32 s{t0}, s{sRB}, 7'); I(f's_lshl_b32 s{t1}, s{sW}, 4'); I(f's_add_u32 s{t0}, s{t0}, s{t1}')
        I('v_lshrrev_b32 v10, 3, v1'); I(f'v_add_u32 v10, s{t0}, v10'); I('v_mul_u32_u24 v10, 896, v10')
        I('v_and_b32 v11, 7, v1'); I('v_xor_b32 v11, v11, v3')
        I('v_lshl_add_u32 v10, v11, 4, v10')
        I('v_xor_b32 v11, 64, v10'); I(f'v_add_u32 v11, {8*896-1024}, v11')
        I(f's_lshl_b32 s{sMW}, s{sA}, 10')
        I(f's_lshl_b32 s{t0}, s{sA}, 13'); I(f's_add_u32 s{t0}, s{t0}, {RXA}')
        I(f's_mul_i32 s{t1}, s{sA}, 14336'); I(f's_add_u32 s{t1}, s{t1}, {RB}')
        I(f's_cmp_ge_u32 s{sW}, 4')
        I(f's_cselect_b32 s{sMX}, s{t1}, s{t0}')
        I('v_lshlrev_b32 v4, 4, v1')
        I('v_mov_b32 v13, 0')
        e.wait_lg0()
        self.build_srd('wqkv'); self.build_srd('x')
        I(f's_cmp_ge_u32 s{sW}, 4')
        I('s_cbranch_scc1 LB0')
        sn = e.snap()
        for i in range(3): self.xdma(i, i, f'c{i}')
        I('s_branch Lcom')
        e.restore(sn)
        e.label('LB0')
        I('v_add_u32 v9, 896, v9')
        for i in range(3): self.wdma(i)
        e.label('Lcom')
        self.stamp('is')
        self.init_jobs()
        I(f's_cmp_ge_u32 s{sW}, 4')
        I('s_cbranch_scc1 LB')

    sCx, sCw, sMX, sMW = sT[4], sT[5], sT[6], sT[7]

    sCb = sT[8]
    def adv(self, sc=None):
        I = self.I
        sc = sc or self.sCx
        I(f's_add_u32 s{sc}, s{sc}, 128'); I(f's_cmp_eq_u32 s{sc}, 896'); I(f's_cselect_b32 s{sc}, 0, s{sc}')
    def xdma(self, i, slot, tag, sc=None):
        I = self.I
        sc = sc or self.sCx
        I(f's_add_u32 m0, s{self.sMX}, {slot*2048}')
        I(f'buffer_load_dwordx4 v10, {srd("x")}, s{sc} offen lds', tag=tag)
        I(f'buffer_load_dwordx4 v11, {srd("x")}, s{sc} offen offset:1024 lds', tag=tag)
        self.adv(sc)
    def wdma(self, i):
        I = self.I
        I(f's_mul_i32 s{self.sCw}, s{self.sCx}, 1344')
        I(f's_add_u32 m0, s{self.sMW}, {i*4096}')
        I(f'buffer_load_dwordx4 v9, {srd("wqkv")}, s{self.sCw} offen lds', tag=f'c{i}')
        I(f's_add_u32 m0, s{self.sMW}, {28672 + i*4096 - 896}')
        I(f'buffer_load_dwordx4 v9, {srd("wqkv")}, s{self.sCw} offen offset:896 lds', tag=f'c{i}')
        self.adv()

    def init_jobs(self):
        e, I, L = self.e, self.I, self.L
        t0, t1, t2, t3 = sT[0:4]
        self.build_srd('ws'); self.build_srd('phi')
        I(f's_lshr_b32 s{sG}, s{sL}, 3')
        I(f's_and_b32 s{sJ}, s{sL}, 7')
        I(f's_and_b32 s{sODD}, s{sL}, 1')
        I(f'buffer_load_dword v14, v13, {WS}, 0 offen sc1')
        I(f's_lshl_b32 s{t0}, s{sH}, 4'); I(f's_or_b32 s{t0}, s{t0}, s{sRB}'); I(f's_lshl_b32 s{t0}, s{t0}, 12')
        I(f's_lshl_b32 s{t1}, s{sW}, 9'); I(f's_add_u32 s{t0}, s{t0}, s{t1}'); I(f's_add_u32 s{t0}, s{t0}, {WS_KVP}')
        I('v_lshrrev_b32 v15, 1, v3'); I('v_lshlrev_b32 v15, 8, v15'); I('v_lshl_add_u32 v15, v2, 4, v15')
        I('v_and_b32 v16, 1, v3'); I('v_lshl_add_u32 v15, v16, 3, v15')
        I(f'v_add_u32 v31, s{t0}, v15')
        I('v_mov_b32 v24, -1'); I('v_mov_b32 v25, -1')
        I(f'buffer_store_dwordx2 v[24:25], v31, {WS}, 0 offen sc1')
        I(f's_mul_i32 s{t0}, s{sH}, 1568'); I(f's_lshl_b32 s{t1}, s{sW}, 8'); I(f's_add_u32 s{t0}, s{t0}, s{t1}')
        I(f's_add_u32 m0, s{t1}, {L_PHI}')
        I('v_lshlrev_b32 v16, 2, v1')
        I(f'buffer_load_dword v16, {srd("phi")}, s{t0} offen lds')
        for i in range(4): I(f'v_mov_b32 v{32+i}, 0x3f803f80')
        I('v_bfe_u32 v28, v1, 2, 2')
        I('v_and_b32 v29, 3, v1')
        I('v_lshl_add_u32 v15, v3, 3, v28')
        I('v_lshlrev_b32 v15, 6, v15')
        I('v_lshl_add_u32 v15, v29, 3, v15')
        I('v_and_b32 v16, 1, v3')
        I('v_lshl_add_u32 v5, v16, 5, v15')
        I('v_xor_b32 v6, 32, v5')
        I('v_lshrrev_b32 v15, 1, v2'); I('v_xor_b32 v15, v15, v3'); I('v_lshlrev_b32 v15, 4, v15')
        I('v_lshl_add_u32 v12, v2, 7, v15'); I(f'v_add_u32 v12, s{self.sMX}, v12')
        I('v_xor_b32 v21, 64, v12')
        self.init2()

    def init_B(self):
        I = self.I
        t0 = sT[0]
        self.halo_addr(44, 45, 46)
        I('s_nop 1')
        for i in range(4): I(f'v_cndmask_b32 v{48+i}, -1, v13, vcc')
        I(f'buffer_store_dwordx4 v[48:51], v44, {WS}, 0 offen sc1')
        I(f's_and_b32 s{t0}, s{sA}, 1'); I(f's_lshl_b32 s{t0}, s{t0}, 5')
        I(f'v_xor_b32 v7, s{t0}, v5')
        I(f's_lshr_b32 s{t0}, s{sA}, 1'); I(f's_mul_i32 s{t0}, s{t0}, 28672')
        I(f'v_add_u32 v7, s{t0}, v7')
        I(f's_lshl_b32 s{t0}, s{sA}, 7'); I(f's_add_u32 s{t0}, s{t0}, {L_CS}')
        I(f'v_lshlrev_b32 v8, 3, v2'); I(f'v_add_u32 v8, s{t0}, v8')

    def init2(self):
        e, I, L = self.e, self.I, self.L
        t0, t1, t2, t3 = sT[0:4]
        for n in ('wo', 'w1', 'w2', 'w3', 'w4', 'out'): self.build_srd(n)
        I(f's_mul_i32 s{sGB}, s{sG}, {L.GS}')
        I(f's_add_u32 s{sGB}, s{sGB}, {WS_G}')
        I(f's_mov_b32 s{sSPIN}, 0x8000')
        I(f's_mov_b32 s{sC448}, 0x3b124925')
        I(f's_mov_b32 s{sL2E}, 0x3fb8aa3b')
        I('v_lshl_add_u32 v15, v3, 2, v28')
        I(f's_lshl_b32 s{t0}, s{sODD}, 2')
        I(f'v_subrev_u32 v15, s{t0}, v15')
        I('v_mul_i32_i24 v15, 56, v15')
        I(f'v_add_u32 v15, {L_PHI}, v15')
        I('v_lshl_add_u32 v17, v29, 3, v15')
        I('v_add_u32 v16, 4, v29'); I('v_min_u32 v16, 6, v16')
        I('v_lshl_add_u32 v18, v16, 3, v15')
        I('v_add_u32 v19, 896, v17'); I('v_add_u32 v20, 896, v18')
        I('v_cmp_ne_u32 vcc, 3, v3')
        I('v_cndmask_b32 v22, 0, 1.0, vcc')
        I('v_mul_u32_u24 v23, 224, v2')
        I('v_xor_b32 v15, v28, v3')
        I('v_lshl_add_u32 v23, v15, 3, v23')
        I(f's_mul_i32 s{t0}, s{sA}, 3584'); I(f's_add_u32 s{t0}, s{t0}, {MISC}')
        I(f's_cmp_ge_u32 s{sW}, 4'); I(f's_cselect_b32 s{t0}, s{self.sMX}, s{t0}')
        I(f'v_add_u32 v23, s{t0}, v23')
        I('v_lshrrev_b32 v15, 2, v1')
        I('v_mul_u32_u24 v15, 224, v15')
        I('v_xor_b32 v16, v29, v3')
        I('v_lshl_add_u32 v15, v16, 3, v15')
        I(f's_lshr_b32 s{t0}, s{sW}, 1'); I(f's_lshl_b32 s{t0}, s{t0}, 5'); I(f's_add_u32 s{t0}, s{t0}, {MISC}')
        I(f'v_add_u32 v24, s{t0}, v15')
        I(f's_and_b32 s{t0}, s{sW}, 1'); I(f's_lshl_b32 s{t0}, s{t0}, 5'); I(f's_add_u32 s{t0}, s{t0}, {MISC+128}')
        I(f'v_add_u32 v25, s{t0}, v15')
        I(f'v_subrev_u32 v26, {MISC-RB}, v24'); I(f'v_subrev_u32 v27, {MISC-RB}, v25')
        I('v_lshlrev_b32 v28, 3, v2'); I(f'v_add_u32 v28, {L_CS}, v28')
        I('v_cmp_eq_u32 vcc, 0, v3'); I('v_mov_b32 v15, 0xbb124925')
        I('v_cndmask_b32 v29, 0, v15, vcc')
        I('v_lshlrev_b32 v15, 2, v3'); I('v_sub_u32 v15, v2, v15')
        for r in range(4):
            I(f'v_cmp_eq_u32 vcc, {r}, v15'); I(f'v_cndmask_b32 v{252+r}, 0, 1.0, vcc')
        AX, BX = 208, 224
        for t in range(4): I(f'v_mov_b32 v{AX+4*t+2}, 0'); I(f'v_mov_b32 v{AX+4*t+3}, 0')
        I(f'v_mov_b32 v{BX+2}, 0'); I(f'v_mov_b32 v{BX+3}, 0')
        I(f's_cmp_eq_u32 s{sODD}, 1')
        I(f's_cselect_b32 s{sM0}, 0xffff, 0'); I(f's_mov_b32 s{sM0+1}, 0')
        I(f's_cselect_b32 s{sM1+1}, 0, 0xffff0000'); I(f's_mov_b32 s{sM1}, 0')

    def init_A(self):
        I, L = self.I, self.L
        t0, t1, t2, t3 = sT[0:4]
        if True:
            I(f's_lshl_b32 s{t0}, 1, s{sH}'); I(f's_sub_u32 s{t1}, s{t0}, 1'); I(f's_and_b32 s{t1}, s{t1}, {NONSTR}')
            I(f's_bcnt1_i32_b32 s{t1}, s{t1}')
            I(f's_and_b32 s{t2}, s{sRB}, 1'); I(f's_mul_i32 s{t2}, s{t2}, 10'); I(f's_add_u32 s{t1}, s{t1}, s{t2}')
            I(f's_lshl_b32 s{t1}, s{t1}, 2'); I(f's_add_u32 s{t1}, s{t1}, s{sA}'); I(f's_mul_i32 s{t1}, s{t1}, 40')
            I(f's_and_b32 s{t0}, s{t0}, {NONSTR}')
            I(f's_cselect_b32 s{t2}, 40, 0')
            I(f'v_add_u32 v15, s{t1}, v1')
            I('v_lshlrev_b32 v7, 7, v15')
            I('v_lshlrev_b32 v8, 9, v15')
            I(f'v_mov_b32 v16, {BIG}')
            I(f'v_cmp_gt_u32 vcc, s{t2}, v1')
            I('v_cndmask_b32 v7, v16, v7, vcc'); I('v_cndmask_b32 v8, v16, v8, vcc')
            I(f's_lshl_b32 s{t0}, s{sJ}, 2'); I(f's_add_u32 s{t0}, s{t0}, s{sA}')
            I(f's_mul_i32 s{t1}, s{t0}, {14*128}'); I(f's_mul_i32 s{t2}, s{t0}, 384'); I(f's_min_u32 s{t2}, s{t2}, {69*128}')
            I(f's_add_u32 s{t2}, s{t2}, {L.FLG}')
            I('v_min_u32 v15, 13, v2'); I('v_lshlrev_b32 v15, 7, v15'); I(f'v_add_u32 v15, s{t1}, v15')
            I('v_and_b32 v16, 1, v3'); I(f'v_mul_u32_u24 v16, {AS}, v16'); I('v_add_u32 v15, v15, v16')
            I('v_min_u32 v16, 2, v2'); I('v_lshlrev_b32 v16, 7, v16'); I(f'v_add_u32 v16, s{t2}, v16')
            I('v_cmp_gt_u32 vcc, 32, v1'); I('v_cndmask_b32 v0, v16, v15, vcc')

    def get_tag(self):
        I = self.I
        I(f'v_readfirstlane_b32 s{sTAG}, v14')
        I(f's_add_u32 s{sTAG}, s{sTAG}, 0x9E3779B9')
        I(f's_andn2_b32 s{sTAG}, s{sTAG}, 15')
        I(f's_getreg_b32 s{sMODE}, hwreg(HW_REG_XCC_ID)')
        I(f's_and_b32 s{sMODE}, s{sMODE}, 15')
        I(f's_or_b32 s{sMODE}, s{sMODE}, s{sTAG}')

    def phi_frags(self):
        I = self.I
        I('ds_read_b64_tr_b16 v[36:37], v17'); I('ds_read_b64_tr_b16 v[38:39], v19')
        I('ds_read_b64_tr_b16 v[40:41], v18'); I('ds_read_b64_tr_b16 v[42:43], v20')
    def phi_mask(self):
        I = self.I
        for r in (36, 37, 40, 41): I(f'v_cndmask_b32 v{r}, v{r}, v13, s[{sM0}:{sM0+1}]')
        for r in (38, 39, 42, 43): I(f'v_cndmask_b32 v{r}, v{r}, v13, s[{sM1}:{sM1+1}]')

    X, AR, CF, CSA, AX, BX, T = 76, 132, 196, 204, 208, 224, 228
    def xread(self, i, slot):
        for ee in range(2):
            self.I(f'ds_read_b128 {vr(self.X+4*(2*i+ee),4)}, v{(12,21)[ee]} offset:{slot*2048}', tag=f'xr{i}')
    def wread(self, m):
        for ti in range(4):
            b = self.AR + 16*(m & 3) + 4*ti
            off = (ti >> 1)*28672 + m*2048
            self.I(f'ds_read_b64_tr_b16 {vr(b,2)}, v{5+(ti&1)} offset:{off}')
            self.I(f'ds_read_b64_tr_b16 {vr(b+2,2)}, v{5+(ti&1)} offset:{off+256}')
    def kstep(self, m):
        I = self.I
        xb = vr(self.X+4*m, 4)
        z = m == 0
        I(f'{MF16} v[72:75], {xb}, {xb}, ' + ('0' if z else 'v[72:75]'))
        I(f'{MF16} v[68:71], v[32:35], {xb}, ' + ('0' if z else 'v[68:71]'))
        for ti in range(4):
            acc = vr(52 + 4*ti, 4)
            I(f'{MF16} {acc}, {vr(self.AR+16*(m&3)+4*ti,4)}, {xb}, ' + ('0' if z else acc))

    def post_kv(self, B):
        e, I = self.e, self.I
        AX, BX, T = self.AX, self.BX, self.T
        ACCK, ACCV = 52, 60
        I(f'v_mul_f32 v{T}, v68, v29')
        self.split_b(T, BX, T+1)
        for i in range(4): I(f'v_mul_f32 v{72+i}, v{72+i}, v{252+i}')
        for ti in range(4):
            acc = vr(ACCK + 4*ti, 4)
            I(f'{MF16} {acc}, {vr(AX+4*ti,4)}, {vr(BX,4)}, {acc}')
        I('v_add_f32 v72, v72, v73'); I('v_add_f32 v74, v74, v75')
        I('v_add_f32 v72, v72, v74')
        I('v_mov_b32 v73, v72')
        I('v_permlane32_swap_b32 v72, v73'); I('v_add_f32 v72, v72, v73'); I('v_mov_b32 v73, v72')
        I('v_permlane16_swap_b32 v72, v73'); I('v_add_f32 v72, v72, v73')
        self.cvt(T+4, ACCK, 8)
        I(f'{MF16} v[52:55], v[36:39], {vr(T+4,4)}, 0')
        I(f'{MF16} v[56:59], v[40:43], {vr(T+4,4)}, 0')
        I(f'v_mul_f32 v73, s{sC448}, v68')
        I('v_mul_f32 v74, v73, v73')
        I(f'v_fma_f32 v74, v72, s{sC448}, -v74')
        I('v_add_f32 v74, 0x3727c5ac, v74')
        I('v_rsq_f32 v70, v74')
        I(f'v_mul_f32 v30, s{sL2E}, v70')
        if B:
            for i in range(0, 8, 2):
                I(f'v_pk_mul_f32 {vr(ACCV+i,2)}, {vr(ACCV+i,2)}, v[70:71] op_sel_hi:[1,0]')
        else:
            for i in range(8): I(f'v_mul_f32 v{ACCV+i}, v{ACCV+i}, v70')
        I(f'v_cndmask_b32 v60, v60, 1.0, s[{sM0}:{sM0+1}]')
        I(f'v_cndmask_b32 v64, v64, 1.0, s[{sM1}:{sM1+1}]')
        self.cvt(72, ACCV, 8)
        I('ds_write_b64 v23, v[72:73] offset:128')
        I('ds_write_b64 v23, v[74:75] offset:160')
        PH = 60
        (self.softmax2 if B else self.softmax2s)(52, PH, T, 22, 30)
        for t in range(4):
            I(f'ds_write_b64 v23, {vr(PH+2*t,2)} offset:{t*32}')

    def sq_src(self):
        I = self.I
        t0 = sT[0]
        I('v_lshrrev_b32 v11, 3, v1'); I(f's_lshl_b32 s{t0}, s{sA}, 3'); I(f'v_add_u32 v11, s{t0}, v11')
        I('v_mul_u32_u24 v11, 896, v11')
        I('v_bfe_u32 v15, v1, 4, 1'); I('v_lshlrev_b32 v15, 1, v15')
        I(f's_and_b32 s{t0}, s{sA}, 1'); I(f's_lshl_b32 s{t0}, s{t0}, 2')
        I('v_and_b32 v16, 7, v1'); I('v_xor_b32 v15, v15, v16'); I(f'v_xor_b32 v15, s{t0}, v15')
        I('v_lshl_add_u32 v11, v15, 4, v11')
        I(f's_lshl_b32 s{t0}, s{sJ}, 7'); I(f's_cmp_eq_u32 s{sJ}, 7'); I(f's_cselect_b32 s{t0}, {BIG}, s{t0}')
        I(f'v_add_u32 v11, s{t0}, v11')
    def sq_dma(self, name, region, m, tag):
        I = self.I
        t1 = self.sCw
        I(f's_add_u32 m0, s{self.sMW}, {region + m*4096}')
        I(f's_mov_b32 s{t1}, {m*32*896}')
        I(f'buffer_load_dwordx4 v11, {srd(name)}, s{t1} offen lds', tag=tag)

    def pre_b3(self, B):
        I = self.I
        t0, t1, t2 = sT[0:3]
        self.sq_src()
        I(f's_lshl_b32 s{t0}, s{sRB}, 4')
        I(f'v_add_u32 v15, s{t0}, v2')
        I('v_lshlrev_b32 v16, 4, v2'); I(f'v_add_u32 v16, s{sH}, v16')
        I('v_cmp_eq_u32 vcc, 1, v3')
        I('v_cndmask_b32 v15, v15, v16, vcc')
        I('v_and_b32 v16, 8, v2'); I('v_lshlrev_b32 v16, 1, v16')
        I('v_and_b32 v17, 7, v2'); I('v_add_u32 v16, v16, v17')
        I(f's_lshl_b32 s{t0}, s{sG}, 3'); I(f's_sub_u32 s{t0}, s{t0}, 8')
        I(f'v_add_u32 v16, s{t0}, v16'); I('v_and_b32 v16, 255, v16')
        I('v_cmp_eq_u32 vcc, 2, v3')
        I('v_cndmask_b32 v15, v15, v16, vcc')
        I('v_lshlrev_b32 v14, 6, v15'); I(f'v_add_u32 v14, {WS_HELLO}, v14')

    def kv_pub(self, B):
        e, I = self.e, self.I
        t0, t1, t2 = sT[0:3]
        KA, KB = 132, 148
        for ks in range(4):
            a, b = (24, 25) if ks < 2 else (26, 27)
            st = 3584 if ks < 2 else 14336
            for ee in range(2):
                I(f'ds_read_b64_tr_b16 {vr(KA+4*ks+2*ee,2)}, v{a} offset:{((2*ks+ee)&3)*st}')
            for ee in range(2):
                I(f'ds_read_b64_tr_b16 {vr(KB+4*ks+2*ee,2)}, v{b} offset:{((2*ks+ee)&3)*st}')
        I('v_lshrrev_b32 v15, 1, v3'); I(f'v_mul_u32_u24 v15, 7168, v15'); I(f'v_add_u32 v15, {RXA}, v15')
        I('v_add_u32 v5, v5, v15'); I('v_add_u32 v6, v6, v15')
        for ks in range(4):
            I(f'{MF16} v[52:55], {vr(KA+4*ks,4)}, {vr(KB+4*ks,4)}, ' + ('0' if ks == 0 else 'v[52:55]'))
        I(f's_and_b32 s{t0}, s{sW}, 1'); I(f's_lshl_b32 s{t1}, s{t0}, 5')
        I(f'v_xor_b32 v7, s{t1}, v5')
        I(f's_lshr_b32 s{t1}, s{sA}, 1'); I(f's_lshl_b32 s{t2}, s{t1}, 14')
        I(f'v_add_u32 v7, s{t2}, v7')
        self.cvt(56, 52, 4)
        I(f'buffer_store_dwordx2 v[56:57], v31, {WS}, 0 offen sc1')
        self.stamp(4)
        I(f's_lshl_b32 s{t0}, s{t0}, 9'); I(f's_lshr_b32 s{t1}, s{sW}, 1'); I(f's_lshl_b32 s{t1}, s{t1}, 7'); I(f's_add_u32 s{t0}, s{t0}, s{t1}')
        I(f's_add_u32 s{t0}, s{t0}, {L_CSQ}')
        I(f'v_lshlrev_b32 v8, 3, v2'); I(f'v_add_u32 v8, s{t0}, v8')

    def q_phase(self, B, fill):
        e, I = self.e, self.I
        X, CF, CSA, AX, BX, T = self.X, self.CF, self.CSA, self.AX, self.BX, self.T
        QC = 164
        ci = [4, 5, 6] if B else [0, 1, 2, 3]
        QR = [132, 140, 148, 156, 180, 188]
        def qread(m):
            for t in range(2):
                b = QR[m % 6] + 4*t
                off = (m & 1)*16384 + (m >> 1)*1024
                I(f'ds_read_b64_tr_b16 {vr(b,2)}, v{5+t} offset:{off}')
                I(f'ds_read_b64_tr_b16 {vr(b+2,2)}, v{5+t} offset:{off+256}')
        for n, i in enumerate(ci):
            I(f'ds_read_b64_tr_b16 {vr(QC+4*n,2)}, v7 offset:{i*1024}')
            I(f'ds_read_b64_tr_b16 {vr(QC+4*n+2,2)}, v7 offset:{i*1024+256}')
        qread(0); qread(1); qread(2)
        I(f'v_mul_f32 v{T}, 0xbb124925, v68')
        self.split_b(T, BX, T+1)
        I('v_lshlrev_b32 v28, 3, v1'); I(f'v_add_u32 v28, {L_CSQ}, v28')
        for n in range(len(ci)):
            I(f'{MF16} {vr(CSA,4)}, v[32:35], {vr(QC+4*n,4)}, ' + ('0' if n == 0 else vr(CSA, 4)))
        qread(3); qread(4)
        fill = list(fill)
        vf = self.capture(lambda: (self.o_addr(), self.sel_mat(self.SEL, 15)))
        per = (len(vf) + 27) // 28
        for m in range(14):
            if m + 5 < 14: qread(m + 5)
            for t in range(2):
                acc = vr(44 + 4*t, 4)
                I(f'{MF16} {acc}, {vr(QR[m%6]+4*t,4)}, {vr(X+4*m,4)}, ' + ('0' if m == 0 else acc))
                for _ in range(per):
                    if vf: I(vf.pop(0))
                while vf and ('cselect' in vf[0] or 'vcc' in vf[0].split(',')[-1]): I(vf.pop(0))
            if m == 1:
                self.split_a(CSA, CF, CF+2)
                I(f'ds_write_b64 v8, {vr(CF,2)}')
            if fill: fill.pop(0)()
        for f in fill: f()

    def hello_chk(self):
        I = self.I
        ld = f'buffer_load_dword v0, v14, {WS}, 0 offen sc1'
        def chk():
            I('v_and_b32 v17, -16, v0')
            I(f'v_cmp_ne_u32 vcc, s{sTAG}, v17')
        self.poll2([ld], chk, 'hello')
        I(f'v_cmp_ne_u32 vcc, s{sMODE}, v0')
        I(f's_and_b32 s{sMODE}, vcc_lo, 0xffff')
        if self.force_slow: I(f's_mov_b32 s{sMODE}, 1')
        self.stamp(5)

    G, SEL, GAC = 76, 252, 144
    def gather_loads(self):
        return [f'buffer_load_dwordx4 {vr(self.G+4*p,4)}, v{200 + (p & 1)}, {WS}, s{sT[8+(p>>1)]} offen sc1' for p in range(8)]

    def o_addr(self):
        I, L = self.I, self.L
        t0, t1, t2 = sT[0:3]
        I(f'v_add_u32 v23, {L_KVR}, v4')
        I(f's_cmp_eq_u32 s{sODD}, 1')
        I(f's_cselect_b32 s{t0}, 0, {1024+12*16}'); I(f's_add_u32 s{t0}, s{t0}, {L_KVR}')
        I('v_lshlrev_b32 v24, 8, v3'); I(f'v_add_u32 v24, s{t0}, v24')
        I(f's_lshr_b32 s{t0}, s{sW}, 2'); I(f's_lshl_b32 s{t0}, s{t0}, 11'); I(f's_and_b32 s{t1}, s{sW}, 1'); I(f's_lshl_b32 s{t1}, s{t1}, 10')
        I(f's_add_u32 s{t0}, s{t0}, s{t1}'); I(f's_and_b32 s{t1}, s{sW}, 2'); I(f's_lshl_b32 s{t1}, s{t1}, 2'); I(f's_add_u32 s{t0}, s{t0}, s{t1}')
        I(f'v_add_u32 v25, s{t0}, v23')
        I(f's_mul_i32 s{t0}, s{sH}, 7'); I(f's_lshr_b32 s{t0}, s{t0}, 1')
        I('v_and_b32 v18, 1, v3'); I('v_lshrrev_b32 v19, 1, v3'); I('v_lshl_add_u32 v26, v18, 1, v19')
        I(f'v_add_u32 v18, s{t0}, v26')
        I('v_lshlrev_b32 v18, 8, v18'); I('v_lshl_add_u32 v18, v2, 4, v18')
        sOG = sX0
        I(f's_lshl_b32 s{t1}, s{sRB}, 1'); I(f's_lshr_b32 s{t2}, s{sW}, 2'); I(f's_add_u32 s{t1}, s{t1}, s{t2}')
        I(f's_mul_i32 s{sOG}, s{t1}, {L.GS}'); I(f's_add_u32 s{sOG}, s{sOG}, {WS_G}')
        I(f's_mul_i32 s{t0}, s{sA}, {TILE}'); I(f's_add_u32 s{t0}, s{t0}, {L.O}')
        I(f'v_add_u32 v18, s{t0}, v18')
        I('v_add_u32 v19, 8, v18')
        I(f'v_mov_b32 v20, {BIG}')
        I(f'v_cndmask_b32 v18, v18, v20, s[{sM0}:{sM0+1}]')
        I(f'v_cndmask_b32 v19, v19, v20, s[{sM1}:{sM1+1}]')
        I('v_cmp_eq_u32 vcc, 0, v1'); I('v_cndmask_b32 v21, v20, v13, vcc')
        I(f's_lshl_b32 s{t0}, s{sA}, 6'); I(f's_lshl_b32 s{t1}, s{sH}, 2'); I(f's_add_u32 s{t0}, s{t0}, s{t1}')
        I(f's_add_u32 s{t0}, s{t0}, {L.F_O}'); I(f's_add_u32 s{sX1}, s{t0}, s{sOG}')
        I(f'v_mov_b32 v27, s{sTAG}')

    def tail_p1(self, B, burst2, shadow):
        e, I = self.e, self.I
        AX, BX, T = self.AX, self.BX, self.T
        t0, t1 = sT[0:2]
        e.wait_lg0(); self.bar(3)
        self.kv_pub(B)
        if B: self.pre_b3(B)
        for p in range(4): I(f's_mov_b32 s{sT[8+p]}, {p*8192}')
        I(f's_lshl_b32 s{t0}, s{sW}, 9'); I(f's_lshl_b32 s{t1}, s{sH}, 16'); I(f's_add_u32 s{t0}, s{t0}, s{t1}')
        I(f's_add_u32 s{t0}, s{t0}, {WS_KVP}')
        I('v_and_b32 v15, 31, v1'); I('v_lshlrev_b32 v15, 4, v15'); I('v_lshrrev_b32 v16, 5, v1')
        I('v_lshl_add_u32 v15, v16, 15, v15'); I(f'v_add_u32 v200, s{t0}, v15')
        I('v_add_u32 v201, 4096, v200')
        if not B: e.wait_tag('wq')
        self.bar('3q')
        I(f'buffer_load_dword v0, v14, {WS}, 0 offen sc1')
        n1 = self.o['n1']
        fill = [(lambda m=m: self.sq_dma('wo', RA, m, 'wo')) for m in range(B, 14, 2)]
        fill += [(lambda m=m: self.sq_dma('w1', RB, m, 'w1')) for m in range(B, n1, 2)]
        self.q_phase(B, fill)
        self.hello_chk()
        loads = self.gather_loads()
        for t in loads: I(t)
        e.wait_lg0(); self.bar('3b')
        for t in range(2): I(f'ds_read_b64 {vr(AX+4*t,2)}, v28 offset:{t*512}')
        burst2()
        for t in range(2):
            acc = vr(44 + 4*t, 4)
            I(f'{MF16} {acc}, {vr(AX+4*t,4)}, {vr(BX,4)}, {acc}')
        self.cvt(T+4, 44, 8)
        I(f'{MF16} v[44:47], v[36:39], {vr(T+4,4)}, 0')
        I(f'{MF16} v[48:51], v[40:43], {vr(T+4,4)}, 0')
        shadow()
        self.softmax2(44, 60, T, 22, 30)
        self.stamp(6)
        AC = self.GAC
        def chk3():
            for p in range(8):
                I(f'{MF16} {vr(AC,4)}, {vr(self.SEL,4)}, {vr(self.G+4*p,4)}, ' + ('0' if p == 0 else vr(AC, 4)))
            I(f'v_cmp_u_f32 vcc, v{AC}, v{AC}')
        self.poll2(loads, chk3, 'kvg')
        self.stamp(7)
        self.cvt(152, AC, 4)
        I('ds_write_b64 v25, v[152:153]')
        e.wait_lg0(); self.bar()
        self.o_phase()

    def capture(self, fn):
        out = []
        self.I = lambda t, **k: out.append(t)
        try: fn()
        finally: del self.I
        return out

    def poll2(self, loads, check, name):
        e = self.e
        done, retry = e.newlabel('Lpd' + name), e.newlabel('Lpr' + name)
        check()
        self.I(f's_cbranch_vccnz {retry}')
        e.label(done)
        sn = e.snap()
        save = e.out; e.out = []
        e.label(retry)
        e.wait_vm0()
        for t in loads: self.I(t)
        check()
        self.I(f's_cbranch_vccz {done}')
        self.I(f's_sub_u32 s{sSPIN}, s{sSPIN}, 1')
        self.I(f's_cbranch_scc0 {retry}')
        self.I(f's_mov_b32 s{sSPIN}, 0')
        self.I(f's_branch {done}')
        e.ool += e.out; e.out = save
        e.restore(sn)

    def poll3(self, loads, check, name):
        e = self.e
        top, done = e.newlabel('Lpoll' + name), e.newlabel('Lpd' + name)
        e.label(top)
        for t in loads: self.I(t)
        e.wait_vm0()
        check()
        self.I(f's_cbranch_vccz {done}')
        self.I(f's_sub_u32 s{sSPIN}, s{sSPIN}, 1')
        self.I(f's_cbranch_scc0 {top}')
        self.I(f's_mov_b32 s{sSPIN}, 0')
        e.label(done)

    def o_flag(self, tag=None):
        if tag: self.e.wait_tag(tag)
        else: self.e.wait_vm0()
        self.stores([f'buffer_store_dword v27, v21, {WS}, s{sX1} offen'])
        self.stamp(9)

    def p1_A(self, burst2, shadow):
        e, I = self.e, self.I
        self.init_A()
        I('s_setprio 1')
        self.stamp('su')
        e.wait_tag('c0'); self.bar('c0')
        self.xread(0, 0); self.wread(0); self.wread(1)
        self.xdma(3, 3, 'c3')
        for i in range(7):
            self.kstep(2*i)
            if i < 6:
                e.wait_tag(f'c{i+1}'); self.bar(f'c{i+1}')
                self.xread(i + 1, (i + 1) & 3); self.wread(2*i + 2); self.wread(2*i + 3)
            self.kstep(2*i + 1)
            if i + 4 < 7:
                e.wait_tag(f'xr{i}')
                self.xdma(i + 4, i & 3, f'c{i+4}')
            if i == 4: self.get_tag(); self.phi_frags()
            if i == 5: self.phi_mask()
        I('s_setprio 0')
        e.wait_lg0(); self.bar(2)
        for t in range(4): I(f'ds_read_b64 {vr(self.AX+4*t,2)}, v28 offset:{t*128}')
        def wq():
            for i in range(7):
                I(f's_mul_i32 s{self.sCw}, s{self.sCx}, 1344')
                I(f's_add_u32 m0, s{self.sMX}, {i*1024}')
                I(f'buffer_load_dwordx4 v9, {srd("wqkv")}, s{self.sCw} offen lds', tag='wq')
                self.adv()
        def touches():
            for ch in self.o['pf']:
                if ch in 'o12': I(f'buffer_load_dword v12, v7, {srd("wo" if ch == "o" else "w"+ch)}, 0 offen')
                if ch == '3':
                    I(f'buffer_load_dword v12, v8, {srd("w3")}, 0 offen'); e.vm[-1]['dst'] = set()
                    I(f'buffer_load_dword v12, v8, {srd("w3")}, 0 offen offset:128')
                if ch == 'b':
                    I(f'buffer_load_dword v12, v8, {srd("w3")}, 0 offen offset:256'); e.vm[-1]['dst'] = set()
                    I(f'buffer_load_dword v12, v8, {srd("w3")}, 0 offen offset:384')
                if ch == 'g': I(f'buffer_load_dword v12, v0, {WS}, s{sGB} offen sc1')
                if ch != '-': e.vm[-1]['dst'] = set()
        wq()
        if self.o.get('tpos', 1) == 0: touches()
        self.post_kv(False)
        if self.o.get('tpos', 1) == 1: touches()
        self.pre_b3(False)
        self.stamp('sa')
        self.tail_p1(False, burst2, shadow)

    def p1_B(self, burst2, shadow):
        e, I = self.e, self.I
        t0 = sT[0]
        CF, CSA = self.CF, self.CSA
        LAG = self.o.get('lag', 2)
        XL = self.o.get('xl', 3 - LAG)
        for c in range(XL): self.xdma(c, c, f'x{c}', self.sCb)
        self.init_B()
        self.stamp('su')
        def col_reads(c):
            e.wait_tag(f'x{c}'); self.xread(c, c); self.wread(2*c); self.wread(2*c + 1)
        def hello():
            I(f'v_mov_b32 v15, s{sMODE}')
            I(f's_lshl_b32 s{t0}, s{sL}, 6'); I(f's_add_u32 s{t0}, s{t0}, {WS_HELLO}')
            I(f's_cmp_eq_u32 s{sW}, 7'); I(f's_cselect_b32 s{t0}, s{t0}, {BIG}')
            I(f'v_mov_b32 v16, s{t0}')
            I(f'buffer_store_dword v15, v16, {WS}, 0 offen sc1')
        nx = XL
        for i in range(7 + LAG):
            c = i - LAG
            if i < 7:
                e.wait_tag(f'c{i}'); self.bar(f'c{i}')
                for ee in range(2):
                    I(f'ds_read_b64_tr_b16 {vr(CF+4*ee,2)}, v7 offset:{i*4096+ee*2048}')
                    I(f'ds_read_b64_tr_b16 {vr(CF+4*ee+2,2)}, v7 offset:{i*4096+ee*2048+256}')
                if i + 3 < 7: self.wdma(i + 3)
                want = min(7, i + XL + 1) if i < 4 else min(7, i + XL + 1 + (i - 3))
                if i == 6: want = 7
                while nx < want:
                    self.xdma(nx, nx, f'x{nx}', self.sCb); nx += 1
                    if nx == 7:
                        assert i >= 4
                        self.get_tag(); hello()
            if c >= 0: self.kstep(2*c)
            if i < 7:
                for ee in range(2):
                    I(f'{MF16} {vr(CSA,4)}, v[32:35], {vr(CF+4*ee,4)}, ' + ('0' if i == 0 and ee == 0 else vr(CSA, 4)))
            if 0 <= c + 1 < 7: col_reads(c + 1)
            if i == 6:
                self.split_a(CSA, CF, CF+2)
                I(f'ds_write_b64 v8, {vr(CF,2)}', tag='cs')
            if c >= 0: self.kstep(2*c + 1)
            if i == 6:
                e.wait_tag('cs'); self.bar(2)
                I('s_setprio 1')
                for t in range(4): I(f'ds_read_b64 {vr(self.AX+4*t,2)}, v28 offset:{t*128}')
            if i == 4: self.phi_frags()
            if i == 5: self.phi_mask()
        self.stamp('sb')
        self.post_kv(True)
        I('s_setprio 0')
        self.tail_p1(True, burst2, shadow)

    def build(self):
        e, I = self.e, self.I
        import g6
        self.prologue()
        sn = e.snap()
        self.nbar = 0
        self.p1_A(lambda: None, lambda: g6.main_pre(self))
        I(f's_cmp_eq_u32 s{sJ}, 7')
        I('s_cbranch_scc1 Lj7')
        if self.stop != 'o': g6.main_rest(self)
        else: self.o_flag()
        self.finish()
        na = self.nbar
        e.restore(sn)
        e.label('LB')
        self.nbar = 0
        self.p1_B(lambda: g6.aux_burst2(self), lambda: g6.aux_pre(self))
        I(f's_cmp_eq_u32 s{sJ}, 7')
        I('s_cbranch_scc1 Lj7')
        if self.stop != 'o': g6.aux_rest(self)
        else: self.o_flag()
        self.dump_stamps()
        I('s_branch Lend')
        assert na == self.nbar, (na, self.nbar)
        e.label('Lj7')
        e.hist = []; e.nop(4)
        self.o_flag()
        e.barrier()
        g6.j7_jobs(self)
        self.dump_stamps()
        e.label('Lend')
        e.raw('  s_endpgm')
        head = f"""; fused persistent kernel (generated) {'stamps=' + self.o['stamps'] if self.o.get('stamps') else ''}
; @launch grid=(256,1,1) block=(512,1,1) lds={LDS_BYTES}
.amdgcn_target "amdgcn-amd-amdhsa--gfx950"
.text
.globl {KN}
.p2align 8
.type {KN},@function
{KN}:
"""
        tail = f"""
  s_endpgm
Lcodeend:
.fill {self.o.get('pad', 64)}, 4, 0xbf800000
.section .rodata,"a"
.p2align 6
.amdhsa_kernel {KN}
  .amdhsa_next_free_vgpr 256
  .amdhsa_next_free_sgpr 102
  .amdhsa_accum_offset 256
  .amdhsa_group_segment_fixed_size 0
  .amdhsa_kernarg_size 96
  .amdhsa_user_sgpr_count 2
  .amdhsa_user_sgpr_kernarg_segment_ptr 1
  .amdhsa_system_sgpr_workgroup_id_x 1
.end_amdhsa_kernel
"""
        return head + e.text() + tail

if __name__ == '__main__':
    import argparse
    ap = argparse.ArgumentParser()
    ap.add_argument('-o', default='k.s'); ap.add_argument('--stop'); ap.add_argument('--slow', action='store_true')
    ap.add_argument('--opt', action='append', default=[])
    a = ap.parse_args()
    opts = {}
    for kv in a.opt:
        k, v = kv.split('='); opts[k] = int(v) if v.lstrip('-').isdigit() and k not in ('stamps', 'pf', 'j7') else v
    k = K(stop=a.stop, force_slow=a.slow, opts=opts)
    s = k.build()
    open(a.o, 'w').write(s)
    print('instrs', k.e.nins, 'nops', k.e.nnop, 'bytes(src)', len(s))
```

```python
from g5 import *
import g4
from g4 import GA, GB_, f32, pack_pairs, row_stats, stat_addrs, gelu_consts

vZ, vBIG, vL0, vSIG, vTAG, vB, vST = 13, 20, 21, 26, 27, 28, 29
SB = [5, 6, 7, 8]
BF = 76
AR = 148
NSLOT = 5
HR = 60
ACC = 44
CS1 = 132
BXT = 40
XA = 244
vTP, vHP, vHS, vTF, vOP = 250, 251, 252, 253, 254
RES = 240
W3P = 228
U0, U1 = RC + 28672, RB + 28672
STEP_REG = [0, 28672, RC, 0, 28672, RB, RC, 0]

def main_pre(k):
    I = k.I
    t0, t1 = sT[0:2]
    I(f's_lshl_b32 s{t0}, s{sG}, 6'); I(f's_lshl_b32 s{t1}, s{sW}, 4'); I(f's_add_u32 s{t0}, s{t0}, s{t1}')
    I(f'v_add_u32 v15, s{t0}, v2'); I('v_mul_u32_u24 v15, 896, v15')
    I(f's_lshl_b32 s{t0}, s{sJ}, 7')
    I('v_lshl_add_u32 v15, v3, 3, v15')
    for t in range(4):
        I(f'buffer_load_dwordx2 {vr(52+2*t,2)}, v15, {srd("x")}, s{t0} offen offset:{t*32}')

def main_addr1(k):
    I, L = k.I, k.L
    t0, t1 = sT[0:2]
    I('v_bfe_u32 v15, v1, 2, 2')
    I('v_lshl_add_u32 v16, v3, 3, v15'); I('v_lshlrev_b32 v16, 7, v16')
    I('v_and_b32 v17, 3, v1'); I('v_lshl_add_u32 v16, v17, 3, v16')
    I('v_lshrrev_b32 v15, 1, v15'); I('v_and_b32 v17, 1, v3'); I('v_lshl_add_u32 v15, v17, 1, v15')
    I(f'v_lshl_add_u32 v{SB[0]}, v15, 5, v16')
    for t in range(1, 4): I(f'v_xor_b32 v{SB[t]}, {t*32}, v{SB[0]}')
    I(f's_mul_i32 s{t0}, s{sW}, {TILE}'); I(f's_add_u32 s{t0}, s{t0}, s{sGB}')
    I(f'v_add_u32 v{vB}, s{t0}, v4')
    I(f's_lshl_b32 s{t0}, s{sW}, 6'); I(f's_add_u32 s{t0}, s{t0}, s{sGB}'); I(f's_add_u32 s{t0}, s{t0}, {L.F_O}')
    I(f'v_lshlrev_b32 v{vOP}, 2, v2'); I(f'v_add_u32 v{vOP}, s{t0}, v{vOP}')

def main_addr2(k):
    I, L = k.I, k.L
    t0, t1, t2, t3 = sT[0:4]
    I(f's_mul_i32 s{t0}, s{sW}, {TILE}'); I(f's_add_u32 s{t0}, s{t0}, s{sGB}')
    I(f's_lshl_b32 s{t1}, s{sJ}, 11'); I(f's_add_u32 s{t0}, s{t0}, s{t1}')
    I(f'v_lshlrev_b32 v31, 8, v{vSIG}'); I('v_lshl_add_u32 v31, v2, 4, v31')
    I(f'v_add_u32 v{vST}, s{t0}, v31')
    I(f's_lshl_b32 s{t0}, s{sW}, 3'); I(f's_add_u32 s{t0}, s{t0}, s{sJ}'); I(f's_lshl_b32 s{t0}, s{t0}, 8')
    I(f's_add_u32 s{t0}, s{t0}, s{sGB}'); I(f's_add_u32 s{t0}, s{t0}, {L.ST}')
    I(f'v_add_u32 v9, s{t0}, v4')
    I('v_cmp_eq_u32 vcc, 0, v3'); I(f'v_cndmask_b32 v9, v{vBIG}, v9, vcc')
    stat_addrs(k, 10, 11)
    for t in range(4): I(f'v_mov_b32 v{CS1+4*t+2}, 0'); I(f'v_mov_b32 v{CS1+4*t+3}, 0')
    I(f'v_mov_b32 v{BXT+2}, 0'); I(f'v_mov_b32 v{BXT+3}, 0')
    I(f's_add_u32 s{t0}, s{sGB}, {L.GS + L.T0 - TILE}')
    I(f's_cmp_eq_u32 s{sG}, 31'); I(f's_cselect_b32 s{t0}, {BIG}, s{t0}')
    I(f's_sub_u32 s{t1}, s{sGB}, {L.GS - L.T0 - 4*TILE}')
    I(f's_cmp_eq_u32 s{sG}, 0'); I(f's_cselect_b32 s{t1}, {BIG}, s{t1}')
    I(f's_cmp_eq_u32 s{sW}, 3'); I(f's_cselect_b32 s{t0}, s{t0}, s{t1}')
    I(f's_cselect_b32 s{t2}, 0xc000c000, 0')
    I(f's_cmp_eq_u32 s{sW}, 0'); I(f's_cselect_b32 s{t2}, 0x00030003, s{t2}'); I(f's_mov_b32 s{t3}, s{t2}')
    I(f's_lshl_b32 s{t1}, s{sJ}, 11'); I(f's_add_u32 s{t0}, s{t0}, s{t1}')
    I(f'v_add_u32 v15, s{t0}, v31')
    I(f'v_cndmask_b32 v{vHS}, v{vBIG}, v15, s[{t2}:{t3}]')
    I(f's_lshl_b32 s{t0}, s{sW}, 5'); I(f's_lshl_b32 s{t1}, s{sJ}, 2'); I(f's_add_u32 s{t0}, s{t0}, s{t1}')
    I(f's_add_u32 s{t0}, s{t0}, s{sGB}'); I(f's_add_u32 s{t0}, s{t0}, {L.F_T}')
    I(f'v_add_u32 v{vTF}, s{t0}, v{vL0}')
    I(f's_lshl_b32 s{t0}, s{sW}, 4'); I(f's_add_u32 s{t0}, s{t0}, 16')
    I(f'v_add_u32 v15, s{t0}, v2')
    I(f'v_lshlrev_b32 v16, 8, v3'); I(f'v_add_u32 v16, s{sGB}, v16')
    for i, d in enumerate((-1, 1, -2, 2)):
        I(f'v_add_u32 v17, {d}, v15')
        I(f'v_lshrrev_b32 v{XA+i}, 4, v17'); I(f'v_mul_u32_u24 v{XA+i}, {TILE}, v{XA+i}')
        I('v_and_b32 v17, 15, v17'); I(f'v_lshl_add_u32 v{XA+i}, v17, 4, v{XA+i}')
        I(f'v_add_u32 v{XA+i}, v{XA+i}, v16')
    I('v_cmp_gt_u32 vcc, 2, v3')
    I(f'v_cndmask_b32 v{XA+4}, v{XA+1}, v{XA}, vcc'); I(f'v_cndmask_b32 v{XA+5}, v{XA+3}, v{XA+2}, vcc')
    I('v_lshrrev_b32 v15, 3, v1'); I(f'v_add_u32 v15, s{sW}, v15'); I('v_add_u32 v15, -1, v15')
    I(f's_add_u32 s{t0}, s{sW}, 1'); I(f's_min_u32 s{t0}, s{t0}, 3')
    I(f'v_med3_i32 v15, v15, 0, s{t0}')
    I('v_and_b32 v16, 7, v1'); I('v_min_u32 v16, 6, v16'); I('v_lshlrev_b32 v16, 2, v16')
    I('v_lshl_add_u32 v15, v15, 5, v16'); I(f'v_add_u32 v{vTP}, {L.F_T}, v15')
    I(f's_mov_b32 s{t0}, {BIG}')
    I(f's_cmp_eq_u32 s{sW}, 0'); I(f's_cselect_b32 s{t0}, {L.T0-TILE+236}, s{t0}')
    I(f's_cmp_eq_u32 s{sW}, 3'); I(f's_cselect_b32 s{t0}, {L.T0+4*TILE+12}, s{t0}')
    I('v_lshlrev_b32 v17, 8, v1'); I(f'v_add_u32 v17, s{t0}, v17')
    I('v_cmp_gt_u32 vcc, 56, v1'); I(f'v_cndmask_b32 v{vHP}, v{vBIG}, v17, vcc')


def a_read(k, m, t):
    b = AR + 16*(m % NSLOT) + 4*t
    k.I(f'ds_read_b64_tr_b16 {vr(b,2)}, v{SB[t]} offset:{m*4096}')
    k.I(f'ds_read_b64_tr_b16 {vr(b+2,2)}, v{SB[t]} offset:{m*4096+512}')
def a_preload(k):
    for m in range(NSLOT):
        for t in range(4): a_read(k, m, t)
def b_soff(k, region):
    for i in range(4): k.I(f's_mov_b32 s{sT[4+i]}, {region + i*4096}')
def b_loads(k, addr=None):
    for m in range(14):
        va = vB if addr is None else addr[m]
        k.I(f'buffer_load_dwordx4 {vr(BF+4*m,4)}, v{va}, {WS}, s{sT[4+(m>>2)]} offen offset:{(m&3)*1024} sc1')
def gemm(k, acc, vf=(), pre=0):
    I = k.I
    vf = list(vf)
    for _ in range(pre):
        if vf: I(vf.pop(0))
    per = (len(vf) + 47) // 48
    for m in range(14):
        for t in range(4):
            b = AR + 16*(m % NSLOT) + 4*t
            I(f'{MF16} {vr(acc+4*t,4)}, {vr(b,4)}, {vr(BF+4*m,4)}, {vr(acc+4*t,4)}')
            if m + NSLOT < 14: a_read(k, m + NSLOT, t)
            for _ in range(per):
                if vf: I(vf.pop(0))
def poll_stats(k, tagbits, name, D, va, vb):
    I = k.I
    I(f's_or_b32 s{sN}, s{sTAG}, {tagbits}')
    def chk():
        I(f'v_cmp_ne_u32 vcc, s{sN}, v{D+2}')
        I(f'v_cmp_ne_u32 s[{sT[2]}:{sT[3]}], s{sN}, v{D+6}')
        I(f's_or_b64 vcc, vcc, s[{sT[2]}:{sT[3]}]')
    k.poll3([f'buffer_load_dwordx3 {vr(D,3)}, v{va}, {WS}, 0 offen sc1',
             f'buffer_load_dwordx3 {vr(D+4,3)}, v{vb}, {WS}, 0 offen sc1'], chk, name)

def tr2(k, dst, vb, off, step, tag=None):
    k.I(f'ds_read_b64_tr_b16 {vr(dst,2)}, v{vb} offset:{off}', tag=tag)
    k.I(f'ds_read_b64_tr_b16 {vr(dst+2,2)}, v{vb} offset:{off+step}', tag=tag)

def w3_src(k, V):
    I = k.I
    t0, t1 = sT[0], sT[1]
    I(f's_lshl_b32 s{t0}, s{sJ}, 9'); I(f's_lshr_b32 s{t1}, s{sA}, 1'); I(f's_lshl_b32 s{t1}, s{t1}, 7'); I(f's_add_u32 s{t0}, s{t0}, s{t1}')
    I(f's_and_b32 s{t1}, s{sA}, 1'); I(f's_mul_i32 s{t1}, s{t1}, {8*3584}'); I(f's_add_u32 s{t0}, s{t0}, s{t1}')
    I(f's_cmp_eq_u32 s{sJ}, 7'); I(f's_cselect_b32 s{t0}, {BIG}, s{t0}')
    I(f'v_lshrrev_b32 v15, 3, v1'); I(f'v_mul_u32_u24 v{V}, 3584, v15')
    I('v_bfe_u32 v15, v1, 4, 1'); I('v_lshlrev_b32 v15, 2, v15'); I('v_and_b32 v16, 7, v1'); I('v_xor_b32 v15, v15, v16')
    I(f'v_lshl_add_u32 v{V}, v15, 4, v{V}'); I(f'v_add_u32 v{V}, s{t0}, v{V}')
def w3_rd_base(k, V, base):
    I = k.I
    t0, t1 = sT[0], sT[1]
    I('v_lshrrev_b32 v15, 5, v1'); I('v_lshlrev_b32 v15, 3, v15')
    I('v_bfe_u32 v17, v1, 2, 2'); I('v_add_u32 v15, v15, v17')
    I('v_and_b32 v16, 3, v1')
    I(f'v_and_b32 v{V}, 1, v3'); I(f'v_lshlrev_b32 v{V}, 5, v{V}'); I(f'v_lshl_add_u32 v{V}, v16, 3, v{V}')
    I(f'v_lshl_add_u32 v{V}, v15, 7, v{V}')
    I('v_lshrrev_b32 v17, 1, v17'); I(f'v_lshl_add_u32 v{V}, v17, 6, v{V}')
    I(f's_and_b32 s{t0}, s{sA}, 1'); I(f's_lshl_b32 s{t0}, s{t0}, 6'); I(f'v_xor_b32 v{V}, s{t0}, v{V}')
    I(f's_lshr_b32 s{t0}, s{sA}, 1'); I(f's_lshl_b32 s{t0}, s{t0}, 11'); I(f's_add_u32 s{t0}, s{t0}, {base}')
    I(f'v_add_u32 v{V}, s{t0}, v{V}')
def w3_dma(k, V, sM, m, half, dest, tag):
    I = k.I
    t1 = sT[1]
    I(f's_add_u32 m0, s{sM}, {dest}')
    I(f's_mov_b32 s{t1}, {m*16*3584 + half*256}')
    I(f'buffer_load_dwordx4 v{V}, {srd("w3")}, s{t1} offen lds', tag=tag)
def w4_src(k, V):
    I = k.I
    t0, t1 = sT[0], sT[1]
    I(f's_lshl_b32 s{t0}, s{sJ}, 8'); I(f's_lshl_b32 s{t1}, s{sA}, 3'); I(f's_add_u32 s{t0}, s{t0}, s{t1}')
    I(f'v_lshrrev_b32 v15, 3, v1'); I(f'v_add_u32 v15, s{t0}, v15'); I(f'v_mul_u32_u24 v{V}, 896, v15')
    I('v_lshlrev_b32 v15, 1, v3'); I('v_and_b32 v16, 7, v1'); I('v_xor_b32 v15, v15, v16')
    I(f'v_lshl_add_u32 v{V}, v15, 4, v{V}')
def w4_dma_list(k, V, sM, sS, b):
    I = k.I
    out = []
    for lc in range(7):
        def f(lc=lc):
            if lc == 0: I(f's_mov_b32 s{sS}, {b*32*896}')
            I(f's_add_u32 m0, s{sM}, {STEP_REG[b] + lc*4096 - lc*128}')
            I(f'buffer_load_dwordx4 v{V}, {srd("w4")}, s{sS} offen offset:{lc*128} lds', tag=f'w4_{b}')
        out.append(f)
    return out
def pat(k, P):
    I = k.I
    I('v_lshrrev_b32 v15, 2, v2'); I('v_and_b32 v16, 1, v3'); I('v_cmp_eq_u32 vcc, v15, v16')
    I(f'v_mov_b32 v15, 0x3f803f80')
    for i in range(4): I(f'v_cndmask_b32 v{P+i}, 0, v15, vcc')
def up_addrs(k, vX, vS, vU, ubase):
    I = k.I
    t0 = sT[0]
    I('v_bfe_u32 v15, v1, 4, 1'); I(f'v_mul_u32_u24 v{vX}, {TILE}, v15')
    I(f'v_lshl_add_u32 v{vX}, v2, 4, v{vX}')
    I('v_lshrrev_b32 v16, 5, v1'); I(f'v_lshl_add_u32 v{vX}, v16, 8, v{vX}'); I(f'v_add_u32 v{vX}, {RB}, v{vX}')
    I(f'v_and_b32 v{vS}, 31, v1'); I(f'v_lshlrev_b32 v{vS}, 5, v{vS}'); I(f'v_add_u32 v{vS}, {L_STAT}, v{vS}')
    I(f'v_lshlrev_b32 v{vU}, 10, v15'); I(f'v_lshl_add_u32 v{vU}, v2, 4, v{vU}'); I(f'v_lshl_add_u32 v{vU}, v16, 8, v{vU}')
    I(f's_lshl_b32 s{t0}, s{sA}, 12'); I(f's_add_u32 s{t0}, s{t0}, {ubase}')
    I(f'v_add_u32 v{vU}, s{t0}, v{vU}')
def up(k, acc, afn, BB, vX, vS, hooks, pre=True):
    I = k.I
    def b_rd(m, b):
        d = vr(BB + 8*(m&1) + 4*b, 4)
        if m < 28: I(f'ds_read_b128 {d}, v{vX} offset:{b*2*TILE + m*512}')
        else: I(f'ds_read_b128 {d}, v{vS} offset:{b*1024}')
    if pre: b_rd(0, 0); b_rd(0, 1)
    for m in range(29):
        for b in range(2):
            if m + 1 < 29: b_rd(m + 1, b)
            I(f'{MF32} {vr(acc+16*b,16)}, {vr(afn(m),4)}, {vr(BB+8*(m&1)+4*b,4)}, ' + ('0' if m == 0 else vr(acc+16*b, 16)))
        if m in hooks: hooks[m]()
def gelu_groups(acc, GT, GC, PK, npk):
    out = []
    for b in range(2):
        G = GC + 4*b
        for gp in range(2):
            Lq = []
            x = acc + 16*b + 8*gp; tt = GT + 8*gp
            for i in range(8): Lq.append(f'v_mul_f32 v{tt+i}, v{x+i}, v{x+i}')
            for i in range(8): Lq.append(f'v_fma_f32 v{tt+i}, v{tt+i}, v{G+1}, v{G}')
            for i in range(8): Lq.append(f'v_mul_f32 v{tt+i}, v{tt+i}, v{x+i}')
            for i in range(8): Lq.append(f'v_exp_f32 v{tt+i}, v{tt+i}')
            for i in range(8): Lq.append(f'v_fma_f32 v{tt+i}, v{tt+i}, v{G+2}, v{G+2}')
            for i in range(8): Lq.append(f'v_rcp_f32 v{tt+i}, v{tt+i}')
            for i in range(8): Lq.append(f'v_mul_f32 v{x+i}, v{x+i}, v{tt+i}')
            P = PK + 4*((2*b + gp) % npk)
            for i in range(4): Lq.append(f'v_cvt_pk_bf16_f32 v{P+i}, v{x+2*i}, v{x+2*i+1}')
            out.append((Lq, P, b*2048 + gp*512))
    return out

def publish_stats(k, src, sreg, tagbits, T, mid=None):
    e, I = k.e, k.I
    P = T
    pack_pairs(k, src, P)
    k.stores([f'buffer_store_dwordx4 {vr(P,4)}, v{vST}, {WS}, s{sreg} offen',
              f'buffer_store_dwordx4 {vr(P+4,4)}, v{vST}, {WS}, s{sreg} offen offset:1024'])
    S = T + 8
    I(f'v_pk_add_f32 {vr(S,2)}, {vr(src,2)}, {vr(src+2,2)}')
    I(f'v_pk_mul_f32 {vr(S+2,2)}, {vr(src,2)}, {vr(src,2)}')
    I(f'v_pk_fma_f32 {vr(S+2,2)}, {vr(src+2,2)}, {vr(src+2,2)}, {vr(S+2,2)}')
    for i in range(4, 16, 2):
        I(f'v_pk_add_f32 {vr(S,2)}, {vr(S,2)}, {vr(src+i,2)}')
        I(f'v_pk_fma_f32 {vr(S+2,2)}, {vr(src+i,2)}, {vr(src+i,2)}, {vr(S+2,2)}')
    I(f'v_add_f32 v{S+4}, v{S}, v{S+1}')
    I(f'v_add_f32 v{S+5}, v{S+2}, v{S+3}')
    k.allred2(S+4, S+5, S, 'v_add_f32')
    I(f'v_or_b32 v{S+6}, {tagbits}, v{vTAG}')
    e.wait_vm0()
    k.stores([f'buffer_store_dwordx3 {vr(S+4,3)}, v9, {WS}, 0 offen'])
    if mid: mid()

def x1_dma(k, m0_, vaddr):
    I = k.I
    t0, t1 = sT[0], sT[1]
    I(f's_mul_i32 s{t0}, s{sA}, {TILE}')
    for i in range(7):
        m = m0_ + i
        if i % 4 == 0:
            I(f's_mov_b32 s{t1}, {k.L.X1 + m*1024}')
            I(f's_add_u32 m0, s{t0}, {RB + m*1024}')
        I(f'buffer_load_dwordx4 v{vaddr}, {WS}, s{t1} offen offset:{(i&3)*1024} sc1 lds', tag='x1')

def main_rest(k):
    e, I, L, o = k.e, k.I, k.L, k.o
    t0, t1, t2, t3 = sT[0:4]
    sR = sT[8]
    main_addr1(k)
    for t in range(4):
        for d in range(2):
            I(f'v_lshlrev_b32 v{HR+4*t+2*d}, 16, v{52+2*t+d}')
            I(f'v_and_b32 v{HR+4*t+2*d+1}, 0xffff0000, v{52+2*t+d}')
    b_soff(k, L.O)
    I(f's_mov_b32 s{sR}, {L.H}')
    k.o_flag()
    k.bar()
    a_preload(k)
    def chk(): I(f'v_cmp_ne_u32 vcc, s{sTAG}, v16')
    k.poll3([f'buffer_load_dword v16, v{vOP}, {WS}, 0 offen sc1'], chk, 'o')
    k.stamp('po')
    b_loads(k)
    k.bar()
    gemm(k, HR, k.capture(lambda: main_addr2(k)), 30)
    k.stamp('hg')
    def mid():
        for t in range(4): I(f'v_add_u32 v{SB[t]}, {RB}, v{SB[t]}')
        I('v_lshlrev_b32 v15, 3, v2'); I(f'v_add_u32 v15, {L_CS1}, v15')
        b_soff(k, L.H)
        a_preload(k)
    publish_stats(k, HR, sR, 1, BF, mid)
    k.stamp('hp')
    k.bar()
    if k.stop == 'h': return
    for t in range(4): I(f'ds_read_b64 {vr(CS1+4*t,2)}, v15 offset:{t*128}')
    I(f's_mov_b32 s{sR}, {L.T0}')
    D = 32
    poll_stats(k, 1, 'h', D, 10, 11)
    k.stamp('ph')
    b_loads(k)
    k.bar()
    row_stats(k, D)
    I('v_cmp_eq_u32 vcc, 0, v3')
    I(f'v_cndmask_b32_e64 v{D+3}, 0, -v{D}, vcc')
    k.split_b(D+3, BXT, D+2)
    for t in range(4):
        I(f'{MF16} {vr(ACC+4*t,4)}, {vr(CS1+4*t,4)}, {vr(BXT,4)}, 0')
    I(f'v_add_f32 v{D+2}, 0x3727c5ac, v{D+1}'); I(f'v_rsq_f32 v{D+4}, v{D+2}')
    I(f'v_mul_f32 v{D+2}, v{D+4}, v{D+4}'); I(f'v_mul_f32 v{D+2}, v{D+2}, v{D+1}')
    I(f'v_add_f32 v{D+2}, 0x3727c5ac, v{D+2}'); I(f'v_rsq_f32 v{D+2}, v{D+2}')
    I(f'v_mul_f32_e64 v{BXT}, -v{D}, v{D+4}')
    I(f'v_mul_f32 v{D+6}, v{D+4}, v{D+2}')
    G = D
    gelu_consts(k, D+6, G)
    I(f'v_mov_b32 v{D+6}, v{G+1}')
    gemm(k, ACC)
    k.stamp('tg')
    T = BF
    P = T + 16
    for h in range(2):
        x = ACC + 8*h; tt = T + 8*h
        for i in range(0, 8, 2): I(f'v_pk_mul_f32 {vr(tt+i,2)}, {vr(x+i,2)}, {vr(x+i,2)}')
        for i in range(0, 8, 2): I(f'v_pk_fma_f32 {vr(tt+i,2)}, {vr(tt+i,2)}, {vr(D+6,2)}, {vr(G,2)} op_sel_hi:[1,0,0]')
        for i in range(0, 8, 2): I(f'v_pk_mul_f32 {vr(tt+i,2)}, {vr(tt+i,2)}, {vr(x+i,2)}')
        for i in range(8): I(f'v_exp_f32 v{tt+i}, v{tt+i}')
        for i in range(0, 8, 2): I(f'v_pk_fma_f32 {vr(tt+i,2)}, {vr(tt+i,2)}, {vr(G+2,2)}, {vr(G+2,2)} op_sel_hi:[1,0,0]')
        for i in range(8): I(f'v_rcp_f32 v{tt+i}, v{tt+i}')
        for i in range(0, 8, 2): I(f'v_pk_mul_f32 {vr(x+i,2)}, {vr(x+i,2)}, {vr(tt+i,2)}')
        k.cvt(P+4*h, x, 8)
        I(f'v_permlane16_swap_b32 v{P+4*h}, v{P+4*h+2}')
        I(f'v_permlane16_swap_b32 v{P+4*h+1}, v{P+4*h+3}')
        k.stores([f'buffer_store_dwordx4 {vr(P+4*h,4)}, v{vST}, {WS}, s{sR} offen offset:{h*1024}'], tag='tl')
    I(f'buffer_store_dwordx4 {vr(P,4)}, v{vHS}, {WS}, 0 offen sc1')
    I(f'buffer_store_dwordx4 {vr(P+4,4)}, v{vHS}, {WS}, 0 offen offset:1024 sc1')
    for i in range(0, 16, 2):
        I(f'v_pk_fma_f32 {vr(ACC+i,2)}, {vr(HR+i,2)}, {vr(D+4,2)}, {vr(BXT,2)} op_sel_hi:[1,0,0]')
    for t in range(4): I(f'v_subrev_u32 v{SB[t]}, {RB}, v{SB[t]}')
    b_soff(k, L.T0 - TILE)
    I(f's_mov_b32 s{sR}, {L.X1}')
    w3_rd_base(k, 14, RC)
    e.wait_tag('tl')
    k.stores([f'buffer_store_dword v{vTAG}, v{vTF}, {WS}, 0 offen'])
    k.stamp('tp')
    k.bar()
    if k.stop == 't': return
    a_preload(k)
    for i in range(3): tr2(k, W3P + 4*i, 14, i*4096, 512)
    addr = [XA]*3 + [XA+4] + [XA+1]*3 + [XA+2]*3 + [XA+5] + [XA+3]*3
    def chk():
        I('v_max_u32 v18, v18, v19')
        I(f'v_cmp_ne_u32 vcc, s{sTAG}, v16')
        I(f'v_cmp_eq_u32 s[{t2}:{t3}], -1, v18')
        I(f's_or_b64 vcc, vcc, s[{t2}:{t3}]')
    pl = [f'buffer_load_dword v16, v{vTP}, {WS}, s{sGB} offen sc1',
          f'buffer_load_dwordx2 v[18:19], v{vHP}, {WS}, s{sGB} offen sc1']
    k.poll3(pl, chk, 't')
    k.stamp('pt')
    b_loads(k, addr)
    e.wait_lg0(); k.bar()
    sM, sS = sT[9], sT[10]
    I(f's_lshl_b32 s{sM}, s{sA}, 10')
    gemm(k, ACC, k.capture(lambda: (w3_src(k, 12), w4_src(k, 0))), 30)
    k.stamp('xg')
    def mid():
        for i in range(0, 16, 2):
            I(f'v_pk_add_f32 {vr(RES+i,2)}, {vr(HR+i,2)}, {vr(ACC+i,2)}')
    publish_stats(k, ACC, sR, 2, BF, mid)
    k.stamp('xp')
    k.bar()
    if k.stop == 'x1': return
    def F(m): return W3P + 4*m if m < 3 else 128 + 4*(m - 3)
    AC, BB, GT, GC, PK, PAT, C, AXT = 44, 76, 92, 108, 116, 124, 32, 36
    vX, vS, vU = 5, 6, 7
    ne = o.get('early', 0)
    for m in range(3, 3 + ne): w3_dma(k, 12, sM, m, 1, RA + (m-3)*4096, 'L0')
    pat(k, PAT)
    up_addrs(k, vX, vS, vU, U1)
    I(f'v_subrev_u32 v8, {RC}, v14')
    poll_stats(k, 2, 'x', D, 10, 11)
    k.stamp('px')
    x1_dma(k, 0, vB)
    if o.get('x1m', 1): x1_dma(k, 7, vB)
    for m in range(3 + ne, 17): w3_dma(k, 12, sM, m, 1, RA + (m-3)*4096, 'L0')
    row_stats(k, D)
    SR = 40
    I(f'v_mul_f32 v{D+3}, -1.0, v{D}')
    k.split_b(D+3, SR, D+2)
    I(f'v_add_f32 v{D+2}, 0x3727c5ac, v{D+1}'); I(f'v_rsq_f32 v{D+4}, v{D+2}')
    gelu_consts(k, D+4, SR+4)
    I(f's_lshl_b32 s{t0}, s{sW}, 9'); I(f's_add_u32 s{t0}, s{t0}, {L_STAT}')
    I('v_lshlrev_b32 v15, 5, v2'); I(f'v_add_u32 v15, s{t0}, v15')
    I(f'ds_write_b128 v15, {vr(SR,4)}'); I(f'ds_write_b128 v15, {vr(SR+4,4)} offset:16')
    def cs(m): I(f'{MF16} {vr(C,4)}, {vr(PAT,4)}, {vr(F(m),4)}, ' + ('0' if m == 0 else vr(C, 4)))
    for m in range(3): cs(m)
    e.wait_tag('x1'); e.wait_lg0(); k.bar('b8')
    for m in range(17, 28): w3_dma(k, 12, sM, m, 1, RC + (m-17)*4096, 'L1')
    I(f'v_mov_b32 v{AXT+2}, 0'); I(f'v_mov_b32 v{AXT+3}, 0')
    I(f'ds_read_b128 {vr(GC,4)}, v{vS} offset:16'); I(f'ds_read_b128 {vr(GC+4,4)}, v{vS} offset:1040')
    e.wait_tag('L0'); k.bar('m1')
    for m in range(3, 17): tr2(k, F(m), 8, (m-3)*4096, 512)
    e.wait_lg0(); k.bar('m2a')
    for b in range(2):
        for f in w4_dma_list(k, 0, sM, sS, b): f()
    for m in range(3, 17): cs(m)
    I(f'ds_read_b128 {vr(BB,4)}, v{vX}'); I(f'ds_read_b128 {vr(BB+4,4)}, v{vX} offset:{2*TILE}')
    I('s_setprio 1')
    e.wait_tag('L1'); k.bar('m2b')
    hooks = {}
    def rd(ms):
        def f():
            for m in ms: tr2(k, F(m), 14, (m-17)*4096, 512, 'r1')
        return f
    for i in range(4): hooks[i] = rd(range(17 + 3*i, min(28, 20 + 3*i)))
    m3 = o.get('m3', 7); m5 = o.get('m5', 21)
    def h3(): e.wait_tag('r1'); k.bar('m3')
    hooks[m3] = h3
    for i in range(11): hooks[m3 + 1 + i] = (lambda m=17+i: cs(m))
    assert m5 > m3 + 11
    def h5(): e.wait_tag('w4_1'); k.bar('m5')
    hooks[m5] = h5
    hooks[m5 + 2] = lambda: k.split_a(C, AXT, C+1)
    up(k, AC, lambda m: F(m) if m < 28 else AXT, BB, vX, vS, hooks, pre=False)
    I('s_setprio 0')
    k.bar('m6')
    dm = []
    for b in (3, 4, 5, 6): dm += w4_dma_list(k, 0, sM, sS, b)
    for _ in range(4): dm.pop(0)()
    cnt = 0
    m7 = o.get('m7', 3)
    for gi, (Lq, Pk, off) in enumerate(gelu_groups(AC, GT, GC, PK, 2)):
        if gi == m7:
            while len(dm) > 14: dm.pop(0)()
            e.wait_tag('w4_4'); k.bar('m7')
        for t in Lq:
            I(t); cnt += 1
            if cnt % o.get('dper', 7) == 0 and dm: dm.pop(0)()
        I(f'ds_write_b128 v{vU}, {vr(Pk,4)} offset:{off}')
    while dm: dm.pop(0)()
    e.wait_tag('w4_5'); e.wait_lg0(); k.bar('m9')
    for f in w4_dma_list(k, 0, sM, sS, 7): f()
    SEL, LD = 32, 76
    k.sel_mat(SEL, 16)
    I(f's_mul_i32 s{t0}, s{sA}, {TILE}'); I(f's_lshl_b32 s{t1}, s{sJ}, 11'); I(f's_add_u32 s{t0}, s{t0}, s{t1}')
    I(f's_add_u32 s{t0}, s{t0}, s{sGB}'); I(f's_add_u32 s{t0}, s{t0}, {L.P0}')
    I('v_and_b32 v5, 31, v1'); I('v_lshlrev_b32 v5, 4, v5'); I(f'v_add_u32 v5, s{t0}, v5')
    I('v_lshrrev_b32 v16, 5, v1'); I(f'v_mul_u32_u24 v17, {AS}, v16'); I('v_add_u32 v6, v5, v17')
    I('v_cmp_eq_u32 vcc, 0, v16'); I(f'v_cndmask_b32 v5, v{vBIG}, v5, vcc')
    for i in range(4): I(f's_mov_b32 s{sT[4+i]}, {2*i*AS}')
    I(f's_lshl_b32 s{t0}, s{sG}, 6'); I(f's_lshl_b32 s{t1}, s{sA}, 4'); I(f's_add_u32 s{t0}, s{t0}, s{t1}')
    I(f'v_add_u32 v7, s{t0}, v2'); I('v_mul_u32_u24 v7, 896, v7')
    I(f'v_lshl_add_u32 v7, v{vSIG}, 4, v7')
    I(f's_lshl_b32 s{sT[8]}, s{sJ}, 7')
    I(f's_lshl_b32 s{t0}, s{sA}, 7'); I(f's_add_u32 s{t0}, s{t0}, {L.F_P}')
    I('v_min_u32 v15, 27, v1'); I('v_lshlrev_b32 v15, 2, v15'); I(f'v_add_u32 v15, s{t0}, v15')
    e.wait_vm0(); k.bar('m10')
    if o.get('m11', 1): k.bar()
    def chk(): I(f'v_cmp_ne_u32 vcc, s{sTAG}, v16')
    k.poll3([f'buffer_load_dword v16, v15, {WS}, s{sGB} offen sc1'], chk, 'p')
    k.stamp('pf')
    for i in range(4):
        for t in range(4):
            I(f'buffer_load_dwordx4 {vr(LD+16*i+4*t,4)}, v{6 if i < 3 else 5}, {WS}, s{sT[4+i]} offen offset:{t*512} sc1')
    for i in range(4):
        for t in range(4):
            I(f'{MF16} {vr(RES+4*t,4)}, {vr(SEL,4)}, {vr(LD+16*i+4*t,4)}, {vr(RES+4*t,4)}')
    pack_pairs(k, RES, 52)
    of = o.get('outf', '')
    I(f'buffer_store_dwordx4 v[52:55], v7, {srd("out")}, s{sT[8]} offen {of}')
    I(f'buffer_store_dwordx4 v[56:59], v7, {srd("out")}, s{sT[8]} offen offset:64 {of}')
    k.stamp('end')

def aux_burst2(k):
    I, o = k.I, k.o
    w3_src(k, 12)
    for m in range(o['w2a']): w3_dma(k, 12, k.sMW, m, 0, RC + m*4096, 'w3')

def aux_pre(k): pass

def aux_rest(k):
    e, I, L, o = k.e, k.I, k.L, k.o
    t0, t1, t2, t3 = sT[0:4]
    sM = k.sMW; sS = sT[5]
    A0, AC, BB, GT, GC, PK, PAT, C, AXT, ONE = 32, 144, 176, 192, 208, 216, 232, 236, 240, 244
    n0 = o['w2a']; nH = o.get('nH', 11); nX = 28 - n0 - nH
    assert nX <= 11
    def rd(m0, n):
        for i in range(n): tr2(k, A0 + 4*(m0+i), 8, i*4096, 512)
    def cs(m0, n):
        for m in range(m0, m0 + n):
            I(f'{MF16} {vr(C,4)}, {vr(PAT,4)}, {vr(A0+4*m,4)}, ' + ('0' if m == 0 else vr(C, 4)))
    def dma(m0, n):
        for i in range(n): w3_dma(k, 12, sM, m0 + i, 0, RC + i*4096, 'w3')
    w3_rd_base(k, 8, RC)
    k.o_flag()
    k.bar()
    rd(0, n0)
    I('v_bfe_u32 v15, v1, 2, 2')
    I('v_lshl_add_u32 v16, v3, 3, v15'); I('v_lshlrev_b32 v16, 7, v16')
    I('v_and_b32 v17, 3, v1'); I('v_lshl_add_u32 v16, v17, 3, v16')
    I('v_lshrrev_b32 v15, 1, v15'); I('v_and_b32 v17, 1, v3'); I('v_lshl_add_u32 v15, v17, 1, v15')
    I(f'v_xor_b32 v15, s{sA}, v15')
    I('v_lshl_add_u32 v6, v15, 5, v16'); I(f'v_add_u32 v6, {RB}, v6')
    CB = 144
    for m in range(14): tr2(k, CB + 4*m, 6, m*4096, 512)
    for i in range(4): I(f'v_mov_b32 v{ONE+i}, 0x3f803f80')
    pat(k, PAT)
    for m in range(14):
        I(f'{MF16} v[248:251], {vr(ONE,4)}, {vr(CB+4*m,4)}, ' + ('0' if m == 0 else 'v[248:251]'))
    cs(0, n0)
    k.split_a(248, 252, 254)
    I(f's_lshl_b32 s{t0}, s{sA}, 7'); I(f's_add_u32 s{t0}, s{t0}, {L_CS1}')
    I('v_lshlrev_b32 v15, 3, v2'); I(f'v_add_u32 v15, s{t0}, v15')
    I('ds_write_b64 v15, v[252:253]')
    e.wait_lg0(); k.bar()
    dma(n0, nH)
    e.wait_vm0(); k.stamp('a6'); k.bar()
    if k.stop == 'h': return
    rd(n0, nH); cs(n0, nH)
    e.wait_lg0(); k.bar()
    for m in range(14): k.sq_dma('w2', RA, m, 'w2')
    for m in range(3): w3_dma(k, 12, sM, m, 1, RC + m*4096, 'w3')
    stat_addrs(k, 0, 5)
    I(f's_mul_i32 s{t0}, s{sA}, {TILE}'); I(f's_add_u32 s{t0}, s{t0}, s{sGB}')
    I(f'v_add_u32 v9, s{t0}, v4')
    e.wait_vm0(); k.stamp('a7'); k.bar()
    if k.stop == 't': return
    k.bar()
    dma(n0 + nH, nX)
    vX, vS, vU = 10, 11, 14
    up_addrs(k, vX, vS, vU, U0)
    I(f'v_mov_b32 v{AXT+2}, 0'); I(f'v_mov_b32 v{AXT+3}, 0')
    e.wait_vm0(); k.stamp('a8'); k.bar()
    if k.stop == 'x1': return
    rd(n0 + nH, nX); cs(n0 + nH, nX)
    w4_src(k, 12)
    if not o.get('x1m', 1):
        poll_stats(k, 2, 'xa', BB, 0, 5)
        x1_dma(k, 7, 9)
    k.split_a(C, AXT, C+1)
    I('s_setprio 1')
    e.wait_tag('x1'); e.wait_lg0(); k.bar('b8')
    hooks = {o.get('m1', 15): lambda: k.bar('m1'), o.get('m2a', 21): lambda: k.bar('m2a'),
             26: lambda: (I(f'ds_read_b128 {vr(GC,4)}, v{vS} offset:16'), I(f'ds_read_b128 {vr(GC+4,4)}, v{vS} offset:1040'))}
    m2b = o.get('m2b', 27)
    hooks[m2b] = lambda: k.bar('m2b')
    up(k, AC, lambda m: A0 + 4*m if m < 28 else AXT, BB, vX, vS, hooks)
    I('s_setprio 0')
    k.stamp('u0')
    VB, VB2 = 5, 28
    I('v_bfe_u32 v15, v1, 2, 2'); I('v_and_b32 v16, 1, v3')
    I('v_lshl_add_u32 v17, v16, 2, v15'); I('v_lshlrev_b32 v18, 7, v17')
    I('v_lshrrev_b32 v17, 1, v17'); I('v_lshl_add_u32 v18, v17, 5, v18')
    I('v_and_b32 v17, 3, v1'); I('v_lshl_add_u32 v18, v17, 3, v18')
    I('v_lshrrev_b32 v17, 1, v3'); I('v_lshl_add_u32 v18, v17, 11, v18')
    I(f's_mul_i32 s{t0}, s{sA}, 7')
    for i in range(4):
        I(f's_add_u32 s{t1}, s{t0}, {i}'); I(f's_and_b32 s{t2}, s{t1}, 3'); I(f's_lshl_b32 s{t2}, s{t2}, 5')
        I(f's_lshr_b32 s{t1}, s{t1}, 2'); I(f's_lshl_b32 s{t1}, s{t1}, 12')
        I(f'v_xor_b32 v{VB+i}, s{t2}, v18'); I(f'v_add_u32 v{VB+i}, s{t1}, v{VB+i}')
        I(f'v_add_u32 v{VB2+i}, {RC}, v{VB+i}')
    def A4(b): return 32 + 28*(b & 3)
    def take_list(b):
        out = []
        for lam in range(7):
            reg = STEP_REG[b]
            vb = (VB2 if reg == RC else VB) + (lam & 3)
            off = (0 if reg == RC else reg) + (lam >> 2)*4096
            out.append(lambda lam=lam, vb=vb, off=off: tr2(k, A4(b) + 4*lam, vb, off, 1024, f'r4_{b}'))
        return out
    gg = gelu_groups(AC, GT, GC, PK, 4)
    pend = []
    a3 = o.get('a3', 1)
    for gi, (Lq, Pk, off) in enumerate(gg):
        dm = []
        if gi == a3:
            k.bar('m3')
            dm = w4_dma_list(k, 12, sM, sS, 2)
        for n, t in enumerate(Lq):
            I(t)
            if n % 4 == 3 and dm: dm.pop(0)()
        pend.append(f'ds_write_b128 v{vU}, {vr(Pk,4)} offset:{off}')
        if gi >= a3:
            for t in pend: I(t)
            pend = []
    I(f's_mul_i32 s{t0}, s{sJ}, {AS}'); I(f's_add_u32 s{t0}, s{t0}, s{sGB}'); I(f's_add_u32 s{t0}, s{t0}, {L.P0}')
    I(f's_mul_i32 s{t2}, s{sA}, {14*256}'); I(f's_add_u32 s{t0}, s{t0}, s{t2}')
    e.wait_tag('w4_2'); k.bar('m5')
    for b in range(3):
        for f in take_list(b): f()
    I(f'v_lshlrev_b32 v9, 8, v{vSIG}'); I('v_lshl_add_u32 v9, v2, 4, v9'); I(f'v_add_u32 v9, s{t0}, v9')
    I(f's_add_u32 s{t0}, s{t0}, {12*256}')
    I('v_lshrrev_b32 v15, 1, v3'); I('v_lshlrev_b32 v15, 8, v15'); I('v_lshl_add_u32 v15, v2, 4, v15')
    I('v_and_b32 v16, 1, v3'); I('v_lshl_add_u32 v15, v16, 3, v15')
    I(f'v_add_u32 v10, s{t0}, v15')
    I(f's_lshl_b32 s{t0}, s{sJ}, 4'); I(f's_lshl_b32 s{t1}, s{sA}, 2'); I(f's_add_u32 s{t0}, s{t0}, s{t1}')
    I(f's_add_u32 s{t0}, s{t0}, s{sGB}'); I(f's_add_u32 s{t0}, s{t0}, {L.F_P}')
    I(f'v_add_u32 v11, s{t0}, v{vL0}')
    I(f'v_mov_b32 v13, s{sTAG}')
    I(f'v_add_u32 v14, {U0}, v4'); I(f'v_add_u32 v0, {U1}, v4')
    for n in range(4): I(f's_mov_b32 s{sT[8+n]}, {n*TILE}')
    I('s_setprio 1')
    e.wait_lg0(); k.bar('m6')
    DA = 144
    UBR = [16, 20, 24]
    nk = o.get('nk', 6)
    seq = [(b, n) for b in range(nk) for n in range(4)] + [(b, n) for n in range(4) for b in range(nk, 8)]
    def u_rd(i):
        b, n = seq[i]
        I(f'ds_read_b128 {vr(UBR[i%3],4)}, v{14 if b < 4 else 0} offset:{(b&3)*4096 + n*1024}')
    def pack_list(n):
        Lq = []
        for pp in range(3):
            a = DA + 28*n + 8*pp
            for i in range(4): Lq.append(f'v_cvt_pk_bf16_f32 v{a+i}, v{a+2*i}, v{a+2*i+1}')
            Lq.append(f'v_permlane16_swap_b32 v{a}, v{a+2}'); Lq.append(f'v_permlane16_swap_b32 v{a+1}, v{a+3}')
            Lq.append(('st', f'buffer_store_dwordx4 {vr(a,4)}, v9, {WS}, s{sT[8+n]} offen offset:{pp*1024}', n))
        a = DA + 28*n + 24
        for i in range(2): Lq.append(f'v_cvt_pk_bf16_f32 v{a+i}, v{a+2*i}, v{a+2*i+1}')
        Lq.append(('st', f'buffer_store_dwordx2 {vr(a,2)}, v10, {WS}, s{sT[8+n]} offen', n))
        return Lq
    def run_fill(x):
        if callable(x): x()
        elif isinstance(x, tuple):
            if x[0] == 'st': k.stores([x[1]], tag=f'p{x[2]}')
            else:
                e.wait_tag(f'p{x[1]}')
                k.stores([f'buffer_store_dword v13, v11, {WS}, 0 offen offset:{x[1]*128}'])
        else: I(x)
    fill = []
    d7 = o.get('d7', 9); d10 = o.get('d10', 21)
    per = (24 + 7*(8-nk) - 3) // (7*(8-nk) - 2)
    for i, (b, n) in enumerate(seq):
        if i == d7:
            k.bar('m7'); fill = take_list(3) + take_list(4)
        if i == 16:
            assert not fill
            e.wait_lg0(); k.bar('m9')
            fill = take_list(5)
        if i == d10:
            assert not fill
            k.bar('m10'); fill = take_list(6) + take_list(7)
        if i in (0, 16): u_rd(i); u_rd(i + 1)
        if i + 2 < 32 and i + 2 not in (16, 17): u_rd(i + 2)
        for lam in range(7):
            acc = DA + 28*n + 4*lam
            I(f'{MF16} {vr(acc,4)}, {vr(A4(b)+4*lam,4)}, {vr(UBR[i%3],4)}, ' + ('0' if b == 0 else vr(acc, 4)))
            if i >= 4*nk:
                if not (b == nk and lam < 2):
                    for _ in range(per):
                        if fill: run_fill(fill.pop(0))
            elif fill: run_fill(fill.pop(0))
        if b == 7:
            assert not fill, len(fill)
            if n == 1 and o.get('m11', 1): k.bar()
            if n > 1: run_fill(('fl', n - 2))
            fill = pack_list(n)
    k.stamp('dg')
    for x in fill: run_fill(x)
    run_fill(('fl', 2))
    run_fill(('fl', 3))
    k.stamp('pp')

def j7_jobs(k):
    e, I, L = k.e, k.I, k.L
    t0, t1 = sT[0], sT[1]
    I(f's_and_b32 s{t0}, s{sG}, 3'); I(f's_lshl_b32 s{t0}, s{t0}, 3'); I(f's_add_u32 s{t0}, s{t0}, s{sW}')
    I(f's_mul_i32 s{t0}, s{t0}, 49'); I(f'v_add_u32 v15, s{t0}, v1')
    I('v_lshrrev_b32 v16, 1, v15'); I('v_lshlrev_b32 v16, 9, v16'); I('v_and_b32 v17, 1, v15'); I('v_lshl_add_u32 v16, v17, 7, v16')
    I('v_lshrrev_b32 v17, 5, v15'); I('v_mul_u32_u24 v17, 9363, v17'); I('v_lshrrev_b32 v17, 16, v17')
    I(f'v_mul_u32_u24 v17, {229376 - 224*128}, v17'); I('v_lshl_add_u32 v17, v15, 7, v17')
    I('v_cmp_gt_u32 vcc, 49, v1'); I(f'v_cndmask_b32 v16, v{vBIG}, v16, vcc'); I(f'v_cndmask_b32 v17, v{vBIG}, v17, vcc')
    I(f's_mul_i32 s{t0}, s{sW}, 56'); I(f'v_add_u32 v15, s{t0}, v1'); I('v_lshlrev_b32 v15, 7, v15')
    I('v_cmp_gt_u32 vcc, 56, v1'); I(f'v_cndmask_b32 v15, v{vBIG}, v15, vcc')
    for ch in k.o.get('j7', 'b4p'):
        if ch in 'ab':
            for i in range(4):
                I(f's_mov_b32 s{t1}, {i*784*512 + (256 if ch == "b" else 0)}')
                I(f'buffer_load_dword v{32+i}, v16, {srd("w3")}, s{t1} offen')
        if ch == '4':
            for b in range(8):
                I(f's_mov_b32 s{t1}, {b*28672}')
                I(f'buffer_load_dword v{36+b}, v17, {srd("w4")}, s{t1} offen')
        if ch == 'p':
            for i in range(1, 7):
                I(f's_add_u32 s{t1}, s{sGB}, {L.P0 + i*AS}')
                I(f'buffer_load_dword v{44+i}, v15, {WS}, s{t1} offen sc1')
    e.wait_vm0()
```

```python
import sys
from emit import Emit, parse
import g3
from g3 import (KN, MF16, MF32, WS_HELLO, WS_KVP, WS_G, TILE, AS, WS_STAMP, BIG, Lay, SRD, PTR, SIZE, srd, WS, vr,
                sL, sRB, sH, sG, sJ, sW, sTAG, sMODE, sSPIN, sGB, sODD, sC448, sL2E, sA, sN, sX0, sX1, sM0, sM1, sT)

RA, RB, RC = 0, 57344, 114688
RXA, MISC = 114688, 147456
L_PHI = 161792
L_CS = RXA + 7168
L_CSQ = 162816
L_KVR = 158720
L_CS1 = 159744
L_STAT = 160256
LDS_BYTES = 163840
NONSTR = 0xD5AB

class K(g3.K):
    def __init__(self, stop=None, force_slow=False, opts=None):
        self.e = Emit(); self.stop = stop; self.force_slow = force_slow
        self.o = dict(pf='o123g', n1=14, w2a=6); self.o.update(opts or {})
        self.L = Lay(self.o.get('dbg'))
        self.nbar = 0

    def dump_stamps(self):
        if not self.o.get('dst'): return g3.K.dump_stamps(self)
        I = self.I
        self.e.wait_all()
        I('v_mov_b32 v15, 0')
        I('s_not_b32 s101, s100')
        I('v_writelane_b32 v15, s101, 11')
        for k in range(11):
            r = 100 if k == 0 else 14 + 2*k
            I(f'v_writelane_b32 v15, s{r}, {k}')
        I('v_mbcnt_lo_u32_b32 v16, -1, 0'); I('v_mbcnt_hi_u32_b32 v16, -1, v16')
        I('v_min_u32 v16, 15, v16')
        I('v_lshlrev_b32 v16, 2, v16')
        I('v_subrev_u32 v17, s100, v15'); I('v_cmp_gt_u32 vcc, 100000, v17')
        I('s_or_b32 vcc_lo, vcc_lo, 0x800')
        I('s_nop 4')
        I('v_cndmask_b32 v15, 0, v15, vcc')
        self.e.raw('  global_atomic_umax v16, v15, s[36:37] sc1')

    def stamp(self, name):
        g3.K.stamp(self, name)
        st = self.o.get('stamps')
        if st and 'T' + str(name) in st.split('+'):
            r = 14 + 2*(1 + st.split('+').index('T' + str(name)))
            self.I(f's_memtime s[{r}:{r+1}]')

    def bar(self, name=None):
        self.e.barrier(); self.nbar += 1
        if name: self.stamp(name)

    def softmax2(self, P, OUT, T, vM, C):
        I = self.I
        X, Y, Z = T, T+2, T+1
        E = T+4
        I(f'v_max3_f32 v{X}, v{P}, v{P+1}, v{P+2}')
        I(f'v_max3_f32 v{Y}, -v{P}, -v{P+1}, -v{P+2}')
        I(f'v_max3_f32 v{X}, v{X}, v{P+3}, v{P+4}')
        I(f'v_max3_f32 v{Y}, v{Y}, -v{P+3}, -v{P+4}')
        I(f'v_max3_f32 v{X}, v{X}, v{P+5}, v{P+6}')
        I(f'v_max3_f32 v{Y}, v{Y}, -v{P+5}, -v{P+6}')
        I(f'v_max_f32 v{X}, v{X}, v{P+7}')
        I(f'v_max_f32_e64 v{Y}, v{Y}, -v{P+7}')
        self.allred2(X, Y, Z, 'v_max_f32')
        I(f'v_mul_f32_e64 v{X}, -v{X}, v{C}'); I(f'v_mul_f32_e64 v{Y}, -v{Y}, v{C}')
        for i in range(0, 8, 2):
            I(f'v_pk_fma_f32 {vr(E+i,2)}, {vr(P+i,2)}, {vr(C,2)}, {vr(X,2)} op_sel_hi:[1,0,0]')
            I(f'v_pk_fma_f32 {vr(E+8+i,2)}, {vr(P+i,2)}, {vr(C,2)}, {vr(Y,2)} op_sel_hi:[1,0,0] neg_lo:[1,0,0] neg_hi:[1,0,0]')
        for i in range(16):
            I(f'v_exp_f32 v{E+i}, v{E+i}')
        A, B = T+20, T+22
        for (S, b) in ((X, E), (Y, E+8)):
            I(f'v_pk_add_f32 {vr(A,2)}, {vr(b,2)}, {vr(b+2,2)}')
            I(f'v_pk_add_f32 {vr(B,2)}, {vr(b+4,2)}, {vr(b+6,2)}')
            I(f'v_pk_fma_f32 {vr(A,2)}, {vr(B,2)}, {vr(vM,2)}, {vr(A,2)} op_sel_hi:[1,0,1]')
            I(f'v_add_f32 v{S}, v{A}, v{A+1}')
        self.allred2(X, Y, Z, 'v_add_f32')
        I(f'v_rcp_f32 v{X}, v{X}')
        I(f'v_rcp_f32 v{Y}, v{Y}')
        I(f'v_mul_f32 v{A}, v{X}, v{vM}'); I(f'v_mul_f32 v{B}, v{Y}, v{vM}')
        for i in range(0, 8, 2):
            I(f'v_pk_mul_f32 {vr(E+i,2)}, {vr(E+i,2)}, {vr(X if i < 4 else A,2)} op_sel_hi:[1,0]')
            I(f'v_pk_mul_f32 {vr(E+8+i,2)}, {vr(E+8+i,2)}, {vr(Y if i < 4 else B,2)} op_sel_hi:[1,0]')
        self.cvt(OUT, E, 16)

    def softmax2s(self, P, OUT, T, vM, C):
        I = self.I
        X, Y, Z = T, T+1, T+2
        E = T+4
        I(f'v_max3_f32 v{X}, v{P}, v{P+1}, v{P+2}')
        I(f'v_max3_f32 v{Y}, -v{P}, -v{P+1}, -v{P+2}')
        I(f'v_max3_f32 v{X}, v{X}, v{P+3}, v{P+4}')
        I(f'v_max3_f32 v{Y}, v{Y}, -v{P+3}, -v{P+4}')
        I(f'v_max3_f32 v{X}, v{X}, v{P+5}, v{P+6}')
        I(f'v_max3_f32 v{Y}, v{Y}, -v{P+5}, -v{P+6}')
        I(f'v_max_f32 v{X}, v{X}, v{P+7}')
        I(f'v_max_f32_e64 v{Y}, v{Y}, -v{P+7}')
        self.allred2(X, Y, Z, 'v_max_f32')
        I(f'v_mul_f32_e64 v{X}, -v{X}, v{C}'); I(f'v_mul_f32_e64 v{Y}, -v{Y}, v{C}')
        for i in range(8):
            I(f'v_fma_f32 v{E+i}, v{P+i}, v{C}, v{X}')
            I(f'v_fma_f32 v{E+8+i}, -v{P+i}, v{C}, v{Y}')
        for i in range(16):
            I(f'v_exp_f32 v{E+i}, v{E+i}')
        A, B = T+20, T+22
        for n, (S, b) in enumerate(((X, E), (Y, E+8))):
            I(f'v_add_f32 v{A+n}, v{b}, v{b+1}'); I(f'v_add_f32 v{B+n}, v{b+4}, v{b+5}')
        for n, (S, b) in enumerate(((X, E), (Y, E+8))):
            I(f'v_add_f32 v{A+n}, v{A+n}, v{b+2}'); I(f'v_add_f32 v{B+n}, v{B+n}, v{b+6}')
        for n, (S, b) in enumerate(((X, E), (Y, E+8))):
            I(f'v_add_f32 v{A+n}, v{A+n}, v{b+3}'); I(f'v_add_f32 v{B+n}, v{B+n}, v{b+7}')
        for n, (S, b) in enumerate(((X, E), (Y, E+8))):
            I(f'v_fma_f32 v{S}, v{B+n}, v{vM}, v{A+n}')
        self.allred2(X, Y, Z, 'v_add_f32')
        I(f'v_rcp_f32 v{X}, v{X}')
        I(f'v_rcp_f32 v{Y}, v{Y}')
        I(f'v_mul_f32 v{A}, v{X}, v{vM}'); I(f'v_mul_f32 v{A+1}, v{Y}, v{vM}')
        for i in range(8):
            I(f'v_mul_f32 v{E+i}, v{E+i}, v{X if i < 4 else A}')
            I(f'v_mul_f32 v{E+8+i}, v{E+8+i}, v{Y if i < 4 else A+1}')
        self.cvt(OUT, E, 16)

    def prologue(self):
        e, I, L = self.e, self.I, self.L
        t0, t1, t2, t3 = sT[0:4]
        I('s_load_dwordx4 s[16:19], s[0:1], 0')
        I('s_cmp_ge_u32 s2, 256')
        I('s_cbranch_scc1 Lend')
        self.stamp(0)
        I('s_load_dwordx4 s[36:39], s[0:1], 80')
        I('s_load_dwordx8 s[20:27], s[0:1], 16')
        I('s_load_dwordx8 s[28:35], s[0:1], 48')
        I('v_lshrrev_b32 v5, 6, v0')
        I('v_and_b32 v1, 63, v0')
        I(f's_and_b32 s{t0}, s2, 7')
        I(f's_lshr_b32 s{t1}, s2, 3')
        I(f'v_readfirstlane_b32 s{sW}, v5')
        I(f's_lshl_b32 s{sL}, s{t0}, 5')
        I(f's_or_b32 s{sL}, s{sL}, s{t1}')
        I(f's_cmp_lg_u32 s{sW}, 7')
        I('s_cbranch_scc1 Lnopf')
        I(f's_getpc_b64 s[{sM1}:{sM1+1}]')
        e.label('Lpc')
        I(f's_add_u32 s{sM1}, s{sM1}, {KN}-Lpc')
        I(f's_addc_u32 s{sM1+1}, s{sM1+1}, -1')
        I(f's_lshl_b32 s{t0}, s{t1}, 11')
        I('v_and_b32 v15, 15, v1'); I('v_lshlrev_b32 v15, 7, v15'); I(f'v_add_u32 v15, s{t0}, v15')
        I(f'v_min_u32 v15, Lcodeend-{KN}, v15')
        I(f'global_load_dword v251, v15, s[{sM1}:{sM1+1}]', maybe=True)
        e.label('Lnopf')
        I(f's_and_b32 s{sA}, s{sW}, 3')
        I(f's_lshr_b32 s{sRB}, s{sL}, 4')
        I(f's_and_b32 s{sH}, s{sL}, 15')
        I('v_and_b32 v2, 15, v1')
        I('v_lshrrev_b32 v3, 4, v1')
        sCx, sCw, sMX, sMW = self.sCx, self.sCw, self.sMX, self.sMW
        I(f's_and_b32 s{t0}, s{sRB}, 1'); I(f's_mul_i32 s{t0}, s{t0}, 3'); I(f's_add_u32 s{t0}, s{t0}, s{sH}')
        if self.o.get('rx'):
            I(f's_lshr_b32 s{t1}, s{sL}, 5'); I(f's_add_u32 s{t0}, s{t0}, s{t1}')
        I(f's_mul_i32 s{t1}, s{t0}, 37'); I(f's_lshr_b32 s{t1}, s{t1}, 8'); I(f's_mul_i32 s{t1}, s{t1}, 7')
        I(f's_sub_u32 s{t0}, s{t0}, s{t1}')
        if self.o.get('norot'): I(f's_mov_b32 s{t0}, 0')
        if self.o.get('ncls') == 2:
            I(f's_add_u32 s{t0}, s{sRB}, s{sH}'); I(f's_and_b32 s{t0}, s{t0}, 1'); I(f's_mul_i32 s{t0}, s{t0}, {self.o.get("cst", 3)}')
        if self.o.get('ncls') == 4:
            I(f's_add_u32 s{t0}, s{sRB}, s{sH}'); I(f's_and_b32 s{t0}, s{t0}, 3'); I(f's_mul_i32 s{t0}, s{t0}, {self.o.get("cst", 2)}')
        I(f's_lshl_b32 s{sCx}, s{t0}, 7')
        I(f's_mov_b32 s{self.sCb}, s{sCx}')
        I('v_lshrrev_b32 v9, 2, v1')
        I('v_mul_u32_u24 v9, 2688, v9')
        I('v_lshrrev_b32 v10, 5, v1')
        I('v_lshlrev_b32 v10, 1, v10')
        I('v_and_b32 v11, 3, v1')
        I('v_xor_b32 v10, v10, v11')
        I('v_lshl_add_u32 v9, v10, 4, v9')
        I(f's_mul_i32 s{t0}, s{sH}, 56'); I(f's_andn2_b32 s{t0}, s{t0}, 15')
        I(f's_mul_i32 s{t1}, s{sA}, 43008'); I(f's_add_u32 s{t0}, s{t0}, s{t1}')
        I(f'v_add_u32 v9, s{t0}, v9')
        I(f's_lshl_b32 s{t0}, s{sRB}, 7'); I(f's_lshl_b32 s{t1}, s{sW}, 4'); I(f's_add_u32 s{t0}, s{t0}, s{t1}')
        I('v_lshrrev_b32 v10, 3, v1'); I(f'v_add_u32 v10, s{t0}, v10'); I('v_mul_u32_u24 v10, 896, v10')
        I('v_and_b32 v11, 7, v1'); I('v_xor_b32 v11, v11, v3')
        I('v_lshl_add_u32 v10, v11, 4, v10')
        I('v_xor_b32 v11, 64, v10'); I(f'v_add_u32 v11, {8*896-1024}, v11')
        I(f's_lshl_b32 s{sMW}, s{sA}, 10')
        sRA, sRBB = sT[9], sT[10]
        I(f's_lshl_b32 s{sRA}, s{sA}, 13'); I(f's_add_u32 s{sRA}, s{sRA}, {RXA}')
        I(f's_mul_i32 s{sRBB}, s{sA}, 14336'); I(f's_add_u32 s{sRBB}, s{sRBB}, {RB}')
        I(f's_cmp_ge_u32 s{sW}, 4')
        I(f's_cselect_b32 s{sMX}, s{sRBB}, s{sRA}')
        I('v_lshlrev_b32 v4, 4, v1')
        I('v_mov_b32 v13, 0')
        I(f's_lshr_b32 s{sG}, s{sL}, 3')
        I(f's_and_b32 s{sJ}, s{sL}, 7')
        e.wait_lg0()
        self.build_srd('x'); self.build_srd('wqkv')
        self.stamp('pr')
        self.xdma(0, 0, 'c0')
        self.build_srd('ws')
        I(f's_cmp_ge_u32 s{sW}, 4')
        I('s_cbranch_scc1 LB0')
        sn = e.snap()
        for i in range(4): I(f'v_mov_b32 v{24+i}, -1')
        I(f's_lshl_b32 s{t0}, s{sH}, 4'); I(f's_or_b32 s{t0}, s{t0}, s{sRB}'); I(f's_lshl_b32 s{t0}, s{t0}, 12')
        I(f's_add_u32 s{t0}, s{t0}, s{self.sMW}'); I(f's_add_u32 s{t0}, s{t0}, {WS_KVP}')
        I(f'buffer_store_dwordx4 v[24:27], v4, {WS}, s{t0} offen sc1')
        if self.o.get('x0', 2) == 2: self.xdma(1, 1, 'c1')
        I(f's_cmp_lt_u32 s{sW}, 2'); I('s_cbranch_scc1 Lrphi')
        I(f's_cmp_eq_u32 s{sW}, 2'); I('s_cbranch_scc1 Lrnon')
        sr = e.snap()
        self.halo_addr(44, 45, 46)
        I('s_nop 1')
        for i in range(4): I(f'v_cndmask_b32 v{48+i}, -1, v13, vcc')
        I(f'buffer_store_dwordx4 v[48:51], v44, {WS}, 0 offen sc1')
        I('s_branch Lcom')
        e.restore(sr); e.label('Lrphi')
        self.build_srd('phi')
        I(f's_mul_i32 s{t2}, s{sH}, 1568'); I(f's_add_u32 s{t2}, s{t2}, s{self.sMW}')
        I(f's_add_u32 m0, s{self.sMW}, {L_PHI}')
        I(f'buffer_load_dwordx4 v4, {srd("phi")}, s{t2} offen lds')
        I('s_branch Lcom')
        e.restore(sr); e.label('Lrnon')
        I(f'buffer_load_dword v14, v13, {WS}, 0 offen sc1', tag='role')
        self.vmA = e.vm
        I('s_branch Lcom')
        e.restore(sn)
        e.label('LB0')
        I('v_add_u32 v9, 896, v9')
        self.wdma(0, 0, 'c0'); self.wdma(1, 0, 'c1')
        if self.o.get('xb0', 1) == 2: self.xdma(1, 1, 'c1')
        self.vmB = e.vm
        e.vm = []; e.hist = []
        e.label('Lcom')
        self.stamp('is')
        self.init_jobs()
        assert not e.vm
        I(f's_cmp_ge_u32 s{sW}, 4')
        I('s_cbranch_scc1 LB')

    sCx, sCw, sMX, sMW = sT[4], sT[5], sT[6], sT[7]

    sCb = sT[8]
    def adv(self, sc=None):
        I = self.I
        sc = sc or self.sCx
        I(f's_add_u32 s{sc}, s{sc}, 128'); I(f's_cmp_eq_u32 s{sc}, 896'); I(f's_cselect_b32 s{sc}, 0, s{sc}')
    def xdma(self, i, slot, tag):
        I = self.I
        sc = self.sCb
        I(f's_add_u32 m0, s{self.sMX}, {slot*2048}')
        I(f'buffer_load_dwordx4 v10, {srd("x")}, s{sc} offen lds', tag=tag)
        I(f'buffer_load_dwordx4 v11, {srd("x")}, s{sc} offen offset:1024 lds', tag=tag)
        self.adv(sc)
    def wdma(self, i, mat, tag):
        I = self.I
        I(f's_add_u32 m0, s{self.sMW}, {i*4096 + mat*(28672-896)}')
        I(f's_mul_i32 s{self.sCw}, s{self.sCx}, 1344')
        I(f'buffer_load_dwordx4 v9, {srd("wqkv")}, s{self.sCw} offen offset:{mat*896} lds', tag=tag)
        self.adv()

    def halo_addr(self, *a):
        txt = self.capture(lambda: g3.K.halo_addr(self, *a))
        for t in txt: self.I(t.replace(f's_cmp_eq_u32 s{sW}, 7', f's_cmp_eq_u32 s{sW}, 3'))

    def init_jobs(self):
        e, I, L = self.e, self.I, self.L
        t0, t1, t2, t3 = sT[0:4]
        I(f's_and_b32 s{sODD}, s{sL}, 1')
        for i in range(4): I(f'v_mov_b32 v{32+i}, 0x3f803f80')
        I('v_bfe_u32 v28, v1, 2, 2')
        I('v_and_b32 v29, 3, v1')
        I('v_lshl_add_u32 v15, v3, 3, v28')
        I('v_lshlrev_b32 v15, 6, v15')
        I('v_lshl_add_u32 v15, v29, 3, v15')
        I('v_and_b32 v16, 1, v3')
        I('v_lshl_add_u32 v5, v16, 5, v15')
        I('v_xor_b32 v6, 32, v5')
        I('v_lshrrev_b32 v15, 1, v2'); I('v_xor_b32 v15, v15, v3'); I('v_lshlrev_b32 v15, 4, v15')
        I('v_lshl_add_u32 v15, v2, 7, v15')
        I(f'v_add_u32 v12, s{sT[9]}, v15'); I('v_xor_b32 v21, 64, v12')
        I(f'v_add_u32 v44, s{sT[10]}, v15'); I('v_xor_b32 v45, 64, v44')
        self.init2()

    def init_B(self):
        I = self.I
        t0 = sT[0]
        I('ds_write_b64 v28, v[210:211]'); I('ds_write_b64 v28, v[210:211] offset:8')
        I(f's_and_b32 s{t0}, s{sA}, 1'); I(f's_lshl_b32 s{t0}, s{t0}, 5')
        I(f'v_xor_b32 v7, s{t0}, v5')
        I(f's_lshr_b32 s{t0}, s{sA}, 1'); I(f's_lshl_b32 s{t0}, s{t0}, 11'); I(f's_add_u32 s{t0}, s{t0}, 28672')
        I(f'v_add_u32 v7, s{t0}, v7')
        I('v_and_b32 v15, 1, v3'); I('v_mul_u32_u24 v15, 7168, v15'); I('v_mul_u32_u24 v8, 224, v2')
        I(f'v_add_u32 v15, {MISC+208}, v15'); I('v_add_u32 v8, v8, v15')
        I('v_and_b32 v47, 3, v1'); I('v_mul_u32_u24 v47, 3584, v47'); I(f'v_add_u32 v47, {MISC+192}, v47')
        tv = self.o.get('tv', 1)
        if tv:
            t1 = sT[1]
            I('v_mul_u32_u24 v15, 37, v1'); I('v_lshrrev_b32 v15, 8, v15')
            I(f'v_mul_u32_u24 v15, {2688-896}, v15'); I('v_lshl_add_u32 v50, v1, 7, v15')
            I(f's_and_b32 s{t0}, s{sL}, 31'); I(f's_lshl_b32 s{t0}, s{t0}, 1'); I(f's_and_b32 s{t1}, s{sA}, 1'); I(f's_add_u32 s{t0}, s{t0}, s{t1}')
            I(f's_mul_i32 s{t0}, s{t0}, {7*2688}')
            I(f's_cmp_lt_u32 s{sA}, 2'); I(f's_cselect_b32 s{t1}, 0, {-1792 if tv == 2 else BIG}'); I(f's_add_u32 s{t0}, s{t0}, s{t1}'); I(f's_add_u32 s{t0}, s{t0}, 1792')
            I(f'v_add_u32 v50, s{t0}, v50'); I(f'v_mov_b32 v15, {BIG}')
            I('v_cmp_gt_u32 vcc, 49, v1'); I('v_cndmask_b32 v50, v15, v50, vcc')

    def init2(self):
        e, I, L = self.e, self.I, self.L
        t0, t1, t2, t3 = sT[0:4]
        for n in ('wo', 'w1', 'w2', 'w3', 'w4', 'out'): self.build_srd(n)
        I(f's_mul_i32 s{sGB}, s{sG}, {L.GS}')
        I(f's_add_u32 s{sGB}, s{sGB}, {WS_G}')
        I(f's_mov_b32 s{sSPIN}, 0x8000')
        I(f's_mov_b32 s{sC448}, 0x3b124925')
        I(f's_mov_b32 s{sL2E}, 0x3fb8aa3b')
        I(f's_lshl_b32 s{t0}, s{sH}, 4'); I(f's_or_b32 s{t0}, s{t0}, s{sRB}'); I(f's_lshl_b32 s{t0}, s{t0}, 12')
        I(f's_lshl_b32 s{t1}, s{sW}, 9'); I(f's_add_u32 s{t0}, s{t0}, s{t1}'); I(f's_add_u32 s{t0}, s{t0}, {WS_KVP}')
        I('v_lshrrev_b32 v15, 1, v3'); I('v_lshlrev_b32 v15, 8, v15'); I('v_lshl_add_u32 v15, v2, 4, v15')
        I('v_and_b32 v16, 1, v3'); I('v_lshl_add_u32 v15, v16, 3, v15')
        I(f'v_add_u32 v31, s{t0}, v15')
        I('v_lshl_add_u32 v15, v3, 2, v28')
        I(f's_lshl_b32 s{t0}, s{sODD}, 2')
        I(f'v_subrev_u32 v15, s{t0}, v15')
        I('v_mul_i32_i24 v15, 56, v15')
        I(f'v_add_u32 v15, {L_PHI}, v15')
        I('v_lshl_add_u32 v17, v29, 3, v15')
        I('v_add_u32 v16, 4, v29'); I('v_min_u32 v16, 6, v16')
        I('v_lshl_add_u32 v18, v16, 3, v15')
        I('v_add_u32 v19, 896, v17'); I('v_add_u32 v20, 896, v18')
        I('v_cmp_ne_u32 vcc, 3, v3')
        I('v_cndmask_b32 v22, 0, 1.0, vcc')
        I('v_mul_u32_u24 v16, 224, v2')
        I('v_xor_b32 v15, v28, v3')
        I('v_lshl_add_u32 v15, v15, 3, v16')
        I(f's_mul_i32 s{t0}, s{sA}, 3584'); I(f's_add_u32 s{t0}, s{t0}, {MISC}')
        I(f'v_add_u32 v23, s{t0}, v15'); I(f'v_add_u32 v46, s{sT[10]}, v15')
        I(f's_add_u32 s{t0}, s{t0}, 192'); I(f'v_add_u32 v28, s{t0}, v16')
        I('v_lshrrev_b32 v15, 2, v1')
        I('v_mul_u32_u24 v15, 224, v15')
        I('v_xor_b32 v16, v29, v3')
        I('v_lshl_add_u32 v15, v16, 3, v15')
        I(f's_lshr_b32 s{t0}, s{sW}, 1'); I(f's_lshl_b32 s{t0}, s{t0}, 5'); I(f's_add_u32 s{t0}, s{t0}, {MISC}')
        I(f'v_add_u32 v24, s{t0}, v15')
        I(f's_and_b32 s{t0}, s{sW}, 1'); I(f's_lshl_b32 s{t0}, s{t0}, 5'); I(f's_add_u32 s{t0}, s{t0}, {MISC+128}')
        I(f'v_add_u32 v25, s{t0}, v15')
        I(f'v_subrev_u32 v26, {MISC-RB}, v24'); I(f'v_subrev_u32 v27, {MISC-RB}, v25')
        I(f's_lshr_b32 s{t0}, s{sW}, 2')
        I(f'v_cmp_ge_u32 vcc, s{t0}, v3'); I('v_mov_b32 v15, 0xbb124925')
        I('v_cndmask_b32 v29, 0, v15, vcc')
        I('v_lshlrev_b32 v15, 2, v3'); I('v_sub_u32 v15, v2, v15')
        for r in range(4):
            I(f'v_cmp_eq_u32 vcc, {r}, v15'); I(f'v_cndmask_b32 v{252+r}, 0, 1.0, vcc')
        AX, BX = 208, 224
        for t in range(4): I(f'v_mov_b32 v{AX+4*t+2}, 0'); I(f'v_mov_b32 v{AX+4*t+3}, 0')
        I(f'v_mov_b32 v{BX+2}, 0'); I(f'v_mov_b32 v{BX+3}, 0')
        I(f's_cmp_eq_u32 s{sODD}, 1')
        I(f's_cselect_b32 s{sM0}, 0xffff, 0'); I(f's_mov_b32 s{sM0+1}, 0')
        I(f's_cselect_b32 s{sM1+1}, 0, 0xffff0000'); I(f's_mov_b32 s{sM1}, 0')

    def init_A(self):
        I, L = self.I, self.L
        t0, t1, t2, t3 = sT[0:4]
        I('v_lshrrev_b32 v47, 3, v1'); I('v_mul_u32_u24 v47, 896, v47')
        I('v_bfe_u32 v15, v1, 4, 1'); I('v_lshlrev_b32 v15, 1, v15')
        I('v_and_b32 v16, 7, v1'); I('v_xor_b32 v15, v15, v16')
        I('v_lshl_add_u32 v47, v15, 4, v47')
        I(f's_lshl_b32 s{t0}, s{sJ}, 7'); I(f's_cmp_eq_u32 s{sJ}, 7'); I(f's_cselect_b32 s{t0}, {BIG}, s{t0}')
        I(f'v_add_u32 v47, s{t0}, v47')
        if True:
            I(f's_lshl_b32 s{t0}, 1, s{sH}'); I(f's_sub_u32 s{t1}, s{t0}, 1'); I(f's_and_b32 s{t1}, s{t1}, {NONSTR}')
            I(f's_bcnt1_i32_b32 s{t1}, s{t1}')
            I(f's_and_b32 s{t2}, s{sRB}, 1'); I(f's_mul_i32 s{t2}, s{t2}, 10'); I(f's_add_u32 s{t1}, s{t1}, s{t2}')
            I(f's_lshl_b32 s{t1}, s{t1}, 2'); I(f's_add_u32 s{t1}, s{t1}, s{sA}'); I(f's_mul_i32 s{t1}, s{t1}, 40')
            I(f's_and_b32 s{t0}, s{t0}, {NONSTR}')
            I(f's_cselect_b32 s{t2}, 40, 0')
            I(f'v_add_u32 v15, s{t1}, v1')
            I('v_lshlrev_b32 v50, 7, v15')
            I('v_lshlrev_b32 v51, 9, v15')
            I(f'v_mov_b32 v16, {BIG}')
            I(f'v_cmp_gt_u32 vcc, s{t2}, v1')
            I('v_cndmask_b32 v50, v16, v50, vcc'); I('v_cndmask_b32 v51, v16, v51, vcc')
            I(f's_lshl_b32 s{t0}, s{sJ}, 2'); I(f's_add_u32 s{t0}, s{t0}, s{sA}')
            I(f's_mul_i32 s{t1}, s{t0}, {14*128}'); I(f's_mul_i32 s{t2}, s{t0}, 384'); I(f's_min_u32 s{t2}, s{t2}, {69*128}')
            I(f's_add_u32 s{t2}, s{t2}, {L.FLG}')
            I('v_min_u32 v15, 13, v2'); I('v_lshlrev_b32 v15, 7, v15'); I(f'v_add_u32 v15, s{t1}, v15')
            I('v_and_b32 v16, 1, v3'); I(f'v_mul_u32_u24 v16, {AS}, v16'); I('v_add_u32 v15, v15, v16')
            I('v_min_u32 v16, 2, v2'); I('v_lshlrev_b32 v16, 7, v16'); I(f'v_add_u32 v16, s{t2}, v16')
            I('v_cmp_gt_u32 vcc, 32, v1'); I('v_cndmask_b32 v0, v16, v15, vcc')

    def get_tag(self):
        I = self.I
        I(f'v_readfirstlane_b32 s{sTAG}, v14')
        I(f's_add_u32 s{sTAG}, s{sTAG}, 0x9E3779B9')
        I(f's_andn2_b32 s{sTAG}, s{sTAG}, 15')
        I(f's_getreg_b32 s{sMODE}, hwreg(HW_REG_XCC_ID)')
        I(f's_and_b32 s{sMODE}, s{sMODE}, 15')
        I(f's_or_b32 s{sMODE}, s{sMODE}, s{sTAG}')

    def phi_frags(self):
        I = self.I
        I('ds_read_b64_tr_b16 v[36:37], v17'); I('ds_read_b64_tr_b16 v[38:39], v19')
        I('ds_read_b64_tr_b16 v[40:41], v18'); I('ds_read_b64_tr_b16 v[42:43], v20')
    def phi_mask(self):
        I = self.I
        for r in (36, 37, 40, 41): I(f'v_cndmask_b32 v{r}, v{r}, v13, s[{sM0}:{sM0+1}]')
        for r in (38, 39, 42, 43): I(f'v_cndmask_b32 v{r}, v{r}, v13, s[{sM1}:{sM1+1}]')

    X, AR, CF, CSA, AX, BX, T = 76, 132, 196, 204, 208, 224, 228
    def xread(self, i, slot):
        for ee in range(2):
            self.I(f'ds_read_b128 {vr(self.X+4*(2*i+ee),4)}, v{(12,21)[ee]} offset:{slot*2048}', tag=f'xr{i}')
    def wread(self, m):
        for ti in range(4):
            b = self.AR + 16*(m & 3) + 4*ti
            off = (ti >> 1)*28672 + m*2048
            self.I(f'ds_read_b64_tr_b16 {vr(b,2)}, v{5+(ti&1)} offset:{off}')
            self.I(f'ds_read_b64_tr_b16 {vr(b+2,2)}, v{5+(ti&1)} offset:{off+256}')
    def kstep(self, m):
        I = self.I
        xb = vr(self.X+4*m, 4)
        z = m == 0
        I(f'{MF16} v[72:75], {xb}, {xb}, ' + ('0' if z else 'v[72:75]'))
        I(f'{MF16} v[68:71], v[32:35], {xb}, ' + ('0' if z else 'v[68:71]'))
        for ti in range(4):
            acc = vr(52 + 4*ti, 4)
            I(f'{MF16} {acc}, {vr(self.AR+16*(m&3)+4*ti,4)}, {xb}, ' + ('0' if z else acc))

    def post_kv(self, B):
        e, I = self.e, self.I
        AX, BX, T = self.AX, self.BX, self.T
        ACCK, ACCV = 52, 60
        I(f'v_mul_f32 v{T}, v68, v29')
        self.split_b(T, BX, T+1)
        for i in range(4): I(f'v_mul_f32 v{72+i}, v{72+i}, v{252+i}')
        for ti in range(4):
            acc = vr(ACCK + 4*ti, 4)
            I(f'{MF16} {acc}, {vr(AX+4*ti,4)}, {vr(BX,4)}, {acc}')
        I('v_add_f32 v72, v72, v73'); I('v_add_f32 v74, v74, v75')
        I('v_add_f32 v72, v72, v74')
        I('v_mov_b32 v73, v72')
        I('v_permlane32_swap_b32 v72, v73'); I('v_add_f32 v72, v72, v73'); I('v_mov_b32 v73, v72')
        I('v_permlane16_swap_b32 v72, v73'); I('v_add_f32 v72, v72, v73')
        self.cvt(T+4, ACCK, 8)
        I(f'{MF16} v[52:55], v[36:39], {vr(T+4,4)}, 0')
        I(f'{MF16} v[56:59], v[40:43], {vr(T+4,4)}, 0')
        I(f'v_mul_f32 v73, s{sC448}, v68')
        I('v_mul_f32 v74, v73, v73')
        I(f'v_fma_f32 v74, v72, s{sC448}, -v74')
        I('v_add_f32 v74, 0x3727c5ac, v74')
        I('v_rsq_f32 v70, v74')
        I(f'v_mul_f32 v30, s{sL2E}, v70')
        if B:
            for i in range(0, 8, 2):
                I(f'v_pk_mul_f32 {vr(ACCV+i,2)}, {vr(ACCV+i,2)}, v[70:71] op_sel_hi:[1,0]')
        else:
            for i in range(8): I(f'v_mul_f32 v{ACCV+i}, v{ACCV+i}, v70')
        I(f'v_cndmask_b32 v60, v60, 1.0, s[{sM0}:{sM0+1}]')
        I(f'v_cndmask_b32 v64, v64, 1.0, s[{sM1}:{sM1+1}]')
        self.cvt(72, ACCV, 8)
        I('ds_write_b64 v23, v[72:73] offset:128')
        I('ds_write_b64 v23, v[74:75] offset:160')
        PH = 60
        (self.softmax2 if B else self.softmax2s)(52, PH, T, 22, 30)
        for t in range(4):
            I(f'ds_write_b64 v23, {vr(PH+2*t,2)} offset:{t*32}')

    def sq_src(self):
        I = self.I
        t0 = sT[0]
        I('v_lshrrev_b32 v11, 3, v1'); I(f's_lshl_b32 s{t0}, s{sA}, 3'); I(f'v_add_u32 v11, s{t0}, v11')
        I('v_mul_u32_u24 v11, 896, v11')
        I('v_bfe_u32 v15, v1, 4, 1'); I('v_lshlrev_b32 v15, 1, v15')
        I(f's_and_b32 s{t0}, s{sA}, 1'); I(f's_lshl_b32 s{t0}, s{t0}, 2')
        I('v_and_b32 v16, 7, v1'); I('v_xor_b32 v15, v15, v16'); I(f'v_xor_b32 v15, s{t0}, v15')
        I('v_lshl_add_u32 v11, v15, 4, v11')
        I(f's_lshl_b32 s{t0}, s{sJ}, 7'); I(f's_cmp_eq_u32 s{sJ}, 7'); I(f's_cselect_b32 s{t0}, {BIG}, s{t0}')
        I(f'v_add_u32 v11, s{t0}, v11')
    def sq_dma(self, name, region, m, tag):
        I = self.I
        t1 = self.sCw
        I(f's_add_u32 m0, s{self.sMW}, {region + m*4096}')
        I(f's_mov_b32 s{t1}, {m*32*896}')
        I(f'buffer_load_dwordx4 v11, {srd(name)}, s{t1} offen lds', tag=tag)

    def pre_b3(self, B):
        I = self.I
        t0, t1, t2 = sT[0:3]
        self.sq_src()
        I(f's_lshl_b32 s{t0}, s{sRB}, 4')
        I(f'v_add_u32 v15, s{t0}, v2')
        I('v_lshlrev_b32 v16, 4, v2'); I(f'v_add_u32 v16, s{sH}, v16')
        I('v_cmp_eq_u32 vcc, 1, v3')
        I('v_cndmask_b32 v15, v15, v16, vcc')
        I('v_and_b32 v16, 8, v2'); I('v_lshlrev_b32 v16, 1, v16')
        I('v_and_b32 v17, 7, v2'); I('v_add_u32 v16, v16, v17')
        I(f's_lshl_b32 s{t0}, s{sG}, 3'); I(f's_sub_u32 s{t0}, s{t0}, 8')
        I(f'v_add_u32 v16, s{t0}, v16'); I('v_and_b32 v16, 255, v16')
        I('v_cmp_eq_u32 vcc, 2, v3')
        I('v_cndmask_b32 v15, v15, v16, vcc')
        I('v_lshlrev_b32 v14, 6, v15'); I(f'v_add_u32 v14, {WS_HELLO}, v14')

    def kv_pub(self, B):
        e, I = self.e, self.I
        t0, t1, t2 = sT[0:3]
        KA, KB = 132, 148
        for ks in range(4):
            a, b = (24, 25) if ks < 2 else (26, 27)
            st = 3584 if ks < 2 else 14336
            for ee in range(2):
                I(f'ds_read_b64_tr_b16 {vr(KA+4*ks+2*ee,2)}, v{a} offset:{((2*ks+ee)&3)*st}')
            for ee in range(2):
                I(f'ds_read_b64_tr_b16 {vr(KB+4*ks+2*ee,2)}, v{b} offset:{((2*ks+ee)&3)*st}')
        I('v_lshrrev_b32 v15, 1, v3'); I(f'v_mul_u32_u24 v15, 7168, v15'); I(f'v_add_u32 v15, {RXA}, v15')
        I('v_add_u32 v5, v5, v15'); I('v_add_u32 v6, v6, v15')
        for ks in range(4):
            I(f'{MF16} v[52:55], {vr(KA+4*ks,4)}, {vr(KB+4*ks,4)}, ' + ('0' if ks == 0 else 'v[52:55]'))
        I(f's_and_b32 s{t0}, s{sW}, 1'); I(f's_lshl_b32 s{t1}, s{t0}, 5')
        I(f'v_xor_b32 v7, s{t1}, v5')
        I(f's_lshr_b32 s{t1}, s{sA}, 1'); I(f's_lshl_b32 s{t2}, s{t1}, 14')
        I(f'v_add_u32 v7, s{t2}, v7')
        self.cvt(56, 52, 4)
        I(f'buffer_store_dwordx2 v[56:57], v31, {WS}, 0 offen sc1')
        self.stamp(4)
        I(f's_lshl_b32 s{t0}, s{t0}, 9'); I(f's_lshr_b32 s{t1}, s{sW}, 1'); I(f's_lshl_b32 s{t1}, s{t1}, 7'); I(f's_add_u32 s{t0}, s{t0}, s{t1}')
        I(f's_add_u32 s{t0}, s{t0}, {L_CSQ}')
        I(f'v_lshlrev_b32 v8, 3, v2'); I(f'v_add_u32 v8, s{t0}, v8')

    def q_phase(self, B, fill):
        e, I = self.e, self.I
        X, CF, CSA, AX, BX, T = self.X, self.CF, self.CSA, self.AX, self.BX, self.T
        QC = 164
        ci = [4, 5, 6] if B else [0, 1, 2, 3]
        QR = [132, 140, 148, 156, 180, 188]
        def qread(m):
            for t in range(2):
                b = QR[m % 6] + 4*t
                off = (m & 1)*16384 + (m >> 1)*1024
                I(f'ds_read_b64_tr_b16 {vr(b,2)}, v{5+t} offset:{off}')
                I(f'ds_read_b64_tr_b16 {vr(b+2,2)}, v{5+t} offset:{off+256}')
        for n, i in enumerate(ci):
            I(f'ds_read_b64_tr_b16 {vr(QC+4*n,2)}, v7 offset:{i*1024}')
            I(f'ds_read_b64_tr_b16 {vr(QC+4*n+2,2)}, v7 offset:{i*1024+256}')
        qread(0); qread(1); qread(2)
        I(f'v_mul_f32 v{T}, 0xbb124925, v68')
        self.split_b(T, BX, T+1)
        I('v_lshlrev_b32 v28, 3, v1'); I(f'v_add_u32 v28, {L_CSQ}, v28')
        for n in range(len(ci)):
            I(f'{MF16} {vr(CSA,4)}, v[32:35], {vr(QC+4*n,4)}, ' + ('0' if n == 0 else vr(CSA, 4)))
        qread(3); qread(4)
        fill = list(fill)
        vf = self.capture(lambda: (self.o_addr(), self.sel_mat(self.SEL, 15)))
        per = (len(vf) + 27) // 28
        for m in range(14):
            if m + 5 < 14: qread(m + 5)
            for t in range(2):
                acc = vr(44 + 4*t, 4)
                I(f'{MF16} {acc}, {vr(QR[m%6]+4*t,4)}, {vr(X+4*m,4)}, ' + ('0' if m == 0 else acc))
                for _ in range(per):
                    if vf: I(vf.pop(0))
                while vf and ('cselect' in vf[0] or 'vcc' in vf[0].split(',')[-1]): I(vf.pop(0))
            if m == 1:
                self.split_a(CSA, CF, CF+2)
                I(f'ds_write_b64 v8, {vr(CF,2)}')
            if fill: fill.pop(0)()
        for f in fill: f()

    def hello_chk(self):
        I = self.I
        ld = f'buffer_load_dword v0, v14, {WS}, 0 offen sc1'
        def chk():
            I('v_and_b32 v17, -16, v0')
            I(f'v_cmp_ne_u32 vcc, s{sTAG}, v17')
        self.poll2([ld], chk, 'hello')
        I(f'v_cmp_ne_u32 vcc, s{sMODE}, v0')
        I(f's_and_b32 s{sMODE}, vcc_lo, 0xffff')
        if self.force_slow: I(f's_mov_b32 s{sMODE}, 1')
        self.stamp(5)

    G, SEL, GAC = 76, 252, 144
    def gather_loads(self):
        return [f'buffer_load_dwordx4 {vr(self.G+4*p,4)}, v{200 + (p & 1)}, {WS}, s{sT[8+(p>>1)]} offen sc1' for p in range(8)]

    def o_addr(self):
        I, L = self.I, self.L
        t0, t1, t2 = sT[0:3]
        I(f'v_add_u32 v23, {L_KVR}, v4')
        I(f's_cmp_eq_u32 s{sODD}, 1')
        I(f's_cselect_b32 s{t0}, 0, {1024+12*16}'); I(f's_add_u32 s{t0}, s{t0}, {L_KVR}')
        I('v_lshlrev_b32 v24, 8, v3'); I(f'v_add_u32 v24, s{t0}, v24')
        I(f's_lshr_b32 s{t0}, s{sW}, 2'); I(f's_lshl_b32 s{t0}, s{t0}, 11'); I(f's_and_b32 s{t1}, s{sW}, 1'); I(f's_lshl_b32 s{t1}, s{t1}, 10')
        I(f's_add_u32 s{t0}, s{t0}, s{t1}'); I(f's_and_b32 s{t1}, s{sW}, 2'); I(f's_lshl_b32 s{t1}, s{t1}, 2'); I(f's_add_u32 s{t0}, s{t0}, s{t1}')
        I(f'v_add_u32 v25, s{t0}, v23')
        I(f's_mul_i32 s{t0}, s{sH}, 7'); I(f's_lshr_b32 s{t0}, s{t0}, 1')
        I('v_and_b32 v18, 1, v3'); I('v_lshrrev_b32 v19, 1, v3'); I('v_lshl_add_u32 v26, v18, 1, v19')
        I(f'v_add_u32 v18, s{t0}, v26')
        I('v_lshlrev_b32 v18, 8, v18'); I('v_lshl_add_u32 v18, v2, 4, v18')
        sOG = sX0
        I(f's_lshl_b32 s{t1}, s{sRB}, 1'); I(f's_lshr_b32 s{t2}, s{sW}, 2'); I(f's_add_u32 s{t1}, s{t1}, s{t2}')
        I(f's_mul_i32 s{sOG}, s{t1}, {L.GS}'); I(f's_add_u32 s{sOG}, s{sOG}, {WS_G}')
        I(f's_mul_i32 s{t0}, s{sA}, {TILE}'); I(f's_add_u32 s{t0}, s{t0}, {L.O}')
        I(f'v_add_u32 v18, s{t0}, v18')
        I('v_add_u32 v19, 8, v18')
        I(f'v_mov_b32 v20, {BIG}')
        I(f'v_cndmask_b32 v18, v18, v20, s[{sM0}:{sM0+1}]')
        I(f'v_cndmask_b32 v19, v19, v20, s[{sM1}:{sM1+1}]')
        I('v_cmp_eq_u32 vcc, 0, v1'); I('v_cndmask_b32 v21, v20, v13, vcc')
        I(f's_lshl_b32 s{t0}, s{sA}, 6'); I(f's_lshl_b32 s{t1}, s{sH}, 2'); I(f's_add_u32 s{t0}, s{t0}, s{t1}')
        I(f's_add_u32 s{t0}, s{t0}, {L.F_O}'); I(f's_add_u32 s{sX1}, s{t0}, s{sOG}')
        I(f'v_mov_b32 v27, s{sTAG}')

    def tail_p1(self, B, burst2, shadow):
        e, I = self.e, self.I
        AX, BX, T = self.AX, self.BX, self.T
        t0, t1 = sT[0:2]
        e.wait_lg0(); self.bar(3)
        self.kv_pub(B)
        if B: self.pre_b3(B)
        I(f'buffer_load_dword v0, v14, {WS}, 0 offen sc1')
        if not B: self.touches('t3')
        fill = [(lambda m=m: self.sq_dma('wo', RA, m, 'wo')) for m in range(B, 14, 2)]
        for _ in range(self.o.get('wo0', 3)): fill.pop(0)()
        I(f's_lshl_b32 s{t0}, s{sW}, 9'); I(f's_lshl_b32 s{t1}, s{sH}, 16'); I(f's_add_u32 s{t0}, s{t0}, s{t1}')
        I(f's_add_u32 s{t0}, s{t0}, {WS_KVP}')
        I('v_and_b32 v15, 31, v1'); I('v_lshlrev_b32 v15, 4, v15'); I('v_lshrrev_b32 v16, 5, v1')
        I('v_lshl_add_u32 v15, v16, 15, v15'); I(f'v_add_u32 v200, s{t0}, v15')
        I('v_add_u32 v201, 4096, v200')
        if not B: e.wait_tag('wq')
        self.bar('3q')
        if not B: fill += [(lambda i=i: self.w1p(i)) for i in list(range(4)) + list(range(self.nw1, 14))]
        elif self.o.get('fsp', 1): fill = [f for x in fill for f in (x, lambda: None)]
        self.q_phase(B, fill)
        I(f's_and_b32 s{t0}, s{sRB}, {self.o.get("grot", 1)}'); I(f's_lshl_b32 s{t0}, s{t0}, 14')
        for p in range(4): I(f's_xor_b32 s{sT[8+p]}, s{t0}, {p*8192}')
        self.hello_chk()
        loads = self.gather_loads()
        for t in loads: I(t)
        if not B: self.touches('t4')
        e.wait_lg0(); self.bar('3b')
        for t in range(2): I(f'ds_read_b64 {vr(AX+4*t,2)}, v28 offset:{t*512}')
        burst2()
        for t in range(2):
            acc = vr(44 + 4*t, 4)
            I(f'{MF16} {acc}, {vr(AX+4*t,4)}, {vr(BX,4)}, {acc}')
        self.cvt(T+4, 44, 8)
        I(f'{MF16} v[44:47], v[36:39], {vr(T+4,4)}, 0')
        I(f'{MF16} v[48:51], v[40:43], {vr(T+4,4)}, 0')
        shadow()
        self.softmax2(44, 60, T, 22, 30)
        self.stamp(6)
        AC = self.GAC
        def chk3():
            for p in range(8):
                I(f'{MF16} {vr(AC,4)}, {vr(self.SEL,4)}, {vr(self.G+4*p,4)}, ' + ('0' if p == 0 else vr(AC, 4)))
            I(f'v_cmp_u_f32 vcc, v{AC}, v{AC}')
        self.poll2(loads, chk3, 'kvg')
        self.stamp(7)
        self.cvt(152, AC, 4)
        I('ds_write_b64 v25, v[152:153]')
        e.wait_lg0(); self.bar()
        self.o_phase()

    def capture(self, fn):
        out = []
        self.I = lambda t, **k: out.append(t)
        try: fn()
        finally: del self.I
        return out

    def poll2(self, loads, check, name):
        e = self.e
        done, retry = e.newlabel('Lpd' + name), e.newlabel('Lpr' + name)
        check()
        self.I(f's_cbranch_vccnz {retry}')
        e.label(done)
        sn = e.snap()
        save = e.out; e.out = []
        e.label(retry)
        e.wait_vm0()
        for t in loads: self.I(t)
        check()
        self.I(f's_cbranch_vccz {done}')
        self.I(f's_sub_u32 s{sSPIN}, s{sSPIN}, 1')
        self.I(f's_cbranch_scc0 {retry}')
        self.I(f's_mov_b32 s{sSPIN}, 0')
        self.I(f's_branch {done}')
        e.ool += e.out; e.out = save
        e.restore(sn)

    def poll3(self, loads, check, name):
        e = self.e
        top, done = e.newlabel('Lpoll' + name), e.newlabel('Lpd' + name)
        e.label(top)
        for t in loads: self.I(t)
        e.wait_vm0()
        check()
        self.I(f's_cbranch_vccz {done}')
        self.I(f's_sub_u32 s{sSPIN}, s{sSPIN}, 1')
        self.I(f's_cbranch_scc0 {top}')
        self.I(f's_mov_b32 s{sSPIN}, 0')
        e.label(done)

    def o_flag(self, tag=None):
        if tag: self.e.wait_tag(tag)
        else: self.e.wait_vm0()
        self.stores([f'buffer_store_dword v27, v21, {WS}, s{sX1} offen'])
        self.stamp(9)

    def mix(self, mf, other, lead=0):
        other = list(other)
        def run(x): x() if callable(x) else self.I(*x) if isinstance(x, tuple) else self.I(x)
        for _ in range(lead):
            if other: run(other.pop(0))
        n = len(other); done = 0
        for k, t in enumerate(mf):
            self.I(t)
            want = -(-n * (k + 1) // max(1, len(mf) - 1))
            while done < min(n, want): run(other[done]); done += 1
        while done < n: run(other[done]); done += 1
    def lpoll(self, reads, check, name):
        e = self.e
        done, retry = e.newlabel('Lld' + name), e.newlabel('Llr' + name)
        check()
        self.I(f's_cbranch_vccnz {retry}')
        e.label(done)
        sn = e.snap()
        save = e.out; e.out = []
        e.label(retry)
        e.wait_lg0()
        for t in reads: self.I(t)
        e.wait_lg0()
        check()
        self.I(f's_cbranch_vccz {done}')
        self.I(f's_sub_u32 s{sSPIN}, s{sSPIN}, 1')
        self.I(f's_cbranch_scc0 {retry}')
        self.I(f's_mov_b32 s{sSPIN}, 0')
        self.I(f's_branch {done}')
        e.ool += e.out; e.out = save
        e.restore(sn)
    def xrd(self, dst, m, ring, tag=None):
        va = ((12, 21), (44, 45))[ring][m & 1]
        slot = (m >> 1) if ring else (m >> 1) & 3
        return (f'ds_read_b128 {vr(dst,4)}, v{va} offset:{slot*2048}', tag)
    def wrd(self, dst, m, mat):
        return [f'ds_read_b64_tr_b16 {vr(dst+2*n,2)}, v{5+(n>>1)} offset:{mat*28672 + m*2048 + (n&1)*256}' for n in range(4)]
    def hello(self):
        I = self.I
        t0 = sT[0]
        I(f'v_mov_b32 v15, s{sMODE}')
        I(f's_lshl_b32 s{t0}, s{sL}, 6'); I(f's_add_u32 s{t0}, s{t0}, {WS_HELLO}')
        I(f's_cmp_eq_u32 s{sW}, 0'); I(f's_cselect_b32 s{t0}, s{t0}, {BIG}')
        I(f'v_mov_b32 v16, s{t0}')
        I(f'buffer_store_dword v15, v16, {WS}, 0 offen sc1')

    def p1_A(self, burst2, shadow):
        e, I = self.e, self.I
        X, AX = self.X, self.AX
        e.vm = self.vmA
        self.init_A()
        self.stamp('su')
        if self.o.get('x0', 2) < 2: self.xdma(1, 1, 'c1')
        I('s_setprio 1')
        WR, X2 = 132, 164
        def kreads(m):
            return [self.xrd(X + 4*m, m, 0, f'xr{m>>1}'), self.xrd(X2 + 4*(m % 3), m, 1)] + self.wrd(WR + 8*(m & 3), m, 0)
        def kstep(m):
            xa, xb = vr(X + 4*m, 4), vr(X2 + 4*(m % 3), 4)
            w = [vr(WR + 8*(m & 3) + 4*t, 4) for t in range(2)]
            ops = [(68, 'v[32:35]', xa), (72, 'v[32:35]', xb), (196, 'v[32:35]', w[0]), (200, 'v[32:35]', w[1]),
                   (52, w[0], xa), (60, w[0], xb), (56, w[1], xa), (64, w[1], xb)]
            return [f'{MF16} {vr(c,4)}, {p}, {q}, ' + ('0' if m == 0 else vr(c, 4)) for c, p, q in ops]
        e.wait_tag('c0'); self.bar('c0')
        self.mix([], kreads(0))
        self.xdma(2, 2, 'c2')
        for m in range(14):
            i = m >> 1
            if m & 1 and i < 6:
                e.wait_tag(f'xr{i}'); e.wait_tag('nw'); e.wait_tag(f'c{i+1}'); self.bar(f'c{i+1}')
            self.mix(kstep(m), kreads(m + 1) if m < 13 else [], 2)
            if not m & 1 and i + 3 < 7: self.xdma(i + 3, (i + 3) & 3, f'c{i+3}')
            if m == 5: I('ds_write_b32 v28, v14 offset:24', tag='nw')
            if m == 8: self.phi_frags(); self.tag_read()
            if m == 10: self.phi_mask(); self.get_tag()
        self.stamp(2)
        if not self.o.get('aprio', 1): I('s_setprio 0')
        def wq(i):
            I(f's_mul_i32 s{self.sCw}, s{self.sCx}, 1344')
            I(f's_add_u32 m0, s{self.sMX}, {i*1024}')
            I(f'buffer_load_dwordx4 v9, {srd("wqkv")}, s{self.sCw} offen lds', tag='wq')
            self.adv()
        def touch(ch):
            if ch in 'o12': I(f'buffer_load_dword v12, v218, {srd("wo" if ch == "o" else "w"+ch)}, 0 offen')
            if ch in '34bc': I(f'buffer_load_dword v12, v219, {srd("w3")}, 0 offen offset:{128*"34bc".index(ch)}')
            if ch == 'g': I(f'buffer_load_dword v12, v0, {WS}, s{sGB} offen sc1')
            e.vm[-1]['dst'] = set()
        def touches(key):
            for ch in self.o.get(key, '-'):
                if ch != '-': touch(ch)
        def w1p(i):
            I(f's_add_u32 m0, s{sT[10]}, {i*1024}')
            I(f's_add_u32 s{self.sCw}, s{sT[9]}, {i*7168}')
            I(f'buffer_load_dwordx4 v{216+(i&1)}, {srd("w1")}, s{self.sCw} offen lds', tag='w1')
        self.w1p = w1p
        BXS = [224, 216]
        for n in range(2):
            I(f'v_mul_f32 v{228+2*n}, v{68+4*n}, v29')
        la = [self.capture(lambda n=n: self.split_b(228+2*n, BXS[n], 229+2*n)) for n in range(2)]
        la += [self.capture(lambda n=n: self.split_a(196+4*n, AX+4*n, 197+4*n)) for n in range(2)]
        for r in zip(*la):
            for t in r: I(t)
        srd_ = 'ds_read_b64 v[48:49], v28 offset:8'
        for n in range(2):
            for t in range(2):
                acc = vr(52 + 8*n + 4*t, 4)
                I(f'{MF16} {acc}, {vr(AX+4*t,4)}, {vr(BXS[n],4)}, {acc}')
        KC = [204, 220]
        for n in range(2):
            self.cvt(KC[n], 52 + 8*n, 8)
            for t in range(2): I(f'{MF16} {vr(52+8*n+4*t,4)}, {vr(36+4*t,4)}, {vr(KC[n],4)}, 0')
        I(srd_)
        I('v_mov_b32 v216, v47'); I('v_xor_b32 v217, 64, v47'); I('v_mov_b32 v218, v50'); I('v_mov_b32 v219, v51')
        I(f's_mul_i32 s{sT[9]}, s{sA}, {14*7168}')
        pkA = self.o.get('pka', 0)
        smf = self.softmax2 if pkA else self.softmax2s
        sm = [self.capture(lambda n=n: (smf(52 + 8*n, 132 + 8*n, (228, 172)[n], 22, (48, 148 if pkA else 49)[n]),
                  [self.I(f'ds_write_b64 v{(23,46)[n]}, {vr(132+8*n+2*t,2)} offset:{t*32}') for t in range(4)])) for n in range(2)]
        pk = [t for r in zip(*sm) for t in r]
        if self.o.get('nosm'): pk = pk[:34] + pk[-8:]
        first = min(n for n, t in enumerate(pk) if t.endswith('v48') or 'v[48:49]' in t)
        qd = self.o.get('qd', 10)
        jobs = []; nq = 0; self.nw1 = 4
        for ch in self.o.get('kj', 'hgqqqqqqqwwwwwwwwww'):
            if ch == 'h': jobs.append(self.hello)
            elif ch == 'q': jobs.append(lambda i=nq: wq(i)); nq += 1
            elif ch == 'w': jobs.append(lambda i=self.nw1: w1p(i)); self.nw1 += 1
            else: jobs.append(lambda ch=ch: touch(ch))
        assert nq == 7 and 'h' in self.o.get('kj', 'h')
        for n, t in enumerate(pk):
            if n == first:
                self.lpoll([srd_], lambda: I('v_cmp_eq_u32 vcc, 0, v49'), 'sc')
                self.stamp('k1')
                if pkA: I('v_mov_b32 v148, v49')
            if n >= first + self.o.get('q0', 0) and (n - first) % qd == 0 and jobs: jobs.pop(0)()
            I(t)
        self.stamp('k2')
        for f in jobs: f()
        I('v_mov_b32 v30, v48')
        I('s_setprio 0')
        self.touches = touches
        self.pre_b3(False)
        self.stamp('sa')
        self.tail_p1(False, burst2, shadow)

    def tag_read(self):
        self.I(f'v_mov_b32 v14, {MISC + 2*3584 + 192 + 24}')
        self.I('ds_read_b32 v14, v14')

    def p1_B(self, burst2, shadow):
        e, I = self.e, self.I
        X, AX = self.X, self.AX
        X2, WR, CF, CSA = 132, 228, 196, 220
        e.vm = self.vmB
        self.init_B()
        self.stamp('su')
        if self.o.get('xb0', 1) < 2: self.xdma(1, 1, 'c1')
        tch = f'buffer_load_dword v51, v50, {srd("wqkv")}, 0 offen'
        tp = self.o.get('tvp', -1) if self.o.get('tv', 1) else 99
        if tp < 0: I(tch)
        e.wait_lg0()
        grp = [0, 0, 0, 1, 1, 2, 2]
        vs = [int(ch) for ch in self.o.get('vs', '5555666')]
        XT = [X2, X]; RS = [188, 68]; XX = [192, 72]
        for i in range(7):
            e.wait_tag(f'c{i}'); self.bar(f'c{i}')
            for m in (2*i, 2*i + 1):
                for n in range(2): I(*self.xrd(XT[n] + 4*m, m, n))
            dm = []
            if i + 2 < 7: dm += [lambda i=i: self.wdma(i + 2, 0, f'c{i+2}'), lambda i=i: self.xdma(i + 2, i + 2, f'c{i+2}')]
            if tp == i: dm.append(tch)
            dm += [lambda c=c: self.wdma(c, 1, f'v{grp[c]}') for c in range(7) if vs[c] == i]
            mf = []
            for m in (2*i, 2*i + 1):
                for n in range(2):
                    x = vr(XT[n] + 4*m, 4)
                    mf.append(f'{MF16} {vr(XX[n],4)}, {x}, {x}, ' + ('0' if m == 0 else vr(XX[n], 4)))
                    mf.append(f'{MF16} {vr(RS[n],4)}, v[32:35], {x}, ' + ('0' if m == 0 else vr(RS[n], 4)))
            self.mix(mf, dm, self.o.get('dlead', 2))
            if i == 4: self.phi_frags(); self.tag_read()
            if i == 5: self.phi_mask(); self.get_tag()
        self.stamp(2)
        BXS = [216, 224]
        def stats():
            I = self.I
            for n in range(2):
                for r in range(4): I(f'v_mul_f32 v{XX[n]+r}, v{XX[n]+r}, v{252+r}')
            for n in range(2):
                x = XX[n]
                I(f'v_add_f32 v{x}, v{x}, v{x+1}'); I(f'v_add_f32 v{x+2}, v{x+2}, v{x+3}')
                I(f'v_mul_f32 v{x+1}, s{sC448}, v{RS[n]}')
            for n in range(2): I(f'v_add_f32 v{XX[n]}, v{XX[n]}, v{XX[n]+2}')
            for n in range(2): I(f'v_mul_f32 v{XX[n]+1}, v{XX[n]+1}, v{XX[n]+1}')
            self.allred2(XX[0], XX[1], XX[0]+2, 'v_add_f32')
            for n in range(2): I(f'v_fma_f32 v{XX[n]}, v{XX[n]}, s{sC448}, -v{XX[n]+1}')
            for n in range(2): I(f'v_add_f32 v{XX[n]}, 0x3727c5ac, v{XX[n]}')
            for n in range(2): I(f'v_rsq_f32 v{RS[n]+2}, v{XX[n]}')
            for n in range(2): I(f'v_mul_f32 v{204+n}, s{sL2E}, v{RS[n]+2}')
            I('ds_write_b64 v28, v[204:205] offset:8')
            I('v_mov_b32 v30, v205')
            for n in range(2):
                I(f'v_mul_f32 v{XX[n]}, v{RS[n]}, v29')
                self.split_b(XX[n], BXS[n], XX[n]+1)
        frd = 'ds_read_b32 v15, v47'
        def fwr(n, tag=None):
            if tag: e.wait_tag(tag)
            I(f'v_mov_b32 v16, {n}'); I('ds_write_b32 v28, v16')
        def fchk(n, extra=()):
            self.lpoll([frd] + list(extra), lambda: I(f'v_cmp_gt_u32 vcc, {n}, v15'), f'vf{n}')
        csr = lambda c: [f'ds_read_b64_tr_b16 {vr(CF+4*(c&1)+2*n,2)}, v7 offset:{c*4096+n*256}' for n in range(2)]
        csm = lambda c: f'{MF16} {vr(CSA,4)}, v[32:35], {vr(CF+4*(c&1),4)}, ' + ('0' if c == 0 else vr(CSA, 4))
        axr = [f'ds_read_b64 {vr(AX+4*t,2)}, v8 offset:{t*3584}' for t in range(2)]
        st = self.capture(stats)
        n0 = self.o.get('st00', 34)
        if self.o.get('sprio', 1): I('s_setprio 2')
        for t in st[:n0]: I(t)
        if self.o.get('sprio', 1): I('s_setprio 0')
        st = st[n0:]
        n0 = self.o.get('st0', 18)
        fwr(1, 'v0'); I(frd)
        for t in st[:n0]: I(t)
        st = st[n0:]
        fchk(1)
        self.stamp('v1')
        if self.o.get('bprio', 0): I('s_setprio 2')
        wr = lambda m: self.wrd(WR + 8*(m % 3), m, 1)
        for t in wr(0) + wr(1) + csr(0): I(t)
        n1 = self.o.get('st1', 12)
        for t in st[:n1]: I(t)
        st = st[n1:]
        extra = {m: [] for m in range(14)}; xm = {m: [] for m in range(14)}
        extra[0] = csr(1); xm[1] = [csm(0)]; extra[2] = csr(2); xm[2] = [csm(1)]; xm[3] = [csm(2)]
        extra[1].append(lambda: fwr(2, 'v1')); extra[2].append(frd); extra[3].append(lambda: fchk(2))
        extra[4] = csr(3) + csr(4); xm[6] = [csm(3)]; xm[7] = [csm(4)]
        extra[5].append(lambda: fwr(3, 'v2')); extra[6].append(frd); extra[7].append(lambda: fchk(3))
        extra[8] = csr(5) + csr(6); xm[9] = [csm(5), csm(6)]
        extra[10] = self.capture(lambda: self.split_a(CSA, 206, CF)) + ['ds_write_b64 v28, v[206:207] offset:16', lambda: fwr(4)]
        extra[12] = [frd] + axr
        for m in range(14):
            mf = []
            for t in range(2):
                for n in range(2):
                    c = vr(52 + 8*n + 4*t, 4)
                    mf.append(f'{MF16} {c}, {vr(WR+8*(m%3)+4*t,4)}, {vr(XT[n]+4*m,4)}, ' + ('0' if m == 0 else c))
            ot = (wr(m + 2) if m + 2 < 14 else []) + extra[m]
            ot += st[:6]; st = st[6:]
            if m in (8,): ot = extra[m] + wr(m + 2)
            self.mix(mf + xm[m], ot)
            self.stamp(f'w{m}')
        assert not st
        fchk(4, axr)
        self.stamp('sb')
        for n in range(2):
            for t in range(2):
                acc = vr(52 + 8*n + 4*t, 4)
                I(f'{MF16} {acc}, {vr(AX+4*t,4)}, {vr(BXS[n],4)}, {acc}')
        for n in range(2):
            c = 52 + 8*n
            for i in range(0, 8, 2):
                I(f'v_pk_mul_f32 {vr(c+i,2)}, {vr(c+i,2)}, {vr(RS[n]+2,2)} op_sel_hi:[1,0]')
            I(f'v_cndmask_b32 v{c}, v{c}, 1.0, s[{sM0}:{sM0+1}]')
            I(f'v_cndmask_b32 v{c+4}, v{c+4}, 1.0, s[{sM1}:{sM1+1}]')
            self.cvt(c, c, 8)
            I(f'ds_write_b64 v{(23,46)[n]}, {vr(c,2)} offset:128')
            I(f'ds_write_b64 v{(23,46)[n]}, {vr(c+2,2)} offset:160')
        I('s_setprio 0')
        self.tail_p1(True, burst2, shadow)

    def build(self):
        e, I = self.e, self.I
        import g6
        self.prologue()
        sn = e.snap()
        self.nbar = 0
        self.p1_A(lambda: None, lambda: g6.main_pre(self))
        I(f's_cmp_eq_u32 s{sJ}, 7')
        I('s_cbranch_scc1 Lj7')
        if self.stop != 'o': g6.main_rest(self)
        else: self.o_flag()
        self.finish()
        na = self.nbar
        e.restore(sn)
        e.label('LB')
        self.nbar = 0
        self.p1_B(lambda: g6.aux_burst2(self), lambda: g6.aux_pre(self))
        I(f's_cmp_eq_u32 s{sJ}, 7')
        I('s_cbranch_scc1 Lj7')
        if self.stop != 'o': g6.aux_rest(self)
        else: self.o_flag()
        self.dump_stamps()
        I('s_branch Lend')
        assert na == self.nbar, (na, self.nbar)
        e.label('Lj7')
        e.hist = []; e.nop(4)
        self.o_flag()
        e.barrier()
        g6.j7_jobs(self)
        self.dump_stamps()
        e.label('Lend')
        e.raw('  s_endpgm')
        head = f"""; fused persistent kernel (generated) {'stamps=' + self.o['stamps'] if self.o.get('stamps') else ''}
; @launch grid=(256,1,1) block=(512,1,1) lds={LDS_BYTES}
.amdgcn_target "amdgcn-amd-amdhsa--gfx950"
.text
.globl {KN}
.p2align 8
.type {KN},@function
{KN}:
"""
        tail = f"""
  s_endpgm
Lcodeend:
.fill {self.o.get('pad', 64)}, 4, 0xbf800000
.section .rodata,"a"
.p2align 6
.amdhsa_kernel {KN}
  .amdhsa_next_free_vgpr 256
  .amdhsa_next_free_sgpr 102
  .amdhsa_accum_offset 256
  .amdhsa_group_segment_fixed_size 0
  .amdhsa_kernarg_size 96
  .amdhsa_user_sgpr_count 2
  .amdhsa_user_sgpr_kernarg_segment_ptr 1
  .amdhsa_system_sgpr_workgroup_id_x 1
.end_amdhsa_kernel
"""
        return head + e.text() + tail

if __name__ == '__main__':
    import argparse
    ap = argparse.ArgumentParser()
    ap.add_argument('-o', default='k.s'); ap.add_argument('--stop'); ap.add_argument('--slow', action='store_true')
    ap.add_argument('--opt', action='append', default=[])
    a = ap.parse_args()
    opts = {}
    for kv in a.opt:
        k, v = kv.split('='); opts[k] = int(v) if v.lstrip('-').isdigit() and k not in ('stamps', 'pf', 'j7', 'xs', 'vs', 'kj', 't3', 't4') else v
    k = K(stop=a.stop, force_slow=a.slow, opts=opts)
    s = k.build()
    open(a.o, 'w').write(s)
    print('instrs', k.e.nins, 'nops', k.e.nnop, 'bytes(src)', len(s))
```

```python
from g5 import *
import g4
from g4 import GA, GB_, f32, pack_pairs, row_stats, stat_addrs, gelu_consts

vZ, vBIG, vL0, vSIG, vTAG, vB, vST = 13, 20, 21, 26, 27, 28, 29
SB = [5, 6, 7, 8]
BF = 76
AR = 148
NSLOT = 5
HR = 60
ACC = 44
CS1 = 132
BXT = 40
XA = 244
vTP, vHP, vHS, vTF, vOP = 250, 251, 252, 253, 254
RES = 240
W3P = 228
U0, U1 = RC + 28672, RA
STEP_REG = [RB, RB + 28672, RC, RB, RB + 28672, RC, RA + 16384, RB]

def main_pre(k):
    I = k.I
    t0, t1 = sT[0:2]
    I(f's_lshl_b32 s{t0}, s{sG}, 6'); I(f's_lshl_b32 s{t1}, s{sW}, 4'); I(f's_add_u32 s{t0}, s{t0}, s{t1}')
    I(f'v_add_u32 v15, s{t0}, v2'); I('v_mul_u32_u24 v15, 896, v15')
    I(f's_lshl_b32 s{t0}, s{sJ}, 7')
    I('v_lshl_add_u32 v15, v3, 3, v15')
    for t in range(4):
        I(f'buffer_load_dwordx2 {vr(52+2*t,2)}, v15, {srd("x")}, s{t0} offen offset:{t*32}')

def main_addr1(k):
    I, L = k.I, k.L
    t0, t1 = sT[0:2]
    I('v_bfe_u32 v15, v1, 2, 2')
    I('v_lshl_add_u32 v16, v3, 3, v15'); I('v_lshlrev_b32 v16, 7, v16')
    I('v_and_b32 v17, 3, v1'); I('v_lshl_add_u32 v16, v17, 3, v16')
    I('v_lshrrev_b32 v15, 1, v15'); I('v_and_b32 v17, 1, v3'); I('v_lshl_add_u32 v15, v17, 1, v15')
    I(f'v_lshl_add_u32 v{SB[0]}, v15, 5, v16')
    for t in range(1, 4): I(f'v_xor_b32 v{SB[t]}, {t*32}, v{SB[0]}')
    I(f's_mul_i32 s{t0}, s{sW}, {TILE}'); I(f's_add_u32 s{t0}, s{t0}, s{sGB}')
    I(f'v_add_u32 v{vB}, s{t0}, v4')
    I(f's_lshl_b32 s{t0}, s{sW}, 6'); I(f's_add_u32 s{t0}, s{t0}, s{sGB}'); I(f's_add_u32 s{t0}, s{t0}, {L.F_O}')
    I(f'v_lshlrev_b32 v{vOP}, 2, v2'); I(f'v_add_u32 v{vOP}, s{t0}, v{vOP}')

def main_addr2(k):
    I, L = k.I, k.L
    t0, t1, t2, t3 = sT[0:4]
    I(f's_mul_i32 s{t0}, s{sW}, {TILE}'); I(f's_add_u32 s{t0}, s{t0}, s{sGB}')
    I(f's_lshl_b32 s{t1}, s{sJ}, 11'); I(f's_add_u32 s{t0}, s{t0}, s{t1}')
    I(f'v_lshlrev_b32 v31, 8, v{vSIG}'); I('v_lshl_add_u32 v31, v2, 4, v31')
    I(f'v_add_u32 v{vST}, s{t0}, v31')
    I(f's_lshl_b32 s{t0}, s{sW}, 3'); I(f's_add_u32 s{t0}, s{t0}, s{sJ}'); I(f's_lshl_b32 s{t0}, s{t0}, 8')
    I(f's_add_u32 s{t0}, s{t0}, s{sGB}'); I(f's_add_u32 s{t0}, s{t0}, {L.ST}')
    I(f'v_add_u32 v9, s{t0}, v4')
    I('v_cmp_eq_u32 vcc, 0, v3'); I(f'v_cndmask_b32 v9, v{vBIG}, v9, vcc')
    stat_addrs(k, 10, 11)
    for t in range(4): I(f'v_mov_b32 v{CS1+4*t+2}, 0'); I(f'v_mov_b32 v{CS1+4*t+3}, 0')
    I(f'v_mov_b32 v{BXT+2}, 0'); I(f'v_mov_b32 v{BXT+3}, 0')
    I(f's_add_u32 s{t0}, s{sGB}, {L.GS + L.T0 - TILE}')
    I(f's_cmp_eq_u32 s{sG}, 31'); I(f's_cselect_b32 s{t0}, {BIG}, s{t0}')
    I(f's_sub_u32 s{t1}, s{sGB}, {L.GS - L.T0 - 4*TILE}')
    I(f's_cmp_eq_u32 s{sG}, 0'); I(f's_cselect_b32 s{t1}, {BIG}, s{t1}')
    I(f's_cmp_eq_u32 s{sW}, 3'); I(f's_cselect_b32 s{t0}, s{t0}, s{t1}')
    I(f's_cselect_b32 s{t2}, 0xc000c000, 0')
    I(f's_cmp_eq_u32 s{sW}, 0'); I(f's_cselect_b32 s{t2}, 0x00030003, s{t2}'); I(f's_mov_b32 s{t3}, s{t2}')
    I(f's_lshl_b32 s{t1}, s{sJ}, 11'); I(f's_add_u32 s{t0}, s{t0}, s{t1}')
    I(f'v_add_u32 v15, s{t0}, v31')
    I(f'v_cndmask_b32 v{vHS}, v{vBIG}, v15, s[{t2}:{t3}]')
    I(f's_lshl_b32 s{t0}, s{sW}, 5'); I(f's_lshl_b32 s{t1}, s{sJ}, 2'); I(f's_add_u32 s{t0}, s{t0}, s{t1}')
    I(f's_add_u32 s{t0}, s{t0}, s{sGB}'); I(f's_add_u32 s{t0}, s{t0}, {L.F_T}')
    I(f'v_add_u32 v{vTF}, s{t0}, v{vL0}')
    I(f's_lshl_b32 s{t0}, s{sW}, 4'); I(f's_add_u32 s{t0}, s{t0}, 16')
    I(f'v_add_u32 v15, s{t0}, v2')
    I(f'v_lshlrev_b32 v16, 8, v3'); I(f'v_add_u32 v16, s{sGB}, v16')
    for i, d in enumerate((-1, 1, -2, 2)):
        I(f'v_add_u32 v17, {d}, v15')
        I(f'v_lshrrev_b32 v{XA+i}, 4, v17'); I(f'v_mul_u32_u24 v{XA+i}, {TILE}, v{XA+i}')
        I('v_and_b32 v17, 15, v17'); I(f'v_lshl_add_u32 v{XA+i}, v17, 4, v{XA+i}')
        I(f'v_add_u32 v{XA+i}, v{XA+i}, v16')
    I('v_cmp_gt_u32 vcc, 2, v3')
    I(f'v_cndmask_b32 v{XA+4}, v{XA+1}, v{XA}, vcc'); I(f'v_cndmask_b32 v{XA+5}, v{XA+3}, v{XA+2}, vcc')
    I('v_lshrrev_b32 v15, 3, v1'); I(f'v_add_u32 v15, s{sW}, v15'); I('v_add_u32 v15, -1, v15')
    I(f's_add_u32 s{t0}, s{sW}, 1'); I(f's_min_u32 s{t0}, s{t0}, 3')
    I(f'v_med3_i32 v15, v15, 0, s{t0}')
    I('v_and_b32 v16, 7, v1'); I('v_min_u32 v16, 6, v16'); I('v_lshlrev_b32 v16, 2, v16')
    I('v_lshl_add_u32 v15, v15, 5, v16'); I(f'v_add_u32 v{vTP}, {L.F_T}, v15')
    I(f's_mov_b32 s{t0}, {BIG}')
    I(f's_cmp_eq_u32 s{sW}, 0'); I(f's_cselect_b32 s{t0}, {L.T0-TILE+236}, s{t0}')
    I(f's_cmp_eq_u32 s{sW}, 3'); I(f's_cselect_b32 s{t0}, {L.T0+4*TILE+12}, s{t0}')
    I('v_lshlrev_b32 v17, 8, v1'); I(f'v_add_u32 v17, s{t0}, v17')
    I('v_cmp_gt_u32 vcc, 56, v1'); I(f'v_cndmask_b32 v{vHP}, v{vBIG}, v17, vcc')


def a_read(k, m, t):
    b = AR + 16*(m % NSLOT) + 4*t
    k.I(f'ds_read_b64_tr_b16 {vr(b,2)}, v{SB[t]} offset:{m*4096}')
    k.I(f'ds_read_b64_tr_b16 {vr(b+2,2)}, v{SB[t]} offset:{m*4096+512}')
def a_preload(k):
    for m in range(NSLOT):
        for t in range(4): a_read(k, m, t)
def b_soff(k, region):
    for i in range(4): k.I(f's_mov_b32 s{sT[4+i]}, {region + i*4096}')
def b_loads(k, addr=None):
    for m in range(14):
        va = vB if addr is None else addr[m]
        k.I(f'buffer_load_dwordx4 {vr(BF+4*m,4)}, v{va}, {WS}, s{sT[4+(m>>2)]} offen offset:{(m&3)*1024} sc1')
def gemm(k, acc, vf=(), pre=0):
    I = k.I
    vf = list(vf)
    for _ in range(pre):
        if vf: I(vf.pop(0))
    per = (len(vf) + 47) // 48
    for m in range(14):
        for t in range(4):
            b = AR + 16*(m % NSLOT) + 4*t
            I(f'{MF16} {vr(acc+4*t,4)}, {vr(b,4)}, {vr(BF+4*m,4)}, {vr(acc+4*t,4)}')
            if m + NSLOT < 14: a_read(k, m + NSLOT, t)
            for _ in range(per):
                if vf: I(vf.pop(0))
def poll_stats(k, tagbits, name, D, va, vb):
    I = k.I
    I(f's_or_b32 s{sN}, s{sTAG}, {tagbits}')
    def chk():
        I(f'v_cmp_ne_u32 vcc, s{sN}, v{D+2}')
        I(f'v_cmp_ne_u32 s[{sT[2]}:{sT[3]}], s{sN}, v{D+6}')
        I(f's_or_b64 vcc, vcc, s[{sT[2]}:{sT[3]}]')
    k.poll3([f'buffer_load_dwordx3 {vr(D,3)}, v{va}, {WS}, 0 offen sc1',
             f'buffer_load_dwordx3 {vr(D+4,3)}, v{vb}, {WS}, 0 offen sc1'], chk, name)

def tr2(k, dst, vb, off, step, tag=None):
    k.I(f'ds_read_b64_tr_b16 {vr(dst,2)}, v{vb} offset:{off}', tag=tag)
    k.I(f'ds_read_b64_tr_b16 {vr(dst+2,2)}, v{vb} offset:{off+step}', tag=tag)

def w3_src(k, V):
    I = k.I
    t0, t1 = sT[0], sT[1]
    I(f's_lshl_b32 s{t0}, s{sJ}, 9'); I(f's_lshr_b32 s{t1}, s{sA}, 1'); I(f's_lshl_b32 s{t1}, s{t1}, 7'); I(f's_add_u32 s{t0}, s{t0}, s{t1}')
    I(f's_and_b32 s{t1}, s{sA}, 1'); I(f's_mul_i32 s{t1}, s{t1}, {8*3584}'); I(f's_add_u32 s{t0}, s{t0}, s{t1}')
    I(f's_cmp_eq_u32 s{sJ}, 7'); I(f's_cselect_b32 s{t0}, {BIG}, s{t0}')
    I(f'v_lshrrev_b32 v15, 3, v1'); I(f'v_mul_u32_u24 v{V}, 3584, v15')
    I('v_bfe_u32 v15, v1, 4, 1'); I('v_lshlrev_b32 v15, 2, v15'); I('v_and_b32 v16, 7, v1'); I('v_xor_b32 v15, v15, v16')
    I(f'v_lshl_add_u32 v{V}, v15, 4, v{V}'); I(f'v_add_u32 v{V}, s{t0}, v{V}')
def w3_rd_base(k, V, base):
    I = k.I
    t0, t1 = sT[0], sT[1]
    I('v_lshrrev_b32 v15, 5, v1'); I('v_lshlrev_b32 v15, 3, v15')
    I('v_bfe_u32 v17, v1, 2, 2'); I('v_add_u32 v15, v15, v17')
    I('v_and_b32 v16, 3, v1')
    I(f'v_and_b32 v{V}, 1, v3'); I(f'v_lshlrev_b32 v{V}, 5, v{V}'); I(f'v_lshl_add_u32 v{V}, v16, 3, v{V}')
    I(f'v_lshl_add_u32 v{V}, v15, 7, v{V}')
    I('v_lshrrev_b32 v17, 1, v17'); I(f'v_lshl_add_u32 v{V}, v17, 6, v{V}')
    I(f's_and_b32 s{t0}, s{sA}, 1'); I(f's_lshl_b32 s{t0}, s{t0}, 6'); I(f'v_xor_b32 v{V}, s{t0}, v{V}')
    I(f's_lshr_b32 s{t0}, s{sA}, 1'); I(f's_lshl_b32 s{t0}, s{t0}, 11'); I(f's_add_u32 s{t0}, s{t0}, {base}')
    I(f'v_add_u32 v{V}, s{t0}, v{V}')
def w3_dma(k, V, sM, m, half, dest, tag):
    I = k.I
    t1 = sT[1]
    I(f's_add_u32 m0, s{sM}, {dest}')
    I(f's_mov_b32 s{t1}, {m*16*3584 + half*256}')
    I(f'buffer_load_dwordx4 v{V}, {srd("w3")}, s{t1} offen lds', tag=tag)
def w4_src(k, V):
    I = k.I
    t0, t1 = sT[0], sT[1]
    I(f's_lshl_b32 s{t0}, s{sJ}, 8'); I(f's_lshl_b32 s{t1}, s{sA}, 3'); I(f's_add_u32 s{t0}, s{t0}, s{t1}')
    I(f'v_lshrrev_b32 v15, 3, v1'); I(f'v_add_u32 v15, s{t0}, v15'); I(f'v_mul_u32_u24 v{V}, 896, v15')
    I('v_lshlrev_b32 v15, 1, v3'); I('v_and_b32 v16, 7, v1'); I('v_xor_b32 v15, v15, v16')
    I(f'v_lshl_add_u32 v{V}, v15, 4, v{V}')
def w4_dma_list(k, V, sM, sS, b):
    I = k.I
    out = []
    for lc in range(7):
        def f(lc=lc):
            if b >= k.o.get('now4', 9): return
            if lc == 0: I(f's_mov_b32 s{sS}, {b*32*896}')
            I(f's_add_u32 m0, s{sM}, {STEP_REG[b] + lc*4096 - lc*128}')
            I(f'buffer_load_dwordx4 v{V}, {srd("w4")}, s{sS} offen offset:{lc*128} lds', tag=f'w4_{b}')
        out.append(f)
    return out
def pat(k, P):
    I = k.I
    I('v_lshrrev_b32 v15, 2, v2'); I('v_and_b32 v16, 1, v3'); I('v_cmp_eq_u32 vcc, v15, v16')
    I(f'v_mov_b32 v15, 0x3f803f80')
    for i in range(4): I(f'v_cndmask_b32 v{P+i}, 0, v15, vcc')
def up_addrs(k, vX, vS, vU, ubase):
    I = k.I
    t0 = sT[0]
    I('v_bfe_u32 v15, v1, 4, 1'); I(f'v_mul_u32_u24 v{vX}, {TILE}, v15')
    I(f'v_lshl_add_u32 v{vX}, v2, 4, v{vX}')
    I('v_lshrrev_b32 v16, 5, v1'); I(f'v_lshl_add_u32 v{vX}, v16, 8, v{vX}')
    I(f'v_and_b32 v{vS}, 31, v1'); I(f'v_lshlrev_b32 v{vS}, 5, v{vS}'); I(f'v_add_u32 v{vS}, {L_STAT}, v{vS}')
    I(f'v_lshlrev_b32 v{vU}, 10, v15'); I(f'v_lshl_add_u32 v{vU}, v2, 4, v{vU}'); I(f'v_lshl_add_u32 v{vU}, v16, 8, v{vU}')
    I(f's_lshl_b32 s{t0}, s{sA}, 12'); I(f's_add_u32 s{t0}, s{t0}, {ubase}')
    I(f'v_add_u32 v{vU}, s{t0}, v{vU}')
def up(k, acc, afn, BB, vX, vS, hooks, pre=True, half=None):
    I = k.I
    def b_rd(m, b):
        d = vr(BB + 8*(m&1) + 4*b, 4)
        if m < 28: I(f'ds_read_b128 {d}, v{vX} offset:{b*2*TILE + m*512}')
        else: I(f'ds_read_b128 {d}, v{vS} offset:{b*1024}')
    if pre: b_rd(0, 0); b_rd(0, 1)
    for m in range(29):
        for b in range(2):
            if m + 1 < 29: b_rd(m + 1, b)
            I(f'{MF32} {vr(acc+16*b,16)}, {vr(afn(m),4)}, {vr(BB+8*(m&1)+4*b,4)}, ' + ('0' if m == 0 else vr(acc+16*b, 16)))
            if b == 0 and half: half(m)
        if m in hooks: hooks[m]()
def gelu_groups(acc, GT, GC, PK, npk):
    out = []
    for b in range(2):
        G = GC + 4*b
        for gp in range(2):
            Lq = []
            x = acc + 16*b + 8*gp; tt = GT + 8*gp
            for i in range(8): Lq.append(f'v_mul_f32 v{tt+i}, v{x+i}, v{x+i}')
            for i in range(8): Lq.append(f'v_fma_f32 v{tt+i}, v{tt+i}, v{G+1}, v{G}')
            for i in range(8): Lq.append(f'v_mul_f32 v{tt+i}, v{tt+i}, v{x+i}')
            for i in range(8): Lq.append(f'v_exp_f32 v{tt+i}, v{tt+i}')
            for i in range(8): Lq.append(f'v_fma_f32 v{tt+i}, v{tt+i}, v{G+2}, v{G+2}')
            for i in range(8): Lq.append(f'v_rcp_f32 v{tt+i}, v{tt+i}')
            for i in range(8): Lq.append(f'v_mul_f32 v{x+i}, v{x+i}, v{tt+i}')
            P = PK + 4*((2*b + gp) % npk)
            for i in range(4): Lq.append(f'v_cvt_pk_bf16_f32 v{P+i}, v{x+2*i}, v{x+2*i+1}')
            out.append((Lq, P, b*2048 + gp*512))
    return out

def publish_stats(k, src, sreg, tagbits, T, mid=None):
    e, I = k.e, k.I
    P = T
    pack_pairs(k, src, P)
    k.stores([f'buffer_store_dwordx4 {vr(P,4)}, v{vST}, {WS}, s{sreg} offen',
              f'buffer_store_dwordx4 {vr(P+4,4)}, v{vST}, {WS}, s{sreg} offen offset:1024'])
    S = T + 8
    I(f'v_pk_add_f32 {vr(S,2)}, {vr(src,2)}, {vr(src+2,2)}')
    I(f'v_pk_mul_f32 {vr(S+2,2)}, {vr(src,2)}, {vr(src,2)}')
    I(f'v_pk_fma_f32 {vr(S+2,2)}, {vr(src+2,2)}, {vr(src+2,2)}, {vr(S+2,2)}')
    for i in range(4, 16, 2):
        I(f'v_pk_add_f32 {vr(S,2)}, {vr(S,2)}, {vr(src+i,2)}')
        I(f'v_pk_fma_f32 {vr(S+2,2)}, {vr(src+i,2)}, {vr(src+i,2)}, {vr(S+2,2)}')
    I(f'v_add_f32 v{S+4}, v{S}, v{S+1}')
    I(f'v_add_f32 v{S+5}, v{S+2}, v{S+3}')
    k.allred2(S+4, S+5, S, 'v_add_f32')
    I(f'v_or_b32 v{S+6}, {tagbits}, v{vTAG}')
    e.wait_vm0()
    k.stores([f'buffer_store_dwordx3 {vr(S+4,3)}, v9, {WS}, 0 offen'])
    if mid: mid()

def x1_dma(k, m0_, vaddr):
    I = k.I
    t0, t1 = sT[0], sT[1]
    I(f's_mul_i32 s{t0}, s{sA}, {TILE}')
    for i in range(7):
        m = m0_ + i
        if i % 4 == 0:
            I(f's_mov_b32 s{t1}, {k.L.X1 + m*1024}')
            I(f's_add_u32 m0, s{t0}, {RA + m*1024}')
        I(f'buffer_load_dwordx4 v{vaddr}, {WS}, s{t1} offen offset:{(i&3)*1024} sc1 lds', tag='x1')

def main_rest(k):
    e, I, L, o = k.e, k.I, k.L, k.o
    t0, t1, t2, t3 = sT[0:4]
    sR = sT[8]
    main_addr1(k)
    for t in range(4):
        for d in range(2):
            I(f'v_lshlrev_b32 v{HR+4*t+2*d}, 16, v{52+2*t+d}')
            I(f'v_and_b32 v{HR+4*t+2*d+1}, 0xffff0000, v{52+2*t+d}')
    b_soff(k, L.O)
    I(f's_mov_b32 s{sR}, {L.H}')
    k.o_flag()
    k.bar()
    a_preload(k)
    def chk(): I(f'v_cmp_ne_u32 vcc, s{sTAG}, v16')
    k.poll3([f'buffer_load_dword v16, v{vOP}, {WS}, 0 offen sc1'], chk, 'o')
    k.stamp('po')
    b_loads(k)
    k.bar()
    gemm(k, HR, k.capture(lambda: main_addr2(k)), 30)
    k.stamp('hg')
    def mid():
        for t in range(4): I(f'v_add_u32 v{SB[t]}, {RB}, v{SB[t]}')
        I('v_lshlrev_b32 v15, 3, v2'); I(f'v_add_u32 v15, {L_CS1}, v15')
        b_soff(k, L.H)
        a_preload(k)
    publish_stats(k, HR, sR, 1, BF, mid)
    k.stamp('hp')
    k.bar()
    if k.stop == 'h': return
    for t in range(4): I(f'ds_read_b64 {vr(CS1+4*t,2)}, v15 offset:{t*128}')
    I(f's_mov_b32 s{sR}, {L.T0}')
    D = 32
    poll_stats(k, 1, 'h', D, 10, 11)
    k.stamp('ph')
    b_loads(k)
    k.bar()
    row_stats(k, D)
    I('v_cmp_eq_u32 vcc, 0, v3')
    I(f'v_cndmask_b32_e64 v{D+3}, 0, -v{D}, vcc')
    k.split_b(D+3, BXT, D+2)
    for t in range(4):
        I(f'{MF16} {vr(ACC+4*t,4)}, {vr(CS1+4*t,4)}, {vr(BXT,4)}, 0')
    I(f'v_add_f32 v{D+2}, 0x3727c5ac, v{D+1}'); I(f'v_rsq_f32 v{D+4}, v{D+2}')
    I(f'v_mul_f32 v{D+2}, v{D+4}, v{D+4}'); I(f'v_mul_f32 v{D+2}, v{D+2}, v{D+1}')
    I(f'v_add_f32 v{D+2}, 0x3727c5ac, v{D+2}'); I(f'v_rsq_f32 v{D+2}, v{D+2}')
    I(f'v_mul_f32_e64 v{BXT}, -v{D}, v{D+4}')
    I(f'v_mul_f32 v{D+6}, v{D+4}, v{D+2}')
    G = D
    gelu_consts(k, D+6, G)
    I(f'v_mov_b32 v{D+6}, v{G+1}')
    gemm(k, ACC)
    k.stamp('tg')
    T = BF
    P = T + 16
    for h in range(2):
        x = ACC + 8*h; tt = T + 8*h
        for i in range(0, 8, 2): I(f'v_pk_mul_f32 {vr(tt+i,2)}, {vr(x+i,2)}, {vr(x+i,2)}')
        for i in range(0, 8, 2): I(f'v_pk_fma_f32 {vr(tt+i,2)}, {vr(tt+i,2)}, {vr(D+6,2)}, {vr(G,2)} op_sel_hi:[1,0,0]')
        for i in range(0, 8, 2): I(f'v_pk_mul_f32 {vr(tt+i,2)}, {vr(tt+i,2)}, {vr(x+i,2)}')
        for i in range(8): I(f'v_exp_f32 v{tt+i}, v{tt+i}')
        for i in range(0, 8, 2): I(f'v_pk_fma_f32 {vr(tt+i,2)}, {vr(tt+i,2)}, {vr(G+2,2)}, {vr(G+2,2)} op_sel_hi:[1,0,0]')
        for i in range(8): I(f'v_rcp_f32 v{tt+i}, v{tt+i}')
        for i in range(0, 8, 2): I(f'v_pk_mul_f32 {vr(x+i,2)}, {vr(x+i,2)}, {vr(tt+i,2)}')
        k.cvt(P+4*h, x, 8)
        I(f'v_permlane16_swap_b32 v{P+4*h}, v{P+4*h+2}')
        I(f'v_permlane16_swap_b32 v{P+4*h+1}, v{P+4*h+3}')
        k.stores([f'buffer_store_dwordx4 {vr(P+4*h,4)}, v{vST}, {WS}, s{sR} offen offset:{h*1024}'], tag='tl')
    I(f'buffer_store_dwordx4 {vr(P,4)}, v{vHS}, {WS}, 0 offen sc1')
    I(f'buffer_store_dwordx4 {vr(P+4,4)}, v{vHS}, {WS}, 0 offen offset:1024 sc1')
    for i in range(0, 16, 2):
        I(f'v_pk_fma_f32 {vr(ACC+i,2)}, {vr(HR+i,2)}, {vr(D+4,2)}, {vr(BXT,2)} op_sel_hi:[1,0,0]')
    for t in range(4): I(f'v_subrev_u32 v{SB[t]}, {RB}, v{SB[t]}')
    b_soff(k, L.T0 - TILE)
    I(f's_mov_b32 s{sR}, {L.X1}')
    w3_rd_base(k, 14, RC)
    e.wait_tag('tl')
    k.stores([f'buffer_store_dword v{vTAG}, v{vTF}, {WS}, 0 offen'])
    k.stamp('tp')
    k.bar()
    if k.stop == 't': return
    a_preload(k)
    for i in range(3): tr2(k, W3P + 4*i, 14, i*4096, 512)
    addr = [XA]*3 + [XA+4] + [XA+1]*3 + [XA+2]*3 + [XA+5] + [XA+3]*3
    def chk():
        I('v_max_u32 v18, v18, v19')
        I(f'v_cmp_ne_u32 vcc, s{sTAG}, v16')
        I(f'v_cmp_eq_u32 s[{t2}:{t3}], -1, v18')
        I(f's_or_b64 vcc, vcc, s[{t2}:{t3}]')
    pl = [f'buffer_load_dword v16, v{vTP}, {WS}, s{sGB} offen sc1',
          f'buffer_load_dwordx2 v[18:19], v{vHP}, {WS}, s{sGB} offen sc1']
    k.poll3(pl, chk, 't')
    k.stamp('pt')
    b_loads(k, addr)
    e.wait_lg0(); k.bar()
    sM, sS = sT[9], sT[10]
    I(f's_lshl_b32 s{sM}, s{sA}, 10')
    gemm(k, ACC, k.capture(lambda: w4_src(k, 0)), 30)
    k.stamp('xg')
    def mid():
        for i in range(0, 16, 2):
            I(f'v_pk_add_f32 {vr(RES+i,2)}, {vr(HR+i,2)}, {vr(ACC+i,2)}')
    publish_stats(k, ACC, sR, 2, BF, mid)
    k.stamp('xp')
    k.bar()
    if k.stop == 'x1': return
    def F(m): return W3P + 4*m if m < 3 else 128 + 4*(m - 3)
    AC, BB, GT, GC, PK, PAT, C, AXT = 44, 76, 92, 108, 116, 124, 32, 36
    vX, vS, vU = 5, 6, 7
    pat(k, PAT)
    up_addrs(k, vX, vS, vU, U1)
    I(f'v_subrev_u32 v8, {RC - RB}, v14')
    def frd(m): tr2(k, F(m), 8 if m < 17 else 14, (m - 3 if m < 17 else m - 17)*4096, 512)
    nf = o.get('fr', 12)
    for m in range(3, 3 + nf): frd(m)
    poll_stats(k, 2, 'x', D, 10, 11)
    k.stamp('px')
    x1_dma(k, 0, vB); x1_dma(k, 7, vB)
    for m in range(3 + nf, 28): frd(m)
    row_stats(k, D)
    SR = 40
    I(f'v_mul_f32 v{D+3}, -1.0, v{D}')
    k.split_b(D+3, SR, D+2)
    I(f'v_add_f32 v{D+2}, 0x3727c5ac, v{D+1}'); I(f'v_rsq_f32 v{D+4}, v{D+2}')
    gelu_consts(k, D+4, SR+4)
    I(f's_lshl_b32 s{t0}, s{sW}, 9'); I(f's_add_u32 s{t0}, s{t0}, {L_STAT}')
    I('v_lshlrev_b32 v15, 5, v2'); I(f'v_add_u32 v15, s{t0}, v15')
    I(f'ds_write_b128 v15, {vr(SR,4)}'); I(f'ds_write_b128 v15, {vr(SR+4,4)} offset:16')
    e.wait_lg0(); k.bar('bf')
    def cs(m): I(f'{MF16} {vr(C,4)}, {vr(PAT,4)}, {vr(F(m),4)}, ' + ('0' if m == 0 else vr(C, 4)))
    dm = []
    for b in range(3): dm += w4_dma_list(k, 0, sM, sS, b)
    nd = o.get('nd', 7)
    for m in range(28):
        if m < nd: dm.pop(0)()
        cs(m)
    e.wait_tag('x1'); k.bar('b8')
    while dm: dm.pop(0)()
    I(f'v_mov_b32 v{AXT+2}, 0'); I(f'v_mov_b32 v{AXT+3}, 0')
    k.split_a(C, AXT, C+1)
    I(f'ds_read_b128 {vr(GC,4)}, v{vS} offset:16'); I(f'ds_read_b128 {vr(GC+4,4)}, v{vS} offset:1040')
    I(f'ds_read_b128 {vr(BB,4)}, v{vX}'); I(f'ds_read_b128 {vr(BB+4,4)}, v{vX} offset:{2*TILE}')
    e.wait_tag('w4_1'); k.bar('ma')
    I(f's_setprio {o.get("pu", 1)}')
    e.wait_tag('w4_2'); k.bar('m2')
    hooks = {}
    m3 = o.get('m3', 15)
    for b in (3, 4, 5): dm += w4_dma_list(k, 0, sM, sS, b)
    def one(i):
        k.stamp(f'h{i}')
        if i == m3: k.bar('m3')
        if i % 4 != o.get('dsk', 9) and len(dm) > (7 if i < m3 else 0): dm.pop(0)()
    for i in range(29): hooks[i] = lambda i=i: one(i)
    up(k, AC, lambda m: F(m) if m < 28 else AXT, BB, vX, vS, hooks, pre=False)
    I(f's_setprio {o.get("pgb", 0)}')
    assert not dm
    e.wait_tag('w4_4'); k.bar('m6')
    for b in (6, 7): dm += w4_dma_list(k, 0, sM, sS, b)
    for _ in range(4): dm.pop(0)()
    cnt = 0
    m7 = o.get('m7', 30)
    for gi, (Lq, Pk, off) in enumerate(gelu_groups(AC, GT, GC, PK, 2)):
        for t in Lq:
            I(t); cnt += 1
            if cnt == m7: e.wait_tag('w4_5'); k.bar('m7')
            if cnt == o.get('m9', 165):
                assert not dm and gi >= 2
                e.wait_vm0(); e.wait_lg0(); k.bar('m9')
            if cnt % o.get('dper', 4) == 0 and len(dm) > (7 if cnt < m7 else 0): dm.pop(0)()
        I(f'ds_write_b128 v{vU}, {vr(Pk,4)} offset:{off}')
    I('s_setprio 0')
    e.wait_lg0(); k.bar('m10')
    SEL, LD = 32, 76
    k.sel_mat(SEL, 16)
    I(f's_mul_i32 s{t0}, s{sA}, {TILE}'); I(f's_lshl_b32 s{t1}, s{sJ}, 11'); I(f's_add_u32 s{t0}, s{t0}, s{t1}')
    I(f's_add_u32 s{t0}, s{t0}, s{sGB}'); I(f's_add_u32 s{t0}, s{t0}, {L.P0}')
    I('v_and_b32 v5, 31, v1'); I('v_lshlrev_b32 v5, 4, v5'); I(f'v_add_u32 v5, s{t0}, v5')
    I('v_lshrrev_b32 v16, 5, v1'); I(f'v_mul_u32_u24 v17, {AS}, v16'); I('v_add_u32 v6, v5, v17')
    I('v_cmp_eq_u32 vcc, 0, v16'); I(f'v_cndmask_b32 v5, v{vBIG}, v5, vcc')
    for i in range(4): I(f's_mov_b32 s{sT[4+i]}, {2*i*AS}')
    I(f's_lshl_b32 s{t0}, s{sG}, 6'); I(f's_lshl_b32 s{t1}, s{sA}, 4'); I(f's_add_u32 s{t0}, s{t0}, s{t1}')
    I(f'v_add_u32 v7, s{t0}, v2'); I('v_mul_u32_u24 v7, 896, v7')
    I(f'v_lshl_add_u32 v7, v{vSIG}, 4, v7')
    I(f's_lshl_b32 s{sT[8]}, s{sJ}, 7')
    I(f's_lshl_b32 s{t0}, s{sA}, 7'); I(f's_add_u32 s{t0}, s{t0}, {L.F_P}')
    I('v_min_u32 v15, 27, v1'); I('v_lshlrev_b32 v15, 2, v15'); I(f'v_add_u32 v15, s{t0}, v15')
    if o.get('m11', 0): k.bar()
    def chk(): I(f'v_cmp_ne_u32 vcc, s{sTAG}, v16')
    k.poll3([f'buffer_load_dword v16, v15, {WS}, s{sGB} offen sc1'], chk, 'p')
    k.stamp('pf')
    for i in range(4):
        for t in range(4):
            I(f'buffer_load_dwordx4 {vr(LD+16*i+4*t,4)}, v{6 if i < 3 else 5}, {WS}, s{sT[4+i]} offen offset:{t*512} sc1')
    for i in range(4):
        for t in range(4):
            I(f'{MF16} {vr(RES+4*t,4)}, {vr(SEL,4)}, {vr(LD+16*i+4*t,4)}, {vr(RES+4*t,4)}')
    pack_pairs(k, RES, 52)
    of = o.get('outf', '')
    I(f'buffer_store_dwordx4 v[52:55], v7, {srd("out")}, s{sT[8]} offen {of}')
    I(f'buffer_store_dwordx4 v[56:59], v7, {srd("out")}, s{sT[8]} offen offset:64 {of}')
    k.stamp('end')

vT3, vT2, vT4, vTQ, vTD = 202, 203, 204, 205, 206
def touch_addrs(k):
    I, L = k.I, k.L
    t0, t1, t2 = sT[0:3]
    I(f's_and_b32 s{t0}, s{sG}, 3'); I(f's_lshl_b32 s{t0}, s{t0}, 2'); I(f's_add_u32 s{t0}, s{t0}, s{sA}')
    I(f's_mul_i32 s{t1}, s{t0}, 3584'); I(f's_lshl_b32 s{t2}, s{sJ}, 9'); I(f's_add_u32 s{t1}, s{t1}, s{t2}')
    I(f's_cmp_eq_u32 s{sJ}, 7'); I(f's_cselect_b32 s{t1}, {BIG}, s{t1}')
    I('v_lshrrev_b32 v15, 1, v1'); I(f'v_mul_u32_u24 v{vT3}, {16*3584}, v15'); I('v_and_b32 v15, 1, v1')
    I(f'v_lshl_add_u32 v{vT3}, v15, 7, v{vT3}'); I(f'v_add_u32 v{vT3}, s{t1}, v{vT3}')
    I(f's_mul_i32 s{t0}, s{t0}, 896'); I(f's_lshl_b32 s{t2}, s{sJ}, 7'); I(f's_add_u32 s{t1}, s{t0}, s{t2}')
    I(f'v_mul_u32_u24 v{vT2}, {16*896}, v1'); I(f'v_add_u32 v{vT2}, s{t1}, v{vT2}')
    I(f's_mul_i32 s{t2}, s{sJ}, {256*896}'); I(f's_add_u32 s{t1}, s{t0}, s{t2}')
    I('v_lshrrev_b32 v15, 3, v1'); I(f'v_mul_u32_u24 v{vT4}, {16*896}, v15'); I('v_and_b32 v15, 7, v1'); I('v_min_u32 v15, 6, v15')
    I(f'v_lshl_add_u32 v{vT4}, v15, 7, v{vT4}'); I(f'v_add_u32 v{vT4}, s{t1}, v{vT4}')
    I(f's_mul_i32 s{t1}, s{sJ}, {AS}'); I(f's_mul_i32 s{t2}, s{sA}, {TILE}'); I(f's_add_u32 s{t1}, s{t1}, s{t2}'); I(f's_add_u32 s{t1}, s{t1}, {L.P0}')
    I('v_min_u32 v15, 55, v1'); I(f'v_lshlrev_b32 v{vTQ}, 7, v15'); I(f'v_add_u32 v{vTQ}, s{t1}, v{vTQ}')
def touch(k, key, dflt='-'):
    I = k.I
    t1 = sT[1]
    for ch in k.o.get(key, dflt):
        if ch in 'ab': I(f'buffer_load_dword v{vTD}, v{vT3}, {srd("w3")}, 0 offen offset:{256 if ch == "b" else 0}')
        elif ch in 'o12': I(f'buffer_load_dword v{vTD}, v{vT2}, {srd("wo" if ch == "o" else "w" + ch)}, 0 offen')
        elif ch in '45':
            I(f's_mov_b32 s{t1}, {128*896 if ch == "5" else 0}')
            I(f'buffer_load_dword v{vTD}, v{vT4}, {srd("w4")}, s{t1} offen')
        elif ch in 'pq':
            I(f's_add_u32 s{t1}, s{sGB}, {7168 if ch == "q" else 0}')
            I(f'buffer_load_dword v{vTD}, v{vTQ}, {WS}, s{t1} offen sc1')
        else: continue
        k.e.vm[-1]['dst'] = set()

def aux_burst2(k):
    I, o = k.I, k.o
    touch_addrs(k)
    touch(k, 'tO')
    w3_src(k, 12)
    for m in range(o['w2a']): w3_dma(k, 12, k.sMW, m, 0, RC + m*4096, 'w3')

def aux_pre(k): pass

def aux_rest(k):
    e, I, L, o = k.e, k.I, k.L, k.o
    t0, t1, t2, t3 = sT[0:4]
    sM = k.sMW; sS = sT[5]
    A0, AC, BB, GT, GC, PK, PAT, C, AXT, ONE = 32, 144, 176, 192, 208, 216, 232, 236, 240, 244
    n0 = o['w2a']; nH = o.get('nH', 11); nT = 28 - n0 - nH
    assert nT <= 8 and n0 <= 10
    def rd(m0, n, s0=0):
        for i in range(n): tr2(k, A0 + 4*(m0+i), 8, (s0+i)*4096, 512)
    def cs(m0, n):
        for m in range(m0, m0 + n):
            I(f'{MF16} {vr(C,4)}, {vr(PAT,4)}, {vr(A0+4*m,4)}, ' + ('0' if m == 0 else vr(C, 4)))
    def dma(m0, n, s0=0):
        for i in range(n): w3_dma(k, 12, sM, m0 + i, 0, RC + (s0+i)*4096, 'w3')
    w3_rd_base(k, 8, RC)
    k.o_flag()
    k.bar()
    rd(0, n0)
    I('v_bfe_u32 v15, v1, 2, 2')
    I('v_lshl_add_u32 v16, v3, 3, v15'); I('v_lshlrev_b32 v16, 7, v16')
    I('v_and_b32 v17, 3, v1'); I('v_lshl_add_u32 v16, v17, 3, v16')
    I('v_lshrrev_b32 v15, 1, v15'); I('v_and_b32 v17, 1, v3'); I('v_lshl_add_u32 v15, v17, 1, v15')
    I(f'v_xor_b32 v15, s{sA}, v15')
    I('v_lshl_add_u32 v6, v15, 5, v16'); I(f'v_add_u32 v6, {RB}, v6')
    CB = 144
    for m in range(14): tr2(k, CB + 4*m, 6, m*4096, 512)
    for i in range(4): I(f'v_mov_b32 v{ONE+i}, 0x3f803f80')
    pat(k, PAT)
    for m in range(14):
        I(f'{MF16} v[248:251], {vr(ONE,4)}, {vr(CB+4*m,4)}, ' + ('0' if m == 0 else 'v[248:251]'))
    cs(0, n0)
    k.split_a(248, 252, 254)
    I(f's_lshl_b32 s{t0}, s{sA}, 7'); I(f's_add_u32 s{t0}, s{t0}, {L_CS1}')
    I('v_lshlrev_b32 v15, 3, v2'); I(f'v_add_u32 v15, s{t0}, v15')
    I('ds_write_b64 v15, v[252:253]')
    e.wait_lg0(); k.bar()
    touch(k, 'tH')
    dma(n0, nH)
    e.wait_vm0(); k.stamp('a6'); k.bar()
    if k.stop == 'h': return
    te = o.get('te', 0)
    for m in range(te): k.sq_dma('w2', RA, m, 'w2')
    rd(n0, nH); cs(n0, nH)
    e.wait_lg0(); k.bar()
    touch(k, 'tT')
    for m in range(te, 14): k.sq_dma('w2', RA, m, 'w2')
    for m in range(3): w3_dma(k, 12, sM, m, 1, RC + m*4096, 'w3')
    dma(n0 + nH, nT, 3)
    e.wait_vm0(); k.stamp('a7'); k.bar()
    if k.stop == 't': return
    xe = o.get('xe', 0)
    for m in range(3, 3 + xe): w3_dma(k, 12, sM, m, 1, RB + (m-3)*4096, 'w3')
    rd(n0 + nH, nT, 3); cs(n0 + nH, nT)
    e.wait_lg0(); k.bar()
    touch(k, 'tX')
    for m in range(3 + xe, 28): w3_dma(k, 12, sM, m, 1, RB + (m-3)*4096, 'w3')
    vX, vS, vU = 24, 25, 12
    I(f'v_mov_b32 v{AXT+2}, 0'); I(f'v_mov_b32 v{AXT+3}, 0')
    k.split_a(C, AXT, C+1)
    VB, VB2 = 5, 28
    I('v_bfe_u32 v15, v1, 2, 2'); I('v_and_b32 v16, 1, v3')
    I('v_lshl_add_u32 v17, v16, 2, v15'); I('v_lshlrev_b32 v18, 7, v17')
    I('v_lshrrev_b32 v17, 1, v17'); I('v_lshl_add_u32 v18, v17, 5, v18')
    I('v_and_b32 v17, 3, v1'); I('v_lshl_add_u32 v18, v17, 3, v18')
    I('v_lshrrev_b32 v17, 1, v3'); I('v_lshl_add_u32 v18, v17, 11, v18')
    I(f's_mul_i32 s{t0}, s{sA}, 7')
    for i in range(4):
        I(f's_add_u32 s{t1}, s{t0}, {i}'); I(f's_and_b32 s{t2}, s{t1}, 3'); I(f's_lshl_b32 s{t2}, s{t2}, 5')
        I(f's_lshr_b32 s{t1}, s{t1}, 2'); I(f's_lshl_b32 s{t1}, s{t1}, 12')
        I(f'v_xor_b32 v{VB+i}, s{t2}, v18'); I(f'v_add_u32 v{VB+i}, s{t1}, v{VB+i}')
        I(f'v_add_u32 v{VB2+i}, {RB}, v{VB+i}')
    I(f's_mul_i32 s{t0}, s{sJ}, {AS}'); I(f's_add_u32 s{t0}, s{t0}, s{sGB}'); I(f's_add_u32 s{t0}, s{t0}, {L.P0}')
    I(f's_mul_i32 s{t2}, s{sA}, {14*256}'); I(f's_add_u32 s{t0}, s{t0}, s{t2}')
    I(f'v_lshlrev_b32 v9, 8, v{vSIG}'); I('v_lshl_add_u32 v9, v2, 4, v9'); I(f'v_add_u32 v9, s{t0}, v9')
    I(f's_add_u32 s{t0}, s{t0}, {12*256}')
    I('v_lshrrev_b32 v15, 1, v3'); I('v_lshlrev_b32 v15, 8, v15'); I('v_lshl_add_u32 v15, v2, 4, v15')
    I('v_and_b32 v16, 1, v3'); I('v_lshl_add_u32 v15, v16, 3, v15')
    I(f'v_add_u32 v10, s{t0}, v15')
    I(f's_lshl_b32 s{t0}, s{sJ}, 4'); I(f's_lshl_b32 s{t1}, s{sA}, 2'); I(f's_add_u32 s{t0}, s{t0}, s{t1}')
    I(f's_add_u32 s{t0}, s{t0}, s{sGB}'); I(f's_add_u32 s{t0}, s{t0}, {L.F_P}')
    I(f'v_add_u32 v11, s{t0}, v{vL0}')
    I(f'v_mov_b32 v13, s{sTAG}')
    I(f'v_add_u32 v14, {U0}, v4')
    for n in range(4): I(f's_mov_b32 s{sT[8+n]}, {n*TILE}')
    up_addrs(k, vX, vS, vU, U0)
    e.wait_vm0(); k.stamp('a8'); k.bar()
    if k.stop == 'x1': return
    I('s_setprio 2')
    k.bar('bf')
    k.bar('b8')
    def A4(b): return 32 + 28*(b & 3)
    def take_list(b):
        out = []
        for lam in range(7):
            reg = STEP_REG[b]
            vb = (VB2 if reg >= RB else VB) + (lam & 3)
            off = (reg - RB if reg >= RB else reg) + (lam >> 2)*4096
            for h in range(2):
                out.append(lambda d=A4(b)+4*lam+2*h, vb=vb, off=off+1024*h: I(f'ds_read_b64_tr_b16 {vr(d,2)}, v{vb} offset:{off}', tag=f'r4_{b}'))
        return out
    ma = o.get('ma', 17); m2 = o.get('m2', 27)
    assert ma >= 13
    tk = take_list(0) + take_list(1)
    def hk(m):
        if m == ma: k.bar('ma')
        if m >= ma:
            for _ in range(2):
                if tk: tk.pop(0)()
        if m == 26: I(f'ds_read_b128 {vr(GC,4)}, v{vS} offset:16'); I(f'ds_read_b128 {vr(GC+4,4)}, v{vS} offset:1040')
        if m == m2:
            assert not tk
            e.wait_tag('r4_1'); k.bar('m2')
    def hh(m):
        if m > ma:
            for _ in range(o.get('tkh', 1)):
                if tk: tk.pop(0)()
    up(k, AC, lambda m: A0 + 4*m if m < 28 else AXT, BB, vX, vS, {m: (lambda m=m: hk(m)) for m in range(29)}, half=hh)
    I(f's_setprio {o.get("pga", 0)}')
    k.stamp('u0')
    gl = []
    for Lq, Pk, off in gelu_groups(AC, GT, GC, PK, 2): gl += Lq + [f'ds_write_b128 v{vU}, {vr(Pk,4)} offset:{off}']
    for f in take_list(2): f()
    a3 = o.get('a3', 110)
    for n, t in enumerate(gl):
        if n == a3:
            e.wait_tag('r4_2'); k.stamp('g3'); k.bar('m3')
        if n % 20 == 0: k.stamp(f'g{n}')
        I(t)
    I(f's_setprio {o.get("pd", 1)}')
    e.wait_lg0(); k.bar('m6')
    DA = 144
    UBR = [16, 20, 24]
    nk = 4
    seq = [(b, n) for b in range(nk) for n in range(4)] + [(b, n) for n in range(4) for b in range(nk, 8)]
    def u_rd(i):
        b, n = seq[i]
        I(f'ds_read_b128 {vr(UBR[i%3],4)}, v{14 if b < 4 else 4} offset:{(b&3)*4096 + n*1024}')
    def pack_list(n):
        Lq = []
        for pp in range(3):
            a = DA + 28*n + 8*pp
            for i in range(4): Lq.append(f'v_cvt_pk_bf16_f32 v{a+i}, v{a+2*i}, v{a+2*i+1}')
            Lq.append(f'v_permlane16_swap_b32 v{a}, v{a+2}'); Lq.append(f'v_permlane16_swap_b32 v{a+1}, v{a+3}')
            Lq.append(('st', f'buffer_store_dwordx4 {vr(a,4)}, v9, {WS}, s{sT[8+n]} offen offset:{pp*1024}', n))
        a = DA + 28*n + 24
        for i in range(2): Lq.append(f'v_cvt_pk_bf16_f32 v{a+i}, v{a+2*i}, v{a+2*i+1}')
        Lq.append(('st', f'buffer_store_dwordx2 {vr(a,2)}, v10, {WS}, s{sT[8+n]} offen', n))
        return Lq
    def run_fill(x):
        if callable(x): x()
        elif isinstance(x, tuple):
            if x[0] == 'st': k.stores([x[1]], tag=f'p{x[2]}')
            else:
                e.wait_tag(f'p{x[1]}')
                k.stores([f'buffer_store_dword v13, v11, {WS}, 0 offen offset:{x[1]*128}'])
        else: I(x)
    fill = []
    d9 = o.get('d9', 14); d10 = o.get('d10', 22)
    assert 12 <= d9 <= 16 and 20 <= d10 <= 24
    nxt = 0
    for i, (b, n) in enumerate(seq):
        if i in (0, 4, 8): fill += take_list(3 + i//4)
        if i == o.get('d7', 3):
            e.wait_tag('r4_3'); k.bar('m7')
        if i == d9:
            k.bar('m9'); fill += take_list(6)
        if i == 16: fill += take_list(7)
        if i == d10: k.bar('m10')
        k.stamp(f'd{i}')
        lim = 16 if i < d9 else 24 if i < d10 else 32
        while nxt < min(lim, i + 3): u_rd(nxt); nxt += 1
        for lam in range(7):
            acc = DA + 28*n + 4*lam
            I(f'{MF16} {vr(acc,4)}, {vr(A4(b)+4*lam,4)}, {vr(UBR[i%3],4)}, ' + ('0' if b == 0 else vr(acc, 4)))
            if fill and not (i > 16 and b == nk and lam < 2): run_fill(fill.pop(0))
        if b == 7:
            assert not fill, len(fill)
            if n == 1 and o.get('m11', 0): k.bar()
            if n > 1: run_fill(('fl', n - 2))
            fill = pack_list(n)
    k.stamp('dg')
    for x in fill: run_fill(x)
    run_fill(('fl', 2))
    run_fill(('fl', 3))
    k.stamp('pp')

def j7_jobs(k):
    e, I, L = k.e, k.I, k.L
    t0, t1 = sT[0], sT[1]
    I(f's_and_b32 s{t0}, s{sG}, 3'); I(f's_lshl_b32 s{t0}, s{t0}, 3'); I(f's_add_u32 s{t0}, s{t0}, s{sW}')
    I(f's_mul_i32 s{t0}, s{t0}, 49'); I(f'v_add_u32 v15, s{t0}, v1')
    I('v_lshrrev_b32 v16, 1, v15'); I('v_lshlrev_b32 v16, 9, v16'); I('v_and_b32 v17, 1, v15'); I('v_lshl_add_u32 v16, v17, 7, v16')
    I('v_lshrrev_b32 v17, 5, v15'); I('v_mul_u32_u24 v17, 9363, v17'); I('v_lshrrev_b32 v17, 16, v17')
    I(f'v_mul_u32_u24 v17, {229376 - 224*128}, v17'); I('v_lshl_add_u32 v17, v15, 7, v17')
    I('v_cmp_gt_u32 vcc, 49, v1'); I(f'v_cndmask_b32 v16, v{vBIG}, v16, vcc'); I(f'v_cndmask_b32 v17, v{vBIG}, v17, vcc')
    I(f's_mul_i32 s{t0}, s{sW}, 56'); I(f'v_add_u32 v15, s{t0}, v1'); I('v_lshlrev_b32 v15, 7, v15')
    I('v_cmp_gt_u32 vcc, 56, v1'); I(f'v_cndmask_b32 v15, v{vBIG}, v15, vcc')
    k.jn = 0
    for ch in k.o.get('j7', 'b4p'):
        if ch in 'ab':
            for i in range(4):
                I(f's_mov_b32 s{t1}, {i*784*512 + (256 if ch == "b" else 0)}')
                I(f'buffer_load_dword v{32+i}, v16, {srd("w3")}, s{t1} offen'); e.barrier()
        if ch == '4':
            for b in range(8):
                I(f's_mov_b32 s{t1}, {b*28672}')
                I(f'buffer_load_dword v{36+b}, v17, {srd("w4")}, s{t1} offen'); e.barrier()
        if ch == 'w': e.wait_vm0(); k.stamp(f'j{k.jn}'); k.jn += 1
        if ch == 'p':
            for i in range(1, 7):
                I(f's_add_u32 s{t1}, s{sGB}, {L.P0 + i*AS}')
                I(f'buffer_load_dword v{44+i}, v15, {WS}, s{t1} offen sc1'); e.barrier()
    e.wait_vm0()
```

```python
import sys
from emit import Emit, parse
import g3
from g3 import (KN, MF16, MF32, WS_HELLO, WS_KVP, WS_G, TILE, AS, WS_STAMP, BIG, Lay, SRD, PTR, SIZE, srd, WS, vr,
                sL, sRB, sH, sG, sJ, sW, sTAG, sMODE, sSPIN, sGB, sODD, sC448, sL2E, sA, sN, sX0, sX1, sM0, sM1, sT)

RA, RB, RC = 0, 57344, 114688
RXA, MISC = 114688, 147456
L_PHI = 161792
L_CS = RXA + 7168
L_CSQ = 162816
L_KVR = 158720
L_CS1 = 159744
L_STAT = 160256
LDS_BYTES = 163840
NONSTR = 0xD5AB

class K(g3.K):
    def __init__(self, stop=None, force_slow=False, opts=None):
        self.e = Emit(); self.stop = stop; self.force_slow = force_slow
        self.o = dict(pf='o123g', n1=14, w2a=6); self.o.update(opts or {})
        self.L = Lay(self.o.get('dbg'))
        self.nbar = 0

    def dump_stamps(self):
        if not self.o.get('dst'): return g3.K.dump_stamps(self)
        I = self.I
        self.e.wait_all()
        I('v_mov_b32 v15, 0')
        I('s_not_b32 s101, s100')
        I('v_writelane_b32 v15, s101, 11')
        for k in range(11):
            r = 100 if k == 0 else 14 + 2*k
            I(f'v_writelane_b32 v15, s{r}, {k}')
        I('v_mbcnt_lo_u32_b32 v16, -1, 0'); I('v_mbcnt_hi_u32_b32 v16, -1, v16')
        I('v_min_u32 v16, 15, v16')
        I('v_lshlrev_b32 v16, 2, v16')
        I('v_subrev_u32 v17, s100, v15'); I('v_cmp_gt_u32 vcc, 100000, v17')
        I('s_or_b32 vcc_lo, vcc_lo, 0x800')
        I('s_nop 4')
        I('v_cndmask_b32 v15, 0, v15, vcc')
        self.e.raw('  global_atomic_umax v16, v15, s[36:37] sc1')

    def stamp(self, name):
        g3.K.stamp(self, name)
        st = self.o.get('stamps')
        if st and 'T' + str(name) in st.split('+'):
            r = 14 + 2*(1 + st.split('+').index('T' + str(name)))
            self.I(f's_memtime s[{r}:{r+1}]')

    def bar(self, name=None):
        if name: self.stamp(f'x{name}')
        self.e.barrier(); self.nbar += 1
        if name: self.stamp(name)

    def softmax2(self, P, OUT, T, vM, C):
        I = self.I
        X, Y, Z = T, T+2, T+1
        E = T+4
        I(f'v_max3_f32 v{X}, v{P}, v{P+1}, v{P+2}')
        I(f'v_max3_f32 v{Y}, -v{P}, -v{P+1}, -v{P+2}')
        I(f'v_max3_f32 v{X}, v{X}, v{P+3}, v{P+4}')
        I(f'v_max3_f32 v{Y}, v{Y}, -v{P+3}, -v{P+4}')
        I(f'v_max3_f32 v{X}, v{X}, v{P+5}, v{P+6}')
        I(f'v_max3_f32 v{Y}, v{Y}, -v{P+5}, -v{P+6}')
        I(f'v_max_f32 v{X}, v{X}, v{P+7}')
        I(f'v_max_f32_e64 v{Y}, v{Y}, -v{P+7}')
        self.allred2(X, Y, Z, 'v_max_f32')
        I(f'v_mul_f32_e64 v{X}, -v{X}, v{C}'); I(f'v_mul_f32_e64 v{Y}, -v{Y}, v{C}')
        for i in range(0, 8, 2):
            I(f'v_pk_fma_f32 {vr(E+i,2)}, {vr(P+i,2)}, {vr(C,2)}, {vr(X,2)} op_sel_hi:[1,0,0]')
            I(f'v_pk_fma_f32 {vr(E+8+i,2)}, {vr(P+i,2)}, {vr(C,2)}, {vr(Y,2)} op_sel_hi:[1,0,0] neg_lo:[1,0,0] neg_hi:[1,0,0]')
        for i in range(16):
            I(f'v_exp_f32 v{E+i}, v{E+i}')
        A, B = T+20, T+22
        for (S, b) in ((X, E), (Y, E+8)):
            I(f'v_pk_add_f32 {vr(A,2)}, {vr(b,2)}, {vr(b+2,2)}')
            I(f'v_pk_add_f32 {vr(B,2)}, {vr(b+4,2)}, {vr(b+6,2)}')
            I(f'v_pk_fma_f32 {vr(A,2)}, {vr(B,2)}, {vr(vM,2)}, {vr(A,2)} op_sel_hi:[1,0,1]')
            I(f'v_add_f32 v{S}, v{A}, v{A+1}')
        self.allred2(X, Y, Z, 'v_add_f32')
        I(f'v_rcp_f32 v{X}, v{X}')
        I(f'v_rcp_f32 v{Y}, v{Y}')
        I(f'v_mul_f32 v{A}, v{X}, v{vM}'); I(f'v_mul_f32 v{B}, v{Y}, v{vM}')
        for i in range(0, 8, 2):
            I(f'v_pk_mul_f32 {vr(E+i,2)}, {vr(E+i,2)}, {vr(X if i < 4 else A,2)} op_sel_hi:[1,0]')
            I(f'v_pk_mul_f32 {vr(E+8+i,2)}, {vr(E+8+i,2)}, {vr(Y if i < 4 else B,2)} op_sel_hi:[1,0]')
        self.cvt(OUT, E, 16)

    def softmax2s(self, P, OUT, T, vM, C):
        I = self.I
        X, Y, Z = T, T+1, T+2
        E = T+4
        I(f'v_max3_f32 v{X}, v{P}, v{P+1}, v{P+2}')
        I(f'v_max3_f32 v{Y}, -v{P}, -v{P+1}, -v{P+2}')
        I(f'v_max3_f32 v{X}, v{X}, v{P+3}, v{P+4}')
        I(f'v_max3_f32 v{Y}, v{Y}, -v{P+3}, -v{P+4}')
        I(f'v_max3_f32 v{X}, v{X}, v{P+5}, v{P+6}')
        I(f'v_max3_f32 v{Y}, v{Y}, -v{P+5}, -v{P+6}')
        I(f'v_max_f32 v{X}, v{X}, v{P+7}')
        I(f'v_max_f32_e64 v{Y}, v{Y}, -v{P+7}')
        self.allred2(X, Y, Z, 'v_max_f32')
        I(f'v_mul_f32_e64 v{X}, -v{X}, v{C}'); I(f'v_mul_f32_e64 v{Y}, -v{Y}, v{C}')
        for i in range(8):
            I(f'v_fma_f32 v{E+i}, v{P+i}, v{C}, v{X}')
            I(f'v_fma_f32 v{E+8+i}, -v{P+i}, v{C}, v{Y}')
        for i in range(16):
            I(f'v_exp_f32 v{E+i}, v{E+i}')
        A, B = T+20, T+22
        for n, (S, b) in enumerate(((X, E), (Y, E+8))):
            I(f'v_add_f32 v{A+n}, v{b}, v{b+1}'); I(f'v_add_f32 v{B+n}, v{b+4}, v{b+5}')
        for n, (S, b) in enumerate(((X, E), (Y, E+8))):
            I(f'v_add_f32 v{A+n}, v{A+n}, v{b+2}'); I(f'v_add_f32 v{B+n}, v{B+n}, v{b+6}')
        for n, (S, b) in enumerate(((X, E), (Y, E+8))):
            I(f'v_add_f32 v{A+n}, v{A+n}, v{b+3}'); I(f'v_add_f32 v{B+n}, v{B+n}, v{b+7}')
        for n, (S, b) in enumerate(((X, E), (Y, E+8))):
            I(f'v_fma_f32 v{S}, v{B+n}, v{vM}, v{A+n}')
        self.allred2(X, Y, Z, 'v_add_f32')
        I(f'v_rcp_f32 v{X}, v{X}')
        I(f'v_rcp_f32 v{Y}, v{Y}')
        I(f'v_mul_f32 v{A}, v{X}, v{vM}'); I(f'v_mul_f32 v{A+1}, v{Y}, v{vM}')
        for i in range(8):
            I(f'v_mul_f32 v{E+i}, v{E+i}, v{X if i < 4 else A}')
            I(f'v_mul_f32 v{E+8+i}, v{E+8+i}, v{Y if i < 4 else A+1}')
        self.cvt(OUT, E, 16)

    def prologue(self):
        e, I, L = self.e, self.I, self.L
        t0, t1, t2, t3 = sT[0:4]
        I('s_load_dwordx4 s[16:19], s[0:1], 0')
        I('s_cmp_ge_u32 s2, 256')
        I('s_cbranch_scc1 Lend')
        self.stamp(0)
        I('s_load_dwordx4 s[36:39], s[0:1], 80')
        I('s_load_dwordx8 s[20:27], s[0:1], 16')
        I('s_load_dwordx8 s[28:35], s[0:1], 48')
        I('v_lshrrev_b32 v5, 6, v0')
        I('v_and_b32 v1, 63, v0')
        I(f's_and_b32 s{t0}, s2, 7')
        I(f's_lshr_b32 s{t1}, s2, 3')
        I(f'v_readfirstlane_b32 s{sW}, v5')
        I(f's_lshl_b32 s{sL}, s{t0}, 5')
        I(f's_or_b32 s{sL}, s{sL}, s{t1}')
        I(f's_cmp_lg_u32 s{sW}, 7')
        I('s_cbranch_scc1 Lnopf')
        I(f's_getpc_b64 s[{sM1}:{sM1+1}]')
        e.label('Lpc')
        I(f's_add_u32 s{sM1}, s{sM1}, {KN}-Lpc')
        I(f's_addc_u32 s{sM1+1}, s{sM1+1}, -1')
        I(f's_lshl_b32 s{t0}, s{t1}, 11')
        I('v_and_b32 v15, 15, v1'); I('v_lshlrev_b32 v15, 7, v15'); I(f'v_add_u32 v15, s{t0}, v15')
        I(f'v_min_u32 v15, Lcodeend-{KN}, v15')
        I(f'global_load_dword v251, v15, s[{sM1}:{sM1+1}]', maybe=True)
        e.label('Lnopf')
        I(f's_and_b32 s{sA}, s{sW}, 3')
        I(f's_lshr_b32 s{sRB}, s{sL}, 4')
        I(f's_and_b32 s{sH}, s{sL}, 15')
        I('v_and_b32 v2, 15, v1')
        I('v_lshrrev_b32 v3, 4, v1')
        sCx, sCw, sMX, sMW = self.sCx, self.sCw, self.sMX, self.sMW
        I(f's_and_b32 s{t0}, s{sRB}, 1'); I(f's_mul_i32 s{t0}, s{t0}, 3'); I(f's_add_u32 s{t0}, s{t0}, s{sH}')
        if self.o.get('rx'):
            I(f's_lshr_b32 s{t1}, s{sL}, 5'); I(f's_add_u32 s{t0}, s{t0}, s{t1}')
        I(f's_mul_i32 s{t1}, s{t0}, 37'); I(f's_lshr_b32 s{t1}, s{t1}, 8'); I(f's_mul_i32 s{t1}, s{t1}, 7')
        I(f's_sub_u32 s{t0}, s{t0}, s{t1}')
        if self.o.get('norot'): I(f's_mov_b32 s{t0}, 0')
        if self.o.get('ncls') == 2:
            I(f's_add_u32 s{t0}, s{sRB}, s{sH}'); I(f's_and_b32 s{t0}, s{t0}, 1'); I(f's_mul_i32 s{t0}, s{t0}, {self.o.get("cst", 3)}')
        if self.o.get('ncls') == 4:
            I(f's_add_u32 s{t0}, s{sRB}, s{sH}'); I(f's_and_b32 s{t0}, s{t0}, 3'); I(f's_mul_i32 s{t0}, s{t0}, {self.o.get("cst", 2)}')
        I(f's_lshl_b32 s{sCx}, s{t0}, 7')
        I(f's_mov_b32 s{self.sCb}, s{sCx}')
        I('v_lshrrev_b32 v9, 2, v1')
        I('v_mul_u32_u24 v9, 2688, v9')
        I('v_lshrrev_b32 v10, 5, v1')
        I('v_lshlrev_b32 v10, 1, v10')
        I('v_and_b32 v11, 3, v1')
        I('v_xor_b32 v10, v10, v11')
        I('v_lshl_add_u32 v9, v10, 4, v9')
        I(f's_mul_i32 s{t0}, s{sH}, 56'); I(f's_andn2_b32 s{t0}, s{t0}, 15')
        I(f's_mul_i32 s{t1}, s{sA}, 43008'); I(f's_add_u32 s{t0}, s{t0}, s{t1}')
        I(f'v_add_u32 v9, s{t0}, v9')
        I(f's_lshl_b32 s{t0}, s{sRB}, 7'); I(f's_lshl_b32 s{t1}, s{sW}, 4'); I(f's_add_u32 s{t0}, s{t0}, s{t1}')
        I('v_lshrrev_b32 v10, 3, v1'); I(f'v_add_u32 v10, s{t0}, v10'); I('v_mul_u32_u24 v10, 896, v10')
        I('v_and_b32 v11, 7, v1'); I('v_xor_b32 v11, v11, v3')
        I('v_lshl_add_u32 v10, v11, 4, v10')
        I('v_xor_b32 v11, 64, v10'); I(f'v_add_u32 v11, {8*896-1024}, v11')
        I(f's_lshl_b32 s{sMW}, s{sA}, 10')
        sRA, sRBB = sT[9], sT[10]
        I(f's_lshl_b32 s{sRA}, s{sA}, 13'); I(f's_add_u32 s{sRA}, s{sRA}, {RXA}')
        I(f's_mul_i32 s{sRBB}, s{sA}, 14336'); I(f's_add_u32 s{sRBB}, s{sRBB}, {RB}')
        I(f's_cmp_ge_u32 s{sW}, 4')
        I(f's_cselect_b32 s{sMX}, s{sRBB}, s{sRA}')
        I('v_lshlrev_b32 v4, 4, v1')
        I('v_mov_b32 v13, 0')
        I(f's_lshr_b32 s{sG}, s{sL}, 3')
        I(f's_and_b32 s{sJ}, s{sL}, 7')
        e.wait_lg0()
        self.build_srd('x'); self.build_srd('wqkv')
        self.stamp('pr')
        self.xdma(0, 0, 'c0')
        self.build_srd('ws')
        I(f's_cmp_ge_u32 s{sW}, 4')
        I('s_cbranch_scc1 LB0')
        sn = e.snap()
        for i in range(4): I(f'v_mov_b32 v{24+i}, -1')
        I(f's_lshl_b32 s{t0}, s{sH}, 4'); I(f's_or_b32 s{t0}, s{t0}, s{sRB}'); I(f's_lshl_b32 s{t0}, s{t0}, 12')
        I(f's_add_u32 s{t0}, s{t0}, s{self.sMW}'); I(f's_add_u32 s{t0}, s{t0}, {WS_KVP}')
        I(f'buffer_store_dwordx4 v[24:27], v4, {WS}, s{t0} offen sc1')
        if self.o.get('x0', 2) == 2: self.xdma(1, 1, 'c1')
        I(f's_cmp_lt_u32 s{sW}, 2'); I('s_cbranch_scc1 Lrphi')
        I(f's_cmp_eq_u32 s{sW}, 2'); I('s_cbranch_scc1 Lrnon')
        sr = e.snap()
        self.halo_addr(44, 45, 46)
        I('s_nop 1')
        for i in range(4): I(f'v_cndmask_b32 v{48+i}, -1, v13, vcc')
        I(f'buffer_store_dwordx4 v[48:51], v44, {WS}, 0 offen sc1')
        I('s_branch Lcom')
        e.restore(sr); e.label('Lrphi')
        self.build_srd('phi')
        I(f's_mul_i32 s{t2}, s{sH}, 1568'); I(f's_add_u32 s{t2}, s{t2}, s{self.sMW}')
        I(f's_add_u32 m0, s{self.sMW}, {L_PHI}')
        I(f'buffer_load_dwordx4 v4, {srd("phi")}, s{t2} offen lds')
        I('s_branch Lcom')
        e.restore(sr); e.label('Lrnon')
        I(f'buffer_load_dword v14, v13, {WS}, 0 offen sc1', tag='role')
        self.vmA = e.vm
        I('s_branch Lcom')
        e.restore(sn)
        e.label('LB0')
        I('v_add_u32 v9, 896, v9')
        self.wdma(0, 0, 'c0'); self.wdma(1, 0, 'c1')
        if self.o.get('xb0', 1) == 2: self.xdma(1, 1, 'c1')
        self.vmB = e.vm
        e.vm = []; e.hist = []
        e.label('Lcom')
        self.stamp('is')
        self.init_jobs()
        assert not e.vm
        I(f's_cmp_ge_u32 s{sW}, 4')
        I('s_cbranch_scc1 LB')

    sCx, sCw, sMX, sMW = sT[4], sT[5], sT[6], sT[7]

    sCb = sT[8]
    def adv(self, sc=None):
        I = self.I
        sc = sc or self.sCx
        I(f's_add_u32 s{sc}, s{sc}, 128'); I(f's_cmp_eq_u32 s{sc}, 896'); I(f's_cselect_b32 s{sc}, 0, s{sc}')
    def xdma(self, i, slot, tag):
        I = self.I
        sc = self.sCb
        I(f's_add_u32 m0, s{self.sMX}, {slot*2048}')
        I(f'buffer_load_dwordx4 v10, {srd("x")}, s{sc} offen lds', tag=tag)
        I(f'buffer_load_dwordx4 v11, {srd("x")}, s{sc} offen offset:1024 lds', tag=tag)
        self.adv(sc)
    def wdma(self, i, mat, tag):
        I = self.I
        I(f's_add_u32 m0, s{self.sMW}, {i*4096 + mat*(28672-896)}')
        I(f's_mul_i32 s{self.sCw}, s{self.sCx}, 1344')
        I(f'buffer_load_dwordx4 v9, {srd("wqkv")}, s{self.sCw} offen offset:{mat*896} lds', tag=tag)
        self.adv()

    def halo_addr(self, *a):
        txt = self.capture(lambda: g3.K.halo_addr(self, *a))
        for t in txt: self.I(t.replace(f's_cmp_eq_u32 s{sW}, 7', f's_cmp_eq_u32 s{sW}, 3'))

    def init_jobs(self):
        e, I, L = self.e, self.I, self.L
        t0, t1, t2, t3 = sT[0:4]
        I(f's_and_b32 s{sODD}, s{sL}, 1')
        for i in range(4): I(f'v_mov_b32 v{32+i}, 0x3f803f80')
        I('v_bfe_u32 v28, v1, 2, 2')
        I('v_and_b32 v29, 3, v1')
        I('v_lshl_add_u32 v15, v3, 3, v28')
        I('v_lshlrev_b32 v15, 6, v15')
        I('v_lshl_add_u32 v15, v29, 3, v15')
        I('v_and_b32 v16, 1, v3')
        I('v_lshl_add_u32 v5, v16, 5, v15')
        I('v_xor_b32 v6, 32, v5')
        I('v_lshrrev_b32 v15, 1, v2'); I('v_xor_b32 v15, v15, v3'); I('v_lshlrev_b32 v15, 4, v15')
        I('v_lshl_add_u32 v15, v2, 7, v15')
        I(f'v_add_u32 v12, s{sT[9]}, v15'); I('v_xor_b32 v21, 64, v12')
        I(f'v_add_u32 v44, s{sT[10]}, v15'); I('v_xor_b32 v45, 64, v44')
        self.init2()

    def init_B(self):
        I = self.I
        t0 = sT[0]
        I('ds_write_b64 v28, v[210:211]'); I('ds_write_b64 v28, v[210:211] offset:8')
        I(f's_and_b32 s{t0}, s{sA}, 1'); I(f's_lshl_b32 s{t0}, s{t0}, 5')
        I(f'v_xor_b32 v7, s{t0}, v5')
        I(f's_lshr_b32 s{t0}, s{sA}, 1'); I(f's_lshl_b32 s{t0}, s{t0}, 11'); I(f's_add_u32 s{t0}, s{t0}, 28672')
        I(f'v_add_u32 v7, s{t0}, v7')
        I('v_and_b32 v15, 1, v3'); I('v_mul_u32_u24 v15, 7168, v15'); I('v_mul_u32_u24 v8, 224, v2')
        I(f'v_add_u32 v15, {MISC+208}, v15'); I('v_add_u32 v8, v8, v15')
        I('v_and_b32 v47, 3, v1'); I('v_mul_u32_u24 v47, 3584, v47'); I(f'v_add_u32 v47, {MISC+192}, v47')
        if self.o.get('vq'):
            I('v_and_b32 v15, 4, v1'); I('v_add_u32 v47, v47, v15')
        tv = self.o.get('tv', 1)
        if tv:
            t1 = sT[1]
            I('v_mul_u32_u24 v15, 37, v1'); I('v_lshrrev_b32 v15, 8, v15')
            I(f'v_mul_u32_u24 v15, {2688-896}, v15'); I('v_lshl_add_u32 v50, v1, 7, v15')
            I(f's_and_b32 s{t0}, s{sL}, 31'); I(f's_lshl_b32 s{t0}, s{t0}, 1'); I(f's_and_b32 s{t1}, s{sA}, 1'); I(f's_add_u32 s{t0}, s{t0}, s{t1}')
            I(f's_mul_i32 s{t0}, s{t0}, {7*2688}')
            I(f's_cmp_lt_u32 s{sA}, 2'); I(f's_cselect_b32 s{t1}, 0, {-1792 if tv == 2 else BIG}'); I(f's_add_u32 s{t0}, s{t0}, s{t1}'); I(f's_add_u32 s{t0}, s{t0}, 1792')
            I(f'v_add_u32 v50, s{t0}, v50'); I(f'v_mov_b32 v15, {BIG}')
            I('v_cmp_gt_u32 vcc, 49, v1'); I('v_cndmask_b32 v50, v15, v50, vcc')

    def init2(self):
        e, I, L = self.e, self.I, self.L
        t0, t1, t2, t3 = sT[0:4]
        for n in ('wo', 'w1', 'w2', 'w3', 'w4', 'out'): self.build_srd(n)
        I(f's_mul_i32 s{sGB}, s{sG}, {L.GS}')
        I(f's_add_u32 s{sGB}, s{sGB}, {WS_G}')
        I(f's_mov_b32 s{sSPIN}, 0x8000')
        I(f's_mov_b32 s{sC448}, 0x3b124925')
        I(f's_mov_b32 s{sL2E}, 0x3fb8aa3b')
        I(f's_lshl_b32 s{t0}, s{sH}, 4'); I(f's_or_b32 s{t0}, s{t0}, s{sRB}'); I(f's_lshl_b32 s{t0}, s{t0}, 12')
        I(f's_lshl_b32 s{t1}, s{sW}, 9'); I(f's_add_u32 s{t0}, s{t0}, s{t1}'); I(f's_add_u32 s{t0}, s{t0}, {WS_KVP}')
        I('v_lshrrev_b32 v15, 1, v3'); I('v_lshlrev_b32 v15, 8, v15'); I('v_lshl_add_u32 v15, v2, 4, v15')
        I('v_and_b32 v16, 1, v3'); I('v_lshl_add_u32 v15, v16, 3, v15')
        I(f'v_add_u32 v31, s{t0}, v15')
        I('v_lshl_add_u32 v15, v3, 2, v28')
        I(f's_lshl_b32 s{t0}, s{sODD}, 2')
        I(f'v_subrev_u32 v15, s{t0}, v15')
        I('v_mul_i32_i24 v15, 56, v15')
        I(f'v_add_u32 v15, {L_PHI}, v15')
        I('v_lshl_add_u32 v17, v29, 3, v15')
        I('v_add_u32 v16, 4, v29'); I('v_min_u32 v16, 6, v16')
        I('v_lshl_add_u32 v18, v16, 3, v15')
        I('v_add_u32 v19, 896, v17'); I('v_add_u32 v20, 896, v18')
        I('v_cmp_ne_u32 vcc, 3, v3')
        I('v_cndmask_b32 v22, 0, 1.0, vcc')
        I('v_mul_u32_u24 v16, 224, v2')
        I('v_xor_b32 v15, v28, v3')
        I('v_lshl_add_u32 v15, v15, 3, v16')
        I(f's_mul_i32 s{t0}, s{sA}, 3584'); I(f's_add_u32 s{t0}, s{t0}, {MISC}')
        I(f'v_add_u32 v23, s{t0}, v15'); I(f'v_add_u32 v46, s{sT[10]}, v15')
        I(f's_add_u32 s{t0}, s{t0}, 192'); I(f'v_add_u32 v28, s{t0}, v16')
        I('v_lshrrev_b32 v15, 2, v1')
        I('v_mul_u32_u24 v15, 224, v15')
        I('v_xor_b32 v16, v29, v3')
        I('v_lshl_add_u32 v15, v16, 3, v15')
        I(f's_lshr_b32 s{t0}, s{sW}, 1'); I(f's_lshl_b32 s{t0}, s{t0}, 5'); I(f's_add_u32 s{t0}, s{t0}, {MISC}')
        I(f'v_add_u32 v24, s{t0}, v15')
        I(f's_and_b32 s{t0}, s{sW}, 1'); I(f's_lshl_b32 s{t0}, s{t0}, 5'); I(f's_add_u32 s{t0}, s{t0}, {MISC+128}')
        I(f'v_add_u32 v25, s{t0}, v15')
        I(f'v_subrev_u32 v26, {MISC-RB}, v24'); I(f'v_subrev_u32 v27, {MISC-RB}, v25')
        I(f's_lshr_b32 s{t0}, s{sW}, 2')
        I(f'v_cmp_ge_u32 vcc, s{t0}, v3'); I('v_mov_b32 v15, 0xbb124925')
        I('v_cndmask_b32 v29, 0, v15, vcc')
        I('v_lshlrev_b32 v15, 2, v3'); I('v_sub_u32 v15, v2, v15')
        for r in range(4):
            I(f'v_cmp_eq_u32 vcc, {r}, v15'); I(f'v_cndmask_b32 v{252+r}, 0, 1.0, vcc')
        AX, BX = 208, 224
        for t in range(4): I(f'v_mov_b32 v{AX+4*t+2}, 0'); I(f'v_mov_b32 v{AX+4*t+3}, 0')
        I(f'v_mov_b32 v{BX+2}, 0'); I(f'v_mov_b32 v{BX+3}, 0')
        I(f's_cmp_eq_u32 s{sODD}, 1')
        I(f's_cselect_b32 s{sM0}, 0xffff, 0'); I(f's_mov_b32 s{sM0+1}, 0')
        I(f's_cselect_b32 s{sM1+1}, 0, 0xffff0000'); I(f's_mov_b32 s{sM1}, 0')

    def init_A(self):
        I, L = self.I, self.L
        t0, t1, t2, t3 = sT[0:4]
        I('v_lshrrev_b32 v47, 3, v1'); I('v_mul_u32_u24 v47, 896, v47')
        I('v_bfe_u32 v15, v1, 4, 1'); I('v_lshlrev_b32 v15, 1, v15')
        I('v_and_b32 v16, 7, v1'); I('v_xor_b32 v15, v15, v16')
        I('v_lshl_add_u32 v47, v15, 4, v47')
        I(f's_lshl_b32 s{t0}, s{sJ}, 7'); I(f's_cmp_eq_u32 s{sJ}, 7'); I(f's_cselect_b32 s{t0}, {BIG}, s{t0}')
        I(f'v_add_u32 v47, s{t0}, v47')
        if True:
            I(f's_lshl_b32 s{t0}, 1, s{sH}'); I(f's_sub_u32 s{t1}, s{t0}, 1'); I(f's_and_b32 s{t1}, s{t1}, {NONSTR}')
            I(f's_bcnt1_i32_b32 s{t1}, s{t1}')
            I(f's_and_b32 s{t2}, s{sRB}, 1'); I(f's_mul_i32 s{t2}, s{t2}, 10'); I(f's_add_u32 s{t1}, s{t1}, s{t2}')
            I(f's_lshl_b32 s{t1}, s{t1}, 2'); I(f's_add_u32 s{t1}, s{t1}, s{sA}'); I(f's_mul_i32 s{t1}, s{t1}, 40')
            I(f's_and_b32 s{t0}, s{t0}, {NONSTR}')
            I(f's_cselect_b32 s{t2}, 40, 0')
            I(f'v_add_u32 v15, s{t1}, v1')
            I('v_lshlrev_b32 v50, 7, v15')
            I('v_lshlrev_b32 v51, 9, v15')
            I(f'v_mov_b32 v16, {BIG}')
            I(f'v_cmp_gt_u32 vcc, s{t2}, v1')
            I('v_cndmask_b32 v50, v16, v50, vcc'); I('v_cndmask_b32 v51, v16, v51, vcc')
            if self.o.get('mw'):
                I(f's_lshl_b32 s{t0}, s{sL}, 2'); I(f's_add_u32 s{t0}, s{t0}, s{sA}')
                I(f's_lshl_b32 s{t1}, s{t0}, 9'); I(f's_mul_i32 s{t2}, s{t0}, {13*128}')
                I('v_lshlrev_b32 v15, 7, v1'); I(f'v_add_u32 v50, s{t1}, v15'); I(f'v_add_u32 v51, s{t2}, v15')
                I('v_cmp_gt_u32 vcc, 4, v1'); I('v_cndmask_b32 v50, v16, v50, vcc')
                I('v_cmp_gt_u32 vcc, 13, v1'); I('v_cndmask_b32 v51, v16, v51, vcc')
            I(f's_lshl_b32 s{t0}, s{sJ}, 2'); I(f's_add_u32 s{t0}, s{t0}, s{sA}')
            I(f's_mul_i32 s{t1}, s{t0}, {14*128}'); I(f's_mul_i32 s{t2}, s{t0}, 384'); I(f's_min_u32 s{t2}, s{t2}, {69*128}')
            I(f's_add_u32 s{t2}, s{t2}, {L.FLG}')
            I('v_min_u32 v15, 13, v2'); I('v_lshlrev_b32 v15, 7, v15'); I(f'v_add_u32 v15, s{t1}, v15')
            I('v_and_b32 v16, 1, v3'); I(f'v_mul_u32_u24 v16, {AS}, v16'); I('v_add_u32 v15, v15, v16')
            I('v_min_u32 v16, 2, v2'); I('v_lshlrev_b32 v16, 7, v16'); I(f'v_add_u32 v16, s{t2}, v16')
            I('v_cmp_gt_u32 vcc, 32, v1'); I('v_cndmask_b32 v0, v16, v15, vcc')

    def get_tag(self):
        I = self.I
        I(f'v_readfirstlane_b32 s{sTAG}, v14')
        I(f's_add_u32 s{sTAG}, s{sTAG}, 0x9E3779B9')
        I(f's_andn2_b32 s{sTAG}, s{sTAG}, 15')
        I(f's_getreg_b32 s{sMODE}, hwreg(HW_REG_XCC_ID)')
        I(f's_and_b32 s{sMODE}, s{sMODE}, 15')
        I(f's_or_b32 s{sMODE}, s{sMODE}, s{sTAG}')

    def phi_frags(self):
        I = self.I
        I('ds_read_b64_tr_b16 v[36:37], v17'); I('ds_read_b64_tr_b16 v[38:39], v19')
        I('ds_read_b64_tr_b16 v[40:41], v18'); I('ds_read_b64_tr_b16 v[42:43], v20')
    def phi_mask(self):
        I = self.I
        for r in (36, 37, 40, 41): I(f'v_cndmask_b32 v{r}, v{r}, v13, s[{sM0}:{sM0+1}]')
        for r in (38, 39, 42, 43): I(f'v_cndmask_b32 v{r}, v{r}, v13, s[{sM1}:{sM1+1}]')

    X, AR, CF, CSA, AX, BX, T = 76, 132, 196, 204, 208, 224, 228
    def xread(self, i, slot):
        for ee in range(2):
            self.I(f'ds_read_b128 {vr(self.X+4*(2*i+ee),4)}, v{(12,21)[ee]} offset:{slot*2048}', tag=f'xr{i}')
    def wread(self, m):
        for ti in range(4):
            b = self.AR + 16*(m & 3) + 4*ti
            off = (ti >> 1)*28672 + m*2048
            self.I(f'ds_read_b64_tr_b16 {vr(b,2)}, v{5+(ti&1)} offset:{off}')
            self.I(f'ds_read_b64_tr_b16 {vr(b+2,2)}, v{5+(ti&1)} offset:{off+256}')
    def kstep(self, m):
        I = self.I
        xb = vr(self.X+4*m, 4)
        z = m == 0
        I(f'{MF16} v[72:75], {xb}, {xb}, ' + ('0' if z else 'v[72:75]'))
        I(f'{MF16} v[68:71], v[32:35], {xb}, ' + ('0' if z else 'v[68:71]'))
        for ti in range(4):
            acc = vr(52 + 4*ti, 4)
            I(f'{MF16} {acc}, {vr(self.AR+16*(m&3)+4*ti,4)}, {xb}, ' + ('0' if z else acc))

    def post_kv(self, B):
        e, I = self.e, self.I
        AX, BX, T = self.AX, self.BX, self.T
        ACCK, ACCV = 52, 60
        I(f'v_mul_f32 v{T}, v68, v29')
        self.split_b(T, BX, T+1)
        for i in range(4): I(f'v_mul_f32 v{72+i}, v{72+i}, v{252+i}')
        for ti in range(4):
            acc = vr(ACCK + 4*ti, 4)
            I(f'{MF16} {acc}, {vr(AX+4*ti,4)}, {vr(BX,4)}, {acc}')
        I('v_add_f32 v72, v72, v73'); I('v_add_f32 v74, v74, v75')
        I('v_add_f32 v72, v72, v74')
        I('v_mov_b32 v73, v72')
        I('v_permlane32_swap_b32 v72, v73'); I('v_add_f32 v72, v72, v73'); I('v_mov_b32 v73, v72')
        I('v_permlane16_swap_b32 v72, v73'); I('v_add_f32 v72, v72, v73')
        self.cvt(T+4, ACCK, 8)
        I(f'{MF16} v[52:55], v[36:39], {vr(T+4,4)}, 0')
        I(f'{MF16} v[56:59], v[40:43], {vr(T+4,4)}, 0')
        I(f'v_mul_f32 v73, s{sC448}, v68')
        I('v_mul_f32 v74, v73, v73')
        I(f'v_fma_f32 v74, v72, s{sC448}, -v74')
        I('v_add_f32 v74, 0x3727c5ac, v74')
        I('v_rsq_f32 v70, v74')
        I(f'v_mul_f32 v30, s{sL2E}, v70')
        if B:
            for i in range(0, 8, 2):
                I(f'v_pk_mul_f32 {vr(ACCV+i,2)}, {vr(ACCV+i,2)}, v[70:71] op_sel_hi:[1,0]')
        else:
            for i in range(8): I(f'v_mul_f32 v{ACCV+i}, v{ACCV+i}, v70')
        I(f'v_cndmask_b32 v60, v60, 1.0, s[{sM0}:{sM0+1}]')
        I(f'v_cndmask_b32 v64, v64, 1.0, s[{sM1}:{sM1+1}]')
        self.cvt(72, ACCV, 8)
        I('ds_write_b64 v23, v[72:73] offset:128')
        I('ds_write_b64 v23, v[74:75] offset:160')
        PH = 60
        (self.softmax2 if B else self.softmax2s)(52, PH, T, 22, 30)
        for t in range(4):
            I(f'ds_write_b64 v23, {vr(PH+2*t,2)} offset:{t*32}')

    def sq_src(self):
        I = self.I
        t0 = sT[0]
        I('v_lshrrev_b32 v11, 3, v1'); I(f's_lshl_b32 s{t0}, s{sA}, 3'); I(f'v_add_u32 v11, s{t0}, v11')
        I('v_mul_u32_u24 v11, 896, v11')
        I('v_bfe_u32 v15, v1, 4, 1'); I('v_lshlrev_b32 v15, 1, v15')
        I(f's_and_b32 s{t0}, s{sA}, 1'); I(f's_lshl_b32 s{t0}, s{t0}, 2')
        I('v_and_b32 v16, 7, v1'); I('v_xor_b32 v15, v15, v16'); I(f'v_xor_b32 v15, s{t0}, v15')
        I('v_lshl_add_u32 v11, v15, 4, v11')
        I(f's_lshl_b32 s{t0}, s{sJ}, 7'); I(f's_cmp_eq_u32 s{sJ}, 7'); I(f's_cselect_b32 s{t0}, {BIG}, s{t0}')
        I(f'v_add_u32 v11, s{t0}, v11')
    def sq_dma(self, name, region, m, tag):
        I = self.I
        if name in self.o.get('skip', ''): return
        t1 = self.sCw
        I(f's_add_u32 m0, s{self.sMW}, {region + m*4096}')
        I(f's_mov_b32 s{t1}, {m*32*896}')
        I(f'buffer_load_dwordx4 v11, {srd(name)}, s{t1} offen lds', tag=tag)

    def pre_b3(self, B):
        I = self.I
        t0, t1, t2 = sT[0:3]
        self.sq_src()
        I(f's_lshl_b32 s{t0}, s{sRB}, 4')
        I(f'v_add_u32 v15, s{t0}, v2')
        I('v_lshlrev_b32 v16, 4, v2'); I(f'v_add_u32 v16, s{sH}, v16')
        I('v_cmp_eq_u32 vcc, 1, v3')
        I('v_cndmask_b32 v15, v15, v16, vcc')
        I('v_and_b32 v16, 8, v2'); I('v_lshlrev_b32 v16, 1, v16')
        I('v_and_b32 v17, 7, v2'); I('v_add_u32 v16, v16, v17')
        I(f's_lshl_b32 s{t0}, s{sG}, 3'); I(f's_sub_u32 s{t0}, s{t0}, 8')
        I(f'v_add_u32 v16, s{t0}, v16'); I('v_and_b32 v16, 255, v16')
        I('v_cmp_eq_u32 vcc, 2, v3')
        I('v_cndmask_b32 v15, v15, v16, vcc')
        I('v_lshlrev_b32 v14, 6, v15'); I(f'v_add_u32 v14, {WS_HELLO}, v14')

    def kv_pub(self, B):
        e, I = self.e, self.I
        t0, t1, t2 = sT[0:3]
        KA, KB = 132, 148
        for ks in range(4):
            a, b = (24, 25) if ks < 2 else (26, 27)
            st = 3584 if ks < 2 else 14336
            for ee in range(2):
                I(f'ds_read_b64_tr_b16 {vr(KA+4*ks+2*ee,2)}, v{a} offset:{((2*ks+ee)&3)*st}')
            for ee in range(2):
                I(f'ds_read_b64_tr_b16 {vr(KB+4*ks+2*ee,2)}, v{b} offset:{((2*ks+ee)&3)*st}')
        I('v_lshrrev_b32 v15, 1, v3'); I(f'v_mul_u32_u24 v15, 7168, v15'); I(f'v_add_u32 v15, {RXA}, v15')
        I('v_add_u32 v5, v5, v15'); I('v_add_u32 v6, v6, v15')
        for ks in range(4):
            I(f'{MF16} v[52:55], {vr(KA+4*ks,4)}, {vr(KB+4*ks,4)}, ' + ('0' if ks == 0 else 'v[52:55]'))
        I(f's_and_b32 s{t0}, s{sW}, 1'); I(f's_lshl_b32 s{t1}, s{t0}, 5')
        I(f'v_xor_b32 v7, s{t1}, v5')
        I(f's_lshr_b32 s{t1}, s{sA}, 1'); I(f's_lshl_b32 s{t2}, s{t1}, 14')
        I(f'v_add_u32 v7, s{t2}, v7')
        self.cvt(56, 52, 4)
        I(f'buffer_store_dwordx2 v[56:57], v31, {WS}, 0 offen sc1')
        self.stamp(4)
        I(f's_lshl_b32 s{t0}, s{t0}, 9'); I(f's_lshr_b32 s{t1}, s{sW}, 1'); I(f's_lshl_b32 s{t1}, s{t1}, 7'); I(f's_add_u32 s{t0}, s{t0}, s{t1}')
        I(f's_add_u32 s{t0}, s{t0}, {L_CSQ}')
        I(f'v_lshlrev_b32 v8, 3, v2'); I(f'v_add_u32 v8, s{t0}, v8')

    def q_phase(self, B, fill):
        e, I = self.e, self.I
        X, CF, CSA, AX, BX, T = self.X, self.CF, self.CSA, self.AX, self.BX, self.T
        QC = 164
        ci = [4, 5, 6] if B else [0, 1, 2, 3]
        QR = [132, 140, 148, 156, 180, 188]
        def qread(m):
            for t in range(2):
                b = QR[m % 6] + 4*t
                off = (m & 1)*16384 + (m >> 1)*1024
                I(f'ds_read_b64_tr_b16 {vr(b,2)}, v{5+t} offset:{off}')
                I(f'ds_read_b64_tr_b16 {vr(b+2,2)}, v{5+t} offset:{off+256}')
        for n, i in enumerate(ci):
            I(f'ds_read_b64_tr_b16 {vr(QC+4*n,2)}, v7 offset:{i*1024}')
            I(f'ds_read_b64_tr_b16 {vr(QC+4*n+2,2)}, v7 offset:{i*1024+256}')
        qread(0); qread(1); qread(2)
        I(f'v_mul_f32 v{T}, 0xbb124925, v68')
        self.split_b(T, BX, T+1)
        I('v_lshlrev_b32 v28, 3, v1'); I(f'v_add_u32 v28, {L_CSQ}, v28')
        for n in range(len(ci)):
            I(f'{MF16} {vr(CSA,4)}, v[32:35], {vr(QC+4*n,4)}, ' + ('0' if n == 0 else vr(CSA, 4)))
        qread(3); qread(4)
        fill = list(fill)
        vf = self.capture(lambda: (self.o_addr(), self.sel_mat(self.SEL, 15)))
        per = (len(vf) + 27) // 28
        for m in range(14):
            if m + 5 < 14: qread(m + 5)
            for t in range(2):
                acc = vr(44 + 4*t, 4)
                I(f'{MF16} {acc}, {vr(QR[m%6]+4*t,4)}, {vr(X+4*m,4)}, ' + ('0' if m == 0 else acc))
                for _ in range(per):
                    if vf: I(vf.pop(0))
                while vf and ('cselect' in vf[0] or 'vcc' in vf[0].split(',')[-1]): I(vf.pop(0))
            if m == 1:
                self.split_a(CSA, CF, CF+2)
                I(f'ds_write_b64 v8, {vr(CF,2)}')
            if fill: fill.pop(0)()
        for f in fill: f()

    def hello_chk(self):
        I = self.I
        ld = f'buffer_load_dword v0, v14, {WS}, 0 offen sc1'
        def chk():
            I('v_and_b32 v17, -16, v0')
            I(f'v_cmp_ne_u32 vcc, s{sTAG}, v17')
        self.poll2([ld], chk, 'hello')
        I(f'v_cmp_ne_u32 vcc, s{sMODE}, v0')
        I(f's_and_b32 s{sMODE}, vcc_lo, 0xffff')
        if self.force_slow: I(f's_mov_b32 s{sMODE}, 1')
        self.stamp(5)

    G, SEL, GAC = 76, 252, 144
    def gather_loads(self):
        return [f'buffer_load_dwordx4 {vr(self.G+4*p,4)}, v{200 + (p & 1)}, {WS}, s{sT[8+(p>>1)]} offen sc1' for p in range(8)]

    def o_addr(self):
        I, L = self.I, self.L
        t0, t1, t2 = sT[0:3]
        I(f'v_add_u32 v23, {L_KVR}, v4')
        I(f's_cmp_eq_u32 s{sODD}, 1')
        I(f's_cselect_b32 s{t0}, 0, {1024+12*16}'); I(f's_add_u32 s{t0}, s{t0}, {L_KVR}')
        I('v_lshlrev_b32 v24, 8, v3'); I(f'v_add_u32 v24, s{t0}, v24')
        I(f's_lshr_b32 s{t0}, s{sW}, 2'); I(f's_lshl_b32 s{t0}, s{t0}, 11'); I(f's_and_b32 s{t1}, s{sW}, 1'); I(f's_lshl_b32 s{t1}, s{t1}, 10')
        I(f's_add_u32 s{t0}, s{t0}, s{t1}'); I(f's_and_b32 s{t1}, s{sW}, 2'); I(f's_lshl_b32 s{t1}, s{t1}, 2'); I(f's_add_u32 s{t0}, s{t0}, s{t1}')
        I(f'v_add_u32 v25, s{t0}, v23')
        I(f's_mul_i32 s{t0}, s{sH}, 7'); I(f's_lshr_b32 s{t0}, s{t0}, 1')
        I('v_and_b32 v18, 1, v3'); I('v_lshrrev_b32 v19, 1, v3'); I('v_lshl_add_u32 v26, v18, 1, v19')
        I(f'v_add_u32 v18, s{t0}, v26')
        I('v_lshlrev_b32 v18, 8, v18'); I('v_lshl_add_u32 v18, v2, 4, v18')
        sOG = sX0
        I(f's_lshl_b32 s{t1}, s{sRB}, 1'); I(f's_lshr_b32 s{t2}, s{sW}, 2'); I(f's_add_u32 s{t1}, s{t1}, s{t2}')
        I(f's_mul_i32 s{sOG}, s{t1}, {L.GS}'); I(f's_add_u32 s{sOG}, s{sOG}, {WS_G}')
        I(f's_mul_i32 s{t0}, s{sA}, {TILE}'); I(f's_add_u32 s{t0}, s{t0}, {L.O}')
        I(f'v_add_u32 v18, s{t0}, v18')
        I('v_add_u32 v19, 8, v18')
        I(f'v_mov_b32 v20, {BIG}')
        I(f'v_cndmask_b32 v18, v18, v20, s[{sM0}:{sM0+1}]')
        I(f'v_cndmask_b32 v19, v19, v20, s[{sM1}:{sM1+1}]')
        I('v_cmp_eq_u32 vcc, 0, v1'); I('v_cndmask_b32 v21, v20, v13, vcc')
        I(f's_lshl_b32 s{t0}, s{sA}, 6'); I(f's_lshl_b32 s{t1}, s{sH}, 2'); I(f's_add_u32 s{t0}, s{t0}, s{t1}')
        I(f's_add_u32 s{t0}, s{t0}, {L.F_O}'); I(f's_add_u32 s{sX1}, s{t0}, s{sOG}')
        I(f'v_mov_b32 v27, s{sTAG}')

    def tail_p1(self, B, burst2, shadow):
        e, I = self.e, self.I
        AX, BX, T = self.AX, self.BX, self.T
        t0, t1 = sT[0:2]
        e.wait_lg0(); self.bar(3)
        self.kv_pub(B)
        if B: self.pre_b3(B)
        I(f'buffer_load_dword v0, v14, {WS}, 0 offen sc1')
        if not B: self.touches('t3')
        fill = [(lambda m=m: self.sq_dma('wo', RA, m, 'wo')) for m in range(B, 14, 2)]
        for _ in range(self.o.get('wo0', 3)): fill.pop(0)()
        I(f's_lshl_b32 s{t0}, s{sW}, 9'); I(f's_lshl_b32 s{t1}, s{sH}, 16'); I(f's_add_u32 s{t0}, s{t0}, s{t1}')
        I(f's_add_u32 s{t0}, s{t0}, {WS_KVP}')
        I('v_and_b32 v15, 31, v1'); I('v_lshlrev_b32 v15, 4, v15'); I('v_lshrrev_b32 v16, 5, v1')
        I('v_lshl_add_u32 v15, v16, 15, v15'); I(f'v_add_u32 v200, s{t0}, v15')
        I('v_add_u32 v201, 4096, v200')
        e.wait_tag('wq')
        self.bar('3q')
        w1g = self.o.get('w1g', -1)
        w1l = [(lambda m=m: self.sq_dma('w1', RB, m, 'w1')) for m in range(B, 14, 2)] if w1g >= 0 else []
        if w1g >= 0: fill += w1l[:w1g]; w1l = w1l[w1g:]
        elif not B: fill += [(lambda i=i: self.w1p(i)) for i in list(range(4)) + list(range(self.nw1, 14))]
        if self.o.get('fsp', 1) and len(fill) <= 7: fill = [f for x in fill for f in (x, lambda: None)]
        self.q_phase(B, fill)
        I(f's_and_b32 s{t0}, s{sRB}, {self.o.get("grot", 1)}'); I(f's_lshl_b32 s{t0}, s{t0}, 14')
        for p in range(4): I(f's_xor_b32 s{sT[8+p]}, s{t0}, {p*8192}')
        self.hello_chk()
        loads = self.gather_loads()
        for t in loads: I(t)
        if not B: self.touches('t4')
        for _ in range(self.o.get('w1h', 7)):
            if w1l: w1l.pop(0)()
        e.wait_lg0(); self.bar('3b')
        for t in range(2): I(f'ds_read_b64 {vr(AX+4*t,2)}, v28 offset:{t*512}')
        burst2()
        for t in range(2):
            acc = vr(44 + 4*t, 4)
            I(f'{MF16} {acc}, {vr(AX+4*t,4)}, {vr(BX,4)}, {acc}')
        self.cvt(T+4, 44, 8)
        I(f'{MF16} v[44:47], v[36:39], {vr(T+4,4)}, 0')
        I(f'{MF16} v[48:51], v[40:43], {vr(T+4,4)}, 0')
        shadow()
        sm = self.capture(lambda: self.softmax2(44, 60, T, 22, 30))
        for n, t in enumerate(sm):
            I(t)
            if n % 8 == 7 and w1l: w1l.pop(0)()
        assert not w1l
        self.stamp(6)
        AC = self.GAC
        def chk3():
            for p in range(8):
                I(f'{MF16} {vr(AC,4)}, {vr(self.SEL,4)}, {vr(self.G+4*p,4)}, ' + ('0' if p == 0 else vr(AC, 4)))
            I(f'v_cmp_u_f32 vcc, v{AC}, v{AC}')
        self.poll2(loads, chk3, 'kvg')
        self.stamp(7)
        self.cvt(152, AC, 4)
        I('ds_write_b64 v25, v[152:153]')
        e.wait_lg0(); self.bar()
        self.o_phase()

    def capture(self, fn):
        out = []
        self.I = lambda t, **k: out.append(t)
        try: fn()
        finally: del self.I
        return out

    def poll2(self, loads, check, name):
        e = self.e
        done, retry = e.newlabel('Lpd' + name), e.newlabel('Lpr' + name)
        check()
        self.I(f's_cbranch_vccnz {retry}')
        e.label(done)
        sn = e.snap()
        save = e.out; e.out = []
        e.label(retry)
        e.wait_vm0()
        for t in loads: self.I(t)
        check()
        self.I(f's_cbranch_vccz {done}')
        self.I(f's_sub_u32 s{sSPIN}, s{sSPIN}, 1')
        self.I(f's_cbranch_scc0 {retry}')
        self.I(f's_mov_b32 s{sSPIN}, 0')
        self.I(f's_branch {done}')
        e.ool += e.out; e.out = save
        e.restore(sn)

    def poll3(self, loads, check, name):
        e = self.e
        top, done = e.newlabel('Lpoll' + name), e.newlabel('Lpd' + name)
        e.label(top)
        for t in loads: self.I(t)
        e.wait_vm0()
        check()
        self.I(f's_cbranch_vccz {done}')
        self.I(f's_sub_u32 s{sSPIN}, s{sSPIN}, 1')
        self.I(f's_cbranch_scc0 {top}')
        self.I(f's_mov_b32 s{sSPIN}, 0')
        e.label(done)

    def o_flag(self, tag=None):
        if tag: self.e.wait_tag(tag)
        else: self.e.wait_vm0()
        self.stores([f'buffer_store_dword v27, v21, {WS}, s{sX1} offen'])
        self.stamp(9)

    def mix(self, mf, other, lead=0):
        other = list(other)
        def run(x): x() if callable(x) else self.I(*x) if isinstance(x, tuple) else self.I(x)
        for _ in range(lead):
            if other: run(other.pop(0))
        n = len(other); done = 0
        for k, t in enumerate(mf):
            self.I(t)
            want = -(-n * (k + 1) // max(1, len(mf) - 1))
            while done < min(n, want): run(other[done]); done += 1
        while done < n: run(other[done]); done += 1
    def lpoll(self, reads, check, name):
        e = self.e
        done, retry = e.newlabel('Lld' + name), e.newlabel('Llr' + name)
        check()
        self.I(f's_cbranch_vccnz {retry}')
        e.label(done)
        sn = e.snap()
        save = e.out; e.out = []
        e.label(retry)
        e.wait_lg0()
        for t in reads: self.I(t)
        e.wait_lg0()
        check()
        self.I(f's_cbranch_vccz {done}')
        self.I(f's_sub_u32 s{sSPIN}, s{sSPIN}, 1')
        self.I(f's_cbranch_scc0 {retry}')
        self.I(f's_mov_b32 s{sSPIN}, 0')
        self.I(f's_branch {done}')
        e.ool += e.out; e.out = save
        e.restore(sn)
    def xrd(self, dst, m, ring, tag=None):
        va = ((12, 21), (44, 45))[ring][m & 1]
        slot = (m >> 1) if ring else (m >> 1) & 3
        return (f'ds_read_b128 {vr(dst,4)}, v{va} offset:{slot*2048}', tag)
    def wrd(self, dst, m, mat):
        return [f'ds_read_b64_tr_b16 {vr(dst+2*n,2)}, v{5+(n>>1)} offset:{mat*28672 + m*2048 + (n&1)*256}' for n in range(4)]
    def hello(self):
        I = self.I
        t0 = sT[0]
        I(f'v_mov_b32 v15, s{sMODE}')
        I(f's_lshl_b32 s{t0}, s{sL}, 6'); I(f's_add_u32 s{t0}, s{t0}, {WS_HELLO}')
        I(f's_cmp_eq_u32 s{sW}, 0'); I(f's_cselect_b32 s{t0}, s{t0}, {BIG}')
        I(f'v_mov_b32 v16, s{t0}')
        I(f'buffer_store_dword v15, v16, {WS}, 0 offen sc1')

    def p1_A(self, burst2, shadow):
        e, I = self.e, self.I
        X, AX = self.X, self.AX
        e.vm = self.vmA
        self.init_A()
        self.stamp('su')
        if self.o.get('x0', 2) < 2: self.xdma(1, 1, 'c1')
        I('s_setprio 1')
        WR, X2 = 132, 164
        def kreads(m):
            return [self.xrd(X + 4*m, m, 0, f'xr{m>>1}'), self.xrd(X2 + 4*(m % 3), m, 1)] + self.wrd(WR + 8*(m & 3), m, 0)
        def kstep(m):
            xa, xb = vr(X + 4*m, 4), vr(X2 + 4*(m % 3), 4)
            w = [vr(WR + 8*(m & 3) + 4*t, 4) for t in range(2)]
            ops = [(68, 'v[32:35]', xa), (72, 'v[32:35]', xb), (196, 'v[32:35]', w[0]), (200, 'v[32:35]', w[1]),
                   (52, w[0], xa), (60, w[0], xb), (56, w[1], xa), (64, w[1], xb)]
            return [f'{MF16} {vr(c,4)}, {p}, {q}, ' + ('0' if m == 0 else vr(c, 4)) for c, p, q in ops]
        def mwarm(p):
            if self.o.get('mw') and self.o.get('km', 99) == p:
                for ch in self.o['mw']:
                    I(f'buffer_load_dword v{7 if p < 6 else 10}, v{50 if ch in "o12" else 51}, {srd("wo" if ch == "o" else "w" + ch)}, 0 offen')
                    e.vm[-1]['dst'] = set()
        mwarm(-1)
        e.wait_tag('c0'); self.bar('c0')
        self.mix([], kreads(0))
        self.xdma(2, 2, 'c2')
        for m in range(14):
            i = m >> 1
            if m & 1 and i < 6:
                e.wait_tag(f'xr{i}'); e.wait_tag('nw'); e.wait_tag(f'c{i+1}'); self.bar(f'c{i+1}')
            self.mix(kstep(m), kreads(m + 1) if m < 13 else [], 2)
            if not m & 1 and i + 3 < 7: self.xdma(i + 3, (i + 3) & 3, f'c{i+3}')
            mwarm(m)
            if m == 5: I('ds_write_b32 v28, v14 offset:24', tag='nw')
            if m == 8: self.phi_frags(); self.tag_read()
            if m == 10: self.phi_mask(); self.get_tag()
        self.stamp(2)
        if self.o.get('vq'): I('ds_write_b32 v28, v32 offset:4')
        if not self.o.get('aprio', 1): I('s_setprio 0')
        def wq(i):
            I(f's_mul_i32 s{self.sCw}, s{self.sCx}, 1344')
            I(f's_add_u32 m0, s{self.sMX}, {i*1024}')
            I(f'buffer_load_dwordx4 v9, {srd("wqkv")}, s{self.sCw} offen lds', tag='wq')
            self.adv()
        def touch(ch):
            if ch in 'o12': I(f'buffer_load_dword v12, v218, {srd("wo" if ch == "o" else "w"+ch)}, 0 offen')
            if ch in '34bc': I(f'buffer_load_dword v12, v219, {srd("w3")}, 0 offen offset:{128*"34bc".index(ch)}')
            if ch == '5': I(f'buffer_load_dword v12, v219, {srd("w4")}, 0 offen')
            if ch == 'g': I(f'buffer_load_dword v12, v0, {WS}, s{sGB} offen sc1')
            e.vm[-1]['dst'] = set()
        def touches(key):
            for ch in self.o.get(key, '-'):
                if ch != '-': touch(ch)
        def w1p(i):
            I(f's_add_u32 m0, s{sT[10]}, {i*1024}')
            I(f's_add_u32 s{self.sCw}, s{sT[9]}, {i*7168}')
            I(f'buffer_load_dwordx4 v{216+(i&1)}, {srd("w1")}, s{self.sCw} offen lds', tag='w1')
        self.w1p = w1p
        BXS = [224, 216]
        for n in range(2):
            I(f'v_mul_f32 v{228+2*n}, v{68+4*n}, v29')
        la = [self.capture(lambda n=n: self.split_b(228+2*n, BXS[n], 229+2*n)) for n in range(2)]
        la += [self.capture(lambda n=n: self.split_a(196+4*n, AX+4*n, 197+4*n)) for n in range(2)]
        for r in zip(*la):
            for t in r: I(t)
        srd_ = 'ds_read_b64 v[48:49], v28 offset:8'
        for n in range(2):
            for t in range(2):
                acc = vr(52 + 8*n + 4*t, 4)
                I(f'{MF16} {acc}, {vr(AX+4*t,4)}, {vr(BXS[n],4)}, {acc}')
        KC = [204, 220]
        for n in range(2):
            self.cvt(KC[n], 52 + 8*n, 8)
            for t in range(2): I(f'{MF16} {vr(52+8*n+4*t,4)}, {vr(36+4*t,4)}, {vr(KC[n],4)}, 0')
        I(srd_)
        I('v_mov_b32 v216, v47'); I('v_xor_b32 v217, 64, v47'); I('v_mov_b32 v218, v50'); I('v_mov_b32 v219, v51')
        I(f's_mul_i32 s{sT[9]}, s{sA}, {14*7168}')
        pkA = self.o.get('pka', 0)
        smf = self.softmax2 if pkA else self.softmax2s
        sm = [self.capture(lambda n=n: (smf(52 + 8*n, 132 + 8*n, (228, 172)[n], 22, (48, 148 if pkA else 49)[n]),
                  [self.I(f'ds_write_b64 v{(23,46)[n]}, {vr(132+8*n+2*t,2)} offset:{t*32}') for t in range(4)])) for n in range(2)]
        pk = [t for r in zip(*sm) for t in r]
        if self.o.get('nosm'): pk = pk[:34] + pk[-8:]
        first = min(n for n, t in enumerate(pk) if t.endswith('v48') or 'v[48:49]' in t)
        qd = self.o.get('qd', 10)
        jobs = []; nq = 0; self.nw1 = 4
        for ch in self.o.get('kj', 'hgqqqqqqqwwwwwwwwww'):
            if ch == 'h': jobs.append(self.hello)
            elif ch == 'q': jobs.append(lambda i=nq: wq(i)); nq += 1
            elif ch == 'w': jobs.append(lambda i=self.nw1: w1p(i)); self.nw1 += 1
            else: jobs.append(lambda ch=ch: touch(ch))
        assert nq == (0 if self.o.get('vq') else 7) and 'h' in self.o.get('kj', 'h')
        for n, t in enumerate(pk):
            if n == first:
                self.lpoll([srd_], lambda: I('v_cmp_eq_u32 vcc, 0, v49'), 'sc')
                self.stamp('k1')
                if pkA: I('v_mov_b32 v148, v49')
            if n >= first + self.o.get('q0', 0) and (n - first) % qd == 0 and jobs: jobs.pop(0)()
            I(t)
        self.stamp('k2')
        for f in jobs: f()
        I('v_mov_b32 v30, v48')
        I('s_setprio 0')
        self.touches = touches
        self.pre_b3(False)
        self.stamp('sa')
        self.tail_p1(False, burst2, shadow)

    def tag_read(self):
        self.I(f'v_mov_b32 v14, {MISC + 2*3584 + 192 + 24}')
        self.I('ds_read_b32 v14, v14')

    def p1_B(self, burst2, shadow):
        e, I = self.e, self.I
        X, AX = self.X, self.AX
        X2, WR, CF, CSA = 132, 228, 196, 220
        e.vm = self.vmB
        self.init_B()
        self.stamp('su')
        if self.o.get('xb0', 1) < 2: self.xdma(1, 1, 'c1')
        tch = f'buffer_load_dword v51, v50, {srd("wqkv")}, 0 offen'
        tp = self.o.get('tvp', -1) if self.o.get('tv', 1) else 99
        if tp < 0: I(tch)
        e.wait_lg0()
        grp = [0, 0, 0, 1, 1, 2, 2]
        vs = [int(ch) for ch in self.o.get('vs', '5555666')]
        XT = [X2, X]; RS = [188, 68]; XX = [192, 72]
        for i in range(7):
            e.wait_tag(f'c{i}'); self.bar(f'c{i}')
            for m in (2*i, 2*i + 1):
                for n in range(2): I(*self.xrd(XT[n] + 4*m, m, n))
            dm = []
            if i + 2 < 7: dm += [lambda i=i: self.wdma(i + 2, 0, f'c{i+2}'), lambda i=i: self.xdma(i + 2, i + 2, f'c{i+2}')]
            if tp == i: dm.append(tch)
            dm += [lambda c=c: self.wdma(c, 1, f'v{grp[c]}') for c in range(7) if vs[c] == i]
            mf = []
            for m in (2*i, 2*i + 1):
                for n in range(2):
                    x = vr(XT[n] + 4*m, 4)
                    mf.append(f'{MF16} {vr(XX[n],4)}, {x}, {x}, ' + ('0' if m == 0 else vr(XX[n], 4)))
                    mf.append(f'{MF16} {vr(RS[n],4)}, v[32:35], {x}, ' + ('0' if m == 0 else vr(RS[n], 4)))
            self.mix(mf, dm, self.o.get('dlead', 2))
            if i == 4: self.phi_frags(); self.tag_read()
            if i == 5: self.phi_mask(); self.get_tag()
        self.stamp(2)
        BXS = [216, 224]
        def stats():
            I = self.I
            for n in range(2):
                for r in range(4): I(f'v_mul_f32 v{XX[n]+r}, v{XX[n]+r}, v{252+r}')
            for n in range(2):
                x = XX[n]
                I(f'v_add_f32 v{x}, v{x}, v{x+1}'); I(f'v_add_f32 v{x+2}, v{x+2}, v{x+3}')
                I(f'v_mul_f32 v{x+1}, s{sC448}, v{RS[n]}')
            for n in range(2): I(f'v_add_f32 v{XX[n]}, v{XX[n]}, v{XX[n]+2}')
            for n in range(2): I(f'v_mul_f32 v{XX[n]+1}, v{XX[n]+1}, v{XX[n]+1}')
            self.allred2(XX[0], XX[1], XX[0]+2, 'v_add_f32')
            for n in range(2): I(f'v_fma_f32 v{XX[n]}, v{XX[n]}, s{sC448}, -v{XX[n]+1}')
            for n in range(2): I(f'v_add_f32 v{XX[n]}, 0x3727c5ac, v{XX[n]}')
            for n in range(2): I(f'v_rsq_f32 v{RS[n]+2}, v{XX[n]}')
            for n in range(2): I(f'v_mul_f32 v{204+n}, s{sL2E}, v{RS[n]+2}')
            I('ds_write_b64 v28, v[204:205] offset:8')
            I('v_mov_b32 v30, v205')
            for n in range(2):
                I(f'v_mul_f32 v{XX[n]}, v{RS[n]}, v29')
                self.split_b(XX[n], BXS[n], XX[n]+1)
        frd = 'ds_read_b32 v15, v47'
        def fwr(n, tag=None):
            if tag: e.wait_tag(tag)
            I(f'v_mov_b32 v16, {n}'); I('ds_write_b32 v28, v16')
        def fchk(n, extra=()):
            self.lpoll([frd] + list(extra), lambda: I(f'v_cmp_gt_u32 vcc, {n}, v15'), f'vf{n}')
        csr = lambda c: [f'ds_read_b64_tr_b16 {vr(CF+4*(c&1)+2*n,2)}, v7 offset:{c*4096+n*256}' for n in range(2)]
        csm = lambda c: f'{MF16} {vr(CSA,4)}, v[32:35], {vr(CF+4*(c&1),4)}, ' + ('0' if c == 0 else vr(CSA, 4))
        axr = [f'ds_read_b64 {vr(AX+4*t,2)}, v8 offset:{t*3584}' for t in range(2)]
        st = self.capture(stats)
        n0 = self.o.get('st00', 34)
        if self.o.get('sprio', 1): I('s_setprio 2')
        for t in st[:n0]: I(t)
        if self.o.get('sprio', 1): I('s_setprio 0')
        st = st[n0:]
        n0 = self.o.get('st0', 18)
        fwr(1, 'v0'); I(frd)
        for t in st[:n0]: I(t)
        st = st[n0:]
        fchk(1)
        self.stamp('v1')
        vq = self.o.get('vq', '')
        def wq(i):
            if i == 0: I('v_subrev_u32 v9, 896, v9')
            I(f's_mul_i32 s{self.sCw}, s{self.sCx}, 1344')
            I(f's_add_u32 m0, s{sT[9]}, {i*1024}')
            I(f'buffer_load_dwordx4 v9, {srd("wqkv")}, s{self.sCw} offen lds', tag='wq')
            self.adv()
        for i, ch in enumerate(vq):
            if ch == '_': wq(i)
        if self.o.get('bprio', 0): I('s_setprio 2')
        wr = lambda m: self.wrd(WR + 8*(m % 3), m, 1)
        for t in wr(0) + wr(1) + csr(0): I(t)
        n1 = self.o.get('st1', 12)
        for t in st[:n1]: I(t)
        st = st[n1:]
        extra = {m: [] for m in range(14)}; xm = {m: [] for m in range(14)}
        extra[0] = csr(1); xm[1] = [csm(0)]; extra[2] = csr(2); xm[2] = [csm(1)]; xm[3] = [csm(2)]
        extra[1].append(lambda: fwr(2, 'v1')); extra[2].append(frd); extra[3].append(lambda: fchk(2))
        extra[4] = csr(3) + csr(4); xm[6] = [csm(3)]; xm[7] = [csm(4)]
        extra[5].append(lambda: fwr(3, 'v2')); extra[6].append(frd); extra[7].append(lambda: fchk(3))
        extra[8] = csr(5) + csr(6); xm[9] = [csm(5), csm(6)]
        extra[10] = self.capture(lambda: self.split_a(CSA, 206, CF)) + ['ds_write_b64 v28, v[206:207] offset:16', lambda: fwr(4)]
        extra[12] = [frd] + axr
        for i, ch in enumerate(vq):
            if ch not in '_z': extra[int(ch, 16)].append(lambda i=i: wq(i))
        for m in range(14):
            mf = []
            for t in range(2):
                for n in range(2):
                    c = vr(52 + 8*n + 4*t, 4)
                    mf.append(f'{MF16} {c}, {vr(WR+8*(m%3)+4*t,4)}, {vr(XT[n]+4*m,4)}, ' + ('0' if m == 0 else c))
            ot = (wr(m + 2) if m + 2 < 14 else []) + extra[m]
            ot += st[:6]; st = st[6:]
            if m in (8,): ot = extra[m] + wr(m + 2)
            self.mix(mf + xm[m], ot)
            self.stamp(f'w{m}')
        assert not st
        fchk(4, axr)
        self.stamp('sb')
        for i, ch in enumerate(vq):
            if ch == 'z': wq(i)
        for n in range(2):
            for t in range(2):
                acc = vr(52 + 8*n + 4*t, 4)
                I(f'{MF16} {acc}, {vr(AX+4*t,4)}, {vr(BXS[n],4)}, {acc}')
        for n in range(2):
            c = 52 + 8*n
            for i in range(0, 8, 2):
                I(f'v_pk_mul_f32 {vr(c+i,2)}, {vr(c+i,2)}, {vr(RS[n]+2,2)} op_sel_hi:[1,0]')
            I(f'v_cndmask_b32 v{c}, v{c}, 1.0, s[{sM0}:{sM0+1}]')
            I(f'v_cndmask_b32 v{c+4}, v{c+4}, 1.0, s[{sM1}:{sM1+1}]')
            self.cvt(c, c, 8)
            I(f'ds_write_b64 v{(23,46)[n]}, {vr(c,2)} offset:128')
            I(f'ds_write_b64 v{(23,46)[n]}, {vr(c+2,2)} offset:160')
        I('s_setprio 0')
        self.tail_p1(True, burst2, shadow)

    def build(self):
        e, I = self.e, self.I
        if self.o.get('mlp', 7) == 7:
            import g7 as g6
            if self.o['w2a'] < 9: self.o['w2a'] = 9
        else: import g6
        self.prologue()
        sn = e.snap()
        self.nbar = 0
        self.p1_A(lambda: None, lambda: g6.main_pre(self))
        I(f's_cmp_eq_u32 s{sJ}, 7')
        I('s_cbranch_scc1 Lj7')
        if self.stop != 'o': g6.main_rest(self)
        else: self.o_flag()
        self.finish()
        na = self.nbar
        e.restore(sn)
        e.label('LB')
        self.nbar = 0
        self.p1_B(lambda: g6.aux_burst2(self), lambda: g6.aux_pre(self))
        I(f's_cmp_eq_u32 s{sJ}, 7')
        I('s_cbranch_scc1 Lj7')
        if self.stop != 'o': g6.aux_rest(self)
        else: self.o_flag()
        self.dump_stamps()
        I('s_branch Lend')
        assert na == self.nbar, (na, self.nbar)
        e.label('Lj7')
        e.hist = []; e.nop(4)
        self.o_flag()
        e.barrier()
        g6.j7_jobs(self)
        self.dump_stamps()
        e.label('Lend')
        e.raw('  s_endpgm')
        head = f"""; fused persistent kernel (generated) {'stamps=' + self.o['stamps'] if self.o.get('stamps') else ''}
; @launch grid=(256,1,1) block=(512,1,1) lds={LDS_BYTES}
.amdgcn_target "amdgcn-amd-amdhsa--gfx950"
.text
.globl {KN}
.p2align 8
.type {KN},@function
{KN}:
"""
        tail = f"""
  s_endpgm
Lcodeend:
.fill {self.o.get('pad', 64)}, 4, 0xbf800000
.section .rodata,"a"
.p2align 6
.amdhsa_kernel {KN}
  .amdhsa_next_free_vgpr 256
  .amdhsa_next_free_sgpr 102
  .amdhsa_accum_offset 256
  .amdhsa_group_segment_fixed_size 0
  .amdhsa_kernarg_size 96
  .amdhsa_user_sgpr_count 2
  .amdhsa_user_sgpr_kernarg_segment_ptr 1
  .amdhsa_system_sgpr_workgroup_id_x 1
.end_amdhsa_kernel
"""
        return head + e.text() + tail

if __name__ == '__main__':
    import argparse
    ap = argparse.ArgumentParser()
    ap.add_argument('-o', default='k.s'); ap.add_argument('--stop'); ap.add_argument('--slow', action='store_true')
    ap.add_argument('--opt', action='append', default=[])
    a = ap.parse_args()
    opts = {}
    for kv in a.opt:
        k, v = kv.split('='); opts[k] = int(v) if v.lstrip('-').isdigit() and k not in ('stamps', 'pf', 'j7', 'xs', 'vs', 'kj', 't3', 't4', 'vq', 'tO', 'tH', 'tT', 'tX', 'mw') else v
    k = K(stop=a.stop, force_slow=a.slow, opts=opts)
    s = k.build()
    open(a.o, 'w').write(s)
    print('instrs', k.e.nins, 'nops', k.e.nnop, 'bytes(src)', len(s))
```

```python
from g5 import *
import g4
from g4 import GA, GB_, f32, pack_pairs, row_stats, stat_addrs, gelu_consts

vZ, vBIG, vL0, vSIG, vTAG, vB, vST = 13, 20, 21, 26, 27, 28, 29
SB = [5, 6, 7, 8]
BF = 76
AR = 148
NSLOT = 5
HR = 60
ACC = 44
CS1 = 132
BXT = 40
XA = 244
vTP, vHP, vHS, vTF, vOP = 250, 251, 252, 253, 254
RES = 240
W3P = 228
U0, U1 = RC + 28672, RA
PB = [3*AS + 14*TILE, 3*AS + 7*TILE, 3*AS, AS]
STEP_REG = [RB, RB + 28672, RC, RB, RB + 28672, RC, RA + 16384, RB]

def main_pre(k):
    I = k.I
    t0, t1 = sT[0:2]
    I(f's_lshl_b32 s{t0}, s{sG}, 6'); I(f's_lshl_b32 s{t1}, s{sW}, 4'); I(f's_add_u32 s{t0}, s{t0}, s{t1}')
    I(f'v_add_u32 v15, s{t0}, v2'); I('v_mul_u32_u24 v15, 896, v15')
    I(f's_lshl_b32 s{t0}, s{sJ}, 7')
    I('v_lshl_add_u32 v15, v3, 3, v15')
    for t in range(4):
        I(f'buffer_load_dwordx2 {vr(52+2*t,2)}, v15, {srd("x")}, s{t0} offen offset:{t*32}')

def main_addr1(k):
    I, L = k.I, k.L
    t0, t1 = sT[0:2]
    I('v_bfe_u32 v15, v1, 2, 2')
    I('v_lshl_add_u32 v16, v3, 3, v15'); I('v_lshlrev_b32 v16, 7, v16')
    I('v_and_b32 v17, 3, v1'); I('v_lshl_add_u32 v16, v17, 3, v16')
    I('v_lshrrev_b32 v15, 1, v15'); I('v_and_b32 v17, 1, v3'); I('v_lshl_add_u32 v15, v17, 1, v15')
    I(f'v_lshl_add_u32 v{SB[0]}, v15, 5, v16')
    for t in range(1, 4): I(f'v_xor_b32 v{SB[t]}, {t*32}, v{SB[0]}')
    I(f's_mul_i32 s{t0}, s{sW}, {TILE}'); I(f's_add_u32 s{t0}, s{t0}, s{sGB}')
    I(f'v_add_u32 v{vB}, s{t0}, v4')
    I(f's_lshl_b32 s{t0}, s{sW}, 6'); I(f's_add_u32 s{t0}, s{t0}, s{sGB}'); I(f's_add_u32 s{t0}, s{t0}, {L.F_O}')
    I(f'v_lshlrev_b32 v{vOP}, 2, v2'); I(f'v_add_u32 v{vOP}, s{t0}, v{vOP}')

def main_addr2(k):
    I, L = k.I, k.L
    t0, t1, t2, t3 = sT[0:4]
    I(f's_mul_i32 s{t0}, s{sW}, {TILE}'); I(f's_add_u32 s{t0}, s{t0}, s{sGB}')
    I(f's_lshl_b32 s{t1}, s{sJ}, 11'); I(f's_add_u32 s{t0}, s{t0}, s{t1}')
    I(f'v_lshlrev_b32 v31, 8, v{vSIG}'); I('v_lshl_add_u32 v31, v2, 4, v31')
    I(f'v_add_u32 v{vST}, s{t0}, v31')
    I(f's_lshl_b32 s{t0}, s{sW}, 3'); I(f's_add_u32 s{t0}, s{t0}, s{sJ}'); I(f's_lshl_b32 s{t0}, s{t0}, 8')
    I(f's_add_u32 s{t0}, s{t0}, s{sGB}'); I(f's_add_u32 s{t0}, s{t0}, {L.ST}')
    I(f'v_add_u32 v9, s{t0}, v4')
    I('v_cmp_eq_u32 vcc, 0, v3'); I(f'v_cndmask_b32 v9, v{vBIG}, v9, vcc')
    stat_addrs(k, 10, 11)
    for t in range(4): I(f'v_mov_b32 v{CS1+4*t+2}, 0'); I(f'v_mov_b32 v{CS1+4*t+3}, 0')
    I(f'v_mov_b32 v{BXT+2}, 0'); I(f'v_mov_b32 v{BXT+3}, 0')
    I(f's_add_u32 s{t0}, s{sGB}, {L.GS + L.T0 - TILE}')
    I(f's_cmp_eq_u32 s{sG}, 31'); I(f's_cselect_b32 s{t0}, {BIG}, s{t0}')
    I(f's_sub_u32 s{t1}, s{sGB}, {L.GS - L.T0 - 4*TILE}')
    I(f's_cmp_eq_u32 s{sG}, 0'); I(f's_cselect_b32 s{t1}, {BIG}, s{t1}')
    I(f's_cmp_eq_u32 s{sW}, 3'); I(f's_cselect_b32 s{t0}, s{t0}, s{t1}')
    I(f's_cselect_b32 s{t2}, 0xc000c000, 0')
    I(f's_cmp_eq_u32 s{sW}, 0'); I(f's_cselect_b32 s{t2}, 0x00030003, s{t2}'); I(f's_mov_b32 s{t3}, s{t2}')
    I(f's_lshl_b32 s{t1}, s{sJ}, 11'); I(f's_add_u32 s{t0}, s{t0}, s{t1}')
    I(f'v_add_u32 v15, s{t0}, v31')
    I(f'v_cndmask_b32 v{vHS}, v{vBIG}, v15, s[{t2}:{t3}]')
    I(f's_lshl_b32 s{t0}, s{sW}, 5'); I(f's_lshl_b32 s{t1}, s{sJ}, 2'); I(f's_add_u32 s{t0}, s{t0}, s{t1}')
    I(f's_add_u32 s{t0}, s{t0}, s{sGB}'); I(f's_add_u32 s{t0}, s{t0}, {L.F_T}')
    I(f'v_add_u32 v{vTF}, s{t0}, v{vL0}')
    I(f's_lshl_b32 s{t0}, s{sW}, 4'); I(f's_add_u32 s{t0}, s{t0}, 16')
    I(f'v_add_u32 v15, s{t0}, v2')
    I(f'v_lshlrev_b32 v16, 8, v3'); I(f'v_add_u32 v16, s{sGB}, v16')
    for i, d in enumerate((-1, 1, -2, 2)):
        I(f'v_add_u32 v17, {d}, v15')
        I(f'v_lshrrev_b32 v{XA+i}, 4, v17'); I(f'v_mul_u32_u24 v{XA+i}, {TILE}, v{XA+i}')
        I('v_and_b32 v17, 15, v17'); I(f'v_lshl_add_u32 v{XA+i}, v17, 4, v{XA+i}')
        I(f'v_add_u32 v{XA+i}, v{XA+i}, v16')
    I('v_cmp_gt_u32 vcc, 2, v3')
    I(f'v_cndmask_b32 v{XA+4}, v{XA+1}, v{XA}, vcc'); I(f'v_cndmask_b32 v{XA+5}, v{XA+3}, v{XA+2}, vcc')
    I('v_lshrrev_b32 v15, 3, v1'); I(f'v_add_u32 v15, s{sW}, v15'); I('v_add_u32 v15, -1, v15')
    I(f's_add_u32 s{t0}, s{sW}, 1'); I(f's_min_u32 s{t0}, s{t0}, 3')
    I(f'v_med3_i32 v15, v15, 0, s{t0}')
    I('v_and_b32 v16, 7, v1'); I('v_min_u32 v16, 6, v16'); I('v_lshlrev_b32 v16, 2, v16')
    I('v_lshl_add_u32 v15, v15, 5, v16'); I(f'v_add_u32 v{vTP}, {L.F_T}, v15')
    I(f's_mov_b32 s{t0}, {BIG}')
    I(f's_cmp_eq_u32 s{sW}, 0'); I(f's_cselect_b32 s{t0}, {L.T0-TILE+236}, s{t0}')
    I(f's_cmp_eq_u32 s{sW}, 3'); I(f's_cselect_b32 s{t0}, {L.T0+4*TILE+12}, s{t0}')
    I('v_lshlrev_b32 v17, 8, v1'); I(f'v_add_u32 v17, s{t0}, v17')
    I('v_cmp_gt_u32 vcc, 56, v1'); I(f'v_cndmask_b32 v{vHP}, v{vBIG}, v17, vcc')


def a_read(k, m, t):
    b = AR + 16*(m % NSLOT) + 4*t
    k.I(f'ds_read_b64_tr_b16 {vr(b,2)}, v{SB[t]} offset:{m*4096}')
    k.I(f'ds_read_b64_tr_b16 {vr(b+2,2)}, v{SB[t]} offset:{m*4096+512}')
def a_preload(k):
    for m in range(NSLOT):
        for t in range(4): a_read(k, m, t)
def b_soff(k, region):
    for i in range(4): k.I(f's_mov_b32 s{sT[4+i]}, {region + i*4096}')
def b_loads(k, addr=None):
    for m in range(14):
        va = vB if addr is None else addr[m]
        k.I(f'buffer_load_dwordx4 {vr(BF+4*m,4)}, v{va}, {WS}, s{sT[4+(m>>2)]} offen offset:{(m&3)*1024} sc1')
def gemm(k, acc, vf=(), pre=0):
    I = k.I
    vf = list(vf)
    for _ in range(pre):
        if vf: I(vf.pop(0))
    per = (len(vf) + 47) // 48
    for m in range(14):
        for t in range(4):
            b = AR + 16*(m % NSLOT) + 4*t
            I(f'{MF16} {vr(acc+4*t,4)}, {vr(b,4)}, {vr(BF+4*m,4)}, {vr(acc+4*t,4)}')
            if m + NSLOT < 14: a_read(k, m + NSLOT, t)
            for _ in range(per):
                if vf: I(vf.pop(0))
def poll_stats(k, tagbits, name, D, va, vb):
    I = k.I
    I(f's_or_b32 s{sN}, s{sTAG}, {tagbits}')
    def chk():
        I(f'v_cmp_ne_u32 vcc, s{sN}, v{D+2}')
        I(f'v_cmp_ne_u32 s[{sT[2]}:{sT[3]}], s{sN}, v{D+6}')
        I(f's_or_b64 vcc, vcc, s[{sT[2]}:{sT[3]}]')
    k.poll3([f'buffer_load_dwordx3 {vr(D,3)}, v{va}, {WS}, 0 offen sc1',
             f'buffer_load_dwordx3 {vr(D+4,3)}, v{vb}, {WS}, 0 offen sc1'], chk, name)

def tr2(k, dst, vb, off, step, tag=None):
    k.I(f'ds_read_b64_tr_b16 {vr(dst,2)}, v{vb} offset:{off}', tag=tag)
    k.I(f'ds_read_b64_tr_b16 {vr(dst+2,2)}, v{vb} offset:{off+step}', tag=tag)

def w3_src(k, V):
    I = k.I
    t0, t1 = sT[0], sT[1]
    I(f's_lshl_b32 s{t0}, s{sJ}, 9'); I(f's_lshr_b32 s{t1}, s{sA}, 1'); I(f's_lshl_b32 s{t1}, s{t1}, 7'); I(f's_add_u32 s{t0}, s{t0}, s{t1}')
    I(f's_and_b32 s{t1}, s{sA}, 1'); I(f's_mul_i32 s{t1}, s{t1}, {8*3584}'); I(f's_add_u32 s{t0}, s{t0}, s{t1}')
    I(f's_cmp_eq_u32 s{sJ}, 7'); I(f's_cselect_b32 s{t0}, {BIG}, s{t0}')
    I(f'v_lshrrev_b32 v15, 3, v1'); I(f'v_mul_u32_u24 v{V}, 3584, v15')
    I('v_bfe_u32 v15, v1, 4, 1'); I('v_lshlrev_b32 v15, 2, v15'); I('v_and_b32 v16, 7, v1'); I('v_xor_b32 v15, v15, v16')
    I(f'v_lshl_add_u32 v{V}, v15, 4, v{V}'); I(f'v_add_u32 v{V}, s{t0}, v{V}')
def w3_rd_base(k, V, base):
    I = k.I
    t0, t1 = sT[0], sT[1]
    I('v_lshrrev_b32 v15, 5, v1'); I('v_lshlrev_b32 v15, 3, v15')
    I('v_bfe_u32 v17, v1, 2, 2'); I('v_add_u32 v15, v15, v17')
    I('v_and_b32 v16, 3, v1')
    I(f'v_and_b32 v{V}, 1, v3'); I(f'v_lshlrev_b32 v{V}, 5, v{V}'); I(f'v_lshl_add_u32 v{V}, v16, 3, v{V}')
    I(f'v_lshl_add_u32 v{V}, v15, 7, v{V}')
    I('v_lshrrev_b32 v17, 1, v17'); I(f'v_lshl_add_u32 v{V}, v17, 6, v{V}')
    I(f's_and_b32 s{t0}, s{sA}, 1'); I(f's_lshl_b32 s{t0}, s{t0}, 6'); I(f'v_xor_b32 v{V}, s{t0}, v{V}')
    I(f's_lshr_b32 s{t0}, s{sA}, 1'); I(f's_lshl_b32 s{t0}, s{t0}, 11'); I(f's_add_u32 s{t0}, s{t0}, {base}')
    I(f'v_add_u32 v{V}, s{t0}, v{V}')
def w3_dma(k, V, sM, m, half, dest, tag):
    I = k.I
    t1 = sT[1]
    I(f's_add_u32 m0, s{sM}, {dest}')
    I(f's_mov_b32 s{t1}, {m*16*3584 + half*256}')
    I(f'buffer_load_dwordx4 v{V}, {srd("w3")}, s{t1} offen lds', tag=tag)
def w4_src(k, V):
    I = k.I
    t0, t1 = sT[0], sT[1]
    I(f's_lshl_b32 s{t0}, s{sJ}, 8'); I(f's_lshl_b32 s{t1}, s{sA}, 3'); I(f's_add_u32 s{t0}, s{t0}, s{t1}')
    I(f'v_lshrrev_b32 v15, 3, v1'); I(f'v_add_u32 v15, s{t0}, v15'); I(f'v_mul_u32_u24 v{V}, 896, v15')
    I('v_lshlrev_b32 v15, 1, v3'); I('v_and_b32 v16, 7, v1'); I('v_xor_b32 v15, v15, v16')
    I(f'v_lshl_add_u32 v{V}, v15, 4, v{V}')
def w4_dma_list(k, V, sM, sS, b):
    I = k.I
    out = []
    for lc in range(7):
        def f(lc=lc):
            if b >= k.o.get('now4', 9): return
            if lc == 0: I(f's_mov_b32 s{sS}, {b*32*896}')
            I(f's_add_u32 m0, s{sM}, {STEP_REG[b] + lc*4096 - lc*128}')
            I(f'buffer_load_dwordx4 v{V}, {srd("w4")}, s{sS} offen offset:{lc*128} lds', tag=f'w4_{b}')
        out.append(f)
    return out
def pat(k, P):
    I = k.I
    I('v_lshrrev_b32 v15, 2, v2'); I('v_and_b32 v16, 1, v3'); I('v_cmp_eq_u32 vcc, v15, v16')
    I(f'v_mov_b32 v15, 0x3f803f80')
    for i in range(4): I(f'v_cndmask_b32 v{P+i}, 0, v15, vcc')
def up_addrs(k, vX, vS, vU, ubase):
    I = k.I
    t0 = sT[0]
    I('v_bfe_u32 v15, v1, 4, 1'); I(f'v_mul_u32_u24 v{vX}, {TILE}, v15')
    I(f'v_lshl_add_u32 v{vX}, v2, 4, v{vX}')
    I('v_lshrrev_b32 v16, 5, v1'); I(f'v_lshl_add_u32 v{vX}, v16, 8, v{vX}')
    I(f'v_and_b32 v{vS}, 31, v1'); I(f'v_lshlrev_b32 v{vS}, 5, v{vS}'); I(f'v_add_u32 v{vS}, {L_STAT}, v{vS}')
    I(f'v_lshlrev_b32 v{vU}, 10, v15'); I(f'v_lshl_add_u32 v{vU}, v2, 4, v{vU}'); I(f'v_lshl_add_u32 v{vU}, v16, 8, v{vU}')
    I(f's_lshl_b32 s{t0}, s{sA}, 12'); I(f's_add_u32 s{t0}, s{t0}, {ubase}')
    I(f'v_add_u32 v{vU}, s{t0}, v{vU}')
def up(k, acc, afn, BB, vX, vS, hooks, pre=True, half=None):
    I = k.I
    def b_rd(m, b):
        d = vr(BB + 8*(m&1) + 4*b, 4)
        if m < 28: I(f'ds_read_b128 {d}, v{vX} offset:{b*2*TILE + m*512}')
        else: I(f'ds_read_b128 {d}, v{vS} offset:{b*1024}')
    if pre: b_rd(0, 0); b_rd(0, 1)
    for m in range(29):
        for b in range(2):
            if m + 1 < 29: b_rd(m + 1, b)
            I(f'{MF32} {vr(acc+16*b,16)}, {vr(afn(m),4)}, {vr(BB+8*(m&1)+4*b,4)}, ' + ('0' if m == 0 else vr(acc+16*b, 16)))
            if b == 0 and half: half(m)
        if m in hooks: hooks[m]()
def gelu_groups(acc, GT, GC, PK, npk):
    out = []
    for b in range(2):
        G = GC + 4*b
        for gp in range(2):
            Lq = []
            x = acc + 16*b + 8*gp; tt = GT + 8*gp
            for i in range(8): Lq.append(f'v_mul_f32 v{tt+i}, v{x+i}, v{x+i}')
            for i in range(8): Lq.append(f'v_fma_f32 v{tt+i}, v{tt+i}, v{G+1}, v{G}')
            for i in range(8): Lq.append(f'v_mul_f32 v{tt+i}, v{tt+i}, v{x+i}')
            for i in range(8): Lq.append(f'v_exp_f32 v{tt+i}, v{tt+i}')
            for i in range(8): Lq.append(f'v_fma_f32 v{tt+i}, v{tt+i}, v{G+2}, v{G+2}')
            for i in range(8): Lq.append(f'v_rcp_f32 v{tt+i}, v{tt+i}')
            for i in range(8): Lq.append(f'v_mul_f32 v{x+i}, v{x+i}, v{tt+i}')
            P = PK + 4*((2*b + gp) % npk)
            for i in range(4): Lq.append(f'v_cvt_pk_bf16_f32 v{P+i}, v{x+2*i}, v{x+2*i+1}')
            out.append((Lq, P, b*2048 + gp*512))
    return out

def publish_stats(k, src, sreg, tagbits, T, mid=None):
    e, I = k.e, k.I
    P = T
    pack_pairs(k, src, P)
    k.stores([f'buffer_store_dwordx4 {vr(P,4)}, v{vST}, {WS}, s{sreg} offen',
              f'buffer_store_dwordx4 {vr(P+4,4)}, v{vST}, {WS}, s{sreg} offen offset:1024'])
    S = T + 8
    I(f'v_pk_add_f32 {vr(S,2)}, {vr(src,2)}, {vr(src+2,2)}')
    I(f'v_pk_mul_f32 {vr(S+2,2)}, {vr(src,2)}, {vr(src,2)}')
    I(f'v_pk_fma_f32 {vr(S+2,2)}, {vr(src+2,2)}, {vr(src+2,2)}, {vr(S+2,2)}')
    for i in range(4, 16, 2):
        I(f'v_pk_add_f32 {vr(S,2)}, {vr(S,2)}, {vr(src+i,2)}')
        I(f'v_pk_fma_f32 {vr(S+2,2)}, {vr(src+i,2)}, {vr(src+i,2)}, {vr(S+2,2)}')
    I(f'v_add_f32 v{S+4}, v{S}, v{S+1}')
    I(f'v_add_f32 v{S+5}, v{S+2}, v{S+3}')
    k.allred2(S+4, S+5, S, 'v_add_f32')
    I(f'v_or_b32 v{S+6}, {tagbits}, v{vTAG}')
    e.wait_vm0()
    k.stores([f'buffer_store_dwordx3 {vr(S+4,3)}, v9, {WS}, 0 offen'])
    if mid: mid()

def x1_dma(k, m0_, vaddr):
    I = k.I
    t0, t1 = sT[0], sT[1]
    I(f's_mul_i32 s{t0}, s{sA}, {TILE}')
    for i in range(7):
        m = m0_ + i
        if i % 4 == 0:
            I(f's_mov_b32 s{t1}, {k.L.X1 + m*1024}')
            I(f's_add_u32 m0, s{t0}, {RA + m*1024}')
        I(f'buffer_load_dwordx4 v{vaddr}, {WS}, s{t1} offen offset:{(i&3)*1024} sc1 lds', tag='x1')

def main_rest(k):
    e, I, L, o = k.e, k.I, k.L, k.o
    t0, t1, t2, t3 = sT[0:4]
    sR = sT[8]
    main_addr1(k)
    for t in range(4):
        for d in range(2):
            I(f'v_lshlrev_b32 v{HR+4*t+2*d}, 16, v{52+2*t+d}')
            I(f'v_and_b32 v{HR+4*t+2*d+1}, 0xffff0000, v{52+2*t+d}')
    b_soff(k, L.O)
    I(f's_mov_b32 s{sR}, {L.H}')
    k.o_flag()
    k.bar()
    a_preload(k)
    def chk(): I(f'v_cmp_ne_u32 vcc, s{sTAG}, v16')
    k.poll3([f'buffer_load_dword v16, v{vOP}, {WS}, 0 offen sc1'], chk, 'o')
    k.stamp('po')
    b_loads(k)
    k.bar()
    gemm(k, HR, k.capture(lambda: main_addr2(k)), 30)
    k.stamp('hg')
    def mid():
        for t in range(4): I(f'v_add_u32 v{SB[t]}, {RB}, v{SB[t]}')
        I('v_lshlrev_b32 v15, 3, v2'); I(f'v_add_u32 v15, {L_CS1}, v15')
        b_soff(k, L.H)
        a_preload(k)
    publish_stats(k, HR, sR, 1, BF, mid)
    k.stamp('hp')
    k.bar()
    if k.stop == 'h': return
    for t in range(4): I(f'ds_read_b64 {vr(CS1+4*t,2)}, v15 offset:{t*128}')
    I(f's_mov_b32 s{sR}, {L.T0}')
    D = 32
    poll_stats(k, 1, 'h', D, 10, 11)
    k.stamp('ph')
    b_loads(k)
    k.bar()
    row_stats(k, D)
    I('v_cmp_eq_u32 vcc, 0, v3')
    I(f'v_cndmask_b32_e64 v{D+3}, 0, -v{D}, vcc')
    k.split_b(D+3, BXT, D+2)
    for t in range(4):
        I(f'{MF16} {vr(ACC+4*t,4)}, {vr(CS1+4*t,4)}, {vr(BXT,4)}, 0')
    I(f'v_add_f32 v{D+2}, 0x3727c5ac, v{D+1}'); I(f'v_rsq_f32 v{D+4}, v{D+2}')
    I(f'v_mul_f32 v{D+2}, v{D+4}, v{D+4}'); I(f'v_mul_f32 v{D+2}, v{D+2}, v{D+1}')
    I(f'v_add_f32 v{D+2}, 0x3727c5ac, v{D+2}'); I(f'v_rsq_f32 v{D+2}, v{D+2}')
    I(f'v_mul_f32_e64 v{BXT}, -v{D}, v{D+4}')
    I(f'v_mul_f32 v{D+6}, v{D+4}, v{D+2}')
    G = D
    gelu_consts(k, D+6, G)
    I(f'v_mov_b32 v{D+6}, v{G+1}')
    gemm(k, ACC)
    k.stamp('tg')
    T = BF
    P = T + 16
    for h in range(2):
        x = ACC + 8*h; tt = T + 8*h
        for i in range(0, 8, 2): I(f'v_pk_mul_f32 {vr(tt+i,2)}, {vr(x+i,2)}, {vr(x+i,2)}')
        for i in range(0, 8, 2): I(f'v_pk_fma_f32 {vr(tt+i,2)}, {vr(tt+i,2)}, {vr(D+6,2)}, {vr(G,2)} op_sel_hi:[1,0,0]')
        for i in range(0, 8, 2): I(f'v_pk_mul_f32 {vr(tt+i,2)}, {vr(tt+i,2)}, {vr(x+i,2)}')
        for i in range(8): I(f'v_exp_f32 v{tt+i}, v{tt+i}')
        for i in range(0, 8, 2): I(f'v_pk_fma_f32 {vr(tt+i,2)}, {vr(tt+i,2)}, {vr(G+2,2)}, {vr(G+2,2)} op_sel_hi:[1,0,0]')
        for i in range(8): I(f'v_rcp_f32 v{tt+i}, v{tt+i}')
        for i in range(0, 8, 2): I(f'v_pk_mul_f32 {vr(x+i,2)}, {vr(x+i,2)}, {vr(tt+i,2)}')
        k.cvt(P+4*h, x, 8)
        I(f'v_permlane16_swap_b32 v{P+4*h}, v{P+4*h+2}')
        I(f'v_permlane16_swap_b32 v{P+4*h+1}, v{P+4*h+3}')
        k.stores([f'buffer_store_dwordx4 {vr(P+4*h,4)}, v{vST}, {WS}, s{sR} offen offset:{h*1024}'], tag='tl')
    I(f'buffer_store_dwordx4 {vr(P,4)}, v{vHS}, {WS}, 0 offen sc1')
    I(f'buffer_store_dwordx4 {vr(P+4,4)}, v{vHS}, {WS}, 0 offen offset:1024 sc1')
    for i in range(0, 16, 2):
        I(f'v_pk_fma_f32 {vr(ACC+i,2)}, {vr(HR+i,2)}, {vr(D+4,2)}, {vr(BXT,2)} op_sel_hi:[1,0,0]')
    for t in range(4): I(f'v_subrev_u32 v{SB[t]}, {RB}, v{SB[t]}')
    b_soff(k, L.T0 - TILE)
    I(f's_mov_b32 s{sR}, {L.X1}')
    w3_rd_base(k, 14, RC)
    e.wait_tag('tl')
    k.stores([f'buffer_store_dword v{vTAG}, v{vTF}, {WS}, 0 offen'])
    k.stamp('tp')
    k.bar()
    if k.stop == 't': return
    a_preload(k)
    for i in range(3): tr2(k, W3P + 4*i, 14, i*4096, 512)
    addr = [XA]*3 + [XA+4] + [XA+1]*3 + [XA+2]*3 + [XA+5] + [XA+3]*3
    def chk():
        I('v_max_u32 v18, v18, v19')
        I(f'v_cmp_ne_u32 vcc, s{sTAG}, v16')
        I(f'v_cmp_eq_u32 s[{t2}:{t3}], -1, v18')
        I(f's_or_b64 vcc, vcc, s[{t2}:{t3}]')
    pl = [f'buffer_load_dword v16, v{vTP}, {WS}, s{sGB} offen sc1',
          f'buffer_load_dwordx2 v[18:19], v{vHP}, {WS}, s{sGB} offen sc1']
    k.poll3(pl, chk, 't')
    k.stamp('pt')
    b_loads(k, addr)
    e.wait_lg0(); k.bar()
    sM, sS = sT[9], sT[10]
    I(f's_lshl_b32 s{sM}, s{sA}, 10')
    gemm(k, ACC, k.capture(lambda: w4_src(k, 0)), 30)
    k.stamp('xg')
    def mid():
        for i in range(0, 16, 2):
            I(f'v_pk_add_f32 {vr(RES+i,2)}, {vr(HR+i,2)}, {vr(ACC+i,2)}')
    publish_stats(k, ACC, sR, 2, BF, mid)
    k.stamp('xp')
    k.bar()
    if k.stop == 'x1': return
    def F(m): return W3P + 4*m if m < 3 else 128 + 4*(m - 3)
    AC, BB, GT, GC, PK, PAT, C, AXT = 44, 76, 92, 108, 116, 124, 32, 36
    vX, vS, vU = 5, 6, 7
    pat(k, PAT)
    up_addrs(k, vX, vS, vU, U1)
    I(f'v_subrev_u32 v8, {RC - RB}, v14')
    def frd(m): tr2(k, F(m), 8 if m < 17 else 14, (m - 3 if m < 17 else m - 17)*4096, 512)
    nf = o.get('fr', 12)
    for m in range(3, 3 + nf): frd(m)
    poll_stats(k, 2, 'x', D, 10, 11)
    k.stamp('px')
    x1_dma(k, 0, vB); x1_dma(k, 7, vB)
    for m in range(3 + nf, 28): frd(m)
    row_stats(k, D)
    SR = 40
    I(f'v_mul_f32 v{D+3}, -1.0, v{D}')
    k.split_b(D+3, SR, D+2)
    I(f'v_add_f32 v{D+2}, 0x3727c5ac, v{D+1}'); I(f'v_rsq_f32 v{D+4}, v{D+2}')
    gelu_consts(k, D+4, SR+4)
    I(f's_lshl_b32 s{t0}, s{sW}, 9'); I(f's_add_u32 s{t0}, s{t0}, {L_STAT}')
    I('v_lshlrev_b32 v15, 5, v2'); I(f'v_add_u32 v15, s{t0}, v15')
    I(f'ds_write_b128 v15, {vr(SR,4)}'); I(f'ds_write_b128 v15, {vr(SR+4,4)} offset:16')
    e.wait_lg0(); k.bar('bf')
    def cs(m): I(f'{MF16} {vr(C,4)}, {vr(PAT,4)}, {vr(F(m),4)}, ' + ('0' if m == 0 else vr(C, 4)))
    dm = []
    for b in range(3): dm += w4_dma_list(k, 0, sM, sS, b)
    nd = o.get('nd', 7)
    for m in range(28):
        if m < nd: dm.pop(0)()
        cs(m)
    e.wait_tag('x1'); k.bar('b8')
    while dm: dm.pop(0)()
    I(f'v_mov_b32 v{AXT+2}, 0'); I(f'v_mov_b32 v{AXT+3}, 0')
    k.split_a(C, AXT, C+1)
    I(f'ds_read_b128 {vr(GC,4)}, v{vS} offset:16'); I(f'ds_read_b128 {vr(GC+4,4)}, v{vS} offset:1040')
    I(f'ds_read_b128 {vr(BB,4)}, v{vX}'); I(f'ds_read_b128 {vr(BB+4,4)}, v{vX} offset:{2*TILE}')
    e.wait_tag('w4_1'); k.bar('ma')
    I(f's_setprio {o.get("pu", 1)}')
    e.wait_tag('w4_2'); k.bar('m2')
    hooks = {}
    m3 = o.get('m3', 15)
    for b in (3, 4, 5): dm += w4_dma_list(k, 0, sM, sS, b)
    def one(i):
        k.stamp(f'h{i}')
        if i == m3: k.bar('m3')
        if i % 4 != o.get('dsk', 9) and len(dm) > (7 if i < m3 else 0): dm.pop(0)()
    for i in range(29): hooks[i] = lambda i=i: one(i)
    up(k, AC, lambda m: F(m) if m < 28 else AXT, BB, vX, vS, hooks, pre=False)
    I(f's_setprio {o.get("pgb", 0)}')
    assert not dm
    e.wait_tag('w4_4'); k.bar('m6')
    for b in (6, 7): dm += w4_dma_list(k, 0, sM, sS, b)
    for _ in range(4): dm.pop(0)()
    cnt = 0
    m7 = o.get('m7', 30)
    for gi, (Lq, Pk, off) in enumerate(gelu_groups(AC, GT, GC, PK, 2)):
        for t in Lq:
            I(t); cnt += 1
            if cnt == m7: e.wait_tag('w4_5'); k.bar('m7')
            if cnt == o.get('m9', 165):
                assert not dm and gi >= 2
                e.wait_vm0(); e.wait_lg0(); k.bar('m9')
            if cnt % o.get('dper', 4) == 0 and len(dm) > (7 if cnt < m7 else 0): dm.pop(0)()
        I(f'ds_write_b128 v{vU}, {vr(Pk,4)} offset:{off}')
    I('s_setprio 0')
    e.wait_lg0(); k.bar('m10')
    SEL, LD = 32, 76
    k.sel_mat(SEL, 16)
    I(f's_mul_i32 s{t0}, s{sA}, {7*TILE}'); I(f's_sub_u32 s{t0}, {PB[0]}, s{t0}')
    I(f's_cmp_eq_u32 s{sA}, 3'); I(f's_cselect_b32 s{t0}, {PB[3]}, s{t0}')
    I(f's_lshl_b32 s{t1}, s{sJ}, 11'); I(f's_add_u32 s{t0}, s{t0}, s{t1}')
    I(f's_add_u32 s{t0}, s{t0}, s{sGB}')
    I('v_and_b32 v5, 31, v1'); I('v_lshlrev_b32 v5, 4, v5'); I(f'v_add_u32 v5, s{t0}, v5')
    I('v_lshrrev_b32 v16, 5, v1'); I(f'v_mul_u32_u24 v17, {TILE}, v16'); I('v_add_u32 v6, v5, v17')
    I('v_cmp_eq_u32 vcc, 0, v16'); I(f'v_cndmask_b32 v5, v{vBIG}, v5, vcc')
    for i in range(4): I(f's_mov_b32 s{sT[4+i]}, {2*i*TILE}')
    I(f's_lshl_b32 s{t0}, s{sG}, 6'); I(f's_lshl_b32 s{t1}, s{sA}, 4'); I(f's_add_u32 s{t0}, s{t0}, s{t1}')
    I(f'v_add_u32 v7, s{t0}, v2'); I('v_mul_u32_u24 v7, 896, v7')
    I(f'v_lshl_add_u32 v7, v{vSIG}, 4, v7')
    I(f's_lshl_b32 s{sT[8]}, s{sJ}, 7')
    I(f's_lshl_b32 s{t0}, s{sA}, 7'); I(f's_add_u32 s{t0}, s{t0}, {L.F_P}')
    I('v_min_u32 v15, 27, v1'); I('v_lshlrev_b32 v15, 2, v15'); I(f'v_add_u32 v15, s{t0}, v15')
    if o.get('m11', 0): k.bar()
    def chk(): I(f'v_cmp_ne_u32 vcc, s{sTAG}, v16')
    k.poll3([f'buffer_load_dword v16, v15, {WS}, s{sGB} offen sc1'], chk, 'p')
    k.stamp('pf')
    for i in range(4):
        for t in range(4):
            I(f'buffer_load_dwordx4 {vr(LD+16*i+4*t,4)}, v{6 if i < 3 else 5}, {WS}, s{sT[4+i]} offen offset:{t*512} sc1')
    for i in range(4):
        for t in range(4):
            I(f'{MF16} {vr(RES+4*t,4)}, {vr(SEL,4)}, {vr(LD+16*i+4*t,4)}, {vr(RES+4*t,4)}')
    pack_pairs(k, RES, 52)
    of = o.get('outf', '')
    I(f'buffer_store_dwordx4 v[52:55], v7, {srd("out")}, s{sT[8]} offen {of}')
    I(f'buffer_store_dwordx4 v[56:59], v7, {srd("out")}, s{sT[8]} offen offset:64 {of}')
    k.stamp('end')

vT3, vT2, vT4, vTQ, vTD = 202, 203, 204, 205, 206
def touch_addrs(k):
    I, L = k.I, k.L
    t0, t1, t2 = sT[0:3]
    I(f's_and_b32 s{t0}, s{sG}, 3'); I(f's_lshl_b32 s{t0}, s{t0}, 2'); I(f's_add_u32 s{t0}, s{t0}, s{sA}')
    I(f's_mul_i32 s{t1}, s{t0}, 3584'); I(f's_lshl_b32 s{t2}, s{sJ}, 9'); I(f's_add_u32 s{t1}, s{t1}, s{t2}')
    I(f's_cmp_eq_u32 s{sJ}, 7'); I(f's_cselect_b32 s{t1}, {BIG}, s{t1}')
    I('v_lshrrev_b32 v15, 1, v1'); I(f'v_mul_u32_u24 v{vT3}, {16*3584}, v15'); I('v_and_b32 v15, 1, v1')
    I(f'v_lshl_add_u32 v{vT3}, v15, 7, v{vT3}'); I(f'v_add_u32 v{vT3}, s{t1}, v{vT3}')
    I(f's_mul_i32 s{t0}, s{t0}, 896'); I(f's_lshl_b32 s{t2}, s{sJ}, 7'); I(f's_add_u32 s{t1}, s{t0}, s{t2}')
    I(f'v_mul_u32_u24 v{vT2}, {16*896}, v1'); I(f'v_add_u32 v{vT2}, s{t1}, v{vT2}')
    I(f's_mul_i32 s{t2}, s{sJ}, {256*896}'); I(f's_add_u32 s{t1}, s{t0}, s{t2}')
    I('v_lshrrev_b32 v15, 3, v1'); I(f'v_mul_u32_u24 v{vT4}, {16*896}, v15'); I('v_and_b32 v15, 7, v1'); I('v_min_u32 v15, 6, v15')
    I(f'v_lshl_add_u32 v{vT4}, v15, 7, v{vT4}'); I(f'v_add_u32 v{vT4}, s{t1}, v{vT4}')
    I(f's_mul_i32 s{t1}, s{sJ}, {AS}'); I(f's_mul_i32 s{t2}, s{sA}, {TILE}'); I(f's_add_u32 s{t1}, s{t1}, s{t2}'); I(f's_add_u32 s{t1}, s{t1}, {L.P0}')
    I('v_min_u32 v15, 55, v1'); I(f'v_lshlrev_b32 v{vTQ}, 7, v15'); I(f'v_add_u32 v{vTQ}, s{t1}, v{vTQ}')
def touch(k, key, dflt='-'):
    I = k.I
    t1 = sT[1]
    for ch in k.o.get(key, dflt):
        if ch in 'ab': I(f'buffer_load_dword v{vTD}, v{vT3}, {srd("w3")}, 0 offen offset:{256 if ch == "b" else 0}')
        elif ch in 'o12': I(f'buffer_load_dword v{vTD}, v{vT2}, {srd("wo" if ch == "o" else "w" + ch)}, 0 offen')
        elif ch in '45':
            I(f's_mov_b32 s{t1}, {128*896 if ch == "5" else 0}')
            I(f'buffer_load_dword v{vTD}, v{vT4}, {srd("w4")}, s{t1} offen')
        elif ch in 'pq':
            I(f's_add_u32 s{t1}, s{sGB}, {7168 if ch == "q" else 0}')
            I(f'buffer_load_dword v{vTD}, v{vTQ}, {WS}, s{t1} offen sc1')
        else: continue
        k.e.vm[-1]['dst'] = set()

def aux_burst2(k):
    I, o = k.I, k.o
    touch_addrs(k)
    touch(k, 'tO')
    w3_src(k, 12)
    for m in range(o['w2a']): w3_dma(k, 12, k.sMW, m, 0, RC + m*4096, 'w3')

def aux_pre(k): pass

def aux_rest(k):
    e, I, L, o = k.e, k.I, k.L, k.o
    t0, t1, t2, t3 = sT[0:4]
    sM = k.sMW; sS = sT[5]
    A0, AC, BB, GT, GC, PK, PAT, C, AXT, ONE = 32, 144, 176, 192, 208, 216, 232, 236, 240, 244
    n0 = o['w2a']; nH = o.get('nH', 11); nT = 28 - n0 - nH
    assert nT <= 8 and n0 <= 10
    def rd(m0, n, s0=0):
        for i in range(n): tr2(k, A0 + 4*(m0+i), 8, (s0+i)*4096, 512)
    def cs(m0, n):
        for m in range(m0, m0 + n):
            I(f'{MF16} {vr(C,4)}, {vr(PAT,4)}, {vr(A0+4*m,4)}, ' + ('0' if m == 0 else vr(C, 4)))
    def dma(m0, n, s0=0):
        for i in range(n): w3_dma(k, 12, sM, m0 + i, 0, RC + (s0+i)*4096, 'w3')
    w3_rd_base(k, 8, RC)
    k.o_flag()
    k.bar()
    rd(0, n0)
    I('v_bfe_u32 v15, v1, 2, 2')
    I('v_lshl_add_u32 v16, v3, 3, v15'); I('v_lshlrev_b32 v16, 7, v16')
    I('v_and_b32 v17, 3, v1'); I('v_lshl_add_u32 v16, v17, 3, v16')
    I('v_lshrrev_b32 v15, 1, v15'); I('v_and_b32 v17, 1, v3'); I('v_lshl_add_u32 v15, v17, 1, v15')
    I(f'v_xor_b32 v15, s{sA}, v15')
    I('v_lshl_add_u32 v6, v15, 5, v16'); I(f'v_add_u32 v6, {RB}, v6')
    CB = 144
    for m in range(14): tr2(k, CB + 4*m, 6, m*4096, 512)
    for i in range(4): I(f'v_mov_b32 v{ONE+i}, 0x3f803f80')
    pat(k, PAT)
    for m in range(14):
        I(f'{MF16} v[248:251], {vr(ONE,4)}, {vr(CB+4*m,4)}, ' + ('0' if m == 0 else 'v[248:251]'))
    cs(0, n0)
    k.split_a(248, 252, 254)
    I(f's_lshl_b32 s{t0}, s{sA}, 7'); I(f's_add_u32 s{t0}, s{t0}, {L_CS1}')
    I('v_lshlrev_b32 v15, 3, v2'); I(f'v_add_u32 v15, s{t0}, v15')
    I('ds_write_b64 v15, v[252:253]')
    e.wait_lg0(); k.bar()
    touch(k, 'tH')
    dma(n0, nH)
    e.wait_vm0(); k.stamp('a6'); k.bar()
    if k.stop == 'h': return
    te = o.get('te', 0)
    for m in range(te): k.sq_dma('w2', RA, m, 'w2')
    rd(n0, nH); cs(n0, nH)
    e.wait_lg0(); k.bar()
    touch(k, 'tT')
    for m in range(te, 14): k.sq_dma('w2', RA, m, 'w2')
    for m in range(3): w3_dma(k, 12, sM, m, 1, RC + m*4096, 'w3')
    dma(n0 + nH, nT, 3)
    e.wait_vm0(); k.stamp('a7'); k.bar()
    if k.stop == 't': return
    xe = o.get('xe', 0)
    for m in range(3, 3 + xe): w3_dma(k, 12, sM, m, 1, RB + (m-3)*4096, 'w3')
    rd(n0 + nH, nT, 3); cs(n0 + nH, nT)
    e.wait_lg0(); k.bar()
    touch(k, 'tX')
    for m in range(3 + xe, 28): w3_dma(k, 12, sM, m, 1, RB + (m-3)*4096, 'w3')
    vX, vS, vU = 24, 25, 12
    I(f'v_mov_b32 v{AXT+2}, 0'); I(f'v_mov_b32 v{AXT+3}, 0')
    k.split_a(C, AXT, C+1)
    VB, VB2 = 5, 28
    I('v_bfe_u32 v15, v1, 2, 2'); I('v_and_b32 v16, 1, v3')
    I('v_lshl_add_u32 v17, v16, 2, v15'); I('v_lshlrev_b32 v18, 7, v17')
    I('v_lshrrev_b32 v17, 1, v17'); I('v_lshl_add_u32 v18, v17, 5, v18')
    I('v_and_b32 v17, 3, v1'); I('v_lshl_add_u32 v18, v17, 3, v18')
    I('v_lshrrev_b32 v17, 1, v3'); I('v_lshl_add_u32 v18, v17, 11, v18')
    I(f's_mul_i32 s{t0}, s{sA}, 7')
    for i in range(4):
        I(f's_add_u32 s{t1}, s{t0}, {i}'); I(f's_and_b32 s{t2}, s{t1}, 3'); I(f's_lshl_b32 s{t2}, s{t2}, 5')
        I(f's_lshr_b32 s{t1}, s{t1}, 2'); I(f's_lshl_b32 s{t1}, s{t1}, 12')
        I(f'v_xor_b32 v{VB+i}, s{t2}, v18'); I(f'v_add_u32 v{VB+i}, s{t1}, v{VB+i}')
        I(f'v_add_u32 v{VB2+i}, {RB}, v{VB+i}')
    I(f's_mul_i32 s{t0}, s{sJ}, {TILE}'); I(f's_add_u32 s{t0}, s{t0}, s{sGB}')
    I(f's_mul_i32 s{t2}, s{sA}, {14*256}'); I(f's_add_u32 s{t0}, s{t0}, s{t2}')
    I(f'v_lshlrev_b32 v9, 8, v{vSIG}'); I('v_lshl_add_u32 v9, v2, 4, v9'); I(f'v_add_u32 v9, s{t0}, v9')
    I(f's_add_u32 s{t0}, s{t0}, {12*256}')
    I('v_lshrrev_b32 v15, 1, v3'); I('v_lshlrev_b32 v15, 8, v15'); I('v_lshl_add_u32 v15, v2, 4, v15')
    I('v_and_b32 v16, 1, v3'); I('v_lshl_add_u32 v15, v16, 3, v15')
    I(f'v_add_u32 v10, s{t0}, v15')
    I(f's_lshl_b32 s{t0}, s{sJ}, 4'); I(f's_lshl_b32 s{t1}, s{sA}, 2'); I(f's_add_u32 s{t0}, s{t0}, s{t1}')
    I(f's_add_u32 s{t0}, s{t0}, s{sGB}'); I(f's_add_u32 s{t0}, s{t0}, {L.F_P}')
    I(f'v_add_u32 v11, s{t0}, v{vL0}')
    I(f'v_mov_b32 v13, s{sTAG}')
    I(f'v_add_u32 v14, {U0}, v4')
    for n in range(4): I(f's_mov_b32 s{sT[8+n]}, {PB[n]}')
    up_addrs(k, vX, vS, vU, U0)
    e.wait_vm0(); k.stamp('a8'); k.bar()
    if k.stop == 'x1': return
    I('s_setprio 2')
    k.bar('bf')
    k.bar('b8')
    def A4(b): return 32 + 28*(b & 3)
    def take_list(b):
        out = []
        for lam in range(7):
            reg = STEP_REG[b]
            vb = (VB2 if reg >= RB else VB) + (lam & 3)
            off = (reg - RB if reg >= RB else reg) + (lam >> 2)*4096
            for h in range(2):
                out.append(lambda d=A4(b)+4*lam+2*h, vb=vb, off=off+1024*h: I(f'ds_read_b64_tr_b16 {vr(d,2)}, v{vb} offset:{off}', tag=f'r4_{b}'))
        return out
    ma = o.get('ma', 17); m2 = o.get('m2', 27)
    assert ma >= 13
    tk = take_list(0) + take_list(1)
    def hk(m):
        if m == ma: k.bar('ma')
        if m >= ma:
            for _ in range(2):
                if tk: tk.pop(0)()
        if m == 26: I(f'ds_read_b128 {vr(GC,4)}, v{vS} offset:16'); I(f'ds_read_b128 {vr(GC+4,4)}, v{vS} offset:1040')
        if m == m2:
            assert not tk
            e.wait_tag('r4_1'); k.bar('m2')
    def hh(m):
        if m > ma:
            for _ in range(o.get('tkh', 1)):
                if tk: tk.pop(0)()
    up(k, AC, lambda m: A0 + 4*m if m < 28 else AXT, BB, vX, vS, {m: (lambda m=m: hk(m)) for m in range(29)}, half=hh)
    I(f's_setprio {o.get("pga", 0)}')
    k.stamp('u0')
    gl = []
    for Lq, Pk, off in gelu_groups(AC, GT, GC, PK, 2): gl += Lq + [f'ds_write_b128 v{vU}, {vr(Pk,4)} offset:{off}']
    for f in take_list(2): f()
    a3 = o.get('a3', 110)
    for n, t in enumerate(gl):
        if n == a3:
            e.wait_tag('r4_2'); k.stamp('g3'); k.bar('m3')
        if n % 20 == 0: k.stamp(f'g{n}')
        I(t)
    I(f's_setprio {o.get("pd", 1)}')
    e.wait_lg0(); k.bar('m6')
    DA = 144
    UBR = [16, 20, 24]
    nk = 4
    seq = [(b, n) for b in range(nk) for n in range(4)] + [(b, n) for n in range(4) for b in range(nk, 8)]
    def u_rd(i):
        b, n = seq[i]
        I(f'ds_read_b128 {vr(UBR[i%3],4)}, v{14 if b < 4 else 4} offset:{(b&3)*4096 + n*1024}')
    def pack_list(n):
        Lq = []
        for pp in range(3):
            a = DA + 28*n + 8*pp
            for i in range(4): Lq.append(f'v_cvt_pk_bf16_f32 v{a+i}, v{a+2*i}, v{a+2*i+1}')
            Lq.append(f'v_permlane16_swap_b32 v{a}, v{a+2}'); Lq.append(f'v_permlane16_swap_b32 v{a+1}, v{a+3}')
            Lq.append(('st', f'buffer_store_dwordx4 {vr(a,4)}, v9, {WS}, s{sT[8+n]} offen offset:{pp*1024}', n))
        a = DA + 28*n + 24
        for i in range(2): Lq.append(f'v_cvt_pk_bf16_f32 v{a+i}, v{a+2*i}, v{a+2*i+1}')
        Lq.append(('st', f'buffer_store_dwordx2 {vr(a,2)}, v10, {WS}, s{sT[8+n]} offen', n))
        return Lq
    def run_fill(x):
        if callable(x): x()
        elif isinstance(x, tuple):
            if x[0] == 'st' and x[2] < o.get('pn', 2): I(x[1] + ' sc1', tag=f'p{x[2]}')
            elif x[0] == 'st': k.stores([x[1]], tag=f'p{x[2]}')
            else:
                e.wait_tag(f'p{x[1]}')
                k.stores([f'buffer_store_dword v13, v11, {WS}, 0 offen offset:{x[1]*128}'])
        else: I(x)
    fill = []
    d9 = o.get('d9', 14); d10 = o.get('d10', 22)
    assert 12 <= d9 <= 16 and 20 <= d10 <= 24
    nxt = 0
    for i, (b, n) in enumerate(seq):
        if i in (0, 4, 8): fill += take_list(3 + i//4)
        if i == o.get('d7', 3):
            e.wait_tag('r4_3'); k.bar('m7')
        if i == d9:
            k.bar('m9'); fill += take_list(6)
        if i == 16: fill += take_list(7)
        if i == d10: k.bar('m10')
        k.stamp(f'd{i}')
        lim = 16 if i < d9 else 24 if i < d10 else 32
        while nxt < min(lim, i + 3): u_rd(nxt); nxt += 1
        for lam in range(7):
            acc = DA + 28*n + 4*lam
            I(f'{MF16} {vr(acc,4)}, {vr(A4(b)+4*lam,4)}, {vr(UBR[i%3],4)}, ' + ('0' if b == 0 else vr(acc, 4)))
            if fill and not (i > 16 and b == nk and lam < 2): run_fill(fill.pop(0))
        if b == 7:
            assert not fill, len(fill)
            if n == 1 and o.get('m11', 0): k.bar()
            if n > 1: run_fill(('fl', n - 2))
            fill = pack_list(n)
    k.stamp('dg')
    for x in fill: run_fill(x)
    run_fill(('fl', 2))
    run_fill(('fl', 3))
    k.stamp('pp')

def j7_jobs(k):
    e, I, L = k.e, k.I, k.L
    t0, t1 = sT[0], sT[1]
    I(f's_and_b32 s{t0}, s{sG}, 3'); I(f's_lshl_b32 s{t0}, s{t0}, 3'); I(f's_add_u32 s{t0}, s{t0}, s{sW}')
    I(f's_mul_i32 s{t0}, s{t0}, 49'); I(f'v_add_u32 v15, s{t0}, v1')
    I('v_lshrrev_b32 v16, 1, v15'); I('v_lshlrev_b32 v16, 9, v16'); I('v_and_b32 v17, 1, v15'); I('v_lshl_add_u32 v16, v17, 7, v16')
    I('v_lshrrev_b32 v17, 5, v15'); I('v_mul_u32_u24 v17, 9363, v17'); I('v_lshrrev_b32 v17, 16, v17')
    I(f'v_mul_u32_u24 v17, {229376 - 224*128}, v17'); I('v_lshl_add_u32 v17, v15, 7, v17')
    I('v_cmp_gt_u32 vcc, 49, v1'); I(f'v_cndmask_b32 v16, v{vBIG}, v16, vcc'); I(f'v_cndmask_b32 v17, v{vBIG}, v17, vcc')
    I(f's_mul_i32 s{t0}, s{sW}, 56'); I(f'v_add_u32 v15, s{t0}, v1'); I('v_lshlrev_b32 v15, 7, v15')
    I('v_cmp_gt_u32 vcc, 56, v1'); I(f'v_cndmask_b32 v15, v{vBIG}, v15, vcc')
    k.jn = 0
    for ch in k.o.get('j7', 'b4p'):
        if ch in 'ab':
            for i in range(4):
                I(f's_mov_b32 s{t1}, {i*784*512 + (256 if ch == "b" else 0)}')
                I(f'buffer_load_dword v{32+i}, v16, {srd("w3")}, s{t1} offen'); e.barrier()
        if ch == '4':
            for b in range(8):
                I(f's_mov_b32 s{t1}, {b*28672}')
                I(f'buffer_load_dword v{36+b}, v17, {srd("w4")}, s{t1} offen'); e.barrier()
        if ch == 'w': e.wait_vm0(); k.stamp(f'j{k.jn}'); k.jn += 1
        if ch == 'p':
            nt = 7*(3 - k.o.get('pn', 2))
            for i, off in enumerate([3*AS + min(4*c, nt - 4)*TILE for c in reversed(range((nt + 3)//4))] + [AS + 4*TILE]):
                I(f's_add_u32 s{t1}, s{sGB}, {off}')
                I(f'buffer_load_dword v{44+i}, v15, {WS}, s{t1} offen sc1'); e.barrier()
    e.wait_vm0()
```

```python
import sys
from emit import Emit, parse
import g3
from g3 import (KN, MF16, MF32, WS_HELLO, WS_KVP, WS_G, TILE, AS, WS_STAMP, BIG, Lay, SRD, PTR, SIZE, srd, WS, vr,
                sL, sRB, sH, sG, sJ, sW, sTAG, sMODE, sSPIN, sGB, sODD, sC448, sL2E, sA, sN, sX0, sX1, sM0, sM1, sT)

RA, RB, RC = 0, 57344, 114688
RXA, MISC = 114688, 147456
L_PHI = 161792
L_CS = RXA + 7168
L_CSQ = 162816
L_KVR = 158720
L_CS1 = 163328
L_STAT = 160256
LDS_BYTES = 163840
NONSTR = 0xD5AB

class K(g3.K):
    v4 = False
    def __init__(self, stop=None, force_slow=False, opts=None):
        self.e = Emit(); self.stop = stop; self.force_slow = force_slow
        self.o = dict(pf='o123g', n1=14, w2a=6); self.o.update(opts or {})
        self.L = Lay(self.o.get('dbg'))
        self.nbar = 0

    def dump_stamps(self):
        if not self.o.get('dst'): return g3.K.dump_stamps(self)
        I = self.I
        self.e.wait_all()
        I('v_mov_b32 v15, 0')
        I('s_not_b32 s101, s100')
        I('v_writelane_b32 v15, s101, 11')
        for k in range(11):
            r = 100 if k == 0 else 14 + 2*k
            I(f'v_writelane_b32 v15, s{r}, {k}')
        I('v_mbcnt_lo_u32_b32 v16, -1, 0'); I('v_mbcnt_hi_u32_b32 v16, -1, v16')
        I('v_min_u32 v16, 15, v16')
        I('v_lshlrev_b32 v16, 2, v16')
        I('v_subrev_u32 v17, s100, v15'); I('v_cmp_gt_u32 vcc, 100000, v17')
        I('s_or_b32 vcc_lo, vcc_lo, 0x800')
        I('s_nop 4')
        I('v_cndmask_b32 v15, 0, v15, vcc')
        self.e.raw('  global_atomic_umax v16, v15, s[36:37] sc1')

    def stamp(self, name):
        g3.K.stamp(self, name)
        st = self.o.get('stamps')
        if st and 'T' + str(name) in st.split('+'):
            r = 14 + 2*(1 + st.split('+').index('T' + str(name)))
            self.I(f's_memtime s[{r}:{r+1}]')

    def bar(self, name=None):
        if name: self.stamp(f'x{name}')
        self.e.barrier(); self.nbar += 1
        if name: self.stamp(name)

    def softmax2(self, P, OUT, T, vM, C):
        I = self.I
        X, Y, Z = T, T+2, T+1
        E = T+4
        I(f'v_max3_f32 v{X}, v{P}, v{P+1}, v{P+2}')
        I(f'v_max3_f32 v{Y}, -v{P}, -v{P+1}, -v{P+2}')
        I(f'v_max3_f32 v{X}, v{X}, v{P+3}, v{P+4}')
        I(f'v_max3_f32 v{Y}, v{Y}, -v{P+3}, -v{P+4}')
        I(f'v_max3_f32 v{X}, v{X}, v{P+5}, v{P+6}')
        I(f'v_max3_f32 v{Y}, v{Y}, -v{P+5}, -v{P+6}')
        I(f'v_max_f32 v{X}, v{X}, v{P+7}')
        I(f'v_max_f32_e64 v{Y}, v{Y}, -v{P+7}')
        self.allred2(X, Y, Z, 'v_max_f32')
        I(f'v_mul_f32_e64 v{X}, -v{X}, v{C}'); I(f'v_mul_f32_e64 v{Y}, -v{Y}, v{C}')
        for i in range(0, 8, 2):
            I(f'v_pk_fma_f32 {vr(E+i,2)}, {vr(P+i,2)}, {vr(C,2)}, {vr(X,2)} op_sel_hi:[1,0,0]')
            I(f'v_pk_fma_f32 {vr(E+8+i,2)}, {vr(P+i,2)}, {vr(C,2)}, {vr(Y,2)} op_sel_hi:[1,0,0] neg_lo:[1,0,0] neg_hi:[1,0,0]')
        for i in range(16):
            I(f'v_exp_f32 v{E+i}, v{E+i}')
        A, B = T+20, T+22
        for (S, b) in ((X, E), (Y, E+8)):
            I(f'v_pk_add_f32 {vr(A,2)}, {vr(b,2)}, {vr(b+2,2)}')
            I(f'v_pk_add_f32 {vr(B,2)}, {vr(b+4,2)}, {vr(b+6,2)}')
            I(f'v_pk_fma_f32 {vr(A,2)}, {vr(B,2)}, {vr(vM,2)}, {vr(A,2)} op_sel_hi:[1,0,1]')
            I(f'v_add_f32 v{S}, v{A}, v{A+1}')
        self.allred2(X, Y, Z, 'v_add_f32')
        I(f'v_rcp_f32 v{X}, v{X}')
        I(f'v_rcp_f32 v{Y}, v{Y}')
        I(f'v_mul_f32 v{A}, v{X}, v{vM}'); I(f'v_mul_f32 v{B}, v{Y}, v{vM}')
        for i in range(0, 8, 2):
            I(f'v_pk_mul_f32 {vr(E+i,2)}, {vr(E+i,2)}, {vr(X if i < 4 else A,2)} op_sel_hi:[1,0]')
            I(f'v_pk_mul_f32 {vr(E+8+i,2)}, {vr(E+8+i,2)}, {vr(Y if i < 4 else B,2)} op_sel_hi:[1,0]')
        self.cvt(OUT, E, 16)

    def softmax2s(self, P, OUT, T, vM, C):
        I = self.I
        X, Y, Z = T, T+1, T+2
        E = T+4
        I(f'v_max3_f32 v{X}, v{P}, v{P+1}, v{P+2}')
        I(f'v_max3_f32 v{Y}, -v{P}, -v{P+1}, -v{P+2}')
        I(f'v_max3_f32 v{X}, v{X}, v{P+3}, v{P+4}')
        I(f'v_max3_f32 v{Y}, v{Y}, -v{P+3}, -v{P+4}')
        I(f'v_max3_f32 v{X}, v{X}, v{P+5}, v{P+6}')
        I(f'v_max3_f32 v{Y}, v{Y}, -v{P+5}, -v{P+6}')
        I(f'v_max_f32 v{X}, v{X}, v{P+7}')
        I(f'v_max_f32_e64 v{Y}, v{Y}, -v{P+7}')
        self.allred2(X, Y, Z, 'v_max_f32')
        I(f'v_mul_f32_e64 v{X}, -v{X}, v{C}'); I(f'v_mul_f32_e64 v{Y}, -v{Y}, v{C}')
        for i in range(8):
            I(f'v_fma_f32 v{E+i}, v{P+i}, v{C}, v{X}')
            I(f'v_fma_f32 v{E+8+i}, -v{P+i}, v{C}, v{Y}')
        for i in range(16):
            I(f'v_exp_f32 v{E+i}, v{E+i}')
        A, B = T+20, T+22
        for n, (S, b) in enumerate(((X, E), (Y, E+8))):
            I(f'v_add_f32 v{A+n}, v{b}, v{b+1}'); I(f'v_add_f32 v{B+n}, v{b+4}, v{b+5}')
        for n, (S, b) in enumerate(((X, E), (Y, E+8))):
            I(f'v_add_f32 v{A+n}, v{A+n}, v{b+2}'); I(f'v_add_f32 v{B+n}, v{B+n}, v{b+6}')
        for n, (S, b) in enumerate(((X, E), (Y, E+8))):
            I(f'v_add_f32 v{A+n}, v{A+n}, v{b+3}'); I(f'v_add_f32 v{B+n}, v{B+n}, v{b+7}')
        for n, (S, b) in enumerate(((X, E), (Y, E+8))):
            I(f'v_fma_f32 v{S}, v{B+n}, v{vM}, v{A+n}')
        self.allred2(X, Y, Z, 'v_add_f32')
        I(f'v_rcp_f32 v{X}, v{X}')
        I(f'v_rcp_f32 v{Y}, v{Y}')
        I(f'v_mul_f32 v{A}, v{X}, v{vM}'); I(f'v_mul_f32 v{A+1}, v{Y}, v{vM}')
        for i in range(8):
            I(f'v_mul_f32 v{E+i}, v{E+i}, v{X if i < 4 else A}')
            I(f'v_mul_f32 v{E+8+i}, v{E+8+i}, v{Y if i < 4 else A+1}')
        self.cvt(OUT, E, 16)

    def prologue(self):
        e, I, L = self.e, self.I, self.L
        t0, t1, t2, t3 = sT[0:4]
        I('s_load_dwordx4 s[16:19], s[0:1], 0')
        I('s_cmp_ge_u32 s2, 256')
        I('s_cbranch_scc1 Lend')
        self.stamp(0)
        I('s_load_dwordx4 s[36:39], s[0:1], 80')
        I('s_load_dwordx8 s[20:27], s[0:1], 16')
        I('s_load_dwordx8 s[28:35], s[0:1], 48')
        I('v_lshrrev_b32 v5, 6, v0')
        I('v_and_b32 v1, 63, v0')
        I(f's_and_b32 s{t0}, s2, 7')
        I(f's_lshr_b32 s{t1}, s2, 3')
        I(f'v_readfirstlane_b32 s{sW}, v5')
        I(f's_lshl_b32 s{sL}, s{t0}, 5')
        I(f's_or_b32 s{sL}, s{sL}, s{t1}')
        I(f's_cmp_lg_u32 s{sW}, 7')
        I('s_cbranch_scc1 Lnopf')
        I(f's_getpc_b64 s[{sM1}:{sM1+1}]')
        e.label('Lpc')
        I(f's_add_u32 s{sM1}, s{sM1}, {KN}-Lpc')
        I(f's_addc_u32 s{sM1+1}, s{sM1+1}, -1')
        I(f's_lshl_b32 s{t0}, s{t1}, 11')
        I('v_and_b32 v15, 15, v1'); I('v_lshlrev_b32 v15, 7, v15'); I(f'v_add_u32 v15, s{t0}, v15')
        I(f'v_min_u32 v15, Lcodeend-{KN}, v15')
        I(f'global_load_dword v251, v15, s[{sM1}:{sM1+1}]', maybe=True)
        e.label('Lnopf')
        I(f's_and_b32 s{sA}, s{sW}, 3')
        I(f's_lshr_b32 s{sRB}, s{sL}, 4')
        I(f's_and_b32 s{sH}, s{sL}, 15')
        I('v_and_b32 v2, 15, v1')
        I('v_lshrrev_b32 v3, 4, v1')
        sCx, sCw, sMX, sMW = self.sCx, self.sCw, self.sMX, self.sMW
        I(f's_and_b32 s{t0}, s{sRB}, 1'); I(f's_mul_i32 s{t0}, s{t0}, 3'); I(f's_add_u32 s{t0}, s{t0}, s{sH}')
        if self.o.get('rx'):
            I(f's_lshr_b32 s{t1}, s{sL}, 5'); I(f's_add_u32 s{t0}, s{t0}, s{t1}')
        I(f's_mul_i32 s{t1}, s{t0}, 37'); I(f's_lshr_b32 s{t1}, s{t1}, 8'); I(f's_mul_i32 s{t1}, s{t1}, 7')
        I(f's_sub_u32 s{t0}, s{t0}, s{t1}')
        if self.o.get('norot'): I(f's_mov_b32 s{t0}, 0')
        if self.o.get('ncls') == 2:
            I(f's_add_u32 s{t0}, s{sRB}, s{sH}'); I(f's_and_b32 s{t0}, s{t0}, 1'); I(f's_mul_i32 s{t0}, s{t0}, {self.o.get("cst", 3)}')
        if self.o.get('ncls') == 4:
            I(f's_add_u32 s{t0}, s{sRB}, s{sH}'); I(f's_and_b32 s{t0}, s{t0}, 3'); I(f's_mul_i32 s{t0}, s{t0}, {self.o.get("cst", 2)}')
        I(f's_lshl_b32 s{sCx}, s{t0}, 7')
        I(f's_mov_b32 s{self.sCb}, s{sCx}')
        I('v_lshrrev_b32 v9, 2, v1')
        I('v_mul_u32_u24 v9, 2688, v9')
        I('v_lshrrev_b32 v10, 5, v1')
        I('v_lshlrev_b32 v10, 1, v10')
        I('v_and_b32 v11, 3, v1')
        I('v_xor_b32 v10, v10, v11')
        I('v_lshl_add_u32 v9, v10, 4, v9')
        I(f's_mul_i32 s{t0}, s{sH}, 56'); I(f's_andn2_b32 s{t0}, s{t0}, 15')
        I(f's_mul_i32 s{t1}, s{sA}, 43008'); I(f's_add_u32 s{t0}, s{t0}, s{t1}')
        I(f'v_add_u32 v9, s{t0}, v9')
        I(f's_lshl_b32 s{t0}, s{sRB}, 7'); I(f's_lshl_b32 s{t1}, s{sW}, 4'); I(f's_add_u32 s{t0}, s{t0}, s{t1}')
        I('v_lshrrev_b32 v10, 3, v1'); I(f'v_add_u32 v10, s{t0}, v10'); I('v_mul_u32_u24 v10, 896, v10')
        I('v_and_b32 v11, 7, v1'); I('v_xor_b32 v11, v11, v3')
        I('v_lshl_add_u32 v10, v11, 4, v10')
        I('v_xor_b32 v11, 64, v10'); I(f'v_add_u32 v11, {8*896-1024}, v11')
        I(f's_lshl_b32 s{sMW}, s{sA}, 10')
        sRA, sRBB = sT[9], sT[10]
        I(f's_lshl_b32 s{sRA}, s{sA}, 13'); I(f's_add_u32 s{sRA}, s{sRA}, {RXA}')
        I(f's_mul_i32 s{sRBB}, s{sA}, 14336'); I(f's_add_u32 s{sRBB}, s{sRBB}, {RB}')
        I(f's_cmp_ge_u32 s{sW}, 4')
        I(f's_cselect_b32 s{sMX}, s{sRBB}, s{sRA}')
        I('v_lshlrev_b32 v4, 4, v1')
        I('v_mov_b32 v13, 0')
        I(f's_lshr_b32 s{sG}, s{sL}, 3')
        I(f's_and_b32 s{sJ}, s{sL}, 7')
        if self.v4: self.pre_srd()
        e.wait_lg0()
        if self.v4: I(f's_load_dword s{sTAG}, s[38:39], 0')
        self.build_srd('x'); self.build_srd('wqkv')
        self.stamp('pr')
        wf = self.o.get('wf', 0)
        if not wf:
            self.xdma(0, 0, 'c0')
            self.build_srd('ws')
        I(f's_cmp_ge_u32 s{sW}, 4')
        I('s_cbranch_scc1 LB0')
        sn = e.snap()
        if wf:
            self.xdma(0, 0, 'c0')
            self.build_srd('ws')
        NR = 180 if self.o.get('nl') else 24
        for i in range(4): I(f'v_mov_b32 v{NR+i}, -1')
        if not self.o.get('nl'):
            I(f's_lshl_b32 s{t0}, s{sH}, 4'); I(f's_or_b32 s{t0}, s{t0}, s{sRB}'); I(f's_lshl_b32 s{t0}, s{t0}, 12')
            I(f's_add_u32 s{t0}, s{t0}, s{self.sMW}'); I(f's_add_u32 s{t0}, s{t0}, {WS_KVP}')
            I(f'buffer_store_dwordx4 v[24:27], v4, {WS}, s{t0} offen sc1')
        if self.o.get('x0', 2) == 2: self.xdma(1, 1, 'c1')
        if self.o.get('stlb'):
            I(f's_mul_i32 s{sGB}, s{sG}, {L.GS}'); I(f's_add_u32 s{sGB}, s{sGB}, {WS_G}')
            for n in ('wo', 'w1', 'w3', 'w2', 'w4', 'out'): e.raw(f'  s_load_dword s2, s[{PTR[n]}:{PTR[n]+1}], 0')
            e.raw(f'  s_load_dword s2, s[38:39], s{sGB}')
            I(f's_add_u32 s{sGB}, s{sGB}, {L.GS - 64}')
            e.raw(f'  s_load_dword s2, s[38:39], s{sGB}')
        I(f's_cmp_lt_u32 s{sW}, 2'); I('s_cbranch_scc1 Lrphi')
        I(f's_cmp_eq_u32 s{sW}, 2'); I('s_cbranch_scc1 Lrnon')
        sr = e.snap()
        self.halo_addr(44, 45, 46)
        I('s_nop 1')
        for i in range(4): I(f'v_cndmask_b32 v{48+i}, -1, v13, vcc')
        I(f'buffer_store_dwordx4 v[48:51], v44, {WS}, 0 offen sc1')
        I('s_branch Lcom')
        e.restore(sr); e.label('Lrphi')
        self.build_srd('phi')
        I(f's_mul_i32 s{t2}, s{sH}, 1568'); I(f's_add_u32 s{t2}, s{t2}, s{self.sMW}')
        I(f's_add_u32 m0, s{self.sMW}, {L_PHI}')
        I(f'buffer_load_dwordx4 v4, {srd("phi")}, s{t2} offen lds')
        I('s_branch Lcom')
        e.restore(sr); e.label('Lrnon')
        if self.v4:
            I(f's_lshl_b32 s{t0}, s{sH}, 12'); I(f's_lshl_b32 s{t1}, s{sRB}, 8'); I(f's_add_u32 s{t0}, s{t0}, s{t1}'); I(f's_add_u32 s{t0}, s{t0}, {0x1F0000}')
            I('v_lshlrev_b32 v15, 4, v2')
            I(f'buffer_store_dwordx4 {vr(NR,4)}, v15, {WS}, s{t0} offen sc1', tag='role')
        else: I(f'buffer_load_dword v14, v13, {WS}, 0 offen sc1', tag='role')
        self.vmA = e.vm
        I('s_branch Lcom')
        e.restore(sn)
        e.label('LB0')
        I('v_add_u32 v9, 896, v9')
        rpp = self.o.get('rpp', 1) if self.v4 else -1
        if rpp == 0: self.rp_loads()
        self.wdma(0, 0, 'c0')
        if wf:
            self.xdma(0, 0, 'c0')
            self.build_srd('ws')
        if rpp == 1: self.rp_loads()
        self.wdma(1, 0, 'c1')
        if rpp == 2: self.rp_loads()
        if self.o.get('xb0', 1) == 2: self.xdma(1, 1, 'c1')
        self.vmB = e.vm
        e.vm = []; e.hist = []
        e.label('Lcom')
        self.stamp('is')
        self.init_jobs()
        assert not e.vm
        if self.o.get('s0'):
            I(f's_and_b32 s{t0}, s{sL}, 31'); I(f's_lshl_b32 s{t0}, s{t0}, 3'); I(f's_add_u32 s{t0}, s{t0}, s{sW}')
            I(f's_mul_i32 s{t0}, s{t0}, {25*64}')
            I(f's_lshl_b32 s{t1}, s{sL}, 3'); I(f's_add_u32 s{t1}, s{t1}, s{sW}'); I(f's_lshl_b32 s{t2}, s{t1}, 8'); I(f's_mul_i32 s{t1}, s{t1}, {7*128}')
            for ch in self.o['s0']:
                if ch in 'OI':
                    for i in range(25): e.raw(f'  s_buffer_load_dword s2, {srd("wo" if ch == "O" else "w1")}, s{t0} offset:{i*64}')
                if ch in 'o12':
                    for i in range(2): e.raw(f'  s_buffer_load_dword s2, {srd("wo" if ch == "o" else "w" + ch)}, s{t2} offset:{i*128}')
                if ch in '34':
                    for i in range(7): e.raw(f'  s_buffer_load_dword s2, {srd("w" + ch)}, s{t1} offset:{i*128}')
            e.lg.append(dict(dst=set(), tag=None, smem=True))
        I(f's_cmp_ge_u32 s{sW}, 4')
        I('s_cbranch_scc1 LB')

    sCx, sCw, sMX, sMW = sT[4], sT[5], sT[6], sT[7]

    sCb = sT[8]
    def adv(self, sc=None):
        I = self.I
        sc = sc or self.sCx
        I(f's_add_u32 s{sc}, s{sc}, 128'); I(f's_cmp_eq_u32 s{sc}, 896'); I(f's_cselect_b32 s{sc}, 0, s{sc}')
    def xdma(self, i, slot, tag):
        I = self.I
        sc = self.sCb
        I(f's_add_u32 m0, s{self.sMX}, {slot*2048}')
        I(f'buffer_load_dwordx4 v10, {srd("x")}, s{sc} offen lds', tag=tag)
        I(f'buffer_load_dwordx4 v11, {srd("x")}, s{sc} offen offset:1024 lds', tag=tag)
        self.adv(sc)
    def wdma(self, i, mat, tag):
        I = self.I
        I(f's_add_u32 m0, s{self.sMW}, {i*4096 + mat*(28672-896)}')
        I(f's_mul_i32 s{self.sCw}, s{self.sCx}, 1344')
        I(f'buffer_load_dwordx4 v9, {srd("wqkv")}, s{self.sCw} offen offset:{mat*896} lds', tag=tag)
        self.adv()

    def halo_addr(self, *a):
        txt = self.capture(lambda: g3.K.halo_addr(self, *a))
        for t in txt: self.I(t.replace(f's_cmp_eq_u32 s{sW}, 7', f's_cmp_eq_u32 s{sW}, 3'))

    def init_jobs(self):
        e, I, L = self.e, self.I, self.L
        t0, t1, t2, t3 = sT[0:4]
        I(f's_and_b32 s{sODD}, s{sL}, 1')
        for i in range(4): I(f'v_mov_b32 v{32+i}, 0x3f803f80')
        I('v_bfe_u32 v28, v1, 2, 2')
        I('v_and_b32 v29, 3, v1')
        I('v_lshl_add_u32 v15, v3, 3, v28')
        I('v_lshlrev_b32 v15, 6, v15')
        I('v_lshl_add_u32 v15, v29, 3, v15')
        I('v_and_b32 v16, 1, v3')
        I('v_lshl_add_u32 v5, v16, 5, v15')
        I('v_xor_b32 v6, 32, v5')
        I('v_lshrrev_b32 v15, 1, v2'); I('v_xor_b32 v15, v15, v3'); I('v_lshlrev_b32 v15, 4, v15')
        I('v_lshl_add_u32 v15, v2, 7, v15')
        I(f'v_add_u32 v12, s{sT[9]}, v15'); I('v_xor_b32 v21, 64, v12')
        I(f'v_add_u32 v44, s{sT[10]}, v15'); I('v_xor_b32 v45, 64, v44')
        self.init2()

    def init_B(self):
        I = self.I
        t0 = sT[0]
        I('ds_write_b64 v28, v[210:211]'); I('ds_write_b64 v28, v[210:211] offset:8')
        I(f's_and_b32 s{t0}, s{sA}, 1'); I(f's_lshl_b32 s{t0}, s{t0}, 5')
        I(f'v_xor_b32 v7, s{t0}, v5')
        I(f's_lshr_b32 s{t0}, s{sA}, 1'); I(f's_lshl_b32 s{t0}, s{t0}, 11'); I(f's_add_u32 s{t0}, s{t0}, 28672')
        I(f'v_add_u32 v7, s{t0}, v7')
        I('v_and_b32 v15, 1, v3'); I('v_mul_u32_u24 v15, 7168, v15'); I('v_mul_u32_u24 v8, 224, v2')
        I(f'v_add_u32 v15, {MISC+208}, v15'); I('v_add_u32 v8, v8, v15')
        I('v_and_b32 v47, 3, v1'); I('v_mul_u32_u24 v47, 3584, v47'); I(f'v_add_u32 v47, {MISC+192}, v47')
        if self.o.get('vq'):
            I('v_and_b32 v15, 4, v1'); I('v_add_u32 v47, v47, v15')
        tv = self.o.get('tv', 1)
        if tv:
            t1 = sT[1]
            I('v_mul_u32_u24 v15, 37, v1'); I('v_lshrrev_b32 v15, 8, v15')
            I(f'v_mul_u32_u24 v15, {2688-896}, v15'); I('v_lshl_add_u32 v50, v1, 7, v15')
            I(f's_and_b32 s{t0}, s{sL}, 31'); I(f's_lshl_b32 s{t0}, s{t0}, 1'); I(f's_and_b32 s{t1}, s{sA}, 1'); I(f's_add_u32 s{t0}, s{t0}, s{t1}')
            I(f's_mul_i32 s{t0}, s{t0}, {7*2688}')
            I(f's_cmp_lt_u32 s{sA}, 2'); I(f's_cselect_b32 s{t1}, 0, {-1792 if tv == 2 else BIG}'); I(f's_add_u32 s{t0}, s{t0}, s{t1}'); I(f's_add_u32 s{t0}, s{t0}, 1792')
            I(f'v_add_u32 v50, s{t0}, v50'); I(f'v_mov_b32 v15, {BIG}')
            I('v_cmp_gt_u32 vcc, 49, v1'); I('v_cndmask_b32 v50, v15, v50, vcc')

    def init2(self):
        e, I, L = self.e, self.I, self.L
        t0, t1, t2, t3 = sT[0:4]
        for n in ('wo', 'w1', 'w2', 'w3', 'w4', 'out'): self.build_srd(n)
        I(f's_mul_i32 s{sGB}, s{sG}, {L.GS}')
        I(f's_add_u32 s{sGB}, s{sGB}, {WS_G}')
        I(f's_mov_b32 s{sSPIN}, 0x8000')
        I(f's_mov_b32 s{sC448}, 0x3b124925')
        I(f's_mov_b32 s{sL2E}, 0x3fb8aa3b')
        if not self.v4:
            I(f's_lshl_b32 s{t0}, s{sH}, 4'); I(f's_or_b32 s{t0}, s{t0}, s{sRB}'); I(f's_lshl_b32 s{t0}, s{t0}, 12')
            I(f's_lshl_b32 s{t1}, s{sW}, 9'); I(f's_add_u32 s{t0}, s{t0}, s{t1}'); I(f's_add_u32 s{t0}, s{t0}, {WS_KVP}')
            I('v_lshrrev_b32 v15, 1, v3'); I('v_lshlrev_b32 v15, 8, v15'); I('v_lshl_add_u32 v15, v2, 4, v15')
            I('v_and_b32 v16, 1, v3'); I('v_lshl_add_u32 v15, v16, 3, v15')
            I(f'v_add_u32 v31, s{t0}, v15')
        I('v_lshl_add_u32 v15, v3, 2, v28')
        I(f's_lshl_b32 s{t0}, s{sODD}, 2')
        I(f'v_subrev_u32 v15, s{t0}, v15')
        I('v_mul_i32_i24 v15, 56, v15')
        I(f'v_add_u32 v15, {L_PHI}, v15')
        I('v_lshl_add_u32 v17, v29, 3, v15')
        I('v_add_u32 v16, 4, v29'); I('v_min_u32 v16, 6, v16')
        I('v_lshl_add_u32 v18, v16, 3, v15')
        I('v_add_u32 v19, 896, v17'); I('v_add_u32 v20, 896, v18')
        I('v_cmp_ne_u32 vcc, 3, v3')
        I('v_cndmask_b32 v22, 0, 1.0, vcc')
        I('v_mul_u32_u24 v16, 224, v2')
        I('v_xor_b32 v15, v28, v3')
        I('v_lshl_add_u32 v15, v15, 3, v16')
        I(f's_mul_i32 s{t0}, s{sA}, 3584'); I(f's_add_u32 s{t0}, s{t0}, {MISC}')
        I(f'v_add_u32 v23, s{t0}, v15'); I(f'v_add_u32 v46, s{sT[10]}, v15')
        I(f's_add_u32 s{t0}, s{t0}, 192'); I(f'v_add_u32 v28, s{t0}, v16')
        I('v_lshrrev_b32 v15, 2, v1')
        I('v_mul_u32_u24 v15, 224, v15')
        I('v_xor_b32 v16, v29, v3')
        I('v_lshl_add_u32 v15, v16, 3, v15')
        if self.v4:
            I(f's_lshr_b32 s{t0}, s{sA}, 1'); I(f's_lshl_b32 s{t0}, s{t0}, 6'); I(f's_add_u32 s{t0}, s{t0}, {MISC}')
            I(f'v_add_u32 v24, s{t0}, v15')
            I(f's_and_b32 s{t0}, s{sA}, 1'); I(f's_lshl_b32 s{t0}, s{t0}, 5'); I(f's_add_u32 s{t0}, s{t0}, {MISC+128}')
            I(f'v_add_u32 v25, s{t0}, v15')
        else:
            I(f's_lshr_b32 s{t0}, s{sW}, 1'); I(f's_lshl_b32 s{t0}, s{t0}, 5'); I(f's_add_u32 s{t0}, s{t0}, {MISC}')
            I(f'v_add_u32 v24, s{t0}, v15')
            I(f's_and_b32 s{t0}, s{sW}, 1'); I(f's_lshl_b32 s{t0}, s{t0}, 5'); I(f's_add_u32 s{t0}, s{t0}, {MISC+128}')
            I(f'v_add_u32 v25, s{t0}, v15')
        I(f'v_subrev_u32 v26, {MISC-RB}, v24'); I(f'v_subrev_u32 v27, {MISC-RB}, v25')
        I(f's_lshr_b32 s{t0}, s{sW}, 2')
        I(f'v_cmp_ge_u32 vcc, s{t0}, v3'); I('v_mov_b32 v15, 0xbb124925')
        I('v_cndmask_b32 v29, 0, v15, vcc')
        I('v_lshlrev_b32 v15, 2, v3'); I('v_sub_u32 v15, v2, v15')
        for r in range(4):
            I(f'v_cmp_eq_u32 vcc, {r}, v15'); I(f'v_cndmask_b32 v{252+r}, 0, 1.0, vcc')
        AX, BX = 208, 224
        for t in range(4): I(f'v_mov_b32 v{AX+4*t+2}, 0'); I(f'v_mov_b32 v{AX+4*t+3}, 0')
        I(f'v_mov_b32 v{BX+2}, 0'); I(f'v_mov_b32 v{BX+3}, 0')
        I(f's_cmp_eq_u32 s{sODD}, 1')
        I(f's_cselect_b32 s{sM0}, 0xffff, 0'); I(f's_mov_b32 s{sM0+1}, 0')
        I(f's_cselect_b32 s{sM1+1}, 0, 0xffff0000'); I(f's_mov_b32 s{sM1}, 0')

    def init_A(self):
        I, L = self.I, self.L
        t0, t1, t2, t3 = sT[0:4]
        I('v_lshrrev_b32 v47, 3, v1'); I('v_mul_u32_u24 v47, 896, v47')
        I('v_bfe_u32 v15, v1, 4, 1'); I('v_lshlrev_b32 v15, 1, v15')
        I('v_and_b32 v16, 7, v1'); I('v_xor_b32 v15, v15, v16')
        I('v_lshl_add_u32 v47, v15, 4, v47')
        I(f's_lshl_b32 s{t0}, s{sJ}, 7'); I(f's_cmp_eq_u32 s{sJ}, 7'); I(f's_cselect_b32 s{t0}, {BIG}, s{t0}')
        I(f'v_add_u32 v47, s{t0}, v47')
        if True:
            I(f's_lshl_b32 s{t0}, 1, s{sH}'); I(f's_sub_u32 s{t1}, s{t0}, 1'); I(f's_and_b32 s{t1}, s{t1}, {NONSTR}')
            I(f's_bcnt1_i32_b32 s{t1}, s{t1}')
            I(f's_and_b32 s{t2}, s{sRB}, 1'); I(f's_mul_i32 s{t2}, s{t2}, 10'); I(f's_add_u32 s{t1}, s{t1}, s{t2}')
            I(f's_lshl_b32 s{t1}, s{t1}, 2'); I(f's_add_u32 s{t1}, s{t1}, s{sA}'); I(f's_mul_i32 s{t1}, s{t1}, 40')
            I(f's_and_b32 s{t0}, s{t0}, {NONSTR}')
            I(f's_cselect_b32 s{t2}, 40, 0')
            I(f'v_add_u32 v15, s{t1}, v1')
            I('v_lshlrev_b32 v50, 7, v15')
            I('v_lshlrev_b32 v51, 9, v15')
            I(f'v_mov_b32 v16, {BIG}')
            I(f'v_cmp_gt_u32 vcc, s{t2}, v1')
            I('v_cndmask_b32 v50, v16, v50, vcc'); I('v_cndmask_b32 v51, v16, v51, vcc')
            if self.o.get('mw'):
                I(f's_lshl_b32 s{t0}, s{sL}, 2'); I(f's_add_u32 s{t0}, s{t0}, s{sA}')
                I(f's_lshl_b32 s{t1}, s{t0}, 9'); I(f's_mul_i32 s{t2}, s{t0}, {13*128}')
                I('v_lshlrev_b32 v15, 7, v1'); I(f'v_add_u32 v50, s{t1}, v15'); I(f'v_add_u32 v51, s{t2}, v15')
                I('v_cmp_gt_u32 vcc, 4, v1'); I('v_cndmask_b32 v50, v16, v50, vcc')
                I('v_cmp_gt_u32 vcc, 13, v1'); I('v_cndmask_b32 v51, v16, v51, vcc')
            I(f's_lshl_b32 s{t0}, s{sJ}, 2'); I(f's_add_u32 s{t0}, s{t0}, s{sA}')
            I(f's_mul_i32 s{t1}, s{t0}, {14*128}'); I(f's_mul_i32 s{t2}, s{t0}, 384'); I(f's_min_u32 s{t2}, s{t2}, {69*128}')
            I(f's_add_u32 s{t2}, s{t2}, {L.FLG}')
            I('v_min_u32 v15, 13, v2'); I('v_lshlrev_b32 v15, 7, v15'); I(f'v_add_u32 v15, s{t1}, v15')
            I('v_and_b32 v16, 1, v3'); I(f'v_mul_u32_u24 v16, {AS}, v16'); I('v_add_u32 v15, v15, v16')
            I('v_min_u32 v16, 2, v2'); I('v_lshlrev_b32 v16, 7, v16'); I(f'v_add_u32 v16, s{t2}, v16')
            I('v_cmp_gt_u32 vcc, 32, v1'); I('v_cndmask_b32 v0, v16, v15, vcc')

    def get_tag(self):
        I = self.I
        if not self.v4: I(f'v_readfirstlane_b32 s{sTAG}, v14')
        I(f's_add_u32 s{sTAG}, s{sTAG}, 0x9E3779B9')
        I(f's_andn2_b32 s{sTAG}, s{sTAG}, 15')
        I(f's_getreg_b32 s{sMODE}, hwreg(HW_REG_XCC_ID)')
        I(f's_and_b32 s{sMODE}, s{sMODE}, 15')
        I(f's_or_b32 s{sMODE}, s{sMODE}, s{sTAG}')

    def phi_frags(self):
        I = self.I
        I('ds_read_b64_tr_b16 v[36:37], v17'); I('ds_read_b64_tr_b16 v[38:39], v19')
        I('ds_read_b64_tr_b16 v[40:41], v18'); I('ds_read_b64_tr_b16 v[42:43], v20')
    def phi_mask(self):
        I = self.I
        for r in (36, 37, 40, 41): I(f'v_cndmask_b32 v{r}, v{r}, v13, s[{sM0}:{sM0+1}]')
        for r in (38, 39, 42, 43): I(f'v_cndmask_b32 v{r}, v{r}, v13, s[{sM1}:{sM1+1}]')

    X, AR, CF, CSA, AX, BX, T = 76, 132, 196, 204, 208, 224, 228
    def xread(self, i, slot):
        for ee in range(2):
            self.I(f'ds_read_b128 {vr(self.X+4*(2*i+ee),4)}, v{(12,21)[ee]} offset:{slot*2048}', tag=f'xr{i}')
    def wread(self, m):
        for ti in range(4):
            b = self.AR + 16*(m & 3) + 4*ti
            off = (ti >> 1)*28672 + m*2048
            self.I(f'ds_read_b64_tr_b16 {vr(b,2)}, v{5+(ti&1)} offset:{off}')
            self.I(f'ds_read_b64_tr_b16 {vr(b+2,2)}, v{5+(ti&1)} offset:{off+256}')
    def kstep(self, m):
        I = self.I
        xb = vr(self.X+4*m, 4)
        z = m == 0
        I(f'{MF16} v[72:75], {xb}, {xb}, ' + ('0' if z else 'v[72:75]'))
        I(f'{MF16} v[68:71], v[32:35], {xb}, ' + ('0' if z else 'v[68:71]'))
        for ti in range(4):
            acc = vr(52 + 4*ti, 4)
            I(f'{MF16} {acc}, {vr(self.AR+16*(m&3)+4*ti,4)}, {xb}, ' + ('0' if z else acc))

    def post_kv(self, B):
        e, I = self.e, self.I
        AX, BX, T = self.AX, self.BX, self.T
        ACCK, ACCV = 52, 60
        I(f'v_mul_f32 v{T}, v68, v29')
        self.split_b(T, BX, T+1)
        for i in range(4): I(f'v_mul_f32 v{72+i}, v{72+i}, v{252+i}')
        for ti in range(4):
            acc = vr(ACCK + 4*ti, 4)
            I(f'{MF16} {acc}, {vr(AX+4*ti,4)}, {vr(BX,4)}, {acc}')
        I('v_add_f32 v72, v72, v73'); I('v_add_f32 v74, v74, v75')
        I('v_add_f32 v72, v72, v74')
        I('v_mov_b32 v73, v72')
        I('v_permlane32_swap_b32 v72, v73'); I('v_add_f32 v72, v72, v73'); I('v_mov_b32 v73, v72')
        I('v_permlane16_swap_b32 v72, v73'); I('v_add_f32 v72, v72, v73')
        self.cvt(T+4, ACCK, 8)
        I(f'{MF16} v[52:55], v[36:39], {vr(T+4,4)}, 0')
        I(f'{MF16} v[56:59], v[40:43], {vr(T+4,4)}, 0')
        I(f'v_mul_f32 v73, s{sC448}, v68')
        I('v_mul_f32 v74, v73, v73')
        I(f'v_fma_f32 v74, v72, s{sC448}, -v74')
        I('v_add_f32 v74, 0x3727c5ac, v74')
        I('v_rsq_f32 v70, v74')
        I(f'v_mul_f32 v30, s{sL2E}, v70')
        if B:
            for i in range(0, 8, 2):
                I(f'v_pk_mul_f32 {vr(ACCV+i,2)}, {vr(ACCV+i,2)}, v[70:71] op_sel_hi:[1,0]')
        else:
            for i in range(8): I(f'v_mul_f32 v{ACCV+i}, v{ACCV+i}, v70')
        I(f'v_cndmask_b32 v60, v60, 1.0, s[{sM0}:{sM0+1}]')
        I(f'v_cndmask_b32 v64, v64, 1.0, s[{sM1}:{sM1+1}]')
        self.cvt(72, ACCV, 8)
        I('ds_write_b64 v23, v[72:73] offset:128')
        I('ds_write_b64 v23, v[74:75] offset:160')
        PH = 60
        (self.softmax2 if B else self.softmax2s)(52, PH, T, 22, 30)
        for t in range(4):
            I(f'ds_write_b64 v23, {vr(PH+2*t,2)} offset:{t*32}')

    vSQ = 11
    def sq_src(self):
        I = lambda t: self.I(t.replace('v11', f'v{self.vSQ}'))
        t0 = sT[0]
        I('v_lshrrev_b32 v11, 3, v1'); I(f's_lshl_b32 s{t0}, s{sA}, 3'); I(f'v_add_u32 v11, s{t0}, v11')
        I('v_mul_u32_u24 v11, 896, v11')
        I('v_bfe_u32 v15, v1, 4, 1'); I('v_lshlrev_b32 v15, 1, v15')
        I(f's_and_b32 s{t0}, s{sA}, 1'); I(f's_lshl_b32 s{t0}, s{t0}, 2')
        I('v_and_b32 v16, 7, v1'); I('v_xor_b32 v15, v15, v16'); I(f'v_xor_b32 v15, s{t0}, v15')
        I('v_lshl_add_u32 v11, v15, 4, v11')
        I(f's_lshl_b32 s{t0}, s{sJ}, 7'); I(f's_cmp_eq_u32 s{sJ}, 7'); I(f's_cselect_b32 s{t0}, {BIG}, s{t0}')
        I(f'v_add_u32 v11, s{t0}, v11')
    def sq_dma(self, name, region, m, tag):
        I = self.I
        if name in self.o.get('skip', ''): return
        t1 = self.sCw
        I(f's_add_u32 m0, s{self.sMW}, {region + m*4096}')
        I(f's_mov_b32 s{t1}, {m*32*896}')
        I(f'buffer_load_dwordx4 v{self.vSQ}, {srd(name)}, s{t1} offen lds', tag=tag)

    def pre_b3(self, B):
        I = self.I
        t0, t1, t2 = sT[0:3]
        self.sq_src()
        I(f's_lshl_b32 s{t0}, s{sRB}, 4')
        I(f'v_add_u32 v15, s{t0}, v2')
        I('v_lshlrev_b32 v16, 4, v2'); I(f'v_add_u32 v16, s{sH}, v16')
        I('v_cmp_eq_u32 vcc, 1, v3')
        I('v_cndmask_b32 v15, v15, v16, vcc')
        I('v_and_b32 v16, 8, v2'); I('v_lshlrev_b32 v16, 1, v16')
        I('v_and_b32 v17, 7, v2'); I('v_add_u32 v16, v16, v17')
        I(f's_lshl_b32 s{t0}, s{sG}, 3'); I(f's_sub_u32 s{t0}, s{t0}, 8')
        I(f'v_add_u32 v16, s{t0}, v16'); I('v_and_b32 v16, 255, v16')
        I('v_cmp_eq_u32 vcc, 2, v3')
        I('v_cndmask_b32 v15, v15, v16, vcc')
        I('v_lshlrev_b32 v14, 6, v15'); I(f'v_add_u32 v14, {WS_HELLO}, v14')

    def kv_pub(self, B):
        e, I = self.e, self.I
        t0, t1, t2 = sT[0:3]
        KA, KB = 132, 148
        for ks in range(4):
            a, b = (24, 25) if ks < 2 else (26, 27)
            st = 3584 if ks < 2 else 14336
            for ee in range(2):
                I(f'ds_read_b64_tr_b16 {vr(KA+4*ks+2*ee,2)}, v{a} offset:{((2*ks+ee)&3)*st}')
            for ee in range(2):
                I(f'ds_read_b64_tr_b16 {vr(KB+4*ks+2*ee,2)}, v{b} offset:{((2*ks+ee)&3)*st}')
        I('v_lshrrev_b32 v15, 1, v3'); I(f'v_mul_u32_u24 v15, 7168, v15'); I(f'v_add_u32 v15, {RXA}, v15')
        I('v_add_u32 v5, v5, v15'); I('v_add_u32 v6, v6, v15')
        for ks in range(4):
            I(f'{MF16} v[52:55], {vr(KA+4*ks,4)}, {vr(KB+4*ks,4)}, ' + ('0' if ks == 0 else 'v[52:55]'))
        I(f's_and_b32 s{t0}, s{sW}, 1'); I(f's_lshl_b32 s{t1}, s{t0}, 5')
        I(f'v_xor_b32 v7, s{t1}, v5')
        I(f's_lshr_b32 s{t1}, s{sA}, 1'); I(f's_lshl_b32 s{t2}, s{t1}, 14')
        I(f'v_add_u32 v7, s{t2}, v7')
        self.cvt(56, 52, 4)
        I(f'buffer_store_dwordx2 v[56:57], v31, {WS}, 0 offen sc1')
        self.stamp(4)
        I(f's_lshl_b32 s{t0}, s{t0}, 9'); I(f's_lshr_b32 s{t1}, s{sW}, 1'); I(f's_lshl_b32 s{t1}, s{t1}, 7'); I(f's_add_u32 s{t0}, s{t0}, s{t1}')
        I(f's_add_u32 s{t0}, s{t0}, {L_CSQ}')
        I(f'v_lshlrev_b32 v8, 3, v2'); I(f'v_add_u32 v8, s{t0}, v8')

    def q_phase(self, B, fill):
        e, I = self.e, self.I
        X, CF, CSA, AX, BX, T = self.X, self.CF, self.CSA, self.AX, self.BX, self.T
        QC = 164
        ci = [4, 5, 6] if B else [0, 1, 2, 3]
        QR = [132, 140, 148, 156, 180, 188]
        def qread(m):
            for t in range(2):
                b = QR[m % 6] + 4*t
                off = (m & 1)*16384 + (m >> 1)*1024
                I(f'ds_read_b64_tr_b16 {vr(b,2)}, v{5+t} offset:{off}')
                I(f'ds_read_b64_tr_b16 {vr(b+2,2)}, v{5+t} offset:{off+256}')
        for n, i in enumerate(ci):
            I(f'ds_read_b64_tr_b16 {vr(QC+4*n,2)}, v7 offset:{i*1024}')
            I(f'ds_read_b64_tr_b16 {vr(QC+4*n+2,2)}, v7 offset:{i*1024+256}')
        qread(0); qread(1); qread(2)
        I(f'v_mul_f32 v{T}, 0xbb124925, v68')
        self.split_b(T, BX, T+1)
        I('v_lshlrev_b32 v28, 3, v1'); I(f'v_add_u32 v28, {L_CSQ}, v28')
        for n in range(len(ci)):
            I(f'{MF16} {vr(CSA,4)}, v[32:35], {vr(QC+4*n,4)}, ' + ('0' if n == 0 else vr(CSA, 4)))
        qread(3); qread(4)
        fill = list(fill)
        vf = self.capture(lambda: (self.o_addr(), self.sel_mat(self.SEL, 15)))
        per = (len(vf) + 27) // 28
        for m in range(14):
            if m + 5 < 14: qread(m + 5)
            for t in range(2):
                acc = vr(44 + 4*t, 4)
                I(f'{MF16} {acc}, {vr(QR[m%6]+4*t,4)}, {vr(X+4*m,4)}, ' + ('0' if m == 0 else acc))
                for _ in range(per):
                    if vf: I(vf.pop(0))
                while vf and ('cselect' in vf[0] or 'vcc' in vf[0].split(',')[-1]): I(vf.pop(0))
            if m == 1:
                self.split_a(CSA, CF, CF+2)
                I(f'ds_write_b64 v8, {vr(CF,2)}')
            if fill: fill.pop(0)()
        for f in fill: f()

    def hello_chk(self):
        I = self.I
        ld = f'buffer_load_dword v0, v14, {WS}, 0 offen sc1'
        def chk():
            I('v_and_b32 v17, -16, v0')
            I(f'v_cmp_ne_u32 vcc, s{sTAG}, v17')
        self.poll2([ld], chk, 'hello')
        I(f'v_cmp_ne_u32 vcc, s{sMODE}, v0')
        I(f's_and_b32 s{sMODE}, vcc_lo, 0xffff')
        if self.force_slow: I(f's_mov_b32 s{sMODE}, 1')
        self.stamp(5)

    G, SEL, GAC = 76, 252, 144
    def gather_loads(self):
        return [f'buffer_load_dwordx4 {vr(self.G+4*p,4)}, v{200 + (p & 1)}, {WS}, s{sT[8+(p>>1)]} offen sc1' for p in range(8)]

    def o_addr(self):
        I, L = self.I, self.L
        t0, t1, t2 = sT[0:3]
        I(f'v_add_u32 v23, {L_KVR}, v4')
        I(f's_cmp_eq_u32 s{sODD}, 1')
        I(f's_cselect_b32 s{t0}, 0, {1024+12*16}'); I(f's_add_u32 s{t0}, s{t0}, {L_KVR}')
        I('v_lshlrev_b32 v24, 8, v3'); I(f'v_add_u32 v24, s{t0}, v24')
        I(f's_lshr_b32 s{t0}, s{sW}, 2'); I(f's_lshl_b32 s{t0}, s{t0}, 11'); I(f's_and_b32 s{t1}, s{sW}, 1'); I(f's_lshl_b32 s{t1}, s{t1}, 10')
        I(f's_add_u32 s{t0}, s{t0}, s{t1}'); I(f's_and_b32 s{t1}, s{sW}, 2'); I(f's_lshl_b32 s{t1}, s{t1}, 2'); I(f's_add_u32 s{t0}, s{t0}, s{t1}')
        I(f'v_add_u32 v25, s{t0}, v23')
        I(f's_mul_i32 s{t0}, s{sH}, 7'); I(f's_lshr_b32 s{t0}, s{t0}, 1')
        I('v_and_b32 v18, 1, v3'); I('v_lshrrev_b32 v19, 1, v3'); I('v_lshl_add_u32 v26, v18, 1, v19')
        I(f'v_add_u32 v18, s{t0}, v26')
        I('v_lshlrev_b32 v18, 8, v18'); I('v_lshl_add_u32 v18, v2, 4, v18')
        sOG = sX0
        I(f's_lshl_b32 s{t1}, s{sRB}, 1'); I(f's_lshr_b32 s{t2}, s{sW}, 2'); I(f's_add_u32 s{t1}, s{t1}, s{t2}')
        I(f's_mul_i32 s{sOG}, s{t1}, {L.GS}'); I(f's_add_u32 s{sOG}, s{sOG}, {WS_G}')
        I(f's_mul_i32 s{t0}, s{sA}, {TILE}'); I(f's_add_u32 s{t0}, s{t0}, {L.O}')
        I(f'v_add_u32 v18, s{t0}, v18')
        I('v_add_u32 v19, 8, v18')
        I(f'v_mov_b32 v20, {BIG}')
        I(f'v_cndmask_b32 v18, v18, v20, s[{sM0}:{sM0+1}]')
        I(f'v_cndmask_b32 v19, v19, v20, s[{sM1}:{sM1+1}]')
        I('v_cmp_eq_u32 vcc, 0, v1'); I('v_cndmask_b32 v21, v20, v13, vcc')
        I(f's_lshl_b32 s{t0}, s{sA}, 6'); I(f's_lshl_b32 s{t1}, s{sH}, 2'); I(f's_add_u32 s{t0}, s{t0}, s{t1}')
        I(f's_add_u32 s{t0}, s{t0}, {L.F_O}'); I(f's_add_u32 s{sX1}, s{t0}, s{sOG}')
        I(f'v_mov_b32 v27, s{sTAG}')

    def tail_p1(self, B, burst2, shadow):
        e, I = self.e, self.I
        AX, BX, T = self.AX, self.BX, self.T
        t0, t1 = sT[0:2]
        e.wait_lg0(); self.bar(3)
        self.kv_pub(B)
        if B: self.pre_b3(B)
        I(f'buffer_load_dword v0, v14, {WS}, 0 offen sc1')
        if not B: self.touches('t3')
        fill = [(lambda m=m: self.sq_dma('wo', RA, m, 'wo')) for m in range(B, 14, 2)]
        for _ in range(self.o.get('wo0', 3)): fill.pop(0)()
        I(f's_lshl_b32 s{t0}, s{sW}, 9'); I(f's_lshl_b32 s{t1}, s{sH}, 16'); I(f's_add_u32 s{t0}, s{t0}, s{t1}')
        I(f's_add_u32 s{t0}, s{t0}, {WS_KVP}')
        I('v_and_b32 v15, 31, v1'); I('v_lshlrev_b32 v15, 4, v15'); I('v_lshrrev_b32 v16, 5, v1')
        I('v_lshl_add_u32 v15, v16, 15, v15'); I(f'v_add_u32 v200, s{t0}, v15')
        I('v_add_u32 v201, 4096, v200')
        e.wait_tag('wq')
        self.bar('3q')
        w1g = self.o.get('w1g', -1)
        w1l = [(lambda m=m: self.sq_dma('w1', RB, m, 'w1')) for m in range(B, 14, 2)] if w1g >= 0 else []
        if w1g >= 0: fill += w1l[:w1g]; w1l = w1l[w1g:]
        elif not B: fill += [(lambda i=i: self.w1p(i)) for i in list(range(4)) + list(range(self.nw1, 14))]
        if self.o.get('fsp', 1) and len(fill) <= 7: fill = [f for x in fill for f in (x, lambda: None)]
        self.q_phase(B, fill)
        I(f's_and_b32 s{t0}, s{sRB}, {self.o.get("grot", 1)}'); I(f's_lshl_b32 s{t0}, s{t0}, 14')
        for p in range(4): I(f's_xor_b32 s{sT[8+p]}, s{t0}, {p*8192}')
        self.hello_chk()
        loads = self.gather_loads()
        for t in loads: I(t)
        if not B: self.touches('t4')
        for _ in range(self.o.get('w1h', 7)):
            if w1l: w1l.pop(0)()
        e.wait_lg0(); self.bar('3b')
        for t in range(2): I(f'ds_read_b64 {vr(AX+4*t,2)}, v28 offset:{t*512}')
        burst2()
        for t in range(2):
            acc = vr(44 + 4*t, 4)
            I(f'{MF16} {acc}, {vr(AX+4*t,4)}, {vr(BX,4)}, {acc}')
        self.cvt(T+4, 44, 8)
        I(f'{MF16} v[44:47], v[36:39], {vr(T+4,4)}, 0')
        I(f'{MF16} v[48:51], v[40:43], {vr(T+4,4)}, 0')
        shadow()
        sm = self.capture(lambda: self.softmax2(44, 60, T, 22, 30))
        for n, t in enumerate(sm):
            I(t)
            if n % 8 == 7 and w1l: w1l.pop(0)()
        assert not w1l
        self.stamp(6)
        AC = self.GAC
        def chk3():
            for p in range(8):
                I(f'{MF16} {vr(AC,4)}, {vr(self.SEL,4)}, {vr(self.G+4*p,4)}, ' + ('0' if p == 0 else vr(AC, 4)))
            I(f'v_cmp_u_f32 vcc, v{AC}, v{AC}')
        self.poll2(loads, chk3, 'kvg')
        self.stamp(7)
        self.cvt(152, AC, 4)
        I('ds_write_b64 v25, v[152:153]')
        e.wait_lg0(); self.bar()
        self.o_phase()

    def capture(self, fn):
        out = []
        self.I = lambda t, **k: out.append(t)
        try: fn()
        finally: del self.I
        return out

    def poll2(self, loads, check, name):
        e = self.e
        done, retry = e.newlabel('Lpd' + name), e.newlabel('Lpr' + name)
        check()
        self.I(f's_cbranch_vccnz {retry}')
        e.label(done)
        sn = e.snap()
        save = e.out; e.out = []
        e.label(retry)
        e.wait_vm0()
        for t in loads: self.I(t)
        check()
        self.I(f's_cbranch_vccz {done}')
        self.I(f's_sub_u32 s{sSPIN}, s{sSPIN}, 1')
        self.I(f's_cbranch_scc0 {retry}')
        self.I(f's_mov_b32 s{sSPIN}, 0')
        self.I(f's_branch {done}')
        e.ool += e.out; e.out = save
        e.restore(sn)

    def poll3(self, loads, check, name):
        e = self.e
        top, done = e.newlabel('Lpoll' + name), e.newlabel('Lpd' + name)
        e.label(top)
        for t in loads: self.I(t)
        e.wait_vm0()
        check()
        self.I(f's_cbranch_vccz {done}')
        self.I(f's_sub_u32 s{sSPIN}, s{sSPIN}, 1')
        self.I(f's_cbranch_scc0 {top}')
        self.I(f's_mov_b32 s{sSPIN}, 0')
        e.label(done)

    def o_flag(self, tag=None):
        if tag: self.e.wait_tag(tag)
        else: self.e.wait_vm0()
        self.stores([f'buffer_store_dword v27, v21, {WS}, s{sX1} offen'])
        self.stamp(9)

    def mix(self, mf, other, lead=0):
        other = list(other)
        def run(x): x() if callable(x) else self.I(*x) if isinstance(x, tuple) else self.I(x)
        for _ in range(lead):
            if other: run(other.pop(0))
        n = len(other); done = 0
        for k, t in enumerate(mf):
            self.I(t)
            want = -(-n * (k + 1) // max(1, len(mf) - 1))
            while done < min(n, want): run(other[done]); done += 1
        while done < n: run(other[done]); done += 1
    def lpoll(self, reads, check, name):
        e = self.e
        done, retry = e.newlabel('Lld' + name), e.newlabel('Llr' + name)
        check()
        self.I(f's_cbranch_vccnz {retry}')
        e.label(done)
        sn = e.snap()
        save = e.out; e.out = []
        e.label(retry)
        e.wait_lg0()
        for t in reads: self.I(t)
        e.wait_lg0()
        check()
        self.I(f's_cbranch_vccz {done}')
        self.I(f's_sub_u32 s{sSPIN}, s{sSPIN}, 1')
        self.I(f's_cbranch_scc0 {retry}')
        self.I(f's_mov_b32 s{sSPIN}, 0')
        self.I(f's_branch {done}')
        e.ool += e.out; e.out = save
        e.restore(sn)
    def xrd(self, dst, m, ring, tag=None):
        va = ((12, 21), (44, 45))[ring][m & 1]
        slot = (m >> 1) if ring else (m >> 1) & 3
        return (f'ds_read_b128 {vr(dst,4)}, v{va} offset:{slot*2048}', tag)
    def wrd(self, dst, m, mat):
        return [f'ds_read_b64_tr_b16 {vr(dst+2*n,2)}, v{5+(n>>1)} offset:{mat*28672 + m*2048 + (n&1)*256}' for n in range(4)]
    def hello(self):
        I = self.I
        t0 = sT[0]
        I(f'v_mov_b32 v15, s{sMODE}')
        I(f's_lshl_b32 s{t0}, s{sL}, 6'); I(f's_add_u32 s{t0}, s{t0}, {WS_HELLO}')
        I(f's_cmp_eq_u32 s{sW}, 0'); I(f's_cselect_b32 s{t0}, s{t0}, {BIG}')
        I(f'v_mov_b32 v16, s{t0}')
        I(f'buffer_store_dword v15, v16, {WS}, 0 offen sc1')

    def p1_A(self, burst2, shadow):
        e, I = self.e, self.I
        X, AX = self.X, self.AX
        e.vm = self.vmA
        self.init_A()
        self.stamp('su')
        if self.o.get('x0', 2) < 2: self.xdma(1, 1, 'c1')
        I('s_setprio 1')
        WR, X2 = 132, 164
        def kreads(m):
            return [self.xrd(X + 4*m, m, 0, f'xr{m>>1}'), self.xrd(X2 + 4*(m % 3), m, 1)] + self.wrd(WR + 8*(m & 3), m, 0)
        def kstep(m):
            xa, xb = vr(X + 4*m, 4), vr(X2 + 4*(m % 3), 4)
            w = [vr(WR + 8*(m & 3) + 4*t, 4) for t in range(2)]
            ops = [(68, 'v[32:35]', xa), (72, 'v[32:35]', xb), (196, 'v[32:35]', w[0]), (200, 'v[32:35]', w[1]),
                   (52, w[0], xa), (60, w[0], xb), (56, w[1], xa), (64, w[1], xb)]
            return [f'{MF16} {vr(c,4)}, {p}, {q}, ' + ('0' if m == 0 else vr(c, 4)) for c, p, q in ops]
        def mwarm(p):
            if self.o.get('mw') and self.o.get('km', 99) == p:
                for ch in self.o['mw']:
                    I(f'buffer_load_dword v{7 if p < 6 else 10}, v{50 if ch in "o12" else 51}, {srd("wo" if ch == "o" else "w" + ch)}, 0 offen')
                    e.vm[-1]['dst'] = set()
        mwarm(-1)
        e.wait_tag('c0'); self.bar('c0')
        self.mix([], kreads(0))
        self.xdma(2, 2, 'c2')
        for m in range(14):
            i = m >> 1
            if m & 1 and i < 6:
                e.wait_tag(f'xr{i}'); e.wait_tag('nw'); e.wait_tag(f'c{i+1}'); self.bar(f'c{i+1}')
            self.mix(kstep(m), kreads(m + 1) if m < 13 else [], 2)
            if not m & 1 and i + 3 < 7: self.xdma(i + 3, (i + 3) & 3, f'c{i+3}')
            mwarm(m)
            if m == 5: I('ds_write_b32 v28, v14 offset:24', tag='nw')
            if m == 8: self.phi_frags(); self.tag_read()
            if m == 10: self.phi_mask(); self.get_tag()
        self.stamp(2)
        if self.o.get('vq'): I('ds_write_b32 v28, v32 offset:4')
        if not self.o.get('aprio', 1): I('s_setprio 0')
        def wq(i):
            I(f's_mul_i32 s{self.sCw}, s{self.sCx}, 1344')
            I(f's_add_u32 m0, s{self.sMX}, {i*1024}')
            I(f'buffer_load_dwordx4 v9, {srd("wqkv")}, s{self.sCw} offen lds', tag='wq')
            self.adv()
        def touch(ch):
            if ch in 'o12': I(f'buffer_load_dword v12, v218, {srd("wo" if ch == "o" else "w"+ch)}, 0 offen')
            if ch in '34bc': I(f'buffer_load_dword v12, v219, {srd("w3")}, 0 offen offset:{128*"34bc".index(ch)}')
            if ch == '5': I(f'buffer_load_dword v12, v219, {srd("w4")}, 0 offen')
            if ch == 'g': I(f'buffer_load_dword v12, v0, {WS}, s{sGB} offen sc1')
            e.vm[-1]['dst'] = set()
        def touches(key):
            for ch in self.o.get(key, '-'):
                if ch != '-': touch(ch)
        def w1p(i):
            I(f's_add_u32 m0, s{sT[10]}, {i*1024}')
            I(f's_add_u32 s{self.sCw}, s{sT[9]}, {i*7168}')
            I(f'buffer_load_dwordx4 v{216+(i&1)}, {srd("w1")}, s{self.sCw} offen lds', tag='w1')
        self.w1p = w1p
        BXS = [224, 216]
        for n in range(2):
            I(f'v_mul_f32 v{228+2*n}, v{68+4*n}, v29')
        la = [self.capture(lambda n=n: self.split_b(228+2*n, BXS[n], 229+2*n)) for n in range(2)]
        la += [self.capture(lambda n=n: self.split_a(196+4*n, AX+4*n, 197+4*n)) for n in range(2)]
        for r in zip(*la):
            for t in r: I(t)
        srd_ = 'ds_read_b64 v[48:49], v28 offset:8'
        for n in range(2):
            for t in range(2):
                acc = vr(52 + 8*n + 4*t, 4)
                I(f'{MF16} {acc}, {vr(AX+4*t,4)}, {vr(BXS[n],4)}, {acc}')
        KC = [204, 220]
        for n in range(2):
            self.cvt(KC[n], 52 + 8*n, 8)
            for t in range(2): I(f'{MF16} {vr(52+8*n+4*t,4)}, {vr(36+4*t,4)}, {vr(KC[n],4)}, 0')
        I(srd_)
        I('v_mov_b32 v216, v47'); I('v_xor_b32 v217, 64, v47'); I('v_mov_b32 v218, v50'); I('v_mov_b32 v219, v51')
        I(f's_mul_i32 s{sT[9]}, s{sA}, {14*7168}')
        pkA = self.o.get('pka', 0)
        smf = self.softmax2 if pkA else self.softmax2s
        sm = [self.capture(lambda n=n: (smf(52 + 8*n, 132 + 8*n, (228, 172)[n], 22, (48, 148 if pkA else 49)[n]),
                  [self.I(f'ds_write_b64 v{(23,46)[n]}, {vr(132+8*n+2*t,2)} offset:{t*32}') for t in range(4)])) for n in range(2)]
        pk = [t for r in zip(*sm) for t in r]
        if self.o.get('nosm'): pk = pk[:34] + pk[-8:]
        first = min(n for n, t in enumerate(pk) if t.endswith('v48') or 'v[48:49]' in t)
        qd = self.o.get('qd', 10)
        jobs = []; nq = 0; self.nw1 = 4
        for ch in self.o.get('kj', 'hgqqqqqqqwwwwwwwwww'):
            if ch == 'h': jobs.append(self.hello)
            elif ch == 'q': jobs.append(lambda i=nq: wq(i)); nq += 1
            elif ch == 'w': jobs.append(lambda i=self.nw1: w1p(i)); self.nw1 += 1
            else: jobs.append(lambda ch=ch: touch(ch))
        assert nq == (0 if self.o.get('vq') else 7) and 'h' in self.o.get('kj', 'h')
        for n, t in enumerate(pk):
            if n == first:
                self.lpoll([srd_], lambda: I('v_cmp_eq_u32 vcc, 0, v49'), 'sc')
                self.stamp('k1')
                if pkA: I('v_mov_b32 v148, v49')
            if n >= first + self.o.get('q0', 0) and (n - first) % qd == 0 and jobs: jobs.pop(0)()
            I(t)
        self.stamp('k2')
        for f in jobs: f()
        I('v_mov_b32 v30, v48')
        I('s_setprio 0')
        self.touches = touches
        self.pre_b3(False)
        self.stamp('sa')
        self.tail_p1(False, burst2, shadow)

    def tag_read(self):
        self.I(f'v_mov_b32 v14, {MISC + 2*3584 + 192 + 24}')
        self.I('ds_read_b32 v14, v14')

    def p1_B(self, burst2, shadow):
        e, I = self.e, self.I
        X, AX = self.X, self.AX
        X2, WR, CF, CSA = 132, 228, 196, 220
        e.vm = self.vmB
        self.init_B()
        self.stamp('su')
        if self.o.get('xb0', 1) < 2: self.xdma(1, 1, 'c1')
        tch = f'buffer_load_dword v51, v50, {srd("wqkv")}, 0 offen'
        tp = self.o.get('tvp', -1) if self.o.get('tv', 1) else 99
        if tp < 0: I(tch)
        e.wait_lg0()
        grp = [0, 0, 0, 1, 1, 2, 2]
        vs = [int(ch) for ch in self.o.get('vs', '5555666')]
        XT = [X2, X]; RS = [188, 68]; XX = [192, 72]
        for i in range(7):
            e.wait_tag(f'c{i}'); self.bar(f'c{i}')
            for m in (2*i, 2*i + 1):
                for n in range(2): I(*self.xrd(XT[n] + 4*m, m, n))
            dm = []
            if i + 2 < 7: dm += [lambda i=i: self.wdma(i + 2, 0, f'c{i+2}'), lambda i=i: self.xdma(i + 2, i + 2, f'c{i+2}')]
            if tp == i: dm.append(tch)
            dm += [lambda c=c: self.wdma(c, 1, f'v{grp[c]}') for c in range(7) if vs[c] == i]
            mf = []
            for m in (2*i, 2*i + 1):
                for n in range(2):
                    x = vr(XT[n] + 4*m, 4)
                    mf.append(f'{MF16} {vr(XX[n],4)}, {x}, {x}, ' + ('0' if m == 0 else vr(XX[n], 4)))
                    mf.append(f'{MF16} {vr(RS[n],4)}, v[32:35], {x}, ' + ('0' if m == 0 else vr(RS[n], 4)))
            self.mix(mf, dm, self.o.get('dlead', 2))
            if i == 4: self.phi_frags(); self.tag_read()
            if i == 5: self.phi_mask(); self.get_tag()
        self.stamp(2)
        BXS = [216, 224]
        def stats():
            I = self.I
            for n in range(2):
                for r in range(4): I(f'v_mul_f32 v{XX[n]+r}, v{XX[n]+r}, v{252+r}')
            for n in range(2):
                x = XX[n]
                I(f'v_add_f32 v{x}, v{x}, v{x+1}'); I(f'v_add_f32 v{x+2}, v{x+2}, v{x+3}')
                I(f'v_mul_f32 v{x+1}, s{sC448}, v{RS[n]}')
            for n in range(2): I(f'v_add_f32 v{XX[n]}, v{XX[n]}, v{XX[n]+2}')
            for n in range(2): I(f'v_mul_f32 v{XX[n]+1}, v{XX[n]+1}, v{XX[n]+1}')
            self.allred2(XX[0], XX[1], XX[0]+2, 'v_add_f32')
            for n in range(2): I(f'v_fma_f32 v{XX[n]}, v{XX[n]}, s{sC448}, -v{XX[n]+1}')
            for n in range(2): I(f'v_add_f32 v{XX[n]}, 0x3727c5ac, v{XX[n]}')
            for n in range(2): I(f'v_rsq_f32 v{RS[n]+2}, v{XX[n]}')
            for n in range(2): I(f'v_mul_f32 v{204+n}, s{sL2E}, v{RS[n]+2}')
            I('ds_write_b64 v28, v[204:205] offset:8')
            I('v_mov_b32 v30, v205')
            for n in range(2):
                I(f'v_mul_f32 v{XX[n]}, v{RS[n]}, v29')
                self.split_b(XX[n], BXS[n], XX[n]+1)
        frd = 'ds_read_b32 v15, v47'
        def fwr(n, tag=None):
            if tag: e.wait_tag(tag)
            I(f'v_mov_b32 v16, {n}'); I('ds_write_b32 v28, v16')
        def fchk(n, extra=()):
            self.lpoll([frd] + list(extra), lambda: I(f'v_cmp_gt_u32 vcc, {n}, v15'), f'vf{n}')
        csr = lambda c: [f'ds_read_b64_tr_b16 {vr(CF+4*(c&1)+2*n,2)}, v7 offset:{c*4096+n*256}' for n in range(2)]
        csm = lambda c: f'{MF16} {vr(CSA,4)}, v[32:35], {vr(CF+4*(c&1),4)}, ' + ('0' if c == 0 else vr(CSA, 4))
        axr = [f'ds_read_b64 {vr(AX+4*t,2)}, v8 offset:{t*3584}' for t in range(2)]
        st = self.capture(stats)
        n0 = self.o.get('st00', 34)
        if self.o.get('sprio', 1): I('s_setprio 2')
        for t in st[:n0]: I(t)
        if self.o.get('sprio', 1): I('s_setprio 0')
        st = st[n0:]
        n0 = self.o.get('st0', 18)
        fwr(1, 'v0'); I(frd)
        for t in st[:n0]: I(t)
        st = st[n0:]
        fchk(1)
        self.stamp('v1')
        vq = self.o.get('vq', '')
        def wq(i):
            if i == 0: I('v_subrev_u32 v9, 896, v9')
            I(f's_mul_i32 s{self.sCw}, s{self.sCx}, 1344')
            I(f's_add_u32 m0, s{sT[9]}, {i*1024}')
            I(f'buffer_load_dwordx4 v9, {srd("wqkv")}, s{self.sCw} offen lds', tag='wq')
            self.adv()
        for i, ch in enumerate(vq):
            if ch == '_': wq(i)
        if self.o.get('bprio', 0): I('s_setprio 2')
        wr = lambda m: self.wrd(WR + 8*(m % 3), m, 1)
        for t in wr(0) + wr(1) + csr(0): I(t)
        n1 = self.o.get('st1', 12)
        for t in st[:n1]: I(t)
        st = st[n1:]
        extra = {m: [] for m in range(14)}; xm = {m: [] for m in range(14)}
        extra[0] = csr(1); xm[1] = [csm(0)]; extra[2] = csr(2); xm[2] = [csm(1)]; xm[3] = [csm(2)]
        extra[1].append(lambda: fwr(2, 'v1')); extra[2].append(frd); extra[3].append(lambda: fchk(2))
        extra[4] = csr(3) + csr(4); xm[6] = [csm(3)]; xm[7] = [csm(4)]
        extra[5].append(lambda: fwr(3, 'v2')); extra[6].append(frd); extra[7].append(lambda: fchk(3))
        extra[8] = csr(5) + csr(6); xm[9] = [csm(5), csm(6)]
        extra[10] = self.capture(lambda: self.split_a(CSA, 206, CF)) + ['ds_write_b64 v28, v[206:207] offset:16', lambda: fwr(4)]
        extra[12] = [frd] + axr
        for i, ch in enumerate(vq):
            if ch not in '_z': extra[int(ch, 16)].append(lambda i=i: wq(i))
        for m in range(14):
            mf = []
            for t in range(2):
                for n in range(2):
                    c = vr(52 + 8*n + 4*t, 4)
                    mf.append(f'{MF16} {c}, {vr(WR+8*(m%3)+4*t,4)}, {vr(XT[n]+4*m,4)}, ' + ('0' if m == 0 else c))
            ot = (wr(m + 2) if m + 2 < 14 else []) + extra[m]
            ot += st[:6]; st = st[6:]
            if m in (8,): ot = extra[m] + wr(m + 2)
            self.mix(mf + xm[m], ot)
            self.stamp(f'w{m}')
        assert not st
        fchk(4, axr)
        self.stamp('sb')
        for i, ch in enumerate(vq):
            if ch == 'z': wq(i)
        for n in range(2):
            for t in range(2):
                acc = vr(52 + 8*n + 4*t, 4)
                I(f'{MF16} {acc}, {vr(AX+4*t,4)}, {vr(BXS[n],4)}, {acc}')
        for n in range(2):
            c = 52 + 8*n
            for i in range(0, 8, 2):
                I(f'v_pk_mul_f32 {vr(c+i,2)}, {vr(c+i,2)}, {vr(RS[n]+2,2)} op_sel_hi:[1,0]')
            I(f'v_cndmask_b32 v{c}, v{c}, 1.0, s[{sM0}:{sM0+1}]')
            I(f'v_cndmask_b32 v{c+4}, v{c+4}, 1.0, s[{sM1}:{sM1+1}]')
            self.cvt(c, c, 8)
            I(f'ds_write_b64 v{(23,46)[n]}, {vr(c,2)} offset:128')
            I(f'ds_write_b64 v{(23,46)[n]}, {vr(c+2,2)} offset:160')
        I('s_setprio 0')
        self.tail_p1(True, burst2, shadow)

    def build(self):
        e, I = self.e, self.I
        if self.o.get('mlp', 7) == 7:
            import g7 as g6
            if self.o['w2a'] < 9: self.o['w2a'] = 9
        else: import g6
        self.prologue()
        sn = e.snap()
        self.nbar = 0
        if self.v4: self.p1_A(g6)
        else: self.p1_A(lambda: None, lambda: g6.main_pre(self))
        I(f's_cmp_eq_u32 s{sJ}, 7')
        I('s_cbranch_scc1 ' + ('Lj7b' if self.v4 else 'Lj7'))
        if self.stop != 'o': g6.main_rest(self)
        elif not self.v4: self.o_flag()
        self.finish()
        na = self.nbar
        e.restore(sn)
        e.label('LB')
        self.nbar = 0
        if self.v4: self.p1_B(g6)
        else: self.p1_B(lambda: g6.aux_burst2(self), lambda: g6.aux_pre(self))
        I(f's_cmp_eq_u32 s{sJ}, 7')
        I('s_cbranch_scc1 Lj7')
        if self.stop != 'o': g6.aux_rest(self)
        else: self.o_flag()
        self.dump_stamps()
        I('s_branch Lend')
        assert na == self.nbar, (na, self.nbar)
        e.label('Lj7')
        e.hist = []; e.nop(4)
        self.o_flag()
        e.label('Lj7b')
        e.hist = []; e.nop(4); e.wait_all()
        e.barrier()
        g6.j7_jobs(self)
        self.dump_stamps()
        e.label('Lend')
        e.raw('  s_endpgm')
        head = f"""; fused persistent kernel (generated) {'stamps=' + self.o['stamps'] if self.o.get('stamps') else ''}
; @launch grid=(256,1,1) block=(512,1,1) lds={LDS_BYTES}
.amdgcn_target "amdgcn-amd-amdhsa--gfx950"
.text
.globl {KN}
.p2align 8
.type {KN},@function
{KN}:
"""
        tail = f"""
  s_endpgm
Lcodeend:
.fill {self.o.get('pad', 64)}, 4, 0xbf800000
.section .rodata,"a"
.p2align 6
.amdhsa_kernel {KN}
  .amdhsa_next_free_vgpr 256
  .amdhsa_next_free_sgpr 102
  .amdhsa_accum_offset 256
  .amdhsa_group_segment_fixed_size 0
  .amdhsa_kernarg_size 96
  .amdhsa_user_sgpr_count 2
  .amdhsa_user_sgpr_kernarg_segment_ptr 1
  .amdhsa_system_sgpr_workgroup_id_x 1
.end_amdhsa_kernel
"""
        return head + e.text() + tail

def main(K):
    import argparse
    ap = argparse.ArgumentParser()
    ap.add_argument('-o', default='k.s'); ap.add_argument('--stop'); ap.add_argument('--slow', action='store_true')
    ap.add_argument('--opt', action='append', default=[])
    a = ap.parse_args()
    opts = {}
    for kv in a.opt:
        k, v = kv.split('='); opts[k] = int(v) if v.lstrip('-').isdigit() and k not in ('stamps', 'pf', 'j7', 'xs', 'vs', 'kj', 't3', 't4', 'vq', 'tO', 'tH', 'tT', 'tX', 'mw', 'kw', 'k2', 'k5', 'k6', 'k7', 's0', 'qn', 'kt', 'bs') else v
    k = K(stop=a.stop, force_slow=a.slow, opts=opts)
    s = k.build()
    open(a.o, 'w').write(s)
    print('instrs', k.e.nins, 'nops', k.e.nnop, 'bytes(src)', len(s))

if __name__ == '__main__':
    main(K)
```

```python
from g5 import *
import g4
from g4 import GA, GB_, f32, pack_pairs, row_stats, stat_addrs, gelu_consts

vZ, vBIG, vL0, vSIG, vTAG, vB, vST = 13, 20, 21, 26, 27, 28, 29
SB = [5, 6, 7, 8]
BF = 76
AR = 148
NSLOT = 5
HR = 60
ACC = 44
CS1 = 132
BXT = 40
XA = 244
vTP, vHP, vHS, vTF, vOP = 250, 251, 252, 253, 254
RES = 240
W3P = 228
U0, U1 = RC + 28672, RA
PB = [3*AS + 14*TILE, 3*AS + 7*TILE, 3*AS, AS]
STEP_REG = [RB, RB + 28672, RC, RB, RB + 28672, RC, RA + 16384, RB]

def main_pre(k):
    I = k.I
    t0, t1 = sT[0:2]
    I(f's_lshl_b32 s{t0}, s{sG}, 6'); I(f's_lshl_b32 s{t1}, s{sW}, 4'); I(f's_add_u32 s{t0}, s{t0}, s{t1}')
    I(f'v_add_u32 v15, s{t0}, v2'); I('v_mul_u32_u24 v15, 896, v15')
    I(f's_lshl_b32 s{t0}, s{sJ}, 7')
    I('v_lshl_add_u32 v15, v3, 3, v15')
    for t in range(4):
        I(f'buffer_load_dwordx2 {vr(52+2*t,2)}, v15, {srd("x")}, s{t0} offen offset:{t*32}')

def main_addr1(k):
    I, L = k.I, k.L
    t0, t1 = sT[0:2]
    I('v_bfe_u32 v15, v1, 2, 2')
    I('v_lshl_add_u32 v16, v3, 3, v15'); I('v_lshlrev_b32 v16, 7, v16')
    I('v_and_b32 v17, 3, v1'); I('v_lshl_add_u32 v16, v17, 3, v16')
    I('v_lshrrev_b32 v15, 1, v15'); I('v_and_b32 v17, 1, v3'); I('v_lshl_add_u32 v15, v17, 1, v15')
    I(f'v_lshl_add_u32 v{SB[0]}, v15, 5, v16')
    for t in range(1, 4): I(f'v_xor_b32 v{SB[t]}, {t*32}, v{SB[0]}')
    I(f's_mul_i32 s{t0}, s{sW}, {TILE}'); I(f's_add_u32 s{t0}, s{t0}, s{sGB}')
    I(f'v_add_u32 v{vB}, s{t0}, v4')
    I(f's_lshl_b32 s{t0}, s{sW}, 6'); I(f's_add_u32 s{t0}, s{t0}, s{sGB}'); I(f's_add_u32 s{t0}, s{t0}, {L.F_O}')
    I(f'v_lshlrev_b32 v{vOP}, 2, v2'); I(f'v_add_u32 v{vOP}, s{t0}, v{vOP}')

def main_addr2(k):
    I, L = k.I, k.L
    t0, t1, t2, t3 = sT[0:4]
    I(f's_mul_i32 s{t0}, s{sW}, {TILE}'); I(f's_add_u32 s{t0}, s{t0}, s{sGB}')
    I(f's_lshl_b32 s{t1}, s{sJ}, 11'); I(f's_add_u32 s{t0}, s{t0}, s{t1}')
    I(f'v_lshlrev_b32 v31, 8, v{vSIG}'); I('v_lshl_add_u32 v31, v2, 4, v31')
    I(f'v_add_u32 v{vST}, s{t0}, v31')
    I(f's_lshl_b32 s{t0}, s{sW}, 3'); I(f's_add_u32 s{t0}, s{t0}, s{sJ}'); I(f's_lshl_b32 s{t0}, s{t0}, 8')
    I(f's_add_u32 s{t0}, s{t0}, s{sGB}'); I(f's_add_u32 s{t0}, s{t0}, {L.ST}')
    I(f'v_add_u32 v9, s{t0}, v4')
    I('v_cmp_eq_u32 vcc, 0, v3'); I(f'v_cndmask_b32 v9, v{vBIG}, v9, vcc')
    stat_addrs(k, 10, 11)
    for t in range(4): I(f'v_mov_b32 v{CS1+4*t+2}, 0'); I(f'v_mov_b32 v{CS1+4*t+3}, 0')
    I(f'v_mov_b32 v{BXT+2}, 0'); I(f'v_mov_b32 v{BXT+3}, 0')
    I(f's_add_u32 s{t0}, s{sGB}, {L.GS + L.T0 - TILE}')
    I(f's_cmp_eq_u32 s{sG}, 31'); I(f's_cselect_b32 s{t0}, {BIG}, s{t0}')
    I(f's_sub_u32 s{t1}, s{sGB}, {L.GS - L.T0 - 4*TILE}')
    I(f's_cmp_eq_u32 s{sG}, 0'); I(f's_cselect_b32 s{t1}, {BIG}, s{t1}')
    I(f's_cmp_eq_u32 s{sW}, 3'); I(f's_cselect_b32 s{t0}, s{t0}, s{t1}')
    I(f's_cselect_b32 s{t2}, 0xc000c000, 0')
    I(f's_cmp_eq_u32 s{sW}, 0'); I(f's_cselect_b32 s{t2}, 0x00030003, s{t2}'); I(f's_mov_b32 s{t3}, s{t2}')
    I(f's_lshl_b32 s{t1}, s{sJ}, 11'); I(f's_add_u32 s{t0}, s{t0}, s{t1}')
    I(f'v_add_u32 v15, s{t0}, v31')
    I(f'v_cndmask_b32 v{vHS}, v{vBIG}, v15, s[{t2}:{t3}]')
    I(f's_lshl_b32 s{t0}, s{sW}, 5'); I(f's_lshl_b32 s{t1}, s{sJ}, 2'); I(f's_add_u32 s{t0}, s{t0}, s{t1}')
    I(f's_add_u32 s{t0}, s{t0}, s{sGB}'); I(f's_add_u32 s{t0}, s{t0}, {L.F_T}')
    I(f'v_add_u32 v{vTF}, s{t0}, v{vL0}')
    I(f's_lshl_b32 s{t0}, s{sW}, 4'); I(f's_add_u32 s{t0}, s{t0}, 16')
    I(f'v_add_u32 v15, s{t0}, v2')
    I(f'v_lshlrev_b32 v16, 8, v3'); I(f'v_add_u32 v16, s{sGB}, v16')
    for i, d in enumerate((-1, 1, -2, 2)):
        I(f'v_add_u32 v17, {d}, v15')
        I(f'v_lshrrev_b32 v{XA+i}, 4, v17'); I(f'v_mul_u32_u24 v{XA+i}, {TILE}, v{XA+i}')
        I('v_and_b32 v17, 15, v17'); I(f'v_lshl_add_u32 v{XA+i}, v17, 4, v{XA+i}')
        I(f'v_add_u32 v{XA+i}, v{XA+i}, v16')
    I('v_cmp_gt_u32 vcc, 2, v3')
    I(f'v_cndmask_b32 v{XA+4}, v{XA+1}, v{XA}, vcc'); I(f'v_cndmask_b32 v{XA+5}, v{XA+3}, v{XA+2}, vcc')
    I('v_lshrrev_b32 v15, 3, v1'); I(f'v_add_u32 v15, s{sW}, v15'); I('v_add_u32 v15, -1, v15')
    I(f's_add_u32 s{t0}, s{sW}, 1'); I(f's_min_u32 s{t0}, s{t0}, 3')
    I(f'v_med3_i32 v15, v15, 0, s{t0}')
    I('v_and_b32 v16, 7, v1'); I('v_min_u32 v16, 6, v16'); I('v_lshlrev_b32 v16, 2, v16')
    I('v_lshl_add_u32 v15, v15, 5, v16'); I(f'v_add_u32 v{vTP}, {L.F_T}, v15')
    I(f's_mov_b32 s{t0}, {BIG}')
    I(f's_cmp_eq_u32 s{sW}, 0'); I(f's_cselect_b32 s{t0}, {L.T0-TILE+236}, s{t0}')
    I(f's_cmp_eq_u32 s{sW}, 3'); I(f's_cselect_b32 s{t0}, {L.T0+4*TILE+12}, s{t0}')
    I('v_lshlrev_b32 v17, 8, v1'); I(f'v_add_u32 v17, s{t0}, v17')
    I('v_cmp_gt_u32 vcc, 56, v1'); I(f'v_cndmask_b32 v{vHP}, v{vBIG}, v17, vcc')


def a_read(k, m, t):
    b = AR + 16*(m % NSLOT) + 4*t
    k.I(f'ds_read_b64_tr_b16 {vr(b,2)}, v{SB[t]} offset:{m*4096}')
    k.I(f'ds_read_b64_tr_b16 {vr(b+2,2)}, v{SB[t]} offset:{m*4096+512}')
def a_preload(k):
    for m in range(NSLOT):
        for t in range(4): a_read(k, m, t)
def b_soff(k, region):
    for i in range(4): k.I(f's_mov_b32 s{sT[4+i]}, {region + i*4096}')
def b_loads(k, addr=None, fl='sc1'):
    for m in range(14):
        va = vB if addr is None else addr[m]
        k.I(f'buffer_load_dwordx4 {vr(BF+4*m,4)}, v{va}, {WS}, s{sT[4+(m>>2)]} offen offset:{(m&3)*1024} {fl}')
def gemm(k, acc, vf=(), pre=0):
    I = k.I
    vf = list(vf)
    for _ in range(pre):
        if vf: I(vf.pop(0))
    per = (len(vf) + 47) // 48
    for m in range(14):
        for t in range(4):
            b = AR + 16*(m % NSLOT) + 4*t
            I(f'{MF16} {vr(acc+4*t,4)}, {vr(b,4)}, {vr(BF+4*m,4)}, {vr(acc+4*t,4)}')
            if m + NSLOT < 14: a_read(k, m + NSLOT, t)
            for _ in range(per):
                if vf: I(vf.pop(0))
def poll_stats(k, tagbits, name, D, va, vb):
    I = k.I
    I(f's_or_b32 s{sN}, s{sTAG}, {tagbits}')
    def chk():
        I(f'v_cmp_ne_u32 vcc, s{sN}, v{D+2}')
        I(f'v_cmp_ne_u32 s[{sT[2]}:{sT[3]}], s{sN}, v{D+6}')
        I(f's_or_b64 vcc, vcc, s[{sT[2]}:{sT[3]}]')
    k.poll3([f'buffer_load_dwordx3 {vr(D,3)}, v{va}, {WS}, 0 offen sc1',
             f'buffer_load_dwordx3 {vr(D+4,3)}, v{vb}, {WS}, 0 offen sc1'], chk, name)

def tr2(k, dst, vb, off, step, tag=None):
    k.I(f'ds_read_b64_tr_b16 {vr(dst,2)}, v{vb} offset:{off}', tag=tag)
    k.I(f'ds_read_b64_tr_b16 {vr(dst+2,2)}, v{vb} offset:{off+step}', tag=tag)

def w3_src(k, V):
    I = k.I
    t0, t1 = sT[0], sT[1]
    I(f's_lshl_b32 s{t0}, s{sJ}, 9'); I(f's_lshr_b32 s{t1}, s{sA}, 1'); I(f's_lshl_b32 s{t1}, s{t1}, 7'); I(f's_add_u32 s{t0}, s{t0}, s{t1}')
    I(f's_and_b32 s{t1}, s{sA}, 1'); I(f's_mul_i32 s{t1}, s{t1}, {8*3584}'); I(f's_add_u32 s{t0}, s{t0}, s{t1}')
    I(f's_cmp_eq_u32 s{sJ}, 7'); I(f's_cselect_b32 s{t0}, {BIG}, s{t0}')
    I(f'v_lshrrev_b32 v15, 3, v1'); I(f'v_mul_u32_u24 v{V}, 3584, v15')
    I('v_bfe_u32 v15, v1, 4, 1'); I('v_lshlrev_b32 v15, 2, v15'); I('v_and_b32 v16, 7, v1'); I('v_xor_b32 v15, v15, v16')
    I(f'v_lshl_add_u32 v{V}, v15, 4, v{V}'); I(f'v_add_u32 v{V}, s{t0}, v{V}')
def w3_rd_base(k, V, base):
    I = k.I
    t0, t1 = sT[0], sT[1]
    I('v_lshrrev_b32 v15, 5, v1'); I('v_lshlrev_b32 v15, 3, v15')
    I('v_bfe_u32 v17, v1, 2, 2'); I('v_add_u32 v15, v15, v17')
    I('v_and_b32 v16, 3, v1')
    I(f'v_and_b32 v{V}, 1, v3'); I(f'v_lshlrev_b32 v{V}, 5, v{V}'); I(f'v_lshl_add_u32 v{V}, v16, 3, v{V}')
    I(f'v_lshl_add_u32 v{V}, v15, 7, v{V}')
    I('v_lshrrev_b32 v17, 1, v17'); I(f'v_lshl_add_u32 v{V}, v17, 6, v{V}')
    I(f's_and_b32 s{t0}, s{sA}, 1'); I(f's_lshl_b32 s{t0}, s{t0}, 6'); I(f'v_xor_b32 v{V}, s{t0}, v{V}')
    I(f's_lshr_b32 s{t0}, s{sA}, 1'); I(f's_lshl_b32 s{t0}, s{t0}, 11'); I(f's_add_u32 s{t0}, s{t0}, {base}')
    I(f'v_add_u32 v{V}, s{t0}, v{V}')
def w3_dma(k, V, sM, m, half, dest, tag):
    I = k.I
    t1 = sT[1]
    I(f's_add_u32 m0, s{sM}, {dest}')
    I(f's_mov_b32 s{t1}, {m*16*3584 + half*256}')
    I(f'buffer_load_dwordx4 v{V}, {srd("w3")}, s{t1} offen lds', tag=tag)
def w4_src(k, V):
    I = k.I
    t0, t1 = sT[0], sT[1]
    I(f's_lshl_b32 s{t0}, s{sJ}, 8'); I(f's_lshl_b32 s{t1}, s{sA}, 3'); I(f's_add_u32 s{t0}, s{t0}, s{t1}')
    I(f'v_lshrrev_b32 v15, 3, v1'); I(f'v_add_u32 v15, s{t0}, v15'); I(f'v_mul_u32_u24 v{V}, 896, v15')
    I('v_lshlrev_b32 v15, 1, v3'); I('v_and_b32 v16, 7, v1'); I('v_xor_b32 v15, v15, v16')
    I(f'v_lshl_add_u32 v{V}, v15, 4, v{V}')
def w4_dma_list(k, V, sM, sS, b):
    I = k.I
    out = []
    for lc in range(7):
        def f(lc=lc):
            if b >= k.o.get('now4', 9): return
            if lc == 0: I(f's_mov_b32 s{sS}, {b*32*896}')
            I(f's_add_u32 m0, s{sM}, {STEP_REG[b] + lc*4096 - lc*128}')
            I(f'buffer_load_dwordx4 v{V}, {srd("w4")}, s{sS} offen offset:{lc*128} lds', tag=f'w4_{b}')
        out.append(f)
    return out
def pat(k, P):
    I = k.I
    I('v_lshrrev_b32 v15, 2, v2'); I('v_and_b32 v16, 1, v3'); I('v_cmp_eq_u32 vcc, v15, v16')
    I(f'v_mov_b32 v15, 0x3f803f80')
    for i in range(4): I(f'v_cndmask_b32 v{P+i}, 0, v15, vcc')
def up_addrs(k, vX, vS, vU, ubase):
    I = k.I
    t0 = sT[0]
    I('v_bfe_u32 v15, v1, 4, 1'); I(f'v_mul_u32_u24 v{vX}, {TILE}, v15')
    I(f'v_lshl_add_u32 v{vX}, v2, 4, v{vX}')
    I('v_lshrrev_b32 v16, 5, v1'); I(f'v_lshl_add_u32 v{vX}, v16, 8, v{vX}')
    I(f'v_and_b32 v{vS}, 31, v1'); I(f'v_lshlrev_b32 v{vS}, 5, v{vS}'); I(f'v_add_u32 v{vS}, {L_STAT}, v{vS}')
    I(f'v_lshlrev_b32 v{vU}, 10, v15'); I(f'v_lshl_add_u32 v{vU}, v2, 4, v{vU}'); I(f'v_lshl_add_u32 v{vU}, v16, 8, v{vU}')
    I(f's_lshl_b32 s{t0}, s{sA}, 12'); I(f's_add_u32 s{t0}, s{t0}, {ubase}')
    I(f'v_add_u32 v{vU}, s{t0}, v{vU}')
def up(k, acc, afn, BB, vX, vS, hooks, pre=True, half=None):
    I = k.I
    def b_rd(m, b):
        d = vr(BB + 8*(m&1) + 4*b, 4)
        if m < 28: I(f'ds_read_b128 {d}, v{vX} offset:{b*2*TILE + m*512}')
        else: I(f'ds_read_b128 {d}, v{vS} offset:{b*1024}')
    if pre: b_rd(0, 0); b_rd(0, 1)
    for m in range(29):
        for b in range(2):
            if m + 1 < 29: b_rd(m + 1, b)
            I(f'{MF32} {vr(acc+16*b,16)}, {vr(afn(m),4)}, {vr(BB+8*(m&1)+4*b,4)}, ' + ('0' if m == 0 else vr(acc+16*b, 16)))
            if b == 0 and half: half(m)
        if m in hooks: hooks[m]()
def gelu_groups(acc, GT, GC, PK, npk):
    out = []
    for b in range(2):
        G = GC + 4*b
        for gp in range(2):
            Lq = []
            x = acc + 16*b + 8*gp; tt = GT + 8*gp
            for i in range(8): Lq.append(f'v_mul_f32 v{tt+i}, v{x+i}, v{x+i}')
            for i in range(8): Lq.append(f'v_fma_f32 v{tt+i}, v{tt+i}, v{G+1}, v{G}')
            for i in range(8): Lq.append(f'v_mul_f32 v{tt+i}, v{tt+i}, v{x+i}')
            for i in range(8): Lq.append(f'v_exp_f32 v{tt+i}, v{tt+i}')
            for i in range(8): Lq.append(f'v_fma_f32 v{tt+i}, v{tt+i}, v{G+2}, v{G+2}')
            for i in range(8): Lq.append(f'v_rcp_f32 v{tt+i}, v{tt+i}')
            for i in range(8): Lq.append(f'v_mul_f32 v{x+i}, v{x+i}, v{tt+i}')
            P = PK + 4*((2*b + gp) % npk)
            for i in range(4): Lq.append(f'v_cvt_pk_bf16_f32 v{P+i}, v{x+2*i}, v{x+2*i+1}')
            out.append((Lq, P, b*2048 + gp*512))
    return out

def publish_stats(k, src, sreg, tagbits, T, mid=None, thru=False):
    e, I = k.e, k.I
    P = T
    pack_pairs(k, src, P)
    st = [f'buffer_store_dwordx4 {vr(P,4)}, v{vST}, {WS}, s{sreg} offen',
          f'buffer_store_dwordx4 {vr(P+4,4)}, v{vST}, {WS}, s{sreg} offen offset:1024']
    if thru:
        for t in st: I(t + ' sc1')
    else: k.stores(st)
    S = T + 8
    I(f'v_pk_add_f32 {vr(S,2)}, {vr(src,2)}, {vr(src+2,2)}')
    I(f'v_pk_mul_f32 {vr(S+2,2)}, {vr(src,2)}, {vr(src,2)}')
    I(f'v_pk_fma_f32 {vr(S+2,2)}, {vr(src+2,2)}, {vr(src+2,2)}, {vr(S+2,2)}')
    for i in range(4, 16, 2):
        I(f'v_pk_add_f32 {vr(S,2)}, {vr(S,2)}, {vr(src+i,2)}')
        I(f'v_pk_fma_f32 {vr(S+2,2)}, {vr(src+i,2)}, {vr(src+i,2)}, {vr(S+2,2)}')
    I(f'v_add_f32 v{S+4}, v{S}, v{S+1}')
    I(f'v_add_f32 v{S+5}, v{S+2}, v{S+3}')
    k.allred2(S+4, S+5, S, 'v_add_f32')
    I(f'v_or_b32 v{S+6}, {tagbits}, v{vTAG}')
    e.wait_vm0()
    k.stores([f'buffer_store_dwordx3 {vr(S+4,3)}, v9, {WS}, 0 offen'])
    if mid: mid()

def x1_dma(k, m0_, vaddr):
    I = k.I
    t0, t1 = sT[0], sT[1]
    I(f's_mul_i32 s{t0}, s{sA}, {TILE}')
    for i in range(7):
        m = m0_ + i
        if i % 4 == 0:
            I(f's_mov_b32 s{t1}, {k.L.X1 + m*1024}')
            I(f's_add_u32 m0, s{t0}, {RA + m*1024}')
        I(f'buffer_load_dwordx4 v{vaddr}, {WS}, s{t1} offen offset:{(i&3)*1024} sc1 lds', tag='x1')

def main_rest(k):
    e, I, L, o = k.e, k.I, k.L, k.o
    t0, t1, t2, t3 = sT[0:4]
    sR = sT[8]
    main_addr1(k)
    for t in range(4):
        for d in range(2):
            I(f'v_lshlrev_b32 v{HR+4*t+2*d}, 16, v{52+2*t+d}')
            I(f'v_and_b32 v{HR+4*t+2*d+1}, 0xffff0000, v{52+2*t+d}')
    b_soff(k, L.O)
    I(f's_mov_b32 s{sR}, {L.H}')
    if k.v4:
        k.k_landed()
        a_preload(k)
        k.k_landed2()
    else:
        k.o_flag()
        k.bar()
        a_preload(k)
    def chk(): I(f'v_cmp_ne_u32 vcc, s{sTAG}, v16')
    k.poll3([f'buffer_load_dword v16, v{vOP}, {WS}, 0 offen sc1'], chk, 'o')
    k.stamp('po')
    b_loads(k, fl=o.get('ful', '') if 'o' in o.get('fu', '') else 'sc1')
    k.bar()
    gemm(k, HR, k.capture(lambda: main_addr2(k)), 30)
    k.stamp('hg')
    def mid():
        for t in range(4): I(f'v_add_u32 v{SB[t]}, {RB}, v{SB[t]}')
        I('v_lshlrev_b32 v15, 3, v2'); I(f'v_add_u32 v15, {L_CS1}, v15')
        b_soff(k, L.H)
        a_preload(k)
    publish_stats(k, HR, sR, 1, BF, mid, 'h' in o.get('fu', ''))
    k.stamp('hp')
    k.bar()
    if k.stop == 'h': return
    for t in range(4): I(f'ds_read_b64 {vr(CS1+4*t,2)}, v15 offset:{t*128}')
    I(f's_mov_b32 s{sR}, {L.T0}')
    D = 32
    poll_stats(k, 1, 'h', D, 10, 11)
    k.stamp('ph')
    b_loads(k, fl=o.get('ful', '') if 'h' in o.get('fu', '') else 'sc1')
    k.bar()
    row_stats(k, D)
    I('v_cmp_eq_u32 vcc, 0, v3')
    I(f'v_cndmask_b32_e64 v{D+3}, 0, -v{D}, vcc')
    k.split_b(D+3, BXT, D+2)
    for t in range(4):
        I(f'{MF16} {vr(ACC+4*t,4)}, {vr(CS1+4*t,4)}, {vr(BXT,4)}, 0')
    I(f'v_add_f32 v{D+2}, 0x3727c5ac, v{D+1}'); I(f'v_rsq_f32 v{D+4}, v{D+2}')
    I(f'v_mul_f32 v{D+2}, v{D+4}, v{D+4}'); I(f'v_mul_f32 v{D+2}, v{D+2}, v{D+1}')
    I(f'v_add_f32 v{D+2}, 0x3727c5ac, v{D+2}'); I(f'v_rsq_f32 v{D+2}, v{D+2}')
    I(f'v_mul_f32_e64 v{BXT}, -v{D}, v{D+4}')
    I(f'v_mul_f32 v{D+6}, v{D+4}, v{D+2}')
    G = D
    gelu_consts(k, D+6, G)
    I(f'v_mov_b32 v{D+6}, v{G+1}')
    gemm(k, ACC)
    k.stamp('tg')
    T = BF
    P = T + 16
    for h in range(2):
        x = ACC + 8*h; tt = T + 8*h
        for i in range(0, 8, 2): I(f'v_pk_mul_f32 {vr(tt+i,2)}, {vr(x+i,2)}, {vr(x+i,2)}')
        for i in range(0, 8, 2): I(f'v_pk_fma_f32 {vr(tt+i,2)}, {vr(tt+i,2)}, {vr(D+6,2)}, {vr(G,2)} op_sel_hi:[1,0,0]')
        for i in range(0, 8, 2): I(f'v_pk_mul_f32 {vr(tt+i,2)}, {vr(tt+i,2)}, {vr(x+i,2)}')
        for i in range(8): I(f'v_exp_f32 v{tt+i}, v{tt+i}')
        for i in range(0, 8, 2): I(f'v_pk_fma_f32 {vr(tt+i,2)}, {vr(tt+i,2)}, {vr(G+2,2)}, {vr(G+2,2)} op_sel_hi:[1,0,0]')
        for i in range(8): I(f'v_rcp_f32 v{tt+i}, v{tt+i}')
        for i in range(0, 8, 2): I(f'v_pk_mul_f32 {vr(x+i,2)}, {vr(x+i,2)}, {vr(tt+i,2)}')
        k.cvt(P+4*h, x, 8)
        I(f'v_permlane16_swap_b32 v{P+4*h}, v{P+4*h+2}')
        I(f'v_permlane16_swap_b32 v{P+4*h+1}, v{P+4*h+3}')
        k.stores([f'buffer_store_dwordx4 {vr(P+4*h,4)}, v{vST}, {WS}, s{sR} offen offset:{h*1024}'], tag='tl')
    I(f'buffer_store_dwordx4 {vr(P,4)}, v{vHS}, {WS}, 0 offen sc1')
    I(f'buffer_store_dwordx4 {vr(P+4,4)}, v{vHS}, {WS}, 0 offen offset:1024 sc1')
    for i in range(0, 16, 2):
        I(f'v_pk_fma_f32 {vr(ACC+i,2)}, {vr(HR+i,2)}, {vr(D+4,2)}, {vr(BXT,2)} op_sel_hi:[1,0,0]')
    for t in range(4): I(f'v_subrev_u32 v{SB[t]}, {RB}, v{SB[t]}')
    b_soff(k, L.T0 - TILE)
    I(f's_mov_b32 s{sR}, {L.X1}')
    w3_rd_base(k, 14, RC)
    e.wait_tag('tl')
    k.stores([f'buffer_store_dword v{vTAG}, v{vTF}, {WS}, 0 offen'])
    k.stamp('tp')
    k.bar()
    if k.stop == 't': return
    a_preload(k)
    for i in range(3): tr2(k, W3P + 4*i, 14, i*4096, 512)
    addr = [XA]*3 + [XA+4] + [XA+1]*3 + [XA+2]*3 + [XA+5] + [XA+3]*3
    def chk():
        I('v_max_u32 v18, v18, v19')
        I(f'v_cmp_ne_u32 vcc, s{sTAG}, v16')
        I(f'v_cmp_eq_u32 s[{t2}:{t3}], -1, v18')
        I(f's_or_b64 vcc, vcc, s[{t2}:{t3}]')
    pl = [f'buffer_load_dword v16, v{vTP}, {WS}, s{sGB} offen sc1',
          f'buffer_load_dwordx2 v[18:19], v{vHP}, {WS}, s{sGB} offen sc1']
    k.poll3(pl, chk, 't')
    k.stamp('pt')
    b_loads(k, addr)
    e.wait_lg0(); k.bar()
    sM, sS = sT[9], sT[10]
    I(f's_lshl_b32 s{sM}, s{sA}, 10')
    gemm(k, ACC, k.capture(lambda: w4_src(k, 0)), 30)
    k.stamp('xg')
    def mid():
        for i in range(0, 16, 2):
            I(f'v_pk_add_f32 {vr(RES+i,2)}, {vr(HR+i,2)}, {vr(ACC+i,2)}')
    publish_stats(k, ACC, sR, 2, BF, mid)
    k.stamp('xp')
    k.bar()
    if k.stop == 'x1': return
    def F(m): return W3P + 4*m if m < 3 else 128 + 4*(m - 3)
    AC, BB, GT, GC, PK, PAT, C, AXT = 44, 76, 92, 108, 116, 124, 32, 36
    vX, vS, vU = 5, 6, 7
    pat(k, PAT)
    up_addrs(k, vX, vS, vU, U1)
    I(f'v_subrev_u32 v8, {RC - RB}, v14')
    def frd(m): tr2(k, F(m), 8 if m < 17 else 14, (m - 3 if m < 17 else m - 17)*4096, 512)
    nf = o.get('fr', 12)
    for m in range(3, 3 + nf): frd(m)
    poll_stats(k, 2, 'x', D, 10, 11)
    k.stamp('px')
    x1_dma(k, 0, vB); x1_dma(k, 7, vB)
    for m in range(3 + nf, 28): frd(m)
    row_stats(k, D)
    SR = 40
    I(f'v_mul_f32 v{D+3}, -1.0, v{D}')
    k.split_b(D+3, SR, D+2)
    I(f'v_add_f32 v{D+2}, 0x3727c5ac, v{D+1}'); I(f'v_rsq_f32 v{D+4}, v{D+2}')
    gelu_consts(k, D+4, SR+4)
    I(f's_lshl_b32 s{t0}, s{sW}, 9'); I(f's_add_u32 s{t0}, s{t0}, {L_STAT}')
    I('v_lshlrev_b32 v15, 5, v2'); I(f'v_add_u32 v15, s{t0}, v15')
    I(f'ds_write_b128 v15, {vr(SR,4)}'); I(f'ds_write_b128 v15, {vr(SR+4,4)} offset:16')
    e.wait_lg0(); k.bar('bf')
    def cs(m): I(f'{MF16} {vr(C,4)}, {vr(PAT,4)}, {vr(F(m),4)}, ' + ('0' if m == 0 else vr(C, 4)))
    dm = []
    for b in range(3): dm += w4_dma_list(k, 0, sM, sS, b)
    nd = o.get('nd', 7)
    for m in range(28):
        if m < nd: dm.pop(0)()
        cs(m)
    e.wait_tag('x1'); k.bar('b8')
    while dm: dm.pop(0)()
    I(f'v_mov_b32 v{AXT+2}, 0'); I(f'v_mov_b32 v{AXT+3}, 0')
    k.split_a(C, AXT, C+1)
    I(f'ds_read_b128 {vr(GC,4)}, v{vS} offset:16'); I(f'ds_read_b128 {vr(GC+4,4)}, v{vS} offset:1040')
    I(f'ds_read_b128 {vr(BB,4)}, v{vX}'); I(f'ds_read_b128 {vr(BB+4,4)}, v{vX} offset:{2*TILE}')
    e.wait_tag('w4_1'); k.bar('ma')
    I(f's_setprio {o.get("pu", 1)}')
    e.wait_tag('w4_2'); k.bar('m2')
    hooks = {}
    m3 = o.get('m3', 15)
    for b in (3, 4, 5): dm += w4_dma_list(k, 0, sM, sS, b)
    def one(i):
        k.stamp(f'h{i}')
        if i == m3: k.bar('m3')
        if i % 4 != o.get('dsk', 9) and len(dm) > (7 if i < m3 else 0): dm.pop(0)()
    for i in range(29): hooks[i] = lambda i=i: one(i)
    up(k, AC, lambda m: F(m) if m < 28 else AXT, BB, vX, vS, hooks, pre=False)
    I(f's_setprio {o.get("pgb", 0)}')
    assert not dm
    e.wait_tag('w4_4'); k.bar('m6')
    for b in (6, 7): dm += w4_dma_list(k, 0, sM, sS, b)
    for _ in range(4): dm.pop(0)()
    cnt = 0
    m7 = o.get('m7', 30)
    for gi, (Lq, Pk, off) in enumerate(gelu_groups(AC, GT, GC, PK, 2)):
        for t in Lq:
            I(t); cnt += 1
            if cnt == m7: e.wait_tag('w4_5'); k.bar('m7')
            if cnt == o.get('m9', 165):
                assert not dm and gi >= 2
                e.wait_vm0(); e.wait_lg0(); k.bar('m9')
            if cnt % o.get('dper', 4) == 0 and len(dm) > (7 if cnt < m7 else 0): dm.pop(0)()
        I(f'ds_write_b128 v{vU}, {vr(Pk,4)} offset:{off}')
    I('s_setprio 0')
    e.wait_lg0(); k.bar('m10')
    SEL, LD = 32, 76
    k.sel_mat(SEL, 16)
    I(f's_mul_i32 s{t0}, s{sA}, {7*TILE}'); I(f's_sub_u32 s{t0}, {PB[0]}, s{t0}')
    I(f's_cmp_eq_u32 s{sA}, 3'); I(f's_cselect_b32 s{t0}, {PB[3]}, s{t0}')
    I(f's_lshl_b32 s{t1}, s{sJ}, 11'); I(f's_add_u32 s{t0}, s{t0}, s{t1}')
    I(f's_add_u32 s{t0}, s{t0}, s{sGB}')
    I('v_and_b32 v5, 31, v1'); I('v_lshlrev_b32 v5, 4, v5'); I(f'v_add_u32 v5, s{t0}, v5')
    I('v_lshrrev_b32 v16, 5, v1'); I(f'v_mul_u32_u24 v17, {TILE}, v16'); I('v_add_u32 v6, v5, v17')
    I('v_cmp_eq_u32 vcc, 0, v16'); I(f'v_cndmask_b32 v5, v{vBIG}, v5, vcc')
    for i in range(4): I(f's_mov_b32 s{sT[4+i]}, {2*i*TILE}')
    I(f's_lshl_b32 s{t0}, s{sG}, 6'); I(f's_lshl_b32 s{t1}, s{sA}, 4'); I(f's_add_u32 s{t0}, s{t0}, s{t1}')
    I(f'v_add_u32 v7, s{t0}, v2'); I('v_mul_u32_u24 v7, 896, v7')
    I(f'v_lshl_add_u32 v7, v{vSIG}, 4, v7')
    I(f's_lshl_b32 s{sT[8]}, s{sJ}, 7')
    I(f's_lshl_b32 s{t0}, s{sA}, 7'); I(f's_add_u32 s{t0}, s{t0}, {L.F_P}')
    I('v_min_u32 v15, 27, v1'); I('v_lshlrev_b32 v15, 2, v15'); I(f'v_add_u32 v15, s{t0}, v15')
    if o.get('m11', 0): k.bar()
    def chk(): I(f'v_cmp_ne_u32 vcc, s{sTAG}, v16')
    k.poll3([f'buffer_load_dword v16, v15, {WS}, s{sGB} offen sc1'], chk, 'p')
    k.stamp('pf')
    for i in range(4):
        for t in range(4):
            I(f'buffer_load_dwordx4 {vr(LD+16*i+4*t,4)}, v{6 if i < 3 else 5}, {WS}, s{sT[4+i]} offen offset:{t*512} sc1')
    for i in range(4):
        for t in range(4):
            I(f'{MF16} {vr(RES+4*t,4)}, {vr(SEL,4)}, {vr(LD+16*i+4*t,4)}, {vr(RES+4*t,4)}')
    pack_pairs(k, RES, 52)
    of = o.get('outf', '')
    I(f'buffer_store_dwordx4 v[52:55], v7, {srd("out")}, s{sT[8]} offen {of}')
    I(f'buffer_store_dwordx4 v[56:59], v7, {srd("out")}, s{sT[8]} offen offset:64 {of}')
    k.stamp('end')

vT3, vT2, vT4, vTQ, vTD = 202, 203, 204, 205, 206
def touch_addrs(k):
    I, L = k.I, k.L
    t0, t1, t2 = sT[0:3]
    I(f's_and_b32 s{t0}, s{sG}, 3'); I(f's_lshl_b32 s{t0}, s{t0}, 2'); I(f's_add_u32 s{t0}, s{t0}, s{sA}')
    I(f's_mul_i32 s{t1}, s{t0}, 3584'); I(f's_lshl_b32 s{t2}, s{sJ}, 9'); I(f's_add_u32 s{t1}, s{t1}, s{t2}')
    I(f's_cmp_eq_u32 s{sJ}, 7'); I(f's_cselect_b32 s{t1}, {BIG}, s{t1}')
    I('v_lshrrev_b32 v15, 1, v1'); I(f'v_mul_u32_u24 v{vT3}, {16*3584}, v15'); I('v_and_b32 v15, 1, v1')
    I(f'v_lshl_add_u32 v{vT3}, v15, 7, v{vT3}'); I(f'v_add_u32 v{vT3}, s{t1}, v{vT3}')
    I(f's_mul_i32 s{t0}, s{t0}, 896'); I(f's_lshl_b32 s{t2}, s{sJ}, 7'); I(f's_add_u32 s{t1}, s{t0}, s{t2}')
    I(f'v_mul_u32_u24 v{vT2}, {16*896}, v1'); I(f'v_add_u32 v{vT2}, s{t1}, v{vT2}')
    I(f's_mul_i32 s{t2}, s{sJ}, {256*896}'); I(f's_add_u32 s{t1}, s{t0}, s{t2}')
    I('v_lshrrev_b32 v15, 3, v1'); I(f'v_mul_u32_u24 v{vT4}, {16*896}, v15'); I('v_and_b32 v15, 7, v1'); I('v_min_u32 v15, 6, v15')
    I(f'v_lshl_add_u32 v{vT4}, v15, 7, v{vT4}'); I(f'v_add_u32 v{vT4}, s{t1}, v{vT4}')
    I(f's_mul_i32 s{t1}, s{sJ}, {AS}'); I(f's_mul_i32 s{t2}, s{sA}, {TILE}'); I(f's_add_u32 s{t1}, s{t1}, s{t2}'); I(f's_add_u32 s{t1}, s{t1}, {L.P0}')
    I('v_min_u32 v15, 55, v1'); I(f'v_lshlrev_b32 v{vTQ}, 7, v15'); I(f'v_add_u32 v{vTQ}, s{t1}, v{vTQ}')
def touch(k, key, dflt='-'):
    I = k.I
    t1 = sT[1]
    for ch in k.o.get(key, dflt):
        if ch in 'ab': I(f'buffer_load_dword v{vTD}, v{vT3}, {srd("w3")}, 0 offen offset:{256 if ch == "b" else 0}')
        elif ch in 'o12': I(f'buffer_load_dword v{vTD}, v{vT2}, {srd("wo" if ch == "o" else "w" + ch)}, 0 offen')
        elif ch in '45':
            I(f's_mov_b32 s{t1}, {128*896 if ch == "5" else 0}')
            I(f'buffer_load_dword v{vTD}, v{vT4}, {srd("w4")}, s{t1} offen')
        elif ch in 'pq':
            I(f's_add_u32 s{t1}, s{sGB}, {7168 if ch == "q" else 0}')
            I(f'buffer_load_dword v{vTD}, v{vTQ}, {WS}, s{t1} offen sc1')
        else: continue
        k.e.vm[-1]['dst'] = set()

def aux_burst2(k):
    I, o = k.I, k.o
    touch_addrs(k)
    touch(k, 'tO')
    w3_src(k, 12)
    for m in range(o['w2a']): w3_dma(k, 12, k.sMW, m, 0, RC + m*4096, 'w3')

def aux_pre(k): pass

def aux_rest(k):
    e, I, L, o = k.e, k.I, k.L, k.o
    t0, t1, t2, t3 = sT[0:4]
    sM = k.sMW; sS = sT[5]
    A0, AC, BB, GT, GC, PK, PAT, C, AXT, ONE = 32, 144, 176, 192, 208, 216, 232, 236, 240, 244
    n0 = o['w2a']; nH = o.get('nH', 11); nT = 28 - n0 - nH
    assert nT <= 8 and n0 <= 10
    def rd(m0, n, s0=0):
        for i in range(n): tr2(k, A0 + 4*(m0+i), 8, (s0+i)*4096, 512)
    def cs(m0, n):
        for m in range(m0, m0 + n):
            I(f'{MF16} {vr(C,4)}, {vr(PAT,4)}, {vr(A0+4*m,4)}, ' + ('0' if m == 0 else vr(C, 4)))
    def dma(m0, n, s0=0):
        for i in range(n): w3_dma(k, 12, sM, m0 + i, 0, RC + (s0+i)*4096, 'w3')
    w3_rd_base(k, 8, RC)
    if not k.v4:
        k.o_flag()
        k.bar('eo')
        rd(0, n0)
    I('v_bfe_u32 v15, v1, 2, 2')
    I('v_lshl_add_u32 v16, v3, 3, v15'); I('v_lshlrev_b32 v16, 7, v16')
    I('v_and_b32 v17, 3, v1'); I('v_lshl_add_u32 v16, v17, 3, v16')
    I('v_lshrrev_b32 v15, 1, v15'); I('v_and_b32 v17, 1, v3'); I('v_lshl_add_u32 v15, v17, 1, v15')
    I(f'v_xor_b32 v15, s{sA}, v15')
    I('v_lshl_add_u32 v6, v15, 5, v16'); I(f'v_add_u32 v6, {RB}, v6')
    CB = 144
    if k.v4:
        for i in range(4): I(f'v_mov_b32 v{ONE+i}, 0x3f803f80')
        pat(k, PAT)
        k.o_flag('os')
        k.v_landed()
        rd(0, n0)
    for m in range(14): tr2(k, CB + 4*m, 6, m*4096, 512)
    if not k.v4:
        for i in range(4): I(f'v_mov_b32 v{ONE+i}, 0x3f803f80')
        pat(k, PAT)
    for m in range(14):
        I(f'{MF16} v[248:251], {vr(ONE,4)}, {vr(CB+4*m,4)}, ' + ('0' if m == 0 else 'v[248:251]'))
    cs(0, n0)
    k.split_a(248, 252, 254)
    I(f's_lshl_b32 s{t0}, s{sA}, 7'); I(f's_add_u32 s{t0}, s{t0}, {L_CS1}')
    I('v_lshlrev_b32 v15, 3, v2'); I(f'v_add_u32 v15, s{t0}, v15')
    I('ds_write_b64 v15, v[252:253]')
    e.wait_lg0(); k.bar()
    touch(k, 'tH')
    dma(n0, nH)
    e.wait_vm0(); k.stamp('a6'); k.bar()
    if k.stop == 'h': return
    te = o.get('te', 0)
    for m in range(te): k.sq_dma('w2', RA, m, 'w2')
    rd(n0, nH); cs(n0, nH)
    e.wait_lg0(); k.bar()
    touch(k, 'tT')
    for m in range(te, 14): k.sq_dma('w2', RA, m, 'w2')
    for m in range(3): w3_dma(k, 12, sM, m, 1, RC + m*4096, 'w3')
    dma(n0 + nH, nT, 3)
    e.wait_vm0(); k.stamp('a7'); k.bar()
    if k.stop == 't': return
    xe = o.get('xe', 0)
    for m in range(3, 3 + xe): w3_dma(k, 12, sM, m, 1, RB + (m-3)*4096, 'w3')
    rd(n0 + nH, nT, 3); cs(n0 + nH, nT)
    e.wait_lg0(); k.bar()
    touch(k, 'tX')
    for m in range(3 + xe, 28): w3_dma(k, 12, sM, m, 1, RB + (m-3)*4096, 'w3')
    vX, vS, vU = 24, 25, 12
    I(f'v_mov_b32 v{AXT+2}, 0'); I(f'v_mov_b32 v{AXT+3}, 0')
    k.split_a(C, AXT, C+1)
    VB, VB2 = 5, 28
    I('v_bfe_u32 v15, v1, 2, 2'); I('v_and_b32 v16, 1, v3')
    I('v_lshl_add_u32 v17, v16, 2, v15'); I('v_lshlrev_b32 v18, 7, v17')
    I('v_lshrrev_b32 v17, 1, v17'); I('v_lshl_add_u32 v18, v17, 5, v18')
    I('v_and_b32 v17, 3, v1'); I('v_lshl_add_u32 v18, v17, 3, v18')
    I('v_lshrrev_b32 v17, 1, v3'); I('v_lshl_add_u32 v18, v17, 11, v18')
    I(f's_mul_i32 s{t0}, s{sA}, 7')
    for i in range(4):
        I(f's_add_u32 s{t1}, s{t0}, {i}'); I(f's_and_b32 s{t2}, s{t1}, 3'); I(f's_lshl_b32 s{t2}, s{t2}, 5')
        I(f's_lshr_b32 s{t1}, s{t1}, 2'); I(f's_lshl_b32 s{t1}, s{t1}, 12')
        I(f'v_xor_b32 v{VB+i}, s{t2}, v18'); I(f'v_add_u32 v{VB+i}, s{t1}, v{VB+i}')
        I(f'v_add_u32 v{VB2+i}, {RB}, v{VB+i}')
    I(f's_mul_i32 s{t0}, s{sJ}, {TILE}'); I(f's_add_u32 s{t0}, s{t0}, s{sGB}')
    I(f's_mul_i32 s{t2}, s{sA}, {14*256}'); I(f's_add_u32 s{t0}, s{t0}, s{t2}')
    I(f'v_lshlrev_b32 v9, 8, v{vSIG}'); I('v_lshl_add_u32 v9, v2, 4, v9'); I(f'v_add_u32 v9, s{t0}, v9')
    I(f's_add_u32 s{t0}, s{t0}, {12*256}')
    I('v_lshrrev_b32 v15, 1, v3'); I('v_lshlrev_b32 v15, 8, v15'); I('v_lshl_add_u32 v15, v2, 4, v15')
    I('v_and_b32 v16, 1, v3'); I('v_lshl_add_u32 v15, v16, 3, v15')
    I(f'v_add_u32 v10, s{t0}, v15')
    I(f's_lshl_b32 s{t0}, s{sJ}, 4'); I(f's_lshl_b32 s{t1}, s{sA}, 2'); I(f's_add_u32 s{t0}, s{t0}, s{t1}')
    I(f's_add_u32 s{t0}, s{t0}, s{sGB}'); I(f's_add_u32 s{t0}, s{t0}, {L.F_P}')
    I(f'v_add_u32 v11, s{t0}, v{vL0}')
    I(f'v_mov_b32 v13, s{sTAG}')
    I(f'v_add_u32 v14, {U0}, v4')
    for n in range(4): I(f's_mov_b32 s{sT[8+n]}, {PB[n]}')
    up_addrs(k, vX, vS, vU, U0)
    e.wait_vm0(); k.stamp('a8'); k.bar()
    if k.stop == 'x1': return
    I('s_setprio 2')
    k.bar('bf')
    k.bar('b8')
    def A4(b): return 32 + 28*(b & 3)
    def take_list(b):
        out = []
        for lam in range(7):
            reg = STEP_REG[b]
            vb = (VB2 if reg >= RB else VB) + (lam & 3)
            off = (reg - RB if reg >= RB else reg) + (lam >> 2)*4096
            for h in range(2):
                out.append(lambda d=A4(b)+4*lam+2*h, vb=vb, off=off+1024*h: I(f'ds_read_b64_tr_b16 {vr(d,2)}, v{vb} offset:{off}', tag=f'r4_{b}'))
        return out
    ma = o.get('ma', 17); m2 = o.get('m2', 27)
    assert ma >= 13
    tk = take_list(0) + take_list(1)
    def hk(m):
        if m == ma: k.bar('ma')
        if m >= ma:
            for _ in range(2):
                if tk: tk.pop(0)()
        if m == 26: I(f'ds_read_b128 {vr(GC,4)}, v{vS} offset:16'); I(f'ds_read_b128 {vr(GC+4,4)}, v{vS} offset:1040')
        if m == m2:
            assert not tk
            e.wait_tag('r4_1'); k.bar('m2')
    def hh(m):
        if m > ma:
            for _ in range(o.get('tkh', 1)):
                if tk: tk.pop(0)()
    up(k, AC, lambda m: A0 + 4*m if m < 28 else AXT, BB, vX, vS, {m: (lambda m=m: hk(m)) for m in range(29)}, half=hh)
    I(f's_setprio {o.get("pga", 0)}')
    k.stamp('u0')
    gl = []
    for Lq, Pk, off in gelu_groups(AC, GT, GC, PK, 2): gl += Lq + [f'ds_write_b128 v{vU}, {vr(Pk,4)} offset:{off}']
    for f in take_list(2): f()
    a3 = o.get('a3', 110)
    for n, t in enumerate(gl):
        if n == a3:
            e.wait_tag('r4_2'); k.stamp('g3'); k.bar('m3')
        if n % 20 == 0: k.stamp(f'g{n}')
        I(t)
    I(f's_setprio {o.get("pd", 1)}')
    e.wait_lg0(); k.bar('m6')
    DA = 144
    UBR = [16, 20, 24]
    nk = 4
    seq = [(b, n) for b in range(nk) for n in range(4)] + [(b, n) for n in range(4) for b in range(nk, 8)]
    def u_rd(i):
        b, n = seq[i]
        I(f'ds_read_b128 {vr(UBR[i%3],4)}, v{14 if b < 4 else 4} offset:{(b&3)*4096 + n*1024}')
    def pack_list(n):
        Lq = []
        for pp in range(3):
            a = DA + 28*n + 8*pp
            for i in range(4): Lq.append(f'v_cvt_pk_bf16_f32 v{a+i}, v{a+2*i}, v{a+2*i+1}')
            Lq.append(f'v_permlane16_swap_b32 v{a}, v{a+2}'); Lq.append(f'v_permlane16_swap_b32 v{a+1}, v{a+3}')
            Lq.append(('st', f'buffer_store_dwordx4 {vr(a,4)}, v9, {WS}, s{sT[8+n]} offen offset:{pp*1024}', n))
        a = DA + 28*n + 24
        for i in range(2): Lq.append(f'v_cvt_pk_bf16_f32 v{a+i}, v{a+2*i}, v{a+2*i+1}')
        Lq.append(('st', f'buffer_store_dwordx2 {vr(a,2)}, v10, {WS}, s{sT[8+n]} offen', n))
        return Lq
    def run_fill(x):
        if callable(x): x()
        elif isinstance(x, tuple):
            if x[0] == 'st' and x[2] < o.get('pn', 2): I(x[1] + ' sc1', tag=f'p{x[2]}')
            elif x[0] == 'st': k.stores([x[1]], tag=f'p{x[2]}')
            else:
                e.wait_tag(f'p{x[1]}')
                k.stores([f'buffer_store_dword v13, v11, {WS}, 0 offen offset:{x[1]*128}'])
        else: I(x)
    fill = []
    d9 = o.get('d9', 14); d10 = o.get('d10', 22)
    assert 12 <= d9 <= 16 and 20 <= d10 <= 24
    nxt = 0
    for i, (b, n) in enumerate(seq):
        if i in (0, 4, 8): fill += take_list(3 + i//4)
        if i == o.get('d7', 3):
            e.wait_tag('r4_3'); k.bar('m7')
        if i == d9:
            k.bar('m9'); fill += take_list(6)
        if i == 16: fill += take_list(7)
        if i == d10: k.bar('m10')
        k.stamp(f'd{i}')
        lim = 16 if i < d9 else 24 if i < d10 else 32
        while nxt < min(lim, i + 3): u_rd(nxt); nxt += 1
        for lam in range(7):
            acc = DA + 28*n + 4*lam
            I(f'{MF16} {vr(acc,4)}, {vr(A4(b)+4*lam,4)}, {vr(UBR[i%3],4)}, ' + ('0' if b == 0 else vr(acc, 4)))
            if fill and not (i > 16 and b == nk and lam < 2): run_fill(fill.pop(0))
        if b == 7:
            assert not fill, len(fill)
            if n == 1 and o.get('m11', 0): k.bar()
            if n > 1: run_fill(('fl', n - 2))
            fill = pack_list(n)
    k.stamp('dg')
    for x in fill: run_fill(x)
    run_fill(('fl', 2))
    run_fill(('fl', 3))
    k.stamp('pp')

def j7_jobs(k):
    e, I, L = k.e, k.I, k.L
    t0, t1 = sT[0], sT[1]
    I(f's_and_b32 s{t0}, s{sG}, 3'); I(f's_lshl_b32 s{t0}, s{t0}, 3'); I(f's_add_u32 s{t0}, s{t0}, s{sW}')
    I(f's_mul_i32 s{t0}, s{t0}, 49'); I(f'v_add_u32 v15, s{t0}, v1')
    I('v_lshrrev_b32 v16, 1, v15'); I('v_lshlrev_b32 v16, 9, v16'); I('v_and_b32 v17, 1, v15'); I('v_lshl_add_u32 v16, v17, 7, v16')
    I('v_lshrrev_b32 v17, 5, v15'); I('v_mul_u32_u24 v17, 9363, v17'); I('v_lshrrev_b32 v17, 16, v17')
    I(f'v_mul_u32_u24 v17, {229376 - 224*128}, v17'); I('v_lshl_add_u32 v17, v15, 7, v17')
    I('v_cmp_gt_u32 vcc, 49, v1'); I(f'v_cndmask_b32 v16, v{vBIG}, v16, vcc'); I(f'v_cndmask_b32 v17, v{vBIG}, v17, vcc')
    I(f's_mul_i32 s{t0}, s{sW}, 56'); I(f'v_add_u32 v15, s{t0}, v1'); I('v_lshlrev_b32 v15, 7, v15')
    I('v_cmp_gt_u32 vcc, 56, v1'); I(f'v_cndmask_b32 v15, v{vBIG}, v15, vcc')
    k.jn = 0
    for ch in k.o.get('j7', 'b4p'):
        if ch in 'ab':
            for i in range(4):
                I(f's_mov_b32 s{t1}, {i*784*512 + (256 if ch == "b" else 0)}')
                I(f'buffer_load_dword v{32+i}, v16, {srd("w3")}, s{t1} offen'); e.barrier()
        if ch == '4':
            for b in range(8):
                I(f's_mov_b32 s{t1}, {b*28672}')
                I(f'buffer_load_dword v{36+b}, v17, {srd("w4")}, s{t1} offen'); e.barrier()
        if ch == 'm':
            I(f's_lshl_b32 s{t0}, s{sG}, 3'); I(f's_add_u32 s{t0}, s{t0}, s{sW}')
            I(f's_mul_i32 s{t1}, s{t0}, {49*128}'); I(f's_mul_i32 s{t0}, s{t0}, {13*128}')
            I('v_min_u32 v18, 48, v1'); I('v_lshlrev_b32 v18, 7, v18'); I('v_min_u32 v19, 12, v1'); I('v_lshlrev_b32 v19, 7, v19')
            I(f'buffer_load_dword v60, v18, {srd("w3")}, s{t1} offen'); e.barrier()
            I(f'buffer_load_dword v61, v19, {srd("w2")}, s{t0} offen'); e.barrier()
            I(f'buffer_load_dword v62, v18, {srd("w4")}, s{t1} offen'); e.barrier()
        if ch == 'w': e.wait_vm0(); k.stamp(f'j{k.jn}'); k.jn += 1
        if ch == 'p':
            nt = 7*(3 - k.o.get('pn', 2))
            for i, off in enumerate([3*AS + min(4*c, nt - 4)*TILE for c in reversed(range((nt + 3)//4))] + [AS + 4*TILE]):
                I(f's_add_u32 s{t1}, s{sGB}, {off}')
                I(f'buffer_load_dword v{44+i}, v15, {WS}, s{t1} offen sc1'); e.barrier()
    e.wait_vm0()
```

```python
import sys
import g5
from g5 import *
WS_PK = 0x110000
MATS = 16*448*64
L_MODE = L_PHI + 1024
L_PART = L_PHI
WS_KVR = WS_PK + 2*MATS
L_KV4 = 155648
L_FL = MISC + 2*3584 + 192
W1SAFE = [1, 2, 5, 6, 8, 9, 12, 13]
W1REST = [0, 3, 4, 7, 10, 11]

class K(g5.K):
    v4 = True
    def pre_srd(self):
        I = self.I
        t0, t1, t2 = sT[0:3]
        I(f's_and_b32 s{t0}, s{sA}, 1'); I(f's_lshl_b32 s{t0}, s{t0}, 3')
        I('v_lshrrev_b32 v15, 3, v1'); I(f'v_add_u32 v15, s{t0}, v15')
        I('v_mul_u32_u24 v48, 56, v15'); I('v_and_b32 v48, -16, v48')
        I('v_bfe_u32 v16, v1, 2, 1'); I('v_mul_u32_u24 v16, 2688, v16'); I('v_add_u32 v48, v48, v16')
        I('v_and_b32 v16, 3, v1'); I('v_lshl_add_u32 v48, v16, 4, v48')
        I(f's_mul_i32 s{t0}, s{sL}, 5376'); I(f's_add_u32 s{t1}, s{t0}, 1792')
        I(f's_cmp_lt_u32 s{sA}, 2'); I(f's_cselect_b32 s{t0}, s{t1}, s{t0}')
        I(f's_cselect_b32 s{t1}, 0, {MATS}')
        I(f's_lshl_b32 s{t2}, s{sL}, 7'); I(f's_add_u32 s{t1}, s{t1}, s{t2}'); I(f's_add_u32 s{t1}, s{t1}, {WS_PK}')
        I(f's_cmp_lt_u32 s{sL}, 224'); I(f's_cselect_b32 s{t1}, s{t1}, {BIG}')
        I(f'v_add_u32 v48, s{t0}, v48')
        I(f'v_mul_u32_u24 v49, {448*64}, v15'); I('v_and_b32 v16, 7, v1'); I('v_lshl_add_u32 v49, v16, 4, v49')
        I(f'v_add_u32 v49, s{t1}, v49')
    def rp_loads(self):
        I = self.I
        I(f'buffer_load_dwordx4 v[52:55], v48, {srd("wqkv")}, 0 offen', tag='rp')

    def kv_addrs(self):
        pass

    def init_B(self):
        I = self.I
        t0, t1, t2 = sT[0:3]
        I('ds_write_b64 v28, v[210:211]'); I('ds_write_b64 v28, v[210:211] offset:8'); I('ds_write_b64 v28, v[210:211] offset:16')
        I(f's_and_b32 s{t0}, s{sA}, 1'); I(f's_lshl_b32 s{t0}, s{t0}, 5')
        I(f'v_xor_b32 v7, s{t0}, v5')
        I(f's_lshr_b32 s{t0}, s{sA}, 1'); I(f's_lshl_b32 s{t0}, s{t0}, 11'); I(f's_add_u32 s{t0}, s{t0}, 28672')
        I(f'v_add_u32 v7, s{t0}, v7')
        I('v_and_b32 v15, 1, v3'); I('v_lshlrev_b32 v15, 8, v15'); I('v_lshl_add_u32 v8, v2, 3, v15')
        I(f'v_add_u32 v8, {L_PART}, v8')
        self.fl_addr()
    def fl_addr(self):
        I = self.I
        I('v_and_b32 v47, 3, v1'); I('v_mul_u32_u24 v47, 224, v47'); I(f'v_add_u32 v47, {L_FL}, v47')
        I('v_and_b32 v15, 4, v1'); I('v_add_u32 v47, v47, v15')
        I('s_mov_b32 s0, 0xf0f0f0f0'); I('s_mov_b32 s1, 0xf0f0f0f0')
    def own_fl(self):
        t0 = sT[0]
        self.I(f's_mul_i32 s{t0}, s{sA}, 224'); self.I(f's_add_u32 s{t0}, s{t0}, {L_FL}'); self.I(f'v_mov_b32 v17, s{t0}')
    frd = 'ds_read_b32 v15, v47'
    def fwr(self, n):
        self.I(f'v_mov_b32 v16, {n}'); self.I(f'ds_write_b32 v17, v16 offset:{4 if n >= 16 else 0}')
    def fchk(self, nv, nk=0, extra=()):
        I = self.I
        if nk: I(f'v_cndmask_b32 v16, {nv}, {nk}, s[0:1]')
        self.lpoll([self.frd] + list(extra), lambda: I(f'v_cmp_gt_u32 vcc, {"v16" if nk else nv}, v15'), f'f{nv}')
    def repack(self):
        I = self.I
        t0, t1 = sT[0:2]
        self.get_tag()
        I(f's_and_b32 s{sN}, s{sTAG}, 0xbfffbfff'); I(f'v_mov_b32 v15, s{sN}')
        I(f's_mov_b32 s{t0}, 0x00880088'); I(f's_mov_b32 s{t1}, 0x00880088')
        I(f'v_cndmask_b32 v55, v55, v15, s[{t0}:{t1}]')
        I(f's_mov_b32 s{t0}, 0x11001100'); I(f's_mov_b32 s{t1}, 0x11001100')
        I(f'v_cndmask_b32 v52, v52, v15, s[{t0}:{t1}]')
        I(f'buffer_store_dwordx4 v[52:55], v49, {WS}, 0 offen sc1')
    def v_addr1(self):
        I = self.I
        t0, t1, t2 = sT[0:3]
        I('v_lshrrev_b32 v15, 5, v1'); I('v_lshlrev_b32 v15, 5, v15'); I('v_xor_b32 v48, v15, v4')
        I(f's_mul_i32 s{t0}, s{sH}, {448*64}'); I(f's_add_u32 s{t0}, s{t0}, s{self.sMW}'); I(f's_add_u32 s{t0}, s{t0}, {WS_PK}')
        I(f'v_add_u32 v48, s{t0}, v48')
        I(f's_cmp_eq_u32 s{sODD}, 1'); I(f's_cselect_b32 s{t0}, 0, 60')
        I('v_and_b32 v15, 8, v1'); I('v_lshlrev_b32 v15, 2, v15'); I(f'v_xor_b32 v15, s{t0}, v15')
        I('v_lshl_add_u32 v15, v2, 6, v15')
        I(f's_add_u32 s{t0}, s{self.sMW}, 28672')
        I('v_lshl_add_u32 v49, v3, 12, v15'); I(f'v_add_u32 v49, s{t0}, v49')
        I('v_lshl_add_u32 v50, v3, 10, v15'); I(f'v_add_u32 v50, s{sT[9]}, v50')
        if self.o.get('mw', '-') != '-': self.warm_addr(51, 0)
    def warm_addr(self, A, B):
        I = self.I
        t0, t1, t2 = sT[0:3]
        I(f's_lshl_b32 s{t0}, s{sL}, 2'); I(f's_add_u32 s{t0}, s{t0}, s{sA}')
        I(f's_lshl_b32 s{t1}, s{t0}, 9'); I(f's_mul_i32 s{t2}, s{t0}, {13*128}')
        I('v_lshlrev_b32 v15, 7, v1'); I(f'v_add_u32 v{A}, s{t1}, v15'); I(f'v_add_u32 v{B}, s{t2}, v15')
        I(f'v_mov_b32 v16, {BIG}')
        I('v_cmp_gt_u32 vcc, 4, v1'); I(f'v_cndmask_b32 v{A}, v16, v{A}, vcc')
        I('v_cmp_gt_u32 vcc, 13, v1'); I(f'v_cndmask_b32 v{B}, v16, v{B}, vcc')
    def warm(self, ch, A, B, D):
        self.I(f'buffer_load_dword v{D}, v{A if ch in "o12" else B}, {srd("wo" if ch == "o" else "w" + ch)}, 0 offen')
        self.e.vm[-1]['dst'] = set()
    def common_addr(self):
        I = self.I
        I('v_and_b32 v15, 1, v3'); I('v_lshrrev_b32 v16, 1, v3'); I('v_lshl_add_u32 v26, v15, 1, v16')
        I(f'v_mov_b32 v20, {BIG}')
        I('v_cmp_eq_u32 vcc, 0, v1'); I('v_cndmask_b32 v21, v20, v13, vcc')
        I(f'v_mov_b32 v27, s{sTAG}')
    def v_addr2(self):
        I, L = self.I, self.L
        t0, t1, t2 = sT[0:3]
        I('v_lshrrev_b32 v15, 1, v3'); I('v_mul_u32_u24 v15, 7168, v15'); I(f'v_add_u32 v15, {RXA}, v15')
        I('v_add_u32 v10, v5, v15'); I('v_add_u32 v11, v6, v15')
        I(f's_and_b32 s{t0}, s{sA}, 1'); I(f's_lshl_b32 s{t1}, s{t0}, 5')
        I(f'v_xor_b32 v31, s{t1}, v10')
        I(f's_lshr_b32 s{t1}, s{sA}, 1'); I(f's_lshl_b32 s{t2}, s{t1}, 14')
        I(f'v_add_u32 v31, s{t2}, v31')
        I(f'v_add_u32 v24, {L_KV4}, v4')
        I(f's_cmp_eq_u32 s{sODD}, 1')
        I(f's_cselect_b32 s{t0}, 0, {1024+12*16}'); I(f's_add_u32 s{t0}, s{t0}, {L_KV4}')
        I('v_lshlrev_b32 v25, 8, v3'); I(f'v_add_u32 v25, s{t0}, v25')
        I(f's_mul_i32 s{t0}, s{sH}, 7'); I(f's_lshr_b32 s{t0}, s{t0}, 1')
        I('v_and_b32 v18, 1, v3'); I('v_lshrrev_b32 v19, 1, v3'); I('v_lshl_add_u32 v26, v18, 1, v19')
        I(f'v_add_u32 v18, s{t0}, v26')
        I('v_lshlrev_b32 v18, 8, v18'); I('v_lshl_add_u32 v18, v2, 4, v18')
        I(f's_mul_i32 s{sX0}, s{sRB}, {2*L.GS}'); I(f's_add_u32 s{sX0}, s{sX0}, {WS_G}'); I(f's_add_u32 s{sX1}, s{sX0}, {L.GS}')
        I(f's_mul_i32 s{t0}, s{sA}, {TILE}'); I(f's_add_u32 s{t0}, s{t0}, {L.O}')
        I(f'v_add_u32 v18, s{t0}, v18')
        I('v_add_u32 v19, 8, v18')
        I(f'v_mov_b32 v20, {BIG}')
        I(f'v_cndmask_b32 v18, v18, v20, s[{sM0}:{sM0+1}]')
        I(f'v_cndmask_b32 v19, v19, v20, s[{sM1}:{sM1+1}]')
        I(f's_lshl_b32 s{t0}, s{sA}, 6'); I(f's_lshl_b32 s{t1}, s{sH}, 2'); I(f's_add_u32 s{t0}, s{t0}, s{t1}')
        I(f's_add_u32 s{t0}, s{t0}, {L.F_O}')
        I(f'v_mul_u32_u24 v14, {L.GS}, v1'); I(f'v_add_u32 v14, s{t0}, v14')
        I('v_cmp_gt_u32 vcc, 2, v1'); I('v_cndmask_b32 v14, v20, v14, vcc')
        I(f'v_mov_b32 v27, s{sTAG}')
        self.own_fl()

    def pdma(self, i, mat, sc=None):
        I = self.I
        if sc is None: sc = 'sc1' if self.o.get('psc', 1) else ''
        if mat == 0: I(f's_add_u32 m0, s{self.sMW}, {28672 + i*4096}')
        else: I(f's_add_u32 m0, s{sT[9]}, {i*1024}')
        I(f's_lshl_b32 s{self.sCw}, s{self.sCx}, 5')
        if mat: I(f's_add_u32 s{self.sCw}, s{self.sCw}, {MATS}')
        I(f'buffer_load_dwordx4 v48, {WS}, s{self.sCw} offen {sc} lds', tag=('wv', 'wq')[mat])
        self.adv()
    def tag_reads(self, mat, D):
        return [f'ds_read_b32 v{D+n}, v{49+mat} offset:{3*n*(4096, 1024)[mat]}' for n in range(2)]
    def tag_chk(self, mat, D):
        e, I = self.e, self.I
        done, retry = e.newlabel('Ltd'), e.newlabel('Ltr')
        def check():
            I(f'v_cmp_ne_u32 vcc, s{sN}, v{D}')
            I(f'v_cmp_ne_u32 s[{sT[2]}:{sT[3]}], s{sN}, v{D+1}')
            I(f's_or_b64 vcc, vcc, s[{sT[2]}:{sT[3]}]')
        check()
        I(f's_cbranch_vccnz {retry}')
        e.label(done)
        sn = e.snap()
        save = e.out; e.out = []
        e.label(retry)
        e.wait_all()
        for i in range(7): self.pdma(i, mat, 'sc1')
        e.wait_vm0()
        for t in self.tag_reads(mat, D): I(t)
        e.wait_lg0()
        check()
        I(f's_cbranch_vccz {done}')
        I(f's_sub_u32 s{sSPIN}, s{sSPIN}, 1')
        I(f's_cbranch_scc0 {retry}')
        I(f's_mov_b32 s{sSPIN}, 0')
        I(f's_branch {done}')
        e.ool += e.out; e.out = save
        e.restore(sn)

    def init_A(self):
        I, L = self.I, self.L
        t0, t1, t2, t3 = sT[0:4]
        I(f's_lshl_b32 s{t0}, s{sJ}, 2'); I(f's_add_u32 s{t0}, s{t0}, s{sA}')
        I(f's_mul_i32 s{t1}, s{t0}, {14*128}'); I(f's_mul_i32 s{t2}, s{t0}, 384'); I(f's_min_u32 s{t2}, s{t2}, {69*128}')
        I(f's_add_u32 s{t2}, s{t2}, {L.FLG}')
        I('v_min_u32 v15, 13, v2'); I('v_lshlrev_b32 v15, 7, v15'); I(f'v_add_u32 v15, s{t1}, v15')
        I('v_and_b32 v16, 1, v3'); I(f'v_mul_u32_u24 v16, {AS}, v16'); I('v_add_u32 v15, v15, v16')
        I('v_min_u32 v16, 2, v2'); I('v_lshlrev_b32 v16, 7, v16'); I(f'v_add_u32 v16, s{t2}, v16')
        fu = self.o.get('fu', '')
        if fu == 'oh': I('v_mov_b32 v0, v16')
        else:
            I({'': 'v_cmp_gt_u32 vcc, 2, v3', 'o': 'v_cmp_eq_u32 vcc, 0, v3', 'h': 'v_cmp_eq_u32 vcc, 1, v3'}[fu]); I('v_cndmask_b32 v0, v16, v15, vcc')
        self.fl_addr()
        self.warm_addr(30, 9)
        I(f's_lshl_b32 s{t0}, s{sH}, 16'); I(f's_lshl_b32 s{t1}, s{sRB}, 8'); I(f's_add_u32 s{t0}, s{t0}, s{t1}'); I(f's_add_u32 s{t0}, s{t0}, {WS_KVP}')
        I('v_lshlrev_b32 v15, 4, v2'); I('v_lshl_add_u32 v50, v3, 12, v15'); I(f'v_add_u32 v50, s{t0}, v50')
        I(f's_lshl_b32 s{t0}, s{sH}, 12'); I(f's_add_u32 s{t0}, s{t0}, s{t1}'); I(f's_add_u32 s{t0}, s{t0}, {WS_KVR}')
        I('v_lshl_add_u32 v51, v3, 3, v15'); I(f'v_add_u32 v51, s{t0}, v51')
        I('v_cmp_gt_u32 vcc, 32, v1'); I('v_cndmask_b32 v51, v16, v51, vcc')
        I('v_and_b32 v15, 1, v2'); I('v_lshlrev_b32 v15, 4, v15')
        I('v_mov_b32 v16, 0x3f80'); I('v_lshlrev_b32 v15, v15, v16')
        I('v_lshrrev_b32 v16, 1, v2')
        for i in range(4):
            I(f'v_cmp_eq_u32 vcc, {i}, v16'); I(f'v_cndmask_b32 v{self.SEL+i}, 0, v15, vcc')
        I(f's_lshl_b32 s{t0}, s{sH}, 4'); I(f's_or_b32 s{t0}, s{t0}, s{sRB}'); I(f's_lshl_b32 s{t0}, s{t0}, 12')
        I(f's_add_u32 s{t0}, s{t0}, s{self.sMW}'); I(f's_add_u32 s{t0}, s{t0}, {WS_KVP}')
        I(f'v_add_u32 v31, s{t0}, v4')
        I(f's_lshl_b32 s{t0}, s{sRB}, 4')
        I(f'v_add_u32 v15, s{t0}, v2')
        I('v_lshlrev_b32 v16, 4, v2'); I(f'v_add_u32 v16, s{sH}, v16')
        I('v_cmp_eq_u32 vcc, 1, v3')
        I('v_cndmask_b32 v15, v15, v16, vcc')
        I('v_and_b32 v16, 8, v2'); I('v_lshlrev_b32 v16, 1, v16')
        I('v_and_b32 v8, 7, v2'); I('v_add_u32 v16, v16, v8')
        I(f's_lshl_b32 s{t0}, s{sG}, 3'); I(f's_sub_u32 s{t0}, s{t0}, 8')
        I(f'v_add_u32 v16, s{t0}, v16'); I('v_and_b32 v16, 255, v16')
        I('v_cmp_eq_u32 vcc, 2, v3')
        I('v_cndmask_b32 v15, v15, v16, vcc')
        I('v_lshlrev_b32 v8, 6, v15'); I(f'v_add_u32 v8, {WS_HELLO}, v8')

    def p1_A(self, g6):
        e, I, o = self.e, self.I, self.o
        X, AX = self.X, self.AX
        t0, t1 = sT[0:2]
        e.vm = self.vmA
        self.init_A()
        self.get_tag()
        self.stamp('su')
        if o.get('x0', 2) < 2: self.xdma(1, 1, 'c1')
        I('s_setprio 1')
        WR, X2 = 132, 164
        def kreads(m):
            return [self.xrd(X + 4*m, m, 0, f'xr{m>>1}'), self.xrd(X2 + 4*(m % 3), m, 1)] + self.wrd(WR + 8*(m & 3), m, 0)
        def kstep(m):
            xa, xb = vr(X + 4*m, 4), vr(X2 + 4*(m % 3), 4)
            w = [vr(WR + 8*(m & 3) + 4*t, 4) for t in range(2)]
            ops = [(68, 'v[32:35]', xa), (72, 'v[32:35]', xb), (196, 'v[32:35]', w[0]), (200, 'v[32:35]', w[1]),
                   (52, w[0], xa), (60, w[0], xb), (56, w[1], xa), (64, w[1], xb)]
            return [f'{MF16} {vr(c,4)}, {p}, {q}, ' + ('0' if m == 0 else vr(c, 4)) for c, p, q in ops]
        e.wait_tag('c0'); self.bar('c0')
        if o.get('stlb'): e.lg.append(dict(dst=set(), tag=None, smem=True))
        self.mix([], kreads(0))
        if o.get('nl'): I(f'buffer_store_dwordx4 v[180:183], v31, {WS}, 0 offen sc1')
        self.xdma(2, 2, 'c2')
        for m in range(14):
            i = m >> 1
            if m & 1 and i < 6:
                e.wait_tag(f'xr{i}'); e.wait_tag('nw'); e.wait_tag(f'c{i+1}'); self.bar(f'c{i+1}')
            self.mix(kstep(m), kreads(m + 1) if m < 13 else [], 2)
            if not m & 1 and i + 3 < 7: self.xdma(i + 3, (i + 3) & 3, f'c{i+3}')
            if m == o.get('km', 6):
                for ch in o.get('kw', '-'):
                    if ch == 'g':
                        I(f'buffer_load_dword v10, v0, {WS}, s{sGB} offen sc1'); e.vm[-1]['dst'] = set()
                    elif ch != '-': self.warm(ch, 30, 9, 10)
            ch = (o.get('kt', '') + '-'*14)[m]
            if ch == 'g':
                I(f'buffer_load_dword v7, v0, {WS}, s{sGB} offen sc1'); e.vm[-1]['dst'] = set()
            elif ch == 's':
                for c2 in 'o12': self.warm(c2, 30, 9, 7)
            elif ch != '-': self.warm(ch, 30, 9, 7)
            if m == 8: self.phi_frags()
            if m == 10: self.phi_mask()
            if m == 11: self.sq_src(); self.own_fl()
            if m == 12:
                na = o.get('na', 16)
                I(f's_and_b32 s{t0}, s{sL}, 31'); I(f's_lshl_b32 s{t0}, s{t0}, 2'); I(f's_add_u32 s{t0}, s{t0}, s{sA}')
                I(f's_mul_i32 s{t1}, s{t0}, 25'); I(f'v_add_u32 v76, s{t1}, v1'); I('v_lshlrev_b32 v76, 7, v76')
                I(f's_mul_i32 s{t1}, s{t0}, {na}'); I(f'v_add_u32 v15, s{t1}, v1')
                I('v_lshrrev_b32 v77, 1, v15'); I('v_lshlrev_b32 v77, 9, v77'); I('v_and_b32 v15, 1, v15'); I('v_lshl_add_u32 v77, v15, 7, v77')
                I(f'v_mov_b32 v16, {BIG}')
                I('v_cmp_gt_u32 vcc, 25, v1'); I('v_cndmask_b32 v76, v16, v76, vcc')
                I(f'v_cmp_gt_u32 vcc, {na}, v1'); I('v_cndmask_b32 v77, v16, v77, vcc')
            if m == 13 and 'x' in o.get('kj', ''):
                t2 = sT[2]
                I(f's_lshl_b32 s{t0}, s{sH}, 16'); I(f's_lshl_b32 s{t1}, s{sRB}, 8'); I(f's_add_u32 s{t0}, s{t0}, s{t1}')
                I(f's_lshl_b32 s{t1}, s{sA}, 15'); I(f's_add_u32 s{t0}, s{t0}, s{t1}'); I(f's_add_u32 s{t0}, s{t0}, {WS_KVP}')
                I(f's_lshl_b32 s{t1}, s{sH}, 12'); I(f's_lshl_b32 s{t2}, s{sA}, 11'); I(f's_add_u32 s{t1}, s{t1}, s{t2}'); I(f's_add_u32 s{t1}, s{t1}, {WS_KVR - 4096}')
                I(f's_cmp_lt_u32 s{sA}, 2'); I(f's_cselect_b32 s{t0}, s{t0}, s{t1}'); I(f's_cselect_b32 s{t1}, 12, 8')
                I('v_lshrrev_b32 v78, 1, v2'); I(f'v_lshlrev_b32 v78, s{t1}, v78'); I('v_and_b32 v15, 1, v2')
                I('v_lshl_add_u32 v78, v15, 7, v78'); I(f'v_add_u32 v78, s{t0}, v78')
        assert o.get('km', 6) >= 6
        self.stamp(2)
        self.fwr(16)
        I('v_mov_b32 v44, v76'); I('v_mov_b32 v45, v77')
        I(f's_setprio {o.get("aprio", 0)}')
        BXS = [224, 216]
        for n in range(2):
            I(f'v_mul_f32 v{228+2*n}, v{68+4*n}, v29')
        la = [self.capture(lambda n=n: self.split_b(228+2*n, BXS[n], 229+2*n)) for n in range(2)]
        la += [self.capture(lambda n=n: self.split_a(196+4*n, AX+4*n, 197+4*n)) for n in range(2)]
        for r in zip(*la):
            for t in r: I(t)
        srd_ = 'ds_read_b64 v[48:49], v28 offset:8'
        for n in range(2):
            for t in range(2):
                acc = vr(52 + 8*n + 4*t, 4)
                I(f'{MF16} {acc}, {vr(AX+4*t,4)}, {vr(BXS[n],4)}, {acc}')
        KC = [204, 220]
        for n in range(2):
            self.cvt(KC[n], 52 + 8*n, 8)
            for t in range(2): I(f'{MF16} {vr(52+8*n+4*t,4)}, {vr(36+4*t,4)}, {vr(KC[n],4)}, 0')
        I(srd_)
        sm = [self.capture(lambda n=n: (self.softmax2s(52 + 8*n, 132 + 8*n, (228, 172)[n], 22, 48 + n),
                  [self.I(f'ds_write_b64 v{(23,46)[n]}, {vr(132+8*n+2*t,2)} offset:{t*32}') for t in range(4)])) for n in range(2)]
        pk = [t for r in zip(*sm) for t in r]
        first = min(n for n, t in enumerate(pk) if t.endswith('v48'))
        hl = f'buffer_load_dword v14, v8, {WS}, 0 offen sc1'
        def gt():
            I(f'buffer_load_dword v12, v0, {WS}, s{sGB} offen sc1'); e.vm[-1]['dst'] = set()
        dl = [('wo', RA, m) for m in range(7)] + [('w1', RB, m) for m in W1SAFE]
        def dma(n):
            for _ in range(n):
                if dl: nm, rg, m = dl.pop(0); self.sq_dma(nm, rg, m, nm)
        def job(ch):
            if ch == 'h': I(hl)
            elif ch == 'g': gt()
            elif ch in 'OIS': self.warm('o12'['OIS'.index(ch)], 44, 45, 12)
            elif ch == 'A': self.warm('3', 44, 45, 12)
            elif ch in 'o1234': self.warm(ch, 30, 9, 12)
            elif ch == 'x':
                I(f'buffer_load_dword v12, v78, {WS}, 0 offen sc1'); e.vm[-1]['dst'] = set()
            elif ch == 'f': I(self.frd)
            elif ch == 'c': self.fchk(1)
            elif ch == 'd': dma(1)
        for ch in o.get('k2', ''): job(ch)
        jobs = [(lambda ch=ch: job(ch)) for ch in o.get('kj', 'hg')]
        assert 'h' in o.get('kj', 'h')
        for n, t in enumerate(pk):
            if n == first:
                self.lpoll([srd_], lambda: I('v_cmp_eq_u32 vcc, 0, v49'), 'sc')
                self.stamp('k1')
            if n >= first + o.get('q0', 0) and (n - first) % o.get('qd', 8) == 0 and jobs: jobs.pop(0)()
            I(t)
        self.stamp('k2')
        self.fwr(32)
        I(self.frd)
        for f in jobs: f()
        self.fchk(3, 32)
        I(f's_setprio {o.get("kvprio", 3)}')
        self.stamp(3)
        KB, KA = 132, 148
        for ks in range(4):
            a, b = (24, 25) if ks < 2 else (26, 27)
            st = 3584 if ks < 2 else 14336
            for ee in range(2): I(f'ds_read_b64_tr_b16 {vr(KB+4*ks+2*ee,2)}, v{b} offset:{((2*ks+ee)&3)*st}')
            for t in range(2):
                for ee in range(2): I(f'ds_read_b64_tr_b16 {vr(KA+16*t+4*ks+2*ee,2)}, v{a} offset:{((2*ks+ee)&3)*st + 32*t}')
            if ks:
                for t in range(2): I(f'{MF16} {vr(52+4*t,4)}, {vr(KA+16*t+4*ks-4,4)}, {vr(KB+4*ks-4,4)}, ' + ('0' if ks == 1 else vr(52+4*t, 4)))
        for t in range(2): I(f'{MF16} {vr(52+4*t,4)}, {vr(KA+16*t+12,4)}, {vr(KB+12,4)}, {vr(52+4*t,4)}')
        self.fwr(48)
        for p in range(4): I(f's_mov_b32 s{sT[8+p]}, {p*16384}')
        self.cvt(60, 52, 8)
        I(f'buffer_store_dwordx4 v[60:63], v31, {WS}, 0 offen sc1')
        self.stamp(4)
        I(self.frd)
        def chk():
            I('v_and_b32 v16, -16, v14')
            I(f'v_cmp_ne_u32 vcc, s{sTAG}, v16')
        self.poll2([hl], chk, 'hello')
        I(f'v_cmp_ne_u32 vcc, s{sMODE}, v14')
        I(f's_and_b32 s{sMODE}, vcc_lo, 0xffff')
        if self.force_slow: I(f's_mov_b32 s{sMODE}, 1')
        dl[:] = [x for x in dl if x[0] == 'wo'] + [('wo', RA, m) for m in range(7, 14)] + [x for x in dl if x[0] == 'w1'] + [('w1', RB, m) for m in W1REST]
        self.rest = []
        G, AC = self.G, self.GAC
        sk, jn = e.newlabel('Lns1'), e.newlabel('Lkj')
        I(f's_cmp_lg_u32 s{sW}, 0'); I(f's_cbranch_scc1 {sk}')
        sn = e.snap()
        tok = ['v_add_u32 v5, 1, v5', 'ds_write_b32 v17, v5 offset:16']
        I('v_mov_b32 v5, 0')
        loads = [f'buffer_load_dwordx4 {vr(G+4*p,4)}, v50, {WS}, s{sT[8+p]} offen sc1' for p in range(4)] + tok
        def chk3():
            for p in range(4):
                I(f'{MF16} {vr(AC,4)}, {vr(self.SEL,4)}, {vr(G+4*p,4)}, ' + ('0' if p == 0 else vr(AC, 4)))
            I(f'v_cmp_u_f32 vcc, v{AC}, v{AC}')
        for t in loads: I(t)
        self.fchk(3, 48)
        I(f'v_mov_b32 v7, s{sMODE}'); I(f'v_mov_b32 v16, {L_MODE}'); I('ds_write_b32 v16, v7')
        I(f's_lshl_b32 s{t0}, s{sH}, 12'); I(f's_add_u32 s{t0}, s{t0}, {WS_KVR}')
        I(f'v_add_u32 v6, {L_KV4}, v4')
        I(f's_mov_b32 s{sT[4]}, s{t0}')
        g6.main_pre(self)
        self.common_addr()
        self.poll2(loads, chk3, 's1')
        self.cvt(152, AC, 4)
        I(f'buffer_store_dwordx2 v[152:153], v51, {WS}, 0 offen sc1')
        self.stamp(7)
        loads = [f'buffer_load_dwordx4 {vr(G+4*p,4)}, v4, {WS}, s{sT[4]} offen offset:{p*1024} sc1' for p in range(4)] + tok
        def chk4():
            I(f'v_max3_u32 v{AC}, v{G}, v{G+2}, v{G+4}'); I(f'v_max3_u32 v{AC+1}, v{G+6}, v{G+8}, v{G+10}')
            I(f'v_max3_u32 v{AC}, v{AC}, v{G+12}, v{G+14}'); I(f'v_max_u32 v{AC}, v{AC}, v{AC+1}')
            I(f'v_cmp_eq_u32 vcc, -1, v{AC}')
        self.poll3(loads, chk4, 's2')
        for p in range(4): I(f'ds_write_b128 v6, {vr(G+4*p,4)} offset:{p*1024}')
        self.fwr(60)
        self.stamp('s2')
        I('s_setprio 0')
        I(f's_branch {jn}')
        e.restore(sn)
        e.label(sk)
        I('s_setprio 0')
        assert len(dl) == 28
        I(f's_and_b32 s{t0}, s{sA}, 1'); I(f's_lshl_b32 s{t0}, s{t0}, 6'); I(f'v_xor_b32 v10, s{t0}, v11')
        I(f's_mul_i32 s{t0}, s{sA}, 7168'); I(f'v_subrev_u32 v10, s{t0}, v10')
        self.fchk(3, 48)
        I(f'v_mov_b32 v5, {L_FL}')
        def gate(n):
            top, dn = e.newlabel('Lgt'), e.newlabel('Lgd')
            e.wait_lg0()
            e.label(top)
            I('ds_read_b32 v15, v5 offset:16')
            I(f'v_cmp_gt_u32 vcc, {n}, v15')
            I(f's_cbranch_vccz {dn}')
            I(f's_sub_u32 s{sSPIN}, s{sSPIN}, 1')
            I(f's_cbranch_scc0 {top}')
            I(f's_mov_b32 s{sSPIN}, 0')
            e.label(dn)
        ins = []
        def own(nm, rg, m): self.sq_dma(nm, rg, m, nm)
        def ext(nm, rg, m):
            I(f's_add_u32 s{t0}, s{sA}, {m - 2}'); I(f's_min_u32 s{t0}, s{t0}, 13')
            I(f's_mul_i32 s{self.sCw}, s{t0}, {32*896}'); I(f's_lshl_b32 s{t0}, s{t0}, 12'); I(f's_add_u32 m0, s{t0}, {rg}')
            I(f'buffer_load_dwordx4 v10, {srd(nm)}, s{self.sCw} offen lds', tag=nm)
        def ext3(m):
            I(f's_add_u32 s{t0}, s{sA}, {m - 2}')
            I(f's_mul_i32 s{self.sCw}, s{t0}, {16*3584}'); I(f's_lshl_b32 s{t0}, s{t0}, 12'); I(f's_add_u32 m0, s{t0}, {RC}')
            I(f'buffer_load_dwordx4 v7, {srd("w3")}, s{self.sCw} offen lds', tag='w3')
        for nm, rg in (('wo', RA), ('w1', RB)):
            for m in range(14):
                ins.append(lambda nm=nm, rg=rg, m=m: own(nm, rg, m))
                if m % 3 == 1: ins.append(lambda nm=nm, rg=rg, m=m: ext(nm, rg, m))
        if o.get('w3k', 1):
            for m in range(9):
                ins.append(lambda m=m: g6.w3_dma(self, 6, self.sMW, m, 0, RC + m*4096, 'w3'))
                if m % 3 == 1: ins.append(lambda m=m: ext3(m))
        bs = [int(c, 36) for c in o.get('bs', 'a9a9c')]
        n = 0; wol = False
        for b, cnt in enumerate(bs):
            if n >= 19 and not wol and b >= o.get('wlb', 3):
                e.wait_tag('wo'); self.fwr(56); wol = True
            if n <= 38 < n + cnt:
                I(self.frd); self.fchk(6)
            if o.get('gate', 1): gate(b + 1)
            for f in ins[n:n + cnt]: f()
            n += cnt
            self.stamp(f'd{b}')
            if b == 0:
                g6.main_pre(self)
                self.common_addr()
                g6.w3_src(self, 6)
                I(f's_lshr_b32 s{t0}, s{sA}, 1'); I(f's_lshl_b32 s{t0}, s{t0}, 7'); I(f's_and_b32 s{t1}, s{sA}, 1'); I(f's_mul_i32 s{t1}, s{t1}, {8*3584}')
                I(f's_add_u32 s{t0}, s{t0}, s{t1}'); I(f'v_subrev_u32 v7, s{t0}, v6')
        assert n >= len(ins)
        if not wol: e.wait_tag('wo'); self.fwr(56)
        for ch in o.get('k5', ''): job(ch)
        self.stamp(5)
        e.label(jn)
        e.hist = []; e.nop(2)
        e.lg.append(dict(dst=set(), tag=None, smem=True))
    def k_landed(self):
        self.I(self.frd)
        self.fchk(0, 56)
        self.stamp('b4')
    def k_landed2(self):
        self.own_fl()
        self.e.wait_vm0()
        self.fwr(60)

    def p1_B(self, g6):
        e, I, o = self.e, self.I, self.o
        X, AX = self.X, self.AX
        X2, WR, CF, CSA = 132, 228, 196, 220
        e.vm = self.vmB
        self.init_B()
        if o.get('xb0', 1) < 2: self.xdma(1, 1, 'c1')
        self.stamp('su')
        rpi = o.get('rpi', 0)
        if rpi < 0: self.repack(); self.stamp('rp')
        e.wait_lg0()
        vs = [int(ch) for ch in o.get('vs', '4444555')]
        XT = [X2, X]; RS = [188, 68]; XX = [192, 72]
        for i in range(7):
            e.wait_tag(f'c{i}'); self.bar(f'c{i}')
            for m in (2*i, 2*i + 1):
                for n in range(2): I(*self.xrd(XT[n] + 4*m, m, n))
            dm = []
            if i + 2 < 7: dm += [lambda i=i: self.wdma(i + 2, 0, f'c{i+2}'), lambda i=i: self.xdma(i + 2, i + 2, f'c{i+2}')]
            dm += [lambda c=c: self.pdma(c, 0) for c in range(7) if vs[c] == i]
            mf = []
            for m in (2*i, 2*i + 1):
                for n in range(2):
                    x = vr(XT[n] + 4*m, 4)
                    mf.append(f'{MF16} {vr(XX[n],4)}, {x}, {x}, ' + ('0' if m == 0 else vr(XX[n], 4)))
                    mf.append(f'{MF16} {vr(RS[n],4)}, v[32:35], {x}, ' + ('0' if m == 0 else vr(RS[n], 4)))
            self.mix(mf, dm, o.get('dlead', 2))
            if i == rpi: self.repack(); self.stamp('rp')
            if i == 1: self.v_addr1()
            if i == 2: self.vSQ = 51; self.sq_src()
            if i == 3:
                self.phi_frags()
                for t in self.capture(self.hello): I(t.replace(f's_cmp_eq_u32 s{sW}, 0', f's_cmp_eq_u32 s{sW}, 4'))
            if i == 4: self.phi_mask()
            if i == 5: self.v_addr2()
        self.stamp(2)
        BXS = [216, 224]
        def stats():
            I = self.I
            for n in range(2):
                for r in range(4): I(f'v_mul_f32 v{XX[n]+r}, v{XX[n]+r}, v{252+r}')
            for n in range(2):
                x = XX[n]
                I(f'v_add_f32 v{x}, v{x}, v{x+1}'); I(f'v_add_f32 v{x+2}, v{x+2}, v{x+3}')
                I(f'v_mul_f32 v{x+1}, s{sC448}, v{RS[n]}')
            for n in range(2): I(f'v_add_f32 v{XX[n]}, v{XX[n]}, v{XX[n]+2}')
            for n in range(2): I(f'v_mul_f32 v{XX[n]+1}, v{XX[n]+1}, v{XX[n]+1}')
            self.allred2(XX[0], XX[1], XX[0]+2, 'v_add_f32')
            for n in range(2): I(f'v_fma_f32 v{XX[n]}, v{XX[n]}, s{sC448}, -v{XX[n]+1}')
            for n in range(2): I(f'v_add_f32 v{XX[n]}, 0x3727c5ac, v{XX[n]}')
            for n in range(2): I(f'v_rsq_f32 v{RS[n]+2}, v{XX[n]}')
            for n in range(2): I(f'v_mul_f32 v{204+n}, s{sL2E}, v{RS[n]+2}')
            I('ds_write_b64 v28, v[204:205] offset:8')
            I('v_mov_b32 v30, v205')
            for n in range(2):
                I(f'v_mul_f32 v{XX[n]}, v{RS[n]}, v29')
                self.split_b(XX[n], BXS[n], XX[n]+1)
            I('v_cmp_eq_u32 vcc, 0, v1'); I('v_cndmask_b32 v21, v20, v13, vcc')
            I(f's_lshl_b32 s{sT[0]}, s{sA}, 7'); I(f's_add_u32 s{sT[0]}, s{sT[0]}, {L_PART}')
            I('v_lshlrev_b32 v12, 3, v2'); I(f'v_add_u32 v12, s{sT[0]}, v12')
        frd, fwr = self.frd, self.fwr
        def fchk(n, extra=()): self.fchk(n, 0, extra)
        CB = [196, 200, 192, 72]
        def csr(c, mat): return [f'ds_read_b64_tr_b16 {vr(CB[c&3]+2*n,2)}, v{(7,31)[mat]} offset:{c*(4096,1024)[mat]+n*256}' for n in range(2)]
        csm = lambda c: f'{MF16} {vr(CSA,4)}, v[32:35], {vr(CB[c&3],4)}, ' + ('0' if c == 0 else vr(CSA, 4))
        axr = lambda mat: [f'ds_read_b64 {vr(AX+4*t,2)}, v8 offset:{mat*512 + t*128}' for t in range(2)]
        def wr(m, mat):
            d = WR + 8*(m % 3)
            if mat == 0: return self.wrd(d, m, 1)
            return [f'ds_read_b64_tr_b16 {vr(d+2*n,2)}, v{10+(n>>1)} offset:{(m&1)*16384 + (m>>1)*1024 + (n&1)*256}' for n in range(4)]
        st = self.capture(stats)
        TD = 44
        if o.get('sprio', 1): I('s_setprio 2')
        nt = o.get('stt', 14)
        for t in st[:nt]: I(t)
        e.wait_tag('wv')
        for t in self.tag_reads(0, TD): I(t)
        for t in st[nt:34]: I(t)
        st = st[34:]
        I(f's_setprio {o.get("vprio", 2)}')
        self.tag_chk(0, TD)
        fwr(1); I(frd)
        for t in st: I(t)
        fchk(1)
        self.stamp('v1')
        for t in wr(0, 0) + wr(1, 0) + csr(0, 0): I(t)
        jobs = [(lambda i=i: self.pdma(i, 1)) for i in range(7)] + [(lambda ch=ch: self.warm(ch, 51, 0, 9)) for ch in o.get('mw', '-') if ch != '-']
        late = []
        if o.get('nq0', 4) < 0: late, jobs = jobs, []
        for _ in range(o.get('nq0', 4)): jobs.pop(0)()
        def gemm(mat, fl, ACC, more):
            extra = {m: [] for m in range(14)}; xm = {m: [] for m in range(14)}
            for c in range(1, 7): extra[c - 1] += csr(c, mat)
            for c in range(7): xm[c + 1].append(csm(c))
            extra[10] += self.capture(lambda: self.split_a(CSA, 206, CF)) + [f'ds_write_b64 v12, v[206:207] offset:{mat*512}']
            for m, f in more: extra[m].append(f)
            extra[10].append(lambda: fwr(fl))
            extra[12] += [frd] + axr(mat)
            for m in range(14):
                mf = []
                for t in range(2):
                    for n in range(2):
                        c = vr(ACC + 8*n + 4*t, 4)
                        mf.append(f'{MF16} {c}, {vr(WR+8*(m%3)+4*t,4)}, {vr(XT[n]+4*m,4)}, ' + ('0' if m == 0 else c))
                ot = (wr(m + 2, mat) if m + 2 < 14 else []) + extra[m]
                self.mix(mf + xm[m], ot)
                self.stamp(f'{"vq"[mat]}g{m}')
            fchk(fl, axr(mat))
            for n in range(2):
                for t in range(2):
                    acc = vr(ACC + 8*n + 4*t, 4)
                    I(f'{MF16} {acc}, {vr(AX+4*t,4)}, {vr(BXS[n],4)}, {acc}')
        more = [(min(13, o.get('jq', 0) + n // o.get('jr', 2)), f) for n, f in enumerate(jobs)]
        def qw():
            e.wait_tag('wq')
            for t in self.tag_reads(1, TD): I(t)
        wqm = o.get('wqm', 0)
        if wqm: more += [(9, qw), (10, lambda: self.tag_chk(1, TD))]
        gemm(0, 2, 52, more)
        self.stamp('sb')
        if wqm:
            for t in wr(0, 1) + wr(1, 1) + csr(0, 1): I(t)
        for n in range(2):
            c = 52 + 8*n
            for i in range(8): I(f'v_mul_f32 v{c+i}, v{c+i}, v{RS[n]+2}')
            I(f'v_cndmask_b32 v{c}, v{c}, 1.0, s[{sM0}:{sM0+1}]')
            I(f'v_cndmask_b32 v{c+4}, v{c+4}, 1.0, s[{sM1}:{sM1+1}]')
            self.cvt(188 + 4*n if n == 0 else 68, c, 8)
            d = 188 if n == 0 else 68
            I(f'ds_write_b64 v{(23,46)[n]}, {vr(d,2)} offset:128')
            I(f'ds_write_b64 v{(23,46)[n]}, {vr(d+2,2)} offset:160')
        fwr(3)
        self.stamp('sv')
        I(f's_setprio {o.get("qprio", 0)}')
        dl = self.rest
        nsafe = len([x for x in dl if x[0] == 'wo' or x[2] in W1SAFE])
        def dma():
            nm, rg, m = dl.pop(0); self.sq_dma(nm, rg, m, nm)
        assert not wqm
        for f in late: f()
        qw()
        for _ in range(o.get('qa', 0)):
            assert dl[0][2] < 7 or dl[0][0] == 'w1'
            dma(); nsafe -= 1
        self.tag_chk(1, TD); fwr(4); I(frd); fchk(4)
        self.stamp('q4')
        for _ in range(o.get('qb', 0)): dma(); nsafe -= 1
        for t in wr(0, 1) + wr(1, 1) + csr(0, 1): I(t)
        more = [(11, lambda: g6.w3_src(self, 48))]
        for m, ch in enumerate(o.get('qn', '0')):
            for _ in range(int(ch)):
                if nsafe: more.append((m, dma)); nsafe -= 1
        gemm(1, 5, 52, more)
        fwr(6)
        self.stamp('sq')
        KC = [192, 72]
        for n in range(2):
            self.cvt(KC[n], 52 + 8*n, 8)
            for t in range(2): I(f'{MF16} {vr(52+8*n+4*t,4)}, {vr(36+4*t,4)}, {vr(KC[n],4)}, 0')
        PH = [132, 140]
        smf = self.softmax2 if o.get('pkq', 1) else self.softmax2s
        sm = [self.capture(lambda n=n: smf(52 + 8*n, PH[n], (148, 172)[n], 22, (204, 30)[n])) for n in range(2)]
        assert o['w2a'] == 9
        w3l = [(lambda m=m: g6.w3_dma(self, 48, self.sMW, m, 0, RC + m*4096, 'w3')) for m in range(0 if o.get('w3k', 1) else 9)]
        n3 = o.get('w3p', 9)
        jobs = [lambda: I(frd), lambda: self.fchk(6, 48)] + w3l[:n3]
        self.w3l = w3l[n3:]
        pk = [t for r in zip(*sm) for t in r]
        for n, t in enumerate(pk):
            if n >= o.get('w0', len(pk) - 20) and n % o.get('wd', 8) == 0 and jobs: jobs.pop(0)()
            I(t)
        for f in jobs: f()
        self.stamp(6)
        KF = 76
        I(f'v_mov_b32 v0, {L_FL}')
        rds = ['ds_read_b32 v15, v0 offset:4', f'ds_read_b32 v9, v0 offset:{L_MODE - L_FL}']
        for a in range(2):
            rds.append(f'ds_read_b128 {vr(KF+16+4*a,4)}, v25 offset:{a*2048}')
            for dt in range(2): rds.append(f'ds_read_b128 {vr(KF+4*(2*a+dt),4)}, v24 offset:{a*2048 + dt*1024}')
        top = e.newlabel('Lkvw'); dn = e.newlabel('Lkvd')
        e.wait_lg0()
        e.label(top)
        I(rds[0])
        I('v_cmp_gt_u32 vcc, 60, v15')
        I(f's_cbranch_vccz {dn}')
        I(f's_sub_u32 s{sSPIN}, s{sSPIN}, 1')
        I(f's_cbranch_scc0 {top}')
        I(f's_mov_b32 s{sSPIN}, 0')
        e.label(dn)
        I(f's_setprio {o.get("oprio", 2)}')
        for t in rds[1:]: I(t)
        self.stamp('s2')
        I(f'v_readfirstlane_b32 s{sMODE}, v9')
        ACO = [100, 112]
        for a in range(2):
            for n in range(2):
                ac = ACO[n]
                I(f'{MF16} {vr(ac+8,4)}, {vr(KF+16+4*a,4)}, {vr(PH[n]+4*a,4)}, ' + ('0' if a == 0 else vr(ac+8, 4)))
            for dt in range(2):
                for n in range(2):
                    ac = ACO[n]
                    I(f'{MF16} {vr(ac+4*dt,4)}, {vr(KF+4*(2*a+dt),4)}, {vr(PH[n]+4*a,4)}, ' + ('0' if a == 0 else vr(ac+4*dt, 4)))
        for n in range(2): I(f'v_add_f32 v{ACO[n]+8}, 0x358637bd, v{ACO[n]+8}')
        for n in range(2): I(f'v_rcp_f32 v{ACO[n]+8}, v{ACO[n]+8}')
        for n in range(2):
            ac = ACO[n]; pk = 124 + 4*n
            for i in range(0, 8, 2): I(f'v_pk_mul_f32 {vr(ac+i,2)}, {vr(ac+i,2)}, {vr(ac+8,2)} op_sel_hi:[1,0]')
            self.cvt(pk, ac, 8)
        for n in range(2):
            pk = 124 + 4*n
            I(f'v_permlane16_swap_b32 v{pk}, v{pk+2}'); I(f'v_permlane16_swap_b32 v{pk+1}, v{pk+3}')
        self.stamp(8)
        ost = [f'buffer_store_dwordx2 {vr(124+4*n+2*hh,2)}, v{18+hh}, {WS}, s{(sX0, sX1)[n]} offen' for n in range(2) for hh in range(2)]
        if 'o' in o.get('fu', ''):
            for t in ost: I(t + ' sc1', tag='os')
        else: self.stores(ost, tag='os')
        I('v_mov_b32 v16, 64'); I('ds_write_b32 v17, v16 offset:16')
        I('s_setprio 0')
        for f in self.w3l: f()
        I('v_mov_b32 v11, v51'); self.vSQ = 11
        I('v_mov_b32 v12, v48')
    def v_landed(self):
        e = self.e
        self.own_fl()
        e.wait_vm0()
        self.fwr(8); self.I(self.frd)
        self.fchk(8, 60)
        self.stamp('b4')

    def o_flag(self, tag=None):
        if tag: self.e.wait_tag(tag)
        else: self.e.wait_vm0()
        self.stores([f'buffer_store_dword v27, v14, {WS}, s{sX0} offen'])
        self.stamp(9)

if __name__ == '__main__':
    g5.main(K)
```

```python
from g5 import *
import g4
from g4 import GA, GB_, f32, pack_pairs, row_stats, stat_addrs, gelu_consts

vZ, vBIG, vL0, vSIG, vTAG, vB, vST = 13, 20, 21, 26, 27, 28, 29
SB = [5, 6, 7, 8]
BF = 76
AR = 148
NSLOT = 5
HR = 60
ACC = 44
CS1 = 228
TA = 132
WS_W01 = 0x1800000
vW = 30
vEPS = 23
BXT = 40
XA = 244
vTP, vHP, vHS, vTF, vOP = 250, 251, 252, 253, 254
RES = 240
W3P = 228
U0, U1 = RC + 28672, RA
PB = [(36 - 7*n)*TILE for n in range(4)]
L_F2 = 162304
STEP_REG = [RB, RB + 28672, RC, RB, RB + 28672, RC, RA + 16384, RB]

def main_pre(k):
    I = k.I
    t0, t1 = sT[0:2]
    I(f's_lshl_b32 s{t0}, s{sG}, 6'); I(f's_lshl_b32 s{t1}, s{sW}, 4'); I(f's_add_u32 s{t0}, s{t0}, s{t1}')
    I(f'v_add_u32 v15, s{t0}, v2'); I('v_mul_u32_u24 v15, 896, v15')
    I(f's_lshl_b32 s{t0}, s{sJ}, 7')
    I('v_lshl_add_u32 v15, v3, 3, v15')
    for t in range(4):
        I(f'buffer_load_dwordx2 {vr(52+2*t,2)}, v15, {srd("x")}, s{t0} offen offset:{t*32}')

def main_addr1(k):
    I, L = k.I, k.L
    t0, t1 = sT[0:2]
    I('v_bfe_u32 v15, v1, 2, 2')
    I('v_lshl_add_u32 v16, v3, 3, v15'); I('v_lshlrev_b32 v16, 7, v16')
    I('v_and_b32 v17, 3, v1'); I('v_lshl_add_u32 v16, v17, 3, v16')
    I('v_lshrrev_b32 v15, 1, v15'); I('v_and_b32 v17, 1, v3'); I('v_lshl_add_u32 v15, v17, 1, v15')
    I(f'v_lshl_add_u32 v{SB[0]}, v15, 5, v16')
    for t in range(1, 4): I(f'v_xor_b32 v{SB[t]}, {t*32}, v{SB[0]}')
    I(f's_mul_i32 s{t0}, s{sW}, {TILE}'); I(f's_add_u32 s{t0}, s{t0}, s{sGB}')
    I(f'v_add_u32 v{vB}, s{t0}, v4')
    I(f's_lshl_b32 s{t0}, s{sW}, 6'); I(f's_add_u32 s{t0}, s{t0}, s{sGB}'); I(f's_add_u32 s{t0}, s{t0}, {L.F_O}')
    I(f'v_lshlrev_b32 v{vOP}, 2, v2'); I(f'v_add_u32 v{vOP}, s{t0}, v{vOP}')

def main_addr2(k):
    I, L = k.I, k.L
    t0, t1, t2, t3 = sT[0:4]
    I(f's_mul_i32 s{t0}, s{sW}, {TILE}'); I(f's_add_u32 s{t0}, s{t0}, s{sGB}')
    I(f's_lshl_b32 s{t1}, s{sJ}, 11'); I(f's_add_u32 s{t0}, s{t0}, s{t1}')
    I(f'v_lshlrev_b32 v31, 8, v{vSIG}'); I('v_lshl_add_u32 v31, v2, 4, v31')
    I(f'v_add_u32 v{vST}, s{t0}, v31')
    I(f's_lshl_b32 s{t0}, s{sW}, 3'); I(f's_add_u32 s{t0}, s{t0}, s{sJ}'); I(f's_lshl_b32 s{t0}, s{t0}, 8')
    I(f's_add_u32 s{t0}, s{t0}, s{sGB}'); I(f's_add_u32 s{t0}, s{t0}, {L.ST}')
    I(f'v_add_u32 v9, s{t0}, v4')
    I('v_cmp_eq_u32 vcc, 0, v3'); I(f'v_cndmask_b32 v9, v{vBIG}, v9, vcc')
    stat_addrs(k, 10, 11)
    I(f'v_add_u32 v{vW}, {RB}, v4'); I(f'v_mov_b32 v{vEPS}, 0x3727c5ac')
    I(f'v_lshlrev_b32 v12, 4, v3'); I(f'v_add_u32 v12, {L_CS1}, v12')
    I(f'v_mov_b32 v{BXT+2}, 0'); I(f'v_mov_b32 v{BXT+3}, 0')
    I(f's_add_u32 s{t0}, s{sGB}, {L.GS + L.T0 - TILE}')
    I(f's_cmp_eq_u32 s{sG}, 31'); I(f's_cselect_b32 s{t0}, {BIG}, s{t0}')
    I(f's_sub_u32 s{t1}, s{sGB}, {L.GS - L.T0 - 4*TILE}')
    I(f's_cmp_eq_u32 s{sG}, 0'); I(f's_cselect_b32 s{t1}, {BIG}, s{t1}')
    I(f's_cmp_eq_u32 s{sW}, 3'); I(f's_cselect_b32 s{t0}, s{t0}, s{t1}')
    I(f's_cselect_b32 s{t2}, 0xc000c000, 0')
    I(f's_cmp_eq_u32 s{sW}, 0'); I(f's_cselect_b32 s{t2}, 0x00030003, s{t2}'); I(f's_mov_b32 s{t3}, s{t2}')
    I(f's_lshl_b32 s{t1}, s{sJ}, 11'); I(f's_add_u32 s{t0}, s{t0}, s{t1}')
    hc = k.o.get('hc')
    if hc:
        I('v_and_b32 v15, 1, v2'); I(f'v_lshl_add_u32 v15, v{vSIG}, 1, v15'); I('v_lshlrev_b32 v15, 4, v15'); I(f'v_add_u32 v15, s{t0}, v15')
    else: I(f'v_add_u32 v15, s{t0}, v31')
    I(f'v_cndmask_b32 v{vHS}, v{vBIG}, v15, s[{t2}:{t3}]')
    if k.o.get('xbb') == 1: I(f'v_mov_b32 v{vHS}, v{vBIG}')
    I(f's_lshl_b32 s{t0}, s{sW}, 5'); I(f's_lshl_b32 s{t1}, s{sJ}, 2'); I(f's_add_u32 s{t0}, s{t0}, s{t1}')
    I(f's_add_u32 s{t0}, s{t0}, s{sGB}'); I(f's_add_u32 s{t0}, s{t0}, {L.F_T}')
    I(f'v_add_u32 v{vTF}, s{t0}, v{vL0}')
    I(f's_lshl_b32 s{t0}, s{sW}, 4'); I(f's_add_u32 s{t0}, s{t0}, 16')
    I(f'v_add_u32 v15, s{t0}, v2')
    I(f'v_lshlrev_b32 v16, 8, v3'); I(f'v_add_u32 v16, s{sGB}, v16')
    if hc: I('v_mul_i32_i24 v19, -14, v3')
    for i, d in enumerate((-1, 1, -2, 2)):
        I(f'v_add_u32 v17, {d}, v15')
        if k.o.get('xa') == 1: I('v_mov_b32 v18, 79'); I('v_med3_i32 v17, v17, 16, v18')
        I(f'v_lshrrev_b32 v{XA+i}, 4, v17'); I(f'v_mul_u32_u24 v{XA+i}, {TILE}, v{XA+i}')
        if hc:
            I('v_add_u32 v18, -16, v17'); I('v_cmp_lt_u32 vcc, 63, v18')
            I('v_and_b32 v18, 1, v17'); I('v_and_b32 v17, 15, v17'); I('v_add_u32 v18, v18, v19'); I('v_cndmask_b32 v17, v17, v18, vcc')
        else: I('v_and_b32 v17, 15, v17')
        I(f'v_lshl_add_u32 v{XA+i}, v17, 4, v{XA+i}')
        I(f'v_add_u32 v{XA+i}, v{XA+i}, v16')
    I('v_cmp_gt_u32 vcc, 2, v3')
    I(f'v_cndmask_b32 v{XA+4}, v{XA+1}, v{XA}, vcc'); I(f'v_cndmask_b32 v{XA+5}, v{XA+3}, v{XA+2}, vcc')
    if 't' in k.o.get('sn', ''): return
    assert not hc
    I('v_lshrrev_b32 v15, 3, v1'); I(f'v_add_u32 v15, s{sW}, v15'); I('v_add_u32 v15, -1, v15')
    I(f's_add_u32 s{t0}, s{sW}, 1'); I(f's_min_u32 s{t0}, s{t0}, 3')
    I(f'v_med3_i32 v15, v15, 0, s{t0}')
    I('v_and_b32 v16, 7, v1'); I('v_min_u32 v16, 6, v16'); I('v_lshlrev_b32 v16, 2, v16')
    I('v_lshl_add_u32 v15, v15, 5, v16'); I(f'v_add_u32 v{vTP}, {L.F_T}, v15')
    I(f's_mov_b32 s{t0}, {BIG}')
    I(f's_cmp_eq_u32 s{sW}, 0'); I(f's_cselect_b32 s{t0}, {L.T0-TILE+236}, s{t0}')
    I(f's_cmp_eq_u32 s{sW}, 3'); I(f's_cselect_b32 s{t0}, {L.T0+4*TILE+12}, s{t0}')
    I('v_lshlrev_b32 v17, 8, v1'); I(f'v_add_u32 v17, s{t0}, v17')
    I('v_cmp_gt_u32 vcc, 56, v1'); I(f'v_cndmask_b32 v{vHP}, v{vBIG}, v17, vcc')


def t_prefill(k):
    I, L = k.I, k.L
    t0, t1, t2 = sT[0:3]
    for i in range(4): I(f'v_mov_b32 v{40+i}, -1')
    I(f's_lshl_b32 s{t1}, s{sJ}, 11'); I(f's_add_u32 s{t1}, s{t1}, s{sGB}'); I(f's_add_u32 s{t1}, s{t1}, {L.T0}')
    I(f's_cmp_eq_u32 s{sJ}, 7'); I(f's_cselect_b32 s{t1}, {BIG}, s{t1}')
    I(f's_mul_i32 s{t0}, s{sW}, {TILE}'); I(f's_add_u32 s{t0}, s{t0}, s{t1}')
    I(f's_and_b32 s{t2}, s{sW}, 1'); I(f's_lshl_b32 s{t2}, s{t2}, 10'); I(f's_add_u32 s{t1}, s{t1}, s{t2}')
    I(f'v_add_u32 v15, s{t0}, v4'); I(f'v_add_u32 v16, s{t1}, v4')
    k.stores([f'buffer_store_dwordx4 v[40:43], v15, {WS}, 0 offen', f'buffer_store_dwordx4 v[40:43], v15, {WS}, 0 offen offset:1024',
              f'buffer_store_dwordx4 v[40:43], v16, {WS}, 0 offen'])

def spin_tail(k, top, done):
    I = k.I
    I(f's_cbranch_vccz {done}')
    I(f's_sub_u32 s{sSPIN}, s{sSPIN}, 1')
    I(f's_cbranch_scc0 {top}')
    I(f's_mov_b32 s{sSPIN}, 0')
    I(f's_branch {done}')
def ool(k, fn):
    e = k.e
    sn = e.snap()
    save = e.out; e.out = []
    fn()
    e.ool += e.out; e.out = save
    e.restore(sn)

def a_read(k, m, t):
    b = AR + 16*(m % NSLOT) + 4*t
    k.I(f'ds_read_b64_tr_b16 {vr(b,2)}, v{SB[t]} offset:{m*4096}')
    k.I(f'ds_read_b64_tr_b16 {vr(b+2,2)}, v{SB[t]} offset:{m*4096+512}')
def a_read2(k, m, t):
    k.I(f'ds_read_b128 {vr(AR + 16*(m % NSLOT) + 4*t,4)}, v{vW} offset:{m*4096 + t*1024}')
def a_preload(k, rd=a_read):
    for m in range(NSLOT):
        for t in range(4): rd(k, m, t)
def b_soff(k, region):
    for i in range(4): k.I(f's_mov_b32 s{sT[4+i]}, {region + i*4096}')
def b_loads(k, addr=None, fl='sc1', m0=0):
    for m in range(m0, 14):
        va = vB if addr is None else addr[m]
        k.I(f'buffer_load_dwordx4 {vr(BF+4*m,4)}, v{va}, {WS}, s{sT[4+(m>>2)]} offen offset:{(m&3)*1024} {fl}')
def gemm(k, acc, vf=(), pre=0, chk=None, rd=a_read, hooks={}):
    I, e = k.I, k.e
    vf = list(vf)
    for _ in range(pre):
        if vf: I(vf.pop(0))
    per = (len(vf) + 47) // 48
    assert not (chk and vf)
    def check(m):
        done, retry = e.newlabel('Lgd'), e.newlabel('Lgr')
        I(f'v_cmp_eq_u32 vcc, -1, v{BF+4*m}')
        I(f's_cbranch_vccnz {retry}')
        e.label(done)
        def stub():
            e.label(retry)
            k.stamp('gr'); k.stamp(f'gr{m}')
            e.wait_all()
            chk(m)
            I(f'v_cmp_eq_u32 vcc, -1, v{BF+4*m}')
            spin_tail(k, retry, done)
        ool(k, stub)
    if chk: check(0)
    for m in range(14):
        for t in range(4):
            b = AR + 16*(m % NSLOT) + 4*t
            I(f'{MF16} {vr(acc+4*t,4)}, {vr(b,4)}, {vr(BF+4*m,4)}, {vr(acc+4*t,4)}')
            if m + NSLOT < 14: rd(k, m + NSLOT, t)
            for _ in range(per):
                if vf: I(vf.pop(0))
        if chk and m < 13: check(m + 1)
        if chk: k.stamp(f'g{m}')
        if m in hooks: hooks[m]()
def poll_stats(k, tagbits, name, D, va, vb):
    I = k.I
    I(f's_or_b32 s{sN}, s{sTAG}, {tagbits}')
    def chk():
        I(f'v_cmp_ne_u32 vcc, s{sN}, v{D+2}')
        I(f'v_cmp_ne_u32 s[{sT[2]}:{sT[3]}], s{sN}, v{D+6}')
        I(f's_or_b64 vcc, vcc, s[{sT[2]}:{sT[3]}]')
    k.poll3([f'buffer_load_dwordx3 {vr(D,3)}, v{va}, {WS}, 0 offen sc1',
             f'buffer_load_dwordx3 {vr(D+4,3)}, v{vb}, {WS}, 0 offen sc1'], chk, name)

def tr2(k, dst, vb, off, step, tag=None):
    k.I(f'ds_read_b64_tr_b16 {vr(dst,2)}, v{vb} offset:{off}', tag=tag)
    k.I(f'ds_read_b64_tr_b16 {vr(dst+2,2)}, v{vb} offset:{off+step}', tag=tag)

def w3_src(k, V):
    I = k.I
    t0, t1 = sT[0], sT[1]
    I(f's_lshl_b32 s{t0}, s{sJ}, 9'); I(f's_lshr_b32 s{t1}, s{sA}, 1'); I(f's_lshl_b32 s{t1}, s{t1}, 7'); I(f's_add_u32 s{t0}, s{t0}, s{t1}')
    I(f's_and_b32 s{t1}, s{sA}, 1'); I(f's_mul_i32 s{t1}, s{t1}, {8*3584}'); I(f's_add_u32 s{t0}, s{t0}, s{t1}')
    I(f's_cmp_eq_u32 s{sJ}, 7'); I(f's_cselect_b32 s{t0}, {BIG}, s{t0}')
    I(f'v_lshrrev_b32 v15, 3, v1'); I(f'v_mul_u32_u24 v{V}, 3584, v15')
    I('v_bfe_u32 v15, v1, 4, 1'); I('v_lshlrev_b32 v15, 2, v15'); I('v_and_b32 v16, 7, v1'); I('v_xor_b32 v15, v15, v16')
    I(f'v_lshl_add_u32 v{V}, v15, 4, v{V}'); I(f'v_add_u32 v{V}, s{t0}, v{V}')
def w3_rd_base(k, V, base):
    I = k.I
    t0, t1 = sT[0], sT[1]
    I('v_lshrrev_b32 v15, 5, v1'); I('v_lshlrev_b32 v15, 3, v15')
    I('v_bfe_u32 v17, v1, 2, 2'); I('v_add_u32 v15, v15, v17')
    I('v_and_b32 v16, 3, v1')
    I(f'v_and_b32 v{V}, 1, v3'); I(f'v_lshlrev_b32 v{V}, 5, v{V}'); I(f'v_lshl_add_u32 v{V}, v16, 3, v{V}')
    I(f'v_lshl_add_u32 v{V}, v15, 7, v{V}')
    I('v_lshrrev_b32 v17, 1, v17'); I(f'v_lshl_add_u32 v{V}, v17, 6, v{V}')
    I(f's_and_b32 s{t0}, s{sA}, 1'); I(f's_lshl_b32 s{t0}, s{t0}, 6'); I(f'v_xor_b32 v{V}, s{t0}, v{V}')
    I(f's_lshr_b32 s{t0}, s{sA}, 1'); I(f's_lshl_b32 s{t0}, s{t0}, 11'); I(f's_add_u32 s{t0}, s{t0}, {base}')
    I(f'v_add_u32 v{V}, s{t0}, v{V}')
def w3_dma(k, V, sM, m, half, dest, tag):
    I = k.I
    t1 = sT[1]
    I(f's_add_u32 m0, s{sM}, {dest}')
    I(f's_mov_b32 s{t1}, {m*16*3584 + half*256}')
    I(f'buffer_load_dwordx4 v{V}, {srd("w3")}, s{t1} offen lds', tag=tag)
def w3b_slot(m): return 8 + m if m < 6 else m - 6 if m < 17 else m - 17
def w4_src(k, V):
    I = k.I
    t0, t1 = sT[0], sT[1]
    I(f's_lshl_b32 s{t0}, s{sJ}, 8'); I(f's_lshl_b32 s{t1}, s{sA}, 3'); I(f's_add_u32 s{t0}, s{t0}, s{t1}')
    I(f'v_lshrrev_b32 v15, 3, v1'); I(f'v_add_u32 v15, s{t0}, v15'); I(f'v_mul_u32_u24 v{V}, 896, v15')
    I('v_lshlrev_b32 v15, 1, v3'); I('v_and_b32 v16, 7, v1'); I('v_xor_b32 v15, v15, v16')
    I(f'v_lshl_add_u32 v{V}, v15, 4, v{V}')
def w4_dma_list(k, V, sM, sS, b):
    I = k.I
    out = []
    for lc in range(7):
        def f(lc=lc):
            if b >= k.o.get('now4', 9): return
            if lc == 0: I(f's_mov_b32 s{sS}, {b*32*896}')
            I(f's_add_u32 m0, s{sM}, {STEP_REG[b] + lc*4096 - lc*128}')
            I(f'buffer_load_dwordx4 v{V}, {srd("w4")}, s{sS} offen offset:{lc*128} lds', tag=f'w4_{b}')
        out.append(f)
    return out
def pat(k, P):
    I = k.I
    I('v_lshrrev_b32 v15, 2, v2'); I('v_and_b32 v16, 1, v3'); I('v_cmp_eq_u32 vcc, v15, v16')
    I(f'v_mov_b32 v15, 0x3f803f80')
    for i in range(4): I(f'v_cndmask_b32 v{P+i}, 0, v15, vcc')
def up_addrs(k, vX, vS, vU, ubase):
    I = k.I
    t0 = sT[0]
    I('v_bfe_u32 v15, v1, 4, 1'); I(f'v_mul_u32_u24 v{vX}, {TILE}, v15')
    I(f'v_lshl_add_u32 v{vX}, v2, 4, v{vX}')
    I('v_lshrrev_b32 v16, 5, v1'); I(f'v_lshl_add_u32 v{vX}, v16, 8, v{vX}')
    I(f'v_and_b32 v{vS}, 31, v1'); I(f'v_lshlrev_b32 v{vS}, 5, v{vS}'); I(f'v_add_u32 v{vS}, {L_STAT}, v{vS}')
    I(f'v_lshlrev_b32 v{vU}, 10, v15'); I(f'v_lshl_add_u32 v{vU}, v2, 4, v{vU}'); I(f'v_lshl_add_u32 v{vU}, v16, 8, v{vU}')
    I(f's_lshl_b32 s{t0}, s{sA}, 12'); I(f's_add_u32 s{t0}, s{t0}, {ubase}')
    I(f'v_add_u32 v{vU}, s{t0}, v{vU}')
def up(k, acc, afn, BB, vX, vS, hooks, pre=True, half=None):
    I = k.I
    def b_rd(m, b):
        d = vr(BB + 8*(m&1) + 4*b, 4)
        if m < 28: I(f'ds_read_b128 {d}, v{vX} offset:{b*2*TILE + m*512}')
        else: I(f'ds_read_b128 {d}, v{vS} offset:{b*1024}')
    if pre: b_rd(0, 0); b_rd(0, 1)
    for m in range(29):
        for b in range(2):
            if m + 1 < 29: b_rd(m + 1, b)
            I(f'{MF32} {vr(acc+16*b,16)}, {vr(afn(m),4)}, {vr(BB+8*(m&1)+4*b,4)}, ' + ('0' if m == 0 else vr(acc+16*b, 16)))
            if b == 0 and half: half(m)
        if m in hooks: hooks[m]()
def gelu_groups(acc, GT, GC, PK, npk):
    out = []
    for b in range(2):
        G = GC + 4*b
        for gp in range(2):
            Lq = []
            x = acc + 16*b + 8*gp; tt = GT + 8*gp
            for i in range(8): Lq.append(f'v_mul_f32 v{tt+i}, v{x+i}, v{x+i}')
            for i in range(8): Lq.append(f'v_fma_f32 v{tt+i}, v{tt+i}, v{G+1}, v{G}')
            for i in range(8): Lq.append(f'v_mul_f32 v{tt+i}, v{tt+i}, v{x+i}')
            for i in range(8): Lq.append(f'v_exp_f32 v{tt+i}, v{tt+i}')
            for i in range(8): Lq.append(f'v_fma_f32 v{tt+i}, v{tt+i}, v{G+2}, v{G+2}')
            for i in range(8): Lq.append(f'v_rcp_f32 v{tt+i}, v{tt+i}')
            for i in range(8): Lq.append(f'v_mul_f32 v{x+i}, v{x+i}, v{tt+i}')
            P = PK + 4*((2*b + gp) % npk)
            for i in range(4): Lq.append(f'v_cvt_pk_bf16_f32 v{P+i}, v{x+2*i}, v{x+2*i+1}')
            out.append((Lq, P, b*2048 + gp*512))
    return out

def publish_stats(k, src, sreg, tagbits, T, mid=None, thru=False, ack=True):
    e, I = k.e, k.I
    P = T
    if sreg is not None: pack_pairs(k, src, P)
    st = [f'buffer_store_dwordx4 {vr(P,4)}, v{vST}, {WS}, s{sreg} offen',
          f'buffer_store_dwordx4 {vr(P+4,4)}, v{vST}, {WS}, s{sreg} offen offset:1024']
    if sreg is None: pass
    elif thru:
        for t in st: I(t + ' sc1')
    else: k.stores(st, tag='ds')
    S = T + 8
    I(f'v_pk_add_f32 {vr(S,2)}, {vr(src,2)}, {vr(src+2,2)}')
    I(f'v_pk_mul_f32 {vr(S+2,2)}, {vr(src,2)}, {vr(src,2)}')
    I(f'v_pk_fma_f32 {vr(S+2,2)}, {vr(src+2,2)}, {vr(src+2,2)}, {vr(S+2,2)}')
    for i in range(4, 16, 2):
        I(f'v_pk_add_f32 {vr(S,2)}, {vr(S,2)}, {vr(src+i,2)}')
        I(f'v_pk_fma_f32 {vr(S+2,2)}, {vr(src+i,2)}, {vr(src+i,2)}, {vr(S+2,2)}')
    I(f'v_add_f32 v{S+4}, v{S}, v{S+1}')
    I(f'v_add_f32 v{S+5}, v{S+2}, v{S+3}')
    k.allred2(S+4, S+5, S, 'v_add_f32')
    I(f'v_or_b32 v{S+6}, {tagbits}, v{vTAG}')
    if ack: e.wait_vm0()
    k.stores([f'buffer_store_dwordx3 {vr(S+4,3)}, v9, {WS}, 0 offen'])
    if mid: mid()

def x1_dma(k, m0_, vaddr):
    I = k.I
    t0, t1 = sT[0], sT[1]
    I(f's_mul_i32 s{t0}, s{sA}, {TILE}')
    for i in range(7):
        m = m0_ + i
        if i % 4 == 0:
            I(f's_mov_b32 s{t1}, {k.L.X1 + m*1024}')
            I(f's_add_u32 m0, s{t0}, {RA + m*1024}')
        I(f'buffer_load_dwordx4 v{vaddr}, {WS}, s{t1} offen offset:{(i&3)*1024} sc1 lds', tag='x1')

def main_rest(k):
    e, I, L, o = k.e, k.I, k.L, k.o
    t0, t1, t2, t3 = sT[0:4]
    sR = sT[8]
    sn = o.get('sn', '')
    main_addr1(k)
    for t in range(4):
        for d in range(2):
            I(f'v_lshlrev_b32 v{HR+4*t+2*d}, 16, v{52+2*t+d}')
            I(f'v_and_b32 v{HR+4*t+2*d+1}, 0xffff0000, v{52+2*t+d}')
    b_soff(k, L.O)
    if k.v4:
        k.k_landed()
        a_preload(k)
        k.k_landed2()
    else:
        k.o_flag()
        k.bar()
        a_preload(k)
    def chk(): I(f'v_cmp_ne_u32 vcc, s{sTAG}, v16')
    k.poll3([f'buffer_load_dword v16, v{vOP}, {WS}, 0 offen sc1'], chk, 'o')
    k.stamp('po')
    b_loads(k)
    k.bar('sh')
    gemm(k, HR, k.capture(lambda: main_addr2(k)), 30)
    k.stamp('hg')
    assert 't' in sn and 'x' in sn
    eh = o.get('eh', 0)
    def pre2():
        k.bar('eh')
        a_preload(k, a_read2)
    if not eh: pre2()
    publish_stats(k, HR, None, 1, ACC - 8, ack=False)
    k.stamp('hp')
    if eh: pre2()
    D = 32
    sl = [f'buffer_load_dwordx3 {vr(D,3)}, v10, {WS}, 0 offen sc1', f'buffer_load_dwordx3 {vr(D+4,3)}, v11, {WS}, 0 offen sc1']
    def h9():
        for t in range(4): I(f'ds_read_b128 {vr(CS1+4*t,4)}, v12 offset:{t*64}')
        I(f's_mov_b32 s{sR}, {L.T0}'); I(f's_mov_b32 s{sT[9]}, {L.X1}'); I(f's_or_b32 s{sN}, s{sTAG}, 1')
        for i in range(4): I(f'v_mov_b32 v{ACC+8+i}, -1')
    hooks = {9: h9}
    sp = o.get('sp', 7)
    hooks[sp] = lambda f=hooks.get(sp): ([I(t) for t in sl], f and f())
    gemm(k, TA, rd=a_read2, hooks=hooks)
    k.stamp('tg')
    k.bar('eg')
    def schk():
        I(f'v_cmp_ne_u32 vcc, s{sN}, v{D+2}')
        I(f'v_cmp_ne_u32 s[{sT[2]}:{sT[3]}], s{sN}, v{D+6}')
        I(f's_or_b64 vcc, vcc, s[{sT[2]}:{sT[3]}]')
    k.poll2(sl, schk, 'hs')
    k.stamp('ph')
    k.stores([f'buffer_store_dwordx4 {vr(ACC+8,4)}, v{vST}, {WS}, s{sT[9]} offen offset:{h*1024}' for h in range(2)], tag='pre')
    row_stats(k, D)
    I(f'v_add_f32 v{D+2}, 0x3727c5ac, v{D+1}'); I(f'v_rsq_f32 v{D+4}, v{D+2}')
    fm = [f'v_pk_fma_f32 {vr(TA+i,2)}, {vr(CS1+i,2)}, {vr(D,2)}, {vr(TA+i,2)} op_sel_hi:[1,0,1] neg_lo:[1,0,0] neg_hi:[1,0,0]' for i in range(0, 16, 2)]
    I(fm.pop(0)); I(fm.pop(0))
    I(f'v_mul_f32 v{D+2}, v{D+4}, v{D+4}'); I(fm.pop(0)); I(f'v_fma_f32 v{D+2}, v{D+2}, v{D+1}, v{vEPS}'); I(fm.pop(0))
    I(f'v_rsq_f32 v{D+2}, v{D+2}')
    I(f'v_mul_f32_e64 v{BXT}, -v{D}, v{D+4}')
    while fm: I(fm.pop(0))
    I(f'v_mul_f32 v{D+6}, v{D+4}, v{D+2}')
    G = D
    gelu_consts(k, D+6, G)
    I(f'v_mov_b32 v{D+6}, v{G+1}')
    T = BF
    P = T + 16
    for h in range(2):
        x = TA + 8*h; tt = T + 8*h
        for i in range(0, 8, 2): I(f'v_pk_mul_f32 {vr(tt+i,2)}, {vr(x+i,2)}, {vr(x+i,2)}')
        for i in range(0, 8, 2): I(f'v_pk_fma_f32 {vr(tt+i,2)}, {vr(tt+i,2)}, {vr(D+6,2)}, {vr(G,2)} op_sel_hi:[1,0,0]')
        for i in range(0, 8, 2): I(f'v_pk_mul_f32 {vr(tt+i,2)}, {vr(tt+i,2)}, {vr(x+i,2)}')
        for i in range(8): I(f'v_exp_f32 v{tt+i}, v{tt+i}')
        for i in range(0, 8, 2): I(f'v_pk_fma_f32 {vr(tt+i,2)}, {vr(tt+i,2)}, {vr(G+2,2)}, {vr(G+2,2)} op_sel_hi:[1,0,0]')
        for i in range(8): I(f'v_rcp_f32 v{tt+i}, v{tt+i}')
        for i in range(0, 8, 2): I(f'v_pk_mul_f32 {vr(x+i,2)}, {vr(x+i,2)}, {vr(tt+i,2)}')
        k.cvt(P+4*h, x, 8)
        I(f'v_permlane16_swap_b32 v{P+4*h}, v{P+4*h+2}')
        I(f'v_permlane16_swap_b32 v{P+4*h+1}, v{P+4*h+3}')
        if h == 1: e.wait_tag('pre')
        if o.get('hf', 0): I(f'buffer_store_dwordx4 {vr(P+4*h,4)}, v{vHS}, {WS}, 0 offen offset:{h*1024} sc1')
        k.stores([f'buffer_store_dwordx4 {vr(P+4*h,4)}, v{vST}, {WS}, s{sR} offen offset:{h*1024}'], tag='tl')
    if not o.get('hf', 0):
        I(f'buffer_store_dwordx4 {vr(P,4)}, v{vHS}, {WS}, 0 offen sc1')
        I(f'buffer_store_dwordx4 {vr(P+4,4)}, v{vHS}, {WS}, 0 offen offset:1024 sc1')
    def hn():
        for i in range(0, 16, 2):
            I(f'v_pk_fma_f32 {vr(ACC+i,2)}, {vr(HR+i,2)}, {vr(D+4,2)}, {vr(BXT,2)} op_sel_hi:[1,0,0]')
    k.stamp('tp')
    k.bar('et')
    if k.stop == 't': return
    a_preload(k)
    hn()
    b_soff(k, L.T0 - TILE)
    I(f's_mov_b32 s{sR}, {L.X1}')
    w3_rd_base(k, 14, RC)
    I(f'v_subrev_u32 v12, {RC - RB}, v14')
    sM, sS = sT[9], sT[10]
    I(f's_lshl_b32 s{sM}, s{sA}, 10')
    w4_src(k, 0)
    addr = [XA]*3 + [XA+4] + [XA+1]*3 + [XA+2]*3 + [XA+5] + [XA+3]*3
    if o.get('tw', 1): e.wait_tag('tl')
    k.stamp('pt')
    b_loads(k, addr)
    k.bar('sx')
    for i in range(3): tr2(k, W3P + 4*i, 12, (8+i)*4096, 512)
    e.wait_lg0(); k.bar('sy')
    if o.get('xc', 1):
        gemm(k, ACC)
        done, retry = e.newlabel('Lxgd'), e.newlabel('Lxgr')
        I(f'v_cmp_u_f32 vcc, v{ACC}, v{ACC}')
        I(f's_cbranch_vccnz {retry}')
        e.label(done)
        def stub():
            e.label(retry)
            k.stamp('gr')
            e.nop(8); e.wait_all()
            b_loads(k, addr); a_preload(k); hn()
            gemm(k, ACC)
            e.nop(8)
            I(f'v_cmp_u_f32 vcc, v{ACC}, v{ACC}')
            spin_tail(k, retry, done)
        ool(k, stub)
    else: gemm(k, ACC, chk=lambda m: b_loads(k, addr, m0=m))
    k.stamp('xg')
    def mid():
        for i in range(0, 16, 2):
            I(f'v_pk_add_f32 {vr(RES+i,2)}, {vr(HR+i,2)}, {vr(ACC+i,2)}')
    publish_stats(k, ACC, sR, 2, BF, mid, ack='x' not in sn)
    if 'x' in sn and o.get('xw', 1): e.wait_tag('ds')
    k.stamp('xp')
    k.bar()
    if k.stop == 'x1': return
    def F(m): return W3P + 4*m if m < 3 else 128 + 4*(m - 3)
    AC, BB, GT, GC, PK, PAT, C, AXT = 44, 76, 92, 108, 116, 124, 32, 36
    vX, vS, vU = 5, 6, 7
    if 'x' in sn: x1_dma(k, 0, vB); x1_dma(k, 7, vB)
    pat(k, PAT)
    up_addrs(k, vX, vS, vU, U1)
    def frd(m): tr2(k, F(m), 14 if 6 <= m < 17 else 12, w3b_slot(m)*4096, 512)
    SR = 40
    def xstats(D):
        row_stats(k, D)
        I(f'v_mul_f32 v{D+3}, -1.0, v{D}')
        k.split_b(D+3, SR, D+2)
        I(f'v_add_f32 v{D+2}, 0x3727c5ac, v{D+1}'); I(f'v_rsq_f32 v{D+4}, v{D+2}')
        gelu_consts(k, D+4, SR+4)
        I(f's_lshl_b32 s{t0}, s{sW}, 9'); I(f's_add_u32 s{t0}, s{t0}, {L_STAT}')
        I('v_lshlrev_b32 v15, 5, v2'); I(f'v_add_u32 v15, s{t0}, v15')
        I(f'ds_write_b128 v15, {vr(SR,4)}'); I(f'ds_write_b128 v15, {vr(SR+4,4)} offset:16')
    def cs(m): I(f'{MF16} {vr(C,4)}, {vr(PAT,4)}, {vr(F(m),4)}, ' + ('0' if m == 0 else vr(C, 4)))
    dm = []
    for b in range(3): dm += w4_dma_list(k, 0, sM, sS, b)
    nd = o.get('nd', 7)
    if 'x' in sn:
        D2 = 60
        sl = [f'buffer_load_dwordx3 {vr(D2,3)}, v10, {WS}, 0 offen sc1', f'buffer_load_dwordx3 {vr(D2+4,3)}, v11, {WS}, 0 offen sc1']
        for t in sl: I(t)
        for m in range(3, 28): frd(m)
        I(f's_mul_i32 s{t0}, s{sA}, {TILE}')
        I('v_and_b32 v15, 60, v1'); I('v_lshl_add_u32 v15, v1, 6, v15'); I(f'v_add_u32 v15, s{t0}, v15')
        e.wait_lg0(); k.bar('bf')
        for m in range(28):
            if m < nd: dm.pop(0)()
            cs(m)
        e.wait_tag('x1')
        k.stamp('xl')
        rds = [f'ds_read_b32 v{16+i}, v15 offset:{RA + min(i*4096, TILE - 4096)}' for i in range(4)]
        def xchk():
            for t in rds: I(t)
            I('v_max3_u32 v16, v16, v17, v18'); I('v_max_u32 v16, v16, v19')
            I('v_cmp_eq_u32 vcc, -1, v16')
        done, retry = e.newlabel('Lxd'), e.newlabel('Lxr')
        xchk()
        I(f's_cbranch_vccnz {retry}')
        e.label(done)
        def stub():
            e.label(retry)
            k.stamp('xr')
            x1_dma(k, 0, vB); x1_dma(k, 7, vB)
            e.wait_vm0()
            xchk()
            spin_tail(k, retry, done)
        ool(k, stub)
        k.bar('b8')
        I(f's_or_b32 s{sN}, s{sTAG}, 2')
        def schk():
            I(f'v_cmp_ne_u32 vcc, s{sN}, v{D2+2}')
            I(f'v_cmp_ne_u32 s[{sT[2]}:{sT[3]}], s{sN}, v{D2+6}')
            I(f's_or_b64 vcc, vcc, s[{sT[2]}:{sT[3]}]')
        k.poll2(sl, schk, 'xs')
        k.stamp('px')
        xstats(D2)
    else:
        nf = o.get('fr', 12)
        for m in range(3, 3 + nf): frd(m)
        poll_stats(k, 2, 'x', D, 10, 11)
        k.stamp('px')
        x1_dma(k, 0, vB); x1_dma(k, 7, vB)
        for m in range(3 + nf, 28): frd(m)
        xstats(D)
        e.wait_lg0(); k.bar('bf')
        for m in range(28):
            if m < nd: dm.pop(0)()
            cs(m)
        e.wait_tag('x1'); k.bar('b8')
    while dm: dm.pop(0)()
    I(f'v_mov_b32 v{AXT+2}, 0'); I(f'v_mov_b32 v{AXT+3}, 0')
    k.split_a(C, AXT, C+1)
    I(f'ds_read_b128 {vr(BB,4)}, v{vX}'); I(f'ds_read_b128 {vr(BB+4,4)}, v{vX} offset:{2*TILE}')
    e.wait_lg0()
    e.wait_tag('w4_1'); k.bar('ma')
    I(f'ds_read_b128 {vr(GC,4)}, v{vS} offset:16'); I(f'ds_read_b128 {vr(GC+4,4)}, v{vS} offset:1040')
    I(f's_setprio {o.get("pu", 1)}')
    e.wait_tag('w4_2'); k.bar('m2')
    hooks = {}
    m3 = o.get('m3', 15)
    for b in (3, 4, 5): dm += w4_dma_list(k, 0, sM, sS, b)
    def one(i):
        k.stamp(f'h{i}')
        if i == m3: k.bar('m3')
        if i % 4 != o.get('dsk', 9) and len(dm) > (7 if i < m3 else 0): dm.pop(0)()
    for i in range(29): hooks[i] = lambda i=i: one(i)
    up(k, AC, lambda m: F(m) if m < 28 else AXT, BB, vX, vS, hooks, pre=False)
    I(f's_setprio {o.get("pgb", 0)}')
    assert not dm
    e.wait_tag('w4_4'); k.bar('m6')
    for b in (6, 7): dm += w4_dma_list(k, 0, sM, sS, b)
    for _ in range(4): dm.pop(0)()
    cnt = 0
    m7 = o.get('m7', 30)
    for gi, (Lq, Pk, off) in enumerate(gelu_groups(AC, GT, GC, PK, 2)):
        for t in Lq:
            I(t); cnt += 1
            if cnt == m7: e.wait_tag('w4_5'); k.bar('m7')
            if cnt == o.get('m9', 165):
                assert not dm and gi >= 2
                e.wait_vm0(); e.wait_lg0(); k.bar('m9')
            if cnt % o.get('dper', 4) == 0 and len(dm) > (7 if cnt < m7 else 0): dm.pop(0)()
        I(f'ds_write_b128 v{vU}, {vr(Pk,4)} offset:{off}')
    I('s_setprio 0')
    e.wait_lg0(); k.bar('m10')
    SEL, LD = 32, 76
    k.sel_mat(SEL, 16)
    I(f's_mul_i32 s{t0}, s{sA}, {7*TILE}'); I(f's_sub_u32 s{t0}, {PB[0]}, s{t0}')
    I(f's_lshl_b32 s{t1}, s{sJ}, 11'); I(f's_add_u32 s{t0}, s{t0}, s{t1}')
    I(f's_add_u32 s{t0}, s{t0}, s{sGB}')
    I('v_and_b32 v5, 31, v1'); I('v_lshlrev_b32 v5, 4, v5'); I(f'v_add_u32 v5, s{t0}, v5')
    I('v_lshrrev_b32 v16, 5, v1'); I(f'v_mul_u32_u24 v17, {TILE}, v16'); I('v_add_u32 v6, v5, v17')
    I('v_cmp_eq_u32 vcc, 0, v16'); I(f'v_cndmask_b32 v5, v{vBIG}, v5, vcc')
    for i in range(4): I(f's_mov_b32 s{sT[4+i]}, {2*i*TILE}')
    I(f's_lshl_b32 s{t0}, s{sG}, 6'); I(f's_lshl_b32 s{t1}, s{sA}, 4'); I(f's_add_u32 s{t0}, s{t0}, s{t1}')
    I(f'v_add_u32 v7, s{t0}, v2'); I('v_mul_u32_u24 v7, 896, v7')
    I(f'v_lshl_add_u32 v7, v{vSIG}, 4, v7')
    I(f's_lshl_b32 s{sT[8]}, s{sJ}, 7')
    I(f's_lshl_b32 s{t0}, s{sA}, 7'); I(f's_add_u32 s{t0}, s{t0}, {L.F_P}')
    I('v_min_u32 v15, 27, v1'); I('v_lshlrev_b32 v15, 2, v15'); I(f'v_add_u32 v15, s{t0}, v15')
    if o.get('m11', 0): k.bar()
    lds = [f'buffer_load_dwordx4 {vr(LD+16*i+4*t,4)}, v{6 if i < 3 else 5}, {WS}, s{sT[4+i]} offen offset:{t*512} sc1' for i in range(4) for t in range(4)]
    if 'f' in sn:
        R2 = 60
        top, dn = e.newlabel('Lfw'), e.newlabel('Lfd')
        I(f'v_mov_b32 v15, {L_F2}')
        I(f's_add_u32 s{t0}, s{sA}, {o.get("fs", 1)}')
        e.label(top)
        I('ds_read_b32 v16, v15')
        I(f'v_cmp_gt_u32 vcc, s{t0}, v16')
        I(f's_cbranch_vccz {dn}')
        I(f's_sub_u32 s{sSPIN}, s{sSPIN}, 1')
        I(f's_cbranch_scc0 {top}')
        I(f's_mov_b32 s{sSPIN}, 0')
        e.label(dn)
        k.stamp('pf')
        top, dn = e.newlabel('Lfw'), e.newlabel('Lfd')
        e.label(top)
        for t in lds: I(t)
        for i in range(4):
            for t in range(4):
                I(f'{MF16} {vr(R2+4*t,4)}, {vr(SEL,4)}, {vr(LD+16*i+4*t,4)}, {vr((R2 if i else RES)+4*t,4)}')
        I(f'v_cmp_u_f32 vcc, v{R2}, v{R2+4}'); I(f'v_cmp_u_f32 s[{t2}:{t3}], v{R2+8}, v{R2+12}')
        I(f's_or_b64 vcc, vcc, s[{t2}:{t3}]')
        I(f's_cbranch_vccz {dn}')
        I(f's_sub_u32 s{sSPIN}, s{sSPIN}, 1')
        I(f's_cbranch_scc0 {top}')
        I(f's_mov_b32 s{sSPIN}, 0')
        e.label(dn)
    else:
        R2 = RES
        def chk(): I(f'v_cmp_ne_u32 vcc, s{sTAG}, v16')
        k.poll3([f'buffer_load_dword v16, v15, {WS}, s{sGB} offen sc1'], chk, 'p')
        k.stamp('pf')
        for t in lds: I(t)
        for i in range(4):
            for t in range(4):
                I(f'{MF16} {vr(RES+4*t,4)}, {vr(SEL,4)}, {vr(LD+16*i+4*t,4)}, {vr(RES+4*t,4)}')
    pack_pairs(k, R2, 52)
    of = o.get('outf', '')
    I(f'buffer_store_dwordx4 v[52:55], v7, {srd("out")}, s{sT[8]} offen {of}')
    I(f'buffer_store_dwordx4 v[56:59], v7, {srd("out")}, s{sT[8]} offen offset:64 {of}')
    k.stamp('end')

vT3, vT2, vT4, vTQ, vTD = 202, 203, 204, 205, 206
def touch_addrs(k):
    I, L = k.I, k.L
    t0, t1, t2 = sT[0:3]
    I(f's_and_b32 s{t0}, s{sG}, 3'); I(f's_lshl_b32 s{t0}, s{t0}, 2'); I(f's_add_u32 s{t0}, s{t0}, s{sA}')
    I(f's_mul_i32 s{t1}, s{t0}, 3584'); I(f's_lshl_b32 s{t2}, s{sJ}, 9'); I(f's_add_u32 s{t1}, s{t1}, s{t2}')
    I(f's_cmp_eq_u32 s{sJ}, 7'); I(f's_cselect_b32 s{t1}, {BIG}, s{t1}')
    I('v_lshrrev_b32 v15, 1, v1'); I(f'v_mul_u32_u24 v{vT3}, {16*3584}, v15'); I('v_and_b32 v15, 1, v1')
    I(f'v_lshl_add_u32 v{vT3}, v15, 7, v{vT3}'); I(f'v_add_u32 v{vT3}, s{t1}, v{vT3}')
    I(f's_mul_i32 s{t0}, s{t0}, 896'); I(f's_lshl_b32 s{t2}, s{sJ}, 7'); I(f's_add_u32 s{t1}, s{t0}, s{t2}')
    I(f'v_mul_u32_u24 v{vT2}, {16*896}, v1'); I(f'v_add_u32 v{vT2}, s{t1}, v{vT2}')
    I(f's_mul_i32 s{t2}, s{sJ}, {256*896}'); I(f's_add_u32 s{t1}, s{t0}, s{t2}')
    I('v_lshrrev_b32 v15, 3, v1'); I(f'v_mul_u32_u24 v{vT4}, {16*896}, v15'); I('v_and_b32 v15, 7, v1'); I('v_min_u32 v15, 6, v15')
    I(f'v_lshl_add_u32 v{vT4}, v15, 7, v{vT4}'); I(f'v_add_u32 v{vT4}, s{t1}, v{vT4}')
    I(f's_mul_i32 s{t1}, s{sJ}, {AS}'); I(f's_mul_i32 s{t2}, s{sA}, {TILE}'); I(f's_add_u32 s{t1}, s{t1}, s{t2}'); I(f's_add_u32 s{t1}, s{t1}, {L.P0}')
    I('v_min_u32 v15, 55, v1'); I(f'v_lshlrev_b32 v{vTQ}, 7, v15'); I(f'v_add_u32 v{vTQ}, s{t1}, v{vTQ}')
def touch(k, key, dflt='-'):
    I = k.I
    t1 = sT[1]
    for ch in k.o.get(key, dflt):
        if ch in 'ab': I(f'buffer_load_dword v{vTD}, v{vT3}, {srd("w3")}, 0 offen offset:{256 if ch == "b" else 0}')
        elif ch in 'o12': I(f'buffer_load_dword v{vTD}, v{vT2}, {srd("wo" if ch == "o" else "w" + ch)}, 0 offen')
        elif ch in '45':
            I(f's_mov_b32 s{t1}, {128*896 if ch == "5" else 0}')
            I(f'buffer_load_dword v{vTD}, v{vT4}, {srd("w4")}, s{t1} offen')
        elif ch in 'pq':
            I(f's_add_u32 s{t1}, s{sGB}, {7168 if ch == "q" else 0}')
            I(f'buffer_load_dword v{vTD}, v{vTQ}, {WS}, s{t1} offen sc1')
        else: continue
        k.e.vm[-1]['dst'] = set()

def aux_burst2(k):
    I, o = k.I, k.o
    touch_addrs(k)
    touch(k, 'tO')
    w3_src(k, 12)
    for m in range(o['w2a']): w3_dma(k, 12, k.sMW, m, 0, RC + m*4096, 'w3')

def aux_pre(k): pass

def aux_rest(k):
    e, I, L, o = k.e, k.I, k.L, k.o
    t0, t1, t2, t3 = sT[0:4]
    sM = k.sMW; sS = sT[5]
    A0, AC, BB, GT, GC, PK, PAT, C, AXT, ONE = 32, 144, 176, 192, 208, 216, 232, 236, 240, 244
    n0 = o['w2a']; nH = o.get('nH', 11); nT = 28 - n0 - nH
    assert nT <= 8 and n0 <= 10
    def rd(m0, n, s0=0):
        for i in range(n): tr2(k, A0 + 4*(m0+i), 8, (s0+i)*4096, 512)
    def cs(m0, n):
        for m in range(m0, m0 + n):
            I(f'{MF16} {vr(C,4)}, {vr(PAT,4)}, {vr(A0+4*m,4)}, ' + ('0' if m == 0 else vr(C, 4)))
    def dma(m0, n, s0=0):
        for i in range(n): w3_dma(k, 12, sM, m0 + i, 0, RC + (s0+i)*4096, 'w3')
    w3_rd_base(k, 8, RC)
    pat(k, PAT)
    assert n0 == 9 and nH == 11
    I(f's_mul_i32 s{t0}, s{sJ}, 57344'); I(f's_add_u32 s{t0}, s{t0}, s{sM}'); I(f's_add_u32 s{t0}, s{t0}, {WS_W01}')
    I(f'v_add_u32 v6, s{t0}, v4')
    I('v_and_b32 v7, 60, v1'); I('v_lshl_add_u32 v7, v2, 6, v7'); I('v_lshl_add_u32 v7, v3, 12, v7')
    I(f's_add_u32 s{t0}, s{sM}, {RB}'); I(f'v_add_u32 v7, s{t0}, v7')
    I(f'v_subrev_u32 v5, {RC - RB}, v8')
    k.o_flag('os')
    k.v_landed()
    def wdma(fl, m0=0, m1=14):
        for m in range(m0, m1):
            I(f's_add_u32 m0, s{sM}, {RB + m*4096}'); I(f's_mov_b32 s{t1}, {m*4096}')
            I(f'buffer_load_dwordx4 v6, {WS}, s{t1} offen {fl} lds', tag='w01')
    wf = 'sc1' if o.get('wsc', 0) else ''
    we = o.get('we', 0)
    wdma(wf, 0, we)
    rd(0, n0)
    cs(0, n0)
    e.wait_lg0(); k.bar('sh')
    wdma(wf, we)
    dma(n0, nH)
    e.wait_tag('w01')
    k.stamp('a5')
    def wchk():
        for i in range(4): I(f'ds_read_b32 v{16+i}, v7 offset:{min(4*i, 10)*4096}')
        I('v_max3_u32 v16, v16, v17, v18'); I('v_max_u32 v16, v16, v19')
        I('v_cmp_eq_u32 vcc, -1, v16')
    done, retry = e.newlabel('Lwd'), e.newlabel('Lwr')
    wchk()
    I(f's_cbranch_vccnz {retry}')
    e.label(done)
    def stub():
        e.label(retry)
        k.stamp('wr')
        wdma('sc1')
        e.wait_vm0()
        wchk()
        spin_tail(k, retry, done)
    ool(k, stub)
    k.bar('eh')
    for m in range(14): k.sq_dma('w2', RA, m, 'w2')
    e.wait_tag('w3'); k.stamp('a6'); k.bar('eg')
    rd(n0, nH)
    for i in range(8): w3_dma(k, 12, sM, 20 + i, 0, RB + i*4096, 'w3')
    for m in range(6): w3_dma(k, 12, sM, m, 1, RB + w3b_slot(m)*4096, 'w3')
    cs(n0, nH)
    e.wait_tag('w2'); e.wait_lg0(); k.stamp('a7'); k.bar('et')
    if k.stop == 't': return
    xe = o.get('xe', 0)
    for m in range(6, 6 + xe): w3_dma(k, 12, sM, m, 1, RC + w3b_slot(m)*4096, 'w3c')
    e.wait_tag('w3'); k.bar('sx')
    for i in range(8): tr2(k, A0 + 4*(20+i), 5, i*4096, 512)
    xf = o.get('xf', 0)
    for m in range(6 + xe, 6 + xe + xf): w3_dma(k, 12, sM, m, 1, RC + w3b_slot(m)*4096, 'w3c')
    e.wait_lg0(); k.bar('sy')
    for m in range(6 + xe + xf, 28): w3_dma(k, 12, sM, m, 1, (RC if m < 17 else RB) + w3b_slot(m)*4096, 'w3c')
    cs(20, 8)
    vX, vS, vU = 24, 25, 12
    I(f'v_mov_b32 v{AXT+2}, 0'); I(f'v_mov_b32 v{AXT+3}, 0')
    k.split_a(C, AXT, C+1)
    VB, VB2 = 5, 28
    I('v_bfe_u32 v15, v1, 2, 2'); I('v_and_b32 v16, 1, v3')
    I('v_lshl_add_u32 v17, v16, 2, v15'); I('v_lshlrev_b32 v18, 7, v17')
    I('v_lshrrev_b32 v17, 1, v17'); I('v_lshl_add_u32 v18, v17, 5, v18')
    I('v_and_b32 v17, 3, v1'); I('v_lshl_add_u32 v18, v17, 3, v18')
    I('v_lshrrev_b32 v17, 1, v3'); I('v_lshl_add_u32 v18, v17, 11, v18')
    I(f's_mul_i32 s{t0}, s{sA}, 7')
    for i in range(4):
        I(f's_add_u32 s{t1}, s{t0}, {i}'); I(f's_and_b32 s{t2}, s{t1}, 3'); I(f's_lshl_b32 s{t2}, s{t2}, 5')
        I(f's_lshr_b32 s{t1}, s{t1}, 2'); I(f's_lshl_b32 s{t1}, s{t1}, 12')
        I(f'v_xor_b32 v{VB+i}, s{t2}, v18'); I(f'v_add_u32 v{VB+i}, s{t1}, v{VB+i}')
        I(f'v_add_u32 v{VB2+i}, {RB}, v{VB+i}')
    I(f's_mul_i32 s{t0}, s{sJ}, {TILE}'); I(f's_add_u32 s{t0}, s{t0}, s{sGB}')
    I(f's_mul_i32 s{t2}, s{sA}, {14*256}'); I(f's_add_u32 s{t0}, s{t0}, s{t2}')
    I(f'v_lshlrev_b32 v9, 8, v{vSIG}'); I('v_lshl_add_u32 v9, v2, 4, v9'); I(f'v_add_u32 v9, s{t0}, v9')
    I(f's_add_u32 s{t0}, s{t0}, {12*256}')
    I('v_lshrrev_b32 v15, 1, v3'); I('v_lshlrev_b32 v15, 8, v15'); I('v_lshl_add_u32 v15, v2, 4, v15')
    I('v_and_b32 v16, 1, v3'); I('v_lshl_add_u32 v15, v16, 3, v15')
    I(f'v_add_u32 v10, s{t0}, v15')
    I(f's_lshl_b32 s{t0}, s{sJ}, 4'); I(f's_lshl_b32 s{t1}, s{sA}, 2'); I(f's_add_u32 s{t0}, s{t0}, s{t1}')
    I(f's_add_u32 s{t0}, s{t0}, s{sGB}'); I(f's_add_u32 s{t0}, s{t0}, {L.F_P}')
    I(f'v_add_u32 v11, s{t0}, v{vL0}')
    I(f'v_mov_b32 v13, s{sTAG}')
    I(f'v_add_u32 v14, {U0}, v4')
    for n in range(4): I(f's_mov_b32 s{sT[8+n]}, {PB[n]}')
    up_addrs(k, vX, vS, vU, U0)
    e.wait_vm0(); k.stamp('a8'); k.bar()
    if k.stop == 'x1': return
    sf = 'f' in o.get('sn', '')
    if sf:
        I(f'v_mov_b32 v11, {L_F2}'); I('v_mov_b32 v13, 0'); I('ds_write_b32 v11, v13')
        I(f'v_mov_b32 v15, {L.F_P}')
        def chk(): I(f'v_cmp_ne_u32 vcc, s{sTAG}, v16')
        k.poll3([f'buffer_load_dword v16, v15, {WS}, s{sGB} offen sc1'], chk, 'pf')
        k.stamp('a9')
    I('s_setprio 2')
    k.bar('bf')
    k.bar('b8')
    def A4(b): return 32 + 28*(b & 3)
    def take_list(b):
        out = []
        for lam in range(7):
            reg = STEP_REG[b]
            vb = (VB2 if reg >= RB else VB) + (lam & 3)
            off = (reg - RB if reg >= RB else reg) + (lam >> 2)*4096
            for h in range(2):
                out.append(lambda d=A4(b)+4*lam+2*h, vb=vb, off=off+1024*h: I(f'ds_read_b64_tr_b16 {vr(d,2)}, v{vb} offset:{off}', tag=f'r4_{b}'))
        return out
    ma = o.get('ma', 17); m2 = o.get('m2', 27)
    assert ma >= 13
    tk = take_list(0) + take_list(1)
    def hk(m):
        if m == ma: k.bar('ma')
        if m >= ma:
            for _ in range(2):
                if tk: tk.pop(0)()
        if m == 26: I(f'ds_read_b128 {vr(GC,4)}, v{vS} offset:16'); I(f'ds_read_b128 {vr(GC+4,4)}, v{vS} offset:1040')
        if m == m2:
            assert not tk
            e.wait_tag('r4_1'); k.bar('m2')
    def hh(m):
        if m > ma:
            for _ in range(o.get('tkh', 1)):
                if tk: tk.pop(0)()
    up(k, AC, lambda m: A0 + 4*m if m < 28 else AXT, BB, vX, vS, {m: (lambda m=m: hk(m)) for m in range(29)}, half=hh)
    I(f's_setprio {o.get("pga", 0)}')
    k.stamp('u0')
    gl = []
    for Lq, Pk, off in gelu_groups(AC, GT, GC, PK, 2): gl += Lq + [f'ds_write_b128 v{vU}, {vr(Pk,4)} offset:{off}']
    for f in take_list(2): f()
    a3 = o.get('a3', 110)
    for n, t in enumerate(gl):
        if n == a3:
            e.wait_tag('r4_2'); k.stamp('g3'); k.bar('m3')
        if n % 20 == 0: k.stamp(f'g{n}')
        I(t)
    I(f's_setprio {o.get("pd", 1)}')
    e.wait_lg0(); k.bar('m6')
    DA = 144
    UBR = [16, 20, 24]
    nk = 4
    seq = [(b, n) for b in range(nk) for n in range(4)] + [(b, n) for n in range(4) for b in range(nk, 8)]
    def u_rd(i):
        b, n = seq[i]
        I(f'ds_read_b128 {vr(UBR[i%3],4)}, v{14 if b < 4 else 4} offset:{(b&3)*4096 + n*1024}')
    def pack_list(n):
        Lq = []
        for pp in range(3):
            a = DA + 28*n + 8*pp
            for i in range(4): Lq.append(f'v_cvt_pk_bf16_f32 v{a+i}, v{a+2*i}, v{a+2*i+1}')
            Lq.append(f'v_permlane16_swap_b32 v{a}, v{a+2}'); Lq.append(f'v_permlane16_swap_b32 v{a+1}, v{a+3}')
            Lq.append(('st', f'buffer_store_dwordx4 {vr(a,4)}, v9, {WS}, s{sT[8+n]} offen offset:{pp*1024}', n))
        a = DA + 28*n + 24
        for i in range(2): Lq.append(f'v_cvt_pk_bf16_f32 v{a+i}, v{a+2*i}, v{a+2*i+1}')
        Lq.append(('st', f'buffer_store_dwordx2 {vr(a,2)}, v10, {WS}, s{sT[8+n]} offen', n))
        if sf: Lq += [f'v_mov_b32 v13, {n+1}', 'ds_write_b32 v11, v13']
        return Lq
    def run_fill(x):
        if callable(x): x()
        elif isinstance(x, tuple):
            if x[0] == 'st' and x[2] < o.get('pn', 2): I(x[1] + ' sc1', tag=f'p{x[2]}')
            elif x[0] == 'st': k.stores([x[1]], tag=f'p{x[2]}')
            elif not sf:
                e.wait_tag(f'p{x[1]}')
                k.stores([f'buffer_store_dword v13, v11, {WS}, 0 offen offset:{x[1]*128}'])
        else: I(x)
    fill = []
    d9 = o.get('d9', 14); d10 = o.get('d10', 22)
    assert 12 <= d9 <= 16 and 20 <= d10 <= 24
    nxt = 0
    for i, (b, n) in enumerate(seq):
        if i in (0, 4, 8): fill += take_list(3 + i//4)
        if i == o.get('d7', 3):
            e.wait_tag('r4_3'); k.bar('m7')
        if i == d9:
            k.bar('m9'); fill += take_list(6)
        if i == 16: fill += take_list(7)
        if i == d10: k.bar('m10')
        k.stamp(f'd{i}')
        lim = 16 if i < d9 else 24 if i < d10 else 32
        while nxt < min(lim, i + 3): u_rd(nxt); nxt += 1
        for lam in range(7):
            acc = DA + 28*n + 4*lam
            I(f'{MF16} {vr(acc,4)}, {vr(A4(b)+4*lam,4)}, {vr(UBR[i%3],4)}, ' + ('0' if b == 0 else vr(acc, 4)))
            if fill and not (i > 16 and b == nk and lam < 2): run_fill(fill.pop(0))
        if b == 7:
            assert not fill, len(fill)
            if n == 1 and o.get('m11', 0): k.bar()
            if n > 1: run_fill(('fl', n - 2))
            fill = pack_list(n)
    k.stamp('dg')
    for x in fill: run_fill(x)
    run_fill(('fl', 2))
    run_fill(('fl', 3))
    k.stamp('pp')

def j7_jobs(k):
    e, I, L = k.e, k.I, k.L
    t0, t1 = sT[0], sT[1]
    I(f's_and_b32 s{t0}, s{sG}, 3'); I(f's_lshl_b32 s{t0}, s{t0}, 3'); I(f's_add_u32 s{t0}, s{t0}, s{sW}')
    I(f's_mul_i32 s{t0}, s{t0}, 49'); I(f'v_add_u32 v15, s{t0}, v1')
    I('v_lshrrev_b32 v16, 1, v15'); I('v_lshlrev_b32 v16, 9, v16'); I('v_and_b32 v17, 1, v15'); I('v_lshl_add_u32 v16, v17, 7, v16')
    I('v_lshrrev_b32 v17, 5, v15'); I('v_mul_u32_u24 v17, 9363, v17'); I('v_lshrrev_b32 v17, 16, v17')
    I(f'v_mul_u32_u24 v17, {229376 - 224*128}, v17'); I('v_lshl_add_u32 v17, v15, 7, v17')
    I('v_cmp_gt_u32 vcc, 49, v1'); I(f'v_cndmask_b32 v16, v{vBIG}, v16, vcc'); I(f'v_cndmask_b32 v17, v{vBIG}, v17, vcc')
    I(f's_mul_i32 s{t0}, s{sW}, 56'); I(f'v_add_u32 v15, s{t0}, v1'); I('v_lshlrev_b32 v15, 7, v15')
    I('v_cmp_gt_u32 vcc, 56, v1'); I(f'v_cndmask_b32 v15, v{vBIG}, v15, vcc')
    k.jn = 0
    for ch in k.o.get('j7', 'b4p'):
        if ch in 'ab':
            for i in range(4):
                I(f's_mov_b32 s{t1}, {i*784*512 + (256 if ch == "b" else 0)}')
                I(f'buffer_load_dword v{32+i}, v16, {srd("w3")}, s{t1} offen'); e.barrier()
        if ch == '4':
            for b in range(8):
                I(f's_mov_b32 s{t1}, {b*28672}')
                I(f'buffer_load_dword v{36+b}, v17, {srd("w4")}, s{t1} offen'); e.barrier()
        if ch == '2':
            I(f's_and_b32 s{t0}, s{sG}, 3'); I(f's_lshl_b32 s{t0}, s{t0}, 3'); I(f's_add_u32 s{t0}, s{t0}, s{sW}'); I(f's_mul_i32 s{t0}, s{t0}, {49*128}')
            I('v_min_u32 v18, 48, v1'); I('v_lshlrev_b32 v18, 7, v18')
            I(f'buffer_load_dword v58, v18, {srd("w2")}, s{t0} offen'); e.barrier()
            I(f's_add_u32 s{t0}, s{t0}, {1568*128}')
            I(f'buffer_load_dword v59, v18, {srd("w2")}, s{t0} offen'); e.barrier()
        if ch == 'm':
            I(f's_lshl_b32 s{t0}, s{sG}, 3'); I(f's_add_u32 s{t0}, s{t0}, s{sW}')
            I(f's_mul_i32 s{t1}, s{t0}, {49*128}'); I(f's_mul_i32 s{t0}, s{t0}, {13*128}')
            I('v_min_u32 v18, 48, v1'); I('v_lshlrev_b32 v18, 7, v18'); I('v_min_u32 v19, 12, v1'); I('v_lshlrev_b32 v19, 7, v19')
            I(f'buffer_load_dword v60, v18, {srd("w3")}, s{t1} offen'); e.barrier()
            I(f'buffer_load_dword v61, v19, {srd("w2")}, s{t0} offen'); e.barrier()
            I(f'buffer_load_dword v62, v18, {srd("w4")}, s{t1} offen'); e.barrier()
        if ch == 'w': e.wait_vm0(); k.stamp(f'j{k.jn}'); k.jn += 1
        if ch == 'p':
            nt = 7*(4 - k.o.get('pn', 2))
            for i, off in enumerate([PB[3] + min(4*c, nt - 4)*TILE for c in reversed(range((nt + 3)//4))]):
                I(f's_add_u32 s{t1}, s{sGB}, {off}')
                I(f'buffer_load_dword v{44+i}, v15, {WS}, s{t1} offen sc1'); e.barrier()
        if ch == 'f':
            for i in range(4): I(f'v_mov_b32 v{64+i}, -1')
            I(f's_lshl_b32 s{t0}, s{sW}, 10'); I(f'v_add_u32 v18, s{t0}, v4'); I(f'v_add_u32 v18, s{sGB}, v18')
            I(f's_and_b32 s{t0}, s{sW}, 1'); I(f's_lshl_b32 s{t0}, s{t0}, 10'); I(f'v_add_u32 v19, s{t0}, v4'); I(f'v_add_u32 v19, s{sGB}, v19')
            for n in range(4):
                for i in range(13):
                    I(f's_mov_b32 s{t1}, {PB[n] + i*8192}')
                    st = f'buffer_store_dwordx4 v[64:67], v{18 if i < 12 else 19}, {WS}, s{t1} offen'
                    if n < k.o.get('pn', 2): I(st + ' sc1')
                    else: k.stores([st])
                    if k.o.get('fb', 1): e.barrier()
                e.wait_vm0()
            e.barrier()
            I(f's_add_u32 s{t1}, s{sGB}, {L.F_P}')
            k.stores([f'buffer_store_dword v{vTAG}, v{vL0}, {WS}, s{t1} offen'])
            k.stamp('jf')
    e.wait_vm0()
```

```python
import sys
from emit import Emit, parse

KN = "sequential_preLN__linear_kernel_hedgehog__mixer_s_mlp__prompt_kernel"
MF16 = 'v_mfma_f32_16x16x32_bf16'
MF32 = 'v_mfma_f32_32x32x16_bf16'

WS_HELLO = 0x1000
WS_KVP = 0x10000
WS_G = 0x200000
TILE = 14336
AS = 5*TILE
WS_STAMP = 0x3000000
BIG = 0x7fff0000
class Lay:
    def __init__(s, dbg, sn=0):
        s.X1 = 0; s.P0 = AS; s.FLG = 2*AS + 4*TILE; s.ST = s.FLG + 0x400
        if sn: s.GS = 48*TILE; s.O = 0; s.X1 = 10*TILE if dbg else 0; s.T0 = AS; s.H = 43*TILE
        elif dbg: s.GS = 0xD0000; s.O = 0x8C000; s.H = 0x9A000; s.T0 = 0xA8000 + TILE
        else: s.GS = 0x8C000; s.O = AS; s.H = 0; s.T0 = AS
        s.F_O = s.FLG; s.F_T = s.FLG + 0x100; s.F_P = s.FLG + 0x200
RA, RB, RC = 0, 57344, 114688
XB, XS = 57344, 12288
L_PHI = 155648
L_CS = 157696
L_CSQ = L_CS + 1024
L_KVR = 159744
L_CS1 = 155648
L_STAT = 156160
US = 10240
LDS_BYTES = 163840

sL, sRB, sH, sG, sJ, sW, sTAG, sMODE, sSPIN = 3, 4, 5, 6, 7, 8, 9, 10, 11
SRD = dict(x=40, wqkv=44, phi=48, wo=52, w1=56, w2=60, w3=64, w4=68, out=72, ws=76)
PTR = dict(x=16, wqkv=18, phi=20, wo=22, w1=26, w2=28, w3=30, w4=32, out=34, dbg=36, ws=38)
SIZE = dict(x=2048*448*2, wqkv=448*1344*2, phi=16*28*28*2, wo=448*448*2, w1=448*448*2, w2=448*448*2,
            w3=448*1792*2, w4=1792*448*2, out=2048*448*2, ws=268435456)
def srd(n): return f's[{SRD[n]}:{SRD[n]+3}]'
WS = srd('ws')
sGB, sODD = 80, 81
sC448, sL2E, sA, sN = 82, 83, 84, 85
sX0, sX1 = 86, 87
sM0, sM1 = 88, 90
sT = [12, 13, 14, 15, 92, 93, 94, 95, 96, 97, 98, 99]

def vr(a, n=1): return f'v{a}' if n == 1 else f'v[{a}:{a+n-1}]'

class K:
    def __init__(self, stop=None, force_slow=False, opts=None):
        self.e = Emit(); self.stop = stop; self.force_slow = force_slow
        self.o = dict(pf='o1g32', pfq=1); self.o.update(opts or {})
        self.L = Lay(self.o.get('dbg'))
    def I(self, *a, **k): return self.e.I(*a, **k)

    def stamp(self, name):
        st = self.o.get('stamps')
        if not st: return
        names = ['0'] + st.split('+')
        name = str(name)
        if name not in names: return
        k = names.index(name)
        r = 100 if k == 0 else 14 + 2*k
        assert k <= 12
        self.I(f's_memrealtime s[{r}:{r+1}]')

    def dump_stamps(self):
        if not self.o.get('stamps'): return
        I = self.I
        self.e.wait_all()
        I('v_mov_b32 v15, 0')
        for k in range(13):
            r = 100 if k == 0 else 14 + 2*k
            I(f'v_writelane_b32 v15, s{r}, {k}')
        I(f's_lshl_b32 s12, s{sL}, 3'); I(f's_add_u32 s12, s12, s{sW}'); I('s_lshl_b32 s12, s12, 8')
        I(f's_add_u32 s12, s12, {WS_STAMP}')
        I('v_mbcnt_lo_u32_b32 v16, -1, 0'); I('v_mbcnt_hi_u32_b32 v16, -1, v16')
        I('v_lshlrev_b32 v16, 2, v16')
        I(f'buffer_store_dword v15, v16, {WS}, s12 offen')

    def build_srd(self, n):
        b, p = SRD[n], PTR[n]
        self.I(f's_mov_b32 s{b}, s{p}')
        self.I(f's_and_b32 s{b+1}, s{p+1}, 0xffff')
        self.I(f's_mov_b32 s{b+2}, {SIZE[n]}')
        self.I(f's_mov_b32 s{b+3}, 0x20000')

    def stores(self, texts, tag=None):
        e = self.e
        slow, back = e.newlabel('Lslow'), e.newlabel('Lback')
        self.I(f's_cmp_lg_u32 s{sMODE}, 0')
        for t in texts:
            i = parse(t)
            touch = i.src
            vi = max([k for k, x in enumerate(e.vm) if x['dst'] & touch], default=None)
            li = max([k for k, x in enumerate(e.lg) if x['dst'] & touch], default=None)
            vn = e._vm_need(vi) if vi is not None else None
            ln = e._lg_need(li) if li is not None else None
            e._wait(vn, ln)
            need = 0
            for p in e.hist:
                d = e.pos - p.pos - 1
                r = e.req(p, i)
                if r > d + 1: need = max(need, r - d - 1)
            if need: e.nop(need)
        self.I(f's_cbranch_scc1 {slow}')
        for t in texts: self.I(t, tag=tag)
        e.label(back)
        e.ool.append(slow + ':')
        for t in texts: e.ool.append('  ' + t + ' sc1')
        e.ool.append('  s_branch ' + back)

    def poll(self, loads, check, name, first_issued=False):
        e = self.e
        top, done, chk = e.newlabel('Lpoll' + name), e.newlabel('Lpd' + name), e.newlabel('Lpc' + name)
        if first_issued:
            check()
            self.I(f's_cbranch_vccz {done}')
        if e.vm: e.wait_vm0()
        e.label(top)
        for t in loads: self.I(t)
        check()
        self.I(f's_cbranch_vccz {done}')
        self.I(f's_sub_u32 s{sSPIN}, s{sSPIN}, 1')
        self.I(f's_cbranch_scc0 {top}')
        self.I(f's_mov_b32 s{sSPIN}, 0')
        e.label(done)

    def allred2(self, X, Y, T, op):
        I = self.I
        I(f'v_permlane32_swap_b32 v{X}, v{Y}')
        I(f'{op} v{X}, v{X}, v{Y}')
        I(f'v_mov_b32 v{T}, v{X}')
        I(f'v_permlane16_swap_b32 v{X}, v{T}')
        I(f'{op} v{X}, v{X}, v{T}')
        I(f'v_mov_b32 v{Y}, v{X}')
        I(f'v_permlane32_swap_b32 v{X}, v{Y}')

    def cvt(self, dst, src, n):
        for i in range(0, n, 2):
            self.I(f'v_cvt_pk_bf16_f32 v{dst+i//2}, v{src+i}, v{src+i+1}')

    def split_a(self, c, D, T):
        I = self.I
        I(f'v_cvt_pk_bf16_f32 v{D+1}, v{c}, v{c}')
        I(f'v_and_b32 v{T}, 0xffff0000, v{D+1}')
        I(f'v_sub_f32 v{T}, v{c}, v{T}')
        I(f'v_cvt_pk_bf16_f32 v{D}, v{c}, v{T}')
    def split_b(self, m, D, T):
        I = self.I
        I(f'v_cvt_pk_bf16_f32 v{D}, v{m}, v{m}')
        I(f'v_and_b32 v{T}, 0xffff0000, v{D}')
        I(f'v_sub_f32 v{T}, v{m}, v{T}')
        I(f'v_cvt_pk_bf16_f32 v{D+1}, v{T}, 0')

    def sel_mat(self, D, T):
        I = self.I
        I(f'v_and_b32 v{T}, 1, v2'); I(f'v_lshlrev_b32 v{T}, 4, v{T}')
        I(f'v_mov_b32 v{D}, 0x3f80'); I(f'v_lshlrev_b32 v{T}, v{T}, v{D}')
        I(f'v_and_b32 v{T+1}, 1, v3'); I(f'v_lshlrev_b32 v{T+1}, 2, v{T+1}')
        I(f'v_lshrrev_b32 v{D}, 1, v2'); I(f'v_sub_u32 v{T+1}, v{D}, v{T+1}')
        for i in range(4):
            I(f'v_cmp_eq_u32 vcc, {i}, v{T+1}')
            I(f'v_cndmask_b32 v{D+i}, 0, v{T}, vcc')

    def softmax2(self, P, OUT, T, vM, C):
        I = self.I
        X, Y, Z = T, T+1, T+2
        E = T+4
        I(f'v_max3_f32 v{X}, v{P}, v{P+1}, v{P+2}')
        I(f'v_max3_f32 v{Y}, -v{P}, -v{P+1}, -v{P+2}')
        I(f'v_max3_f32 v{X}, v{X}, v{P+3}, v{P+4}')
        I(f'v_max3_f32 v{Y}, v{Y}, -v{P+3}, -v{P+4}')
        I(f'v_max3_f32 v{X}, v{X}, v{P+5}, v{P+6}')
        I(f'v_max3_f32 v{Y}, v{Y}, -v{P+5}, -v{P+6}')
        I(f'v_max_f32 v{X}, v{X}, v{P+7}')
        I(f'v_max_f32_e64 v{Y}, v{Y}, -v{P+7}')
        self.allred2(X, Y, Z, 'v_max_f32')
        I(f'v_pk_mul_f32 {vr(X,2)}, {vr(X,2)}, {vr(C,2)} op_sel_hi:[1,0] neg_lo:[1,0] neg_hi:[1,0]')
        for i in range(0, 8, 2):
            I(f'v_pk_fma_f32 {vr(E+i,2)}, {vr(P+i,2)}, {vr(C,2)}, {vr(X,2)} op_sel_hi:[1,0,0]')
            I(f'v_pk_fma_f32 {vr(E+8+i,2)}, {vr(P+i,2)}, {vr(C,2)}, {vr(X,2)} op_sel:[0,0,1] op_sel_hi:[1,0,1] neg_lo:[1,0,0] neg_hi:[1,0,0]')
        for i in range(16):
            I(f'v_exp_f32 v{E+i}, v{E+i}')
        A, B = T+20, T+22
        for (S, b) in ((X, E), (Y, E+8)):
            I(f'v_pk_add_f32 {vr(A,2)}, {vr(b,2)}, {vr(b+2,2)}')
            I(f'v_pk_add_f32 {vr(B,2)}, {vr(b+4,2)}, {vr(b+6,2)}')
            I(f'v_pk_fma_f32 {vr(A,2)}, {vr(B,2)}, {vr(vM,2)}, {vr(A,2)} op_sel_hi:[1,0,1]')
            I(f'v_add_f32 v{S}, v{A}, v{A+1}')
        self.allred2(X, Y, Z, 'v_add_f32')
        I(f'v_rcp_f32 v{X}, v{X}')
        I(f'v_rcp_f32 v{Y}, v{Y}')
        I(f'v_pk_mul_f32 {vr(A,2)}, {vr(X,2)}, {vr(vM,2)} op_sel_hi:[1,0]')
        for i in (0, 2):
            I(f'v_pk_mul_f32 {vr(E+i,2)}, {vr(E+i,2)}, {vr(X,2)} op_sel_hi:[1,0]')
            I(f'v_pk_mul_f32 {vr(E+8+i,2)}, {vr(E+8+i,2)}, {vr(X,2)} op_sel:[0,1] op_sel_hi:[1,1]')
        for i in (4, 6):
            I(f'v_pk_mul_f32 {vr(E+i,2)}, {vr(E+i,2)}, {vr(A,2)} op_sel_hi:[1,0]')
            I(f'v_pk_mul_f32 {vr(E+8+i,2)}, {vr(E+8+i,2)}, {vr(A,2)} op_sel:[0,1] op_sel_hi:[1,1]')
        self.cvt(OUT, E, 16)

    def halo_addr(self, V, T1, T2):
        I = self.I; L = self.L
        t0, t1, t2, t3 = sT[0:4]
        I(f's_add_u32 s{t0}, s{sG}, 1'); I(f's_and_b32 s{t0}, s{t0}, 31'); I(f's_mul_i32 s{t0}, s{t0}, {L.GS}')
        I(f's_add_u32 s{t0}, s{t0}, {WS_G+L.T0-TILE+14*16}')
        I(f's_sub_u32 s{t1}, s{sG}, 1'); I(f's_and_b32 s{t1}, s{t1}, 31'); I(f's_mul_i32 s{t1}, s{t1}, {L.GS}')
        I(f's_add_u32 s{t1}, s{t1}, {WS_G+L.T0+4*TILE}')
        I(f's_cmp_eq_u32 s{sJ}, 7')
        I(f's_cselect_b32 s{t0}, {BIG}, s{t0}'); I(f's_cselect_b32 s{t1}, {BIG}, s{t1}')
        I(f's_cmp_eq_u32 s{sW}, 7')
        I(f's_cselect_b32 s{t0}, s{t0}, {BIG}'); I(f's_cselect_b32 s{t1}, s{t1}, {BIG}')
        I(f'v_mov_b32 v{T1}, s{t0}'); I(f'v_mov_b32 v{T2}, s{t1}')
        I('v_cmp_eq_u32 vcc, 0, v3')
        I(f'v_cndmask_b32 v{V}, v{T2}, v{T1}, vcc')
        I(f'v_mov_b32 v{T1}, {BIG}')
        I('v_cmp_gt_u32 vcc, 2, v3')
        I(f'v_cndmask_b32 v{V}, v{T1}, v{V}, vcc')
        I(f'v_and_b32 v{T1}, 7, v1')
        I(f's_lshl_b32 s{t2}, s{sJ}, 3')
        I(f'v_add_u32 v{T1}, s{t2}, v{T1}')
        I(f'v_lshl_add_u32 v{V}, v{T1}, 8, v{V}')
        I(f'v_bfe_u32 v{T1}, v1, 3, 1')
        I(f'v_lshl_add_u32 v{V}, v{T1}, 4, v{V}')
        I(f's_cmp_eq_u32 s{sG}, 31'); I(f's_cselect_b32 s{t2}, 0xffff, 0')
        I(f's_cmp_eq_u32 s{sG}, 0'); I(f's_cselect_b32 s{t3}, 0xffff0000, 0')
        I(f's_or_b32 vcc_lo, s{t2}, s{t3}'); I('s_mov_b32 vcc_hi, 0')

    def p1(self):
        e, I, L = self.e, self.I, self.L
        t0, t1, t2, t3 = sT[0:4]
        I('s_cmp_ge_u32 s2, 256')
        I('s_cbranch_scc1 Lend')
        self.stamp(0)
        I('s_load_dwordx4 s[16:19], s[0:1], 0')
        I('s_load_dwordx4 s[36:39], s[0:1], 80')
        I('s_load_dwordx8 s[20:27], s[0:1], 16')
        I('s_load_dwordx8 s[28:35], s[0:1], 48')
        I('v_lshrrev_b32 v5, 6, v0')
        I('v_and_b32 v1, 63, v0')
        I(f's_and_b32 s{t0}, s2, 7')
        I(f's_lshr_b32 s{t1}, s2, 3')
        I(f'v_readfirstlane_b32 s{sW}, v5')
        I(f's_lshl_b32 s{sL}, s{t0}, 5')
        I(f's_or_b32 s{sL}, s{sL}, s{t1}')
        I(f's_lshr_b32 s{sRB}, s{sL}, 4')
        I(f's_and_b32 s{sH}, s{sL}, 15')
        I('v_and_b32 v2, 15, v1')
        I('v_lshrrev_b32 v3, 4, v1')
        sCX = sT[5:12]; sCW = [82, 83, 84, 85, 86, 87, 88]
        I(f's_and_b32 s{t0}, s{sRB}, 1'); I(f's_mul_i32 s{t0}, s{t0}, 3'); I(f's_add_u32 s{t0}, s{t0}, s{sH}')
        I(f's_mul_i32 s{t1}, s{t0}, 37'); I(f's_lshr_b32 s{t1}, s{t1}, 8'); I(f's_mul_i32 s{t1}, s{t1}, 7')
        I(f's_sub_u32 s{t0}, s{t0}, s{t1}')
        if self.o.get('norot'): I(f's_mov_b32 s{t0}, 0')
        I(f's_lshl_b32 s{sCX[0]}, s{t0}, 7')
        for i in range(1, 7):
            I(f's_add_u32 s{sCX[i]}, s{sCX[i-1]}, 128'); I(f's_cmp_eq_u32 s{sCX[i]}, 896'); I(f's_cselect_b32 s{sCX[i]}, 0, s{sCX[i]}')
        for i in range(7): I(f's_mul_i32 s{sCW[i]}, s{sCX[i]}, 1344')
        I('v_lshrrev_b32 v9, 2, v1')
        I('v_mul_u32_u24 v9, 2688, v9')
        I('v_lshrrev_b32 v10, 5, v1')
        I('v_lshlrev_b32 v10, 1, v10')
        I('v_and_b32 v11, 3, v1')
        I('v_xor_b32 v10, v10, v11')
        I('v_lshl_add_u32 v9, v10, 4, v9')
        I(f's_mul_i32 s{t0}, s{sH}, 56'); I(f's_andn2_b32 s{t0}, s{t0}, 15')
        I(f'v_add_u32 v0, s{t0}, v9')
        I(f's_lshr_b32 s{t1}, s{sW}, 1'); I(f's_and_b32 s{t2}, s{sW}, 1')
        I(f's_mul_i32 s{t0}, s{t1}, 43008'); I(f's_mul_i32 s{t3}, s{t2}, 896'); I(f's_add_u32 s{t0}, s{t0}, s{t3}')
        I(f's_add_u32 s{t0}, s{t0}, 896')
        I(f'v_add_u32 v9, s{t0}, v0')
        sMW, sMX = sT[4], 89
        I(f's_mul_i32 s{sMW}, s{t2}, 28672'); I(f's_lshl_b32 s{t1}, s{t1}, 10'); I(f's_add_u32 s{sMW}, s{sMW}, s{t1}')
        I(f's_lshl_b32 s{t0}, s{sRB}, 7'); I(f's_lshl_b32 s{t1}, s{sW}, 4'); I(f's_add_u32 s{t0}, s{t0}, s{t1}')
        I('v_lshrrev_b32 v10, 3, v1'); I(f'v_add_u32 v10, s{t0}, v10'); I('v_mul_u32_u24 v10, 896, v10')
        I('v_and_b32 v11, 7, v1'); I('v_xor_b32 v11, v11, v3')
        I('v_lshl_add_u32 v10, v11, 4, v10')
        I('v_xor_b32 v11, 64, v10'); I(f'v_add_u32 v11, {8*896-1024}, v11')
        I(f's_mul_i32 s{sMX}, s{sW}, {XS}'); I(f's_add_u32 s{sMX}, s{sMX}, {XB}')
        I('v_lshlrev_b32 v4, 4, v1')
        I('v_mov_b32 v13, 0')
        e.wait_lg0()
        self.build_srd('wqkv'); self.build_srd('x')
        def xdma(i):
            I(f's_add_u32 m0, s{sMX}, {(i % 6)*2048}')
            I(f'buffer_load_dwordx4 v10, {srd("x")}, s{sCX[i]} offen lds', tag=f'c{i}')
            I(f'buffer_load_dwordx4 v11, {srd("x")}, s{sCX[i]} offen offset:1024 lds', tag=f'c{i}')
        for i in range(7):
            I(f's_add_u32 m0, s{sMW}, {i*4096}')
            I(f'buffer_load_dwordx4 v9, {srd("wqkv")}, s{sCW[i]} offen lds', tag=f'c{i}')
            if i < 6: xdma(i)
        self.stamp('is')
        sWQ = [82, 83, 84, 85]
        I(f's_cmp_ge_u32 s{sW}, 4')
        for i in range(3): I(f's_cselect_b32 s{sWQ[i]}, s{sCW[2*i+1]}, s{sCW[2*i]}')
        I(f's_cselect_b32 s{sWQ[3]}, {BIG}, s{sCW[6]}')
        self.build_srd('ws'); self.build_srd('phi')
        I(f's_lshr_b32 s{sG}, s{sL}, 3')
        I(f's_and_b32 s{sJ}, s{sL}, 7')
        I(f's_and_b32 s{sODD}, s{sL}, 1')
        I(f'buffer_load_dword v14, v13, {WS}, 0 offen sc1')
        I(f's_lshl_b32 s{t0}, s{sH}, 4'); I(f's_or_b32 s{t0}, s{t0}, s{sRB}'); I(f's_lshl_b32 s{t0}, s{t0}, 12')
        I(f's_lshl_b32 s{t1}, s{sW}, 9'); I(f's_add_u32 s{t0}, s{t0}, s{t1}'); I(f's_add_u32 s{t0}, s{t0}, {WS_KVP}')
        I('v_lshrrev_b32 v15, 1, v3'); I('v_lshlrev_b32 v15, 8, v15'); I('v_lshl_add_u32 v15, v2, 4, v15')
        I('v_and_b32 v16, 1, v3'); I('v_lshl_add_u32 v15, v16, 3, v15')
        I(f'v_add_u32 v31, s{t0}, v15')
        I('v_mov_b32 v24, -1'); I('v_mov_b32 v25, -1')
        I(f'buffer_store_dwordx2 v[24:25], v31, {WS}, 0 offen sc1')
        I(f's_mul_i32 s{t0}, s{sH}, 1568'); I(f's_lshl_b32 s{t1}, s{sW}, 8'); I(f's_add_u32 s{t0}, s{t0}, s{t1}')
        I(f's_add_u32 m0, s{t1}, {L_PHI}')
        I('v_lshlrev_b32 v16, 2, v1')
        I(f'buffer_load_dword v16, {srd("phi")}, s{t0} offen lds')
        sIDX = sX1
        I(f's_and_b32 s{sIDX}, s{sL}, 31')
        I(f'v_mov_b32 v20, {BIG}')
        if self.o['pfq']:
            I(f's_mul_i32 s{t0}, s{sIDX}, 14'); I(f's_lshl_b32 s{t1}, s{sW}, 1'); I(f's_add_u32 s{t0}, s{t0}, s{t1}')
            I(f's_mul_i32 s{t0}, s{t0}, 2688')
            I(f's_cmp_eq_u32 s{sW}, 7'); I(f's_cselect_b32 s{t0}, {BIG}, s{t0}')
            I('v_lshrrev_b32 v15, 3, v1'); I('v_mul_u32_u24 v15, 2688, v15'); I('v_and_b32 v16, 7, v1'); I('v_min_u32 v16, 6, v16')
            I('v_lshl_add_u32 v15, v16, 7, v15'); I(f'v_add_u32 v15, s{t0}, v15')
            I('v_cmp_gt_u32 vcc, 16, v1'); I('v_cndmask_b32 v15, v20, v15, vcc')
            I(f'buffer_load_dword v250, v15, {srd("wqkv")}, 0 offen')
        I(f's_getpc_b64 s[{sM1}:{sM1+1}]')
        e.label('Lpc')
        I(f's_add_u32 s{sM1}, s{sM1}, {KN}-Lpc')
        I(f's_addc_u32 s{sM1+1}, s{sM1+1}, -1')
        I(f's_lshl_b32 s{t0}, s{sIDX}, 3'); I(f's_add_u32 s{t0}, s{t0}, s{sW}'); I(f's_lshl_b32 s{t0}, s{t0}, 8')
        I('v_and_b32 v15, 1, v1'); I('v_lshlrev_b32 v15, 7, v15'); I(f'v_add_u32 v15, s{t0}, v15')
        I(f'v_min_u32 v15, Lcodeend-{KN}, v15')
        I(f'global_load_dword v251, v15, s[{sM1}:{sM1+1}]')
        self.halo_addr(21, 22, 23)
        I('s_nop 1')
        for i in range(4): I(f'v_cndmask_b32 v{24+i}, -1, v13, vcc')
        I(f'buffer_store_dwordx4 v[24:27], v21, {WS}, 0 offen sc1')
        for n in ('wo', 'w1', 'w2', 'w3', 'w4', 'out'): self.build_srd(n)
        I(f's_mul_i32 s{sGB}, s{sG}, {L.GS}')
        I(f's_add_u32 s{sGB}, s{sGB}, {WS_G}')
        I(f's_mov_b32 s{sSPIN}, 0x8000')
        for i in range(4): I(f'v_mov_b32 v{32+i}, 0x3f803f80')
        I('v_bfe_u32 v28, v1, 2, 2')
        I('v_and_b32 v29, 3, v1')
        I('v_lshl_add_u32 v15, v3, 3, v28')
        I('v_lshlrev_b32 v15, 6, v15')
        I('v_lshl_add_u32 v15, v29, 3, v15')
        I('v_and_b32 v16, 1, v3')
        I('v_lshl_add_u32 v5, v16, 5, v15')
        I('v_xor_b32 v6, 32, v5')
        I(f's_and_b32 s{t0}, s{sW}, 1'); I(f's_lshl_b32 s{t0}, s{t0}, 5')
        I(f'v_xor_b32 v7, s{t0}, v5')
        I(f's_bfe_u32 s{t0}, s{sW}, 0x10001'); I(f's_mul_i32 s{t0}, s{t0}, 28672')
        I(f's_lshr_b32 s{t1}, s{sW}, 2'); I(f's_lshl_b32 s{t2}, s{t1}, 11'); I(f's_add_u32 s{t0}, s{t0}, s{t2}')
        I(f'v_add_u32 v7, s{t0}, v7')
        I(f's_and_b32 s{t0}, s{sW}, 3'); I(f's_lshl_b32 s{t0}, s{t0}, 8'); I(f's_lshl_b32 s{t1}, s{t1}, 7')
        I(f's_add_u32 s{t0}, s{t0}, s{t1}'); I(f's_add_u32 s{t0}, s{t0}, {L_CS}')
        I(f'v_lshlrev_b32 v8, 3, v2'); I(f'v_add_u32 v8, s{t0}, v8')
        I('v_lshrrev_b32 v15, 1, v2'); I('v_xor_b32 v15, v15, v3'); I('v_lshlrev_b32 v15, 4, v15')
        I('v_lshl_add_u32 v12, v2, 7, v15'); I(f'v_add_u32 v12, s{sMX}, v12')
        I('v_xor_b32 v21, 64, v12')
        I('v_lshl_add_u32 v15, v3, 2, v28')
        I(f's_lshl_b32 s{t0}, s{sODD}, 2')
        I(f'v_subrev_u32 v15, s{t0}, v15')
        I('v_mul_i32_i24 v15, 56, v15')
        I(f'v_add_u32 v15, {L_PHI}, v15')
        I('v_lshl_add_u32 v17, v29, 3, v15')
        I('v_add_u32 v16, 4, v29'); I('v_min_u32 v16, 6, v16')
        I('v_lshl_add_u32 v18, v16, 3, v15')
        I('v_cmp_ne_u32 vcc, 3, v3')
        I('v_cndmask_b32 v22, 0, 1.0, vcc')
        I('v_mul_u32_u24 v23, 224, v2')
        I('v_xor_b32 v15, v28, v3')
        I('v_lshl_add_u32 v23, v15, 3, v23')
        I(f's_add_u32 s{t0}, s{sMX}, 8192')
        I(f'v_add_u32 v23, s{t0}, v23')
        I('v_lshrrev_b32 v15, 2, v1')
        I('v_mul_u32_u24 v15, 224, v15')
        I('v_xor_b32 v16, v29, v3')
        I('v_lshl_add_u32 v15, v16, 3, v15')
        I(f's_lshr_b32 s{t0}, s{sW}, 1'); I(f's_lshl_b32 s{t0}, s{t0}, 5'); I(f's_add_u32 s{t0}, s{t0}, {XB+8192}')
        I(f'v_add_u32 v24, s{t0}, v15')
        I(f's_and_b32 s{t0}, s{sW}, 1'); I(f's_lshl_b32 s{t0}, s{t0}, 5'); I(f's_add_u32 s{t0}, s{t0}, {XB+8192+128}')
        I(f'v_add_u32 v25, s{t0}, v15')
        I(f'v_add_u32 v26, {4*XS}, v24'); I(f'v_add_u32 v27, {4*XS}, v25')
        I('v_and_b32 v28, 31, v1'); I('v_lshlrev_b32 v28, 3, v28'); I(f'v_add_u32 v28, {L_CS}, v28')
        I('v_cmp_gt_u32 vcc, 2, v3'); I('v_mov_b32 v15, 0xbb124925')
        I('v_cndmask_b32 v29, 0, v15, vcc')
        I('v_lshlrev_b32 v15, 2, v3'); I('v_sub_u32 v15, v2, v15')
        for r in range(4):
            I(f'v_cmp_eq_u32 vcc, {r}, v15'); I(f'v_cndmask_b32 v{252+r}, 0, 1.0, vcc')
        AX, BX = 208, 224
        for t in range(4): I(f'v_mov_b32 v{AX+4*t+2}, 0'); I(f'v_mov_b32 v{AX+4*t+3}, 0')
        I(f'v_mov_b32 v{BX+2}, 0'); I(f'v_mov_b32 v{BX+3}, 0')
        I(f's_and_b32 s{t0}, s{sW}, 3'); I(f's_mul_i32 s{t0}, s{t0}, 43008')
        I(f'v_add_u32 v0, s{t0}, v0')
        I(f's_mul_i32 s{t0}, s{sW}, 13'); I(f'v_add_u32 v15, s{t0}, v1')
        I(f's_mul_i32 s{t0}, s{sIDX}, 98'); I(f'v_add_u32 v16, s{t0}, v15'); I('v_lshlrev_b32 v16, 7, v16')
        I('v_cmp_gt_u32 vcc, 98, v15'); I('v_cndmask_b32 v16, v20, v16, vcc')
        I('v_cmp_gt_u32 vcc, 13, v1'); I('v_cndmask_b32 v246, v20, v16, vcc')
        I(f's_lshl_b32 s{t0}, s{sIDX}, 3'); I(f's_add_u32 s{t0}, s{t0}, s{sW}'); I(f's_mul_i32 s{t0}, s{t0}, 49')
        I(f'v_add_u32 v16, s{t0}, v1'); I('v_lshlrev_b32 v16, 7, v16')
        I('v_cmp_gt_u32 vcc, 49, v1'); I('v_cndmask_b32 v247, v20, v16, vcc')
        I(f's_lshl_b32 s{t0}, s{sJ}, 3'); I(f's_add_u32 s{t0}, s{t0}, s{sW}')
        I(f's_mul_i32 s{t1}, s{t0}, {7*128}'); I(f's_lshl_b32 s{t2}, s{t0}, 8'); I(f's_min_u32 s{t2}, s{t2}, {70*128}')
        I(f's_add_u32 s{t2}, s{t2}, {L.FLG}')
        I('v_and_b32 v15, 7, v1'); I('v_min_u32 v15, 6, v15'); I('v_lshlrev_b32 v15, 7, v15'); I(f'v_add_u32 v15, s{t1}, v15')
        I('v_bfe_u32 v16, v1, 3, 1'); I(f'v_mul_u32_u24 v16, {AS}, v16'); I('v_add_u32 v15, v15, v16')
        I('v_and_b32 v16, 1, v1'); I('v_lshlrev_b32 v16, 7, v16'); I(f'v_add_u32 v16, s{t2}, v16')
        I('v_cmp_gt_u32 vcc, 16, v1'); I('v_cndmask_b32 v248, v16, v15, vcc')
        I('v_add_u32 v19, 896, v17'); I('v_add_u32 v20, 896, v18')
        I(f's_mov_b32 s{sX0}, s{sMX}'); sMX = sX0
        I(f's_cmp_eq_u32 s{sODD}, 1')
        I(f's_cselect_b32 s{sM0}, 0xffff, 0'); I(f's_mov_b32 s{sM0+1}, 0')
        I(f's_cselect_b32 s{sM1+1}, 0, 0xffff0000'); I(f's_mov_b32 s{sM1}, 0')
        self.stamp('su')
        X, AR, CF, CSA = 76, 132, 196, 204
        ACCK, ACCV = 52, 60
        def reads(i):
            I(f'ds_read_b64_tr_b16 {vr(CF+4*(i&1),2)}, v7 offset:{i*4096}')
            I(f'ds_read_b64_tr_b16 {vr(CF+4*(i&1)+2,2)}, v7 offset:{i*4096+256}')
            for ee in range(2):
                m = 2*i + ee
                I(f'ds_read_b128 {vr(X+4*m,4)}, v{(12,21)[ee]} offset:{(i%6)*2048}')
                for ti in range(4):
                    b = AR + 16*(m & 3) + 4*ti
                    off = (ti >> 1)*28672 + m*2048
                    I(f'ds_read_b64_tr_b16 {vr(b,2)}, v{5+(ti&1)} offset:{off}')
                    I(f'ds_read_b64_tr_b16 {vr(b+2,2)}, v{5+(ti&1)} offset:{off+256}')
        def kstep(m):
            xb = vr(X+4*m, 4)
            z = m == 0
            I(f'{MF16} v[72:75], {xb}, {xb}, ' + ('0' if z else 'v[72:75]'))
            I(f'{MF16} v[68:71], v[32:35], {xb}, ' + ('0' if z else 'v[68:71]'))
            for ti in range(4):
                acc = vr(ACCK + 4*ti, 4)
                I(f'{MF16} {acc}, {vr(AR+16*(m&3)+4*ti,4)}, {xb}, ' + ('0' if z else acc))
        e.wait_tag('c0'); e.barrier()
        self.stamp('c0')
        reads(0)
        for i in range(7):
            I(f'{MF16} {vr(CSA,4)}, v[32:35], {vr(CF+4*(i&1),4)}, ' + ('0' if i == 0 else vr(CSA, 4)))
            kstep(2*i)
            if i == 6:
                self.split_a(CSA, CF, CF+2)
                I(f'ds_write_b64 v8, {vr(CF,2)}')
            if i < 6:
                e.wait_tag(f'c{i+1}'); e.barrier()
                self.stamp(f'c{i+1}')
                reads(i + 1)
            kstep(2*i + 1)
            if i == 0:
                xdma(6)
            if i == 3:
                for b in range(4):
                    I(f's_add_u32 m0, s{sMX}, {4096 + b*1024}')
                    I(f'buffer_load_dwordx4 v0, {srd("wqkv")}, s{sWQ[b]} offen lds', tag='wq')
                for ch in self.o['pf']:
                    if ch == 'o': I(f'buffer_load_dword v0, v246, {srd("wo")}, 0 offen')
                    if ch == '1': I(f'buffer_load_dword v0, v246, {srd("w1")}, 0 offen')
                    if ch == '2': I(f'buffer_load_dword v0, v246, {srd("w2")}, 0 offen')
                    if ch == '3': I(f'buffer_load_dword v0, v247, {srd("w3")}, 0 offen')
                    if ch == '4': I(f'buffer_load_dword v0, v247, {srd("w4")}, 0 offen')
                    if ch == 'g': I(f'buffer_load_dword v0, v248, {WS}, s{sGB} offen sc1')
                    e.vm[-1]['dst'] = set()
            if i == 5:
                I(f'v_readfirstlane_b32 s{sTAG}, v14')
                I(f's_add_u32 s{sTAG}, s{sTAG}, 0x9E3779B9')
                I(f's_andn2_b32 s{sTAG}, s{sTAG}, 15')
                I(f's_getreg_b32 s{sMODE}, hwreg(HW_REG_XCC_ID)')
                I(f's_and_b32 s{sMODE}, s{sMODE}, 15')
                I(f's_or_b32 s{sMODE}, s{sMODE}, s{sTAG}')
                I(f'v_mov_b32 v15, s{sMODE}')
                I(f's_lshl_b32 s{t0}, s{sL}, 6'); I(f's_add_u32 s{t0}, s{t0}, {WS_HELLO}')
                I(f's_cmp_eq_u32 s{sW}, 7'); I(f's_cselect_b32 s{t0}, s{t0}, {BIG}')
                I(f'v_mov_b32 v16, s{t0}')
                I(f'buffer_store_dword v15, v16, {WS}, 0 offen sc1')
                I('ds_read_b64_tr_b16 v[36:37], v17'); I('ds_read_b64_tr_b16 v[38:39], v19')
                I('ds_read_b64_tr_b16 v[40:41], v18'); I('ds_read_b64_tr_b16 v[42:43], v20')
        I(f's_mov_b32 s{sC448}, 0x3b124925')
        I(f's_mov_b32 s{sL2E}, 0x3fb8aa3b')
        for r in (36, 37, 40, 41): I(f'v_cndmask_b32 v{r}, v{r}, v13, s[{sM0}:{sM0+1}]')
        for r in (38, 39, 42, 43): I(f'v_cndmask_b32 v{r}, v{r}, v13, s[{sM1}:{sM1+1}]')
        e.wait_lg0(); e.barrier()
        for t in range(4): I(f'ds_read_b64 {vr(AX+4*t,2)}, v28 offset:{t*256}')
        self.stamp(2)
        T = 228
        I(f'v_mul_f32 v{T}, v68, v29')
        self.split_b(T, BX, T+1)
        I(f'v_pk_mul_f32 v[72:73], v[72:73], v[252:253]')
        I(f'v_pk_fma_f32 v[72:73], v[74:75], v[254:255], v[72:73]')
        for ti in range(4):
            acc = vr(ACCK + 4*ti, 4)
            I(f'{MF16} {acc}, {vr(AX+4*ti,4)}, {vr(BX,4)}, {acc}')
        I('v_add_f32 v72, v72, v73')
        I('v_mov_b32 v73, v72')
        I('v_permlane32_swap_b32 v72, v73'); I('v_add_f32 v72, v72, v73'); I('v_mov_b32 v73, v72')
        I('v_permlane16_swap_b32 v72, v73'); I('v_add_f32 v72, v72, v73')
        self.cvt(T+4, ACCK, 8)
        I(f'{MF16} v[52:55], v[36:39], {vr(T+4,4)}, 0')
        I(f'{MF16} v[56:59], v[40:43], {vr(T+4,4)}, 0')
        I(f'v_mul_f32 v73, s{sC448}, v68')
        I('v_mul_f32 v74, v73, v73')
        I(f'v_fma_f32 v74, v72, s{sC448}, -v74')
        I('v_add_f32 v74, 0x3727c5ac, v74')
        I('v_rsq_f32 v70, v74')
        I(f'v_mul_f32 v30, s{sL2E}, v70')
        for i in range(0, 8, 2):
            I(f'v_pk_mul_f32 {vr(ACCV+i,2)}, {vr(ACCV+i,2)}, v[70:71] op_sel_hi:[1,0]')
        I(f'v_cndmask_b32 v60, v60, 1.0, s[{sM0}:{sM0+1}]')
        I(f'v_cndmask_b32 v64, v64, 1.0, s[{sM1}:{sM1+1}]')
        self.cvt(72, ACCV, 8)
        I('ds_write_b64 v23, v[72:73] offset:128')
        I('ds_write_b64 v23, v[74:75] offset:160')
        PH = 60
        self.softmax2(52, PH, T, 22, 30)
        for t in range(4):
            I(f'ds_write_b64 v23, {vr(PH+2*t,2)} offset:{t*32}')
        e.wait_tag('wq')
        e.wait_lg0(); e.barrier()
        self.stamp(3)
        KA, KB = 132, 148
        for ks in range(4):
            a, b = (24, 25) if ks < 2 else (26, 27)
            for ee in range(2):
                I(f'ds_read_b64_tr_b16 {vr(KA+4*ks+2*ee,2)}, v{a} offset:{((2*ks+ee)&3)*XS}')
            for ee in range(2):
                I(f'ds_read_b64_tr_b16 {vr(KB+4*ks+2*ee,2)}, v{b} offset:{((2*ks+ee)&3)*XS}')
        I('v_lshrrev_b32 v15, 1, v3'); I(f'v_mul_u32_u24 v15, {XS-1024}, v15'); I(f'v_add_u32 v15, {XB+4096}, v15')
        I('v_add_u32 v5, v5, v15'); I('v_add_u32 v6, v6, v15')
        for ks in range(4):
            I(f'{MF16} v[52:55], {vr(KA+4*ks,4)}, {vr(KB+4*ks,4)}, ' + ('0' if ks == 0 else 'v[52:55]'))
        I(f'v_add_u32 v9, {6*XS}, v5'); I(f'v_add_u32 v10, {6*XS}, v6')
        I(f's_and_b32 s{t0}, s{sW}, 1'); I(f's_lshl_b32 s{t1}, s{t0}, 5')
        I(f'v_xor_b32 v7, s{t1}, v5')
        I(f's_lshr_b32 s{t1}, s{sW}, 1'); I(f's_mul_i32 s{t2}, s{t1}, {2*XS}')
        I(f'v_add_u32 v7, s{t2}, v7')
        self.cvt(56, 52, 4)
        I(f'buffer_store_dwordx2 v[56:57], v31, {WS}, 0 offen sc1')
        self.stamp(4)
        I(f's_lshl_b32 s{t0}, s{t0}, 9'); I(f's_lshl_b32 s{t1}, s{t1}, 7'); I(f's_add_u32 s{t0}, s{t0}, s{t1}')
        I(f's_add_u32 s{t0}, s{t0}, {L_CSQ}')
        I(f'v_lshlrev_b32 v8, 3, v2'); I(f'v_add_u32 v8, s{t0}, v8')
        QC = 164
        for i in range(4):
            I(f'ds_read_b64_tr_b16 {vr(QC+4*i,2)}, v7 offset:{i*1024}')
            I(f'ds_read_b64_tr_b16 {vr(QC+4*i+2,2)}, v7 offset:{i*1024+256}')
        QR = [132, 140, 148, 156, 180, 188]
        def qread(m):
            for t in range(2):
                b = QR[m % 6] + 4*t
                vb = (5, 6)[t] if (m & 3) < 3 else (9, 10)[t]
                off = ((2*m) & 7)*XS + (m >> 2)*1024 if (m & 3) < 3 else (m >> 2)*1024
                I(f'ds_read_b64_tr_b16 {vr(b,2)}, v{vb} offset:{off}')
                I(f'ds_read_b64_tr_b16 {vr(b+2,2)}, v{vb} offset:{off+256}')
        qread(0); qread(1)
        I(f's_and_b32 s{sA}, s{sW}, 3')
        I('v_lshrrev_b32 v11, 3, v1'); I(f's_lshl_b32 s{t0}, s{sA}, 3'); I(f'v_add_u32 v11, s{t0}, v11')
        I('v_mul_u32_u24 v11, 896, v11')
        I('v_bfe_u32 v15, v1, 4, 1'); I('v_lshlrev_b32 v15, 1, v15')
        I(f's_and_b32 s{t0}, s{sA}, 1'); I(f's_lshl_b32 s{t0}, s{t0}, 2')
        I('v_and_b32 v16, 7, v1'); I('v_xor_b32 v15, v15, v16'); I(f'v_xor_b32 v15, s{t0}, v15')
        I('v_lshl_add_u32 v11, v15, 4, v11')
        I(f's_min_u32 s{t0}, s{sJ}, 6'); I(f's_lshl_b32 s{t0}, s{t0}, 7'); I(f'v_add_u32 v11, s{t0}, v11')
        sQM, sQS = sT[4], sT[5]
        I(f's_lshl_b32 s{sQM}, s{sW}, 10')
        I(f's_lshr_b32 s{sQS}, s{sW}, 2'); I(f's_mul_i32 s{sQS}, s{sQS}, {32*896}')
        def sq8(name, region, tag):
            for t in range(7):
                I(f's_add_u32 m0, s{sQM}, {region + t*8192}')
                I(f's_add_u32 s{t1}, s{sQS}, {t*64*896}')
                I(f'buffer_load_dwordx4 v11, {srd(name)}, s{t1} offen lds', tag=tag)
        sq8('wo', RA, 'wo')
        for i in range(4):
            I(f'{MF16} {vr(CSA,4)}, v[32:35], {vr(QC+4*i,4)}, ' + ('0' if i == 0 else vr(CSA, 4)))
        for m in range(2, 5): qread(m)
        for m in range(14):
            if m + 5 < 14: qread(m + 5)
            for t in range(2):
                acc = vr(44 + 4*t, 4)
                I(f'{MF16} {acc}, {vr(QR[m%6]+4*t,4)}, {vr(X+4*m,4)}, ' + ('0' if m == 0 else acc))
            if m == 1:
                self.split_a(CSA, CF, CF+2)
                I(f'ds_write_b64 v8, {vr(CF,2)}')
            if m == 3:
                I(f'v_mul_f32 v{T}, 0xbb124925, v68')
                self.split_b(T, BX, T+1)
                I('v_lshlrev_b32 v28, 3, v1'); I(f'v_add_u32 v28, {L_CSQ}, v28')
            if m == 5:
                self.w3_addr()
        e.wait_lg0(); e.barrier()
        self.stamp('3b')
        for t in range(2): I(f'ds_read_b64 {vr(AX+4*t,2)}, v28 offset:{t*512}')
        sq8('w1', RB, 'w1')
        for t in range(2):
            acc = vr(44 + 4*t, 4)
            I(f'{MF16} {acc}, {vr(AX+4*t,4)}, {vr(BX,4)}, {acc}')
        I(f's_mul_i32 s{t2}, s{sA}, {US}'); I(f's_lshr_b32 s{t3}, s{sW}, 2'); I(f's_lshl_b32 s{t0}, s{t3}, 10')
        I(f's_add_u32 s{t2}, s{t2}, s{t0}'); I(f's_mul_i32 s{t3}, s{t3}, {8*3584}')
        for u in range(5):
            I(f's_add_u32 m0, s{t2}, {RC + u*2048}')
            I(f's_add_u32 s{t1}, s{t3}, {16*u*3584}')
            I(f'buffer_load_dwordx4 v12, {srd("w3")}, s{t1} offen lds', tag='w3')
        self.cvt(T+4, 44, 8)
        I(f'{MF16} v[44:47], v[36:39], {vr(T+4,4)}, 0')
        I(f'{MF16} v[48:51], v[40:43], {vr(T+4,4)}, 0')

    def w3_addr(self):
        I = self.I
        t0, t1 = sT[0], sT[1]
        I(f's_min_u32 s{t0}, s{sJ}, 6'); I(f's_lshl_b32 s{t0}, s{t0}, 9'); I(f's_lshl_b32 s{t1}, s{sA}, 7'); I(f's_add_u32 s{t0}, s{t0}, s{t1}')
        I('v_lshrrev_b32 v15, 3, v1'); I('v_mul_u32_u24 v12, 3584, v15')
        I('v_bfe_u32 v15, v1, 4, 1'); I('v_lshlrev_b32 v15, 2, v15'); I('v_and_b32 v16, 7, v1'); I('v_xor_b32 v15, v15, v16')
        I('v_lshl_add_u32 v12, v15, 4, v12'); I(f'v_add_u32 v12, s{t0}, v12')

    def pre_o(self):
        e, I, L = self.e, self.I, self.L
        t0, t1, t2, t3 = sT[0:4]
        I(f's_lshl_b32 s{t0}, s{sRB}, 4')
        I(f'v_add_u32 v15, s{t0}, v2')
        I('v_lshlrev_b32 v16, 4, v2'); I(f'v_add_u32 v16, s{sH}, v16')
        I('v_cmp_eq_u32 vcc, 1, v3')
        I('v_cndmask_b32 v15, v15, v16, vcc')
        I('v_and_b32 v16, 8, v2'); I('v_lshlrev_b32 v16, 1, v16')
        I('v_and_b32 v17, 7, v2'); I('v_add_u32 v16, v16, v17')
        I(f's_lshl_b32 s{t0}, s{sG}, 3'); I(f's_sub_u32 s{t0}, s{t0}, 8')
        I(f'v_add_u32 v16, s{t0}, v16'); I('v_and_b32 v16, 255, v16')
        I('v_cmp_eq_u32 vcc, 2, v3')
        I('v_cndmask_b32 v15, v15, v16, vcc')
        I('v_lshlrev_b32 v14, 6, v15'); I(f'v_add_u32 v14, {WS_HELLO}, v14')
        ld = f'buffer_load_dword v0, v14, {WS}, 0 offen sc1'
        I(ld)
        self.softmax2(44, 60, 228, 22, 30)
        I(f'v_add_u32 v23, {L_KVR}, v4')
        I(f's_cmp_eq_u32 s{sODD}, 1')
        I(f's_cselect_b32 s{t0}, 0, {1024+12*16}'); I(f's_add_u32 s{t0}, s{t0}, {L_KVR}')
        I('v_lshlrev_b32 v24, 8, v3'); I(f'v_add_u32 v24, s{t0}, v24')
        I(f's_mul_i32 s{t0}, s{sH}, 7'); I(f's_lshr_b32 s{t0}, s{t0}, 1')
        I('v_and_b32 v18, 1, v3'); I('v_lshrrev_b32 v19, 1, v3'); I('v_lshl_add_u32 v26, v18, 1, v19')
        I(f'v_add_u32 v18, s{t0}, v26')
        I('v_lshlrev_b32 v18, 8, v18'); I('v_lshl_add_u32 v18, v2, 4, v18')
        sOG = sX0
        I(f's_lshl_b32 s{t1}, s{sRB}, 1'); I(f's_lshr_b32 s{t2}, s{sW}, 2'); I(f's_add_u32 s{t1}, s{t1}, s{t2}')
        I(f's_mul_i32 s{sOG}, s{t1}, {L.GS}'); I(f's_add_u32 s{sOG}, s{sOG}, {WS_G}')
        I(f's_mul_i32 s{t0}, s{sA}, {TILE}'); I(f's_add_u32 s{t0}, s{t0}, {L.O}')
        I(f'v_add_u32 v18, s{t0}, v18')
        I('v_add_u32 v19, 8, v18')
        I(f'v_mov_b32 v20, {BIG}')
        I(f'v_cndmask_b32 v18, v18, v20, s[{sM0}:{sM0+1}]')
        I(f'v_cndmask_b32 v19, v19, v20, s[{sM1}:{sM1+1}]')
        I('v_cmp_eq_u32 vcc, 0, v1'); I('v_cndmask_b32 v21, v20, v13, vcc')
        I(f's_lshl_b32 s{t0}, s{sA}, 6'); I(f's_lshl_b32 s{t1}, s{sH}, 2'); I(f's_add_u32 s{t0}, s{t0}, s{t1}')
        I(f's_add_u32 s{t0}, s{t0}, {L.F_O}'); I(f's_add_u32 s{sX1}, s{t0}, s{sOG}')
        I(f'v_mov_b32 v27, s{sTAG}')
        def chk():
            I('v_and_b32 v17, -16, v0')
            I(f'v_cmp_ne_u32 vcc, s{sTAG}, v17')
        self.poll([ld], chk, 'hello', first_issued=True)
        I(f'v_cmp_ne_u32 vcc, s{sMODE}, v0')
        I(f's_and_b32 s{sMODE}, vcc_lo, 0xffff')
        if self.force_slow: I(f's_mov_b32 s{sMODE}, 1')
        self.stamp(5)

    def gather(self, shadow):
        e, I = self.e, self.I
        t0, t1, t2, t3 = sT[0:4]
        G, SEL, AC = 76, 140, 144
        I(f's_lshr_b32 s{t0}, s{sW}, 1'); I(f's_lshl_b32 s{t0}, s{t0}, 11'); I(f's_and_b32 s{t1}, s{sW}, 1'); I(f's_lshl_b32 s{t1}, s{t1}, 9')
        I(f's_add_u32 s{t0}, s{t0}, s{t1}'); I(f's_lshl_b32 s{t1}, s{sH}, 16'); I(f's_add_u32 s{t0}, s{t0}, s{t1}')
        I(f's_add_u32 s{t0}, s{t0}, {WS_KVP}')
        I('v_and_b32 v15, 31, v1'); I('v_lshlrev_b32 v15, 4, v15'); I('v_lshrrev_b32 v16, 5, v1')
        I('v_lshl_add_u32 v15, v16, 15, v15'); I(f'v_add_u32 v25, s{t0}, v15')
        for p in range(8): I(f's_mov_b32 s{sT[4+p]}, {p*4096}')
        if self.o.get('probe'):
            I('v_lshrrev_b32 v15, 2, v1'); I('v_lshlrev_b32 v15, 12, v15')
            I('v_and_b32 v16, 1, v1'); I('v_lshl_add_u32 v15, v16, 10, v15')
            I('v_bfe_u32 v16, v1, 1, 1'); I('v_lshl_add_u32 v15, v16, 8, v15')
            def chk2(): I('v_cmp_eq_u32 vcc, -1, v16')
            self.poll([f'buffer_load_dword v16, v15, {WS}, s{t0} offen offset:252 sc1'], chk2, 'kvp')
        self.stamp(6)
        loads = []
        for p in range(8):
            for t in range(2):
                loads.append(f'buffer_load_dwordx4 {vr(G+8*p+4*t,4)}, v25, {WS}, s{sT[4+p]} offen offset:{t*1024} sc1')
        def chk3():
            for p in range(8):
                for t in range(2):
                    acc = vr(AC+4*t, 4)
                    I(f'{MF16} {acc}, {vr(SEL,4)}, {vr(G+8*p+4*t,4)}, ' + ('0' if p == 0 else acc))
            I(f'v_cmp_u_f32 vcc, v{AC}, v{AC+4}')
        for t in loads: I(t)
        self.sel_mat(SEL, 15)
        shadow()
        self.poll(loads, chk3, 'kvg', first_issued=True)
        self.stamp(7)
        self.cvt(152, AC, 8)
        I(f's_lshl_b32 s{t0}, s{sW}, 10')
        I(f'v_add_u32 v15, s{t0}, v23')
        I('ds_write_b128 v15, v[152:155]')

    def o_phase(self):
        e, I = self.e, self.I
        KF, ac, pk, ph = 76, 100, 112, 60
        for a in range(2):
            for dt in range(2):
                I(f'ds_read_b128 {vr(KF+4*(2*a+dt),4)}, v23 offset:{(2*a+dt)*1024}')
            I(f'ds_read_b128 {vr(KF+16+4*a,4)}, v24 offset:{a*2048}')
        for a in range(2):
            I(f'{MF16} {vr(ac+8,4)}, {vr(KF+16+4*a,4)}, {vr(ph+4*a,4)}, ' + ('0' if a == 0 else vr(ac+8, 4)))
            for dt in range(2):
                I(f'{MF16} {vr(ac+4*dt,4)}, {vr(KF+4*(2*a+dt),4)}, {vr(ph+4*a,4)}, ' + ('0' if a == 0 else vr(ac+4*dt, 4)))
        I(f'v_add_f32 v{ac+8}, 0x358637bd, v{ac+8}')
        I(f'v_rcp_f32 v{ac+8}, v{ac+8}')
        for i in range(0, 8, 2):
            I(f'v_pk_mul_f32 {vr(ac+i,2)}, {vr(ac+i,2)}, {vr(ac+8,2)} op_sel_hi:[1,0]')
        self.cvt(pk, ac, 8)
        I(f'v_permlane16_swap_b32 v{pk}, v{pk+2}')
        I(f'v_permlane16_swap_b32 v{pk+1}, v{pk+3}')
        self.stamp(8)
        self.stores([f'buffer_store_dwordx2 {vr(pk,2)}, v18, {WS}, s{sX0} offen',
                     f'buffer_store_dwordx2 {vr(pk+2,2)}, v19, {WS}, s{sX0} offen'])

    def o_flag(self):
        self.e.wait_vm0()
        self.stores([f'buffer_store_dword v27, v21, {WS}, s{sX1} offen'])
        self.stamp(9)

    def finish(self):
        e, I = self.e, self.I
        self.dump_stamps()
        I(f's_or_b32 s{sT[0]}, s{sL}, s{sW}')
        I(f's_cmp_eq_u32 s{sT[0]}, 0')
        I(f's_cbranch_scc0 Lend')
        I(f'v_mov_b32 v15, s{sTAG}')
        I(f'buffer_store_dword v15, v21, {WS}, 0 offen sc1')
        I('s_branch Lend')

    def build(self):
        e, I = self.e, self.I
        import g4
        self.p1()
        self.pre_o()
        I(f's_cmp_ge_u32 s{sW}, 4')
        I('s_cbranch_scc1 LB4')
        self.gather(lambda: g4.main_pre(self))
        e.label('LB4')
        e.wait_all(); e.barrier()
        e.nop(2)
        self.o_phase()
        I(f's_cmp_eq_u32 s{sJ}, 7')
        I('s_cbranch_scc1 Lj7')
        I(f's_cmp_ge_u32 s{sW}, 4')
        I('s_cbranch_scc1 Laux')
        sn = e.snap()
        if self.stop != 'o': g4.main_rest(self)
        else: self.o_flag()
        self.finish()
        e.restore(sn)
        e.label('Laux')
        if self.stop != 'o': g4.aux_rest(self)
        else: self.o_flag()
        self.dump_stamps()
        I('s_branch Lend')
        e.restore(sn)
        e.label('Lj7')
        self.o_flag()
        g4.j7_jobs(self)
        self.dump_stamps()
        e.label('Lend')
        e.raw('  s_endpgm')
        head = f"""; fused persistent kernel (generated)
; @launch grid=(256,1,1) block=(512,1,1) lds={LDS_BYTES}
.amdgcn_target "amdgcn-amd-amdhsa--gfx950"
.text
.globl {KN}
.p2align 8
.type {KN},@function
{KN}:
"""
        tail = f"""
  s_endpgm
Lcodeend:
.fill {self.o.get('pad', 64)}, 4, 0xbf800000
.section .rodata,"a"
.p2align 6
.amdhsa_kernel {KN}
  .amdhsa_next_free_vgpr 256
  .amdhsa_next_free_sgpr 102
  .amdhsa_accum_offset 256
  .amdhsa_group_segment_fixed_size 0
  .amdhsa_kernarg_size 96
  .amdhsa_user_sgpr_count 2
  .amdhsa_user_sgpr_kernarg_segment_ptr 1
  .amdhsa_system_sgpr_workgroup_id_x 1
.end_amdhsa_kernel
"""
        return head + e.text() + tail

if __name__ == '__main__':
    import argparse
    ap = argparse.ArgumentParser()
    ap.add_argument('-o', default='k.s'); ap.add_argument('--stop'); ap.add_argument('--slow', action='store_true')
    ap.add_argument('--opt', action='append', default=[])
    a = ap.parse_args()
    opts = {}
    for kv in a.opt:
        k, v = kv.split('='); opts[k] = int(v) if v.lstrip('-').isdigit() and k not in ('stamps', 'pf') else v
    k = K(stop=a.stop, force_slow=a.slow, opts=opts)
    s = k.build()
    open(a.o, 'w').write(s)
    print('instrs', k.e.nins, 'nops', k.e.nnop, 'bytes(src)', len(s))
```

```python
import sys
from emit import Emit, parse
import g3
from g3 import (KN, MF16, MF32, WS_HELLO, WS_KVP, WS_G, TILE, AS, WS_STAMP, BIG, Lay, SRD, PTR, SIZE, srd, WS, vr,
                sL, sRB, sH, sG, sJ, sW, sTAG, sMODE, sSPIN, sGB, sODD, sC448, sL2E, sA, sN, sX0, sX1, sM0, sM1, sT)

RA, RB, RC = 0, 57344, 114688
RXA, MISC = 114688, 147456
L_PHI = 161792
L_CS = RXA + 7168
L_CSQ = 162816
L_KVR = 158720
L_CS1 = 163328
L_STAT = 160256
LDS_BYTES = 163840
NONSTR = 0xD5AB

class K(g3.K):
    v4 = False
    def __init__(self, stop=None, force_slow=False, opts=None):
        self.e = Emit(); self.stop = stop; self.force_slow = force_slow
        self.o = dict(pf='o123g', n1=14, w2a=6); self.o.update(opts or {})
        self.L = Lay(self.o.get('dbg'), self.o.get('mlp', 7) >= 9)
        self.nbar = 0

    def dump_stamps(self):
        if not self.o.get('dst'): return g3.K.dump_stamps(self)
        I = self.I
        self.e.wait_all()
        I('v_mov_b32 v15, 0')
        I('s_not_b32 s101, s100')
        I('v_writelane_b32 v15, s101, 11')
        for k in range(11):
            r = 100 if k == 0 else 14 + 2*k
            I(f'v_writelane_b32 v15, s{r}, {k}')
        I('v_mbcnt_lo_u32_b32 v16, -1, 0'); I('v_mbcnt_hi_u32_b32 v16, -1, v16')
        I('v_min_u32 v16, 15, v16')
        I('v_lshlrev_b32 v16, 2, v16')
        I('v_subrev_u32 v17, s100, v15'); I('v_cmp_gt_u32 vcc, 100000, v17')
        I('s_or_b32 vcc_lo, vcc_lo, 0x800')
        I('s_nop 4')
        I('v_cndmask_b32 v15, 0, v15, vcc')
        self.e.raw('  global_atomic_umax v16, v15, s[36:37] sc1')

    def stamp(self, name):
        g3.K.stamp(self, name)
        st = self.o.get('stamps')
        if st and 'T' + str(name) in st.split('+'):
            r = 14 + 2*(1 + st.split('+').index('T' + str(name)))
            self.I(f's_memtime s[{r}:{r+1}]')

    def bar(self, name=None):
        if name: self.stamp(f'x{name}')
        self.e.barrier(); self.nbar += 1
        if name: self.stamp(name)

    def softmax2(self, P, OUT, T, vM, C):
        I = self.I
        X, Y, Z = T, T+2, T+1
        E = T+4
        I(f'v_max3_f32 v{X}, v{P}, v{P+1}, v{P+2}')
        I(f'v_max3_f32 v{Y}, -v{P}, -v{P+1}, -v{P+2}')
        I(f'v_max3_f32 v{X}, v{X}, v{P+3}, v{P+4}')
        I(f'v_max3_f32 v{Y}, v{Y}, -v{P+3}, -v{P+4}')
        I(f'v_max3_f32 v{X}, v{X}, v{P+5}, v{P+6}')
        I(f'v_max3_f32 v{Y}, v{Y}, -v{P+5}, -v{P+6}')
        I(f'v_max_f32 v{X}, v{X}, v{P+7}')
        I(f'v_max_f32_e64 v{Y}, v{Y}, -v{P+7}')
        self.allred2(X, Y, Z, 'v_max_f32')
        I(f'v_mul_f32_e64 v{X}, -v{X}, v{C}'); I(f'v_mul_f32_e64 v{Y}, -v{Y}, v{C}')
        for i in range(0, 8, 2):
            I(f'v_pk_fma_f32 {vr(E+i,2)}, {vr(P+i,2)}, {vr(C,2)}, {vr(X,2)} op_sel_hi:[1,0,0]')
            I(f'v_pk_fma_f32 {vr(E+8+i,2)}, {vr(P+i,2)}, {vr(C,2)}, {vr(Y,2)} op_sel_hi:[1,0,0] neg_lo:[1,0,0] neg_hi:[1,0,0]')
        for i in range(16):
            I(f'v_exp_f32 v{E+i}, v{E+i}')
        A, B = T+20, T+22
        for (S, b) in ((X, E), (Y, E+8)):
            I(f'v_pk_add_f32 {vr(A,2)}, {vr(b,2)}, {vr(b+2,2)}')
            I(f'v_pk_add_f32 {vr(B,2)}, {vr(b+4,2)}, {vr(b+6,2)}')
            I(f'v_pk_fma_f32 {vr(A,2)}, {vr(B,2)}, {vr(vM,2)}, {vr(A,2)} op_sel_hi:[1,0,1]')
            I(f'v_add_f32 v{S}, v{A}, v{A+1}')
        self.allred2(X, Y, Z, 'v_add_f32')
        I(f'v_rcp_f32 v{X}, v{X}')
        I(f'v_rcp_f32 v{Y}, v{Y}')
        I(f'v_mul_f32 v{A}, v{X}, v{vM}'); I(f'v_mul_f32 v{B}, v{Y}, v{vM}')
        for i in range(0, 8, 2):
            I(f'v_pk_mul_f32 {vr(E+i,2)}, {vr(E+i,2)}, {vr(X if i < 4 else A,2)} op_sel_hi:[1,0]')
            I(f'v_pk_mul_f32 {vr(E+8+i,2)}, {vr(E+8+i,2)}, {vr(Y if i < 4 else B,2)} op_sel_hi:[1,0]')
        self.cvt(OUT, E, 16)

    def softmax2s(self, P, OUT, T, vM, C):
        I = self.I
        X, Y, Z = T, T+1, T+2
        E = T+4
        I(f'v_max3_f32 v{X}, v{P}, v{P+1}, v{P+2}')
        I(f'v_max3_f32 v{Y}, -v{P}, -v{P+1}, -v{P+2}')
        I(f'v_max3_f32 v{X}, v{X}, v{P+3}, v{P+4}')
        I(f'v_max3_f32 v{Y}, v{Y}, -v{P+3}, -v{P+4}')
        I(f'v_max3_f32 v{X}, v{X}, v{P+5}, v{P+6}')
        I(f'v_max3_f32 v{Y}, v{Y}, -v{P+5}, -v{P+6}')
        I(f'v_max_f32 v{X}, v{X}, v{P+7}')
        I(f'v_max_f32_e64 v{Y}, v{Y}, -v{P+7}')
        self.allred2(X, Y, Z, 'v_max_f32')
        I(f'v_mul_f32_e64 v{X}, -v{X}, v{C}'); I(f'v_mul_f32_e64 v{Y}, -v{Y}, v{C}')
        for i in range(8):
            I(f'v_fma_f32 v{E+i}, v{P+i}, v{C}, v{X}')
            I(f'v_fma_f32 v{E+8+i}, -v{P+i}, v{C}, v{Y}')
        for i in range(16):
            I(f'v_exp_f32 v{E+i}, v{E+i}')
        A, B = T+20, T+22
        for n, (S, b) in enumerate(((X, E), (Y, E+8))):
            I(f'v_add_f32 v{A+n}, v{b}, v{b+1}'); I(f'v_add_f32 v{B+n}, v{b+4}, v{b+5}')
        for n, (S, b) in enumerate(((X, E), (Y, E+8))):
            I(f'v_add_f32 v{A+n}, v{A+n}, v{b+2}'); I(f'v_add_f32 v{B+n}, v{B+n}, v{b+6}')
        for n, (S, b) in enumerate(((X, E), (Y, E+8))):
            I(f'v_add_f32 v{A+n}, v{A+n}, v{b+3}'); I(f'v_add_f32 v{B+n}, v{B+n}, v{b+7}')
        for n, (S, b) in enumerate(((X, E), (Y, E+8))):
            I(f'v_fma_f32 v{S}, v{B+n}, v{vM}, v{A+n}')
        self.allred2(X, Y, Z, 'v_add_f32')
        I(f'v_rcp_f32 v{X}, v{X}')
        I(f'v_rcp_f32 v{Y}, v{Y}')
        I(f'v_mul_f32 v{A}, v{X}, v{vM}'); I(f'v_mul_f32 v{A+1}, v{Y}, v{vM}')
        for i in range(8):
            I(f'v_mul_f32 v{E+i}, v{E+i}, v{X if i < 4 else A}')
            I(f'v_mul_f32 v{E+8+i}, v{E+8+i}, v{Y if i < 4 else A+1}')
        self.cvt(OUT, E, 16)

    def prologue(self):
        e, I, L = self.e, self.I, self.L
        t0, t1, t2, t3 = sT[0:4]
        I('s_load_dwordx4 s[16:19], s[0:1], 0')
        I('s_cmp_ge_u32 s2, 256')
        I('s_cbranch_scc1 Lend')
        self.stamp(0)
        I('s_load_dwordx4 s[36:39], s[0:1], 80')
        I('s_load_dwordx8 s[20:27], s[0:1], 16')
        I('s_load_dwordx8 s[28:35], s[0:1], 48')
        I('v_lshrrev_b32 v5, 6, v0')
        I('v_and_b32 v1, 63, v0')
        I(f's_and_b32 s{t0}, s2, 7')
        I(f's_lshr_b32 s{t1}, s2, 3')
        I(f'v_readfirstlane_b32 s{sW}, v5')
        I(f's_lshl_b32 s{sL}, s{t0}, 5')
        I(f's_or_b32 s{sL}, s{sL}, s{t1}')
        I(f's_cmp_lg_u32 s{sW}, 7')
        I('s_cbranch_scc1 Lnopf')
        I(f's_getpc_b64 s[{sM1}:{sM1+1}]')
        e.label('Lpc')
        I(f's_add_u32 s{sM1}, s{sM1}, {KN}-Lpc')
        I(f's_addc_u32 s{sM1+1}, s{sM1+1}, -1')
        I(f's_lshl_b32 s{t0}, s{t1}, 11')
        I('v_and_b32 v15, 15, v1'); I('v_lshlrev_b32 v15, 7, v15'); I(f'v_add_u32 v15, s{t0}, v15')
        I(f'v_min_u32 v15, Lcodeend-{KN}, v15')
        I(f'global_load_dword v251, v15, s[{sM1}:{sM1+1}]', maybe=True)
        e.label('Lnopf')
        I(f's_and_b32 s{sA}, s{sW}, 3')
        I(f's_lshr_b32 s{sRB}, s{sL}, 4')
        I(f's_and_b32 s{sH}, s{sL}, 15')
        I('v_and_b32 v2, 15, v1')
        I('v_lshrrev_b32 v3, 4, v1')
        sCx, sCw, sMX, sMW = self.sCx, self.sCw, self.sMX, self.sMW
        I(f's_and_b32 s{t0}, s{sRB}, 1'); I(f's_mul_i32 s{t0}, s{t0}, 3'); I(f's_add_u32 s{t0}, s{t0}, s{sH}')
        if self.o.get('rx'):
            I(f's_lshr_b32 s{t1}, s{sL}, 5'); I(f's_add_u32 s{t0}, s{t0}, s{t1}')
        I(f's_mul_i32 s{t1}, s{t0}, 37'); I(f's_lshr_b32 s{t1}, s{t1}, 8'); I(f's_mul_i32 s{t1}, s{t1}, 7')
        I(f's_sub_u32 s{t0}, s{t0}, s{t1}')
        if self.o.get('norot'): I(f's_mov_b32 s{t0}, 0')
        if self.o.get('ncls') == 2:
            I(f's_add_u32 s{t0}, s{sRB}, s{sH}'); I(f's_and_b32 s{t0}, s{t0}, 1'); I(f's_mul_i32 s{t0}, s{t0}, {self.o.get("cst", 3)}')
        if self.o.get('ncls') == 4:
            I(f's_add_u32 s{t0}, s{sRB}, s{sH}'); I(f's_and_b32 s{t0}, s{t0}, 3'); I(f's_mul_i32 s{t0}, s{t0}, {self.o.get("cst", 2)}')
        I(f's_lshl_b32 s{sCx}, s{t0}, 7')
        I(f's_mov_b32 s{self.sCb}, s{sCx}')
        I('v_lshrrev_b32 v9, 2, v1')
        I('v_mul_u32_u24 v9, 2688, v9')
        I('v_lshrrev_b32 v10, 5, v1')
        I('v_lshlrev_b32 v10, 1, v10')
        I('v_and_b32 v11, 3, v1')
        I('v_xor_b32 v10, v10, v11')
        I('v_lshl_add_u32 v9, v10, 4, v9')
        I(f's_mul_i32 s{t0}, s{sH}, 56'); I(f's_andn2_b32 s{t0}, s{t0}, 15')
        I(f's_mul_i32 s{t1}, s{sA}, 43008'); I(f's_add_u32 s{t0}, s{t0}, s{t1}')
        I(f'v_add_u32 v9, s{t0}, v9')
        I(f's_lshl_b32 s{t0}, s{sRB}, 7'); I(f's_lshl_b32 s{t1}, s{sW}, 4'); I(f's_add_u32 s{t0}, s{t0}, s{t1}')
        if self.o.get('mlp') == 10:
            I(f's_and_b32 s{t1}, s{sL}, 8'); I(f's_lshl_b32 s{t1}, s{t1}, 3'); I(f's_xor_b32 s{t0}, s{t0}, s{t1}')
        I('v_lshrrev_b32 v10, 3, v1'); I(f'v_add_u32 v10, s{t0}, v10'); I('v_mul_u32_u24 v10, 896, v10')
        I('v_and_b32 v11, 7, v1'); I('v_xor_b32 v11, v11, v3')
        I('v_lshl_add_u32 v10, v11, 4, v10')
        I('v_xor_b32 v11, 64, v10'); I(f'v_add_u32 v11, {8*896-1024}, v11')
        I(f's_lshl_b32 s{sMW}, s{sA}, 10')
        sRA, sRBB = sT[9], sT[10]
        I(f's_lshl_b32 s{sRA}, s{sA}, 13'); I(f's_add_u32 s{sRA}, s{sRA}, {RXA}')
        I(f's_mul_i32 s{sRBB}, s{sA}, 14336'); I(f's_add_u32 s{sRBB}, s{sRBB}, {RB}')
        I(f's_cmp_ge_u32 s{sW}, 4')
        I(f's_cselect_b32 s{sMX}, s{sRBB}, s{sRA}')
        I('v_lshlrev_b32 v4, 4, v1')
        I('v_mov_b32 v13, 0')
        I(f's_lshr_b32 s{sG}, s{sL}, 3')
        I(f's_and_b32 s{sJ}, s{sL}, 7')
        if self.v4: self.pre_srd()
        e.wait_lg0()
        if self.v4: I(f's_load_dword s{sTAG}, s[38:39], 0')
        self.build_srd('x'); self.build_srd('wqkv')
        self.stamp('pr')
        wf = self.o.get('wf', 0)
        if not wf:
            self.xdma(0, 0, 'c0')
            self.build_srd('ws')
        I(f's_cmp_ge_u32 s{sW}, 4')
        I('s_cbranch_scc1 LB0')
        sn = e.snap()
        if wf:
            self.xdma(0, 0, 'c0')
            self.build_srd('ws')
        NR = 180 if self.o.get('nl') else 24
        for i in range(4): I(f'v_mov_b32 v{NR+i}, -1')
        if not self.o.get('nl'):
            I(f's_lshl_b32 s{t0}, s{sH}, 4'); I(f's_or_b32 s{t0}, s{t0}, s{sRB}'); I(f's_lshl_b32 s{t0}, s{t0}, 12')
            I(f's_add_u32 s{t0}, s{t0}, s{self.sMW}'); I(f's_add_u32 s{t0}, s{t0}, {WS_KVP}')
            I(f'buffer_store_dwordx4 v[24:27], v4, {WS}, s{t0} offen sc1')
        if self.o.get('x0', 2) == 2: self.xdma(1, 1, 'c1')
        if self.o.get('stlb'):
            I(f's_mul_i32 s{sGB}, s{sG}, {L.GS}'); I(f's_add_u32 s{sGB}, s{sGB}, {WS_G}')
            for n in ('wo', 'w1', 'w3', 'w2', 'w4', 'out'): e.raw(f'  s_load_dword s2, s[{PTR[n]}:{PTR[n]+1}], 0')
            e.raw(f'  s_load_dword s2, s[38:39], s{sGB}')
            I(f's_add_u32 s{sGB}, s{sGB}, {L.GS - 64}')
            e.raw(f'  s_load_dword s2, s[38:39], s{sGB}')
        I(f's_cmp_lt_u32 s{sW}, 2'); I('s_cbranch_scc1 Lrphi')
        I(f's_cmp_eq_u32 s{sW}, 2'); I('s_cbranch_scc1 Lrnon')
        sr = e.snap()
        self.halo_addr(44, 45, 46)
        I('s_nop 1')
        for i in range(4): I(f'v_cndmask_b32 v{48+i}, -1, v13, vcc')
        I(f'buffer_store_dwordx4 v[48:51], v44, {WS}, 0 offen sc1')
        I('s_branch Lcom')
        e.restore(sr); e.label('Lrphi')
        self.build_srd('phi')
        I(f's_mul_i32 s{t2}, s{sH}, 1568'); I(f's_add_u32 s{t2}, s{t2}, s{self.sMW}')
        I(f's_add_u32 m0, s{self.sMW}, {L_PHI}')
        I(f'buffer_load_dwordx4 v4, {srd("phi")}, s{t2} offen lds')
        I('s_branch Lcom')
        e.restore(sr); e.label('Lrnon')
        if self.v4:
            I(f's_lshl_b32 s{t0}, s{sH}, 12'); I(f's_lshl_b32 s{t1}, s{sRB}, 8'); I(f's_add_u32 s{t0}, s{t0}, s{t1}'); I(f's_add_u32 s{t0}, s{t0}, {0x1F0000}')
            I('v_lshlrev_b32 v15, 4, v2')
            I(f'buffer_store_dwordx4 {vr(NR,4)}, v15, {WS}, s{t0} offen sc1', tag='role')
        else: I(f'buffer_load_dword v14, v13, {WS}, 0 offen sc1', tag='role')
        self.vmA = e.vm
        I('s_branch Lcom')
        e.restore(sn)
        e.label('LB0')
        I('v_add_u32 v9, 896, v9')
        rpp = self.o.get('rpp', 1) if self.v4 else -1
        if rpp == 0: self.rp_loads()
        self.wdma(0, 0, 'c0')
        if wf:
            self.xdma(0, 0, 'c0')
            self.build_srd('ws')
        if rpp == 1: self.rp_loads()
        self.wdma(1, 0, 'c1')
        if rpp == 2: self.rp_loads()
        if self.o.get('xb0', 1) == 2: self.xdma(1, 1, 'c1')
        self.vmB = e.vm
        e.vm = []; e.hist = []
        e.label('Lcom')
        self.stamp('is')
        self.init_jobs()
        assert not e.vm
        if self.o.get('s0'):
            I(f's_and_b32 s{t0}, s{sL}, 31'); I(f's_lshl_b32 s{t0}, s{t0}, 3'); I(f's_add_u32 s{t0}, s{t0}, s{sW}')
            I(f's_mul_i32 s{t0}, s{t0}, {25*64}')
            I(f's_lshl_b32 s{t1}, s{sL}, 3'); I(f's_add_u32 s{t1}, s{t1}, s{sW}'); I(f's_lshl_b32 s{t2}, s{t1}, 8'); I(f's_mul_i32 s{t1}, s{t1}, {7*128}')
            for ch in self.o['s0']:
                if ch in 'OI':
                    for i in range(25): e.raw(f'  s_buffer_load_dword s2, {srd("wo" if ch == "O" else "w1")}, s{t0} offset:{i*64}')
                if ch in 'o12':
                    for i in range(2): e.raw(f'  s_buffer_load_dword s2, {srd("wo" if ch == "o" else "w" + ch)}, s{t2} offset:{i*128}')
                if ch in '34':
                    for i in range(7): e.raw(f'  s_buffer_load_dword s2, {srd("w" + ch)}, s{t1} offset:{i*128}')
            e.lg.append(dict(dst=set(), tag=None, smem=True))
        I(f's_cmp_ge_u32 s{sW}, 4')
        I('s_cbranch_scc1 LB')

    sCx, sCw, sMX, sMW = sT[4], sT[5], sT[6], sT[7]

    sCb = sT[8]
    def adv(self, sc=None):
        I = self.I
        sc = sc or self.sCx
        I(f's_add_u32 s{sc}, s{sc}, 128'); I(f's_cmp_eq_u32 s{sc}, 896'); I(f's_cselect_b32 s{sc}, 0, s{sc}')
    def xdma(self, i, slot, tag):
        I = self.I
        sc = self.sCb
        I(f's_add_u32 m0, s{self.sMX}, {slot*2048}')
        I(f'buffer_load_dwordx4 v10, {srd("x")}, s{sc} offen lds', tag=tag)
        I(f'buffer_load_dwordx4 v11, {srd("x")}, s{sc} offen offset:1024 lds', tag=tag)
        self.adv(sc)
    def wdma(self, i, mat, tag):
        I = self.I
        I(f's_add_u32 m0, s{self.sMW}, {i*4096 + mat*(28672-896)}')
        I(f's_mul_i32 s{self.sCw}, s{self.sCx}, 1344')
        I(f'buffer_load_dwordx4 v9, {srd("wqkv")}, s{self.sCw} offen offset:{mat*896} lds', tag=tag)
        self.adv()

    def halo_addr(self, *a):
        txt = self.capture(lambda: g3.K.halo_addr(self, *a))
        if self.o.get('hc'):
            V, T1 = a[0], a[1]
            rep = {f'v_lshl_add_u32 v{V}, v{T1}, 8, v{V}': f'v_lshl_add_u32 v{V}, v{T1}, 4, v{V}',
                   f'v_lshl_add_u32 v{V}, v{T1}, 4, v{V}': f'v_lshl_add_u32 v{V}, v{T1}, 10, v{V}',
                   f's_lshl_b32 s{sT[2]}, s{sJ}, 3': f's_lshl_b32 s{sT[2]}, s{sJ}, 7',
                   f's_add_u32 s{sT[0]}, s{sT[0]}, {WS_G+self.L.T0-TILE+14*16}': f's_add_u32 s{sT[0]}, s{sT[0]}, {WS_G+self.L.T0-TILE}'}
            assert all(r in txt for r in rep)
            txt = [rep.get(t, t) for t in txt]
        for t in txt: self.I(t.replace(f's_cmp_eq_u32 s{sW}, 7', f's_cmp_eq_u32 s{sW}, 3'))

    def init_jobs(self):
        e, I, L = self.e, self.I, self.L
        t0, t1, t2, t3 = sT[0:4]
        I(f's_and_b32 s{sODD}, s{sL}, 1')
        for i in range(4): I(f'v_mov_b32 v{32+i}, 0x3f803f80')
        I('v_bfe_u32 v28, v1, 2, 2')
        I('v_and_b32 v29, 3, v1')
        I('v_lshl_add_u32 v15, v3, 3, v28')
        I('v_lshlrev_b32 v15, 6, v15')
        I('v_lshl_add_u32 v15, v29, 3, v15')
        I('v_and_b32 v16, 1, v3')
        I('v_lshl_add_u32 v5, v16, 5, v15')
        I('v_xor_b32 v6, 32, v5')
        I('v_lshrrev_b32 v15, 1, v2'); I('v_xor_b32 v15, v15, v3'); I('v_lshlrev_b32 v15, 4, v15')
        I('v_lshl_add_u32 v15, v2, 7, v15')
        I(f'v_add_u32 v12, s{sT[9]}, v15'); I('v_xor_b32 v21, 64, v12')
        I(f'v_add_u32 v44, s{sT[10]}, v15'); I('v_xor_b32 v45, 64, v44')
        self.init2()

    def init_B(self):
        I = self.I
        t0 = sT[0]
        I('ds_write_b64 v28, v[210:211]'); I('ds_write_b64 v28, v[210:211] offset:8')
        I(f's_and_b32 s{t0}, s{sA}, 1'); I(f's_lshl_b32 s{t0}, s{t0}, 5')
        I(f'v_xor_b32 v7, s{t0}, v5')
        I(f's_lshr_b32 s{t0}, s{sA}, 1'); I(f's_lshl_b32 s{t0}, s{t0}, 11'); I(f's_add_u32 s{t0}, s{t0}, 28672')
        I(f'v_add_u32 v7, s{t0}, v7')
        I('v_and_b32 v15, 1, v3'); I('v_mul_u32_u24 v15, 7168, v15'); I('v_mul_u32_u24 v8, 224, v2')
        I(f'v_add_u32 v15, {MISC+208}, v15'); I('v_add_u32 v8, v8, v15')
        I('v_and_b32 v47, 3, v1'); I('v_mul_u32_u24 v47, 3584, v47'); I(f'v_add_u32 v47, {MISC+192}, v47')
        if self.o.get('vq'):
            I('v_and_b32 v15, 4, v1'); I('v_add_u32 v47, v47, v15')
        tv = self.o.get('tv', 1)
        if tv:
            t1 = sT[1]
            I('v_mul_u32_u24 v15, 37, v1'); I('v_lshrrev_b32 v15, 8, v15')
            I(f'v_mul_u32_u24 v15, {2688-896}, v15'); I('v_lshl_add_u32 v50, v1, 7, v15')
            I(f's_and_b32 s{t0}, s{sL}, 31'); I(f's_lshl_b32 s{t0}, s{t0}, 1'); I(f's_and_b32 s{t1}, s{sA}, 1'); I(f's_add_u32 s{t0}, s{t0}, s{t1}')
            I(f's_mul_i32 s{t0}, s{t0}, {7*2688}')
            I(f's_cmp_lt_u32 s{sA}, 2'); I(f's_cselect_b32 s{t1}, 0, {-1792 if tv == 2 else BIG}'); I(f's_add_u32 s{t0}, s{t0}, s{t1}'); I(f's_add_u32 s{t0}, s{t0}, 1792')
            I(f'v_add_u32 v50, s{t0}, v50'); I(f'v_mov_b32 v15, {BIG}')
            I('v_cmp_gt_u32 vcc, 49, v1'); I('v_cndmask_b32 v50, v15, v50, vcc')

    def init2(self):
        e, I, L = self.e, self.I, self.L
        t0, t1, t2, t3 = sT[0:4]
        for n in ('wo', 'w1', 'w2', 'w3', 'w4', 'out'): self.build_srd(n)
        I(f's_mul_i32 s{sGB}, s{sG}, {L.GS}')
        I(f's_add_u32 s{sGB}, s{sGB}, {WS_G}')
        I(f's_mov_b32 s{sSPIN}, 0x8000')
        I(f's_mov_b32 s{sC448}, 0x3b124925')
        I(f's_mov_b32 s{sL2E}, 0x3fb8aa3b')
        if not self.v4:
            I(f's_lshl_b32 s{t0}, s{sH}, 4'); I(f's_or_b32 s{t0}, s{t0}, s{sRB}'); I(f's_lshl_b32 s{t0}, s{t0}, 12')
            I(f's_lshl_b32 s{t1}, s{sW}, 9'); I(f's_add_u32 s{t0}, s{t0}, s{t1}'); I(f's_add_u32 s{t0}, s{t0}, {WS_KVP}')
            I('v_lshrrev_b32 v15, 1, v3'); I('v_lshlrev_b32 v15, 8, v15'); I('v_lshl_add_u32 v15, v2, 4, v15')
            I('v_and_b32 v16, 1, v3'); I('v_lshl_add_u32 v15, v16, 3, v15')
            I(f'v_add_u32 v31, s{t0}, v15')
        I('v_lshl_add_u32 v15, v3, 2, v28')
        I(f's_lshl_b32 s{t0}, s{sODD}, 2')
        I(f'v_subrev_u32 v15, s{t0}, v15')
        I('v_mul_i32_i24 v15, 56, v15')
        I(f'v_add_u32 v15, {L_PHI}, v15')
        I('v_lshl_add_u32 v17, v29, 3, v15')
        I('v_add_u32 v16, 4, v29'); I('v_min_u32 v16, 6, v16')
        I('v_lshl_add_u32 v18, v16, 3, v15')
        I('v_add_u32 v19, 896, v17'); I('v_add_u32 v20, 896, v18')
        I('v_cmp_ne_u32 vcc, 3, v3')
        I('v_cndmask_b32 v22, 0, 1.0, vcc')
        I('v_mul_u32_u24 v16, 224, v2')
        I('v_xor_b32 v15, v28, v3')
        I('v_lshl_add_u32 v15, v15, 3, v16')
        I(f's_mul_i32 s{t0}, s{sA}, 3584'); I(f's_add_u32 s{t0}, s{t0}, {MISC}')
        I(f'v_add_u32 v23, s{t0}, v15')
        I(f'v_subrev_u32 v46, {MISC-RA}, v23' if self.o.get('w1v') else f'v_add_u32 v46, s{sT[10]}, v15')
        I(f's_add_u32 s{t0}, s{t0}, 192'); I(f'v_add_u32 v28, s{t0}, v16')
        I('v_lshrrev_b32 v15, 2, v1')
        I('v_mul_u32_u24 v15, 224, v15')
        I('v_xor_b32 v16, v29, v3')
        I('v_lshl_add_u32 v15, v16, 3, v15')
        if self.v4:
            I(f's_lshr_b32 s{t0}, s{sA}, 1'); I(f's_lshl_b32 s{t0}, s{t0}, 6'); I(f's_add_u32 s{t0}, s{t0}, {MISC}')
            I(f'v_add_u32 v24, s{t0}, v15')
            I(f's_and_b32 s{t0}, s{sA}, 1'); I(f's_lshl_b32 s{t0}, s{t0}, 5'); I(f's_add_u32 s{t0}, s{t0}, {MISC+128}')
            I(f'v_add_u32 v25, s{t0}, v15')
        else:
            I(f's_lshr_b32 s{t0}, s{sW}, 1'); I(f's_lshl_b32 s{t0}, s{t0}, 5'); I(f's_add_u32 s{t0}, s{t0}, {MISC}')
            I(f'v_add_u32 v24, s{t0}, v15')
            I(f's_and_b32 s{t0}, s{sW}, 1'); I(f's_lshl_b32 s{t0}, s{t0}, 5'); I(f's_add_u32 s{t0}, s{t0}, {MISC+128}')
            I(f'v_add_u32 v25, s{t0}, v15')
        rg = RA if self.o.get('w1v') else RB
        I(f'v_subrev_u32 v26, {MISC-rg}, v24'); I(f'v_subrev_u32 v27, {MISC-rg}, v25')
        I(f's_lshr_b32 s{t0}, s{sW}, 2')
        I(f'v_cmp_ge_u32 vcc, s{t0}, v3'); I('v_mov_b32 v15, 0xbb124925')
        I('v_cndmask_b32 v29, 0, v15, vcc')
        I('v_lshlrev_b32 v15, 2, v3'); I('v_sub_u32 v15, v2, v15')
        for r in range(4):
            I(f'v_cmp_eq_u32 vcc, {r}, v15'); I(f'v_cndmask_b32 v{252+r}, 0, 1.0, vcc')
        AX, BX = 208, 224
        for t in range(4): I(f'v_mov_b32 v{AX+4*t+2}, 0'); I(f'v_mov_b32 v{AX+4*t+3}, 0')
        I(f'v_mov_b32 v{BX+2}, 0'); I(f'v_mov_b32 v{BX+3}, 0')
        I(f's_cmp_eq_u32 s{sODD}, 1')
        I(f's_cselect_b32 s{sM0}, 0xffff, 0'); I(f's_mov_b32 s{sM0+1}, 0')
        I(f's_cselect_b32 s{sM1+1}, 0, 0xffff0000'); I(f's_mov_b32 s{sM1}, 0')

    def init_A(self):
        I, L = self.I, self.L
        t0, t1, t2, t3 = sT[0:4]
        I('v_lshrrev_b32 v47, 3, v1'); I('v_mul_u32_u24 v47, 896, v47')
        I('v_bfe_u32 v15, v1, 4, 1'); I('v_lshlrev_b32 v15, 1, v15')
        I('v_and_b32 v16, 7, v1'); I('v_xor_b32 v15, v15, v16')
        I('v_lshl_add_u32 v47, v15, 4, v47')
        I(f's_lshl_b32 s{t0}, s{sJ}, 7'); I(f's_cmp_eq_u32 s{sJ}, 7'); I(f's_cselect_b32 s{t0}, {BIG}, s{t0}')
        I(f'v_add_u32 v47, s{t0}, v47')
        if True:
            I(f's_lshl_b32 s{t0}, 1, s{sH}'); I(f's_sub_u32 s{t1}, s{t0}, 1'); I(f's_and_b32 s{t1}, s{t1}, {NONSTR}')
            I(f's_bcnt1_i32_b32 s{t1}, s{t1}')
            I(f's_and_b32 s{t2}, s{sRB}, 1'); I(f's_mul_i32 s{t2}, s{t2}, 10'); I(f's_add_u32 s{t1}, s{t1}, s{t2}')
            I(f's_lshl_b32 s{t1}, s{t1}, 2'); I(f's_add_u32 s{t1}, s{t1}, s{sA}'); I(f's_mul_i32 s{t1}, s{t1}, 40')
            I(f's_and_b32 s{t0}, s{t0}, {NONSTR}')
            I(f's_cselect_b32 s{t2}, 40, 0')
            I(f'v_add_u32 v15, s{t1}, v1')
            I('v_lshlrev_b32 v50, 7, v15')
            I('v_lshlrev_b32 v51, 9, v15')
            I(f'v_mov_b32 v16, {BIG}')
            I(f'v_cmp_gt_u32 vcc, s{t2}, v1')
            I('v_cndmask_b32 v50, v16, v50, vcc'); I('v_cndmask_b32 v51, v16, v51, vcc')
            if self.o.get('mw'):
                I(f's_lshl_b32 s{t0}, s{sL}, 2'); I(f's_add_u32 s{t0}, s{t0}, s{sA}')
                I(f's_lshl_b32 s{t1}, s{t0}, 9'); I(f's_mul_i32 s{t2}, s{t0}, {13*128}')
                I('v_lshlrev_b32 v15, 7, v1'); I(f'v_add_u32 v50, s{t1}, v15'); I(f'v_add_u32 v51, s{t2}, v15')
                I('v_cmp_gt_u32 vcc, 4, v1'); I('v_cndmask_b32 v50, v16, v50, vcc')
                I('v_cmp_gt_u32 vcc, 13, v1'); I('v_cndmask_b32 v51, v16, v51, vcc')
            I(f's_lshl_b32 s{t0}, s{sJ}, 2'); I(f's_add_u32 s{t0}, s{t0}, s{sA}')
            I(f's_mul_i32 s{t1}, s{t0}, {14*128}'); I(f's_mul_i32 s{t2}, s{t0}, 384'); I(f's_min_u32 s{t2}, s{t2}, {69*128}')
            I(f's_add_u32 s{t2}, s{t2}, {L.FLG}')
            I('v_min_u32 v15, 13, v2'); I('v_lshlrev_b32 v15, 7, v15'); I(f'v_add_u32 v15, s{t1}, v15')
            I('v_and_b32 v16, 1, v3'); I(f'v_mul_u32_u24 v16, {AS}, v16'); I('v_add_u32 v15, v15, v16')
            I('v_min_u32 v16, 2, v2'); I('v_lshlrev_b32 v16, 7, v16'); I(f'v_add_u32 v16, s{t2}, v16')
            I('v_cmp_gt_u32 vcc, 32, v1'); I('v_cndmask_b32 v0, v16, v15, vcc')

    def get_tag(self):
        I = self.I
        if not self.v4: I(f'v_readfirstlane_b32 s{sTAG}, v14')
        I(f's_add_u32 s{sTAG}, s{sTAG}, 0x9E3779B9')
        I(f's_andn2_b32 s{sTAG}, s{sTAG}, 15')
        I(f's_getreg_b32 s{sMODE}, hwreg(HW_REG_XCC_ID)')
        I(f's_and_b32 s{sMODE}, s{sMODE}, 15')
        I(f's_or_b32 s{sMODE}, s{sMODE}, s{sTAG}')

    def phi_frags(self):
        I = self.I
        I('ds_read_b64_tr_b16 v[36:37], v17'); I('ds_read_b64_tr_b16 v[38:39], v19')
        I('ds_read_b64_tr_b16 v[40:41], v18'); I('ds_read_b64_tr_b16 v[42:43], v20')
    def phi_mask(self):
        I = self.I
        for r in (36, 37, 40, 41): I(f'v_cndmask_b32 v{r}, v{r}, v13, s[{sM0}:{sM0+1}]')
        for r in (38, 39, 42, 43): I(f'v_cndmask_b32 v{r}, v{r}, v13, s[{sM1}:{sM1+1}]')

    X, AR, CF, CSA, AX, BX, T = 76, 132, 196, 204, 208, 224, 228
    def xread(self, i, slot):
        for ee in range(2):
            self.I(f'ds_read_b128 {vr(self.X+4*(2*i+ee),4)}, v{(12,21)[ee]} offset:{slot*2048}', tag=f'xr{i}')
    def wread(self, m):
        for ti in range(4):
            b = self.AR + 16*(m & 3) + 4*ti
            off = (ti >> 1)*28672 + m*2048
            self.I(f'ds_read_b64_tr_b16 {vr(b,2)}, v{5+(ti&1)} offset:{off}')
            self.I(f'ds_read_b64_tr_b16 {vr(b+2,2)}, v{5+(ti&1)} offset:{off+256}')
    def kstep(self, m):
        I = self.I
        xb = vr(self.X+4*m, 4)
        z = m == 0
        I(f'{MF16} v[72:75], {xb}, {xb}, ' + ('0' if z else 'v[72:75]'))
        I(f'{MF16} v[68:71], v[32:35], {xb}, ' + ('0' if z else 'v[68:71]'))
        for ti in range(4):
            acc = vr(52 + 4*ti, 4)
            I(f'{MF16} {acc}, {vr(self.AR+16*(m&3)+4*ti,4)}, {xb}, ' + ('0' if z else acc))

    def post_kv(self, B):
        e, I = self.e, self.I
        AX, BX, T = self.AX, self.BX, self.T
        ACCK, ACCV = 52, 60
        I(f'v_mul_f32 v{T}, v68, v29')
        self.split_b(T, BX, T+1)
        for i in range(4): I(f'v_mul_f32 v{72+i}, v{72+i}, v{252+i}')
        for ti in range(4):
            acc = vr(ACCK + 4*ti, 4)
            I(f'{MF16} {acc}, {vr(AX+4*ti,4)}, {vr(BX,4)}, {acc}')
        I('v_add_f32 v72, v72, v73'); I('v_add_f32 v74, v74, v75')
        I('v_add_f32 v72, v72, v74')
        I('v_mov_b32 v73, v72')
        I('v_permlane32_swap_b32 v72, v73'); I('v_add_f32 v72, v72, v73'); I('v_mov_b32 v73, v72')
        I('v_permlane16_swap_b32 v72, v73'); I('v_add_f32 v72, v72, v73')
        self.cvt(T+4, ACCK, 8)
        I(f'{MF16} v[52:55], v[36:39], {vr(T+4,4)}, 0')
        I(f'{MF16} v[56:59], v[40:43], {vr(T+4,4)}, 0')
        I(f'v_mul_f32 v73, s{sC448}, v68')
        I('v_mul_f32 v74, v73, v73')
        I(f'v_fma_f32 v74, v72, s{sC448}, -v74')
        I('v_add_f32 v74, 0x3727c5ac, v74')
        I('v_rsq_f32 v70, v74')
        I(f'v_mul_f32 v30, s{sL2E}, v70')
        if B:
            for i in range(0, 8, 2):
                I(f'v_pk_mul_f32 {vr(ACCV+i,2)}, {vr(ACCV+i,2)}, v[70:71] op_sel_hi:[1,0]')
        else:
            for i in range(8): I(f'v_mul_f32 v{ACCV+i}, v{ACCV+i}, v70')
        I(f'v_cndmask_b32 v60, v60, 1.0, s[{sM0}:{sM0+1}]')
        I(f'v_cndmask_b32 v64, v64, 1.0, s[{sM1}:{sM1+1}]')
        self.cvt(72, ACCV, 8)
        I('ds_write_b64 v23, v[72:73] offset:128')
        I('ds_write_b64 v23, v[74:75] offset:160')
        PH = 60
        (self.softmax2 if B else self.softmax2s)(52, PH, T, 22, 30)
        for t in range(4):
            I(f'ds_write_b64 v23, {vr(PH+2*t,2)} offset:{t*32}')

    vSQ = 11
    def sq_src(self):
        I = lambda t: self.I(t.replace('v11', f'v{self.vSQ}'))
        t0 = sT[0]
        I('v_lshrrev_b32 v11, 3, v1'); I(f's_lshl_b32 s{t0}, s{sA}, 3'); I(f'v_add_u32 v11, s{t0}, v11')
        I('v_mul_u32_u24 v11, 896, v11')
        I('v_bfe_u32 v15, v1, 4, 1'); I('v_lshlrev_b32 v15, 1, v15')
        I(f's_and_b32 s{t0}, s{sA}, 1'); I(f's_lshl_b32 s{t0}, s{t0}, 2')
        I('v_and_b32 v16, 7, v1'); I('v_xor_b32 v15, v15, v16'); I(f'v_xor_b32 v15, s{t0}, v15')
        I('v_lshl_add_u32 v11, v15, 4, v11')
        I(f's_lshl_b32 s{t0}, s{sJ}, 7'); I(f's_cmp_eq_u32 s{sJ}, 7'); I(f's_cselect_b32 s{t0}, {BIG}, s{t0}')
        I(f'v_add_u32 v11, s{t0}, v11')
    def sq_dma(self, name, region, m, tag):
        I = self.I
        if name in self.o.get('skip', ''): return
        t1 = self.sCw
        I(f's_add_u32 m0, s{self.sMW}, {region + m*4096}')
        I(f's_mov_b32 s{t1}, {m*32*896}')
        I(f'buffer_load_dwordx4 v{self.vSQ}, {srd(name)}, s{t1} offen lds', tag=tag)

    def pre_b3(self, B):
        I = self.I
        t0, t1, t2 = sT[0:3]
        self.sq_src()
        I(f's_lshl_b32 s{t0}, s{sRB}, 4')
        I(f'v_add_u32 v15, s{t0}, v2')
        I('v_lshlrev_b32 v16, 4, v2'); I(f'v_add_u32 v16, s{sH}, v16')
        I('v_cmp_eq_u32 vcc, 1, v3')
        I('v_cndmask_b32 v15, v15, v16, vcc')
        I('v_and_b32 v16, 8, v2'); I('v_lshlrev_b32 v16, 1, v16')
        I('v_and_b32 v17, 7, v2'); I('v_add_u32 v16, v16, v17')
        I(f's_lshl_b32 s{t0}, s{sG}, 3'); I(f's_sub_u32 s{t0}, s{t0}, 8')
        I(f'v_add_u32 v16, s{t0}, v16'); I('v_and_b32 v16, 255, v16')
        I('v_cmp_eq_u32 vcc, 2, v3')
        I('v_cndmask_b32 v15, v15, v16, vcc')
        I('v_lshlrev_b32 v14, 6, v15'); I(f'v_add_u32 v14, {WS_HELLO}, v14')

    def kv_pub(self, B):
        e, I = self.e, self.I
        t0, t1, t2 = sT[0:3]
        KA, KB = 132, 148
        for ks in range(4):
            a, b = (24, 25) if ks < 2 else (26, 27)
            st = 3584 if ks < 2 else 14336
            for ee in range(2):
                I(f'ds_read_b64_tr_b16 {vr(KA+4*ks+2*ee,2)}, v{a} offset:{((2*ks+ee)&3)*st}')
            for ee in range(2):
                I(f'ds_read_b64_tr_b16 {vr(KB+4*ks+2*ee,2)}, v{b} offset:{((2*ks+ee)&3)*st}')
        I('v_lshrrev_b32 v15, 1, v3'); I(f'v_mul_u32_u24 v15, 7168, v15'); I(f'v_add_u32 v15, {RXA}, v15')
        I('v_add_u32 v5, v5, v15'); I('v_add_u32 v6, v6, v15')
        for ks in range(4):
            I(f'{MF16} v[52:55], {vr(KA+4*ks,4)}, {vr(KB+4*ks,4)}, ' + ('0' if ks == 0 else 'v[52:55]'))
        I(f's_and_b32 s{t0}, s{sW}, 1'); I(f's_lshl_b32 s{t1}, s{t0}, 5')
        I(f'v_xor_b32 v7, s{t1}, v5')
        I(f's_lshr_b32 s{t1}, s{sA}, 1'); I(f's_lshl_b32 s{t2}, s{t1}, 14')
        I(f'v_add_u32 v7, s{t2}, v7')
        self.cvt(56, 52, 4)
        I(f'buffer_store_dwordx2 v[56:57], v31, {WS}, 0 offen sc1')
        self.stamp(4)
        I(f's_lshl_b32 s{t0}, s{t0}, 9'); I(f's_lshr_b32 s{t1}, s{sW}, 1'); I(f's_lshl_b32 s{t1}, s{t1}, 7'); I(f's_add_u32 s{t0}, s{t0}, s{t1}')
        I(f's_add_u32 s{t0}, s{t0}, {L_CSQ}')
        I(f'v_lshlrev_b32 v8, 3, v2'); I(f'v_add_u32 v8, s{t0}, v8')

    def q_phase(self, B, fill):
        e, I = self.e, self.I
        X, CF, CSA, AX, BX, T = self.X, self.CF, self.CSA, self.AX, self.BX, self.T
        QC = 164
        ci = [4, 5, 6] if B else [0, 1, 2, 3]
        QR = [132, 140, 148, 156, 180, 188]
        def qread(m):
            for t in range(2):
                b = QR[m % 6] + 4*t
                off = (m & 1)*16384 + (m >> 1)*1024
                I(f'ds_read_b64_tr_b16 {vr(b,2)}, v{5+t} offset:{off}')
                I(f'ds_read_b64_tr_b16 {vr(b+2,2)}, v{5+t} offset:{off+256}')
        for n, i in enumerate(ci):
            I(f'ds_read_b64_tr_b16 {vr(QC+4*n,2)}, v7 offset:{i*1024}')
            I(f'ds_read_b64_tr_b16 {vr(QC+4*n+2,2)}, v7 offset:{i*1024+256}')
        qread(0); qread(1); qread(2)
        I(f'v_mul_f32 v{T}, 0xbb124925, v68')
        self.split_b(T, BX, T+1)
        I('v_lshlrev_b32 v28, 3, v1'); I(f'v_add_u32 v28, {L_CSQ}, v28')
        for n in range(len(ci)):
            I(f'{MF16} {vr(CSA,4)}, v[32:35], {vr(QC+4*n,4)}, ' + ('0' if n == 0 else vr(CSA, 4)))
        qread(3); qread(4)
        fill = list(fill)
        vf = self.capture(lambda: (self.o_addr(), self.sel_mat(self.SEL, 15)))
        per = (len(vf) + 27) // 28
        for m in range(14):
            if m + 5 < 14: qread(m + 5)
            for t in range(2):
                acc = vr(44 + 4*t, 4)
                I(f'{MF16} {acc}, {vr(QR[m%6]+4*t,4)}, {vr(X+4*m,4)}, ' + ('0' if m == 0 else acc))
                for _ in range(per):
                    if vf: I(vf.pop(0))
                while vf and ('cselect' in vf[0] or 'vcc' in vf[0].split(',')[-1]): I(vf.pop(0))
            if m == 1:
                self.split_a(CSA, CF, CF+2)
                I(f'ds_write_b64 v8, {vr(CF,2)}')
            if fill: fill.pop(0)()
        for f in fill: f()

    def hello_chk(self):
        I = self.I
        ld = f'buffer_load_dword v0, v14, {WS}, 0 offen sc1'
        def chk():
            I('v_and_b32 v17, -16, v0')
            I(f'v_cmp_ne_u32 vcc, s{sTAG}, v17')
        self.poll2([ld], chk, 'hello')
        I(f'v_cmp_ne_u32 vcc, s{sMODE}, v0')
        I(f's_and_b32 s{sMODE}, vcc_lo, 0xffff')
        if self.force_slow: I(f's_mov_b32 s{sMODE}, 1')
        self.stamp(5)

    G, SEL, GAC = 76, 252, 144
    def gather_loads(self):
        return [f'buffer_load_dwordx4 {vr(self.G+4*p,4)}, v{200 + (p & 1)}, {WS}, s{sT[8+(p>>1)]} offen sc1' for p in range(8)]

    def o_addr(self):
        I, L = self.I, self.L
        t0, t1, t2 = sT[0:3]
        I(f'v_add_u32 v23, {L_KVR}, v4')
        I(f's_cmp_eq_u32 s{sODD}, 1')
        I(f's_cselect_b32 s{t0}, 0, {1024+12*16}'); I(f's_add_u32 s{t0}, s{t0}, {L_KVR}')
        I('v_lshlrev_b32 v24, 8, v3'); I(f'v_add_u32 v24, s{t0}, v24')
        I(f's_lshr_b32 s{t0}, s{sW}, 2'); I(f's_lshl_b32 s{t0}, s{t0}, 11'); I(f's_and_b32 s{t1}, s{sW}, 1'); I(f's_lshl_b32 s{t1}, s{t1}, 10')
        I(f's_add_u32 s{t0}, s{t0}, s{t1}'); I(f's_and_b32 s{t1}, s{sW}, 2'); I(f's_lshl_b32 s{t1}, s{t1}, 2'); I(f's_add_u32 s{t0}, s{t0}, s{t1}')
        I(f'v_add_u32 v25, s{t0}, v23')
        I(f's_mul_i32 s{t0}, s{sH}, 7'); I(f's_lshr_b32 s{t0}, s{t0}, 1')
        I('v_and_b32 v18, 1, v3'); I('v_lshrrev_b32 v19, 1, v3'); I('v_lshl_add_u32 v26, v18, 1, v19')
        I(f'v_add_u32 v18, s{t0}, v26')
        I('v_lshlrev_b32 v18, 8, v18'); I('v_lshl_add_u32 v18, v2, 4, v18')
        sOG = sX0
        I(f's_lshl_b32 s{t1}, s{sRB}, 1'); I(f's_lshr_b32 s{t2}, s{sW}, 2'); I(f's_add_u32 s{t1}, s{t1}, s{t2}')
        I(f's_mul_i32 s{sOG}, s{t1}, {L.GS}'); I(f's_add_u32 s{sOG}, s{sOG}, {WS_G}')
        I(f's_mul_i32 s{t0}, s{sA}, {TILE}'); I(f's_add_u32 s{t0}, s{t0}, {L.O}')
        I(f'v_add_u32 v18, s{t0}, v18')
        I('v_add_u32 v19, 8, v18')
        I(f'v_mov_b32 v20, {BIG}')
        I(f'v_cndmask_b32 v18, v18, v20, s[{sM0}:{sM0+1}]')
        I(f'v_cndmask_b32 v19, v19, v20, s[{sM1}:{sM1+1}]')
        I('v_cmp_eq_u32 vcc, 0, v1'); I('v_cndmask_b32 v21, v20, v13, vcc')
        I(f's_lshl_b32 s{t0}, s{sA}, 6'); I(f's_lshl_b32 s{t1}, s{sH}, 2'); I(f's_add_u32 s{t0}, s{t0}, s{t1}')
        I(f's_add_u32 s{t0}, s{t0}, {L.F_O}'); I(f's_add_u32 s{sX1}, s{t0}, s{sOG}')
        I(f'v_mov_b32 v27, s{sTAG}')

    def tail_p1(self, B, burst2, shadow):
        e, I = self.e, self.I
        AX, BX, T = self.AX, self.BX, self.T
        t0, t1 = sT[0:2]
        e.wait_lg0(); self.bar(3)
        self.kv_pub(B)
        if B: self.pre_b3(B)
        I(f'buffer_load_dword v0, v14, {WS}, 0 offen sc1')
        if not B: self.touches('t3')
        fill = [(lambda m=m: self.sq_dma('wo', RA, m, 'wo')) for m in range(B, 14, 2)]
        for _ in range(self.o.get('wo0', 3)): fill.pop(0)()
        I(f's_lshl_b32 s{t0}, s{sW}, 9'); I(f's_lshl_b32 s{t1}, s{sH}, 16'); I(f's_add_u32 s{t0}, s{t0}, s{t1}')
        I(f's_add_u32 s{t0}, s{t0}, {WS_KVP}')
        I('v_and_b32 v15, 31, v1'); I('v_lshlrev_b32 v15, 4, v15'); I('v_lshrrev_b32 v16, 5, v1')
        I('v_lshl_add_u32 v15, v16, 15, v15'); I(f'v_add_u32 v200, s{t0}, v15')
        I('v_add_u32 v201, 4096, v200')
        e.wait_tag('wq')
        self.bar('3q')
        w1g = self.o.get('w1g', -1)
        w1l = [(lambda m=m: self.sq_dma('w1', RB, m, 'w1')) for m in range(B, 14, 2)] if w1g >= 0 else []
        if w1g >= 0: fill += w1l[:w1g]; w1l = w1l[w1g:]
        elif not B: fill += [(lambda i=i: self.w1p(i)) for i in list(range(4)) + list(range(self.nw1, 14))]
        if self.o.get('fsp', 1) and len(fill) <= 7: fill = [f for x in fill for f in (x, lambda: None)]
        self.q_phase(B, fill)
        I(f's_and_b32 s{t0}, s{sRB}, {self.o.get("grot", 1)}'); I(f's_lshl_b32 s{t0}, s{t0}, 14')
        for p in range(4): I(f's_xor_b32 s{sT[8+p]}, s{t0}, {p*8192}')
        self.hello_chk()
        loads = self.gather_loads()
        for t in loads: I(t)
        if not B: self.touches('t4')
        for _ in range(self.o.get('w1h', 7)):
            if w1l: w1l.pop(0)()
        e.wait_lg0(); self.bar('3b')
        for t in range(2): I(f'ds_read_b64 {vr(AX+4*t,2)}, v28 offset:{t*512}')
        burst2()
        for t in range(2):
            acc = vr(44 + 4*t, 4)
            I(f'{MF16} {acc}, {vr(AX+4*t,4)}, {vr(BX,4)}, {acc}')
        self.cvt(T+4, 44, 8)
        I(f'{MF16} v[44:47], v[36:39], {vr(T+4,4)}, 0')
        I(f'{MF16} v[48:51], v[40:43], {vr(T+4,4)}, 0')
        shadow()
        sm = self.capture(lambda: self.softmax2(44, 60, T, 22, 30))
        for n, t in enumerate(sm):
            I(t)
            if n % 8 == 7 and w1l: w1l.pop(0)()
        assert not w1l
        self.stamp(6)
        AC = self.GAC
        def chk3():
            for p in range(8):
                I(f'{MF16} {vr(AC,4)}, {vr(self.SEL,4)}, {vr(self.G+4*p,4)}, ' + ('0' if p == 0 else vr(AC, 4)))
            I(f'v_cmp_u_f32 vcc, v{AC}, v{AC}')
        self.poll2(loads, chk3, 'kvg')
        self.stamp(7)
        self.cvt(152, AC, 4)
        I('ds_write_b64 v25, v[152:153]')
        e.wait_lg0(); self.bar()
        self.o_phase()

    def capture(self, fn):
        out = []
        self.I = lambda t, **k: out.append(t)
        try: fn()
        finally: del self.I
        return out

    def poll2(self, loads, check, name):
        e = self.e
        done, retry = e.newlabel('Lpd' + name), e.newlabel('Lpr' + name)
        check()
        self.I(f's_cbranch_vccnz {retry}')
        e.label(done)
        sn = e.snap()
        save = e.out; e.out = []
        e.label(retry)
        e.wait_vm0()
        for t in loads: self.I(t)
        check()
        self.I(f's_cbranch_vccz {done}')
        self.I(f's_sub_u32 s{sSPIN}, s{sSPIN}, 1')
        self.I(f's_cbranch_scc0 {retry}')
        self.I(f's_mov_b32 s{sSPIN}, 0')
        self.I(f's_branch {done}')
        e.ool += e.out; e.out = save
        e.restore(sn)

    def poll3(self, loads, check, name):
        e = self.e
        top, done = e.newlabel('Lpoll' + name), e.newlabel('Lpd' + name)
        e.label(top)
        for t in loads: self.I(t)
        e.wait_vm0()
        check()
        self.I(f's_cbranch_vccz {done}')
        self.I(f's_sub_u32 s{sSPIN}, s{sSPIN}, 1')
        self.I(f's_cbranch_scc0 {top}')
        self.I(f's_mov_b32 s{sSPIN}, 0')
        e.label(done)

    def o_flag(self, tag=None):
        if tag: self.e.wait_tag(tag)
        else: self.e.wait_vm0()
        self.stores([f'buffer_store_dword v27, v21, {WS}, s{sX1} offen'])
        self.stamp(9)

    def mix(self, mf, other, lead=0):
        other = list(other)
        def run(x): x() if callable(x) else self.I(*x) if isinstance(x, tuple) else self.I(x)
        for _ in range(lead):
            if other: run(other.pop(0))
        n = len(other); done = 0
        for k, t in enumerate(mf):
            self.I(t)
            want = -(-n * (k + 1) // max(1, len(mf) - 1))
            while done < min(n, want): run(other[done]); done += 1
        while done < n: run(other[done]); done += 1
    def lpoll(self, reads, check, name):
        e = self.e
        done, retry = e.newlabel('Lld' + name), e.newlabel('Llr' + name)
        check()
        self.I(f's_cbranch_vccnz {retry}')
        e.label(done)
        sn = e.snap()
        save = e.out; e.out = []
        e.label(retry)
        e.wait_lg0()
        for t in reads: self.I(t)
        e.wait_lg0()
        check()
        self.I(f's_cbranch_vccz {done}')
        self.I(f's_sub_u32 s{sSPIN}, s{sSPIN}, 1')
        self.I(f's_cbranch_scc0 {retry}')
        self.I(f's_mov_b32 s{sSPIN}, 0')
        self.I(f's_branch {done}')
        e.ool += e.out; e.out = save
        e.restore(sn)
    def xrd(self, dst, m, ring, tag=None):
        va = ((12, 21), (44, 45))[ring][m & 1]
        slot = (m >> 1) if ring else (m >> 1) & 3
        return (f'ds_read_b128 {vr(dst,4)}, v{va} offset:{slot*2048}', tag)
    def wrd(self, dst, m, mat):
        return [f'ds_read_b64_tr_b16 {vr(dst+2*n,2)}, v{5+(n>>1)} offset:{mat*28672 + m*2048 + (n&1)*256}' for n in range(4)]
    def hello(self):
        I = self.I
        t0 = sT[0]
        I(f'v_mov_b32 v15, s{sMODE}')
        I(f's_lshl_b32 s{t0}, s{sL}, 6'); I(f's_add_u32 s{t0}, s{t0}, {WS_HELLO}')
        I(f's_cmp_eq_u32 s{sW}, 0'); I(f's_cselect_b32 s{t0}, s{t0}, {BIG}')
        I(f'v_mov_b32 v16, s{t0}')
        I(f'buffer_store_dword v15, v16, {WS}, 0 offen sc1')

    def p1_A(self, burst2, shadow):
        e, I = self.e, self.I
        X, AX = self.X, self.AX
        e.vm = self.vmA
        self.init_A()
        self.stamp('su')
        if self.o.get('x0', 2) < 2: self.xdma(1, 1, 'c1')
        I('s_setprio 1')
        WR, X2 = 132, 164
        def kreads(m):
            return [self.xrd(X + 4*m, m, 0, f'xr{m>>1}'), self.xrd(X2 + 4*(m % 3), m, 1)] + self.wrd(WR + 8*(m & 3), m, 0)
        def kstep(m):
            xa, xb = vr(X + 4*m, 4), vr(X2 + 4*(m % 3), 4)
            w = [vr(WR + 8*(m & 3) + 4*t, 4) for t in range(2)]
            ops = [(68, 'v[32:35]', xa), (72, 'v[32:35]', xb), (196, 'v[32:35]', w[0]), (200, 'v[32:35]', w[1]),
                   (52, w[0], xa), (60, w[0], xb), (56, w[1], xa), (64, w[1], xb)]
            return [f'{MF16} {vr(c,4)}, {p}, {q}, ' + ('0' if m == 0 else vr(c, 4)) for c, p, q in ops]
        def mwarm(p):
            if self.o.get('mw') and self.o.get('km', 99) == p:
                for ch in self.o['mw']:
                    I(f'buffer_load_dword v{7 if p < 6 else 10}, v{50 if ch in "o12" else 51}, {srd("wo" if ch == "o" else "w" + ch)}, 0 offen')
                    e.vm[-1]['dst'] = set()
        mwarm(-1)
        e.wait_tag('c0'); self.bar('c0')
        self.mix([], kreads(0))
        self.xdma(2, 2, 'c2')
        for m in range(14):
            i = m >> 1
            if m & 1 and i < 6:
                e.wait_tag(f'xr{i}'); e.wait_tag('nw'); e.wait_tag(f'c{i+1}'); self.bar(f'c{i+1}')
            self.mix(kstep(m), kreads(m + 1) if m < 13 else [], 2)
            if not m & 1 and i + 3 < 7: self.xdma(i + 3, (i + 3) & 3, f'c{i+3}')
            mwarm(m)
            if m == 5: I('ds_write_b32 v28, v14 offset:24', tag='nw')
            if m == 8: self.phi_frags(); self.tag_read()
            if m == 10: self.phi_mask(); self.get_tag()
        self.stamp(2)
        if self.o.get('vq'): I('ds_write_b32 v28, v32 offset:4')
        if not self.o.get('aprio', 1): I('s_setprio 0')
        def wq(i):
            I(f's_mul_i32 s{self.sCw}, s{self.sCx}, 1344')
            I(f's_add_u32 m0, s{self.sMX}, {i*1024}')
            I(f'buffer_load_dwordx4 v9, {srd("wqkv")}, s{self.sCw} offen lds', tag='wq')
            self.adv()
        def touch(ch):
            if ch in 'o12': I(f'buffer_load_dword v12, v218, {srd("wo" if ch == "o" else "w"+ch)}, 0 offen')
            if ch in '34bc': I(f'buffer_load_dword v12, v219, {srd("w3")}, 0 offen offset:{128*"34bc".index(ch)}')
            if ch == '5': I(f'buffer_load_dword v12, v219, {srd("w4")}, 0 offen')
            if ch == 'g': I(f'buffer_load_dword v12, v0, {WS}, s{sGB} offen sc1')
            e.vm[-1]['dst'] = set()
        def touches(key):
            for ch in self.o.get(key, '-'):
                if ch != '-': touch(ch)
        def w1p(i):
            I(f's_add_u32 m0, s{sT[10]}, {i*1024}')
            I(f's_add_u32 s{self.sCw}, s{sT[9]}, {i*7168}')
            I(f'buffer_load_dwordx4 v{216+(i&1)}, {srd("w1")}, s{self.sCw} offen lds', tag='w1')
        self.w1p = w1p
        BXS = [224, 216]
        for n in range(2):
            I(f'v_mul_f32 v{228+2*n}, v{68+4*n}, v29')
        la = [self.capture(lambda n=n: self.split_b(228+2*n, BXS[n], 229+2*n)) for n in range(2)]
        la += [self.capture(lambda n=n: self.split_a(196+4*n, AX+4*n, 197+4*n)) for n in range(2)]
        for r in zip(*la):
            for t in r: I(t)
        srd_ = 'ds_read_b64 v[48:49], v28 offset:8'
        for n in range(2):
            for t in range(2):
                acc = vr(52 + 8*n + 4*t, 4)
                I(f'{MF16} {acc}, {vr(AX+4*t,4)}, {vr(BXS[n],4)}, {acc}')
        KC = [204, 220]
        for n in range(2):
            self.cvt(KC[n], 52 + 8*n, 8)
            for t in range(2): I(f'{MF16} {vr(52+8*n+4*t,4)}, {vr(36+4*t,4)}, {vr(KC[n],4)}, 0')
        I(srd_)
        I('v_mov_b32 v216, v47'); I('v_xor_b32 v217, 64, v47'); I('v_mov_b32 v218, v50'); I('v_mov_b32 v219, v51')
        I(f's_mul_i32 s{sT[9]}, s{sA}, {14*7168}')
        pkA = self.o.get('pka', 0)
        smf = self.softmax2 if pkA else self.softmax2s
        sm = [self.capture(lambda n=n: (smf(52 + 8*n, 132 + 8*n, (228, 172)[n], 22, (48, 148 if pkA else 49)[n]),
                  [self.I(f'ds_write_b64 v{(23,46)[n]}, {vr(132+8*n+2*t,2)} offset:{t*32}') for t in range(4)])) for n in range(2)]
        pk = [t for r in zip(*sm) for t in r]
        if self.o.get('nosm'): pk = pk[:34] + pk[-8:]
        first = min(n for n, t in enumerate(pk) if t.endswith('v48') or 'v[48:49]' in t)
        qd = self.o.get('qd', 10)
        jobs = []; nq = 0; self.nw1 = 4
        for ch in self.o.get('kj', 'hgqqqqqqqwwwwwwwwww'):
            if ch == 'h': jobs.append(self.hello)
            elif ch == 'q': jobs.append(lambda i=nq: wq(i)); nq += 1
            elif ch == 'w': jobs.append(lambda i=self.nw1: w1p(i)); self.nw1 += 1
            else: jobs.append(lambda ch=ch: touch(ch))
        assert nq == (0 if self.o.get('vq') else 7) and 'h' in self.o.get('kj', 'h')
        for n, t in enumerate(pk):
            if n == first:
                self.lpoll([srd_], lambda: I('v_cmp_eq_u32 vcc, 0, v49'), 'sc')
                self.stamp('k1')
                if pkA: I('v_mov_b32 v148, v49')
            if n >= first + self.o.get('q0', 0) and (n - first) % qd == 0 and jobs: jobs.pop(0)()
            I(t)
        self.stamp('k2')
        for f in jobs: f()
        I('v_mov_b32 v30, v48')
        I('s_setprio 0')
        self.touches = touches
        self.pre_b3(False)
        self.stamp('sa')
        self.tail_p1(False, burst2, shadow)

    def tag_read(self):
        self.I(f'v_mov_b32 v14, {MISC + 2*3584 + 192 + 24}')
        self.I('ds_read_b32 v14, v14')

    def p1_B(self, burst2, shadow):
        e, I = self.e, self.I
        X, AX = self.X, self.AX
        X2, WR, CF, CSA = 132, 228, 196, 220
        e.vm = self.vmB
        self.init_B()
        self.stamp('su')
        if self.o.get('xb0', 1) < 2: self.xdma(1, 1, 'c1')
        tch = f'buffer_load_dword v51, v50, {srd("wqkv")}, 0 offen'
        tp = self.o.get('tvp', -1) if self.o.get('tv', 1) else 99
        if tp < 0: I(tch)
        e.wait_lg0()
        grp = [0, 0, 0, 1, 1, 2, 2]
        vs = [int(ch) for ch in self.o.get('vs', '5555666')]
        XT = [X2, X]; RS = [188, 68]; XX = [192, 72]
        for i in range(7):
            e.wait_tag(f'c{i}'); self.bar(f'c{i}')
            for m in (2*i, 2*i + 1):
                for n in range(2): I(*self.xrd(XT[n] + 4*m, m, n))
            dm = []
            if i + 2 < 7: dm += [lambda i=i: self.wdma(i + 2, 0, f'c{i+2}'), lambda i=i: self.xdma(i + 2, i + 2, f'c{i+2}')]
            if tp == i: dm.append(tch)
            dm += [lambda c=c: self.wdma(c, 1, f'v{grp[c]}') for c in range(7) if vs[c] == i]
            mf = []
            for m in (2*i, 2*i + 1):
                for n in range(2):
                    x = vr(XT[n] + 4*m, 4)
                    mf.append(f'{MF16} {vr(XX[n],4)}, {x}, {x}, ' + ('0' if m == 0 else vr(XX[n], 4)))
                    mf.append(f'{MF16} {vr(RS[n],4)}, v[32:35], {x}, ' + ('0' if m == 0 else vr(RS[n], 4)))
            self.mix(mf, dm, self.o.get('dlead', 2))
            if i == 4: self.phi_frags(); self.tag_read()
            if i == 5: self.phi_mask(); self.get_tag()
        self.stamp(2)
        BXS = [216, 224]
        def stats():
            I = self.I
            for n in range(2):
                for r in range(4): I(f'v_mul_f32 v{XX[n]+r}, v{XX[n]+r}, v{252+r}')
            for n in range(2):
                x = XX[n]
                I(f'v_add_f32 v{x}, v{x}, v{x+1}'); I(f'v_add_f32 v{x+2}, v{x+2}, v{x+3}')
                I(f'v_mul_f32 v{x+1}, s{sC448}, v{RS[n]}')
            for n in range(2): I(f'v_add_f32 v{XX[n]}, v{XX[n]}, v{XX[n]+2}')
            for n in range(2): I(f'v_mul_f32 v{XX[n]+1}, v{XX[n]+1}, v{XX[n]+1}')
            self.allred2(XX[0], XX[1], XX[0]+2, 'v_add_f32')
            for n in range(2): I(f'v_fma_f32 v{XX[n]}, v{XX[n]}, s{sC448}, -v{XX[n]+1}')
            for n in range(2): I(f'v_add_f32 v{XX[n]}, 0x3727c5ac, v{XX[n]}')
            for n in range(2): I(f'v_rsq_f32 v{RS[n]+2}, v{XX[n]}')
            for n in range(2): I(f'v_mul_f32 v{204+n}, s{sL2E}, v{RS[n]+2}')
            I('ds_write_b64 v28, v[204:205] offset:8')
            I('v_mov_b32 v30, v205')
            for n in range(2):
                I(f'v_mul_f32 v{XX[n]}, v{RS[n]}, v29')
                self.split_b(XX[n], BXS[n], XX[n]+1)
        frd = 'ds_read_b32 v15, v47'
        def fwr(n, tag=None):
            if tag: e.wait_tag(tag)
            I(f'v_mov_b32 v16, {n}'); I('ds_write_b32 v28, v16')
        def fchk(n, extra=()):
            self.lpoll([frd] + list(extra), lambda: I(f'v_cmp_gt_u32 vcc, {n}, v15'), f'vf{n}')
        csr = lambda c: [f'ds_read_b64_tr_b16 {vr(CF+4*(c&1)+2*n,2)}, v7 offset:{c*4096+n*256}' for n in range(2)]
        csm = lambda c: f'{MF16} {vr(CSA,4)}, v[32:35], {vr(CF+4*(c&1),4)}, ' + ('0' if c == 0 else vr(CSA, 4))
        axr = [f'ds_read_b64 {vr(AX+4*t,2)}, v8 offset:{t*3584}' for t in range(2)]
        st = self.capture(stats)
        n0 = self.o.get('st00', 34)
        if self.o.get('sprio', 1): I('s_setprio 2')
        for t in st[:n0]: I(t)
        if self.o.get('sprio', 1): I('s_setprio 0')
        st = st[n0:]
        n0 = self.o.get('st0', 18)
        fwr(1, 'v0'); I(frd)
        for t in st[:n0]: I(t)
        st = st[n0:]
        fchk(1)
        self.stamp('v1')
        vq = self.o.get('vq', '')
        def wq(i):
            if i == 0: I('v_subrev_u32 v9, 896, v9')
            I(f's_mul_i32 s{self.sCw}, s{self.sCx}, 1344')
            I(f's_add_u32 m0, s{sT[9]}, {i*1024}')
            I(f'buffer_load_dwordx4 v9, {srd("wqkv")}, s{self.sCw} offen lds', tag='wq')
            self.adv()
        for i, ch in enumerate(vq):
            if ch == '_': wq(i)
        if self.o.get('bprio', 0): I('s_setprio 2')
        wr = lambda m: self.wrd(WR + 8*(m % 3), m, 1)
        for t in wr(0) + wr(1) + csr(0): I(t)
        n1 = self.o.get('st1', 12)
        for t in st[:n1]: I(t)
        st = st[n1:]
        extra = {m: [] for m in range(14)}; xm = {m: [] for m in range(14)}
        extra[0] = csr(1); xm[1] = [csm(0)]; extra[2] = csr(2); xm[2] = [csm(1)]; xm[3] = [csm(2)]
        extra[1].append(lambda: fwr(2, 'v1')); extra[2].append(frd); extra[3].append(lambda: fchk(2))
        extra[4] = csr(3) + csr(4); xm[6] = [csm(3)]; xm[7] = [csm(4)]
        extra[5].append(lambda: fwr(3, 'v2')); extra[6].append(frd); extra[7].append(lambda: fchk(3))
        extra[8] = csr(5) + csr(6); xm[9] = [csm(5), csm(6)]
        extra[10] = self.capture(lambda: self.split_a(CSA, 206, CF)) + ['ds_write_b64 v28, v[206:207] offset:16', lambda: fwr(4)]
        extra[12] = [frd] + axr
        for i, ch in enumerate(vq):
            if ch not in '_z': extra[int(ch, 16)].append(lambda i=i: wq(i))
        for m in range(14):
            mf = []
            for t in range(2):
                for n in range(2):
                    c = vr(52 + 8*n + 4*t, 4)
                    mf.append(f'{MF16} {c}, {vr(WR+8*(m%3)+4*t,4)}, {vr(XT[n]+4*m,4)}, ' + ('0' if m == 0 else c))
            ot = (wr(m + 2) if m + 2 < 14 else []) + extra[m]
            ot += st[:6]; st = st[6:]
            if m in (8,): ot = extra[m] + wr(m + 2)
            self.mix(mf + xm[m], ot)
            self.stamp(f'w{m}')
        assert not st
        fchk(4, axr)
        self.stamp('sb')
        for i, ch in enumerate(vq):
            if ch == 'z': wq(i)
        for n in range(2):
            for t in range(2):
                acc = vr(52 + 8*n + 4*t, 4)
                I(f'{MF16} {acc}, {vr(AX+4*t,4)}, {vr(BXS[n],4)}, {acc}')
        for n in range(2):
            c = 52 + 8*n
            for i in range(0, 8, 2):
                I(f'v_pk_mul_f32 {vr(c+i,2)}, {vr(c+i,2)}, {vr(RS[n]+2,2)} op_sel_hi:[1,0]')
            I(f'v_cndmask_b32 v{c}, v{c}, 1.0, s[{sM0}:{sM0+1}]')
            I(f'v_cndmask_b32 v{c+4}, v{c+4}, 1.0, s[{sM1}:{sM1+1}]')
            self.cvt(c, c, 8)
            I(f'ds_write_b64 v{(23,46)[n]}, {vr(c,2)} offset:128')
            I(f'ds_write_b64 v{(23,46)[n]}, {vr(c+2,2)} offset:160')
        I('s_setprio 0')
        self.tail_p1(True, burst2, shadow)

    def build(self):
        e, I = self.e, self.I
        if self.o.get('mlp', 7) == 7:
            import g7 as g6
            if self.o['w2a'] < 9: self.o['w2a'] = 9
        elif self.o['mlp'] == 9:
            import g9 as g6
            self.o['w2a'] = 9
        elif self.o['mlp'] == 10:
            import g10 as g6
            self.o['w2a'] = 9
        else: import g6
        self.prologue()
        sn = e.snap()
        self.nbar = 0
        if self.v4: self.p1_A(g6)
        else: self.p1_A(lambda: None, lambda: g6.main_pre(self))
        I(f's_cmp_eq_u32 s{sJ}, 7')
        I('s_cbranch_scc1 ' + ('Lj7b' if self.v4 else 'Lj7'))
        if self.stop != 'o': g6.main_rest(self)
        elif not self.v4: self.o_flag()
        self.finish()
        na = self.nbar
        e.restore(sn)
        e.label('LB')
        self.nbar = 0
        if self.v4: self.p1_B(g6)
        else: self.p1_B(lambda: g6.aux_burst2(self), lambda: g6.aux_pre(self))
        I(f's_cmp_eq_u32 s{sJ}, 7')
        I('s_cbranch_scc1 Lj7')
        if self.stop != 'o': g6.aux_rest(self)
        else: self.o_flag()
        self.dump_stamps()
        I('s_branch Lend')
        assert na == self.nbar, (na, self.nbar)
        e.label('Lj7')
        e.hist = []; e.nop(4)
        self.o_flag()
        e.label('Lj7b')
        e.hist = []; e.nop(4); e.wait_all()
        e.barrier()
        g6.j7_jobs(self)
        self.dump_stamps()
        e.label('Lend')
        e.raw('  s_endpgm')
        head = f"""; fused persistent kernel (generated) {'stamps=' + self.o['stamps'] if self.o.get('stamps') else ''}
; @launch grid=(256,1,1) block=(512,1,1) lds={LDS_BYTES}
.amdgcn_target "amdgcn-amd-amdhsa--gfx950"
.text
.globl {KN}
.p2align 8
.type {KN},@function
{KN}:
"""
        tail = f"""
  s_endpgm
Lcodeend:
.fill {self.o.get('pad', 64)}, 4, 0xbf800000
.section .rodata,"a"
.p2align 6
.amdhsa_kernel {KN}
  .amdhsa_next_free_vgpr 256
  .amdhsa_next_free_sgpr 102
  .amdhsa_accum_offset 256
  .amdhsa_group_segment_fixed_size 0
  .amdhsa_kernarg_size 96
  .amdhsa_user_sgpr_count 2
  .amdhsa_user_sgpr_kernarg_segment_ptr 1
  .amdhsa_system_sgpr_workgroup_id_x 1
.end_amdhsa_kernel
"""
        return head + e.text() + tail

def main(K):
    import argparse
    ap = argparse.ArgumentParser()
    ap.add_argument('-o', default='k.s'); ap.add_argument('--stop'); ap.add_argument('--slow', action='store_true')
    ap.add_argument('--opt', action='append', default=[])
    a = ap.parse_args()
    opts = {}
    for kv in a.opt:
        k, v = kv.split('='); opts[k] = int(v) if v.lstrip('-').isdigit() and k not in ('stamps', 'pf', 'j7', 'xs', 'vs', 'kj', 't3', 't4', 'vq', 'tO', 'tH', 'tT', 'tX', 'mw', 'kw', 'k2', 'k5', 'k6', 'k7', 's0', 'qn', 'kt', 'bs', 'sn', 'sw', 'sk', 'k4', 'k9', 'ka', 'kb', 'kc', 'kd', 'bt') else v
    k = K(stop=a.stop, force_slow=a.slow, opts=opts)
    s = k.build()
    open(a.o, 'w').write(s)
    print('instrs', k.e.nins, 'nops', k.e.nnop, 'bytes(src)', len(s))

if __name__ == '__main__':
    main(K)
```

```python
from g5 import *
import g4
from g4 import GA, GB_, f32, pack_pairs, row_stats, stat_addrs, gelu_consts

vZ, vBIG, vL0, vSIG, vTAG, vB, vST = 13, 20, 21, 26, 27, 28, 29
SB = [5, 6, 7, 8]
BF = 76
AR = 148
NSLOT = 5
HR = 60
ACC = 44
CS1 = 132
BXT = 40
XA = 244
vTP, vHP, vHS, vTF, vOP = 250, 251, 252, 253, 254
RES = 240
W3P = 228
U0, U1 = RC + 28672, RA
PB = [(36 - 7*n)*TILE for n in range(4)]
L_F2 = 162304
STEP_REG = [RB, RB + 28672, RC, RB, RB + 28672, RC, RA + 16384, RB]

def main_pre(k):
    I = k.I
    t0, t1 = sT[0:2]
    I(f's_lshl_b32 s{t0}, s{sG}, 6'); I(f's_lshl_b32 s{t1}, s{sW}, 4'); I(f's_add_u32 s{t0}, s{t0}, s{t1}')
    I(f'v_add_u32 v15, s{t0}, v2'); I('v_mul_u32_u24 v15, 896, v15')
    I(f's_lshl_b32 s{t0}, s{sJ}, 7')
    I('v_lshl_add_u32 v15, v3, 3, v15')
    for t in range(4):
        I(f'buffer_load_dwordx2 {vr(52+2*t,2)}, v15, {srd("x")}, s{t0} offen offset:{t*32}')

def main_addr1(k):
    I, L = k.I, k.L
    t0, t1 = sT[0:2]
    I('v_bfe_u32 v15, v1, 2, 2')
    I('v_lshl_add_u32 v16, v3, 3, v15'); I('v_lshlrev_b32 v16, 7, v16')
    I('v_and_b32 v17, 3, v1'); I('v_lshl_add_u32 v16, v17, 3, v16')
    I('v_lshrrev_b32 v15, 1, v15'); I('v_and_b32 v17, 1, v3'); I('v_lshl_add_u32 v15, v17, 1, v15')
    I(f'v_lshl_add_u32 v{SB[0]}, v15, 5, v16')
    for t in range(1, 4): I(f'v_xor_b32 v{SB[t]}, {t*32}, v{SB[0]}')
    I(f's_mul_i32 s{t0}, s{sW}, {TILE}'); I(f's_add_u32 s{t0}, s{t0}, s{sGB}')
    I(f'v_add_u32 v{vB}, s{t0}, v4')
    I(f's_lshl_b32 s{t0}, s{sW}, 6'); I(f's_add_u32 s{t0}, s{t0}, s{sGB}'); I(f's_add_u32 s{t0}, s{t0}, {L.F_O}')
    I(f'v_lshlrev_b32 v{vOP}, 2, v2'); I(f'v_add_u32 v{vOP}, s{t0}, v{vOP}')

def main_addr2(k):
    I, L = k.I, k.L
    t0, t1, t2, t3 = sT[0:4]
    I(f's_mul_i32 s{t0}, s{sW}, {TILE}'); I(f's_add_u32 s{t0}, s{t0}, s{sGB}')
    I(f's_lshl_b32 s{t1}, s{sJ}, 11'); I(f's_add_u32 s{t0}, s{t0}, s{t1}')
    I(f'v_lshlrev_b32 v31, 8, v{vSIG}'); I('v_lshl_add_u32 v31, v2, 4, v31')
    I(f'v_add_u32 v{vST}, s{t0}, v31')
    I(f's_lshl_b32 s{t0}, s{sW}, 3'); I(f's_add_u32 s{t0}, s{t0}, s{sJ}'); I(f's_lshl_b32 s{t0}, s{t0}, 8')
    I(f's_add_u32 s{t0}, s{t0}, s{sGB}'); I(f's_add_u32 s{t0}, s{t0}, {L.ST}')
    I(f'v_add_u32 v9, s{t0}, v4')
    I('v_cmp_eq_u32 vcc, 0, v3'); I(f'v_cndmask_b32 v9, v{vBIG}, v9, vcc')
    stat_addrs(k, 10, 11)
    for t in range(4): I(f'v_mov_b32 v{CS1+4*t+2}, 0'); I(f'v_mov_b32 v{CS1+4*t+3}, 0')
    I(f'v_mov_b32 v{BXT+2}, 0'); I(f'v_mov_b32 v{BXT+3}, 0')
    I(f's_add_u32 s{t0}, s{sGB}, {L.GS + L.T0 - TILE}')
    I(f's_cmp_eq_u32 s{sG}, 31'); I(f's_cselect_b32 s{t0}, {BIG}, s{t0}')
    I(f's_sub_u32 s{t1}, s{sGB}, {L.GS - L.T0 - 4*TILE}')
    I(f's_cmp_eq_u32 s{sG}, 0'); I(f's_cselect_b32 s{t1}, {BIG}, s{t1}')
    I(f's_cmp_eq_u32 s{sW}, 3'); I(f's_cselect_b32 s{t0}, s{t0}, s{t1}')
    I(f's_cselect_b32 s{t2}, 0xc000c000, 0')
    I(f's_cmp_eq_u32 s{sW}, 0'); I(f's_cselect_b32 s{t2}, 0x00030003, s{t2}'); I(f's_mov_b32 s{t3}, s{t2}')
    I(f's_lshl_b32 s{t1}, s{sJ}, 11'); I(f's_add_u32 s{t0}, s{t0}, s{t1}')
    hc = k.o.get('hc')
    if hc:
        I('v_and_b32 v15, 1, v2'); I(f'v_lshl_add_u32 v15, v{vSIG}, 1, v15'); I('v_lshlrev_b32 v15, 4, v15'); I(f'v_add_u32 v15, s{t0}, v15')
    else: I(f'v_add_u32 v15, s{t0}, v31')
    I(f'v_cndmask_b32 v{vHS}, v{vBIG}, v15, s[{t2}:{t3}]')
    if k.o.get('xb') == 1: I(f'v_mov_b32 v{vHS}, v{vBIG}')
    I(f's_lshl_b32 s{t0}, s{sW}, 5'); I(f's_lshl_b32 s{t1}, s{sJ}, 2'); I(f's_add_u32 s{t0}, s{t0}, s{t1}')
    I(f's_add_u32 s{t0}, s{t0}, s{sGB}'); I(f's_add_u32 s{t0}, s{t0}, {L.F_T}')
    I(f'v_add_u32 v{vTF}, s{t0}, v{vL0}')
    I(f's_lshl_b32 s{t0}, s{sW}, 4'); I(f's_add_u32 s{t0}, s{t0}, 16')
    I(f'v_add_u32 v15, s{t0}, v2')
    I(f'v_lshlrev_b32 v16, 8, v3'); I(f'v_add_u32 v16, s{sGB}, v16')
    if hc: I('v_mul_i32_i24 v19, -14, v3')
    for i, d in enumerate((-1, 1, -2, 2)):
        I(f'v_add_u32 v17, {d}, v15')
        if k.o.get('xa') == 1: I('v_mov_b32 v18, 79'); I('v_med3_i32 v17, v17, 16, v18')
        I(f'v_lshrrev_b32 v{XA+i}, 4, v17'); I(f'v_mul_u32_u24 v{XA+i}, {TILE}, v{XA+i}')
        if hc:
            I('v_add_u32 v18, -16, v17'); I('v_cmp_lt_u32 vcc, 63, v18')
            I('v_and_b32 v18, 1, v17'); I('v_and_b32 v17, 15, v17'); I('v_add_u32 v18, v18, v19'); I('v_cndmask_b32 v17, v17, v18, vcc')
        else: I('v_and_b32 v17, 15, v17')
        I(f'v_lshl_add_u32 v{XA+i}, v17, 4, v{XA+i}')
        I(f'v_add_u32 v{XA+i}, v{XA+i}, v16')
    I('v_cmp_gt_u32 vcc, 2, v3')
    I(f'v_cndmask_b32 v{XA+4}, v{XA+1}, v{XA}, vcc'); I(f'v_cndmask_b32 v{XA+5}, v{XA+3}, v{XA+2}, vcc')
    if 't' in k.o.get('sn', ''): return
    assert not hc
    I('v_lshrrev_b32 v15, 3, v1'); I(f'v_add_u32 v15, s{sW}, v15'); I('v_add_u32 v15, -1, v15')
    I(f's_add_u32 s{t0}, s{sW}, 1'); I(f's_min_u32 s{t0}, s{t0}, 3')
    I(f'v_med3_i32 v15, v15, 0, s{t0}')
    I('v_and_b32 v16, 7, v1'); I('v_min_u32 v16, 6, v16'); I('v_lshlrev_b32 v16, 2, v16')
    I('v_lshl_add_u32 v15, v15, 5, v16'); I(f'v_add_u32 v{vTP}, {L.F_T}, v15')
    I(f's_mov_b32 s{t0}, {BIG}')
    I(f's_cmp_eq_u32 s{sW}, 0'); I(f's_cselect_b32 s{t0}, {L.T0-TILE+236}, s{t0}')
    I(f's_cmp_eq_u32 s{sW}, 3'); I(f's_cselect_b32 s{t0}, {L.T0+4*TILE+12}, s{t0}')
    I('v_lshlrev_b32 v17, 8, v1'); I(f'v_add_u32 v17, s{t0}, v17')
    I('v_cmp_gt_u32 vcc, 56, v1'); I(f'v_cndmask_b32 v{vHP}, v{vBIG}, v17, vcc')


def t_prefill(k):
    I, L = k.I, k.L
    t0, t1, t2 = sT[0:3]
    for i in range(4): I(f'v_mov_b32 v{64+i}, -1')
    I(f's_lshl_b32 s{t1}, s{sJ}, 11'); I(f's_add_u32 s{t1}, s{t1}, s{sGB}'); I(f's_add_u32 s{t1}, s{t1}, {L.T0}')
    I(f's_cmp_eq_u32 s{sJ}, 7'); I(f's_cselect_b32 s{t1}, {BIG}, s{t1}')
    I(f's_mul_i32 s{t0}, s{sW}, {TILE}'); I(f's_add_u32 s{t0}, s{t0}, s{t1}')
    I(f's_and_b32 s{t2}, s{sW}, 1'); I(f's_lshl_b32 s{t2}, s{t2}, 10'); I(f's_add_u32 s{t1}, s{t1}, s{t2}')
    I(f'v_add_u32 v15, s{t0}, v4'); I(f'v_add_u32 v16, s{t1}, v4')
    k.stores([f'buffer_store_dwordx4 v[64:67], v15, {WS}, 0 offen', f'buffer_store_dwordx4 v[64:67], v15, {WS}, 0 offen offset:1024',
              f'buffer_store_dwordx4 v[64:67], v16, {WS}, 0 offen'])

def spin_tail(k, top, done):
    I = k.I
    I(f's_cbranch_vccz {done}')
    I(f's_sub_u32 s{sSPIN}, s{sSPIN}, 1')
    I(f's_cbranch_scc0 {top}')
    I(f's_mov_b32 s{sSPIN}, 0')
    I(f's_branch {done}')
def ool(k, fn):
    e = k.e
    sn = e.snap()
    save = e.out; e.out = []
    fn()
    e.ool += e.out; e.out = save
    e.restore(sn)

def a_read(k, m, t):
    b = AR + 16*(m % NSLOT) + 4*t
    k.I(f'ds_read_b64_tr_b16 {vr(b,2)}, v{SB[t]} offset:{m*4096}')
    k.I(f'ds_read_b64_tr_b16 {vr(b+2,2)}, v{SB[t]} offset:{m*4096+512}')
def a_preload(k):
    for m in range(NSLOT):
        for t in range(4): a_read(k, m, t)
def b_soff(k, region):
    for i in range(4): k.I(f's_mov_b32 s{sT[4+i]}, {region + i*4096}')
def b_loads(k, addr=None, fl='sc1', m0=0):
    for m in range(m0, 14):
        va = vB if addr is None else addr[m]
        k.I(f'buffer_load_dwordx4 {vr(BF+4*m,4)}, v{va}, {WS}, s{sT[4+(m>>2)]} offen offset:{(m&3)*1024} {fl}')
def gemm(k, acc, vf=(), pre=0, chk=None):
    I, e = k.I, k.e
    vf = list(vf)
    for _ in range(pre):
        if vf: I(vf.pop(0))
    per = (len(vf) + 47) // 48
    assert not (chk and vf)
    def check(m):
        done, retry = e.newlabel('Lgd'), e.newlabel('Lgr')
        I(f'v_cmp_eq_u32 vcc, -1, v{BF+4*m}')
        I(f's_cbranch_vccnz {retry}')
        e.label(done)
        def stub():
            e.label(retry)
            k.stamp('gr'); k.stamp(f'gr{m}')
            e.wait_all()
            chk(m)
            I(f'v_cmp_eq_u32 vcc, -1, v{BF+4*m}')
            spin_tail(k, retry, done)
        ool(k, stub)
    if chk: check(0)
    for m in range(14):
        for t in range(4):
            b = AR + 16*(m % NSLOT) + 4*t
            I(f'{MF16} {vr(acc+4*t,4)}, {vr(b,4)}, {vr(BF+4*m,4)}, {vr(acc+4*t,4)}')
            if m + NSLOT < 14: a_read(k, m + NSLOT, t)
            for _ in range(per):
                if vf: I(vf.pop(0))
        if chk and m < 13: check(m + 1)
        if chk: k.stamp(f'g{m}')
def poll_stats(k, tagbits, name, D, va, vb):
    I = k.I
    I(f's_or_b32 s{sN}, s{sTAG}, {tagbits}')
    def chk():
        I(f'v_cmp_ne_u32 vcc, s{sN}, v{D+2}')
        I(f'v_cmp_ne_u32 s[{sT[2]}:{sT[3]}], s{sN}, v{D+6}')
        I(f's_or_b64 vcc, vcc, s[{sT[2]}:{sT[3]}]')
    k.poll3([f'buffer_load_dwordx3 {vr(D,3)}, v{va}, {WS}, 0 offen sc1',
             f'buffer_load_dwordx3 {vr(D+4,3)}, v{vb}, {WS}, 0 offen sc1'], chk, name)

def tr2(k, dst, vb, off, step, tag=None):
    k.I(f'ds_read_b64_tr_b16 {vr(dst,2)}, v{vb} offset:{off}', tag=tag)
    k.I(f'ds_read_b64_tr_b16 {vr(dst+2,2)}, v{vb} offset:{off+step}', tag=tag)

def w3_src(k, V):
    I = k.I
    t0, t1 = sT[0], sT[1]
    I(f's_lshl_b32 s{t0}, s{sJ}, 9'); I(f's_lshr_b32 s{t1}, s{sA}, 1'); I(f's_lshl_b32 s{t1}, s{t1}, 7'); I(f's_add_u32 s{t0}, s{t0}, s{t1}')
    I(f's_and_b32 s{t1}, s{sA}, 1'); I(f's_mul_i32 s{t1}, s{t1}, {8*3584}'); I(f's_add_u32 s{t0}, s{t0}, s{t1}')
    I(f's_cmp_eq_u32 s{sJ}, 7'); I(f's_cselect_b32 s{t0}, {BIG}, s{t0}')
    I(f'v_lshrrev_b32 v15, 3, v1'); I(f'v_mul_u32_u24 v{V}, 3584, v15')
    I('v_bfe_u32 v15, v1, 4, 1'); I('v_lshlrev_b32 v15, 2, v15'); I('v_and_b32 v16, 7, v1'); I('v_xor_b32 v15, v15, v16')
    I(f'v_lshl_add_u32 v{V}, v15, 4, v{V}'); I(f'v_add_u32 v{V}, s{t0}, v{V}')
def w3_rd_base(k, V, base):
    I = k.I
    t0, t1 = sT[0], sT[1]
    I('v_lshrrev_b32 v15, 5, v1'); I('v_lshlrev_b32 v15, 3, v15')
    I('v_bfe_u32 v17, v1, 2, 2'); I('v_add_u32 v15, v15, v17')
    I('v_and_b32 v16, 3, v1')
    I(f'v_and_b32 v{V}, 1, v3'); I(f'v_lshlrev_b32 v{V}, 5, v{V}'); I(f'v_lshl_add_u32 v{V}, v16, 3, v{V}')
    I(f'v_lshl_add_u32 v{V}, v15, 7, v{V}')
    I('v_lshrrev_b32 v17, 1, v17'); I(f'v_lshl_add_u32 v{V}, v17, 6, v{V}')
    I(f's_and_b32 s{t0}, s{sA}, 1'); I(f's_lshl_b32 s{t0}, s{t0}, 6'); I(f'v_xor_b32 v{V}, s{t0}, v{V}')
    I(f's_lshr_b32 s{t0}, s{sA}, 1'); I(f's_lshl_b32 s{t0}, s{t0}, 11'); I(f's_add_u32 s{t0}, s{t0}, {base}')
    I(f'v_add_u32 v{V}, s{t0}, v{V}')
def w3_dma(k, V, sM, m, half, dest, tag):
    I = k.I
    t1 = sT[1]
    I(f's_add_u32 m0, s{sM}, {dest}')
    I(f's_mov_b32 s{t1}, {m*16*3584 + half*256}')
    I(f'buffer_load_dwordx4 v{V}, {srd("w3")}, s{t1} offen lds', tag=tag)
def w4_src(k, V):
    I = k.I
    t0, t1 = sT[0], sT[1]
    I(f's_lshl_b32 s{t0}, s{sJ}, 8'); I(f's_lshl_b32 s{t1}, s{sA}, 3'); I(f's_add_u32 s{t0}, s{t0}, s{t1}')
    I(f'v_lshrrev_b32 v15, 3, v1'); I(f'v_add_u32 v15, s{t0}, v15'); I(f'v_mul_u32_u24 v{V}, 896, v15')
    I('v_lshlrev_b32 v15, 1, v3'); I('v_and_b32 v16, 7, v1'); I('v_xor_b32 v15, v15, v16')
    I(f'v_lshl_add_u32 v{V}, v15, 4, v{V}')
def w4_dma_list(k, V, sM, sS, b):
    I = k.I
    out = []
    for lc in range(7):
        def f(lc=lc):
            if b >= k.o.get('now4', 9): return
            if lc == 0: I(f's_mov_b32 s{sS}, {b*32*896}')
            I(f's_add_u32 m0, s{sM}, {STEP_REG[b] + lc*4096 - lc*128}')
            I(f'buffer_load_dwordx4 v{V}, {srd("w4")}, s{sS} offen offset:{lc*128} lds', tag=f'w4_{b}')
        out.append(f)
    return out
def pat(k, P):
    I = k.I
    I('v_lshrrev_b32 v15, 2, v2'); I('v_and_b32 v16, 1, v3'); I('v_cmp_eq_u32 vcc, v15, v16')
    I(f'v_mov_b32 v15, 0x3f803f80')
    for i in range(4): I(f'v_cndmask_b32 v{P+i}, 0, v15, vcc')
def up_addrs(k, vX, vS, vU, ubase):
    I = k.I
    t0 = sT[0]
    I('v_bfe_u32 v15, v1, 4, 1'); I(f'v_mul_u32_u24 v{vX}, {TILE}, v15')
    I(f'v_lshl_add_u32 v{vX}, v2, 4, v{vX}')
    I('v_lshrrev_b32 v16, 5, v1'); I(f'v_lshl_add_u32 v{vX}, v16, 8, v{vX}')
    I(f'v_and_b32 v{vS}, 31, v1'); I(f'v_lshlrev_b32 v{vS}, 5, v{vS}'); I(f'v_add_u32 v{vS}, {L_STAT}, v{vS}')
    I(f'v_lshlrev_b32 v{vU}, 10, v15'); I(f'v_lshl_add_u32 v{vU}, v2, 4, v{vU}'); I(f'v_lshl_add_u32 v{vU}, v16, 8, v{vU}')
    I(f's_lshl_b32 s{t0}, s{sA}, 12'); I(f's_add_u32 s{t0}, s{t0}, {ubase}')
    I(f'v_add_u32 v{vU}, s{t0}, v{vU}')
def up(k, acc, afn, BB, vX, vS, hooks, pre=True, half=None):
    I = k.I
    def b_rd(m, b):
        d = vr(BB + 8*(m&1) + 4*b, 4)
        if m < 28: I(f'ds_read_b128 {d}, v{vX} offset:{b*2*TILE + m*512}')
        else: I(f'ds_read_b128 {d}, v{vS} offset:{b*1024}')
    if pre: b_rd(0, 0); b_rd(0, 1)
    for m in range(29):
        for b in range(2):
            if m + 1 < 29: b_rd(m + 1, b)
            I(f'{MF32} {vr(acc+16*b,16)}, {vr(afn(m),4)}, {vr(BB+8*(m&1)+4*b,4)}, ' + ('0' if m == 0 else vr(acc+16*b, 16)))
            if b == 0 and half: half(m)
        if m in hooks: hooks[m]()
def gelu_groups(acc, GT, GC, PK, npk):
    out = []
    for b in range(2):
        G = GC + 4*b
        for gp in range(2):
            Lq = []
            x = acc + 16*b + 8*gp; tt = GT + 8*gp
            for i in range(8): Lq.append(f'v_mul_f32 v{tt+i}, v{x+i}, v{x+i}')
            for i in range(8): Lq.append(f'v_fma_f32 v{tt+i}, v{tt+i}, v{G+1}, v{G}')
            for i in range(8): Lq.append(f'v_mul_f32 v{tt+i}, v{tt+i}, v{x+i}')
            for i in range(8): Lq.append(f'v_exp_f32 v{tt+i}, v{tt+i}')
            for i in range(8): Lq.append(f'v_fma_f32 v{tt+i}, v{tt+i}, v{G+2}, v{G+2}')
            for i in range(8): Lq.append(f'v_rcp_f32 v{tt+i}, v{tt+i}')
            for i in range(8): Lq.append(f'v_mul_f32 v{x+i}, v{x+i}, v{tt+i}')
            P = PK + 4*((2*b + gp) % npk)
            for i in range(4): Lq.append(f'v_cvt_pk_bf16_f32 v{P+i}, v{x+2*i}, v{x+2*i+1}')
            out.append((Lq, P, b*2048 + gp*512))
    return out

def publish_stats(k, src, sreg, tagbits, T, mid=None, thru=False, ack=True):
    e, I = k.e, k.I
    P = T
    pack_pairs(k, src, P)
    st = [f'buffer_store_dwordx4 {vr(P,4)}, v{vST}, {WS}, s{sreg} offen',
          f'buffer_store_dwordx4 {vr(P+4,4)}, v{vST}, {WS}, s{sreg} offen offset:1024']
    if thru:
        for t in st: I(t + ' sc1')
    else: k.stores(st, tag='ds')
    S = T + 8
    I(f'v_pk_add_f32 {vr(S,2)}, {vr(src,2)}, {vr(src+2,2)}')
    I(f'v_pk_mul_f32 {vr(S+2,2)}, {vr(src,2)}, {vr(src,2)}')
    I(f'v_pk_fma_f32 {vr(S+2,2)}, {vr(src+2,2)}, {vr(src+2,2)}, {vr(S+2,2)}')
    for i in range(4, 16, 2):
        I(f'v_pk_add_f32 {vr(S,2)}, {vr(S,2)}, {vr(src+i,2)}')
        I(f'v_pk_fma_f32 {vr(S+2,2)}, {vr(src+i,2)}, {vr(src+i,2)}, {vr(S+2,2)}')
    I(f'v_add_f32 v{S+4}, v{S}, v{S+1}')
    I(f'v_add_f32 v{S+5}, v{S+2}, v{S+3}')
    k.allred2(S+4, S+5, S, 'v_add_f32')
    I(f'v_or_b32 v{S+6}, {tagbits}, v{vTAG}')
    if ack: e.wait_vm0()
    k.stores([f'buffer_store_dwordx3 {vr(S+4,3)}, v9, {WS}, 0 offen'])
    if mid: mid()

def x1_dma(k, m0_, vaddr):
    I = k.I
    t0, t1 = sT[0], sT[1]
    I(f's_mul_i32 s{t0}, s{sA}, {TILE}')
    for i in range(7):
        m = m0_ + i
        if i % 4 == 0:
            I(f's_mov_b32 s{t1}, {k.L.X1 + m*1024}')
            I(f's_add_u32 m0, s{t0}, {RA + m*1024}')
        I(f'buffer_load_dwordx4 v{vaddr}, {WS}, s{t1} offen offset:{(i&3)*1024} sc1 lds', tag='x1')

def main_rest(k):
    e, I, L, o = k.e, k.I, k.L, k.o
    t0, t1, t2, t3 = sT[0:4]
    sR = sT[8]
    sn = o.get('sn', '')
    main_addr1(k)
    for t in range(4):
        for d in range(2):
            I(f'v_lshlrev_b32 v{HR+4*t+2*d}, 16, v{52+2*t+d}')
            I(f'v_and_b32 v{HR+4*t+2*d+1}, 0xffff0000, v{52+2*t+d}')
    b_soff(k, L.O)
    I(f's_mov_b32 s{sR}, {L.H}')
    if k.v4:
        k.k_landed()
        a_preload(k)
        k.k_landed2()
    else:
        k.o_flag()
        k.bar()
        a_preload(k)
    def chk(): I(f'v_cmp_ne_u32 vcc, s{sTAG}, v16')
    k.poll3([f'buffer_load_dword v16, v{vOP}, {WS}, 0 offen sc1'], chk, 'o')
    k.stamp('po')
    b_loads(k, fl=o.get('ful', '') if 'o' in o.get('fu', '') else 'sc1')
    k.bar()
    gemm(k, HR, k.capture(lambda: main_addr2(k)), 30)
    k.stamp('hg')
    def mid():
        for t in range(4): I(f'v_add_u32 v{SB[t]}, {RB}, v{SB[t]}')
        I('v_lshlrev_b32 v15, 3, v2'); I(f'v_add_u32 v15, {L_CS1}, v15')
        b_soff(k, L.H)
        a_preload(k)
    publish_stats(k, HR, sR, 1, BF, mid, 'h' in o.get('fu', ''))
    k.stamp('hp')
    k.bar()
    if k.stop == 'h': return
    for t in range(4): I(f'ds_read_b64 {vr(CS1+4*t,2)}, v15 offset:{t*128}')
    I(f's_mov_b32 s{sR}, {L.T0}')
    D = 32
    poll_stats(k, 1, 'h', D, 10, 11)
    k.stamp('ph')
    b_loads(k, fl=o.get('ful', '') if 'h' in o.get('fu', '') else 'sc1')
    if 'x' in sn:
        for i in range(4): I(f'v_mov_b32 v{W3P+i}, -1')
        I(f's_mov_b32 s{sT[9]}, {L.X1}')
        k.stores([f'buffer_store_dwordx4 {vr(W3P,4)}, v{vST}, {WS}, s{sT[9]} offen offset:{h*1024}' for h in range(2)], tag='pre')
    k.bar()
    row_stats(k, D)
    I('v_cmp_eq_u32 vcc, 0, v3')
    I(f'v_cndmask_b32_e64 v{D+3}, 0, -v{D}, vcc')
    k.split_b(D+3, BXT, D+2)
    for t in range(4):
        I(f'{MF16} {vr(ACC+4*t,4)}, {vr(CS1+4*t,4)}, {vr(BXT,4)}, 0')
    I(f'v_add_f32 v{D+2}, 0x3727c5ac, v{D+1}'); I(f'v_rsq_f32 v{D+4}, v{D+2}')
    I(f'v_mul_f32 v{D+2}, v{D+4}, v{D+4}'); I(f'v_mul_f32 v{D+2}, v{D+2}, v{D+1}')
    I(f'v_add_f32 v{D+2}, 0x3727c5ac, v{D+2}'); I(f'v_rsq_f32 v{D+2}, v{D+2}')
    I(f'v_mul_f32_e64 v{BXT}, -v{D}, v{D+4}')
    I(f'v_mul_f32 v{D+6}, v{D+4}, v{D+2}')
    G = D
    gelu_consts(k, D+6, G)
    I(f'v_mov_b32 v{D+6}, v{G+1}')
    gemm(k, ACC)
    k.stamp('tg')
    T = BF
    P = T + 16
    for h in range(2):
        x = ACC + 8*h; tt = T + 8*h
        for i in range(0, 8, 2): I(f'v_pk_mul_f32 {vr(tt+i,2)}, {vr(x+i,2)}, {vr(x+i,2)}')
        for i in range(0, 8, 2): I(f'v_pk_fma_f32 {vr(tt+i,2)}, {vr(tt+i,2)}, {vr(D+6,2)}, {vr(G,2)} op_sel_hi:[1,0,0]')
        for i in range(0, 8, 2): I(f'v_pk_mul_f32 {vr(tt+i,2)}, {vr(tt+i,2)}, {vr(x+i,2)}')
        for i in range(8): I(f'v_exp_f32 v{tt+i}, v{tt+i}')
        for i in range(0, 8, 2): I(f'v_pk_fma_f32 {vr(tt+i,2)}, {vr(tt+i,2)}, {vr(G+2,2)}, {vr(G+2,2)} op_sel_hi:[1,0,0]')
        for i in range(8): I(f'v_rcp_f32 v{tt+i}, v{tt+i}')
        for i in range(0, 8, 2): I(f'v_pk_mul_f32 {vr(x+i,2)}, {vr(x+i,2)}, {vr(tt+i,2)}')
        k.cvt(P+4*h, x, 8)
        I(f'v_permlane16_swap_b32 v{P+4*h}, v{P+4*h+2}')
        I(f'v_permlane16_swap_b32 v{P+4*h+1}, v{P+4*h+3}')
        e.wait_tag('pre')
        if o.get('hf', 0): I(f'buffer_store_dwordx4 {vr(P+4*h,4)}, v{vHS}, {WS}, 0 offen offset:{h*1024} sc1')
        k.stores([f'buffer_store_dwordx4 {vr(P+4*h,4)}, v{vST}, {WS}, s{sR} offen offset:{h*1024}'], tag='tl')
    if not o.get('hf', 0):
        I(f'buffer_store_dwordx4 {vr(P,4)}, v{vHS}, {WS}, 0 offen sc1')
        I(f'buffer_store_dwordx4 {vr(P+4,4)}, v{vHS}, {WS}, 0 offen offset:1024 sc1')
    for i in range(0, 16, 2):
        I(f'v_pk_fma_f32 {vr(ACC+i,2)}, {vr(HR+i,2)}, {vr(D+4,2)}, {vr(BXT,2)} op_sel_hi:[1,0,0]')
    for t in range(4): I(f'v_subrev_u32 v{SB[t]}, {RB}, v{SB[t]}')
    b_soff(k, L.T0 - TILE)
    I(f's_mov_b32 s{sR}, {L.X1}')
    w3_rd_base(k, 14, RC)
    if 't' not in sn:
        e.wait_tag('tl')
        k.stores([f'buffer_store_dword v{vTAG}, v{vTF}, {WS}, 0 offen'])
    k.stamp('tp')
    k.bar()
    if k.stop == 't': return
    a_preload(k)
    for i in range(3): tr2(k, W3P + 4*i, 14, i*4096, 512)
    addr = [XA]*3 + [XA+4] + [XA+1]*3 + [XA+2]*3 + [XA+5] + [XA+3]*3
    def chk():
        I('v_max_u32 v18, v18, v19')
        I(f'v_cmp_ne_u32 vcc, s{sTAG}, v16')
        I(f'v_cmp_eq_u32 s[{t2}:{t3}], -1, v18')
        I(f's_or_b64 vcc, vcc, s[{t2}:{t3}]')
    pl = [f'buffer_load_dword v16, v{vTP}, {WS}, s{sGB} offen sc1',
          f'buffer_load_dwordx2 v[18:19], v{vHP}, {WS}, s{sGB} offen sc1']
    if 't' not in sn: k.poll3(pl, chk, 't')
    elif o.get('tw', 1): e.wait_tag('tl')
    k.stamp('pt')
    b_loads(k, addr)
    e.wait_lg0(); k.bar()
    sM, sS = sT[9], sT[10]
    I(f's_lshl_b32 s{sM}, s{sA}, 10')
    gemm(k, ACC, k.capture(lambda: w4_src(k, 0)), 30, (lambda m: b_loads(k, addr, m0=m)) if 't' in sn else None)
    k.stamp('xg')
    def mid():
        for i in range(0, 16, 2):
            I(f'v_pk_add_f32 {vr(RES+i,2)}, {vr(HR+i,2)}, {vr(ACC+i,2)}')
    publish_stats(k, ACC, sR, 2, BF, mid, ack='x' not in sn)
    if 'x' in sn and o.get('xw', 1): e.wait_tag('ds')
    k.stamp('xp')
    k.bar()
    if k.stop == 'x1': return
    def F(m): return W3P + 4*m if m < 3 else 128 + 4*(m - 3)
    AC, BB, GT, GC, PK, PAT, C, AXT = 44, 76, 92, 108, 116, 124, 32, 36
    vX, vS, vU = 5, 6, 7
    if 'x' in sn: x1_dma(k, 0, vB); x1_dma(k, 7, vB)
    pat(k, PAT)
    up_addrs(k, vX, vS, vU, U1)
    I(f'v_subrev_u32 v8, {RC - RB}, v14')
    def frd(m): tr2(k, F(m), 8 if m < 17 else 14, (m - 3 if m < 17 else m - 17)*4096, 512)
    SR = 40
    def xstats(D):
        row_stats(k, D)
        I(f'v_mul_f32 v{D+3}, -1.0, v{D}')
        k.split_b(D+3, SR, D+2)
        I(f'v_add_f32 v{D+2}, 0x3727c5ac, v{D+1}'); I(f'v_rsq_f32 v{D+4}, v{D+2}')
        gelu_consts(k, D+4, SR+4)
        I(f's_lshl_b32 s{t0}, s{sW}, 9'); I(f's_add_u32 s{t0}, s{t0}, {L_STAT}')
        I('v_lshlrev_b32 v15, 5, v2'); I(f'v_add_u32 v15, s{t0}, v15')
        I(f'ds_write_b128 v15, {vr(SR,4)}'); I(f'ds_write_b128 v15, {vr(SR+4,4)} offset:16')
    def cs(m): I(f'{MF16} {vr(C,4)}, {vr(PAT,4)}, {vr(F(m),4)}, ' + ('0' if m == 0 else vr(C, 4)))
    dm = []
    for b in range(3): dm += w4_dma_list(k, 0, sM, sS, b)
    nd = o.get('nd', 7)
    if 'x' in sn:
        D2 = 60
        sl = [f'buffer_load_dwordx3 {vr(D2,3)}, v10, {WS}, 0 offen sc1', f'buffer_load_dwordx3 {vr(D2+4,3)}, v11, {WS}, 0 offen sc1']
        for t in sl: I(t)
        for m in range(3, 28): frd(m)
        I(f's_mul_i32 s{t0}, s{sA}, {TILE}')
        I('v_and_b32 v15, 60, v1'); I('v_lshl_add_u32 v15, v1, 6, v15'); I(f'v_add_u32 v15, s{t0}, v15')
        e.wait_lg0(); k.bar('bf')
        for m in range(28):
            if m < nd: dm.pop(0)()
            cs(m)
        e.wait_tag('x1')
        k.stamp('xl')
        rds = [f'ds_read_b32 v{16+i}, v15 offset:{RA + min(i*4096, TILE - 4096)}' for i in range(4)]
        def xchk():
            for t in rds: I(t)
            I('v_max3_u32 v16, v16, v17, v18'); I('v_max_u32 v16, v16, v19')
            I('v_cmp_eq_u32 vcc, -1, v16')
        done, retry = e.newlabel('Lxd'), e.newlabel('Lxr')
        xchk()
        I(f's_cbranch_vccnz {retry}')
        e.label(done)
        def stub():
            e.label(retry)
            k.stamp('xr')
            x1_dma(k, 0, vB); x1_dma(k, 7, vB)
            e.wait_vm0()
            xchk()
            spin_tail(k, retry, done)
        ool(k, stub)
        k.bar('b8')
        I(f's_or_b32 s{sN}, s{sTAG}, 2')
        def schk():
            I(f'v_cmp_ne_u32 vcc, s{sN}, v{D2+2}')
            I(f'v_cmp_ne_u32 s[{sT[2]}:{sT[3]}], s{sN}, v{D2+6}')
            I(f's_or_b64 vcc, vcc, s[{sT[2]}:{sT[3]}]')
        k.poll2(sl, schk, 'xs')
        k.stamp('px')
        xstats(D2)
    else:
        nf = o.get('fr', 12)
        for m in range(3, 3 + nf): frd(m)
        poll_stats(k, 2, 'x', D, 10, 11)
        k.stamp('px')
        x1_dma(k, 0, vB); x1_dma(k, 7, vB)
        for m in range(3 + nf, 28): frd(m)
        xstats(D)
        e.wait_lg0(); k.bar('bf')
        for m in range(28):
            if m < nd: dm.pop(0)()
            cs(m)
        e.wait_tag('x1'); k.bar('b8')
    while dm: dm.pop(0)()
    I(f'v_mov_b32 v{AXT+2}, 0'); I(f'v_mov_b32 v{AXT+3}, 0')
    k.split_a(C, AXT, C+1)
    I(f'ds_read_b128 {vr(BB,4)}, v{vX}'); I(f'ds_read_b128 {vr(BB+4,4)}, v{vX} offset:{2*TILE}')
    e.wait_lg0()
    e.wait_tag('w4_1'); k.bar('ma')
    I(f'ds_read_b128 {vr(GC,4)}, v{vS} offset:16'); I(f'ds_read_b128 {vr(GC+4,4)}, v{vS} offset:1040')
    I(f's_setprio {o.get("pu", 1)}')
    e.wait_tag('w4_2'); k.bar('m2')
    hooks = {}
    m3 = o.get('m3', 15)
    for b in (3, 4, 5): dm += w4_dma_list(k, 0, sM, sS, b)
    def one(i):
        k.stamp(f'h{i}')
        if i == m3: k.bar('m3')
        if i % 4 != o.get('dsk', 9) and len(dm) > (7 if i < m3 else 0): dm.pop(0)()
    for i in range(29): hooks[i] = lambda i=i: one(i)
    up(k, AC, lambda m: F(m) if m < 28 else AXT, BB, vX, vS, hooks, pre=False)
    I(f's_setprio {o.get("pgb", 0)}')
    assert not dm
    e.wait_tag('w4_4'); k.bar('m6')
    for b in (6, 7): dm += w4_dma_list(k, 0, sM, sS, b)
    for _ in range(4): dm.pop(0)()
    cnt = 0
    m7 = o.get('m7', 30)
    for gi, (Lq, Pk, off) in enumerate(gelu_groups(AC, GT, GC, PK, 2)):
        for t in Lq:
            I(t); cnt += 1
            if cnt == m7: e.wait_tag('w4_5'); k.bar('m7')
            if cnt == o.get('m9', 165):
                assert not dm and gi >= 2
                e.wait_vm0(); e.wait_lg0(); k.bar('m9')
            if cnt % o.get('dper', 4) == 0 and len(dm) > (7 if cnt < m7 else 0): dm.pop(0)()
        I(f'ds_write_b128 v{vU}, {vr(Pk,4)} offset:{off}')
    I('s_setprio 0')
    e.wait_lg0(); k.bar('m10')
    SEL, LD = 32, 76
    k.sel_mat(SEL, 16)
    I(f's_mul_i32 s{t0}, s{sA}, {7*TILE}'); I(f's_sub_u32 s{t0}, {PB[0]}, s{t0}')
    I(f's_lshl_b32 s{t1}, s{sJ}, 11'); I(f's_add_u32 s{t0}, s{t0}, s{t1}')
    I(f's_add_u32 s{t0}, s{t0}, s{sGB}')
    I('v_and_b32 v5, 31, v1'); I('v_lshlrev_b32 v5, 4, v5'); I(f'v_add_u32 v5, s{t0}, v5')
    I('v_lshrrev_b32 v16, 5, v1'); I(f'v_mul_u32_u24 v17, {TILE}, v16'); I('v_add_u32 v6, v5, v17')
    I('v_cmp_eq_u32 vcc, 0, v16'); I(f'v_cndmask_b32 v5, v{vBIG}, v5, vcc')
    for i in range(4): I(f's_mov_b32 s{sT[4+i]}, {2*i*TILE}')
    I(f's_lshl_b32 s{t0}, s{sG}, 6'); I(f's_lshl_b32 s{t1}, s{sA}, 4'); I(f's_add_u32 s{t0}, s{t0}, s{t1}')
    I(f'v_add_u32 v7, s{t0}, v2'); I('v_mul_u32_u24 v7, 896, v7')
    I(f'v_lshl_add_u32 v7, v{vSIG}, 4, v7')
    I(f's_lshl_b32 s{sT[8]}, s{sJ}, 7')
    I(f's_lshl_b32 s{t0}, s{sA}, 7'); I(f's_add_u32 s{t0}, s{t0}, {L.F_P}')
    I('v_min_u32 v15, 27, v1'); I('v_lshlrev_b32 v15, 2, v15'); I(f'v_add_u32 v15, s{t0}, v15')
    if o.get('m11', 0): k.bar()
    lds = [f'buffer_load_dwordx4 {vr(LD+16*i+4*t,4)}, v{6 if i < 3 else 5}, {WS}, s{sT[4+i]} offen offset:{t*512} sc1' for i in range(4) for t in range(4)]
    if 'f' in sn:
        R2 = 60
        top, dn = e.newlabel('Lfw'), e.newlabel('Lfd')
        I(f'v_mov_b32 v15, {L_F2}')
        I(f's_add_u32 s{t0}, s{sA}, {o.get("fs", 1)}')
        e.label(top)
        I('ds_read_b32 v16, v15')
        I(f'v_cmp_gt_u32 vcc, s{t0}, v16')
        I(f's_cbranch_vccz {dn}')
        I(f's_sub_u32 s{sSPIN}, s{sSPIN}, 1')
        I(f's_cbranch_scc0 {top}')
        I(f's_mov_b32 s{sSPIN}, 0')
        e.label(dn)
        k.stamp('pf')
        top, dn = e.newlabel('Lfw'), e.newlabel('Lfd')
        e.label(top)
        for t in lds: I(t)
        for i in range(4):
            for t in range(4):
                I(f'{MF16} {vr(R2+4*t,4)}, {vr(SEL,4)}, {vr(LD+16*i+4*t,4)}, {vr((R2 if i else RES)+4*t,4)}')
        I(f'v_cmp_u_f32 vcc, v{R2}, v{R2+4}'); I(f'v_cmp_u_f32 s[{t2}:{t3}], v{R2+8}, v{R2+12}')
        I(f's_or_b64 vcc, vcc, s[{t2}:{t3}]')
        I(f's_cbranch_vccz {dn}')
        I(f's_sub_u32 s{sSPIN}, s{sSPIN}, 1')
        I(f's_cbranch_scc0 {top}')
        I(f's_mov_b32 s{sSPIN}, 0')
        e.label(dn)
    else:
        R2 = RES
        def chk(): I(f'v_cmp_ne_u32 vcc, s{sTAG}, v16')
        k.poll3([f'buffer_load_dword v16, v15, {WS}, s{sGB} offen sc1'], chk, 'p')
        k.stamp('pf')
        for t in lds: I(t)
        for i in range(4):
            for t in range(4):
                I(f'{MF16} {vr(RES+4*t,4)}, {vr(SEL,4)}, {vr(LD+16*i+4*t,4)}, {vr(RES+4*t,4)}')
    pack_pairs(k, R2, 52)
    of = o.get('outf', '')
    I(f'buffer_store_dwordx4 v[52:55], v7, {srd("out")}, s{sT[8]} offen {of}')
    I(f'buffer_store_dwordx4 v[56:59], v7, {srd("out")}, s{sT[8]} offen offset:64 {of}')
    k.stamp('end')

vT3, vT2, vT4, vTQ, vTD = 202, 203, 204, 205, 206
def touch_addrs(k):
    I, L = k.I, k.L
    t0, t1, t2 = sT[0:3]
    I(f's_and_b32 s{t0}, s{sG}, 3'); I(f's_lshl_b32 s{t0}, s{t0}, 2'); I(f's_add_u32 s{t0}, s{t0}, s{sA}')
    I(f's_mul_i32 s{t1}, s{t0}, 3584'); I(f's_lshl_b32 s{t2}, s{sJ}, 9'); I(f's_add_u32 s{t1}, s{t1}, s{t2}')
    I(f's_cmp_eq_u32 s{sJ}, 7'); I(f's_cselect_b32 s{t1}, {BIG}, s{t1}')
    I('v_lshrrev_b32 v15, 1, v1'); I(f'v_mul_u32_u24 v{vT3}, {16*3584}, v15'); I('v_and_b32 v15, 1, v1')
    I(f'v_lshl_add_u32 v{vT3}, v15, 7, v{vT3}'); I(f'v_add_u32 v{vT3}, s{t1}, v{vT3}')
    I(f's_mul_i32 s{t0}, s{t0}, 896'); I(f's_lshl_b32 s{t2}, s{sJ}, 7'); I(f's_add_u32 s{t1}, s{t0}, s{t2}')
    I(f'v_mul_u32_u24 v{vT2}, {16*896}, v1'); I(f'v_add_u32 v{vT2}, s{t1}, v{vT2}')
    I(f's_mul_i32 s{t2}, s{sJ}, {256*896}'); I(f's_add_u32 s{t1}, s{t0}, s{t2}')
    I('v_lshrrev_b32 v15, 3, v1'); I(f'v_mul_u32_u24 v{vT4}, {16*896}, v15'); I('v_and_b32 v15, 7, v1'); I('v_min_u32 v15, 6, v15')
    I(f'v_lshl_add_u32 v{vT4}, v15, 7, v{vT4}'); I(f'v_add_u32 v{vT4}, s{t1}, v{vT4}')
    I(f's_mul_i32 s{t1}, s{sJ}, {AS}'); I(f's_mul_i32 s{t2}, s{sA}, {TILE}'); I(f's_add_u32 s{t1}, s{t1}, s{t2}'); I(f's_add_u32 s{t1}, s{t1}, {L.P0}')
    I('v_min_u32 v15, 55, v1'); I(f'v_lshlrev_b32 v{vTQ}, 7, v15'); I(f'v_add_u32 v{vTQ}, s{t1}, v{vTQ}')
def touch(k, key, dflt='-'):
    I = k.I
    t1 = sT[1]
    for ch in k.o.get(key, dflt):
        if ch in 'ab': I(f'buffer_load_dword v{vTD}, v{vT3}, {srd("w3")}, 0 offen offset:{256 if ch == "b" else 0}')
        elif ch in 'o12': I(f'buffer_load_dword v{vTD}, v{vT2}, {srd("wo" if ch == "o" else "w" + ch)}, 0 offen')
        elif ch in '45':
            I(f's_mov_b32 s{t1}, {128*896 if ch == "5" else 0}')
            I(f'buffer_load_dword v{vTD}, v{vT4}, {srd("w4")}, s{t1} offen')
        elif ch in 'pq':
            I(f's_add_u32 s{t1}, s{sGB}, {7168 if ch == "q" else 0}')
            I(f'buffer_load_dword v{vTD}, v{vTQ}, {WS}, s{t1} offen sc1')
        else: continue
        k.e.vm[-1]['dst'] = set()

def aux_burst2(k):
    I, o = k.I, k.o
    touch_addrs(k)
    touch(k, 'tO')
    w3_src(k, 12)
    for m in range(o['w2a']): w3_dma(k, 12, k.sMW, m, 0, RC + m*4096, 'w3')

def aux_pre(k): pass

def aux_rest(k):
    e, I, L, o = k.e, k.I, k.L, k.o
    t0, t1, t2, t3 = sT[0:4]
    sM = k.sMW; sS = sT[5]
    A0, AC, BB, GT, GC, PK, PAT, C, AXT, ONE = 32, 144, 176, 192, 208, 216, 232, 236, 240, 244
    n0 = o['w2a']; nH = o.get('nH', 11); nT = 28 - n0 - nH
    assert nT <= 8 and n0 <= 10
    def rd(m0, n, s0=0):
        for i in range(n): tr2(k, A0 + 4*(m0+i), 8, (s0+i)*4096, 512)
    def cs(m0, n):
        for m in range(m0, m0 + n):
            I(f'{MF16} {vr(C,4)}, {vr(PAT,4)}, {vr(A0+4*m,4)}, ' + ('0' if m == 0 else vr(C, 4)))
    def dma(m0, n, s0=0):
        for i in range(n): w3_dma(k, 12, sM, m0 + i, 0, RC + (s0+i)*4096, 'w3')
    w3_rd_base(k, 8, RC)
    if not k.v4:
        k.o_flag()
        k.bar('eo')
        rd(0, n0)
    I('v_bfe_u32 v15, v1, 2, 2')
    I('v_lshl_add_u32 v16, v3, 3, v15'); I('v_lshlrev_b32 v16, 7, v16')
    I('v_and_b32 v17, 3, v1'); I('v_lshl_add_u32 v16, v17, 3, v16')
    I('v_lshrrev_b32 v15, 1, v15'); I('v_and_b32 v17, 1, v3'); I('v_lshl_add_u32 v15, v17, 1, v15')
    I(f'v_xor_b32 v15, s{sA}, v15')
    I('v_lshl_add_u32 v6, v15, 5, v16'); I(f'v_add_u32 v6, {RB}, v6')
    CB = 144
    if k.v4:
        for i in range(4): I(f'v_mov_b32 v{ONE+i}, 0x3f803f80')
        pat(k, PAT)
        k.o_flag('os')
        k.v_landed()
        rd(0, n0)
    for m in range(14): tr2(k, CB + 4*m, 6, m*4096, 512)
    if not k.v4:
        for i in range(4): I(f'v_mov_b32 v{ONE+i}, 0x3f803f80')
        pat(k, PAT)
    for m in range(14):
        I(f'{MF16} v[248:251], {vr(ONE,4)}, {vr(CB+4*m,4)}, ' + ('0' if m == 0 else 'v[248:251]'))
    cs(0, n0)
    k.split_a(248, 252, 254)
    I(f's_lshl_b32 s{t0}, s{sA}, 7'); I(f's_add_u32 s{t0}, s{t0}, {L_CS1}')
    I('v_lshlrev_b32 v15, 3, v2'); I(f'v_add_u32 v15, s{t0}, v15')
    I('ds_write_b64 v15, v[252:253]')
    e.wait_lg0(); k.bar()
    touch(k, 'tH')
    dma(n0, nH)
    e.wait_vm0(); k.stamp('a6'); k.bar()
    if k.stop == 'h': return
    te = o.get('te', 0)
    for m in range(te): k.sq_dma('w2', RA, m, 'w2')
    rd(n0, nH); cs(n0, nH)
    e.wait_lg0(); k.bar()
    touch(k, 'tT')
    for m in range(te, 14): k.sq_dma('w2', RA, m, 'w2')
    for m in range(3): w3_dma(k, 12, sM, m, 1, RC + m*4096, 'w3')
    dma(n0 + nH, nT, 3)
    e.wait_vm0(); k.stamp('a7'); k.bar()
    if k.stop == 't': return
    xe = o.get('xe', 0)
    for m in range(3, 3 + xe): w3_dma(k, 12, sM, m, 1, RB + (m-3)*4096, 'w3')
    rd(n0 + nH, nT, 3); cs(n0 + nH, nT)
    e.wait_lg0(); k.bar()
    touch(k, 'tX')
    for m in range(3 + xe, 28): w3_dma(k, 12, sM, m, 1, RB + (m-3)*4096, 'w3')
    vX, vS, vU = 24, 25, 12
    I(f'v_mov_b32 v{AXT+2}, 0'); I(f'v_mov_b32 v{AXT+3}, 0')
    k.split_a(C, AXT, C+1)
    VB, VB2 = 5, 28
    I('v_bfe_u32 v15, v1, 2, 2'); I('v_and_b32 v16, 1, v3')
    I('v_lshl_add_u32 v17, v16, 2, v15'); I('v_lshlrev_b32 v18, 7, v17')
    I('v_lshrrev_b32 v17, 1, v17'); I('v_lshl_add_u32 v18, v17, 5, v18')
    I('v_and_b32 v17, 3, v1'); I('v_lshl_add_u32 v18, v17, 3, v18')
    I('v_lshrrev_b32 v17, 1, v3'); I('v_lshl_add_u32 v18, v17, 11, v18')
    I(f's_mul_i32 s{t0}, s{sA}, 7')
    for i in range(4):
        I(f's_add_u32 s{t1}, s{t0}, {i}'); I(f's_and_b32 s{t2}, s{t1}, 3'); I(f's_lshl_b32 s{t2}, s{t2}, 5')
        I(f's_lshr_b32 s{t1}, s{t1}, 2'); I(f's_lshl_b32 s{t1}, s{t1}, 12')
        I(f'v_xor_b32 v{VB+i}, s{t2}, v18'); I(f'v_add_u32 v{VB+i}, s{t1}, v{VB+i}')
        I(f'v_add_u32 v{VB2+i}, {RB}, v{VB+i}')
    I(f's_mul_i32 s{t0}, s{sJ}, {TILE}'); I(f's_add_u32 s{t0}, s{t0}, s{sGB}')
    I(f's_mul_i32 s{t2}, s{sA}, {14*256}'); I(f's_add_u32 s{t0}, s{t0}, s{t2}')
    I(f'v_lshlrev_b32 v9, 8, v{vSIG}'); I('v_lshl_add_u32 v9, v2, 4, v9'); I(f'v_add_u32 v9, s{t0}, v9')
    I(f's_add_u32 s{t0}, s{t0}, {12*256}')
    I('v_lshrrev_b32 v15, 1, v3'); I('v_lshlrev_b32 v15, 8, v15'); I('v_lshl_add_u32 v15, v2, 4, v15')
    I('v_and_b32 v16, 1, v3'); I('v_lshl_add_u32 v15, v16, 3, v15')
    I(f'v_add_u32 v10, s{t0}, v15')
    I(f's_lshl_b32 s{t0}, s{sJ}, 4'); I(f's_lshl_b32 s{t1}, s{sA}, 2'); I(f's_add_u32 s{t0}, s{t0}, s{t1}')
    I(f's_add_u32 s{t0}, s{t0}, s{sGB}'); I(f's_add_u32 s{t0}, s{t0}, {L.F_P}')
    I(f'v_add_u32 v11, s{t0}, v{vL0}')
    I(f'v_mov_b32 v13, s{sTAG}')
    I(f'v_add_u32 v14, {U0}, v4')
    for n in range(4): I(f's_mov_b32 s{sT[8+n]}, {PB[n]}')
    up_addrs(k, vX, vS, vU, U0)
    e.wait_vm0(); k.stamp('a8'); k.bar()
    if k.stop == 'x1': return
    sf = 'f' in o.get('sn', '')
    if sf:
        I(f'v_mov_b32 v11, {L_F2}'); I('v_mov_b32 v13, 0'); I('ds_write_b32 v11, v13')
        I(f'v_mov_b32 v15, {L.F_P}')
        def chk(): I(f'v_cmp_ne_u32 vcc, s{sTAG}, v16')
        k.poll3([f'buffer_load_dword v16, v15, {WS}, s{sGB} offen sc1'], chk, 'pf')
        k.stamp('a9')
    I('s_setprio 2')
    k.bar('bf')
    k.bar('b8')
    def A4(b): return 32 + 28*(b & 3)
    def take_list(b):
        out = []
        for lam in range(7):
            reg = STEP_REG[b]
            vb = (VB2 if reg >= RB else VB) + (lam & 3)
            off = (reg - RB if reg >= RB else reg) + (lam >> 2)*4096
            for h in range(2):
                out.append(lambda d=A4(b)+4*lam+2*h, vb=vb, off=off+1024*h: I(f'ds_read_b64_tr_b16 {vr(d,2)}, v{vb} offset:{off}', tag=f'r4_{b}'))
        return out
    ma = o.get('ma', 17); m2 = o.get('m2', 27)
    assert ma >= 13
    tk = take_list(0) + take_list(1)
    def hk(m):
        if m == ma: k.bar('ma')
        if m >= ma:
            for _ in range(2):
                if tk: tk.pop(0)()
        if m == 26: I(f'ds_read_b128 {vr(GC,4)}, v{vS} offset:16'); I(f'ds_read_b128 {vr(GC+4,4)}, v{vS} offset:1040')
        if m == m2:
            assert not tk
            e.wait_tag('r4_1'); k.bar('m2')
    def hh(m):
        if m > ma:
            for _ in range(o.get('tkh', 1)):
                if tk: tk.pop(0)()
    up(k, AC, lambda m: A0 + 4*m if m < 28 else AXT, BB, vX, vS, {m: (lambda m=m: hk(m)) for m in range(29)}, half=hh)
    I(f's_setprio {o.get("pga", 0)}')
    k.stamp('u0')
    gl = []
    for Lq, Pk, off in gelu_groups(AC, GT, GC, PK, 2): gl += Lq + [f'ds_write_b128 v{vU}, {vr(Pk,4)} offset:{off}']
    for f in take_list(2): f()
    a3 = o.get('a3', 110)
    for n, t in enumerate(gl):
        if n == a3:
            e.wait_tag('r4_2'); k.stamp('g3'); k.bar('m3')
        if n % 20 == 0: k.stamp(f'g{n}')
        I(t)
    I(f's_setprio {o.get("pd", 1)}')
    e.wait_lg0(); k.bar('m6')
    DA = 144
    UBR = [16, 20, 24]
    nk = 4
    seq = [(b, n) for b in range(nk) for n in range(4)] + [(b, n) for n in range(4) for b in range(nk, 8)]
    def u_rd(i):
        b, n = seq[i]
        I(f'ds_read_b128 {vr(UBR[i%3],4)}, v{14 if b < 4 else 4} offset:{(b&3)*4096 + n*1024}')
    def pack_list(n):
        Lq = []
        for pp in range(3):
            a = DA + 28*n + 8*pp
            for i in range(4): Lq.append(f'v_cvt_pk_bf16_f32 v{a+i}, v{a+2*i}, v{a+2*i+1}')
            Lq.append(f'v_permlane16_swap_b32 v{a}, v{a+2}'); Lq.append(f'v_permlane16_swap_b32 v{a+1}, v{a+3}')
            Lq.append(('st', f'buffer_store_dwordx4 {vr(a,4)}, v9, {WS}, s{sT[8+n]} offen offset:{pp*1024}', n))
        a = DA + 28*n + 24
        for i in range(2): Lq.append(f'v_cvt_pk_bf16_f32 v{a+i}, v{a+2*i}, v{a+2*i+1}')
        Lq.append(('st', f'buffer_store_dwordx2 {vr(a,2)}, v10, {WS}, s{sT[8+n]} offen', n))
        if sf: Lq += [f'v_mov_b32 v13, {n+1}', 'ds_write_b32 v11, v13']
        return Lq
    def run_fill(x):
        if callable(x): x()
        elif isinstance(x, tuple):
            if x[0] == 'st' and x[2] < o.get('pn', 2): I(x[1] + ' sc1', tag=f'p{x[2]}')
            elif x[0] == 'st': k.stores([x[1]], tag=f'p{x[2]}')
            elif not sf:
                e.wait_tag(f'p{x[1]}')
                k.stores([f'buffer_store_dword v13, v11, {WS}, 0 offen offset:{x[1]*128}'])
        else: I(x)
    fill = []
    d9 = o.get('d9', 14); d10 = o.get('d10', 22)
    assert 12 <= d9 <= 16 and 20 <= d10 <= 24
    nxt = 0
    for i, (b, n) in enumerate(seq):
        if i in (0, 4, 8): fill += take_list(3 + i//4)
        if i == o.get('d7', 3):
            e.wait_tag('r4_3'); k.bar('m7')
        if i == d9:
            k.bar('m9'); fill += take_list(6)
        if i == 16: fill += take_list(7)
        if i == d10: k.bar('m10')
        k.stamp(f'd{i}')
        lim = 16 if i < d9 else 24 if i < d10 else 32
        while nxt < min(lim, i + 3): u_rd(nxt); nxt += 1
        for lam in range(7):
            acc = DA + 28*n + 4*lam
            I(f'{MF16} {vr(acc,4)}, {vr(A4(b)+4*lam,4)}, {vr(UBR[i%3],4)}, ' + ('0' if b == 0 else vr(acc, 4)))
            if fill and not (i > 16 and b == nk and lam < 2): run_fill(fill.pop(0))
        if b == 7:
            assert not fill, len(fill)
            if n == 1 and o.get('m11', 0): k.bar()
            if n > 1: run_fill(('fl', n - 2))
            fill = pack_list(n)
    k.stamp('dg')
    for x in fill: run_fill(x)
    run_fill(('fl', 2))
    run_fill(('fl', 3))
    k.stamp('pp')

def j7_jobs(k):
    e, I, L = k.e, k.I, k.L
    t0, t1 = sT[0], sT[1]
    I(f's_and_b32 s{t0}, s{sG}, 3'); I(f's_lshl_b32 s{t0}, s{t0}, 3'); I(f's_add_u32 s{t0}, s{t0}, s{sW}')
    I(f's_mul_i32 s{t0}, s{t0}, 49'); I(f'v_add_u32 v15, s{t0}, v1')
    I('v_lshrrev_b32 v16, 1, v15'); I('v_lshlrev_b32 v16, 9, v16'); I('v_and_b32 v17, 1, v15'); I('v_lshl_add_u32 v16, v17, 7, v16')
    I('v_lshrrev_b32 v17, 5, v15'); I('v_mul_u32_u24 v17, 9363, v17'); I('v_lshrrev_b32 v17, 16, v17')
    I(f'v_mul_u32_u24 v17, {229376 - 224*128}, v17'); I('v_lshl_add_u32 v17, v15, 7, v17')
    I('v_cmp_gt_u32 vcc, 49, v1'); I(f'v_cndmask_b32 v16, v{vBIG}, v16, vcc'); I(f'v_cndmask_b32 v17, v{vBIG}, v17, vcc')
    I(f's_mul_i32 s{t0}, s{sW}, 56'); I(f'v_add_u32 v15, s{t0}, v1'); I('v_lshlrev_b32 v15, 7, v15')
    I('v_cmp_gt_u32 vcc, 56, v1'); I(f'v_cndmask_b32 v15, v{vBIG}, v15, vcc')
    k.jn = 0
    for ch in k.o.get('j7', 'b4p'):
        if ch in 'ab':
            for i in range(4):
                I(f's_mov_b32 s{t1}, {i*784*512 + (256 if ch == "b" else 0)}')
                I(f'buffer_load_dword v{32+i}, v16, {srd("w3")}, s{t1} offen'); e.barrier()
        if ch == '4':
            for b in range(8):
                I(f's_mov_b32 s{t1}, {b*28672}')
                I(f'buffer_load_dword v{36+b}, v17, {srd("w4")}, s{t1} offen'); e.barrier()
        if ch == '2':
            I(f's_and_b32 s{t0}, s{sG}, 3'); I(f's_lshl_b32 s{t0}, s{t0}, 3'); I(f's_add_u32 s{t0}, s{t0}, s{sW}'); I(f's_mul_i32 s{t0}, s{t0}, {49*128}')
            I('v_min_u32 v18, 48, v1'); I('v_lshlrev_b32 v18, 7, v18')
            I(f'buffer_load_dword v58, v18, {srd("w2")}, s{t0} offen'); e.barrier()
            I(f's_add_u32 s{t0}, s{t0}, {1568*128}')
            I(f'buffer_load_dword v59, v18, {srd("w2")}, s{t0} offen'); e.barrier()
        if ch == 'm':
            I(f's_lshl_b32 s{t0}, s{sG}, 3'); I(f's_add_u32 s{t0}, s{t0}, s{sW}')
            I(f's_mul_i32 s{t1}, s{t0}, {49*128}'); I(f's_mul_i32 s{t0}, s{t0}, {13*128}')
            I('v_min_u32 v18, 48, v1'); I('v_lshlrev_b32 v18, 7, v18'); I('v_min_u32 v19, 12, v1'); I('v_lshlrev_b32 v19, 7, v19')
            I(f'buffer_load_dword v60, v18, {srd("w3")}, s{t1} offen'); e.barrier()
            I(f'buffer_load_dword v61, v19, {srd("w2")}, s{t0} offen'); e.barrier()
            I(f'buffer_load_dword v62, v18, {srd("w4")}, s{t1} offen'); e.barrier()
        if ch == 'w': e.wait_vm0(); k.stamp(f'j{k.jn}'); k.jn += 1
        if ch == 'p':
            nt = 7*(4 - k.o.get('pn', 2))
            for i, off in enumerate([PB[3] + min(4*c, nt - 4)*TILE for c in reversed(range((nt + 3)//4))]):
                I(f's_add_u32 s{t1}, s{sGB}, {off}')
                I(f'buffer_load_dword v{44+i}, v15, {WS}, s{t1} offen sc1'); e.barrier()
        if ch == 'f':
            for i in range(4): I(f'v_mov_b32 v{64+i}, -1')
            I(f's_lshl_b32 s{t0}, s{sW}, 10'); I(f'v_add_u32 v18, s{t0}, v4'); I(f'v_add_u32 v18, s{sGB}, v18')
            I(f's_and_b32 s{t0}, s{sW}, 1'); I(f's_lshl_b32 s{t0}, s{t0}, 10'); I(f'v_add_u32 v19, s{t0}, v4'); I(f'v_add_u32 v19, s{sGB}, v19')
            for n in range(4):
                for i in range(13):
                    I(f's_mov_b32 s{t1}, {PB[n] + i*8192}')
                    st = f'buffer_store_dwordx4 v[64:67], v{18 if i < 12 else 19}, {WS}, s{t1} offen'
                    if n < k.o.get('pn', 2): I(st + ' sc1')
                    else: k.stores([st])
                    if k.o.get('fb', 1): e.barrier()
                e.wait_vm0()
            e.barrier()
            I(f's_add_u32 s{t1}, s{sGB}, {L.F_P}')
            k.stores([f'buffer_store_dword v{vTAG}, v{vL0}, {WS}, s{t1} offen'])
            k.stamp('jf')
    e.wait_vm0()
```

```python
import sys
import g5
from g5 import *
WS_PK = 0x110000
MATS = 16*448*64
L_MODE = L_PHI + 1024
L_PART = L_PHI
WS_KVR = WS_PK + 2*MATS
L_KV4 = 155648
L_FL = MISC + 2*3584 + 192
W1SAFE = [1, 2, 5, 6, 8, 9, 12, 13]
W1REST = [0, 3, 4, 7, 10, 11]

class K(g5.K):
    v4 = True
    @property
    def fa(self): return self.o.get('mlp') == 10
    def pre_srd(self):
        I = self.I
        t0, t1, t2 = sT[0:3]
        I(f's_and_b32 s{t0}, s{sA}, 1'); I(f's_lshl_b32 s{t0}, s{t0}, 3')
        I('v_lshrrev_b32 v15, 3, v1'); I(f'v_add_u32 v15, s{t0}, v15')
        I('v_mul_u32_u24 v48, 56, v15'); I('v_and_b32 v48, -16, v48')
        I('v_bfe_u32 v16, v1, 2, 1'); I('v_mul_u32_u24 v16, 2688, v16'); I('v_add_u32 v48, v48, v16')
        I('v_and_b32 v16, 3, v1'); I('v_lshl_add_u32 v48, v16, 4, v48')
        I(f's_mul_i32 s{t0}, s{sL}, 5376'); I(f's_add_u32 s{t1}, s{t0}, 1792')
        I(f's_cmp_lt_u32 s{sA}, 2'); I(f's_cselect_b32 s{t0}, s{t1}, s{t0}')
        I(f's_cselect_b32 s{t1}, 0, {MATS}')
        I(f's_lshl_b32 s{t2}, s{sL}, 7'); I(f's_add_u32 s{t1}, s{t1}, s{t2}'); I(f's_add_u32 s{t1}, s{t1}, {WS_PK}')
        I(f's_cmp_lt_u32 s{sL}, 224'); I(f's_cselect_b32 s{t1}, s{t1}, {BIG}')
        I(f'v_add_u32 v48, s{t0}, v48')
        I(f'v_mul_u32_u24 v49, {448*64}, v15'); I('v_and_b32 v16, 7, v1'); I('v_lshl_add_u32 v49, v16, 4, v49')
        I(f'v_add_u32 v49, s{t1}, v49')
    def rp_loads(self):
        I = self.I
        I(f'buffer_load_dwordx4 v[52:55], v48, {srd("wqkv")}, 0 offen', tag='rp')

    def kv_addrs(self):
        pass

    def init_B(self):
        I = self.I
        t0, t1, t2 = sT[0:3]
        I('ds_write_b64 v28, v[210:211]'); I('ds_write_b64 v28, v[210:211] offset:8'); I('ds_write_b64 v28, v[210:211] offset:16')
        I(f's_and_b32 s{t0}, s{sA}, 1'); I(f's_lshl_b32 s{t0}, s{t0}, 5')
        I(f'v_xor_b32 v7, s{t0}, v5')
        I(f's_lshr_b32 s{t0}, s{sA}, 1'); I(f's_lshl_b32 s{t0}, s{t0}, 11'); I(f's_add_u32 s{t0}, s{t0}, 28672')
        I(f'v_add_u32 v7, s{t0}, v7')
        I('v_and_b32 v15, 1, v3'); I('v_lshlrev_b32 v15, 8, v15'); I('v_lshl_add_u32 v8, v2, 3, v15')
        I(f'v_add_u32 v8, {L_PART}, v8')
        self.fl_addr()
    def fl_addr(self):
        I = self.I
        I('v_and_b32 v47, 3, v1'); I('v_mul_u32_u24 v47, 224, v47'); I(f'v_add_u32 v47, {L_FL}, v47')
        I('v_and_b32 v15, 4, v1'); I('v_add_u32 v47, v47, v15')
        I('s_mov_b32 s0, 0xf0f0f0f0'); I('s_mov_b32 s1, 0xf0f0f0f0')
    def own_fl(self):
        t0 = sT[0]
        self.I(f's_mul_i32 s{t0}, s{sA}, 224'); self.I(f's_add_u32 s{t0}, s{t0}, {L_FL}'); self.I(f'v_mov_b32 v17, s{t0}')
    frd = 'ds_read_b32 v15, v47'
    def fwr(self, n):
        self.I(f'v_mov_b32 v16, {n}'); self.I(f'ds_write_b32 v17, v16 offset:{4 if n >= 16 else 0}')
    def fchk(self, nv, nk=0, extra=()):
        I = self.I
        if nk: I(f'v_cndmask_b32 v16, {nv}, {nk}, s[0:1]')
        self.lpoll([self.frd] + list(extra), lambda: I(f'v_cmp_gt_u32 vcc, {"v16" if nk else nv}, v15'), f'f{nv}')
    def repack(self):
        I = self.I
        t0, t1 = sT[0:2]
        self.get_tag()
        I(f's_and_b32 s{sN}, s{sTAG}, 0xbfffbfff'); I(f'v_mov_b32 v15, s{sN}')
        I(f's_mov_b32 s{t0}, 0x00880088'); I(f's_mov_b32 s{t1}, 0x00880088')
        I(f'v_cndmask_b32 v55, v55, v15, s[{t0}:{t1}]')
        I(f's_mov_b32 s{t0}, 0x11001100'); I(f's_mov_b32 s{t1}, 0x11001100')
        I(f'v_cndmask_b32 v52, v52, v15, s[{t0}:{t1}]')
        I(f'buffer_store_dwordx4 v[52:55], v49, {WS}, 0 offen sc1')
    def v_addr1(self):
        I = self.I
        t0, t1, t2 = sT[0:3]
        I('v_lshrrev_b32 v15, 5, v1'); I('v_lshlrev_b32 v15, 5, v15'); I('v_xor_b32 v48, v15, v4')
        I(f's_mul_i32 s{t0}, s{sH}, {448*64}'); I(f's_add_u32 s{t0}, s{t0}, s{self.sMW}'); I(f's_add_u32 s{t0}, s{t0}, {WS_PK}')
        I(f'v_add_u32 v48, s{t0}, v48')
        I(f's_cmp_eq_u32 s{sODD}, 1'); I(f's_cselect_b32 s{t0}, 0, 60')
        I('v_and_b32 v15, 8, v1'); I('v_lshlrev_b32 v15, 2, v15'); I(f'v_xor_b32 v15, s{t0}, v15')
        I('v_lshl_add_u32 v15, v2, 6, v15')
        I(f's_add_u32 s{t0}, s{self.sMW}, 28672')
        I('v_lshl_add_u32 v49, v3, 12, v15'); I(f'v_add_u32 v49, s{t0}, v49')
        I('v_lshl_add_u32 v50, v3, 10, v15'); I(f'v_add_u32 v50, s{sT[9]}, v50')
        if self.o.get('mw', '-') != '-': self.warm_addr(51, 0)
    def warm_addr(self, A, B):
        I = self.I
        t0, t1, t2 = sT[0:3]
        I(f's_lshl_b32 s{t0}, s{sL}, 2'); I(f's_add_u32 s{t0}, s{t0}, s{sA}')
        I(f's_lshl_b32 s{t1}, s{t0}, 9'); I(f's_mul_i32 s{t2}, s{t0}, {13*128}')
        I('v_lshlrev_b32 v15, 7, v1'); I(f'v_add_u32 v{A}, s{t1}, v15'); I(f'v_add_u32 v{B}, s{t2}, v15')
        I(f'v_mov_b32 v16, {BIG}')
        I('v_cmp_gt_u32 vcc, 4, v1'); I(f'v_cndmask_b32 v{A}, v16, v{A}, vcc')
        I('v_cmp_gt_u32 vcc, 13, v1'); I(f'v_cndmask_b32 v{B}, v16, v{B}, vcc')
    def warm(self, ch, A, B, D):
        self.I(f'buffer_load_dword v{D}, v{A if ch in "o12" else B}, {srd("wo" if ch == "o" else "w" + ch)}, 0 offen')
        self.e.vm[-1]['dst'] = set()
    def swarm(self, key):
        e, I = self.e, self.I
        sp = self.o.get(key, '')
        if not sp: return
        t0, t1, t2 = sT[0:3]
        st = self.o.get('sst', 128)
        I(f's_lshl_b32 s{t1}, s{sL}, 2'); I(f's_add_u32 s{t1}, s{t1}, s{sA}'); I(f's_lshl_b32 s{t2}, s{t1}, 9'); I(f's_mul_i32 s{t1}, s{t1}, {13*128}')
        for ch in sp:
            n, r = (4, t2) if ch in 'o12' else (13, t1)
            for i in range(n*128//st): e._emit(f's_buffer_load_dword s2, {srd("wo" if ch == "o" else "w" + ch)}, s{r} offset:{i*st}')
        e.lg.append(dict(dst=set(), tag=None, smem=True))
    def common_addr(self):
        I = self.I
        I('v_and_b32 v15, 1, v3'); I('v_lshrrev_b32 v16, 1, v3'); I('v_lshl_add_u32 v26, v15, 1, v16')
        I(f'v_mov_b32 v20, {BIG}')
        I('v_cmp_eq_u32 vcc, 0, v1'); I('v_cndmask_b32 v21, v20, v13, vcc')
        I(f'v_mov_b32 v27, s{sTAG}')
    def v_addr2(self):
        I, L = self.I, self.L
        t0, t1, t2 = sT[0:3]
        I('v_lshrrev_b32 v15, 1, v3'); I('v_mul_u32_u24 v15, 7168, v15'); I(f'v_add_u32 v15, {RXA}, v15')
        I('v_add_u32 v10, v5, v15'); I('v_add_u32 v11, v6, v15')
        I(f's_and_b32 s{t0}, s{sA}, 1'); I(f's_lshl_b32 s{t1}, s{t0}, 5')
        I(f'v_xor_b32 v31, s{t1}, v10')
        I(f's_lshr_b32 s{t1}, s{sA}, 1'); I(f's_lshl_b32 s{t2}, s{t1}, 14')
        I(f'v_add_u32 v31, s{t2}, v31')
        I(f'v_add_u32 v24, {L_KV4}, v4')
        I(f's_cmp_eq_u32 s{sODD}, 1')
        I(f's_cselect_b32 s{t0}, 0, {1024+12*16}'); I(f's_add_u32 s{t0}, s{t0}, {L_KV4}')
        I('v_lshlrev_b32 v25, 8, v3'); I(f'v_add_u32 v25, s{t0}, v25')
        I(f's_mul_i32 s{t0}, s{sH}, 7'); I(f's_lshr_b32 s{t0}, s{t0}, 1')
        I('v_and_b32 v18, 1, v3'); I('v_lshrrev_b32 v19, 1, v3'); I('v_lshl_add_u32 v26, v18, 1, v19')
        I(f'v_add_u32 v18, s{t0}, v26')
        I('v_lshlrev_b32 v18, 8, v18'); I('v_lshl_add_u32 v18, v2, 4, v18')
        I(f's_mul_i32 s{sX0}, s{sRB}, {2*L.GS}'); I(f's_add_u32 s{sX0}, s{sX0}, {WS_G}'); I(f's_add_u32 s{sX1}, s{sX0}, {L.GS}')
        I(f's_mul_i32 s{t0}, s{sA}, {TILE}'); I(f's_add_u32 s{t0}, s{t0}, {L.O}')
        I(f'v_add_u32 v18, s{t0}, v18')
        I('v_add_u32 v19, 8, v18')
        I(f'v_mov_b32 v20, {BIG}')
        I(f'v_cndmask_b32 v18, v18, v20, s[{sM0}:{sM0+1}]')
        I(f'v_cndmask_b32 v19, v19, v20, s[{sM1}:{sM1+1}]')
        I(f's_lshl_b32 s{t0}, s{sA}, 6'); I(f's_lshl_b32 s{t1}, s{sH}, 2'); I(f's_add_u32 s{t0}, s{t0}, s{t1}')
        I(f's_add_u32 s{t0}, s{t0}, {L.F_O}')
        I(f's_add_u32 s{t0}, s{t0}, s{sX0}')
        I(f'v_mul_u32_u24 v14, {L.GS}, v1'); I(f'v_add_u32 v14, s{t0}, v14')
        I('v_cmp_gt_u32 vcc, 2, v1'); I('v_cndmask_b32 v14, v20, v14, vcc')
        if self.fa:
            I(f's_add_u32 s{sX1}, s{sX1}, s{sX0}'); I(f's_sub_u32 s{sX1}, s{sX1}, s{sGB}'); I(f's_mov_b32 s{sX0}, s{sGB}')
        I(f'v_mov_b32 v27, s{sTAG}')
        self.own_fl()

    def pdma(self, i, mat, sc=None):
        I = self.I
        if sc is None: sc = 'sc1' if self.o.get('psc', 1) else ''
        if mat == 0: I(f's_add_u32 m0, s{self.sMW}, {28672 + i*4096}')
        else: I(f's_add_u32 m0, s{sT[9]}, {i*1024}')
        I(f's_lshl_b32 s{self.sCw}, s{self.sCx}, 5')
        if mat: I(f's_add_u32 s{self.sCw}, s{self.sCw}, {MATS}')
        I(f'buffer_load_dwordx4 v48, {WS}, s{self.sCw} offen {sc} lds', tag=('wv', 'wq')[mat])
        self.adv()
    def tag_reads(self, mat, D):
        return [f'ds_read_b32 v{D+n}, v{49+mat} offset:{3*n*(4096, 1024)[mat]}' for n in range(2)]
    def tag_chk(self, mat, D):
        e, I = self.e, self.I
        done, retry = e.newlabel('Ltd'), e.newlabel('Ltr')
        def check():
            I(f'v_cmp_ne_u32 vcc, s{sN}, v{D}')
            I(f'v_cmp_ne_u32 s[{sT[2]}:{sT[3]}], s{sN}, v{D+1}')
            I(f's_or_b64 vcc, vcc, s[{sT[2]}:{sT[3]}]')
        check()
        I(f's_cbranch_vccnz {retry}')
        e.label(done)
        sn = e.snap()
        save = e.out; e.out = []
        e.label(retry)
        e.wait_all()
        for i in range(7): self.pdma(i, mat, 'sc1')
        e.wait_vm0()
        for t in self.tag_reads(mat, D): I(t)
        e.wait_lg0()
        check()
        I(f's_cbranch_vccz {done}')
        I(f's_sub_u32 s{sSPIN}, s{sSPIN}, 1')
        I(f's_cbranch_scc0 {retry}')
        I(f's_mov_b32 s{sSPIN}, 0')
        I(f's_branch {done}')
        e.ool += e.out; e.out = save
        e.restore(sn)

    def init_A(self):
        I, L = self.I, self.L
        t0, t1, t2, t3 = sT[0:4]
        I(f's_lshl_b32 s{t0}, s{sJ}, 2'); I(f's_add_u32 s{t0}, s{t0}, s{sA}')
        I(f's_mul_i32 s{t1}, s{t0}, {14*128}'); I(f's_mul_i32 s{t2}, s{t0}, 384'); I(f's_min_u32 s{t2}, s{t2}, {69*128}')
        I(f's_add_u32 s{t2}, s{t2}, {L.FLG}')
        I('v_min_u32 v15, 13, v2'); I('v_lshlrev_b32 v15, 7, v15'); I(f'v_add_u32 v15, s{t1}, v15')
        I('v_and_b32 v16, 1, v3'); I(f'v_mul_u32_u24 v16, {AS}, v16'); I('v_add_u32 v15, v15, v16')
        I('v_min_u32 v16, 2, v2'); I('v_lshlrev_b32 v16, 7, v16'); I(f'v_add_u32 v16, s{t2}, v16')
        fu = self.o.get('fu', '')
        if self.o.get('mlp', 7) >= 9: fu = 'o' if 't' in self.o.get('sn', '') else ''
        if fu == 'oh': I('v_mov_b32 v0, v16')
        else:
            I({'': 'v_cmp_gt_u32 vcc, 2, v3', 'o': 'v_cmp_eq_u32 vcc, 0, v3', 'h': 'v_cmp_eq_u32 vcc, 1, v3'}[fu]); I('v_cndmask_b32 v0, v16, v15, vcc')
        self.fl_addr()
        self.warm_addr(30, 9)
        I(f's_lshl_b32 s{t0}, s{sH}, 16'); I(f's_lshl_b32 s{t1}, s{sRB}, 8'); I(f's_add_u32 s{t0}, s{t0}, s{t1}'); I(f's_add_u32 s{t0}, s{t0}, {WS_KVP}')
        I('v_lshlrev_b32 v15, 4, v2'); I('v_lshl_add_u32 v50, v3, 12, v15'); I(f'v_add_u32 v50, s{t0}, v50')
        I(f's_lshl_b32 s{t0}, s{sH}, 12'); I(f's_add_u32 s{t0}, s{t0}, s{t1}'); I(f's_add_u32 s{t0}, s{t0}, {WS_KVR}')
        I('v_lshl_add_u32 v51, v3, 3, v15'); I(f'v_add_u32 v51, s{t0}, v51')
        I('v_cmp_gt_u32 vcc, 32, v1'); I('v_cndmask_b32 v51, v16, v51, vcc')
        I('v_and_b32 v15, 1, v2'); I('v_lshlrev_b32 v15, 4, v15')
        I('v_mov_b32 v16, 0x3f80'); I('v_lshlrev_b32 v15, v15, v16')
        I('v_lshrrev_b32 v16, 1, v2')
        for i in range(4):
            I(f'v_cmp_eq_u32 vcc, {i}, v16'); I(f'v_cndmask_b32 v{self.SEL+i}, 0, v15, vcc')
        I(f's_lshl_b32 s{t0}, s{sH}, 4'); I(f's_or_b32 s{t0}, s{t0}, s{sRB}'); I(f's_lshl_b32 s{t0}, s{t0}, 12')
        I(f's_add_u32 s{t0}, s{t0}, s{self.sMW}'); I(f's_add_u32 s{t0}, s{t0}, {WS_KVP}')
        I(f'v_add_u32 v31, s{t0}, v4')
        I(f's_lshl_b32 s{t0}, s{sRB}, 4')
        I(f'v_add_u32 v15, s{t0}, v2')
        I('v_lshlrev_b32 v16, 4, v2'); I(f'v_add_u32 v16, s{sH}, v16')
        I('v_cmp_eq_u32 vcc, 1, v3')
        I('v_cndmask_b32 v15, v15, v16, vcc')
        if self.fa:
            I('v_xor_b32 v16, 8, v16'); I('v_cmp_eq_u32 vcc, 3, v3'); I('v_cndmask_b32 v15, v15, v16, vcc')
        I('v_and_b32 v16, 8, v2'); I('v_lshlrev_b32 v16, 1, v16')
        I('v_and_b32 v8, 7, v2'); I('v_add_u32 v16, v16, v8')
        I(f's_lshl_b32 s{t0}, s{sG}, 3'); I(f's_sub_u32 s{t0}, s{t0}, 8')
        I(f'v_add_u32 v16, s{t0}, v16'); I('v_and_b32 v16, 255, v16')
        I('v_cmp_eq_u32 vcc, 2, v3')
        I('v_cndmask_b32 v15, v15, v16, vcc')
        I('v_lshlrev_b32 v8, 6, v15'); I(f'v_add_u32 v8, {WS_HELLO}, v8')
        if self.fa:
            self.w01_base(t0)
            I(f's_add_u32 s{t0}, s{t0}, s{self.sMW}')
            I('v_and_b32 v14, 0x1ff, v4'); I(f'v_add_u32 v14, s{t0}, v14')
    def w01_base(self, t0):
        I = self.I
        t1 = sT[1]
        I(f's_mul_i32 s{t0}, s{sJ}, 57344'); I(f's_lshr_b32 s{t1}, s{sG}, 1'); I(f's_lshl_b32 s{t1}, s{t1}, 12'); I(f's_add_u32 s{t0}, s{t0}, s{t1}')
        I(f's_and_b32 s{t1}, s{sG}, 1'); I(f's_lshl_b32 s{t1}, s{t1}, 9'); I(f's_add_u32 s{t0}, s{t0}, s{t1}'); I(f's_add_u32 s{t0}, s{t0}, {0x1800000}')
        I(f's_cmp_lt_u32 s{sG}, 28'); I(f's_cselect_b32 s{t0}, s{t0}, {BIG}')
        I(f's_cmp_lt_u32 s{sJ}, 7'); I(f's_cselect_b32 s{t0}, s{t0}, {BIG}')
    SBX, ARX, TA, PF, PA = 32, 148, 132, 196, 60
    def gx_addr(self):
        I = self.I
        I('v_bfe_u32 v15, v1, 2, 2')
        I('v_lshl_add_u32 v16, v3, 3, v15'); I('v_lshlrev_b32 v16, 7, v16')
        I('v_and_b32 v32, 3, v1'); I('v_lshl_add_u32 v16, v32, 3, v16')
        I('v_lshrrev_b32 v15, 1, v15'); I('v_and_b32 v32, 1, v3'); I('v_lshl_add_u32 v15, v32, 1, v15')
        I('v_lshl_add_u32 v32, v15, 5, v16'); I(f'v_add_u32 v32, {RB}, v32')
        for t in range(1, 4): I(f'v_xor_b32 v{32+t}, {t*32}, v32')
    def gemmx(self, prod, fill=()):
        I = self.I
        fill = list(fill)
        def rd(m, t):
            b = self.ARX + 16*(m % 3) + 4*t
            for h in range(2): I(f'ds_read_b64_tr_b16 {vr(b+2*h,2)}, v{self.SBX+t} offset:{m*4096 + h*512}')
        for m in range(3):
            for t in range(4): rd(m, t)
        n = len(fill); done = 0
        for m in range(14):
            for t in range(4):
                w = vr(self.ARX + 16*(m % 3) + 4*t, 4)
                if prod != 'only': c = vr(self.TA + 4*t, 4); I(f'{MF16} {c}, {w}, {vr(self.X+4*m,4)}, ' + ('0' if m == 0 else c))
                if prod: c = vr(self.PA + 4*t, 4); I(f'{MF16} {c}, {vr(self.PF+4*m,4)}, {w}, ' + ('0' if m == 0 else c))
                if m + 3 < 14: rd(m + 3, t)
                want = -(-n * (4*m + t + 1) // self.o.get('gxs', 56))
                while done < min(n, want): fill[done](); done += 1

    def p1_A(self, g6):
        e, I, o = self.e, self.I, self.o
        X, AX = self.X, self.AX
        t0, t1 = sT[0:2]
        e.vm = self.vmA
        self.init_A()
        self.get_tag()
        self.stamp('su')
        if o.get('x0', 2) < 2: self.xdma(1, 1, 'c1')
        I('s_setprio 1')
        WR, X2 = 132, 164
        def kreads(m):
            return [self.xrd(X + 4*m, m, 0, f'xr{m>>1}'), self.xrd(X2 + 4*(m % 3), m, 1)] + self.wrd(WR + 8*(m & 3), m, 0)
        def kstep(m):
            xa, xb = vr(X + 4*m, 4), vr(X2 + 4*(m % 3), 4)
            w = [vr(WR + 8*(m & 3) + 4*t, 4) for t in range(2)]
            ops = [(68, 'v[32:35]', xa), (72, 'v[32:35]', xb), (196, 'v[32:35]', w[0]), (200, 'v[32:35]', w[1]),
                   (52, w[0], xa), (60, w[0], xb), (56, w[1], xa), (64, w[1], xb)]
            return [f'{MF16} {vr(c,4)}, {p}, {q}, ' + ('0' if m == 0 else vr(c, 4)) for c, p, q in ops]
        e.wait_tag('c0'); self.bar('c0')
        if o.get('stlb'): e.lg.append(dict(dst=set(), tag=None, smem=True))
        self.mix([], kreads(0))
        if o.get('nl'): I(f'buffer_store_dwordx4 v[180:183], v31, {WS}, 0 offen sc1')
        if self.fa: I(f'buffer_store_dwordx4 v[180:183], v14, {WS}, 0 offen sc1')
        self.xdma(2, 2, 'c2')
        for m in range(14):
            i = m >> 1
            if m & 1 and i < 6:
                e.wait_tag(f'xr{i}'); e.wait_tag('nw'); e.wait_tag(f'c{i+1}'); self.bar(f'c{i+1}')
            self.mix(kstep(m), kreads(m + 1) if m < 13 else [], 2)
            if not m & 1 and i + 3 < 7: self.xdma(i + 3, (i + 3) & 3, f'c{i+3}')
            if m == o.get('km', 6):
                for ch in o.get('kw', '-'):
                    if ch == 'g':
                        I(f'buffer_load_dword v10, v0, {WS}, s{sGB} offen sc1'); e.vm[-1]['dst'] = set()
                    elif ch != '-': self.warm(ch, 30, 9, 10)
            ch = (o.get('kt', '') + '-'*14)[m]
            if ch == 'g':
                I(f'buffer_load_dword v7, v0, {WS}, s{sGB} offen sc1'); e.vm[-1]['dst'] = set()
            elif ch == 's':
                for c2 in 'o12': self.warm(c2, 30, 9, 7)
            elif ch != '-': self.warm(ch, 30, 9, 7)
            if m == 8: self.phi_frags()
            if m == 10: self.phi_mask()
            if m == 11: self.sq_src(); self.own_fl()
            if m >= 9:
                for ch in o.get('k' + '9abcd'[m - 9], ''):
                    if ch == 'g':
                        I(f'buffer_load_dword v7, v0, {WS}, s{sGB} offen sc1'); e.vm[-1]['dst'] = set()
                    else: self.warm('o123'['OISA'.index(ch)], 176, 177, 7)
            if m == 7:
                na = o.get('na', 16)
                I(f's_and_b32 s{t0}, s{sL}, 31'); I(f's_lshl_b32 s{t0}, s{t0}, 2'); I(f's_add_u32 s{t0}, s{t0}, s{sA}')
                I(f's_mul_i32 s{t1}, s{t0}, 25'); I(f'v_add_u32 v176, s{t1}, v1'); I('v_lshlrev_b32 v176, 7, v176')
                I(f's_mul_i32 s{t1}, s{t0}, {na}'); I(f'v_add_u32 v15, s{t1}, v1')
                I('v_lshrrev_b32 v177, 1, v15'); I('v_lshlrev_b32 v177, 9, v177'); I('v_and_b32 v15, 1, v15'); I('v_lshl_add_u32 v177, v15, 7, v177')
                I(f'v_mov_b32 v16, {BIG}')
                I('v_cmp_gt_u32 vcc, 25, v1'); I('v_cndmask_b32 v176, v16, v176, vcc')
                I(f'v_cmp_gt_u32 vcc, {na}, v1'); I('v_cndmask_b32 v177, v16, v177, vcc')
            if m == 13 and 'x' in o.get('kj', ''):
                t2 = sT[2]
                I(f's_lshl_b32 s{t0}, s{sH}, 16'); I(f's_lshl_b32 s{t1}, s{sRB}, 8'); I(f's_add_u32 s{t0}, s{t0}, s{t1}')
                I(f's_lshl_b32 s{t1}, s{sA}, 15'); I(f's_add_u32 s{t0}, s{t0}, s{t1}'); I(f's_add_u32 s{t0}, s{t0}, {WS_KVP}')
                I(f's_lshl_b32 s{t1}, s{sH}, 12'); I(f's_lshl_b32 s{t2}, s{sA}, 11'); I(f's_add_u32 s{t1}, s{t1}, s{t2}'); I(f's_add_u32 s{t1}, s{t1}, {WS_KVR - 4096}')
                I(f's_cmp_lt_u32 s{sA}, 2'); I(f's_cselect_b32 s{t0}, s{t0}, s{t1}'); I(f's_cselect_b32 s{t1}, 12, 8')
                I('v_lshrrev_b32 v78, 1, v2'); I(f'v_lshlrev_b32 v78, s{t1}, v78'); I('v_and_b32 v15, 1, v2')
                I('v_lshl_add_u32 v78, v15, 7, v78'); I(f'v_add_u32 v78, s{t0}, v78')
        assert o.get('km', 6) >= 6
        self.stamp(2)
        self.fwr(16)
        I('v_mov_b32 v44, v176'); I('v_mov_b32 v45, v177')
        I(f's_setprio {o.get("aprio", 0)}')
        BXS = [224, 216]
        for n in range(2):
            I(f'v_mul_f32 v{228+2*n}, v{68+4*n}, v29')
        la = [self.capture(lambda n=n: self.split_b(228+2*n, BXS[n], 229+2*n)) for n in range(2)]
        la += [self.capture(lambda n=n: self.split_a(196+4*n, AX+4*n, 197+4*n)) for n in range(2)]
        for r in zip(*la):
            for t in r: I(t)
        srd_ = 'ds_read_b64 v[48:49], v28 offset:8'
        for n in range(2):
            for t in range(2):
                acc = vr(52 + 8*n + 4*t, 4)
                I(f'{MF16} {acc}, {vr(AX+4*t,4)}, {vr(BXS[n],4)}, {acc}')
        KC = [204, 220]
        for n in range(2):
            self.cvt(KC[n], 52 + 8*n, 8)
            for t in range(2): I(f'{MF16} {vr(52+8*n+4*t,4)}, {vr(36+4*t,4)}, {vr(KC[n],4)}, 0')
        I(srd_)
        sm = [self.capture(lambda n=n: (self.softmax2s(52 + 8*n, 132 + 8*n, (228, 172)[n], 22, 48 + n),
                  [self.I(f'ds_write_b64 v{(23,46)[n]}, {vr(132+8*n+2*t,2)} offset:{t*32}') for t in range(4)])) for n in range(2)]
        pk = [t for r in zip(*sm) for t in r]
        first = min(n for n, t in enumerate(pk) if t.endswith('v48'))
        hl = f'buffer_load_dword v14, v8, {WS}, 0 offen sc1'
        def gt():
            I(f'buffer_load_dword v12, v0, {WS}, s{sGB} offen sc1'); e.vm[-1]['dst'] = set()
        dl = [('wo', RA, m) for m in range(7)] + [('w1', RB, m) for m in W1SAFE]
        def dma(n):
            for _ in range(n):
                if dl: nm, rg, m = dl.pop(0); self.sq_dma(nm, rg, m, nm)
        def job(ch):
            if ch == 'h': I(hl)
            elif ch == 'g': gt()
            elif ch in 'OIS': self.warm('o12'['OIS'.index(ch)], 44, 45, 12)
            elif ch == 'A': self.warm('3', 44, 45, 12)
            elif ch in 'o1234': self.warm(ch, 30, 9, 12)
            elif ch == 'x':
                I(f'buffer_load_dword v12, v78, {WS}, 0 offen sc1'); e.vm[-1]['dst'] = set()
            elif ch == 'f': I(self.frd)
            elif ch == 'c': self.fchk(1)
            elif ch == 'd': dma(1)
        for ch in o.get('k2', ''): job(ch)
        jobs = [(lambda ch=ch: job(ch)) for ch in o.get('kj', 'hg')]
        assert 'h' in o.get('kj', 'h')
        w1v = o.get('w1v')
        assert not w1v or ('fc' in o['kj'] and self.fa)
        for n, t in enumerate(pk):
            if n == first:
                self.lpoll([srd_], lambda: I('v_cmp_eq_u32 vcc, 0, v49'), 'sc')
                self.stamp('k1')
                self.swarm('sk')
            if n >= first + o.get('q0', 0) and (n - first) % o.get('qd', 8) == 0 and jobs: jobs.pop(0)()
            I(t)
        self.stamp('k2')
        self.fwr(32)
        I(self.frd)
        for f in jobs: f()
        self.fchk(3, 32)
        I(f's_setprio {o.get("kvprio", 3)}')
        self.stamp(3)
        KB, KA = 132, 148
        for ks in range(4):
            a, b = (24, 25) if ks < 2 else (26, 27)
            st = 3584 if ks < 2 or o.get('w1v') else 14336
            for ee in range(2): I(f'ds_read_b64_tr_b16 {vr(KB+4*ks+2*ee,2)}, v{b} offset:{((2*ks+ee)&3)*st}')
            for t in range(2):
                for ee in range(2): I(f'ds_read_b64_tr_b16 {vr(KA+16*t+4*ks+2*ee,2)}, v{a} offset:{((2*ks+ee)&3)*st + 32*t}')
            if ks:
                for t in range(2): I(f'{MF16} {vr(52+4*t,4)}, {vr(KA+16*t+4*ks-4,4)}, {vr(KB+4*ks-4,4)}, ' + ('0' if ks == 1 else vr(52+4*t, 4)))
        for t in range(2): I(f'{MF16} {vr(52+4*t,4)}, {vr(KA+16*t+12,4)}, {vr(KB+12,4)}, {vr(52+4*t,4)}')
        self.fwr(48)
        for p in range(4): I(f's_mov_b32 s{sT[8+p]}, {p*16384}')
        self.cvt(60, 52, 8)
        I(f'buffer_store_dwordx4 v[60:63], v31, {WS}, 0 offen sc1')
        self.stamp(4)
        for ch in o.get('k4', ''): job(ch)
        I(self.frd)
        def chk():
            I('v_and_b32 v16, -16, v14')
            I(f'v_cmp_ne_u32 vcc, s{sTAG}, v16')
        self.poll2([hl], chk, 'hello')
        I(f'v_cmp_ne_u32 vcc, s{sMODE}, v14')
        I(f's_and_b32 s{sMODE}, vcc_lo, 0xffff')
        if self.force_slow: I(f's_mov_b32 s{sMODE}, 1')
        dl[:] = [x for x in dl if x[0] == 'wo'] + [('wo', RA, m) for m in range(7, 14)] + [x for x in dl if x[0] == 'w1'] + [('w1', RB, m) for m in W1REST]
        self.rest = []
        G, AC, CV = (196, 212, 216) if self.fa else (self.G, self.GAC, 152)
        sk, jn = e.newlabel('Lns1'), e.newlabel('Lkj')
        I(f's_cmp_lg_u32 s{sW}, 0'); I(f's_cbranch_scc1 {sk}')
        sn = e.snap()
        tok = ['v_add_u32 v5, 1, v5', 'ds_write_b32 v17, v5 offset:16']
        I('v_mov_b32 v5, 0')
        loads = [f'buffer_load_dwordx4 {vr(G+4*p,4)}, v50, {WS}, s{sT[8+p]} offen sc1' for p in range(4)] + tok
        def chk3():
            for p in range(4):
                I(f'{MF16} {vr(AC,4)}, {vr(self.SEL,4)}, {vr(G+4*p,4)}, ' + ('0' if p == 0 else vr(AC, 4)))
            I(f'v_cmp_u_f32 vcc, v{AC}, v{AC}')
        for t in loads: I(t)
        self.fchk(3, 48)
        I(f'v_mov_b32 v7, s{sMODE}'); I(f'v_mov_b32 v16, {L_MODE}'); I('ds_write_b32 v16, v7')
        I(f's_lshl_b32 s{t0}, s{sH}, 12'); I(f's_add_u32 s{t0}, s{t0}, {WS_KVR}')
        I(f'v_add_u32 v6, {L_KV4}, v4')
        I(f's_mov_b32 s{sT[4]}, s{t0}')
        g6.main_pre(self)
        self.common_addr()
        if self.fa: self.fwr(52); self.gx_addr()
        self.poll2(loads, chk3, 's1')
        self.cvt(CV, AC, 4)
        I(f'buffer_store_dwordx2 {vr(CV,2)}, v51, {WS}, 0 offen sc1')
        self.stamp(7)
        loads = [f'buffer_load_dwordx4 {vr(G+4*p,4)}, v4, {WS}, s{sT[4]} offen offset:{p*1024} sc1' for p in range(4)] + tok
        def chk4():
            I(f'v_max3_u32 v{AC}, v{G}, v{G+2}, v{G+4}'); I(f'v_max3_u32 v{AC+1}, v{G+6}, v{G+8}, v{G+10}')
            I(f'v_max3_u32 v{AC}, v{AC}, v{G+12}, v{G+14}'); I(f'v_max_u32 v{AC}, v{AC}, v{AC+1}')
            I(f'v_cmp_eq_u32 vcc, -1, v{AC}')
        if self.fa and not o.get('sep'):
            for t in loads: I(t)
            I(self.frd); self.fchk(*((4, 48) if w1v else (0, 52)))
            self.stamp('x0')
            self.gemmx(False)
            self.stamp('x1')
            self.poll2(loads, chk4, 's2')
        else: self.poll3(loads, chk4, 's2')
        for p in range(4): I(f'ds_write_b128 v6, {vr(G+4*p,4)} offset:{p*1024}')
        self.fwr(60)
        self.stamp('s2')
        I('s_setprio 0')
        if o.get('sep'):
            I(self.frd); self.fchk(0, 52)
            self.gemmx(False)
            self.stamp('x2')
        I(f's_branch {jn}')
        e.restore(sn)
        e.label(sk)
        I('s_setprio 0')
        assert len(dl) == 28
        I(f's_and_b32 s{t0}, s{sA}, 1'); I(f's_lshl_b32 s{t0}, s{t0}, 6'); I(f'v_xor_b32 v10, s{t0}, v11')
        I(f's_mul_i32 s{t0}, s{sA}, 7168'); I(f'v_subrev_u32 v10, s{t0}, v10')
        self.fchk(3, 48)
        I(f'v_mov_b32 v5, {L_FL}')
        def gate(n):
            top, dn = e.newlabel('Lgt'), e.newlabel('Lgd')
            e.wait_lg0()
            e.label(top)
            I('ds_read_b32 v15, v5 offset:16')
            I(f'v_cmp_gt_u32 vcc, {n}, v15')
            I(f's_cbranch_vccz {dn}')
            I(f's_sub_u32 s{sSPIN}, s{sSPIN}, 1')
            I(f's_cbranch_scc0 {top}')
            I(f's_mov_b32 s{sSPIN}, 0')
            e.label(dn)
        ins = []
        def rot(r, mod):
            I(f's_cmp_ge_u32 s{r}, {mod}'); I(f's_cselect_b32 s{t1}, {mod}, 0'); I(f's_sub_u32 s{r}, s{r}, s{t1}')
        def own(nm, rg, m):
            if not (self.fa and nm == 'w1'): return self.sq_dma(nm, rg, m, nm)
            I(f's_add_u32 m0, s{self.sMW}, {rg + m*4096}')
            I(f's_add_u32 s{self.sCw}, s{sN}, {m*32*896}'); rot(self.sCw, 448*896)
            I(f'buffer_load_dwordx4 v{self.vSQ}, {srd(nm)}, s{self.sCw} offen lds', tag=nm)
        def ext(nm, rg, m):
            I(f's_add_u32 s{t0}, s{sA}, {m - 2}'); I(f's_min_u32 s{t0}, s{t0}, 13')
            I(f's_mul_i32 s{self.sCw}, s{t0}, {32*896}'); I(f's_lshl_b32 s{t0}, s{t0}, 12'); I(f's_add_u32 m0, s{t0}, {rg}')
            if self.fa and nm == 'w1': I(f's_add_u32 s{self.sCw}, s{self.sCw}, s{sN}'); rot(self.sCw, 448*896)
            I(f'buffer_load_dwordx4 v10, {srd(nm)}, s{self.sCw} offen lds', tag=nm)
        def ext3(m):
            I(f's_add_u32 s{t0}, s{sA}, {m - 2}')
            I(f's_mul_i32 s{self.sCw}, s{t0}, {16*3584}'); I(f's_lshl_b32 s{t0}, s{t0}, 12'); I(f's_add_u32 m0, s{t0}, {RC}')
            I(f'buffer_load_dwordx4 v7, {srd("w3")}, s{self.sCw} offen lds', tag='w3')
        if self.fa: I(f's_mul_i32 s{sN}, s{self.sCx}, 448')
        for nm, rg in (('wo', RA),) if w1v else (('w1', RB), ('wo', RA)) if self.fa else (('wo', RA), ('w1', RB)):
            for m in range(14):
                ins.append(lambda nm=nm, rg=rg, m=m: own(nm, rg, m))
                if m % 3 == 1: ins.append(lambda nm=nm, rg=rg, m=m: ext(nm, rg, m))
        if o.get('w3k', 1):
            for m in range(9):
                ins.append(lambda m=m: g6.w3_dma(self, 6, self.sMW, m, 0, RC + m*4096, 'w3'))
                if m % 3 == 1: ins.append(lambda m=m: ext3(m))
        def pfrags():
            lo, jo = e.newlabel('Lpo'), e.newlabel('Lpj')
            I(f's_cmp_lg_u32 s{sW}, 1'); I(f's_cbranch_scc1 {lo}')
            I(f's_lshl_b32 s{t0}, s{sG}, 4'); I(f'v_add_u32 v15, s{t0}, v2'); I('v_mul_u32_u24 v15, 896, v15'); I('v_lshl_add_u32 v15, v3, 4, v15')
            for m in range(0, 14, 2):
                I(f's_add_u32 s{self.sCw}, s{self.sCx}, {m*64}'); rot(self.sCw, 896)
                for h in range(2): I(f'buffer_load_dwordx4 {vr(self.PF+4*(m+h),4)}, v15, {srd("wo")}, s{self.sCw} offen offset:{h*64}', maybe=True)
            e.label(jo)
            e.ool.append(lo + ':')
            for i in range(56): e.ool.append(f'  v_mov_b32 v{self.PF+i}, 0x3f803f80')
            e.ool.append(f'  s_branch {jo}')
        bs = [int(c, 36) for c in o.get('bs', 'a9a' if self.fa else 'a9a9c')]
        n = 0; wol = False
        i3 = 19 if w1v else 38
        if self.fa and o.get('pfb', 0) < 0: pfrags()
        for b, cnt in enumerate(bs):
            if not self.fa and n >= 19 and not wol and b >= o.get('wlb', 3):
                e.wait_tag('wo'); self.fwr(56); wol = True
            if n <= i3 < n + cnt:
                I(self.frd); self.fchk(6)
            if o.get('gate', 1) and not (self.fa and b >= 2 and not o.get('sep')): gate(b + 1)
            for f in ins[n:n + cnt]: f()
            n += cnt
            self.stamp(f'd{b}')
            if b == 0:
                g6.main_pre(self)
                self.common_addr()
                g6.w3_src(self, 6)
                I(f's_lshr_b32 s{t0}, s{sA}, 1'); I(f's_lshl_b32 s{t0}, s{t0}, 7'); I(f's_and_b32 s{t1}, s{sA}, 1'); I(f's_mul_i32 s{t1}, s{t1}, {8*3584}')
                I(f's_add_u32 s{t0}, s{t0}, s{t1}'); I(f'v_subrev_u32 v7, s{t0}, v6')
                if self.fa: self.gx_addr()
            if b == o.get('tpb', 0) and 't' in o.get('sn', ''): g6.t_prefill(self)
            if self.fa and b == o.get('pfb', 0): pfrags()
        if self.fa:
            if w1v: I(self.frd); self.fchk(4, 48)
            else:
                assert n >= 19
                e.wait_tag('w1'); self.fwr(52); I(self.frd); self.fchk(0, 52)
            self.stamp('x0')
            fill = []
            for q in range(n, len(ins)):
                if q == i3: fill += [lambda: I(self.frd), lambda: self.fchk(6)]
                fill.append(ins[q])
            nin = 0 if o.get('sep') else o.get('gxn', len(fill))
            self.gemmx('only' if o.get('sep') else True, fill[:nin])
            self.stamp('x1')
            self.w01_base(t0)
            I(f's_cmp_eq_u32 s{sW}, 1'); I(f's_cselect_b32 s{t0}, s{t0}, {BIG}')
            I('v_and_b32 v15, 1, v3'); I('v_lshlrev_b32 v15, 10, v15'); I('v_lshrrev_b32 v16, 1, v3'); I('v_lshl_add_u32 v15, v16, 8, v15')
            I('v_lshl_add_u32 v15, v2, 4, v15'); I(f'v_add_u32 v15, s{t0}, v15')
            g6.pack_pairs(self, self.PA, self.ARX)
            for pp in range(2): I(f'buffer_store_dwordx4 {vr(self.ARX+4*pp,4)}, v15, {WS}, 0 offen offset:{pp*2048} sc1')
            sk2 = e.newlabel('Lcs')
            I(f'v_lshlrev_b32 v15, 2, v2'); I(f'v_add_u32 v15, {L_CS1}, v15')
            I(f's_cmp_lg_u32 s{sW}, 2'); I(f's_cbranch_scc1 {sk2}')
            for t in range(4): I(f'ds_write_b32 v15, v{self.PA+4*t} offset:{t*64}')
            e.label(sk2)
            e.wait_lg0()
            if o.get('sep'):
                b2 = [int(c, 36) for c in o.get('bt', '9')]
                for b, cnt in enumerate(b2):
                    if o.get('gate', 1): gate(len(bs) + b + 1)
                    for _ in range(cnt):
                        if fill: fill.pop(0)()
                    if b == o.get('xb', 0):
                        if o.get('tpb', 0) < 0: g6.t_prefill(self)
                        self.gemmx(False); self.stamp('x2')
                assert not fill
            else:
                for f in fill[nin:]: f()
                if o.get('tpb', 0) < 0: g6.t_prefill(self)
        else: assert n >= len(ins)
        if not wol: e.wait_tag('wo'); self.fwr(56)
        for ch in o.get('k5', ''): job(ch)
        self.stamp(5)
        e.label(jn)
        e.hist = []; e.nop(2)
        e.lg.append(dict(dst=set(), tag=None, smem=True))
    def k_landed(self):
        self.I(self.frd)
        self.fchk(0, 56)
        self.stamp('b4')
    def k_landed2(self):
        self.own_fl()
        self.e.wait_vm0()
        self.fwr(60)

    def p1_B(self, g6):
        e, I, o = self.e, self.I, self.o
        X, AX = self.X, self.AX
        X2, WR, CF, CSA = 132, 228, 196, 220
        e.vm = self.vmB
        self.init_B()
        if o.get('xb0', 1) < 2: self.xdma(1, 1, 'c1')
        self.stamp('su')
        rpi = o.get('rpi', 0)
        if rpi < 0: self.repack(); self.stamp('rp')
        e.wait_lg0()
        vs = [int(ch) for ch in o.get('vs', '4444555')]
        XT = [X2, X]; RS = [188, 68]; XX = [192, 72]
        for i in range(7):
            e.wait_tag(f'c{i}'); self.bar(f'c{i}')
            for m in (2*i, 2*i + 1):
                for n in range(2): I(*self.xrd(XT[n] + 4*m, m, n))
            dm = []
            if i + 2 < 7: dm += [lambda i=i: self.wdma(i + 2, 0, f'c{i+2}'), lambda i=i: self.xdma(i + 2, i + 2, f'c{i+2}')]
            dm += [lambda c=c: self.pdma(c, 0) for c in range(7) if vs[c] == i]
            mf = []
            for m in (2*i, 2*i + 1):
                for n in range(2):
                    x = vr(XT[n] + 4*m, 4)
                    mf.append(f'{MF16} {vr(XX[n],4)}, {x}, {x}, ' + ('0' if m == 0 else vr(XX[n], 4)))
                    mf.append(f'{MF16} {vr(RS[n],4)}, v[32:35], {x}, ' + ('0' if m == 0 else vr(RS[n], 4)))
            self.mix(mf, dm, o.get('dlead', 2))
            if i == rpi: self.repack(); self.stamp('rp')
            if i == 1: self.v_addr1()
            if i == 2: self.vSQ = 51; self.sq_src()
            if i == 3:
                self.phi_frags()
                for t in self.capture(self.hello): I(t.replace(f's_cmp_eq_u32 s{sW}, 0', f's_cmp_eq_u32 s{sW}, 4'))
            if i == 4: self.phi_mask()
            if i == 5: self.v_addr2()
        self.stamp(2)
        BXS = [216, 224]
        def stats():
            I = self.I
            for n in range(2):
                for r in range(4): I(f'v_mul_f32 v{XX[n]+r}, v{XX[n]+r}, v{252+r}')
            for n in range(2):
                x = XX[n]
                I(f'v_add_f32 v{x}, v{x}, v{x+1}'); I(f'v_add_f32 v{x+2}, v{x+2}, v{x+3}')
                I(f'v_mul_f32 v{x+1}, s{sC448}, v{RS[n]}')
            for n in range(2): I(f'v_add_f32 v{XX[n]}, v{XX[n]}, v{XX[n]+2}')
            for n in range(2): I(f'v_mul_f32 v{XX[n]+1}, v{XX[n]+1}, v{XX[n]+1}')
            self.allred2(XX[0], XX[1], XX[0]+2, 'v_add_f32')
            for n in range(2): I(f'v_fma_f32 v{XX[n]}, v{XX[n]}, s{sC448}, -v{XX[n]+1}')
            for n in range(2): I(f'v_add_f32 v{XX[n]}, 0x3727c5ac, v{XX[n]}')
            for n in range(2): I(f'v_rsq_f32 v{RS[n]+2}, v{XX[n]}')
            for n in range(2): I(f'v_mul_f32 v{204+n}, s{sL2E}, v{RS[n]+2}')
            I('ds_write_b64 v28, v[204:205] offset:8')
            I('v_mov_b32 v30, v205')
            for n in range(2):
                I(f'v_mul_f32 v{XX[n]}, v{RS[n]}, v29')
                self.split_b(XX[n], BXS[n], XX[n]+1)
            I('v_cmp_eq_u32 vcc, 0, v1'); I('v_cndmask_b32 v21, v20, v13, vcc')
            I(f's_lshl_b32 s{sT[0]}, s{sA}, 7'); I(f's_add_u32 s{sT[0]}, s{sT[0]}, {L_PART}')
            I('v_lshlrev_b32 v12, 3, v2'); I(f'v_add_u32 v12, s{sT[0]}, v12')
        frd, fwr = self.frd, self.fwr
        def fchk(n, extra=()): self.fchk(n, 0, extra)
        CB = [196, 200, 192, 72]
        def csr(c, mat): return [f'ds_read_b64_tr_b16 {vr(CB[c&3]+2*n,2)}, v{(7,31)[mat]} offset:{c*(4096,1024)[mat]+n*256}' for n in range(2)]
        csm = lambda c: f'{MF16} {vr(CSA,4)}, v[32:35], {vr(CB[c&3],4)}, ' + ('0' if c == 0 else vr(CSA, 4))
        axr = lambda mat: [f'ds_read_b64 {vr(AX+4*t,2)}, v8 offset:{mat*512 + t*128}' for t in range(2)]
        def wr(m, mat):
            d = WR + 8*(m % 3)
            if mat == 0: return self.wrd(d, m, 1)
            return [f'ds_read_b64_tr_b16 {vr(d+2*n,2)}, v{10+(n>>1)} offset:{(m&1)*16384 + (m>>1)*1024 + (n&1)*256}' for n in range(4)]
        st = self.capture(stats)
        TD = 44
        if o.get('sprio', 1): I('s_setprio 2')
        nt = o.get('stt', 14)
        for t in st[:nt]: I(t)
        e.wait_tag('wv')
        for t in self.tag_reads(0, TD): I(t)
        for t in st[nt:34]: I(t)
        st = st[34:]
        I(f's_setprio {o.get("vprio", 2)}')
        self.tag_chk(0, TD)
        fwr(1); I(frd)
        for t in st: I(t)
        fchk(1)
        self.stamp('v1')
        for t in wr(0, 0) + wr(1, 0) + csr(0, 0): I(t)
        jobs = [(lambda i=i: self.pdma(i, 1)) for i in range(7)] + [(lambda ch=ch: self.warm(ch, 51, 0, 9)) for ch in o.get('mw', '-') if ch != '-']
        late = []
        if o.get('nq0', 4) < 0: late, jobs = jobs, []
        for _ in range(o.get('nq0', 4)): jobs.pop(0)()
        def gemm(mat, fl, ACC, more):
            extra = {m: [] for m in range(14)}; xm = {m: [] for m in range(14)}
            for c in range(1, 7): extra[c - 1] += csr(c, mat)
            for c in range(7): xm[c + 1].append(csm(c))
            extra[10] += self.capture(lambda: self.split_a(CSA, 206, CF)) + [f'ds_write_b64 v12, v[206:207] offset:{mat*512}']
            for m, f in more: extra[m].append(f)
            extra[10].append(lambda: fwr(fl))
            extra[12] += [frd] + axr(mat)
            for m in range(14):
                mf = []
                for t in range(2):
                    for n in range(2):
                        c = vr(ACC + 8*n + 4*t, 4)
                        mf.append(f'{MF16} {c}, {vr(WR+8*(m%3)+4*t,4)}, {vr(XT[n]+4*m,4)}, ' + ('0' if m == 0 else c))
                ot = (wr(m + 2, mat) if m + 2 < 14 else []) + extra[m]
                self.mix(mf + xm[m], ot)
                self.stamp(f'{"vq"[mat]}g{m}')
            fchk(fl, axr(mat))
            for n in range(2):
                for t in range(2):
                    acc = vr(ACC + 8*n + 4*t, 4)
                    I(f'{MF16} {acc}, {vr(AX+4*t,4)}, {vr(BXS[n],4)}, {acc}')
        more = [(min(13, o.get('jq', 0) + n // o.get('jr', 2)), f) for n, f in enumerate(jobs)]
        def qw():
            e.wait_tag('wq')
            for t in self.tag_reads(1, TD): I(t)
        wqm = o.get('wqm', 0)
        if wqm: more += [(9, qw), (10, lambda: self.tag_chk(1, TD))]
        gemm(0, 2, 52, more)
        self.stamp('sb')
        if wqm:
            for t in wr(0, 1) + wr(1, 1) + csr(0, 1): I(t)
        for n in range(2):
            c = 52 + 8*n
            for i in range(8): I(f'v_mul_f32 v{c+i}, v{c+i}, v{RS[n]+2}')
            I(f'v_cndmask_b32 v{c}, v{c}, 1.0, s[{sM0}:{sM0+1}]')
            I(f'v_cndmask_b32 v{c+4}, v{c+4}, 1.0, s[{sM1}:{sM1+1}]')
            self.cvt(188 + 4*n if n == 0 else 68, c, 8)
            d = 188 if n == 0 else 68
            I(f'ds_write_b64 v{(23,46)[n]}, {vr(d,2)} offset:128')
            I(f'ds_write_b64 v{(23,46)[n]}, {vr(d+2,2)} offset:160')
        fwr(3)
        self.stamp('sv')
        I(f's_setprio {o.get("qprio", 0)}')
        dl = self.rest
        nsafe = len([x for x in dl if x[0] == 'wo' or x[2] in W1SAFE])
        def dma():
            nm, rg, m = dl.pop(0); self.sq_dma(nm, rg, m, nm)
        assert not wqm
        for f in late: f()
        if o.get('w1v'):
            I(f's_mul_i32 s{sT[11]}, s{self.sCx}, 448')
            for m in range(14):
                I(f's_add_u32 m0, s{self.sMW}, {RB + m*4096}')
                I(f'buffer_load_dwordx4 v{self.vSQ}, {srd("w1")}, s{sT[11]} offen lds', tag='w1')
                if m < 13:
                    I(f's_add_u32 s{sT[11]}, s{sT[11]}, {32*896}'); I(f's_cmp_eq_u32 s{sT[11]}, {448*896}'); I(f's_cselect_b32 s{sT[11]}, 0, s{sT[11]}')
            self.stamp('w1')
        qw()
        for _ in range(o.get('qa', 0)):
            assert dl[0][2] < 7 or dl[0][0] == 'w1'
            dma(); nsafe -= 1
        self.tag_chk(1, TD); e.wait_tag('w1'); fwr(4); I(frd); fchk(4)
        self.stamp('q4')
        for _ in range(o.get('qb', 0)): dma(); nsafe -= 1
        for t in wr(0, 1) + wr(1, 1) + csr(0, 1): I(t)
        more = [(11, lambda: g6.w3_src(self, 48))]
        for m, ch in enumerate(o.get('qn', '0')):
            for _ in range(int(ch)):
                if nsafe: more.append((m, dma)); nsafe -= 1
        gemm(1, 5, 52, more)
        fwr(6)
        self.stamp('sq')
        self.swarm('sw')
        KC = [192, 72]
        for n in range(2):
            self.cvt(KC[n], 52 + 8*n, 8)
            for t in range(2): I(f'{MF16} {vr(52+8*n+4*t,4)}, {vr(36+4*t,4)}, {vr(KC[n],4)}, 0')
        PH = [132, 140]
        smf = self.softmax2 if o.get('pkq', 1) else self.softmax2s
        sm = [self.capture(lambda n=n: smf(52 + 8*n, PH[n], (148, 172)[n], 22, (204, 30)[n])) for n in range(2)]
        assert o['w2a'] == 9
        w3l = [(lambda m=m: g6.w3_dma(self, 48, self.sMW, m, 0, RC + m*4096, 'w3')) for m in range(0 if o.get('w3k', 1) else 9)]
        n3 = o.get('w3p', 9)
        jobs = [lambda: I(frd), lambda: self.fchk(6, 48)] + w3l[:n3]
        self.w3l = w3l[n3:]
        pk = [t for r in zip(*sm) for t in r]
        for n, t in enumerate(pk):
            if n >= o.get('w0', len(pk) - 20) and n % o.get('wd', 8) == 0 and jobs: jobs.pop(0)()
            I(t)
        for f in jobs: f()
        self.stamp(6)
        KF = 76
        I(f'v_mov_b32 v0, {L_FL}')
        rds = ['ds_read_b32 v15, v0 offset:4', f'ds_read_b32 v9, v0 offset:{L_MODE - L_FL}']
        for a in range(2):
            rds.append(f'ds_read_b128 {vr(KF+16+4*a,4)}, v25 offset:{a*2048}')
            for dt in range(2): rds.append(f'ds_read_b128 {vr(KF+4*(2*a+dt),4)}, v24 offset:{a*2048 + dt*1024}')
        top = e.newlabel('Lkvw'); dn = e.newlabel('Lkvd')
        e.wait_lg0()
        e.label(top)
        I(rds[0])
        I('v_cmp_gt_u32 vcc, 60, v15')
        I(f's_cbranch_vccz {dn}')
        I(f's_sub_u32 s{sSPIN}, s{sSPIN}, 1')
        I(f's_cbranch_scc0 {top}')
        I(f's_mov_b32 s{sSPIN}, 0')
        e.label(dn)
        I(f's_setprio {o.get("oprio", 2)}')
        for t in rds[1:]: I(t)
        self.stamp('s2')
        I(f'v_readfirstlane_b32 s{sMODE}, v9')
        ACO = [100, 112]
        for a in range(2):
            for n in range(2):
                ac = ACO[n]
                I(f'{MF16} {vr(ac+8,4)}, {vr(KF+16+4*a,4)}, {vr(PH[n]+4*a,4)}, ' + ('0' if a == 0 else vr(ac+8, 4)))
            for dt in range(2):
                for n in range(2):
                    ac = ACO[n]
                    I(f'{MF16} {vr(ac+4*dt,4)}, {vr(KF+4*(2*a+dt),4)}, {vr(PH[n]+4*a,4)}, ' + ('0' if a == 0 else vr(ac+4*dt, 4)))
        for n in range(2): I(f'v_add_f32 v{ACO[n]+8}, 0x358637bd, v{ACO[n]+8}')
        for n in range(2): I(f'v_rcp_f32 v{ACO[n]+8}, v{ACO[n]+8}')
        for n in range(2):
            ac = ACO[n]; pk = 124 + 4*n
            for i in range(0, 8, 2): I(f'v_pk_mul_f32 {vr(ac+i,2)}, {vr(ac+i,2)}, {vr(ac+8,2)} op_sel_hi:[1,0]')
            self.cvt(pk, ac, 8)
        for n in range(2):
            pk = 124 + 4*n
            I(f'v_permlane16_swap_b32 v{pk}, v{pk+2}'); I(f'v_permlane16_swap_b32 v{pk+1}, v{pk+3}')
        self.stamp(8)
        ost = [f'buffer_store_dwordx2 {vr(124+4*n+2*hh,2)}, v{18+hh}, {WS}, s{(sX0, sX1)[n]} offen' for n in range(2) for hh in range(2)]
        if 'o' in o.get('fu', ''):
            for t in ost: I(t + ' sc1', tag='os')
        else: self.stores(ost, tag='os')
        I('v_mov_b32 v16, 64'); I('ds_write_b32 v17, v16 offset:16')
        I('s_setprio 0')
        for f in self.w3l: f()
        I('v_mov_b32 v11, v51'); self.vSQ = 11
        I('v_mov_b32 v12, v48')
    def v_landed(self):
        e = self.e
        self.own_fl()
        e.wait_vm0()
        self.fwr(8); self.I(self.frd)
        self.fchk(8, 60)
        self.stamp('b4')

    def o_flag(self, tag=None):
        if tag: self.e.wait_tag(tag)
        else: self.e.wait_vm0()
        self.stores([f'buffer_store_dword v27, v14, {WS}, 0 offen'])
        self.stamp(9)

if __name__ == '__main__':
    g5.main(K)
```

```python
from g5 import *
import g4
from g4 import GA, GB_, f32, pack_pairs, row_stats, stat_addrs, gelu_consts

vZ, vBIG, vL0, vSIG, vTAG, vB, vST = 13, 20, 21, 26, 27, 28, 29
SB = [5, 6, 7, 8]
BF = 76
ARS = [148, 164, 180, 196, 212, 132, 116]
L_G = 159744
vSA, vSB = 30, 31
vFW, vFR, vFV, vFD, vFT = 251, 253, 23, 24, 25
aFW, aFR, aFV, aFD, aFT, aPA, aPD = 220, 221, 222, 223, 224, 225, 226
HR = 60
ACC = 44
CS1 = 228
BXT = 40
XA = 244
vTP, vHP, vHS, vTF, vOP, vHF = 250, 19, 252, 18, 254, 255
RES = 240
W3P = 228
U0, U1 = RC + 28672, RA
PB = [(36 - 7*n)*TILE for n in range(4)]
L_F2 = 162304
STEP_REG = [RB, RB + 28672, RC, RB, RB + 28672, RC, RA + 16384, RB]

def main_pre(k):
    I = k.I
    t0, t1 = sT[0:2]
    I(f's_lshl_b32 s{t0}, s{sG}, 6'); I(f's_lshl_b32 s{t1}, s{sW}, 4'); I(f's_add_u32 s{t0}, s{t0}, s{t1}')
    I(f'v_add_u32 v15, s{t0}, v2'); I('v_mul_u32_u24 v15, 896, v15')
    I(f's_lshl_b32 s{t0}, s{sJ}, 7')
    I('v_lshl_add_u32 v15, v3, 3, v15')
    for t in range(4):
        I(f'buffer_load_dwordx2 {vr(52+2*t,2)}, v15, {srd("x")}, s{t0} offen offset:{t*32}')

def main_addr1(k):
    I, L = k.I, k.L
    t0, t1 = sT[0:2]
    I('v_bfe_u32 v15, v1, 2, 2')
    I('v_lshl_add_u32 v16, v3, 3, v15'); I('v_lshlrev_b32 v16, 7, v16')
    I('v_and_b32 v14, 3, v1'); I('v_lshl_add_u32 v16, v14, 3, v16')
    I('v_lshrrev_b32 v15, 1, v15'); I('v_and_b32 v14, 1, v3'); I('v_lshl_add_u32 v15, v14, 1, v15')
    I(f'v_lshl_add_u32 v39, v15, 5, v16')
    I(f's_mul_i32 s{t0}, s{sW}, {TILE}'); I(f's_add_u32 s{t0}, s{t0}, s{sGB}')
    I(f'v_add_u32 v{vB}, s{t0}, v4')
    I(f's_lshl_b32 s{t0}, s{sW}, 6'); I(f's_add_u32 s{t0}, s{t0}, s{sGB}'); I(f's_add_u32 s{t0}, s{t0}, {L.F_O}')
    I(f'v_lshlrev_b32 v{vOP}, 2, v2'); I(f'v_add_u32 v{vOP}, s{t0}, v{vOP}')

def main_addr2(k):
    I, L = k.I, k.L
    t0, t1, t2, t3 = sT[0:4]
    I(f's_mul_i32 s{t0}, s{sW}, {TILE}'); I(f's_add_u32 s{t0}, s{t0}, s{sGB}')
    I(f's_lshl_b32 s{t1}, s{sJ}, 11'); I(f's_add_u32 s{t0}, s{t0}, s{t1}')
    I(f'v_lshlrev_b32 v46, 8, v{vSIG}'); I('v_lshl_add_u32 v46, v2, 4, v46')
    I(f'v_add_u32 v{vST}, s{t0}, v46')
    I(f's_lshl_b32 s{t0}, s{sW}, 3'); I(f's_add_u32 s{t0}, s{t0}, s{sJ}'); I(f's_lshl_b32 s{t0}, s{t0}, 8')
    I(f's_add_u32 s{t0}, s{t0}, s{sGB}'); I(f's_add_u32 s{t0}, s{t0}, {L.ST}')
    I(f'v_add_u32 v9, s{t0}, v4')
    I('v_cmp_eq_u32 vcc, 0, v3'); I(f'v_cndmask_b32 v9, v{vBIG}, v9, vcc')
    stat_addrs(k, vSA, vSB)
    for t in range(4): I(f'v_mov_b32 v{CS1+4*t+2}, 0'); I(f'v_mov_b32 v{CS1+4*t+3}, 0')
    I(f'v_mov_b32 v{BXT+2}, 0'); I(f'v_mov_b32 v{BXT+3}, 0')
    I(f's_add_u32 s{t0}, s{sGB}, {L.GS + L.T0 - TILE}')
    I(f's_cmp_eq_u32 s{sG}, 31'); I(f's_cselect_b32 s{t0}, {BIG}, s{t0}')
    I(f's_sub_u32 s{t1}, s{sGB}, {L.GS - L.T0 - 4*TILE}')
    I(f's_cmp_eq_u32 s{sG}, 0'); I(f's_cselect_b32 s{t1}, {BIG}, s{t1}')
    I(f's_cmp_eq_u32 s{sW}, 3'); I(f's_cselect_b32 s{t0}, s{t0}, s{t1}')
    I(f's_cselect_b32 s{t2}, 0xc000c000, 0')
    I(f's_cmp_eq_u32 s{sW}, 0'); I(f's_cselect_b32 s{t2}, 0x00030003, s{t2}'); I(f's_mov_b32 s{t3}, s{t2}')
    I(f's_lshl_b32 s{t1}, s{sJ}, 11'); I(f's_add_u32 s{t0}, s{t0}, s{t1}')
    hc = k.o.get('hc')
    if hc:
        I('v_and_b32 v15, 1, v2'); I(f'v_lshl_add_u32 v15, v{vSIG}, 1, v15'); I('v_lshlrev_b32 v15, 4, v15'); I(f'v_add_u32 v15, s{t0}, v15')
    else: I(f'v_add_u32 v15, s{t0}, v46')
    I(f'v_cndmask_b32 v{vHS}, v{vBIG}, v15, s[{t2}:{t3}]')
    if k.o.get('xb') == 1: I(f'v_mov_b32 v{vHS}, v{vBIG}')
    I(f's_lshl_b32 s{t0}, s{sW}, 4'); I(f's_add_u32 s{t0}, s{t0}, 16')
    I(f'v_add_u32 v15, s{t0}, v2')
    I(f'v_lshlrev_b32 v16, 8, v3'); I(f'v_add_u32 v16, s{sGB}, v16')
    if hc: I('v_mul_i32_i24 v19, -14, v3')
    for i, d in enumerate((-1, 1, -2, 2)):
        I(f'v_add_u32 v14, {d}, v15')
        if k.o.get('xa') == 1: I('v_mov_b32 v18, 79'); I('v_med3_i32 v14, v14, 16, v18')
        I(f'v_lshrrev_b32 v{XA+i}, 4, v14'); I(f'v_mul_u32_u24 v{XA+i}, {TILE}, v{XA+i}')
        if hc:
            I('v_add_u32 v18, -16, v14'); I('v_cmp_lt_u32 vcc, 63, v18')
            I('v_and_b32 v18, 1, v14'); I('v_and_b32 v14, 15, v14'); I('v_add_u32 v18, v18, v19'); I('v_cndmask_b32 v14, v14, v18, vcc')
        else: I('v_and_b32 v14, 15, v14')
        I(f'v_lshl_add_u32 v{XA+i}, v14, 4, v{XA+i}')
        I(f'v_add_u32 v{XA+i}, v{XA+i}, v16')
    I('v_cmp_gt_u32 vcc, 2, v3')
    I(f'v_cndmask_b32 v{XA+4}, v{XA+1}, v{XA}, vcc'); I(f'v_cndmask_b32 v{XA+5}, v{XA+3}, v{XA+2}, vcc')
    if k.o.get('ho', 1):
        I(f'v_add_u32 v{XA+1}, 4096, v{XA+1}'); I(f'v_add_u32 v{XA+3}, 4096, v{XA+3}')
        I(f's_cmp_lt_u32 s{sW}, 2'); I(f's_cselect_b64 vcc, -1, 0')
        for i in (0, 2):
            I(f'v_cndmask_b32 v15, v{XA+i}, v{XA+i+1}, vcc'); I(f'v_cndmask_b32 v{XA+i+1}, v{XA+i+1}, v{XA+i}, vcc'); I(f'v_mov_b32 v{XA+i}, v15')
    I(f's_lshl_b32 s{t0}, s{sW}, 5'); I(f's_add_u32 s{t0}, s{t0}, s{sGB}'); I(f's_add_u32 s{t0}, s{t0}, {L.F_T}')
    I('v_and_b32 v16, 7, v1'); I('v_min_u32 v16, 6, v16'); I('v_lshlrev_b32 v16, 2, v16')
    I(f'v_add_u32 v{vHF}, s{t0}, v16')
    I(f's_lshl_b32 s{t1}, s{sJ}, 2'); I(f's_add_u32 s{t0}, s{t0}, s{t1}')
    I(f'v_add_u32 v{vTF}, s{t0}, v{vL0}')
    I('v_lshrrev_b32 v15, 3, v1'); I(f'v_add_u32 v15, s{sW}, v15'); I('v_add_u32 v15, -1, v15')
    I(f's_add_u32 s{t0}, s{sW}, 1'); I(f's_min_u32 s{t0}, s{t0}, 3')
    I(f'v_med3_i32 v15, v15, 0, s{t0}')
    I('v_lshl_add_u32 v15, v15, 5, v16'); I(f's_add_u32 s{t0}, s{sGB}, {L.F_T}'); I(f'v_add_u32 v{vTP}, s{t0}, v15')
    I(f's_mov_b32 s{t0}, {BIG}')
    if not k.o.get('xa'):
        I(f's_cmp_eq_u32 s{sW}, 0'); I(f's_cselect_b32 s{t0}, {L.T0 - TILE}, s{t0}')
        I(f's_cmp_eq_u32 s{sW}, 3'); I(f's_cselect_b32 s{t0}, {L.T0 + 4*TILE}, s{t0}')
    I(f's_add_u32 s{t0}, s{t0}, s{sGB}')
    I('v_min_u32 v15, 13, v1'); I('v_lshlrev_b32 v15, 10, v15'); I(f'v_add_u32 v{vHP}, s{t0}, v15')

def early_addr(k):
    main_addr1(k); main_addr2(k)
    g_addr(k, vFW, vFR, vFV, False)
def hinit(k):
    for t in range(4):
        for d in range(2):
            k.I(f'v_lshlrev_b32 v{HR+4*t+2*d}, 16, v{52+2*t+d}')
            k.I(f'v_and_b32 v{HR+4*t+2*d+1}, 0xffff0000, v{52+2*t+d}')

def t_prefill(k):
    I, L = k.I, k.L
    t0, t1, t2 = sT[0:3]
    for i in range(4): I(f'v_mov_b32 v{76+i}, -1')
    I(f's_lshl_b32 s{t1}, s{sJ}, 11'); I(f's_add_u32 s{t1}, s{t1}, s{sGB}')
    I(f's_cmp_eq_u32 s{sJ}, 7'); I(f's_cselect_b32 s{t1}, {BIG}, s{t1}')
    I(f's_mul_i32 s{t0}, s{sW}, {TILE}'); I(f's_add_u32 s{t0}, s{t0}, s{t1}')
    I(f's_and_b32 s{t2}, s{sW}, 1'); I(f's_lshl_b32 s{t2}, s{t2}, 10'); I(f's_add_u32 s{t1}, s{t1}, s{t2}')
    I(f'v_add_u32 v15, s{t0}, v4'); I(f'v_add_u32 v16, s{t1}, v4')
    I(f's_mov_b32 s{t0}, {L.H}'); I(f's_mov_b32 s{t1}, {L.T0}'); I(f's_mov_b32 s{t2}, {L.X1}')
    st = []
    for so in [dict(h=f's{t0}', t=f's{t1}', x=f's{t2}')[c] for c in k.o.get('kpf', 'h')]:
        st += [f'buffer_store_dwordx4 v[76:79], v15, {WS}, {so} offen', f'buffer_store_dwordx4 v[76:79], v15, {WS}, {so} offen offset:1024',
               f'buffer_store_dwordx4 v[76:79], v16, {WS}, {so} offen']
    k.stores(st)

def spin_tail(k, top, done):
    I = k.I
    I(f's_cbranch_vccz {done}')
    I(f's_sub_u32 s{sSPIN}, s{sSPIN}, 1')
    I(f's_cbranch_scc0 {top}')
    I(f's_mov_b32 s{sSPIN}, 0')
    I(f's_branch {done}')
def ool(k, fn):
    e = k.e
    sn = e.snap()
    save = e.out; e.out = []
    fn()
    e.ool += e.out; e.out = save
    e.restore(sn)

def a_read(k, m, t):
    b = ARS[m % k.NS] + 4*t
    m = k.order[m]
    k.I(f'ds_read_b64_tr_b16 {vr(b,2)}, v{SB[t]} offset:{m*4096}')
    k.I(f'ds_read_b64_tr_b16 {vr(b+2,2)}, v{SB[t]} offset:{m*4096+512}')
def a_preload(k):
    for m in range(k.NS):
        for t in range(4): a_read(k, m, t)
def b_soff(k, region):
    for i in range(4): k.I(f's_mov_b32 s{sT[4+i]}, {region + i*4096}')
def b_list(k, addr=None, fl='sc1'):
    return [f'buffer_load_dwordx4 {vr(BF+4*(m%k.NB),4)}, v{vB if addr is None else addr[m]}, {WS}, s{sT[4+(k.order[m]>>2)]} offen offset:{(k.order[m]&3)*1024} {fl}' for m in range(14)]
def gemm(k, acc, ld, il, vf=(), pre=0, sbar=None, zero=False, v0=0, nm='_', hooks={}, sg=14):
    I, e = k.I, k.e
    vf = list(vf); ld = list(ld)
    il = [int(c, 36) for c in il] + [0]*16
    def loads(n, free):
        for _ in range(n):
            if ld:
                assert 14 - len(ld) - k.NB < free
                I(ld.pop(0))
                if 14 - len(ld) == sg and sbar: sbar()
    if sg == 0 and sbar: sbar()
    loads(il[0], 0)
    if -1 in hooks: hooks[-1]()
    for _ in range(pre):
        if vf: I(vf.pop(0))
    per = (len(vf) + 51 - 4*v0) // (52 - 4*v0)
    for m in range(14):
        n = il[m + 1]
        assert len(ld) < 14 - m
        r = k.sreg(nm + str(m))
        if r: e._emit(f's_memrealtime s[{r}:{r+1}]')
        for t in range(4):
            b = ARS[m % k.NS] + 4*t
            I(f'{MF16} {vr(acc+4*t,4)}, {vr(b,4)}, {vr(BF+4*(m%k.NB),4)}, ' + ('0' if zero and m == 0 else vr(acc+4*t,4)))
            loads(n*(t+1)//4 - n*t//4, m + (t == 3))
            if m + k.NS < 14: a_read(k, m + k.NS, t)
            if m >= v0:
                for _ in range(per):
                    if vf: I(vf.pop(0))
                while vf and ('cselect' in vf[0] or 'vcc' in vf[0].split(',')[-1] or 's[' in vf[0].split(',')[-1]): I(vf.pop(0))
        if m in hooks: hooks[m]()
    assert not vf and not ld
def g_addr(k, W, R, V, aux):
    I = k.I
    t0 = sT[0]
    I(f's_lshl_b32 s{t0}, s{sW}, 2'); I(f's_add_u32 s{t0}, s{t0}, {L_G}'); I(f'v_mov_b32 v{W}, s{t0}')
    I(f'v_and_b32 v{R}, 7, v1'); I(f'v_lshlrev_b32 v{R}, 2, v{R}'); I(f'v_add_u32 v{R}, {L_G}, v{R}')
def k0_init(k):
    k.I(f'v_mov_b32 v16, {L_G}'); k.I('v_lshl_add_u32 v16, v2, 2, v16'); k.I('ds_write_b32 v16, v13')
def g_wr(k, n, aux=False):
    W, V = (aFW, aFV) if aux else (vFW, vFV)
    k.I(f'v_mov_b32 v{V}, {n}'); k.I(f'ds_write_b32 v{W}, v{V}')
def g_rd(aux=False): return f'ds_read_b32 v{aFD}, v{aFR}' if aux else f'ds_read_b32 v{vFD}, v{vFR}'
def g_chk(k, nm, na, aux=False, name=None):
    D, T = (aFD, aFT) if aux else (vFD, vFT)
    if name: k.stamp('x' + name)
    k.I(f'v_cndmask_b32 v{T}, {nm}, {na}, s[0:1]')
    k.lpoll([g_rd(aux)], lambda: k.I(f'v_cmp_gt_u32 vcc, v{T}, v{D}'), 'g')
    if name: k.stamp(name)
def g_wait(k, nm, na, name=None):
    k.I(g_rd(True)); g_chk(k, nm, na, True, name)
def nan_redo(k, acc, ld, init, name, zero=False, pre=None, hooks={}):
    I, e = k.I, k.e
    done, retry = e.newlabel('Lnd'), e.newlabel('Lnr')
    I(f'v_cmp_u_f32 vcc, v{acc}, v{acc}')
    I(f's_cbranch_vccnz {retry}')
    e.label(done)
    def stub():
        e.label(retry)
        k.stamp(name)
        e.nop(8); e.wait_all()
        if pre: pre()
        a_preload(k); init()
        gemm(k, acc, ld, 'e' if k.NB == 14 else 'a1111', zero=zero, hooks=hooks)
        e.nop(8)
        I(f'v_cmp_u_f32 vcc, v{acc}, v{acc}')
        spin_tail(k, retry, done)
    ool(k, stub)
def poll_stats(k, tagbits, name, D, va, vb):
    I = k.I
    I(f's_or_b32 s{sN}, s{sTAG}, {tagbits}')
    def chk():
        I(f'v_cmp_ne_u32 vcc, s{sN}, v{D+2}')
        I(f'v_cmp_ne_u32 s[{sT[2]}:{sT[3]}], s{sN}, v{D+6}')
        I(f's_or_b64 vcc, vcc, s[{sT[2]}:{sT[3]}]')
    k.poll3([f'buffer_load_dwordx3 {vr(D,3)}, v{va}, {WS}, 0 offen sc1',
             f'buffer_load_dwordx3 {vr(D+4,3)}, v{vb}, {WS}, 0 offen sc1'], chk, name)

def tr2(k, dst, vb, off, step, tag=None):
    k.I(f'ds_read_b64_tr_b16 {vr(dst,2)}, v{vb} offset:{off}', tag=tag)
    k.I(f'ds_read_b64_tr_b16 {vr(dst+2,2)}, v{vb} offset:{off+step}', tag=tag)

def w3_src(k, V):
    I = k.I
    t0, t1 = sT[0], sT[1]
    I(f's_lshl_b32 s{t0}, s{sJ}, 9'); I(f's_lshr_b32 s{t1}, s{sA}, 1'); I(f's_lshl_b32 s{t1}, s{t1}, 7'); I(f's_add_u32 s{t0}, s{t0}, s{t1}')
    I(f's_and_b32 s{t1}, s{sA}, 1'); I(f's_mul_i32 s{t1}, s{t1}, {8*3584}'); I(f's_add_u32 s{t0}, s{t0}, s{t1}')
    I(f's_cmp_eq_u32 s{sJ}, 7'); I(f's_cselect_b32 s{t0}, {BIG}, s{t0}')
    I(f'v_lshrrev_b32 v15, 3, v1'); I(f'v_mul_u32_u24 v{V}, 3584, v15')
    I('v_bfe_u32 v15, v1, 4, 1'); I('v_lshlrev_b32 v15, 2, v15'); I('v_and_b32 v16, 7, v1'); I('v_xor_b32 v15, v15, v16')
    I(f'v_lshl_add_u32 v{V}, v15, 4, v{V}'); I(f'v_add_u32 v{V}, s{t0}, v{V}')
def w3_rd_base(k, V, base):
    I = k.I
    t0, t1 = sT[0], sT[1]
    I('v_lshrrev_b32 v15, 5, v1'); I('v_lshlrev_b32 v15, 3, v15')
    I('v_bfe_u32 v17, v1, 2, 2'); I('v_add_u32 v15, v15, v17')
    I('v_and_b32 v16, 3, v1')
    I(f'v_and_b32 v{V}, 1, v3'); I(f'v_lshlrev_b32 v{V}, 5, v{V}'); I(f'v_lshl_add_u32 v{V}, v16, 3, v{V}')
    I(f'v_lshl_add_u32 v{V}, v15, 7, v{V}')
    I('v_lshrrev_b32 v17, 1, v17'); I(f'v_lshl_add_u32 v{V}, v17, 6, v{V}')
    I(f's_and_b32 s{t0}, s{sA}, 1'); I(f's_lshl_b32 s{t0}, s{t0}, 6'); I(f'v_xor_b32 v{V}, s{t0}, v{V}')
    I(f's_lshr_b32 s{t0}, s{sA}, 1'); I(f's_lshl_b32 s{t0}, s{t0}, 11'); I(f's_add_u32 s{t0}, s{t0}, {base}')
    I(f'v_add_u32 v{V}, s{t0}, v{V}')
def w3_dma(k, V, sM, m, half, dest, tag):
    I = k.I
    t1 = sT[1]
    I(f's_add_u32 m0, s{sM}, {dest}')
    I(f's_mov_b32 s{t1}, {m*16*3584 + half*256}')
    I(f'buffer_load_dwordx4 v{V}, {srd("w3")}, s{t1} offen lds', tag=tag)
def w4_src(k, V):
    I = k.I
    t0, t1 = sT[0], sT[1]
    I(f's_lshl_b32 s{t0}, s{sJ}, 8'); I(f's_lshl_b32 s{t1}, s{sA}, 3'); I(f's_add_u32 s{t0}, s{t0}, s{t1}')
    I(f'v_lshrrev_b32 v15, 3, v1'); I(f'v_add_u32 v15, s{t0}, v15'); I(f'v_mul_u32_u24 v{V}, 896, v15')
    I('v_lshlrev_b32 v15, 1, v3'); I('v_and_b32 v16, 7, v1'); I('v_xor_b32 v15, v15, v16')
    I(f'v_lshl_add_u32 v{V}, v15, 4, v{V}')
def w4_dma_list(k, V, sM, sS, b):
    I = k.I
    out = []
    for lc in range(7):
        def f(lc=lc):
            if b >= k.o.get('now4', 9): return
            if lc == 0: I(f's_mov_b32 s{sS}, {b*32*896}')
            I(f's_add_u32 m0, s{sM}, {STEP_REG[b] + lc*4096 - lc*128}')
            I(f'buffer_load_dwordx4 v{V}, {srd("w4")}, s{sS} offen offset:{lc*128} lds', tag=f'w4_{b}')
        out.append(f)
    return out
def pat(k, P):
    I = k.I
    I('v_lshrrev_b32 v15, 2, v2'); I('v_and_b32 v16, 1, v3'); I('v_cmp_eq_u32 vcc, v15, v16')
    I(f'v_mov_b32 v15, 0x3f803f80')
    for i in range(4): I(f'v_cndmask_b32 v{P+i}, 0, v15, vcc')
def up_addrs(k, vX, vS, vU, ubase):
    I = k.I
    t0 = sT[0]
    I('v_bfe_u32 v15, v1, 4, 1'); I(f'v_mul_u32_u24 v{vX}, {TILE}, v15')
    I(f'v_lshl_add_u32 v{vX}, v2, 4, v{vX}')
    I('v_lshrrev_b32 v16, 5, v1'); I(f'v_lshl_add_u32 v{vX}, v16, 8, v{vX}')
    I(f'v_and_b32 v{vS}, 31, v1'); I(f'v_lshlrev_b32 v{vS}, 5, v{vS}'); I(f'v_add_u32 v{vS}, {L_STAT}, v{vS}')
    I(f'v_lshlrev_b32 v{vU}, 10, v15'); I(f'v_lshl_add_u32 v{vU}, v2, 4, v{vU}'); I(f'v_lshl_add_u32 v{vU}, v16, 8, v{vU}')
    I(f's_lshl_b32 s{t0}, s{sA}, 12'); I(f's_add_u32 s{t0}, s{t0}, {ubase}')
    I(f'v_add_u32 v{vU}, s{t0}, v{vU}')
def up(k, acc, afn, BB, vX, vS, hooks, pre=True, half=None):
    I = k.I
    def b_rd(m, b):
        d = vr(BB + 8*(m&1) + 4*b, 4)
        if m < 28: I(f'ds_read_b128 {d}, v{vX} offset:{b*2*TILE + m*512}')
        else: I(f'ds_read_b128 {d}, v{vS} offset:{b*1024}')
    if pre: b_rd(0, 0); b_rd(0, 1)
    for m in range(29):
        for b in range(2):
            if m + 1 < 29: b_rd(m + 1, b)
            I(f'{MF32} {vr(acc+16*b,16)}, {vr(afn(m),4)}, {vr(BB+8*(m&1)+4*b,4)}, ' + ('0' if m == 0 else vr(acc+16*b, 16)))
            if b == 0 and half: half(m)
        if m in hooks: hooks[m]()
def gelu_groups(acc, GT, GC, PK, npk):
    out = []
    for b in range(2):
        G = GC + 4*b
        for gp in range(2):
            Lq = []
            x = acc + 16*b + 8*gp; tt = GT + 8*gp
            for i in range(8): Lq.append(f'v_mul_f32 v{tt+i}, v{x+i}, v{x+i}')
            for i in range(8): Lq.append(f'v_fma_f32 v{tt+i}, v{tt+i}, v{G+1}, v{G}')
            for i in range(8): Lq.append(f'v_mul_f32 v{tt+i}, v{tt+i}, v{x+i}')
            for i in range(8): Lq.append(f'v_exp_f32 v{tt+i}, v{tt+i}')
            for i in range(8): Lq.append(f'v_fma_f32 v{tt+i}, v{tt+i}, v{G+2}, v{G+2}')
            for i in range(8): Lq.append(f'v_rcp_f32 v{tt+i}, v{tt+i}')
            for i in range(8): Lq.append(f'v_mul_f32 v{x+i}, v{x+i}, v{tt+i}')
            P = PK + 4*((2*b + gp) % npk)
            for i in range(4): Lq.append(f'v_cvt_pk_bf16_f32 v{P+i}, v{x+2*i}, v{x+2*i+1}')
            out.append((Lq, P, b*2048 + gp*512))
    return out

def publish_stats(k, src, sreg, tagbits, T, mid=None, thru=False, ack=True, after=None, flag=()):
    e, I = k.e, k.I
    P = T
    pack_pairs(k, src, P)
    st = [f'buffer_store_dwordx4 {vr(P,4)}, v{vST}, {WS}, s{sreg} offen',
          f'buffer_store_dwordx4 {vr(P+4,4)}, v{vST}, {WS}, s{sreg} offen offset:1024']
    if thru:
        for t in st: I(t + ' sc1')
    else: k.stores(st + list(flag), tag='ds')
    if after: after()
    S = T + 8
    I(f'v_pk_add_f32 {vr(S,2)}, {vr(src,2)}, {vr(src+2,2)}')
    I(f'v_pk_mul_f32 {vr(S+2,2)}, {vr(src,2)}, {vr(src,2)}')
    I(f'v_pk_fma_f32 {vr(S+2,2)}, {vr(src+2,2)}, {vr(src+2,2)}, {vr(S+2,2)}')
    for i in range(4, 16, 2):
        I(f'v_pk_add_f32 {vr(S,2)}, {vr(S,2)}, {vr(src+i,2)}')
        I(f'v_pk_fma_f32 {vr(S+2,2)}, {vr(src+i,2)}, {vr(src+i,2)}, {vr(S+2,2)}')
    I(f'v_add_f32 v{S+4}, v{S}, v{S+1}')
    I(f'v_add_f32 v{S+5}, v{S+2}, v{S+3}')
    k.allred2(S+4, S+5, S, 'v_add_f32')
    I(f'v_or_b32 v{S+6}, {tagbits}, v{vTAG}')
    if ack: e.wait_vm0()
    k.stores([f'buffer_store_dwordx3 {vr(S+4,3)}, v9, {WS}, 0 offen'])
    if mid: mid()

def x1_dma(k, m0_, vaddr):
    I = k.I
    t0, t1 = sT[0], sT[1]
    I(f's_mul_i32 s{t0}, s{sA}, {TILE}')
    for i in range(7):
        m = m0_ + i
        if i % 4 == 0:
            I(f's_mov_b32 s{t1}, {k.L.X1 + m*1024}')
            I(f's_add_u32 m0, s{t0}, {RA + m*1024}')
        I(f'buffer_load_dwordx4 v{vaddr}, {WS}, s{t1} offen offset:{(i&3)*1024} sc1 lds', tag='x1')

def main_rest(k):
    e, I, L, o = k.e, k.I, k.L, k.o
    t0, t1, t2, t3 = sT[0:4]
    sR = sT[8]
    sn = o.get('sn', '')
    assert 't' in sn and 'x' in sn
    k.NS = o.get('ns', 6); k.NB = 14 if k.NS <= 6 else 10
    il = o.get('il', '62222.62222.60044' if o.get('ho', 1) else '62222').split('.')
    il = il + il[-1:]*2
    sg = [int(c, 36) for c in o.get('sg', 'aa6')]
    k.order = list(range(14))
    assert o.get('tpb', 0) == 0
    for t in range(4): I(f'v_xor_b32 v{SB[t]}, {t*32}, v39')
    b_soff(k, L.O)
    I(f's_mov_b32 s{sR}, {L.H}')
    k.k_landed()
    a_preload(k)
    k.k_landed2()
    def chk(): I(f'v_cmp_ne_u32 vcc, s{sTAG}, v16')
    k.stamp('xpo')
    k.poll3([f'buffer_load_dword v16, v{vOP}, {WS}, 0 offen sc1'], chk, 'o')
    k.stamp('po')
    I(f's_setprio {o.get("gp", 1)}')
    ld = b_list(k)
    gemm(k, HR, ld, il[0], sbar=lambda: g_wr(k, 1), nm='H', sg=sg[0])
    k.stamp('hg')
    if 'o' in sn: nan_redo(k, HR, ld, lambda: hinit(k), 'hr')
    fp2, fp4 = o.get('fp2', 2), o.get('fp4', 2)
    if fp2 == 0: g_wr(k, 2)
    def mid():
        if fp2 == 2: g_wr(k, 2)
        I(g_rd())
        for t in range(4): I(f'v_add_u32 v{SB[t]}, {RB}, v{SB[t]}')
        I('v_lshlrev_b32 v15, 3, v2'); I(f'v_add_u32 v15, {L_CS1}, v15')
        b_soff(k, L.H)
        g_chk(k, 0, 1)
        for t in range(4): I(f'ds_read_b64 {vr(CS1+4*t,2)}, v15 offset:{t*128}')
    hs = 'h' in sn
    hq = o.get('hq', 1)
    assert hs or not hq
    D = 32
    G = D
    sl = [f'buffer_load_dwordx3 {vr(D,3)}, v{vSA}, {WS}, 0 offen sc1', f'buffer_load_dwordx3 {vr(D+4,3)}, v{vSB}, {WS}, 0 offen sc1']
    publish_stats(k, HR, sR, 1, BF, mid, not hs, ack=not hs, after=(lambda: g_wr(k, 2)) if fp2 == 1 else None,
                  flag=[f'buffer_store_dword v{vTAG}, v{vTF}, {WS}, 0 offen offset:128'] if hq else [])
    k.stamp('hp')
    if k.stop == 'h': return
    a_preload(k)
    I(f's_mov_b32 s{sR}, {L.T0}')
    k.stamp('xph')
    if hq:
        I(f's_or_b32 s{sN}, s{sTAG}, 1')
        k.poll3([f'buffer_load_dword v16, v{vHF}, {WS}, 0 offen offset:128 sc1'], chk, 'h')
    else: poll_stats(k, 1, 'h', D, vSA, vSB)
    k.stamp('ph')
    ld = b_list(k, fl='sc1' if hs else '')
    MR = 12
    def tst():
        I = k.I
        row_stats(k, D)
        I('v_cmp_eq_u32 vcc, 0, v3')
        I(f'v_cndmask_b32_e64 v{D+3}, 0, -v{D}, vcc')
        k.split_b(D+3, BXT, D+2)
        I(f'v_add_f32 v{D+2}, 0x3727c5ac, v{D+1}'); I(f'v_rsq_f32 v{D+4}, v{D+2}')
        I(f'v_mul_f32 v{D+2}, v{D+4}, v{D+4}'); I(f'v_mul_f32 v{D+2}, v{D+2}, v{D+1}')
        I(f'v_add_f32 v{D+2}, 0x3727c5ac, v{D+2}'); I(f'v_rsq_f32 v{D+2}, v{D+2}')
        I(f'v_mul_f32_e64 v{MR}, -v{D}, v{D+4}')
        I(f'v_mul_f32 v{D+6}, v{D+4}, v{D+2}')
        gelu_consts(k, D+6, G)
        I(f'v_mov_b32 v{D+6}, v{G+1}')
    def tinit():
        for t in range(4): k.I(f'{MF16} {vr(ACC+4*t,4)}, {vr(CS1+4*t,4)}, {vr(BXT,4)}, 0')
    hooks = {11: lambda: I(g_rd()), 13: lambda: g_chk(k, 0, 3)}
    if hq:
        def schk():
            I(f'v_cmp_ne_u32 vcc, s{sN}, v{D+2}')
            I(f'v_cmp_ne_u32 s[{sT[2]}:{sT[3]}], s{sN}, v{D+6}')
            I(f's_or_b64 vcc, vcc, s[{sT[2]}:{sT[3]}]')
        q0, q1 = o.get('q0s', 1), o.get('q1s', 6)
        hooks[q0] = lambda: [I(t) for t in sl]
        hooks[q1] = lambda: k.poll2(sl, schk, 'hs')
        gemm(k, ACC, ld, il[1], k.capture(tst), 0, lambda: g_wr(k, 3), zero=True, nm='U', sg=sg[1], hooks=hooks, v0=q1 + 1)
    else: gemm(k, ACC, ld, il[1], k.capture(tst), o.get('tpre', 8), lambda: g_wr(k, 3), zero=True, nm='U', sg=sg[1], hooks=hooks)
    for t in range(4): I(f'{MF16} {vr(ACC+4*t,4)}, {vr(CS1+4*t,4)}, {vr(BXT,4)}, {vr(ACC+4*t,4)}')
    k.stamp('tg')
    if hs: nan_redo(k, ACC, ld, tinit, 'tr')
    if fp4 == 0: g_wr(k, 4)
    T = BF
    P = T + 16
    gl = []
    for h in range(2):
        x = ACC + 8*h; tt = T + 8*h
        for i in range(0, 8, 2): gl.append(f'v_pk_mul_f32 {vr(tt+i,2)}, {vr(x+i,2)}, {vr(x+i,2)}')
        for i in range(0, 8, 2): gl.append(f'v_pk_fma_f32 {vr(tt+i,2)}, {vr(tt+i,2)}, {vr(D+6,2)}, {vr(G,2)} op_sel_hi:[1,0,0]')
        for i in range(0, 8, 2): gl.append(f'v_pk_mul_f32 {vr(tt+i,2)}, {vr(tt+i,2)}, {vr(x+i,2)}')
        for i in range(8): gl.append(f'v_exp_f32 v{tt+i}, v{tt+i}')
        for i in range(0, 8, 2): gl.append(f'v_pk_fma_f32 {vr(tt+i,2)}, {vr(tt+i,2)}, {vr(G+2,2)}, {vr(G+2,2)} op_sel_hi:[1,0,0]')
        for i in range(8): gl.append(f'v_rcp_f32 v{tt+i}, v{tt+i}')
        for i in range(0, 8, 2): gl.append(f'v_pk_mul_f32 {vr(x+i,2)}, {vr(x+i,2)}, {vr(tt+i,2)}')
        gl += k.capture(lambda: k.cvt(P+4*h, x, 8))
        gl.append(f'v_permlane16_swap_b32 v{P+4*h}, v{P+4*h+2}')
        gl.append(f'v_permlane16_swap_b32 v{P+4*h+1}, v{P+4*h+3}')
        if h == 1: gl.insert(len(gl) - 12, g_rd())
        gl.append(f'buffer_store_dwordx4 {vr(P+4*h,4)}, v{vHS}, {WS}, 0 offen offset:{h*1024} sc1')
        gl.append(lambda h=h: k.stores([f'buffer_store_dwordx4 {vr(P+4*h,4)}, v{vST}, {WS}, s{sR} offen offset:{h*1024}'] + [f'buffer_store_dword v{vTAG}, v{vTF}, {WS}, 0 offen']*h, tag='tl'))
        if h + 1 == fp4: gl.append(lambda: g_wr(k, 4))
    for n, t in enumerate(gl):
        t() if callable(t) else I(t)
    k.stamp('tp')
    def hn():
        for i in range(0, 16, 2):
            I(f'v_pk_fma_f32 {vr(ACC+i,2)}, {vr(HR+i,2)}, {vr(D+4,2)}, {vr(MR,2)} op_sel_hi:[1,0,0]')
    if k.stop == 't': return
    ho = o.get('ho', 1)
    sO = sT[11]
    def sb(q):
        def f():
            if q < 2: I(f's_cmp_lt_u32 s{sW}, 2'); I(f's_cselect_b32 s{sO}, {16384*(1-q)}, {16384*q}')
            else: I(f's_mov_b32 s{sO}, 0')
            I(f'v_add_u32 v{SB[0]}, s{sO}, v39')
            for t in range(1, 4): I(f'v_xor_b32 v{SB[t]}, {t*32}, v{SB[0]}')
        return f
    if ho:
        assert k.NS == 6
        k.order = [0, 1, 2, 7, 8, 9]*2 + [3, 10]
    sb(0 if ho else 2)()
    g_chk(k, 0, 4, name='et')
    a_preload(k)
    if ho: sb(1)()
    hn()
    b_soff(k, L.T0 - TILE)
    I(f's_mov_b32 s{sR}, {L.X1}')
    sM, sS = sT[9], sT[10]
    I(f's_lshl_b32 s{sM}, s{sA}, 10')
    w4_src(k, 0)
    w3_rd_base(k, 14, RC)
    pl = f'buffer_load_dword v16, v{vTP}, {WS}, 0 offen sc1'
    ph = f'buffer_load_dword v17, v{vHP}, {WS}, 0 offen sc1'
    k.stamp('xpt')
    if ho:
        addr = [XA]*3 + [XA+2]*3 + [XA+1]*3 + [XA+3]*3 + [XA+4, XA+5]
        k.poll3([pl], chk, 't')
        hx = len(il[2]) - len(il[2][1:].lstrip('0')) - 2
        assert il[2][0] == '6'
        hooks = {o.get('hy', -1): lambda: I(ph), hx: lambda: (k.stamp('xhl'), k.poll2([ph], lambda: I('v_cmp_eq_u32 vcc, -1, v17'), 'hl'), k.stamp('hl')), 5: sb(2)}
        assert len(hooks) == 3
        rh = dict(pre=sb(0), hooks={-1: sb(1), 5: sb(2)})
    else:
        addr = [XA]*3 + [XA+4] + [XA+1]*3 + [XA+2]*3 + [XA+5] + [XA+3]*3
        def chk2():
            I(f'v_cmp_ne_u32 vcc, s{sTAG}, v16')
            I(f'v_cmp_eq_u32 s[{t2}:{t3}], -1, v17')
            I(f's_or_b64 vcc, vcc, s[{t2}:{t3}]')
        k.poll3([pl, ph], chk2, 't')
        hooks = {}; rh = {}
    k.stamp('pt')
    ld = b_list(k, addr)
    gemm(k, ACC, ld, il[2], sbar=lambda: g_wr(k, 6), nm='X', sg=sg[2], hooks=hooks)
    k.stamp('xg')
    nan_redo(k, ACC, ld, hn, 'gr', **rh)
    def mid():
        for i in range(0, 16, 2):
            I(f'v_pk_add_f32 {vr(RES+i,2)}, {vr(HR+i,2)}, {vr(ACC+i,2)}')
    publish_stats(k, ACC, sR, 2, BF, mid, ack=False)
    I('s_setprio 0')
    k.stamp('xp')
    k.bar('ex')
    if k.stop == 'x1': return
    def F(m): return W3P + 4*m if m < 3 else 128 + 4*(m - 3)
    AC, BB, GT, GC, PK, PAT, C, AXT = 44, 76, 92, 108, 116, 124, 32, 36
    vX, vS, vU = 5, 6, 7
    I(f'v_subrev_u32 v8, {RC - RB}, v14')
    def frd(m): tr2(k, F(m), 8 if 3 <= m < 17 else 14, (m if m < 3 else m - 3 if m < 17 else m - 17)*4096, 512, tag='w3p' if m < 3 else None)
    SR = 40
    def xstats(D):
        I = k.I
        row_stats(k, D)
        I(f'v_mul_f32 v{D+3}, -1.0, v{D}')
        k.split_b(D+3, SR, D+2)
        I(f'v_add_f32 v{D+2}, 0x3727c5ac, v{D+1}'); I(f'v_rsq_f32 v{D+4}, v{D+2}')
        gelu_consts(k, D+4, SR+4)
        I(f's_lshl_b32 s{t0}, s{sW}, 9'); I(f's_add_u32 s{t0}, s{t0}, {L_STAT}')
        I('v_lshlrev_b32 v15, 5, v2'); I(f'v_add_u32 v15, s{t0}, v15')
        I(f'ds_write_b128 v15, {vr(SR,4)}'); I(f'ds_write_b128 v15, {vr(SR+4,4)} offset:16')
    def cs(m): I(f'{MF16} {vr(C,4)}, {vr(PAT,4)}, {vr(F(m),4)}, ' + ('0' if m == 0 else vr(C, 4)))
    dm = []
    for b in range(3): dm += w4_dma_list(k, 0, sM, sS, b)
    lf = o.get('lf', 11); f0 = o.get('f0', 10); f1 = o.get('f1', 17)
    assert f1 >= 17 and f1 <= 28 - lf
    D2 = 60
    sl = [f'buffer_load_dwordx3 {vr(D2,3)}, v{vSA}, {WS}, 0 offen sc1', f'buffer_load_dwordx3 {vr(D2+4,3)}, v{vSB}, {WS}, 0 offen sc1']
    for m in range(f0): frd(m)
    pat(k, PAT)
    if o.get('xw', 1): e.wait_tag('ds')
    k.stamp('xi')
    x1_dma(k, 0, vB); x1_dma(k, 7, vB)
    for t in sl: I(t)
    assert lf == 11 and f0 >= 3
    e.wait_tag('w3p'); k.bar('xj')
    for m in range(f0, f1): frd(m)
    up_addrs(k, vX, vS, vU, U1)
    I(f's_mul_i32 s{t0}, s{sA}, {TILE}')
    I('v_and_b32 v15, 60, v1'); I('v_lshl_add_u32 v15, v1, 6, v15'); I(f'v_add_u32 v15, s{t0}, v15')
    for m in range(f1): cs(m)
    e.wait_tag('x1')
    k.stamp('xl')
    rds = [f'ds_read_b32 v{16+i}, v15 offset:{RA + min(i*4096, TILE - 4096)}' for i in range(4)]
    def xchk():
        for t in rds: I(t)
        I('v_max3_u32 v16, v16, v17, v18'); I('v_max_u32 v16, v16, v19')
        I('v_cmp_eq_u32 vcc, -1, v16')
    done, retry = e.newlabel('Lxd'), e.newlabel('Lxr')
    xchk()
    I(f's_cbranch_vccnz {retry}')
    e.label(done)
    def stub():
        e.label(retry)
        k.stamp('xr')
        x1_dma(k, 0, vB); x1_dma(k, 7, vB)
        e.wait_vm0()
        xchk()
        spin_tail(k, retry, done)
    ool(k, stub)
    k.bar('b8')
    I(f's_setprio {o.get("pb", 0)}')
    for _ in range(o.get('nd', 7)): dm.pop(0)()
    I(f's_or_b32 s{sN}, s{sTAG}, 2')
    def schk():
        I(f'v_cmp_ne_u32 vcc, s{sN}, v{D2+2}')
        I(f'v_cmp_ne_u32 s[{sT[2]}:{sT[3]}], s{sN}, v{D2+6}')
        I(f's_or_b64 vcc, vcc, s[{sT[2]}:{sT[3]}]')
    k.poll2(sl, schk, 'xs')
    k.stamp('px')
    xs = k.capture(lambda: xstats(D2))
    nx = o.get('nx', 20)
    for t in xs[:nx]: I(t)
    k.bar('f3')
    for m in range(f1, 28): frd(m)
    for t in xs[nx:]: I(t)
    for _ in range(o.get('ne', 7)):
        if len(dm) > 7: dm.pop(0)()
    cl = [(lambda m=m: cs(m)) for m in range(f1, 28)]
    e.wait_lg0(); e.wait_tag('w4_0'); k.bar('rc')
    cu = o.get('cu', 1)
    while dm or (cl and not cu):
        if dm: dm.pop(0)()
        if cl and cu < 2: cl.pop(0)()
    I(f'ds_read_b128 {vr(BB,4)}, v{vX}'); I(f'ds_read_b128 {vr(BB+4,4)}, v{vX} offset:{2*TILE}')
    I(f'ds_read_b128 {vr(GC,4)}, v{vS} offset:16'); I(f'ds_read_b128 {vr(GC+4,4)}, v{vS} offset:1040')
    I(f'v_mov_b32 v{AXT+2}, 0'); I(f'v_mov_b32 v{AXT+3}, 0')
    I(f's_setprio {o.get("pu", 1)}')
    mb = o.get('mb', 5)
    e.wait_tag('w4_1'); k.bar('m2')
    hooks = {}
    m3 = o.get('m3', 15)
    for b in (3, 4, 5): dm += w4_dma_list(k, 0, sM, sS, b)
    def one(i):
        k.stamp(f'h{i}')
        if i == mb: e.wait_tag('w4_2'); k.bar('mb')
        if i == m3: k.bar('m3')
        if len(dm) > (14 if i < mb else 7 if i < m3 else 0): dm.pop(0)()
        if cl: cl.pop(0)()
        if i == 22: k.split_a(C, AXT, C+1)
    for i in range(29): hooks[i] = lambda i=i: one(i)
    up(k, AC, lambda m: F(m) if m < 28 else AXT, BB, vX, vS, hooks, pre=False)
    I(f's_setprio {o.get("pgb", 0)}')
    assert not dm
    e.wait_tag('w4_4'); k.bar('m6')
    for b in (6, 7): dm += w4_dma_list(k, 0, sM, sS, b)
    for _ in range(4): dm.pop(0)()
    cnt = 0
    m7 = o.get('m7', 30)
    for gi, (Lq, Pk, off) in enumerate(gelu_groups(AC, GT, GC, PK, 2)):
        for t in Lq:
            I(t); cnt += 1
            if cnt == m7: e.wait_tag('w4_5'); k.bar('m7')
            if cnt == o.get('m9', 165):
                assert not dm and gi >= 2
                e.wait_vm0(); e.wait_lg0(); k.bar('m9')
            if cnt % o.get('dper', 4) == 0 and len(dm) > (7 if cnt < m7 else 0): dm.pop(0)()
        I(f'ds_write_b128 v{vU}, {vr(Pk,4)} offset:{off}')
    I('s_setprio 0')
    e.wait_lg0(); k.bar('m10')
    SEL, LD = 32, 76
    k.sel_mat(SEL, 16)
    I(f's_mul_i32 s{t0}, s{sA}, {7*TILE}'); I(f's_sub_u32 s{t0}, {PB[0]}, s{t0}')
    I(f's_lshl_b32 s{t1}, s{sJ}, 11'); I(f's_add_u32 s{t0}, s{t0}, s{t1}')
    I(f's_add_u32 s{t0}, s{t0}, s{sGB}')
    I('v_and_b32 v5, 31, v1'); I('v_lshlrev_b32 v5, 4, v5'); I(f'v_add_u32 v5, s{t0}, v5')
    I('v_lshrrev_b32 v16, 5, v1'); I(f'v_mul_u32_u24 v17, {TILE}, v16'); I('v_add_u32 v6, v5, v17')
    I('v_cmp_eq_u32 vcc, 0, v16'); I(f'v_cndmask_b32 v5, v{vBIG}, v5, vcc')
    for i in range(4): I(f's_mov_b32 s{sT[4+i]}, {2*i*TILE}')
    I(f's_lshl_b32 s{t0}, s{sG}, 6'); I(f's_lshl_b32 s{t1}, s{sA}, 4'); I(f's_add_u32 s{t0}, s{t0}, s{t1}')
    I(f'v_add_u32 v7, s{t0}, v2'); I('v_mul_u32_u24 v7, 896, v7')
    I(f'v_lshl_add_u32 v7, v{vSIG}, 4, v7')
    I(f's_lshl_b32 s{sT[8]}, s{sJ}, 7')
    I(f's_lshl_b32 s{t0}, s{sA}, 7'); I(f's_add_u32 s{t0}, s{t0}, {L.F_P}')
    I('v_min_u32 v15, 27, v1'); I('v_lshlrev_b32 v15, 2, v15'); I(f'v_add_u32 v15, s{t0}, v15')
    if o.get('m11', 0): k.bar()
    lds = [f'buffer_load_dwordx4 {vr(LD+16*i+4*t,4)}, v{6 if i < 3 else 5}, {WS}, s{sT[4+i]} offen offset:{t*512} sc1' for i in range(4) for t in range(4)]
    if 'f' in sn:
        R2 = 60
        top, dn = e.newlabel('Lfw'), e.newlabel('Lfd')
        I(f'v_mov_b32 v15, {L_F2}')
        I(f's_add_u32 s{t0}, s{sA}, {o.get("fs", 1)}')
        e.label(top)
        I('ds_read_b32 v16, v15')
        I(f'v_cmp_gt_u32 vcc, s{t0}, v16')
        I(f's_cbranch_vccz {dn}')
        I(f's_sub_u32 s{sSPIN}, s{sSPIN}, 1')
        I(f's_cbranch_scc0 {top}')
        I(f's_mov_b32 s{sSPIN}, 0')
        e.label(dn)
        k.stamp('pf')
        top, dn = e.newlabel('Lfw'), e.newlabel('Lfd')
        e.label(top)
        for t in lds: I(t)
        for i in range(4):
            for t in range(4):
                I(f'{MF16} {vr(R2+4*t,4)}, {vr(SEL,4)}, {vr(LD+16*i+4*t,4)}, {vr((R2 if i else RES)+4*t,4)}')
        I(f'v_cmp_u_f32 vcc, v{R2}, v{R2+4}'); I(f'v_cmp_u_f32 s[{t2}:{t3}], v{R2+8}, v{R2+12}')
        I(f's_or_b64 vcc, vcc, s[{t2}:{t3}]')
        I(f's_cbranch_vccz {dn}')
        I(f's_sub_u32 s{sSPIN}, s{sSPIN}, 1')
        I(f's_cbranch_scc0 {top}')
        I(f's_mov_b32 s{sSPIN}, 0')
        e.label(dn)
    else:
        R2 = RES
        def chk(): I(f'v_cmp_ne_u32 vcc, s{sTAG}, v16')
        k.poll3([f'buffer_load_dword v16, v15, {WS}, s{sGB} offen sc1'], chk, 'p')
        k.stamp('pf')
        for t in lds: I(t)
        for i in range(4):
            for t in range(4):
                I(f'{MF16} {vr(RES+4*t,4)}, {vr(SEL,4)}, {vr(LD+16*i+4*t,4)}, {vr(RES+4*t,4)}')
    pack_pairs(k, R2, 52)
    of = o.get('outf', '')
    I(f'buffer_store_dwordx4 v[52:55], v7, {srd("out")}, s{sT[8]} offen {of}')
    I(f'buffer_store_dwordx4 v[56:59], v7, {srd("out")}, s{sT[8]} offen offset:64 {of}')
    k.stamp('end')

vT3, vT2, vT4, vTQ, vTD = 202, 203, 204, 205, 206
def touch_addrs(k):
    I, L = k.I, k.L
    t0, t1, t2 = sT[0:3]
    I(f's_and_b32 s{t0}, s{sG}, 3'); I(f's_lshl_b32 s{t0}, s{t0}, 2'); I(f's_add_u32 s{t0}, s{t0}, s{sA}')
    I(f's_mul_i32 s{t1}, s{t0}, 3584'); I(f's_lshl_b32 s{t2}, s{sJ}, 9'); I(f's_add_u32 s{t1}, s{t1}, s{t2}')
    I(f's_cmp_eq_u32 s{sJ}, 7'); I(f's_cselect_b32 s{t1}, {BIG}, s{t1}')
    I('v_lshrrev_b32 v15, 1, v1'); I(f'v_mul_u32_u24 v{vT3}, {16*3584}, v15'); I('v_and_b32 v15, 1, v1')
    I(f'v_lshl_add_u32 v{vT3}, v15, 7, v{vT3}'); I(f'v_add_u32 v{vT3}, s{t1}, v{vT3}')
    I(f's_mul_i32 s{t0}, s{t0}, 896'); I(f's_lshl_b32 s{t2}, s{sJ}, 7'); I(f's_add_u32 s{t1}, s{t0}, s{t2}')
    I(f'v_mul_u32_u24 v{vT2}, {16*896}, v1'); I(f'v_add_u32 v{vT2}, s{t1}, v{vT2}')
    I(f's_mul_i32 s{t2}, s{sJ}, {256*896}'); I(f's_add_u32 s{t1}, s{t0}, s{t2}')
    I('v_lshrrev_b32 v15, 3, v1'); I(f'v_mul_u32_u24 v{vT4}, {16*896}, v15'); I('v_and_b32 v15, 7, v1'); I('v_min_u32 v15, 6, v15')
    I(f'v_lshl_add_u32 v{vT4}, v15, 7, v{vT4}'); I(f'v_add_u32 v{vT4}, s{t1}, v{vT4}')
    I(f's_mul_i32 s{t1}, s{sJ}, {AS}'); I(f's_mul_i32 s{t2}, s{sA}, {TILE}'); I(f's_add_u32 s{t1}, s{t1}, s{t2}'); I(f's_add_u32 s{t1}, s{t1}, {L.P0}')
    I('v_min_u32 v15, 55, v1'); I(f'v_lshlrev_b32 v{vTQ}, 7, v15'); I(f'v_add_u32 v{vTQ}, s{t1}, v{vTQ}')
def touch(k, key, dflt='-'):
    I = k.I
    t1 = sT[1]
    for ch in k.o.get(key, dflt):
        if ch in 'ab': I(f'buffer_load_dword v{vTD}, v{vT3}, {srd("w3")}, 0 offen offset:{256 if ch == "b" else 0}')
        elif ch in 'o12': I(f'buffer_load_dword v{vTD}, v{vT2}, {srd("wo" if ch == "o" else "w" + ch)}, 0 offen')
        elif ch in '45':
            I(f's_mov_b32 s{t1}, {128*896 if ch == "5" else 0}')
            I(f'buffer_load_dword v{vTD}, v{vT4}, {srd("w4")}, s{t1} offen')
        elif ch in 'pq':
            I(f's_add_u32 s{t1}, s{sGB}, {7168 if ch == "q" else 0}')
            I(f'buffer_load_dword v{vTD}, v{vTQ}, {WS}, s{t1} offen sc1')
        else: continue
        k.e.vm[-1]['dst'] = set()

def aux_burst2(k):
    I, o = k.I, k.o
    touch_addrs(k)
    touch(k, 'tO')
    w3_src(k, 12)
    for m in range(o['w2a']): w3_dma(k, 12, k.sMW, m, 0, RC + m*4096, 'w3')

def aux_pre(k): pass

def aux_rest(k):
    e, I, L, o = k.e, k.I, k.L, k.o
    t0, t1, t2, t3 = sT[0:4]
    sM = k.sMW; sS = sT[5]
    A0, AC, BB, GT, GC, PK, PAT, C, AXT, ONE = 32, 144, 176, 192, 208, 216, 232, 236, 240, 244
    n0 = o['w2a']; nH = o.get('nH', 11); nT = 28 - n0 - nH
    assert nT <= 8 and n0 <= 10
    def rd(m0, n, s0=0):
        for i in range(n): tr2(k, A0 + 4*(m0+i), 8, (s0+i)*4096, 512)
    def cs(m0, n):
        for m in range(m0, m0 + n):
            I(f'{MF16} {vr(C,4)}, {vr(PAT,4)}, {vr(A0+4*m,4)}, ' + ('0' if m == 0 else vr(C, 4)))
    def dma(m0, n, s0=0):
        for i in range(n): w3_dma(k, 12, sM, m0 + i, 0, RC + (s0+i)*4096, 'w3')
    w3_rd_base(k, 8, RC)
    if not k.v4:
        k.o_flag()
        k.bar('eo')
        rd(0, n0)
    I('v_bfe_u32 v15, v1, 2, 2')
    I('v_lshl_add_u32 v16, v3, 3, v15'); I('v_lshlrev_b32 v16, 7, v16')
    I('v_and_b32 v17, 3, v1'); I('v_lshl_add_u32 v16, v17, 3, v16')
    I('v_lshrrev_b32 v15, 1, v15'); I('v_and_b32 v17, 1, v3'); I('v_lshl_add_u32 v15, v17, 1, v15')
    I(f'v_xor_b32 v15, s{sA}, v15')
    I('v_lshl_add_u32 v6, v15, 5, v16'); I(f'v_add_u32 v6, {RB}, v6')
    CB = 144
    if k.v4:
        for i in range(4): I(f'v_mov_b32 v{ONE+i}, 0x3f803f80')
        pat(k, PAT)
        k.o_flag('os')
        g_addr(k, aFW, aFR, aFV, True)
        k.v_landed()
        rd(0, n0)
    for m in range(14): tr2(k, CB + 4*m, 6, m*4096, 512)
    if not k.v4:
        for i in range(4): I(f'v_mov_b32 v{ONE+i}, 0x3f803f80')
        pat(k, PAT)
    for m in range(14):
        I(f'{MF16} v[248:251], {vr(ONE,4)}, {vr(CB+4*m,4)}, ' + ('0' if m == 0 else 'v[248:251]'))
    cs(0, n0)
    k.split_a(248, 252, 254)
    I(f's_lshl_b32 s{t0}, s{sA}, 7'); I(f's_add_u32 s{t0}, s{t0}, {L_CS1}')
    I('v_lshlrev_b32 v15, 3, v2'); I(f'v_add_u32 v15, s{t0}, v15')
    I('ds_write_b64 v15, v[252:253]')
    g_wr(k, 1, True)
    sD = sT[4]
    I(f'v_mov_b32 v{aPA}, v12')
    def stream(nm, m0, n, dest, tag, half=0, hk={}):
        mul, V = (14, aPA) if nm == 'w3' else (7, k.vSQ)
        rot = o.get('rot', 0) and n >= 4
        if rot:
            I(f's_and_b32 s{sD}, s{sG}, 3'); I(f's_mul_i32 s{sD}, s{sD}, {n}'); I(f's_lshr_b32 s{sD}, s{sD}, 2'); I(f's_lshl_b32 s{sD}, s{sD}, 12')
            I(f's_add_u32 s{t2}, s{sM}, {dest}')
        for i in range(n):
            if rot:
                I(f's_add_u32 m0, s{t2}, s{sD}'); I(f's_mul_i32 s{t1}, s{sD}, {mul}'); I(f's_add_u32 s{t1}, s{t1}, {m0*mul*4096 + half*256}')
            else:
                I(f's_add_u32 m0, s{sM}, {dest + i*4096}'); I(f's_mov_b32 s{t1}, {(m0+i)*mul*4096 + half*256}')
            if o.get('nost') == 2:
                I(f's_mov_b32 s{t1}, {(i % 14)*7*4096}')
                I(f'buffer_load_dwordx4 v{k.vSQ}, {srd("wo" if half else "w1")}, s{t1} offen lds', tag=tag)
            elif o.get('nost') != 1: I(f'buffer_load_dwordx4 v{V}, {srd(nm)}, s{t1} offen lds', tag=tag)
            if rot and i < n - 1:
                I(f's_add_u32 s{sD}, s{sD}, 4096'); I(f's_cmp_eq_u32 s{sD}, {n*4096}'); I(f's_cselect_b32 s{sD}, 0, s{sD}')
            if i in hk: hk[i]()
    te, xe, n2 = o.get('te', 4), o.get('xe', 6), o.get('n2', 6)
    xpa = o.get('xpa', 3)
    I(f's_mul_i32 s{t0}, s{sA}, {TILE}'); I(f's_add_u32 s{t0}, s{t0}, s{sGB}')
    I(f's_lshl_b32 s{t1}, s{sJ}, 11'); I(f's_add_u32 s{t0}, s{t0}, s{t1}')
    I(f'v_add_u32 v230, s{t0}, v4')
    for i in range(4): I(f'v_mov_b32 v{aPD+i}, -1')
    I(f's_mov_b32 s{sT[8]}, {L.T0}'); I(f's_mov_b32 s{sT[9]}, {L.X1}')
    xpf = lambda: k.stores([f'buffer_store_dwordx4 {vr(aPD,4)}, v230, {WS}, s{sT[8 + (c == "x")]} offen offset:{h*1024}' for c in 'tx' if c not in o.get('kpf', 'h') for h in range(2)], tag='pre')
    g_wait(k, 1, 1, 'sh')
    if xpa == 1: xpf()
    stream('w3', n0, nH, RC, 'w3')
    if xpa == 2: xpf()
    e.wait_tag('w3'); k.stamp('a6'); g_wr(k, 2, True)
    g_wait(k, 2, 2, 'b2')
    if xpa == 3: xpf()
    stream('w2', 0, te, RA, 'w2')
    if k.stop == 'h': return
    rd(n0, nH)
    cs(n0, nH)
    e.wait_tag('pre'); g_wr(k, 3, True)
    g_wait(k, 3, 3, 'st')
    stream('w2', te, 14 - te, RA + te*4096, 'w2')
    f2 = [(n0 + nH + i, 0, 3 + i) for i in range(nT)] + [(i, 1, i) for i in range(3)]
    for m, hf, sl in f2[:n2]: stream('w3', m, 1, RC + sl*4096, 'w3', hf)
    e.wait_tag('w2'); k.stamp('a7'); g_wr(k, 4, True)
    g_wait(k, 4, 0, 'rb')
    stream('w3', 3, xe, RB, 'w3', 1)
    if k.stop == 't': return
    pend = [lambda: g_wait(k, 6, 0, 'sx')] + [(lambda x=x: stream('w3', x[0], 1, RC + x[2]*4096, 'w3', x[1])) for x in f2[n2:]]
    pend += [lambda: stream('w3', 3 + xe, 14 - xe, RB + xe*4096, 'w3', 1)]
    vX, vS, vU = 24, 25, 12
    I(f'v_mov_b32 v{AXT+2}, 0'); I(f'v_mov_b32 v{AXT+3}, 0')
    I(f'v_mov_b32 v{aPD}, v8')
    VB, VB2 = 5, 28
    I('v_bfe_u32 v15, v1, 2, 2'); I('v_and_b32 v16, 1, v3')
    I('v_lshl_add_u32 v17, v16, 2, v15'); I('v_lshlrev_b32 v18, 7, v17')
    I('v_lshrrev_b32 v17, 1, v17'); I('v_lshl_add_u32 v18, v17, 5, v18')
    I('v_and_b32 v17, 3, v1'); I('v_lshl_add_u32 v18, v17, 3, v18')
    I('v_lshrrev_b32 v17, 1, v3'); I('v_lshl_add_u32 v18, v17, 11, v18')
    I(f's_mul_i32 s{t0}, s{sA}, 7')
    for i in range(4):
        I(f's_add_u32 s{t1}, s{t0}, {i}'); I(f's_and_b32 s{t2}, s{t1}, 3'); I(f's_lshl_b32 s{t2}, s{t2}, 5')
        I(f's_lshr_b32 s{t1}, s{t1}, 2'); I(f's_lshl_b32 s{t1}, s{t1}, 12')
        I(f'v_xor_b32 v{VB+i}, s{t2}, v18'); I(f'v_add_u32 v{VB+i}, s{t1}, v{VB+i}')
        I(f'v_add_u32 v{VB2+i}, {RB}, v{VB+i}')
    I(f's_mul_i32 s{t0}, s{sJ}, {TILE}'); I(f's_add_u32 s{t0}, s{t0}, s{sGB}')
    I(f's_mul_i32 s{t2}, s{sA}, {14*256}'); I(f's_add_u32 s{t0}, s{t0}, s{t2}')
    I(f'v_lshlrev_b32 v9, 8, v{vSIG}'); I('v_lshl_add_u32 v9, v2, 4, v9'); I(f'v_add_u32 v9, s{t0}, v9')
    I(f's_add_u32 s{t0}, s{t0}, {12*256}')
    I('v_lshrrev_b32 v15, 1, v3'); I('v_lshlrev_b32 v15, 8, v15'); I('v_lshl_add_u32 v15, v2, 4, v15')
    I('v_and_b32 v16, 1, v3'); I('v_lshl_add_u32 v15, v16, 3, v15')
    I(f'v_add_u32 v10, s{t0}, v15')
    I(f's_lshl_b32 s{t0}, s{sJ}, 4'); I(f's_lshl_b32 s{t1}, s{sA}, 2'); I(f's_add_u32 s{t0}, s{t0}, s{t1}')
    I(f's_add_u32 s{t0}, s{t0}, s{sGB}'); I(f's_add_u32 s{t0}, s{t0}, {L.F_P}')
    I(f'v_add_u32 v11, s{t0}, v{vL0}')
    I(f'v_mov_b32 v13, s{sTAG}')
    I(f'v_add_u32 v14, {U0}, v4')
    for n in range(4): I(f's_mov_b32 s{sT[8+n]}, {PB[n]}')
    up_addrs(k, vX, vS, vU, U0)
    for f in pend: f()
    e.wait_vm0(); k.stamp('a8'); k.bar('ex')
    for i in range(nT): tr2(k, A0 + 4*(n0+nH+i), aPD, (3+i)*4096, 512)
    if k.stop == 'x1': return
    sf = 'f' in o.get('sn', '')
    if sf:
        I(f'v_mov_b32 v11, {L_F2}'); I('v_mov_b32 v13, 0'); I('ds_write_b32 v11, v13')
        I(f'v_mov_b32 v15, {L.F_P}')
        def chk(): I(f'v_cmp_ne_u32 vcc, s{sTAG}, v16')
        k.poll3([f'buffer_load_dword v16, v15, {WS}, s{sGB} offen sc1'], chk, 'pf')
        k.stamp('a9')
    lf = o.get('lf', 11)
    e.wait_lg0(); k.bar('xj')
    for m in range(28 - lf, 28): w3_dma(k, aPA, sM, m, 1, RC + (m-17)*4096, 'f3')
    cs(n0 + nH, nT)
    k.split_a(C, AXT, C+1)
    I('s_setprio 2')
    k.bar('b8')
    def A4(b): return 32 + 28*(b & 3)
    def take_list(b):
        out = []
        for lam in range(7):
            reg = STEP_REG[b]
            vb = (VB2 if reg >= RB else VB) + (lam & 3)
            off = (reg - RB if reg >= RB else reg) + (lam >> 2)*4096
            for h in range(2):
                out.append(lambda d=A4(b)+4*lam+2*h, vb=vb, off=off+1024*h: I(f'ds_read_b64_tr_b16 {vr(d,2)}, v{vb} offset:{off}', tag=f'r4_{b}'))
        return out
    m2 = o.get('m2', 27); rc = o.get('rc', 19)
    tk = take_list(0)
    def hk(m):
        if m == o.get('sf', 6): e.wait_vm0(); k.bar('f3')
        if m == rc: k.bar('rc')
        if m == 26: I(f'ds_read_b128 {vr(GC,4)}, v{vS} offset:16'); I(f'ds_read_b128 {vr(GC+4,4)}, v{vS} offset:1040')
        if m == m2:
            assert not tk
            e.wait_tag('r4_0'); k.bar('m2')
            tk.extend(take_list(1))
        if m >= rc:
            for _ in range(o.get('tkn', 2)):
                if tk: tk.pop(0)()
    up(k, AC, lambda m: A0 + 4*m if m < 28 else AXT, BB, vX, vS, {m: (lambda m=m: hk(m)) for m in range(29)})
    I(f's_setprio {o.get("pga", 0)}')
    k.stamp('u0')
    gl = []
    for Lq, Pk, off in gelu_groups(AC, GT, GC, PK, 2): gl += Lq + [f'ds_write_b128 v{vU}, {vr(Pk,4)} offset:{off}']
    a2 = o.get('a2', 35); a3 = o.get('a3', 110)
    for n, t in enumerate(gl):
        if n == a2:
            assert not tk
            e.wait_tag('r4_1'); k.bar('mb')
            tk = take_list(2)
        if n == a3:
            assert not tk
            e.wait_tag('r4_2'); k.stamp('g3'); k.bar('m3')
        if n % 20 == 0: k.stamp(f'g{n}')
        I(t)
        if tk and n % o.get('tkd', 2) == 0: tk.pop(0)()
    I(f's_setprio {o.get("pd", 1)}')
    e.wait_lg0(); k.bar('m6')
    DA = 144
    UBR = [16, 20, 24]
    nk = 4
    seq = [(b, n) for b in range(nk) for n in range(4)] + [(b, n) for n in range(4) for b in range(nk, 8)]
    def u_rd(i):
        b, n = seq[i]
        I(f'ds_read_b128 {vr(UBR[i%3],4)}, v{14 if b < 4 else 4} offset:{(b&3)*4096 + n*1024}')
    def pack_list(n):
        Lq = []
        for pp in range(3):
            a = DA + 28*n + 8*pp
            for i in range(4): Lq.append(f'v_cvt_pk_bf16_f32 v{a+i}, v{a+2*i}, v{a+2*i+1}')
            Lq.append(f'v_permlane16_swap_b32 v{a}, v{a+2}'); Lq.append(f'v_permlane16_swap_b32 v{a+1}, v{a+3}')
            Lq.append(('st', f'buffer_store_dwordx4 {vr(a,4)}, v9, {WS}, s{sT[8+n]} offen offset:{pp*1024}', n))
        a = DA + 28*n + 24
        for i in range(2): Lq.append(f'v_cvt_pk_bf16_f32 v{a+i}, v{a+2*i}, v{a+2*i+1}')
        Lq.append(('st', f'buffer_store_dwordx2 {vr(a,2)}, v10, {WS}, s{sT[8+n]} offen', n))
        if sf: Lq += [f'v_mov_b32 v13, {n+1}', 'ds_write_b32 v11, v13']
        return Lq
    def run_fill(x):
        if callable(x): x()
        elif isinstance(x, tuple):
            if x[0] == 'st' and x[2] < o.get('pn', 2): I(x[1] + ' sc1', tag=f'p{x[2]}')
            elif x[0] == 'st': k.stores([x[1]], tag=f'p{x[2]}')
            elif not sf:
                e.wait_tag(f'p{x[1]}')
                k.stores([f'buffer_store_dword v13, v11, {WS}, 0 offen offset:{x[1]*128}'])
        else: I(x)
    fill = []
    d9 = o.get('d9', 14); d10 = o.get('d10', 22)
    assert 12 <= d9 <= 16 and 20 <= d10 <= 24
    nxt = 0
    for i, (b, n) in enumerate(seq):
        if i in (0, 4, 8): fill += take_list(3 + i//4)
        if i == o.get('d7', 3):
            e.wait_tag('r4_3'); k.bar('m7')
        if i == d9:
            k.bar('m9'); fill += take_list(6)
        if i == 16: fill += take_list(7)
        if i == d10: k.bar('m10')
        k.stamp(f'd{i}')
        lim = 16 if i < d9 else 24 if i < d10 else 32
        while nxt < min(lim, i + 3): u_rd(nxt); nxt += 1
        for lam in range(7):
            acc = DA + 28*n + 4*lam
            I(f'{MF16} {vr(acc,4)}, {vr(A4(b)+4*lam,4)}, {vr(UBR[i%3],4)}, ' + ('0' if b == 0 else vr(acc, 4)))
            if fill and not (i > 16 and b == nk and lam < 2): run_fill(fill.pop(0))
        if b == 7:
            assert not fill, len(fill)
            if n == 1 and o.get('m11', 0): k.bar()
            if n > 1: run_fill(('fl', n - 2))
            fill = pack_list(n)
    k.stamp('dg')
    for x in fill: run_fill(x)
    run_fill(('fl', 2))
    run_fill(('fl', 3))
    k.stamp('pp')

def j7_jobs(k):
    e, I, L = k.e, k.I, k.L
    t0, t1 = sT[0], sT[1]
    I(f's_and_b32 s{t0}, s{sG}, 3'); I(f's_lshl_b32 s{t0}, s{t0}, 3'); I(f's_add_u32 s{t0}, s{t0}, s{sW}')
    I(f's_mul_i32 s{t0}, s{t0}, 49'); I(f'v_add_u32 v15, s{t0}, v1')
    I('v_lshrrev_b32 v16, 1, v15'); I('v_lshlrev_b32 v16, 9, v16'); I('v_and_b32 v17, 1, v15'); I('v_lshl_add_u32 v16, v17, 7, v16')
    I('v_lshrrev_b32 v17, 5, v15'); I('v_mul_u32_u24 v17, 9363, v17'); I('v_lshrrev_b32 v17, 16, v17')
    I(f'v_mul_u32_u24 v17, {229376 - 224*128}, v17'); I('v_lshl_add_u32 v17, v15, 7, v17')
    I('v_cmp_gt_u32 vcc, 49, v1'); I(f'v_cndmask_b32 v16, v{vBIG}, v16, vcc'); I(f'v_cndmask_b32 v17, v{vBIG}, v17, vcc')
    I(f's_mul_i32 s{t0}, s{sW}, 56'); I(f'v_add_u32 v15, s{t0}, v1'); I('v_lshlrev_b32 v15, 7, v15')
    I('v_cmp_gt_u32 vcc, 56, v1'); I(f'v_cndmask_b32 v15, v{vBIG}, v15, vcc')
    k.jn = 0
    for ch in k.o.get('j7', 'b4p'):
        if ch in 'ab':
            for i in range(4):
                I(f's_mov_b32 s{t1}, {i*784*512 + (256 if ch == "b" else 0)}')
                I(f'buffer_load_dword v{32+i}, v16, {srd("w3")}, s{t1} offen'); e.barrier()
        if ch == '4':
            for b in range(8):
                I(f's_mov_b32 s{t1}, {b*28672}')
                I(f'buffer_load_dword v{36+b}, v17, {srd("w4")}, s{t1} offen'); e.barrier()
        if ch == '2':
            I(f's_and_b32 s{t0}, s{sG}, 3'); I(f's_lshl_b32 s{t0}, s{t0}, 3'); I(f's_add_u32 s{t0}, s{t0}, s{sW}'); I(f's_mul_i32 s{t0}, s{t0}, {49*128}')
            I('v_min_u32 v18, 48, v1'); I('v_lshlrev_b32 v18, 7, v18')
            I(f'buffer_load_dword v58, v18, {srd("w2")}, s{t0} offen'); e.barrier()
            I(f's_add_u32 s{t0}, s{t0}, {1568*128}')
            I(f'buffer_load_dword v59, v18, {srd("w2")}, s{t0} offen'); e.barrier()
        if ch == 'm':
            I(f's_lshl_b32 s{t0}, s{sG}, 3'); I(f's_add_u32 s{t0}, s{t0}, s{sW}')
            I(f's_mul_i32 s{t1}, s{t0}, {49*128}'); I(f's_mul_i32 s{t0}, s{t0}, {13*128}')
            I('v_min_u32 v18, 48, v1'); I('v_lshlrev_b32 v18, 7, v18'); I('v_min_u32 v19, 12, v1'); I('v_lshlrev_b32 v19, 7, v19')
            I(f'buffer_load_dword v60, v18, {srd("w3")}, s{t1} offen'); e.barrier()
            I(f'buffer_load_dword v61, v19, {srd("w2")}, s{t0} offen'); e.barrier()
            I(f'buffer_load_dword v62, v18, {srd("w4")}, s{t1} offen'); e.barrier()
        if ch in 'HTqX':
            I(f's_add_u32 s{t1}, s{sGB}, {dict(H=L.H, T=L.T0, X=L.X1, q=PB[3] + 3*TILE)[ch]}')
            I(f'buffer_load_dword v{70+"HTqX".index(ch)}, v15, {WS}, s{t1} offen sc1'); e.barrier()
        if ch == 'w': e.wait_vm0(); k.stamp(f'j{k.jn}'); k.jn += 1
        if ch == 'p':
            nt = 7*(4 - k.o.get('pn', 2))
            for i, off in enumerate([PB[3] + min(4*c, nt - 4)*TILE for c in reversed(range((nt + 3)//4))]):
                I(f's_add_u32 s{t1}, s{sGB}, {off}')
                I(f'buffer_load_dword v{44+i}, v15, {WS}, s{t1} offen sc1'); e.barrier()
        if ch == 'f':
            for i in range(4): I(f'v_mov_b32 v{64+i}, -1')
            I(f's_lshl_b32 s{t0}, s{sW}, 10'); I(f'v_add_u32 v18, s{t0}, v4'); I(f'v_add_u32 v18, s{sGB}, v18')
            I(f's_and_b32 s{t0}, s{sW}, 1'); I(f's_lshl_b32 s{t0}, s{t0}, 10'); I(f'v_add_u32 v19, s{t0}, v4'); I(f'v_add_u32 v19, s{sGB}, v19')
            for n in range(4):
                for i in range(13):
                    I(f's_mov_b32 s{t1}, {PB[n] + i*8192}')
                    st = f'buffer_store_dwordx4 v[64:67], v{18 if i < 12 else 19}, {WS}, s{t1} offen'
                    if n < k.o.get('pn', 2): I(st + ' sc1')
                    else: k.stores([st])
                    if k.o.get('fb', 1): e.barrier()
                e.wait_vm0()
            e.barrier()
            I(f's_add_u32 s{t1}, s{sGB}, {L.F_P}')
            k.stores([f'buffer_store_dword v{vTAG}, v{vL0}, {WS}, s{t1} offen'])
            k.stamp('jf')
    e.wait_vm0()
```

```python
from g5 import *
import g4
from g4 import GA, GB_, f32, pack_pairs, row_stats, stat_addrs, gelu_consts

vZ, vBIG, vL0, vSIG, vTAG, vB, vST = 13, 20, 21, 26, 27, 28, 29
SB = [5, 6, 7, 8]
BF = 76
AW, OAC, NB = 132, 116, 10
sOW, sOT = sX0, sX1
XS = 10*4096
L_G = 159744
vSA, vSB, vCA = 30, 31, 40
vFW, vFR, vFV, vFD, vFT = 251, 253, 23, 24, 25
aFW, aFR, aFV, aFD, aFT, aPA, aPD = 220, 221, 222, 223, 224, 225, 226
HR = 60
ACC = 44
BXT = 40
XA = 244
vTP, vHP, vHS, vTF, vOP, vHF = 250, 19, 252, 18, 254, 255
RES = 240
W3P = 228
U0, U1 = RC + 28672, RA
PB = [(36 - 7*n)*TILE for n in range(4)]
L_F2 = 162304
STEP_REG = [RB, RB + 28672, RC, RB, RB + 28672, RC, RA + 16384, RB]

def main_pre(k):
    I = k.I
    t0, t1 = sT[0:2]
    I(f's_lshl_b32 s{t0}, s{sG}, 6'); I(f's_lshl_b32 s{t1}, s{sW}, 4'); I(f's_add_u32 s{t0}, s{t0}, s{t1}')
    I(f'v_add_u32 v15, s{t0}, v2'); I('v_mul_u32_u24 v15, 896, v15')
    I(f's_lshl_b32 s{t0}, s{sJ}, 7')
    I('v_lshl_add_u32 v15, v3, 3, v15')
    for t in range(4):
        I(f'buffer_load_dwordx2 {vr(52+2*t,2)}, v15, {srd("x")}, s{t0} offen offset:{t*32}')

def main_addr1(k):
    I, L = k.I, k.L
    t0, t1, t2 = sT[0:3]
    I('v_bfe_u32 v15, v1, 2, 2')
    I('v_lshl_add_u32 v16, v3, 3, v15'); I('v_lshlrev_b32 v16, 7, v16')
    I('v_and_b32 v14, 3, v1'); I('v_lshl_add_u32 v16, v14, 3, v16')
    I('v_lshrrev_b32 v15, 1, v15'); I('v_and_b32 v14, 1, v3'); I('v_lshl_add_u32 v15, v14, 1, v15')
    I(f'v_lshl_add_u32 v39, v15, 5, v16')
    I(f's_and_b32 s{t1}, s{sW}, 2'); I(f's_and_b32 s{t2}, s{sW}, 1')
    I(f's_mul_i32 s{t0}, s{t1}, {TILE}'); I(f's_add_u32 s{t0}, s{t0}, s{sGB}')
    I(f'v_add_u32 v{vB}, s{t0}, v4')
    I(f's_mul_i32 s{sOW}, s{t2}, {TILE + 7168}'); I(f's_mul_i32 s{sOT}, s{t2}, {TILE - 7168}'); I(f's_sub_u32 s{sOT}, {TILE}, s{sOT}')
    I(f's_lshl_b32 s{t0}, s{t1}, 6'); I(f's_lshl_b32 s{t2}, s{t2}, 5'); I(f's_add_u32 s{t0}, s{t0}, s{t2}')
    I(f's_add_u32 s{t0}, s{t0}, s{sGB}'); I(f's_add_u32 s{t0}, s{t0}, {L.F_O}')
    I('v_and_b32 v15, 8, v1'); I('v_lshlrev_b32 v15, 3, v15'); I('v_and_b32 v16, 7, v1'); I('v_lshl_add_u32 v15, v16, 2, v15')
    I(f'v_add_u32 v{vOP}, s{t0}, v15')

def main_addr2(k):
    I, L = k.I, k.L
    t0, t1, t2, t3 = sT[0:4]
    assert k.o.get('hc')
    I(f's_mul_i32 s{t0}, s{sW}, {TILE}'); I(f's_add_u32 s{t0}, s{t0}, s{sGB}')
    I(f's_lshl_b32 s{t1}, s{sJ}, 11'); I(f's_add_u32 s{t0}, s{t0}, s{t1}')
    I(f'v_lshlrev_b32 v46, 8, v{vSIG}'); I('v_lshl_add_u32 v46, v2, 4, v46')
    I(f'v_add_u32 v{vST}, s{t0}, v46')
    I(f's_lshl_b32 s{t0}, s{sW}, 3'); I(f's_add_u32 s{t0}, s{t0}, s{sJ}'); I(f's_lshl_b32 s{t0}, s{t0}, 8')
    I(f's_add_u32 s{t0}, s{t0}, s{sGB}'); I(f's_add_u32 s{t0}, s{t0}, {L.ST}')
    I(f'v_add_u32 v9, s{t0}, v4')
    I('v_cmp_eq_u32 vcc, 0, v3'); I(f'v_cndmask_b32 v9, v{vBIG}, v9, vcc')
    stat_addrs(k, vSA, vSB)
    I(f'v_mov_b32 v{BXT+2}, 0'); I(f'v_mov_b32 v{BXT+3}, 0')
    I(f's_add_u32 s{t0}, s{sGB}, {L.GS + L.T0 - TILE}')
    I(f's_cmp_eq_u32 s{sG}, 31'); I(f's_cselect_b32 s{t0}, {BIG}, s{t0}')
    I(f's_sub_u32 s{t1}, s{sGB}, {L.GS - L.T0 - 4*TILE}')
    I(f's_cmp_eq_u32 s{sG}, 0'); I(f's_cselect_b32 s{t1}, {BIG}, s{t1}')
    I(f's_cmp_eq_u32 s{sW}, 3'); I(f's_cselect_b32 s{t0}, s{t0}, s{t1}')
    I(f's_cselect_b32 s{t2}, 0xc000c000, 0')
    I(f's_cmp_eq_u32 s{sW}, 0'); I(f's_cselect_b32 s{t2}, 0x00030003, s{t2}'); I(f's_mov_b32 s{t3}, s{t2}')
    I(f's_lshl_b32 s{t1}, s{sJ}, 11'); I(f's_add_u32 s{t0}, s{t0}, s{t1}')
    I('v_and_b32 v15, 1, v2'); I(f'v_lshl_add_u32 v15, v{vSIG}, 1, v15'); I('v_lshlrev_b32 v15, 4, v15'); I(f'v_add_u32 v15, s{t0}, v15')
    I(f'v_cndmask_b32 v{vHS}, v{vBIG}, v15, s[{t2}:{t3}]')
    if k.o.get('xb') == 1: I(f'v_mov_b32 v{vHS}, v{vBIG}')
    I(f's_and_b32 s{t2}, s{sW}, 1'); I(f's_lshl_b32 s{t3}, s{t2}, 1'); I(f's_sub_u32 s{t1}, s{t3}, 1')
    I('v_and_b32 v44, 1, v3'); I(f'v_add_u32 v44, s{t3}, v44')
    I('v_lshrrev_b32 v45, 1, v3')
    I('v_sub_u32 v15, v44, v3'); I('v_mul_u32_u24 v16, 28, v45'); I('v_add_u32 v15, v15, v16'); I('v_add_u32 v15, 12, v15')
    I('v_lshl_add_u32 v{0}, v15, 10, v39'.format(vCA))
    I(f's_lshl_b32 s{t2}, s{t2}, 12'); I(f's_add_u32 s{t2}, s{t2}, s{sGB}')
    for q in range(3):
        u = 'v44' if q == 2 else 'v3'
        if q == 2:
            I('v_mul_u32_u24 v16, 7168, v45'); I(f'v_add_u32 v16, s{sGB}, v16'); I('v_add_u32 v16, 3072, v16')
            I('v_add_u32 v45, 1, v45'); I(f'v_mul_i32_i24 v45, s{t1}, v45')
        elif q == 0: I(f'v_mov_b32 v16, s{t2}')
        if q != 1:
            I(f'v_lshl_add_u32 v16, {u}, 8, v16'); I(f'v_mul_i32_i24 v48, -14, {u}')
        for n in range(2):
            X = XA + 3*n + q
            I(f's_xor_b32 s{t0}, s{sW}, {1-n}'); I(f's_lshl_b32 s{t0}, s{t0}, 4'); I(f's_add_u32 s{t0}, s{t0}, 16')
            if q < 2:
                for _ in range(q + 1): I(f's_add_u32 s{t0}, s{t0}, s{t1}')
                I(f'v_add_u32 v14, s{t0}, v2')
            else: I(f'v_add3_u32 v14, s{t0}, v2, v45')
            if k.o.get('xa') == 1: I('v_mov_b32 v15, 79'); I('v_med3_i32 v14, v14, 16, v15')
            I(f'v_lshrrev_b32 v{X}, 4, v14'); I(f'v_mul_u32_u24 v{X}, {TILE}, v{X}')
            I('v_add_u32 v15, -16, v14'); I('v_cmp_lt_u32 vcc, 63, v15')
            I('v_and_b32 v15, 1, v14'); I('v_and_b32 v14, 15, v14'); I('v_add_u32 v15, v15, v48'); I('v_cndmask_b32 v14, v14, v15, vcc')
            I(f'v_lshl_add_u32 v{X}, v14, 4, v{X}')
            I(f'v_add_u32 v{X}, v{X}, v16')
    I(f's_lshl_b32 s{t0}, s{sW}, 5'); I(f's_lshl_b32 s{t2}, s{sJ}, 2'); I(f's_add_u32 s{t0}, s{t0}, s{t2}')
    I(f's_add_u32 s{t2}, s{sGB}, {L.F_T}'); I(f's_add_u32 s{t0}, s{t0}, s{t2}')
    I(f'v_add_u32 v{vTF}, s{t0}, v{vL0}')
    I(f's_and_b32 s{t0}, s{sW}, 2'); I(f's_lshl_b32 s{t0}, s{t0}, 5'); I(f's_mul_i32 s{t1}, s{t3}, 6'); I(f's_add_u32 s{t0}, s{t0}, s{t1}'); I(f's_add_u32 s{t0}, s{t0}, s{t2}')
    I('v_and_b32 v15, 4, v1'); I('v_lshlrev_b32 v15, 3, v15'); I('v_and_b32 v16, 3, v1'); I('v_lshl_add_u32 v15, v16, 2, v15')
    I(f'v_add_u32 v{vHF}, s{t0}, v15')
    I(f's_mov_b32 s{t0}, 0x66665321'); I(f's_cmp_eq_u32 s{t3}, 0'); I(f's_cselect_b32 s{t0}, 0x55554310, s{t0}')
    I('v_and_b32 v16, 7, v1'); I('v_lshlrev_b32 v16, 2, v16'); I(f'v_lshrrev_b32 v16, v16, s{t0}'); I('v_and_b32 v16, 7, v16'); I('v_lshlrev_b32 v16, 2, v16')
    I('v_lshrrev_b32 v15, 3, v1'); I('v_min_u32 v15, 2, v15'); I(f'v_add_u32 v15, s{sW}, v15'); I('v_add_u32 v15, -1, v15')
    I('v_med3_i32 v15, v15, 0, 3')
    I('v_lshl_add_u32 v15, v15, 5, v16'); I(f'v_add_u32 v{vTP}, s{t2}, v15')
    I(f's_mov_b32 s{t0}, {BIG}')
    if not k.o.get('xa'):
        I(f's_cmp_eq_u32 s{sW}, 0'); I(f's_cselect_b32 s{t0}, {L.T0 - TILE}, s{t0}')
        I(f's_cmp_eq_u32 s{sW}, 3'); I(f's_cselect_b32 s{t0}, {L.T0 + 4*TILE + 3072}, s{t0}')
    I(f's_add_u32 s{t0}, s{t0}, s{sGB}')
    I('v_and_b32 v15, 3, v1'); I('v_bfe_u32 v16, v1, 2, 1'); I('v_mul_u32_u24 v16, 7, v16'); I('v_add_u32 v15, v15, v16')
    I('v_lshlrev_b32 v15, 10, v15'); I(f'v_add_u32 v{vHP}, s{t0}, v15')

def early_addr(k):
    main_addr1(k); main_addr2(k)
    g_addr(k, vFW, vFR, vFV, False)
def hinit(k):
    for t in range(4):
        for d in range(2):
            k.I(f'v_lshlrev_b32 v{HR+4*t+2*d}, 16, v{52+2*t+d}')
            k.I(f'v_and_b32 v{HR+4*t+2*d+1}, 0xffff0000, v{52+2*t+d}')

def t_prefill(k):
    I, L = k.I, k.L
    t0, t1, t2 = sT[0:3]
    for i in range(4): I(f'v_mov_b32 v{76+i}, -1')
    I(f's_lshl_b32 s{t1}, s{sJ}, 11'); I(f's_add_u32 s{t1}, s{t1}, s{sGB}')
    I(f's_cmp_eq_u32 s{sJ}, 7'); I(f's_cselect_b32 s{t1}, {BIG}, s{t1}')
    I(f's_mul_i32 s{t0}, s{sW}, {TILE}'); I(f's_add_u32 s{t0}, s{t0}, s{t1}')
    I(f's_and_b32 s{t2}, s{sW}, 1'); I(f's_lshl_b32 s{t2}, s{t2}, 10'); I(f's_add_u32 s{t1}, s{t1}, s{t2}')
    I(f'v_add_u32 v15, s{t0}, v4'); I(f'v_add_u32 v16, s{t1}, v4')
    I(f's_mov_b32 s{t0}, {L.H}'); I(f's_mov_b32 s{t1}, {L.T0}'); I(f's_mov_b32 s{t2}, {L.X1}')
    st = []
    for so in [dict(h=f's{t0}', t=f's{t1}', x=f's{t2}')[c] for c in k.o.get('kpf', 'htx')]:
        st += [f'buffer_store_dwordx4 v[76:79], v15, {WS}, {so} offen', f'buffer_store_dwordx4 v[76:79], v15, {WS}, {so} offen offset:1024',
               f'buffer_store_dwordx4 v[76:79], v16, {WS}, {so} offen']
    k.stores(st)

def spin_tail(k, top, done):
    I = k.I
    I(f's_cbranch_vccz {done}')
    I(f's_sub_u32 s{sSPIN}, s{sSPIN}, 1')
    I(f's_cbranch_scc0 {top}')
    I(f's_mov_b32 s{sSPIN}, 0')
    I(f's_branch {done}')
def ool(k, fn):
    e = k.e
    sn = e.snap()
    save = e.out; e.out = []
    fn()
    e.ool += e.out; e.out = save
    e.restore(sn)

def a_preload(k, base, steps, comb=False):
    I = k.I
    t0 = sT[0]
    I(f's_and_b32 s{t0}, s{sW}, 1'); I(f's_mul_i32 s{t0}, s{t0}, {16384 if comb else 28672}'); I(f's_add_u32 s{t0}, s{t0}, {base}')
    I(f'v_add_u32 v{SB[0]}, s{t0}, v39')
    for t in range(1, 4): I(f'v_xor_b32 v{SB[t]}, {t*32}, v{SB[0]}')
    for i, m in enumerate(steps):
        if m is None:
            for t in range(4): I(f'v_xor_b32 v{SB[t]}, {t*32}, v{vCA}')
            m = 0
        for t in range(4):
            for h in range(2): I(f'ds_read_b64_tr_b16 {vr(AW+16*i+4*t+2*h,2)}, v{SB[t]} offset:{m*4096 + h*512}')
def x_addr(k, base):
    I = k.I
    t0 = sT[0]
    I(f's_lshl_b32 s{t0}, s{sW}, 12'); I(f's_add_u32 s{t0}, s{t0}, {base + XS}')
    I(f'v_add_u32 v5, s{t0}, v4'); I('v_xor_b32 v6, 4096, v5'); I(f'v_xor_b32 v7, 4, v{vFW}')
def b_soff(k, region):
    for i in range(4): k.I(f's_add_u32 s{sT[4+i]}, s{(sOT, sOW)[i >> 1]}, {region + (i & 1)*4096}')
def b_src(p): return f'v{vB}, {WS}, s{sT[4 + 2*(p//7) + ((p%7) >> 2)]} offen offset:{((p%7)&3)*1024} sc1'
def kgemm(k, own, src, il, sg, rnd, need, init, zero=False, vf=(), v0=0, v1=13, nm='_', hooks={}, chk=True, fin=()):
    I, e, o = k.I, k.e, k.o
    vf = list(vf); fin = list(fin)
    il = [int(c, 36) for c in il] + [0]*16
    ld = [f'buffer_load_dwordx4 {vr(BF+4*(p%NB),4)}, {src(p)}' for p in range(14)]
    def loads(n, free):
        for _ in range(n):
            if ld:
                assert 14 - len(ld) - NB < free
                I(ld.pop(0))
                if 14 - len(ld) == sg: g_wr(k, 2*rnd)
    def mf(p, t, slot, z):
        acc = (OAC if p < 7 else own) + 4*t
        I(f'{MF16} {vr(acc,4)}, {vr(AW+16*(p%7)+4*t,4)}, {vr(BF+4*slot,4)}, ' + ('0' if z else vr(acc, 4)))
    def redo(p0, acc, name):
        done, retry = e.newlabel('Lnd'), e.newlabel('Lnr')
        I(f'v_cmp_u_f32 vcc, v{acc}, v{acc}')
        I(f's_cbranch_vccnz {retry}')
        e.label(done)
        def stub():
            e.label(retry)
            k.stamp(name)
            e.nop(16); e.wait_vm0()
            if p0 and not zero: init()
            sl = [4, 5, 6] if p0 == 0 else [0, 1, 2, 3, 8, 9]
            for c in range(0, 7, len(sl)):
                ps = range(p0 + c, min(p0 + c + len(sl), p0 + 7))
                for p in ps: I(f'buffer_load_dwordx4 {vr(BF+4*sl[p-p0-c],4)}, {src(p)}')
                for p in ps:
                    for t in range(4): mf(p, t, sl[p-p0-c], p == p0 and (zero or p0 == 0))
                e.nop(16)
            I(f'v_cmp_u_f32 vcc, v{acc}, v{acc}')
            spin_tail(k, retry, done)
        ool(k, stub)
    rds = [f'ds_read_b32 v{vFD}, v7 offset:32'] + [f'ds_read_b128 {vr(OAC+4*t,4)}, v6 offset:{t*1024}' for t in range(4)]
    def pchk():
        k.stamp('x' + nm + 'e')
        k.lpoll(rds, lambda: I(f'v_cmp_gt_u32 vcc, {rnd}, v{vFD}'), 'x')
        k.stamp(nm + 'e')
    if sg == 0: g_wr(k, 2*rnd)
    loads(il[0], 0)
    if -1 in hooks: hooks[-1]()
    per = -(-len(vf) // (4*(v1 - v0)))
    xw, xr = o.get('xwp', 7), o.get('xrp', 10)
    for p in range(14):
        n = il[p + 1]
        assert len(ld) < 14 - p
        r = k.sreg(nm + str(p))
        if r: e._emit(f's_memrealtime s[{r}:{r+1}]')
        for t in range(4):
            mf(p, t, p % NB, p == 0 or (p == 7 and zero))
            loads(n*(t+1)//4 - n*t//4, p + (t == 3))
            if p >= v0:
                for _ in range(per):
                    if vf: I(vf.pop(0))
                while vf and ('cselect' in vf[0] or 'vcc' in vf[0].split(',')[-1] or 's[' in vf[0].split(',')[-1]): I(vf.pop(0))
            if p == 13:
                for _ in range(2):
                    if fin: I(fin.pop(0))
        if p == 4: I(g_rd())
        if p == 6: g_chk(k, *need)
        if p == xw:
            if chk: redo(0, OAC, nm + 'r')
            for t in range(4): I(f'ds_write_b128 v5, {vr(OAC+4*t,4)} offset:{t*1024}')
            I(f'v_mov_b32 v{vFV}, {rnd}'); I(f'ds_write_b32 v{vFW}, v{vFV} offset:32')
        if p == xr:
            for t in rds: I(t)
        if p == 12: pchk()
        if p in hooks: hooks[p]()
    assert not vf and not ld and not fin
    if chk: redo(7, own, nm + 's')
    for i in range(0, 16, 2): I(f'v_pk_add_f32 {vr(own+i,2)}, {vr(own+i,2)}, {vr(OAC+i,2)}')
def g_addr(k, W, R, V, aux):
    I = k.I
    t0 = sT[0]
    I(f's_lshl_b32 s{t0}, s{sW}, 2'); I(f's_add_u32 s{t0}, s{t0}, {L_G}'); I(f'v_mov_b32 v{W}, s{t0}')
    I(f'v_and_b32 v{R}, 7, v1'); I(f'v_lshlrev_b32 v{R}, 2, v{R}'); I(f'v_add_u32 v{R}, {L_G}, v{R}')
def k0_init(k):
    k.I(f'v_mov_b32 v16, {L_G}'); k.I('v_lshl_add_u32 v16, v2, 2, v16'); k.I('ds_write_b32 v16, v13')
def g_wr(k, n, aux=False):
    W, V = (aFW, aFV) if aux else (vFW, vFV)
    k.I(f'v_mov_b32 v{V}, {n}'); k.I(f'ds_write_b32 v{W}, v{V}')
def g_rd(aux=False): return f'ds_read_b32 v{aFD}, v{aFR}' if aux else f'ds_read_b32 v{vFD}, v{vFR}'
def g_chk(k, nm, na, aux=False, name=None):
    D, T = (aFD, aFT) if aux else (vFD, vFT)
    if name: k.stamp('x' + name)
    k.I(f'v_cndmask_b32 v{T}, {nm}, {na}, s[0:1]')
    k.lpoll([g_rd(aux)], lambda: k.I(f'v_cmp_gt_u32 vcc, v{T}, v{D}'), 'g')
    if name: k.stamp(name)
def g_wait(k, nm, na, name=None):
    k.I(g_rd(True)); g_chk(k, nm, na, True, name)
def poll_stats(k, tagbits, name, D, va, vb):
    I = k.I
    I(f's_or_b32 s{sN}, s{sTAG}, {tagbits}')
    def chk():
        I(f'v_cmp_ne_u32 vcc, s{sN}, v{D+2}')
        I(f'v_cmp_ne_u32 s[{sT[2]}:{sT[3]}], s{sN}, v{D+6}')
        I(f's_or_b64 vcc, vcc, s[{sT[2]}:{sT[3]}]')
    k.poll3([f'buffer_load_dwordx3 {vr(D,3)}, v{va}, {WS}, 0 offen sc1',
             f'buffer_load_dwordx3 {vr(D+4,3)}, v{vb}, {WS}, 0 offen sc1'], chk, name)

def tr2(k, dst, vb, off, step, tag=None):
    k.I(f'ds_read_b64_tr_b16 {vr(dst,2)}, v{vb} offset:{off}', tag=tag)
    k.I(f'ds_read_b64_tr_b16 {vr(dst+2,2)}, v{vb} offset:{off+step}', tag=tag)

def w3_src(k, V):
    I = k.I
    t0, t1 = sT[0], sT[1]
    I(f's_lshl_b32 s{t0}, s{sJ}, 9'); I(f's_lshr_b32 s{t1}, s{sA}, 1'); I(f's_lshl_b32 s{t1}, s{t1}, 7'); I(f's_add_u32 s{t0}, s{t0}, s{t1}')
    I(f's_and_b32 s{t1}, s{sA}, 1'); I(f's_mul_i32 s{t1}, s{t1}, {8*3584}'); I(f's_add_u32 s{t0}, s{t0}, s{t1}')
    I(f's_cmp_eq_u32 s{sJ}, 7'); I(f's_cselect_b32 s{t0}, {BIG}, s{t0}')
    I(f'v_lshrrev_b32 v15, 3, v1'); I(f'v_mul_u32_u24 v{V}, 3584, v15')
    I('v_bfe_u32 v15, v1, 4, 1'); I('v_lshlrev_b32 v15, 2, v15'); I('v_and_b32 v16, 7, v1'); I('v_xor_b32 v15, v15, v16')
    I(f'v_lshl_add_u32 v{V}, v15, 4, v{V}'); I(f'v_add_u32 v{V}, s{t0}, v{V}')
def w3_rd_base(k, V, base):
    I = k.I
    t0, t1 = sT[0], sT[1]
    I('v_lshrrev_b32 v15, 5, v1'); I('v_lshlrev_b32 v15, 3, v15')
    I('v_bfe_u32 v17, v1, 2, 2'); I('v_add_u32 v15, v15, v17')
    I('v_and_b32 v16, 3, v1')
    I(f'v_and_b32 v{V}, 1, v3'); I(f'v_lshlrev_b32 v{V}, 5, v{V}'); I(f'v_lshl_add_u32 v{V}, v16, 3, v{V}')
    I(f'v_lshl_add_u32 v{V}, v15, 7, v{V}')
    I('v_lshrrev_b32 v17, 1, v17'); I(f'v_lshl_add_u32 v{V}, v17, 6, v{V}')
    I(f's_and_b32 s{t0}, s{sA}, 1'); I(f's_lshl_b32 s{t0}, s{t0}, 6'); I(f'v_xor_b32 v{V}, s{t0}, v{V}')
    I(f's_lshr_b32 s{t0}, s{sA}, 1'); I(f's_lshl_b32 s{t0}, s{t0}, 11'); I(f's_add_u32 s{t0}, s{t0}, {base}')
    I(f'v_add_u32 v{V}, s{t0}, v{V}')
def w3_dma(k, V, sM, m, half, dest, tag):
    I = k.I
    t1 = sT[1]
    I(f's_add_u32 m0, s{sM}, {dest}')
    I(f's_mov_b32 s{t1}, {m*16*3584 + half*256}')
    I(f'buffer_load_dwordx4 v{V}, {srd("w3")}, s{t1} offen lds', tag=tag)
def w4_src(k, V):
    I = k.I
    t0, t1 = sT[0], sT[1]
    I(f's_lshl_b32 s{t0}, s{sJ}, 8'); I(f's_lshl_b32 s{t1}, s{sA}, 3'); I(f's_add_u32 s{t0}, s{t0}, s{t1}')
    I(f'v_lshrrev_b32 v15, 3, v1'); I(f'v_add_u32 v15, s{t0}, v15'); I(f'v_mul_u32_u24 v{V}, 896, v15')
    I('v_lshlrev_b32 v15, 1, v3'); I('v_and_b32 v16, 7, v1'); I('v_xor_b32 v15, v15, v16')
    I(f'v_lshl_add_u32 v{V}, v15, 4, v{V}')
def w4_dma_list(k, V, sM, sS, b):
    I = k.I
    out = []
    for lc in range(7):
        def f(lc=lc):
            if b >= k.o.get('now4', 9): return
            if lc == 0: I(f's_mov_b32 s{sS}, {b*32*896}')
            I(f's_add_u32 m0, s{sM}, {STEP_REG[b] + lc*4096 - lc*128}')
            I(f'buffer_load_dwordx4 v{V}, {srd("w4")}, s{sS} offen offset:{lc*128} lds', tag=f'w4_{b}')
        out.append(f)
    return out
def pat(k, P):
    I = k.I
    I('v_lshrrev_b32 v15, 2, v2'); I('v_and_b32 v16, 1, v3'); I('v_cmp_eq_u32 vcc, v15, v16')
    I(f'v_mov_b32 v15, 0x3f803f80')
    for i in range(4): I(f'v_cndmask_b32 v{P+i}, 0, v15, vcc')
def up_addrs(k, vX, vS, vU, ubase):
    I = k.I
    t0 = sT[0]
    I('v_bfe_u32 v15, v1, 4, 1'); I(f'v_mul_u32_u24 v{vX}, {TILE}, v15')
    I(f'v_lshl_add_u32 v{vX}, v2, 4, v{vX}')
    I('v_lshrrev_b32 v16, 5, v1'); I(f'v_lshl_add_u32 v{vX}, v16, 8, v{vX}')
    I(f'v_and_b32 v{vS}, 31, v1'); I(f'v_lshlrev_b32 v{vS}, 5, v{vS}'); I(f'v_add_u32 v{vS}, {L_STAT}, v{vS}')
    I(f'v_lshlrev_b32 v{vU}, 10, v15'); I(f'v_lshl_add_u32 v{vU}, v2, 4, v{vU}'); I(f'v_lshl_add_u32 v{vU}, v16, 8, v{vU}')
    I(f's_lshl_b32 s{t0}, s{sA}, 12'); I(f's_add_u32 s{t0}, s{t0}, {ubase}')
    I(f'v_add_u32 v{vU}, s{t0}, v{vU}')
def up(k, acc, afn, BB, vX, vS, hooks, pre=True, half=None):
    I = k.I
    def b_rd(m, b):
        d = vr(BB + 8*(m&1) + 4*b, 4)
        if m < 28: I(f'ds_read_b128 {d}, v{vX} offset:{b*2*TILE + m*512}')
        else: I(f'ds_read_b128 {d}, v{vS} offset:{b*1024}')
    if pre: b_rd(0, 0); b_rd(0, 1)
    for m in range(29):
        for b in range(2):
            if m + 1 < 29: b_rd(m + 1, b)
            I(f'{MF32} {vr(acc+16*b,16)}, {vr(afn(m),4)}, {vr(BB+8*(m&1)+4*b,4)}, ' + ('0' if m == 0 else vr(acc+16*b, 16)))
            if b == 0 and half: half(m)
        if m in hooks: hooks[m]()
def gelu_groups(acc, GT, GC, PK, npk):
    out = []
    for b in range(2):
        G = GC + 4*b
        for gp in range(2):
            Lq = []
            x = acc + 16*b + 8*gp; tt = GT + 8*gp
            for i in range(8): Lq.append(f'v_mul_f32 v{tt+i}, v{x+i}, v{x+i}')
            for i in range(8): Lq.append(f'v_fma_f32 v{tt+i}, v{tt+i}, v{G+1}, v{G}')
            for i in range(8): Lq.append(f'v_mul_f32 v{tt+i}, v{tt+i}, v{x+i}')
            for i in range(8): Lq.append(f'v_exp_f32 v{tt+i}, v{tt+i}')
            for i in range(8): Lq.append(f'v_fma_f32 v{tt+i}, v{tt+i}, v{G+2}, v{G+2}')
            for i in range(8): Lq.append(f'v_rcp_f32 v{tt+i}, v{tt+i}')
            for i in range(8): Lq.append(f'v_mul_f32 v{x+i}, v{x+i}, v{tt+i}')
            P = PK + 4*((2*b + gp) % npk)
            for i in range(4): Lq.append(f'v_cvt_pk_bf16_f32 v{P+i}, v{x+2*i}, v{x+2*i+1}')
            out.append((Lq, P, b*2048 + gp*512))
    return out

def publish_stats(k, src, sreg, tagbits, T, mid=None, thru=False, ack=True, after=None, flag=()):
    e, I = k.e, k.I
    P = T
    pack_pairs(k, src, P)
    st = [f'buffer_store_dwordx4 {vr(P,4)}, v{vST}, {WS}, s{sreg} offen',
          f'buffer_store_dwordx4 {vr(P+4,4)}, v{vST}, {WS}, s{sreg} offen offset:1024']
    if thru:
        for t in st: I(t + ' sc1')
    else: k.stores(st + list(flag), tag='ds')
    if after: after()
    S = T + 8
    I(f'v_pk_add_f32 {vr(S,2)}, {vr(src,2)}, {vr(src+2,2)}')
    I(f'v_pk_mul_f32 {vr(S+2,2)}, {vr(src,2)}, {vr(src,2)}')
    I(f'v_pk_fma_f32 {vr(S+2,2)}, {vr(src+2,2)}, {vr(src+2,2)}, {vr(S+2,2)}')
    for i in range(4, 16, 2):
        I(f'v_pk_add_f32 {vr(S,2)}, {vr(S,2)}, {vr(src+i,2)}')
        I(f'v_pk_fma_f32 {vr(S+2,2)}, {vr(src+i,2)}, {vr(src+i,2)}, {vr(S+2,2)}')
    I(f'v_add_f32 v{S+4}, v{S}, v{S+1}')
    I(f'v_add_f32 v{S+5}, v{S+2}, v{S+3}')
    k.allred2(S+4, S+5, S, 'v_add_f32')
    I(f'v_or_b32 v{S+6}, {tagbits}, v{vTAG}')
    if ack: e.wait_vm0()
    k.stores([f'buffer_store_dwordx3 {vr(S+4,3)}, v9, {WS}, 0 offen'])
    if mid: mid()

def x1_dma(k, m0_, vaddr):
    I = k.I
    t0, t1 = sT[0], sT[1]
    I(f's_mul_i32 s{t0}, s{sA}, {TILE}')
    for i in range(7):
        m = m0_ + i
        if i % 4 == 0:
            I(f's_mov_b32 s{t1}, {k.L.X1 + m*1024}')
            I(f's_add_u32 m0, s{t0}, {RA + m*1024}')
        I(f'buffer_load_dwordx4 v{vaddr}, {WS}, s{t1} offen offset:{(i&3)*1024} sc1 lds', tag='x1')

def main_rest(k):
    e, I, L, o = k.e, k.I, k.L, k.o
    t0, t1, t2, t3 = sT[0:4]
    sR = sT[8]
    sn = o.get('sn', '')
    assert 't' in sn and 'x' in sn and 'h' in sn
    il = o.get('il', '722111').split('.')
    il = il + il[-1:]*2
    sg = [int(c, 36) for c in o.get('sg', 'aaa')]
    assert o.get('tpb', 0) == 0
    b_soff(k, L.O)
    I(f's_mov_b32 s{sR}, {L.H}')
    k.k_landed()
    a_preload(k, RA, range(7))
    g_wr(k, 1)
    x_addr(k, RA)
    k.k_landed2()
    def chk(): I(f'v_cmp_ne_u32 vcc, s{sTAG}, v16')
    k.stamp('xpo')
    k.poll3([f'buffer_load_dword v16, v{vOP}, {WS}, 0 offen sc1'], chk, 'o')
    k.stamp('po')
    I(f's_setprio {o.get("gp", 1)}')
    kgemm(k, HR, b_src, il[0], sg[0], 1, (1, 0), lambda: hinit(k), nm='H', chk='o' in sn)
    k.stamp('hg')
    def mid():
        g_chk(k, 0, 1)
    D = 32
    G = D
    sl = [f'buffer_load_dwordx3 {vr(D,3)}, v{vSA}, {WS}, 0 offen sc1', f'buffer_load_dwordx3 {vr(D+4,3)}, v{vSB}, {WS}, 0 offen sc1']
    publish_stats(k, HR, sR, 1, BF, mid, False, ack=False, after=lambda: I(g_rd()),
                  flag=[f'buffer_store_dword v{vTAG}, v{vTF}, {WS}, 0 offen offset:128'])
    k.stamp('hp')
    if k.stop == 'h': return
    a_preload(k, RB, range(7))
    g_wr(k, 3)
    x_addr(k, RB)
    b_soff(k, L.H)
    I('v_lshlrev_b32 v8, 4, v3'); I(f'v_add_u32 v8, {L_CS1}, v8')
    I(f's_mov_b32 s{sR}, {L.T0}')
    I(f's_or_b32 s{sN}, s{sTAG}, 1')
    k.stamp('xph')
    k.poll3([f'buffer_load_dword v16, v{vHF}, {WS}, 0 offen offset:128 sc1'], chk, 'h')
    k.stamp('ph')
    MR, MU = 12, 10
    def tst():
        I = k.I
        row_stats(k, D)
        I(f'v_add_f32 v{D+2}, 0x3727c5ac, v{D+1}'); I(f'v_rsq_f32 v{D+4}, v{D+2}')
        I(f'v_mul_f32 v{MU}, -1.0, v{D}')
        I(f'v_mul_f32 v{D+2}, v{D+4}, v{D+4}'); I(f'v_mul_f32 v{D+2}, v{D+2}, v{D+1}')
        I(f'v_add_f32 v{D+2}, 0x3727c5ac, v{D+2}'); I(f'v_rsq_f32 v{D+2}, v{D+2}')
        I(f'v_mul_f32 v{MR}, v{MU}, v{D+4}')
        I(f'v_mul_f32 v{D+6}, v{D+4}, v{D+2}')
        gelu_consts(k, D+6, G)
        I(f'v_mov_b32 v{D+6}, v{G+1}')
    def schk():
        I(f'v_cmp_ne_u32 vcc, s{sN}, v{D+2}')
        I(f'v_cmp_ne_u32 s[{sT[2]}:{sT[3]}], s{sN}, v{D+6}')
        I(f's_or_b64 vcc, vcc, s[{sT[2]}:{sT[3]}]')
    q0, q1 = o.get('q0s', 1), o.get('q1s', 8)
    CS = BF + 16
    hooks = {q0: lambda: [I(t) for t in sl], q1: lambda: k.poll2(sl, schk, 'hs'),
             9: lambda: [I(f'ds_read_b128 {vr(CS+4*t,4)}, v8 offset:{t*64}') for t in range(4)]}
    assert len(hooks) == 3
    fin = [f'v_pk_fma_f32 {vr(OAC+i,2)}, {vr(CS+i,2)}, {vr(MU,2)}, {vr(OAC+i,2)} op_sel_hi:[1,0,1]' for i in range(0, 16, 2)]
    kgemm(k, ACC, b_src, il[1], sg[1], 2, (3, 3 if o.get('kpf', 'htx') != 'htx' else 1), None, zero=True, vf=k.capture(tst), v0=q1 + 1, nm='U', hooks=hooks, fin=fin)
    k.stamp('tg')
    T = BF
    P = T + 16
    gl = []
    for h in range(2):
        x = ACC + 8*h; tt = T + 8*h
        for i in range(0, 8, 2): gl.append(f'v_pk_mul_f32 {vr(tt+i,2)}, {vr(x+i,2)}, {vr(x+i,2)}')
        for i in range(0, 8, 2): gl.append(f'v_pk_fma_f32 {vr(tt+i,2)}, {vr(tt+i,2)}, {vr(D+6,2)}, {vr(G,2)} op_sel_hi:[1,0,0]')
        for i in range(0, 8, 2): gl.append(f'v_pk_mul_f32 {vr(tt+i,2)}, {vr(tt+i,2)}, {vr(x+i,2)}')
        for i in range(8): gl.append(f'v_exp_f32 v{tt+i}, v{tt+i}')
        for i in range(0, 8, 2): gl.append(f'v_pk_fma_f32 {vr(tt+i,2)}, {vr(tt+i,2)}, {vr(G+2,2)}, {vr(G+2,2)} op_sel_hi:[1,0,0]')
        for i in range(8): gl.append(f'v_rcp_f32 v{tt+i}, v{tt+i}')
        for i in range(0, 8, 2): gl.append(f'v_pk_mul_f32 {vr(x+i,2)}, {vr(x+i,2)}, {vr(tt+i,2)}')
        gl += k.capture(lambda: k.cvt(P+4*h, x, 8))
        gl.append(f'v_permlane16_swap_b32 v{P+4*h}, v{P+4*h+2}')
        gl.append(f'v_permlane16_swap_b32 v{P+4*h+1}, v{P+4*h+3}')
        if h == 1: gl.insert(len(gl) - 12, g_rd())
        gl.append(f'buffer_store_dwordx4 {vr(P+4*h,4)}, v{vHS}, {WS}, 0 offen offset:{h*1024} sc1')
        gl.append(lambda h=h: k.stores([f'buffer_store_dwordx4 {vr(P+4*h,4)}, v{vST}, {WS}, s{sR} offen offset:{h*1024}'] + [f'buffer_store_dword v{vTAG}, v{vTF}, {WS}, 0 offen']*h, tag='tl'))
    for n, t in enumerate(gl):
        t() if callable(t) else I(t)
    k.stamp('tp')
    def hn():
        for i in range(0, 16, 2):
            I(f'v_pk_fma_f32 {vr(ACC+i,2)}, {vr(HR+i,2)}, {vr(D+4,2)}, {vr(MR,2)} op_sel_hi:[1,0,0]')
    if k.stop == 't': return
    g_chk(k, 0, 4, name='et')
    a_preload(k, RA, [0, 1, 2, 7, 8, 9, None], True)
    g_wr(k, 5)
    x_addr(k, RA)
    hn()
    I(f's_mov_b32 s{sT[4]}, {L.T0 - TILE}'); I(f's_mov_b32 s{sT[5]}, {L.T0 - TILE + 7168}')
    I(f's_mov_b32 s{sR}, {L.X1}')
    sM, sS = sT[9], sT[10]
    I(f's_lshl_b32 s{sM}, s{sA}, 10')
    w4_src(k, 0)
    w3_rd_base(k, 14, RC)
    I(f's_and_b32 s{t0}, s{sW}, 1'); I(f's_mul_i32 s{t0}, s{t0}, {TILE}'); I(f'v_add_u32 v{vB}, s{t0}, v{vB}')
    def x_src(p):
        i = p % 7
        return f'v{XA + 3*(p//7) + i//3}, {WS}, s{sT[4 + (3 <= i < 6)]} offen offset:{(i%3)*1024} sc1'
    pl = f'buffer_load_dword v16, v{vTP}, {WS}, 0 offen sc1'
    ph = f'buffer_load_dword v17, v{vHP}, {WS}, 0 offen sc1'
    k.stamp('xpt')
    k.poll3([pl], chk, 't')
    hooks = {}
    ho = o.get('ho', 1)
    if ho:
        hx = o.get('hx', 1)
        il[2] = '7' + '0'*(hx + 1) + o.get('ix', '322')
        hooks = {-1: lambda: I(ph), hx: lambda: (k.stamp('xhl'), k.poll2([ph], lambda: I('v_cmp_eq_u32 vcc, -1, v17'), 'hl'), k.stamp('hl'))}
    k.stamp('pt')
    kgemm(k, ACC, x_src, il[2], sg[2], 3, (5, 0), hn, nm='X', hooks=hooks)
    k.stamp('xg')
    def mid():
        for i in range(0, 16, 2):
            I(f'v_pk_add_f32 {vr(RES+i,2)}, {vr(HR+i,2)}, {vr(ACC+i,2)}')
    publish_stats(k, ACC, sR, 2, BF, mid, ack=False)
    I('s_setprio 0')
    k.stamp('xp')
    k.bar('ex')
    if k.stop == 'x1': return
    def F(m): return W3P + 4*m if m < 3 else 128 + 4*(m - 3)
    AC, BB, GT, GC, PK, PAT, C, AXT = 44, 76, 92, 108, 116, 124, 32, 36
    vX, vS, vU = 5, 6, 7
    I(f'v_subrev_u32 v8, {RC - RB}, v14')
    def frd(m): tr2(k, F(m), 8 if 3 <= m < 17 else 14, (m if m < 3 else m - 3 if m < 17 else m - 17)*4096, 512, tag='w3p' if m < 3 else None)
    SR = 40
    def xstats(D):
        I = k.I
        row_stats(k, D)
        I(f'v_mul_f32 v{D+3}, -1.0, v{D}')
        k.split_b(D+3, SR, D+2)
        I(f'v_add_f32 v{D+2}, 0x3727c5ac, v{D+1}'); I(f'v_rsq_f32 v{D+4}, v{D+2}')
        gelu_consts(k, D+4, SR+4)
        I(f's_lshl_b32 s{t0}, s{sW}, 9'); I(f's_add_u32 s{t0}, s{t0}, {L_STAT}')
        I('v_lshlrev_b32 v15, 5, v2'); I(f'v_add_u32 v15, s{t0}, v15')
        I(f'ds_write_b128 v15, {vr(SR,4)}'); I(f'ds_write_b128 v15, {vr(SR+4,4)} offset:16')
    def cs(m): I(f'{MF16} {vr(C,4)}, {vr(PAT,4)}, {vr(F(m),4)}, ' + ('0' if m == 0 else vr(C, 4)))
    dm = []
    for b in range(3): dm += w4_dma_list(k, 0, sM, sS, b)
    lf = o.get('lf', 11); f0 = o.get('f0', 10); f1 = o.get('f1', 17)
    assert f1 >= 17 and f1 <= 28 - lf
    D2 = 60
    sl = [f'buffer_load_dwordx3 {vr(D2,3)}, v{vSA}, {WS}, 0 offen sc1', f'buffer_load_dwordx3 {vr(D2+4,3)}, v{vSB}, {WS}, 0 offen sc1']
    for m in range(f0): frd(m)
    pat(k, PAT)
    if o.get('xw', 1): e.wait_tag('ds')
    k.stamp('xi')
    x1_dma(k, 0, vB); x1_dma(k, 7, vB)
    for t in sl: I(t)
    assert lf == 11 and f0 >= 3
    e.wait_tag('w3p'); k.bar('xj')
    for m in range(f0, f1): frd(m)
    up_addrs(k, vX, vS, vU, U1)
    I(f's_mul_i32 s{t0}, s{sA}, {TILE}')
    I('v_and_b32 v15, 60, v1'); I('v_lshl_add_u32 v15, v1, 6, v15'); I(f'v_add_u32 v15, s{t0}, v15')
    for m in range(f1): cs(m)
    e.wait_tag('x1')
    k.stamp('xl')
    rds = [f'ds_read_b32 v{16+i}, v15 offset:{RA + min(i*4096, TILE - 4096)}' for i in range(4)]
    def xchk():
        for t in rds: I(t)
        I('v_max3_u32 v16, v16, v17, v18'); I('v_max_u32 v16, v16, v19')
        I('v_cmp_eq_u32 vcc, -1, v16')
    done, retry = e.newlabel('Lxd'), e.newlabel('Lxr')
    xchk()
    I(f's_cbranch_vccnz {retry}')
    e.label(done)
    def stub():
        e.label(retry)
        k.stamp('xr')
        x1_dma(k, 0, vB); x1_dma(k, 7, vB)
        e.wait_vm0()
        xchk()
        spin_tail(k, retry, done)
    ool(k, stub)
    k.bar('b8')
    I(f's_setprio {o.get("pb", 0)}')
    for _ in range(o.get('nd', 7)): dm.pop(0)()
    I(f's_or_b32 s{sN}, s{sTAG}, 2')
    def schk():
        I(f'v_cmp_ne_u32 vcc, s{sN}, v{D2+2}')
        I(f'v_cmp_ne_u32 s[{sT[2]}:{sT[3]}], s{sN}, v{D2+6}')
        I(f's_or_b64 vcc, vcc, s[{sT[2]}:{sT[3]}]')
    k.poll2(sl, schk, 'xs')
    k.stamp('px')
    xs = k.capture(lambda: xstats(D2))
    nx = o.get('nx', 20)
    for t in xs[:nx]: I(t)
    k.bar('f3')
    for m in range(f1, 28): frd(m)
    for t in xs[nx:]: I(t)
    for _ in range(o.get('ne', 7)):
        if len(dm) > 7: dm.pop(0)()
    cl = [(lambda m=m: cs(m)) for m in range(f1, 28)]
    e.wait_lg0(); e.wait_tag('w4_0'); k.bar('rc')
    cu = o.get('cu', 1)
    while dm or (cl and not cu):
        if dm: dm.pop(0)()
        if cl and cu < 2: cl.pop(0)()
    I(f'ds_read_b128 {vr(BB,4)}, v{vX}'); I(f'ds_read_b128 {vr(BB+4,4)}, v{vX} offset:{2*TILE}')
    I(f'ds_read_b128 {vr(GC,4)}, v{vS} offset:16'); I(f'ds_read_b128 {vr(GC+4,4)}, v{vS} offset:1040')
    I(f'v_mov_b32 v{AXT+2}, 0'); I(f'v_mov_b32 v{AXT+3}, 0')
    I(f's_setprio {o.get("pu", 1)}')
    mb = o.get('mb', 5)
    e.wait_tag('w4_1'); k.bar('m2')
    hooks = {}
    m3 = o.get('m3', 15)
    for b in (3, 4, 5): dm += w4_dma_list(k, 0, sM, sS, b)
    def one(i):
        k.stamp(f'h{i}')
        if i == mb: e.wait_tag('w4_2'); k.bar('mb')
        if i == m3: k.bar('m3')
        if len(dm) > (14 if i < mb else 7 if i < m3 else 0): dm.pop(0)()
        if cl: cl.pop(0)()
        if i == 22: k.split_a(C, AXT, C+1)
    for i in range(29): hooks[i] = lambda i=i: one(i)
    up(k, AC, lambda m: F(m) if m < 28 else AXT, BB, vX, vS, hooks, pre=False)
    I(f's_setprio {o.get("pgb", 0)}')
    assert not dm
    e.wait_tag('w4_4'); k.bar('m6')
    for b in (6, 7): dm += w4_dma_list(k, 0, sM, sS, b)
    for _ in range(4): dm.pop(0)()
    ru = o.get('ru', 0) and not o.get('dbg')
    if ru:
        I('v_min_u32 v8, 27, v1'); I('v_lshlrev_b32 v8, 2, v8'); I(f'v_add_u32 v8, {L.F_T}, v8')
        I(f's_or_b32 s{sN}, s{sTAG}, 3')
        rl = [f'buffer_load_dword v14, v8, {WS}, s{sGB} offen sc1']
        I(rl[0])
    cnt = 0
    m7 = o.get('m7', 30)
    for gi, (Lq, Pk, off) in enumerate(gelu_groups(AC, GT, GC, PK, 2)):
        for t in Lq:
            I(t); cnt += 1
            if cnt == m7: e.wait_tag('w4_5'); k.bar('m7')
            if cnt == o.get('m9', 165):
                assert not dm and gi >= 2
                if ru: k.poll2(rl, lambda: I(f'v_cmp_ne_u32 vcc, s{sN}, v14'), 'xd')
                e.wait_vm0(); e.wait_lg0(); k.bar('m9')
            if cnt % o.get('dper', 4) == 0 and len(dm) > (7 if cnt < m7 else 0): dm.pop(0)()
        I(f'ds_write_b128 v{vU}, {vr(Pk,4)} offset:{off}')
    I('s_setprio 0')
    e.wait_lg0(); k.bar('m10')
    SEL, LD = 32, 76
    k.sel_mat(SEL, 16)
    I(f's_mul_i32 s{t0}, s{sA}, {7*TILE}'); I(f's_sub_u32 s{t0}, {PB[0]}, s{t0}')
    if ru:
        assert L.X1 == 0 and L.T0 == 5*TILE
        I(f's_cmp_eq_u32 s{sA}, 2'); I(f's_cselect_b32 s{t0}, 0, s{t0}'); I(f's_cselect_b32 s{t2}, {TILE}, 0')
    I(f's_lshl_b32 s{t1}, s{sJ}, 11'); I(f's_add_u32 s{t0}, s{t0}, s{t1}')
    I(f's_add_u32 s{t0}, s{t0}, s{sGB}')
    I('v_and_b32 v5, 31, v1'); I('v_lshlrev_b32 v5, 4, v5'); I(f'v_add_u32 v5, s{t0}, v5')
    I('v_lshrrev_b32 v16, 5, v1'); I(f'v_mul_u32_u24 v17, {TILE}, v16'); I('v_add_u32 v6, v5, v17')
    I('v_cmp_eq_u32 vcc, 0, v16'); I(f'v_cndmask_b32 v5, v{vBIG}, v5, vcc')
    for i in range(4): I(f's_add_u32 s{sT[4+i]}, s{t2}, {2*i*TILE}' if ru and i > 1 else f's_mov_b32 s{sT[4+i]}, {2*i*TILE}')
    I(f's_lshl_b32 s{t0}, s{sG}, 6'); I(f's_lshl_b32 s{t1}, s{sA}, 4'); I(f's_add_u32 s{t0}, s{t0}, s{t1}')
    I(f'v_add_u32 v7, s{t0}, v2'); I('v_mul_u32_u24 v7, 896, v7')
    I(f'v_lshl_add_u32 v7, v{vSIG}, 4, v7')
    I(f's_lshl_b32 s{sT[8]}, s{sJ}, 7')
    I(f's_lshl_b32 s{t0}, s{sA}, 7'); I(f's_add_u32 s{t0}, s{t0}, {L.F_P}')
    I('v_min_u32 v15, 27, v1'); I('v_lshlrev_b32 v15, 2, v15'); I(f'v_add_u32 v15, s{t0}, v15')
    if o.get('m11', 0): k.bar()
    lds = [f'buffer_load_dwordx4 {vr(LD+16*i+4*t,4)}, v{6 if i < 3 else 5}, {WS}, s{sT[4+i]} offen offset:{t*512} sc1' for i in range(4) for t in range(4)]
    if 'f' in sn:
        R2 = 60
        top, dn = e.newlabel('Lfw'), e.newlabel('Lfd')
        I(f'v_mov_b32 v15, {L_F2}')
        I(f's_add_u32 s{t0}, s{sA}, {o.get("fs", 1)}')
        e.label(top)
        I('ds_read_b32 v16, v15')
        I(f'v_cmp_gt_u32 vcc, s{t0}, v16')
        I(f's_cbranch_vccz {dn}')
        I(f's_sub_u32 s{sSPIN}, s{sSPIN}, 1')
        I(f's_cbranch_scc0 {top}')
        I(f's_mov_b32 s{sSPIN}, 0')
        e.label(dn)
        k.stamp('pf')
        top, dn = e.newlabel('Lfw'), e.newlabel('Lfd')
        e.label(top)
        for t in lds: I(t)
        for i in range(4):
            for t in range(4):
                I(f'{MF16} {vr(R2+4*t,4)}, {vr(SEL,4)}, {vr(LD+16*i+4*t,4)}, {vr((R2 if i else RES)+4*t,4)}')
        I(f'v_cmp_u_f32 vcc, v{R2}, v{R2+4}'); I(f'v_cmp_u_f32 s[{t2}:{t3}], v{R2+8}, v{R2+12}')
        I(f's_or_b64 vcc, vcc, s[{t2}:{t3}]')
        I(f's_cbranch_vccz {dn}')
        I(f's_sub_u32 s{sSPIN}, s{sSPIN}, 1')
        I(f's_cbranch_scc0 {top}')
        I(f's_mov_b32 s{sSPIN}, 0')
        e.label(dn)
    else:
        R2 = RES
        def chk(): I(f'v_cmp_ne_u32 vcc, s{sTAG}, v16')
        k.poll3([f'buffer_load_dword v16, v15, {WS}, s{sGB} offen sc1'], chk, 'p')
        k.stamp('pf')
        for t in lds: I(t)
        for i in range(4):
            for t in range(4):
                I(f'{MF16} {vr(RES+4*t,4)}, {vr(SEL,4)}, {vr(LD+16*i+4*t,4)}, {vr(RES+4*t,4)}')
    pack_pairs(k, R2, 52)
    of = o.get('outf', '')
    I(f'buffer_store_dwordx4 v[52:55], v7, {srd("out")}, s{sT[8]} offen {of}')
    I(f'buffer_store_dwordx4 v[56:59], v7, {srd("out")}, s{sT[8]} offen offset:64 {of}')
    k.stamp('end')

vT3, vT2, vT4, vTQ, vTD = 202, 203, 204, 205, 206
def touch_addrs(k):
    I, L = k.I, k.L
    t0, t1, t2 = sT[0:3]
    I(f's_and_b32 s{t0}, s{sG}, 3'); I(f's_lshl_b32 s{t0}, s{t0}, 2'); I(f's_add_u32 s{t0}, s{t0}, s{sA}')
    I(f's_mul_i32 s{t1}, s{t0}, 3584'); I(f's_lshl_b32 s{t2}, s{sJ}, 9'); I(f's_add_u32 s{t1}, s{t1}, s{t2}')
    I(f's_cmp_eq_u32 s{sJ}, 7'); I(f's_cselect_b32 s{t1}, {BIG}, s{t1}')
    I('v_lshrrev_b32 v15, 1, v1'); I(f'v_mul_u32_u24 v{vT3}, {16*3584}, v15'); I('v_and_b32 v15, 1, v1')
    I(f'v_lshl_add_u32 v{vT3}, v15, 7, v{vT3}'); I(f'v_add_u32 v{vT3}, s{t1}, v{vT3}')
    I(f's_mul_i32 s{t0}, s{t0}, 896'); I(f's_lshl_b32 s{t2}, s{sJ}, 7'); I(f's_add_u32 s{t1}, s{t0}, s{t2}')
    I(f'v_mul_u32_u24 v{vT2}, {16*896}, v1'); I(f'v_add_u32 v{vT2}, s{t1}, v{vT2}')
    I(f's_mul_i32 s{t2}, s{sJ}, {256*896}'); I(f's_add_u32 s{t1}, s{t0}, s{t2}')
    I('v_lshrrev_b32 v15, 3, v1'); I(f'v_mul_u32_u24 v{vT4}, {16*896}, v15'); I('v_and_b32 v15, 7, v1'); I('v_min_u32 v15, 6, v15')
    I(f'v_lshl_add_u32 v{vT4}, v15, 7, v{vT4}'); I(f'v_add_u32 v{vT4}, s{t1}, v{vT4}')
    I(f's_mul_i32 s{t1}, s{sJ}, {AS}'); I(f's_mul_i32 s{t2}, s{sA}, {TILE}'); I(f's_add_u32 s{t1}, s{t1}, s{t2}'); I(f's_add_u32 s{t1}, s{t1}, {L.P0}')
    I('v_min_u32 v15, 55, v1'); I(f'v_lshlrev_b32 v{vTQ}, 7, v15'); I(f'v_add_u32 v{vTQ}, s{t1}, v{vTQ}')
def touch(k, key, dflt='-'):
    I = k.I
    t1 = sT[1]
    for ch in k.o.get(key, dflt):
        if ch in 'ab': I(f'buffer_load_dword v{vTD}, v{vT3}, {srd("w3")}, 0 offen offset:{256 if ch == "b" else 0}')
        elif ch in 'o12': I(f'buffer_load_dword v{vTD}, v{vT2}, {srd("wo" if ch == "o" else "w" + ch)}, 0 offen')
        elif ch in '45':
            I(f's_mov_b32 s{t1}, {128*896 if ch == "5" else 0}')
            I(f'buffer_load_dword v{vTD}, v{vT4}, {srd("w4")}, s{t1} offen')
        elif ch in 'pq':
            I(f's_add_u32 s{t1}, s{sGB}, {7168 if ch == "q" else 0}')
            I(f'buffer_load_dword v{vTD}, v{vTQ}, {WS}, s{t1} offen sc1')
        else: continue
        k.e.vm[-1]['dst'] = set()

def aux_burst2(k):
    I, o = k.I, k.o
    touch_addrs(k)
    touch(k, 'tO')
    w3_src(k, 12)
    for m in range(o['w2a']): w3_dma(k, 12, k.sMW, m, 0, RC + m*4096, 'w3')

def aux_pre(k): pass

def aux_rest(k):
    e, I, L, o = k.e, k.I, k.L, k.o
    t0, t1, t2, t3 = sT[0:4]
    sM = k.sMW; sS = sT[5]
    A0, AC, BB, GT, GC, PK, PAT, C, AXT, ONE = 32, 144, 176, 192, 208, 216, 232, 236, 240, 244
    n0 = o['w2a']; nH = o.get('nH', 11); nT = 28 - n0 - nH
    assert nT <= 8 and n0 <= 10
    def rd(m0, n, s0=0):
        for i in range(n): tr2(k, A0 + 4*(m0+i), 8, (s0+i)*4096, 512)
    def cs(m0, n):
        for m in range(m0, m0 + n):
            I(f'{MF16} {vr(C,4)}, {vr(PAT,4)}, {vr(A0+4*m,4)}, ' + ('0' if m == 0 else vr(C, 4)))
    def dma(m0, n, s0=0):
        for i in range(n): w3_dma(k, 12, sM, m0 + i, 0, RC + (s0+i)*4096, 'w3')
    w3_rd_base(k, 8, RC)
    if not k.v4:
        k.o_flag()
        k.bar('eo')
        rd(0, n0)
    I('v_bfe_u32 v15, v1, 2, 2')
    I('v_lshl_add_u32 v16, v3, 3, v15'); I('v_lshlrev_b32 v16, 7, v16')
    I('v_and_b32 v17, 3, v1'); I('v_lshl_add_u32 v16, v17, 3, v16')
    I('v_lshrrev_b32 v15, 1, v15'); I('v_and_b32 v17, 1, v3'); I('v_lshl_add_u32 v15, v17, 1, v15')
    I(f'v_xor_b32 v15, s{sA}, v15')
    I('v_lshl_add_u32 v6, v15, 5, v16'); I(f'v_add_u32 v6, {RB}, v6')
    CB = 144
    if k.v4:
        for i in range(4): I(f'v_mov_b32 v{ONE+i}, 0x3f803f80')
        pat(k, PAT)
        k.o_flag('os')
        g_addr(k, aFW, aFR, aFV, True)
        k.v_landed()
        rd(0, n0)
    for m in range(14): tr2(k, CB + 4*m, 6, m*4096, 512)
    if not k.v4:
        for i in range(4): I(f'v_mov_b32 v{ONE+i}, 0x3f803f80')
        pat(k, PAT)
    for m in range(14):
        I(f'{MF16} v[248:251], {vr(ONE,4)}, {vr(CB+4*m,4)}, ' + ('0' if m == 0 else 'v[248:251]'))
    cs(0, n0)
    I(f's_lshl_b32 s{t0}, s{sA}, 6'); I(f's_add_u32 s{t0}, s{t0}, {L_CS1}')
    I('v_lshlrev_b32 v15, 2, v2'); I(f'v_add_u32 v15, s{t0}, v15')
    I('ds_write_b32 v15, v248')
    g_wr(k, 1, True)
    sD = sT[4]
    I(f'v_mov_b32 v{aPA}, v12')
    def stream(nm, m0, n, dest, tag, half=0, hk={}):
        mul, V = (14, aPA) if nm == 'w3' else (7, k.vSQ)
        rot = o.get('rot', 0) and n >= 4
        if rot:
            I(f's_and_b32 s{sD}, s{sG}, 3'); I(f's_mul_i32 s{sD}, s{sD}, {n}'); I(f's_lshr_b32 s{sD}, s{sD}, 2'); I(f's_lshl_b32 s{sD}, s{sD}, 12')
            I(f's_add_u32 s{t2}, s{sM}, {dest}')
        for i in range(n):
            if rot:
                I(f's_add_u32 m0, s{t2}, s{sD}'); I(f's_mul_i32 s{t1}, s{sD}, {mul}'); I(f's_add_u32 s{t1}, s{t1}, {m0*mul*4096 + half*256}')
            else:
                I(f's_add_u32 m0, s{sM}, {dest + i*4096}'); I(f's_mov_b32 s{t1}, {(m0+i)*mul*4096 + half*256}')
            if o.get('nost') == 2:
                I(f's_mov_b32 s{t1}, {(i % 14)*7*4096}')
                I(f'buffer_load_dwordx4 v{k.vSQ}, {srd("wo" if half else "w1")}, s{t1} offen lds', tag=tag)
            elif o.get('nost') != 1: I(f'buffer_load_dwordx4 v{V}, {srd(nm)}, s{t1} offen lds', tag=tag)
            if rot and i < n - 1:
                I(f's_add_u32 s{sD}, s{sD}, 4096'); I(f's_cmp_eq_u32 s{sD}, {n*4096}'); I(f's_cselect_b32 s{sD}, 0, s{sD}')
            if i in hk: hk[i]()
    xpa = o.get('xpa', 3)
    I(f's_mul_i32 s{t0}, s{sA}, {TILE}'); I(f's_add_u32 s{t0}, s{t0}, s{sGB}')
    I(f's_lshl_b32 s{t1}, s{sJ}, 11'); I(f's_add_u32 s{t0}, s{t0}, s{t1}')
    I(f'v_add_u32 v230, s{t0}, v4')
    for i in range(4): I(f'v_mov_b32 v{aPD+i}, -1')
    I(f's_mov_b32 s{sT[8]}, {L.T0}'); I(f's_mov_b32 s{sT[9]}, {L.X1}')
    xpf = lambda: k.stores([f'buffer_store_dwordx4 {vr(aPD,4)}, v230, {WS}, s{sT[8 + (c == "x")]} offen offset:{h*1024}' for c in 'tx' if c not in o.get('kpf', 'htx') for h in range(2)], tag='pre')
    Q = {'2': [('w2', m, RA + m*4096, 0) for m in range(14)],
         'f': [('w3', n0 + nH + i, RC + (3+i)*4096, 0) for i in range(nT)] + [('w3', i, RC + i*4096, 1) for i in range(3)],
         'b': [('w3', 3 + i, RB + i*4096, 1) for i in range(14)]}
    def run(spec, lim):
        for it in spec.split(','):
            if not it: continue
            c, n = it[0], int(it[1:])
            for _ in range(n):
                assert len(Q[c]) > lim.get(c, 0), (c, spec)
                nm, m, dest, hf = Q[c].pop(0)
                stream(nm, m, 1, dest, 'w2' if c == '2' else 'w3', hf)
    g_wait(k, 2, 1, 'sh')
    stream('w3', n0, nH, RC, 'w3')
    run(o.get('sH', '25'), {'2': 4, 'f': 99, 'b': 99})
    if o.get('kpf', 'htx') != 'htx': xpf()
    e.wait_tag('w3'); k.stamp('a6'); g_wr(k, 2, True)
    g_wait(k, 0, 2, 'b2')
    if k.stop == 'h': return
    rd(n0, nH)
    cs(n0, nH)
    e.wait_tag('pre'); g_wr(k, 3, True)
    if o.get('sh2'):
        g_wait(k, 3, 3, 'h2')
        run(o['sh2'], {'b': 4})
    g_wait(k, 4, 3, 'st')
    run('2%d' % len(Q['2']), {})
    sp = o.get('sT', 'b3,b7').split(',')
    run(sp[0], {'b': 4})
    e.wait_tag('w2'); k.stamp('a7'); g_wr(k, 4, True)
    run(','.join(sp[1:]), {'b': 4})
    if o.get('st2'):
        g_wait(k, 5, 0, 't2')
        run(o['st2'], {})
    if k.stop == 't': return
    pend = [lambda: g_wait(k, 6, 0, 'sx'), lambda: run('f%d,b%d' % (len(Q['f']), len(Q['b'])), {})]
    vX, vS, vU = 24, 25, 12
    I(f'v_mov_b32 v{AXT+2}, 0'); I(f'v_mov_b32 v{AXT+3}, 0')
    I(f'v_mov_b32 v{aPD}, v8')
    VB, VB2 = 5, 28
    I('v_bfe_u32 v15, v1, 2, 2'); I('v_and_b32 v16, 1, v3')
    I('v_lshl_add_u32 v17, v16, 2, v15'); I('v_lshlrev_b32 v18, 7, v17')
    I('v_lshrrev_b32 v17, 1, v17'); I('v_lshl_add_u32 v18, v17, 5, v18')
    I('v_and_b32 v17, 3, v1'); I('v_lshl_add_u32 v18, v17, 3, v18')
    I('v_lshrrev_b32 v17, 1, v3'); I('v_lshl_add_u32 v18, v17, 11, v18')
    I(f's_mul_i32 s{t0}, s{sA}, 7')
    for i in range(4):
        I(f's_add_u32 s{t1}, s{t0}, {i}'); I(f's_and_b32 s{t2}, s{t1}, 3'); I(f's_lshl_b32 s{t2}, s{t2}, 5')
        I(f's_lshr_b32 s{t1}, s{t1}, 2'); I(f's_lshl_b32 s{t1}, s{t1}, 12')
        I(f'v_xor_b32 v{VB+i}, s{t2}, v18'); I(f'v_add_u32 v{VB+i}, s{t1}, v{VB+i}')
        I(f'v_add_u32 v{VB2+i}, {RB}, v{VB+i}')
    I(f's_mul_i32 s{t0}, s{sJ}, {TILE}'); I(f's_add_u32 s{t0}, s{t0}, s{sGB}')
    I(f's_mul_i32 s{t2}, s{sA}, {14*256}'); I(f's_add_u32 s{t0}, s{t0}, s{t2}')
    I(f'v_lshlrev_b32 v9, 8, v{vSIG}'); I('v_lshl_add_u32 v9, v2, 4, v9'); I(f'v_add_u32 v9, s{t0}, v9')
    I(f's_add_u32 s{t0}, s{t0}, {12*256}')
    I('v_lshrrev_b32 v15, 1, v3'); I('v_lshlrev_b32 v15, 8, v15'); I('v_lshl_add_u32 v15, v2, 4, v15')
    I('v_and_b32 v16, 1, v3'); I('v_lshl_add_u32 v15, v16, 3, v15')
    I(f'v_add_u32 v10, s{t0}, v15')
    I(f's_lshl_b32 s{t0}, s{sJ}, 4'); I(f's_lshl_b32 s{t1}, s{sA}, 2'); I(f's_add_u32 s{t0}, s{t0}, s{t1}')
    I(f's_add_u32 s{t0}, s{t0}, s{sGB}'); I(f's_add_u32 s{t0}, s{t0}, {L.F_T}')
    I(f'v_add_u32 v11, s{t0}, v{vL0}')
    I(f'v_mov_b32 v13, s{sTAG}')
    I(f'v_add_u32 v14, {U0}, v4')
    for n in range(4): I(f's_mov_b32 s{sT[8+n]}, {PB[n]}')
    ru = o.get('ru', 0) and not o.get('dbg')
    if ru: I(f's_cmp_ge_u32 s{sJ}, 4'); I(f's_cselect_b32 s{sT[10]}, {TILE}, 0')
    up_addrs(k, vX, vS, vU, U0)
    for f in pend: f()
    e.wait_vm0(); k.stamp('a8'); k.bar('ex')
    for i in range(nT): tr2(k, A0 + 4*(n0+nH+i), aPD, (3+i)*4096, 512)
    if k.stop == 'x1': return
    sf = 'f' in o.get('sn', '')
    if sf:
        I(f'v_mov_b32 v11, {L_F2}'); I('v_mov_b32 v13, 0'); I('ds_write_b32 v11, v13')
        I(f'v_mov_b32 v15, {L.F_P}')
        def chk(): I(f'v_cmp_ne_u32 vcc, s{sTAG}, v16')
        k.poll3([f'buffer_load_dword v16, v15, {WS}, s{sGB} offen sc1'], chk, 'pf')
        k.stamp('a9')
    lf = o.get('lf', 11)
    e.wait_lg0(); k.bar('xj')
    for m in range(28 - lf, 28): w3_dma(k, aPA, sM, m, 1, RC + (m-17)*4096, 'f3')
    cs(n0 + nH, nT)
    k.split_a(C, AXT, C+1)
    I('s_setprio 2')
    k.bar('b8')
    def A4(b): return 32 + 28*(b & 3)
    def take_list(b):
        out = []
        for lam in range(7):
            reg = STEP_REG[b]
            vb = (VB2 if reg >= RB else VB) + (lam & 3)
            off = (reg - RB if reg >= RB else reg) + (lam >> 2)*4096
            for h in range(2):
                if o.get('notk'): out.append(lambda d=A4(b)+4*lam+2*h: [I(f'v_perm_b32 v{d+i}, v{d}, v{d+1}, s{sS}') for i in range(o['notk'] - 1)])
                else: out.append(lambda d=A4(b)+4*lam+2*h, vb=vb, off=off+1024*h: I(f'ds_read_b64_tr_b16 {vr(d,2)}, v{vb} offset:{off}', tag=f'r4_{b}'))
        return out
    m2 = o.get('m2', 27); rc = o.get('rc', 19)
    tk = take_list(0)
    def hk(m):
        if m == o.get('sf', 6):
            e.wait_vm0(); k.bar('f3')
            if ru: I('v_or_b32 v15, 3, v13'); k.stores([f'buffer_store_dword v15, v11, {WS}, 0 offen'])
        if m == rc: k.bar('rc')
        if m == 26: I(f'ds_read_b128 {vr(GC,4)}, v{vS} offset:16'); I(f'ds_read_b128 {vr(GC+4,4)}, v{vS} offset:1040')
        if m == m2:
            assert not tk
            e.wait_tag('r4_0'); k.bar('m2')
            tk.extend(take_list(1))
        if m >= rc:
            for _ in range(o.get('tkn', 2)):
                if tk: tk.pop(0)()
    up(k, AC, lambda m: A0 + 4*m if m < 28 else AXT, BB, vX, vS, {m: (lambda m=m: hk(m)) for m in range(29)})
    I(f's_setprio {o.get("pga", 0)}')
    k.stamp('u0')
    gl = []
    for Lq, Pk, off in gelu_groups(AC, GT, GC, PK, 2): gl += Lq + [f'ds_write_b128 v{vU}, {vr(Pk,4)} offset:{off}']
    a2 = o.get('a2', 35); a3 = o.get('a3', 110)
    for n, t in enumerate(gl):
        if n == a2:
            assert not tk
            e.wait_tag('r4_1'); k.bar('mb')
            tk = take_list(2)
        if n == a3:
            assert not tk
            e.wait_tag('r4_2'); k.stamp('g3'); k.bar('m3')
        if n % 20 == 0: k.stamp(f'g{n}')
        I(t)
        if tk and n % o.get('tkd', 2) == 0: tk.pop(0)()
    I(f's_setprio {o.get("pd", 1)}')
    e.wait_lg0(); k.bar('m6')
    DA = 144
    ua = o.get('ua', 4)
    UBR = [16, 20, 24]
    nk = 4
    seq = [(b, n) for b in range(nk) for n in range(4)] + [(b, n) for n in range(4) for b in range(nk, 8)]
    def u_rd(i):
        b, n = seq[i]
        I(f'ds_read_b128 {vr(UBR[i%3],4)}, v{14 if b < 4 else 4} offset:{(b&3)*4096 + n*1024}')
    def pack_list(n):
        Lq = []
        for pp in range(3):
            a = DA + 28*n + 8*pp
            for i in range(4): Lq.append(f'v_cvt_pk_bf16_f32 v{a+i}, v{a+2*i}, v{a+2*i+1}')
            Lq.append(f'v_permlane16_swap_b32 v{a}, v{a+2}'); Lq.append(f'v_permlane16_swap_b32 v{a+1}, v{a+3}')
            Lq.append(('st', f'buffer_store_dwordx4 {vr(a,4)}, v9, {WS}, s{sT[8+n]} offen offset:{pp*1024}', n))
        a = DA + 28*n + 24
        for i in range(2): Lq.append(f'v_cvt_pk_bf16_f32 v{a+i}, v{a+2*i}, v{a+2*i+1}')
        Lq.append(('st', f'buffer_store_dwordx2 {vr(a,2)}, v10, {WS}, s{sT[8+n]} offen', n))
        if sf: Lq += [f'v_mov_b32 v13, {n+1}', 'ds_write_b32 v11, v13']
        if n >= ua: Lq.append(('fu', n))
        return Lq
    def run_fill(x):
        if callable(x): x()
        elif isinstance(x, tuple):
            if x[0] == 'st' and x[2] < o.get('pn', 2): I(x[1] + ' sc1', tag=f'p{x[2]}')
            elif x[0] == 'st': k.stores([x[1]], tag=f'p{x[2]}')
            elif x[0] == 'fl' and x[1] >= ua: pass
            elif not sf:
                if x[0] == 'fl': e.wait_tag(f'p{x[1]}')
                k.stores([f'buffer_store_dword v13, v11, {WS}, 0 offen offset:{L.F_P - L.F_T + x[1]*128}'])
        else: I(x)
    fill = []
    d9 = o.get('d9', 14); d10 = o.get('d10', 22)
    assert 12 <= d9 <= 16 and 20 <= d10 <= 24
    nxt = 0
    for i, (b, n) in enumerate(seq):
        if i in (0, 4, 8): fill += take_list(3 + i//4)
        if i == o.get('d7', 3):
            e.wait_tag('r4_3'); k.bar('m7')
        if i == d9:
            k.bar('m9'); fill += take_list(6)
        if i == 16: fill += take_list(7)
        if i == d10: k.bar('m10')
        k.stamp(f'd{i}')
        lim = 16 if i < d9 else 24 if i < d10 else 32
        while nxt < min(lim, i + 3): u_rd(nxt); nxt += 1
        for lam in range(7):
            acc = DA + 28*n + 4*lam
            I(f'{MF16} {vr(acc,4)}, {vr(A4(b)+4*lam,4)}, {vr(UBR[i%3],4)}, ' + ('0' if b == 0 else vr(acc, 4)))
            if fill and not (i > 16 and b == nk and lam < 2): run_fill(fill.pop(0))
        if b == 7:
            assert not fill, len(fill)
            if n == 1 and o.get('m11', 0): k.bar()
            if n == 2 or (n == 3 and not o.get('ro')): run_fill(('fl', n - 2))
            fill = pack_list(n)
    k.stamp('dg')
    for x in fill: run_fill(x)
    if o.get('ro'): run_fill(('fl', 1))
    run_fill(('fl', 2))
    run_fill(('fl', 3))
    k.stamp('pp')

def j7_jobs(k):
    e, I, L = k.e, k.I, k.L
    t0, t1 = sT[0], sT[1]
    I(f's_and_b32 s{t0}, s{sG}, 3'); I(f's_lshl_b32 s{t0}, s{t0}, 3'); I(f's_add_u32 s{t0}, s{t0}, s{sW}')
    I(f's_mul_i32 s{t0}, s{t0}, 49'); I(f'v_add_u32 v15, s{t0}, v1')
    I('v_lshrrev_b32 v16, 1, v15'); I('v_lshlrev_b32 v16, 9, v16'); I('v_and_b32 v17, 1, v15'); I('v_lshl_add_u32 v16, v17, 7, v16')
    I('v_lshrrev_b32 v17, 5, v15'); I('v_mul_u32_u24 v17, 9363, v17'); I('v_lshrrev_b32 v17, 16, v17')
    I(f'v_mul_u32_u24 v17, {229376 - 224*128}, v17'); I('v_lshl_add_u32 v17, v15, 7, v17')
    I('v_cmp_gt_u32 vcc, 49, v1'); I(f'v_cndmask_b32 v16, v{vBIG}, v16, vcc'); I(f'v_cndmask_b32 v17, v{vBIG}, v17, vcc')
    I(f's_mul_i32 s{t0}, s{sW}, 56'); I(f'v_add_u32 v15, s{t0}, v1'); I('v_lshlrev_b32 v15, 7, v15')
    I('v_cmp_gt_u32 vcc, 56, v1'); I(f'v_cndmask_b32 v15, v{vBIG}, v15, vcc')
    k.jn = 0
    for ch in k.o.get('j7', 'b4p'):
        if ch in 'ab':
            for i in range(4):
                I(f's_mov_b32 s{t1}, {i*784*512 + (256 if ch == "b" else 0)}')
                I(f'buffer_load_dword v{32+i}, v16, {srd("w3")}, s{t1} offen'); e.barrier()
        if ch == '4':
            for b in range(8):
                I(f's_mov_b32 s{t1}, {b*28672}')
                I(f'buffer_load_dword v{36+b}, v17, {srd("w4")}, s{t1} offen'); e.barrier()
        if ch == '2':
            I(f's_and_b32 s{t0}, s{sG}, 3'); I(f's_lshl_b32 s{t0}, s{t0}, 3'); I(f's_add_u32 s{t0}, s{t0}, s{sW}'); I(f's_mul_i32 s{t0}, s{t0}, {49*128}')
            I('v_min_u32 v18, 48, v1'); I('v_lshlrev_b32 v18, 7, v18')
            I(f'buffer_load_dword v58, v18, {srd("w2")}, s{t0} offen'); e.barrier()
            I(f's_add_u32 s{t0}, s{t0}, {1568*128}')
            I(f'buffer_load_dword v59, v18, {srd("w2")}, s{t0} offen'); e.barrier()
        if ch == 'm':
            I(f's_lshl_b32 s{t0}, s{sG}, 3'); I(f's_add_u32 s{t0}, s{t0}, s{sW}')
            I(f's_mul_i32 s{t1}, s{t0}, {49*128}'); I(f's_mul_i32 s{t0}, s{t0}, {13*128}')
            I('v_min_u32 v18, 48, v1'); I('v_lshlrev_b32 v18, 7, v18'); I('v_min_u32 v19, 12, v1'); I('v_lshlrev_b32 v19, 7, v19')
            I(f'buffer_load_dword v60, v18, {srd("w3")}, s{t1} offen'); e.barrier()
            I(f'buffer_load_dword v61, v19, {srd("w2")}, s{t0} offen'); e.barrier()
            I(f'buffer_load_dword v62, v18, {srd("w4")}, s{t1} offen'); e.barrier()
        if ch in 'HTqX':
            I(f's_add_u32 s{t1}, s{sGB}, {dict(H=L.H, T=L.T0, X=L.X1, q=PB[3] + 3*TILE)[ch]}')
            I(f'buffer_load_dword v{70+"HTqX".index(ch)}, v15, {WS}, s{t1} offen sc1'); e.barrier()
        if ch in 'PQR':
            n = 2 - 'PQR'.index(ch)
            for i, off in enumerate([PB[n], PB[n] + 3*TILE]):
                I(f's_add_u32 s{t1}, s{sGB}, {off}')
                I(f'buffer_load_dword v{80+2*n+i}, v15, {WS}, s{t1} offen sc1'); e.barrier()
        if ch == 'w': e.wait_vm0(); k.stamp(f'j{k.jn}'); k.jn += 1
        if ch == 'p':
            nt = 7*(4 - k.o.get('pn', 2))
            for i, off in enumerate([PB[3] + min(4*c, nt - 4)*TILE for c in reversed(range((nt + 3)//4))]):
                I(f's_add_u32 s{t1}, s{sGB}, {off}')
                I(f'buffer_load_dword v{44+i}, v15, {WS}, s{t1} offen sc1'); e.barrier()
        if ch == 'f':
            for i in range(4): I(f'v_mov_b32 v{64+i}, -1')
            I(f's_lshl_b32 s{t0}, s{sW}, 10'); I(f'v_add_u32 v18, s{t0}, v4'); I(f'v_add_u32 v18, s{sGB}, v18')
            I(f's_and_b32 s{t0}, s{sW}, 1'); I(f's_lshl_b32 s{t0}, s{t0}, 10'); I(f'v_add_u32 v19, s{t0}, v4'); I(f'v_add_u32 v19, s{sGB}, v19')
            for n in range(4):
                for i in range(13):
                    I(f's_mov_b32 s{t1}, {PB[n] + i*8192}')
                    st = f'buffer_store_dwordx4 v[64:67], v{18 if i < 12 else 19}, {WS}, s{t1} offen'
                    if n < k.o.get('pn', 2): I(st + ' sc1')
                    else: k.stores([st])
                    if k.o.get('fb', 1): e.barrier()
                e.wait_vm0()
            e.barrier()
            I(f's_add_u32 s{t1}, s{sGB}, {L.F_P}')
            k.stores([f'buffer_store_dword v{vTAG}, v{vL0}, {WS}, s{t1} offen'])
            k.stamp('jf')
    e.wait_vm0()
```

```python
from g5 import *
import g4
from g4 import GA, GB_, f32, pack_pairs, row_stats, stat_addrs, gelu_consts

vZ, vBIG, vL0, vSIG, vTAG, vB, vST = 13, 20, 21, 26, 27, 28, 29
SB = [5, 6, 7, 8]
BF = 76
AW, OAC, NB = 132, 116, 10
sOW, sOT = sX0, sX1
XS = 10*4096
L_G = 159744
vSA, vSB, vCA = 30, 31, 40
vFW, vFR, vFV, vFD, vFT = 251, 253, 23, 24, 25
aFW, aFR, aFV, aFD, aFT, aPA, aPD = 220, 221, 222, 223, 224, 225, 226
HR = 60
ACC = 44
BXT = 40
XA = 244
vTP, vHP, vHS, vTF, vOP, vHF = 250, 19, 252, 18, 254, 255
RES = 240
W3P = 228
U0, U1 = RC + 28672, RA
PB = [(36 - 7*n)*TILE for n in range(4)]
L_F2 = 162304
STEP_REG = [RB, RB + 28672, RC, RB, RB + 28672, RC, RA + 16384, RB]

def main_pre(k):
    I = k.I
    t0, t1 = sT[0:2]
    I(f's_lshl_b32 s{t0}, s{sG}, 6'); I(f's_lshl_b32 s{t1}, s{sW}, 4'); I(f's_add_u32 s{t0}, s{t0}, s{t1}')
    I(f'v_add_u32 v15, s{t0}, v2'); I('v_mul_u32_u24 v15, 896, v15')
    I(f's_lshl_b32 s{t0}, s{sJ}, 7')
    I('v_lshl_add_u32 v15, v3, 3, v15')
    for t in range(4):
        I(f'buffer_load_dwordx2 {vr(52+2*t,2)}, v15, {srd("x")}, s{t0} offen offset:{t*32}')

def main_addr1(k):
    I, L = k.I, k.L
    t0, t1, t2 = sT[0:3]
    I('v_bfe_u32 v15, v1, 2, 2')
    I('v_lshl_add_u32 v16, v3, 3, v15'); I('v_lshlrev_b32 v16, 7, v16')
    I('v_and_b32 v14, 3, v1'); I('v_lshl_add_u32 v16, v14, 3, v16')
    I('v_lshrrev_b32 v15, 1, v15'); I('v_and_b32 v14, 1, v3'); I('v_lshl_add_u32 v15, v14, 1, v15')
    I(f'v_lshl_add_u32 v39, v15, 5, v16')
    I(f's_and_b32 s{t1}, s{sW}, 2'); I(f's_and_b32 s{t2}, s{sW}, 1')
    I(f's_mul_i32 s{t0}, s{t1}, {TILE}'); I(f's_add_u32 s{t0}, s{t0}, s{sGB}')
    I(f'v_add_u32 v{vB}, s{t0}, v4')
    I(f's_mul_i32 s{sOW}, s{t2}, {TILE + 7168}'); I(f's_mul_i32 s{sOT}, s{t2}, {TILE - 7168}'); I(f's_sub_u32 s{sOT}, {TILE}, s{sOT}')
    I(f's_lshl_b32 s{t0}, s{t1}, 6'); I(f's_lshl_b32 s{t2}, s{t2}, 5'); I(f's_add_u32 s{t0}, s{t0}, s{t2}')
    I(f's_add_u32 s{t0}, s{t0}, s{sGB}'); I(f's_add_u32 s{t0}, s{t0}, {L.F_O}')
    I('v_and_b32 v15, 8, v1'); I('v_lshlrev_b32 v15, 3, v15'); I('v_and_b32 v16, 7, v1'); I('v_lshl_add_u32 v15, v16, 2, v15')
    I(f'v_add_u32 v{vOP}, s{t0}, v15')

def main_addr2(k):
    I, L = k.I, k.L
    t0, t1, t2, t3 = sT[0:4]
    assert k.o.get('hc')
    I(f's_mul_i32 s{t0}, s{sW}, {TILE}'); I(f's_add_u32 s{t0}, s{t0}, s{sGB}')
    I(f's_lshl_b32 s{t1}, s{sJ}, 11'); I(f's_add_u32 s{t0}, s{t0}, s{t1}')
    I(f'v_lshlrev_b32 v46, 8, v{vSIG}'); I('v_lshl_add_u32 v46, v2, 4, v46')
    I(f'v_add_u32 v{vST}, s{t0}, v46')
    I(f's_lshl_b32 s{t0}, s{sW}, 3'); I(f's_add_u32 s{t0}, s{t0}, s{sJ}'); I(f's_lshl_b32 s{t0}, s{t0}, 8')
    I(f's_add_u32 s{t0}, s{t0}, s{sGB}'); I(f's_add_u32 s{t0}, s{t0}, {L.ST}')
    I(f'v_add_u32 v9, s{t0}, v4')
    I('v_cmp_eq_u32 vcc, 0, v3'); I(f'v_cndmask_b32 v9, v{vBIG}, v9, vcc')
    stat_addrs(k, vSA, vSB)
    I(f'v_mov_b32 v{BXT+2}, 0'); I(f'v_mov_b32 v{BXT+3}, 0')
    I(f's_add_u32 s{t0}, s{sGB}, {L.GS + L.T0 - TILE}')
    I(f's_cmp_eq_u32 s{sG}, 31'); I(f's_cselect_b32 s{t0}, {BIG}, s{t0}')
    I(f's_sub_u32 s{t1}, s{sGB}, {L.GS - L.T0 - 4*TILE}')
    I(f's_cmp_eq_u32 s{sG}, 0'); I(f's_cselect_b32 s{t1}, {BIG}, s{t1}')
    I(f's_cmp_eq_u32 s{sW}, 3'); I(f's_cselect_b32 s{t0}, s{t0}, s{t1}')
    I(f's_cselect_b32 s{t2}, 0xc000c000, 0')
    I(f's_cmp_eq_u32 s{sW}, 0'); I(f's_cselect_b32 s{t2}, 0x00030003, s{t2}'); I(f's_mov_b32 s{t3}, s{t2}')
    I(f's_lshl_b32 s{t1}, s{sJ}, 11'); I(f's_add_u32 s{t0}, s{t0}, s{t1}')
    I('v_and_b32 v15, 1, v2'); I(f'v_lshl_add_u32 v15, v{vSIG}, 1, v15'); I('v_lshlrev_b32 v15, 4, v15'); I(f'v_add_u32 v15, s{t0}, v15')
    I(f'v_cndmask_b32 v{vHS}, v{vBIG}, v15, s[{t2}:{t3}]')
    if k.o.get('xb') == 1: I(f'v_mov_b32 v{vHS}, v{vBIG}')
    I(f's_and_b32 s{t2}, s{sW}, 1'); I(f's_lshl_b32 s{t3}, s{t2}, 1'); I(f's_sub_u32 s{t1}, s{t3}, 1')
    I('v_and_b32 v44, 1, v3'); I(f'v_add_u32 v44, s{t3}, v44')
    I('v_lshrrev_b32 v45, 1, v3')
    I('v_sub_u32 v15, v44, v3'); I('v_mul_u32_u24 v16, 28, v45'); I('v_add_u32 v15, v15, v16'); I('v_add_u32 v15, 12, v15')
    I('v_lshl_add_u32 v{0}, v15, 10, v39'.format(vCA))
    I(f's_lshl_b32 s{t2}, s{t2}, 12'); I(f's_add_u32 s{t2}, s{t2}, s{sGB}')
    for q in range(3):
        u = 'v44' if q == 2 else 'v3'
        if q == 2:
            I('v_mul_u32_u24 v16, 7168, v45'); I(f'v_add_u32 v16, s{sGB}, v16'); I('v_add_u32 v16, 3072, v16')
            I('v_add_u32 v45, 1, v45'); I(f'v_mul_i32_i24 v45, s{t1}, v45')
        elif q == 0: I(f'v_mov_b32 v16, s{t2}')
        if q != 1:
            I(f'v_lshl_add_u32 v16, {u}, 8, v16'); I(f'v_mul_i32_i24 v48, -14, {u}')
        for n in range(2):
            X = XA + 3*n + q
            I(f's_xor_b32 s{t0}, s{sW}, {1-n}'); I(f's_lshl_b32 s{t0}, s{t0}, 4'); I(f's_add_u32 s{t0}, s{t0}, 16')
            if q < 2:
                for _ in range(q + 1): I(f's_add_u32 s{t0}, s{t0}, s{t1}')
                I(f'v_add_u32 v14, s{t0}, v2')
            else: I(f'v_add3_u32 v14, s{t0}, v2, v45')
            if k.o.get('xa') == 1: I('v_mov_b32 v15, 79'); I('v_med3_i32 v14, v14, 16, v15')
            I(f'v_lshrrev_b32 v{X}, 4, v14'); I(f'v_mul_u32_u24 v{X}, {TILE}, v{X}')
            I('v_add_u32 v15, -16, v14'); I('v_cmp_lt_u32 vcc, 63, v15')
            I('v_and_b32 v15, 1, v14'); I('v_and_b32 v14, 15, v14'); I('v_add_u32 v15, v15, v48'); I('v_cndmask_b32 v14, v14, v15, vcc')
            I(f'v_lshl_add_u32 v{X}, v14, 4, v{X}')
            I(f'v_add_u32 v{X}, v{X}, v16')
    I(f's_lshl_b32 s{t0}, s{sW}, 5'); I(f's_lshl_b32 s{t2}, s{sJ}, 2'); I(f's_add_u32 s{t0}, s{t0}, s{t2}')
    I(f's_add_u32 s{t2}, s{sGB}, {L.F_T}'); I(f's_add_u32 s{t0}, s{t0}, s{t2}')
    I(f'v_add_u32 v{vTF}, s{t0}, v{vL0}')
    I(f's_and_b32 s{t0}, s{sW}, 2'); I(f's_lshl_b32 s{t0}, s{t0}, 5'); I(f's_mul_i32 s{t1}, s{t3}, 6'); I(f's_add_u32 s{t0}, s{t0}, s{t1}'); I(f's_add_u32 s{t0}, s{t0}, s{t2}')
    I('v_and_b32 v15, 4, v1'); I('v_lshlrev_b32 v15, 3, v15'); I('v_and_b32 v16, 3, v1'); I('v_lshl_add_u32 v15, v16, 2, v15')
    I(f'v_add_u32 v{vHF}, s{t0}, v15')
    I(f's_mov_b32 s{t0}, 0x66665321'); I(f's_cmp_eq_u32 s{t3}, 0'); I(f's_cselect_b32 s{t0}, 0x55554310, s{t0}')
    I('v_and_b32 v16, 7, v1'); I('v_lshlrev_b32 v16, 2, v16'); I(f'v_lshrrev_b32 v16, v16, s{t0}'); I('v_and_b32 v16, 7, v16'); I('v_lshlrev_b32 v16, 2, v16')
    I('v_lshrrev_b32 v15, 3, v1'); I('v_min_u32 v15, 2, v15'); I(f'v_add_u32 v15, s{sW}, v15'); I('v_add_u32 v15, -1, v15')
    I('v_med3_i32 v15, v15, 0, 3')
    I('v_lshl_add_u32 v15, v15, 5, v16'); I(f'v_add_u32 v{vTP}, s{t2}, v15')
    I(f's_mov_b32 s{t0}, {BIG}')
    if not k.o.get('xa'):
        I(f's_cmp_eq_u32 s{sW}, 0'); I(f's_cselect_b32 s{t0}, {L.T0 - TILE}, s{t0}')
        I(f's_cmp_eq_u32 s{sW}, 3'); I(f's_cselect_b32 s{t0}, {L.T0 + 4*TILE + 3072}, s{t0}')
    I(f's_add_u32 s{t0}, s{t0}, s{sGB}')
    I('v_and_b32 v15, 3, v1'); I('v_bfe_u32 v16, v1, 2, 1'); I('v_mul_u32_u24 v16, 7, v16'); I('v_add_u32 v15, v15, v16')
    I('v_lshlrev_b32 v15, 10, v15'); I(f'v_add_u32 v{vHP}, s{t0}, v15')

def early_addr(k):
    main_addr1(k); main_addr2(k)
    g_addr(k, vFW, vFR, vFV, False)
def hinit(k):
    for t in range(4):
        for d in range(2):
            k.I(f'v_lshlrev_b32 v{HR+4*t+2*d}, 16, v{52+2*t+d}')
            k.I(f'v_and_b32 v{HR+4*t+2*d+1}, 0xffff0000, v{52+2*t+d}')

def t_prefill(k):
    I, L = k.I, k.L
    t0, t1, t2 = sT[0:3]
    for i in range(4): I(f'v_mov_b32 v{76+i}, -1')
    I(f's_lshl_b32 s{t1}, s{sJ}, 11'); I(f's_add_u32 s{t1}, s{t1}, s{sGB}')
    I(f's_cmp_eq_u32 s{sJ}, 7'); I(f's_cselect_b32 s{t1}, {BIG}, s{t1}')
    I(f's_mul_i32 s{t0}, s{sW}, {TILE}'); I(f's_add_u32 s{t0}, s{t0}, s{t1}')
    I(f's_and_b32 s{t2}, s{sW}, 1'); I(f's_lshl_b32 s{t2}, s{t2}, 10'); I(f's_add_u32 s{t1}, s{t1}, s{t2}')
    I(f'v_add_u32 v15, s{t0}, v4'); I(f'v_add_u32 v16, s{t1}, v4')
    I(f's_mov_b32 s{t0}, {L.H}'); I(f's_mov_b32 s{t1}, {L.T0}'); I(f's_mov_b32 s{t2}, {L.X1}')
    st = []
    for so in [dict(h=f's{t0}', t=f's{t1}', x=f's{t2}')[c] for c in k.o.get('kpf', 'htx')]:
        st += [f'buffer_store_dwordx4 v[76:79], v15, {WS}, {so} offen', f'buffer_store_dwordx4 v[76:79], v15, {WS}, {so} offen offset:1024',
               f'buffer_store_dwordx4 v[76:79], v16, {WS}, {so} offen']
    k.stores(st)

def spin_tail(k, top, done):
    I = k.I
    I(f's_cbranch_vccz {done}')
    I(f's_sub_u32 s{sSPIN}, s{sSPIN}, 1')
    I(f's_cbranch_scc0 {top}')
    I(f's_mov_b32 s{sSPIN}, 0')
    I(f's_branch {done}')
def ool(k, fn):
    e = k.e
    sn = e.snap()
    save = e.out; e.out = []
    fn()
    e.ool += e.out; e.out = save
    e.restore(sn)

def a_preload(k, base, steps, comb=False):
    I = k.I
    t0 = sT[0]
    I(f's_and_b32 s{t0}, s{sW}, 1'); I(f's_mul_i32 s{t0}, s{t0}, {16384 if comb else 28672}'); I(f's_add_u32 s{t0}, s{t0}, {base}')
    I(f'v_add_u32 v{SB[0]}, s{t0}, v39')
    for t in range(1, 4): I(f'v_xor_b32 v{SB[t]}, {t*32}, v{SB[0]}')
    for i, m in enumerate(steps):
        if m is None:
            for t in range(4): I(f'v_xor_b32 v{SB[t]}, {t*32}, v{vCA}')
            m = 0
        for t in range(4):
            for h in range(2): I(f'ds_read_b64_tr_b16 {vr(AW+16*i+4*t+2*h,2)}, v{SB[t]} offset:{m*4096 + h*512}')
def x_addr(k, base):
    I = k.I
    t0 = sT[0]
    I(f's_lshl_b32 s{t0}, s{sW}, 12'); I(f's_add_u32 s{t0}, s{t0}, {base + XS}')
    I(f'v_add_u32 v5, s{t0}, v4'); I('v_xor_b32 v6, 4096, v5'); I(f'v_xor_b32 v7, 4, v{vFW}')
def b_soff(k, region):
    for i in range(4): k.I(f's_add_u32 s{sT[4+i]}, s{(sOT, sOW)[i >> 1]}, {region + (i & 1)*4096}')
def b_src(p): return f'v{vB}, {WS}, s{sT[4 + 2*(p//7) + ((p%7) >> 2)]} offen offset:{((p%7)&3)*1024} sc1'
def kgemm(k, own, src, il, sg, rnd, need, init, zero=False, vf=(), v0=0, v1=13, nm='_', hooks={}, chk=True, fin=()):
    I, e, o = k.I, k.e, k.o
    vf = list(vf); fin = list(fin)
    il = [int(c, 36) for c in il] + [0]*16
    ld = [f'buffer_load_dwordx4 {vr(BF+4*(p%NB),4)}, {src(p)}' for p in range(14)]
    def loads(n, free):
        for _ in range(n):
            if ld:
                assert 14 - len(ld) - NB < free
                I(ld.pop(0))
                if 14 - len(ld) == sg: g_wr(k, 2*rnd)
    def mf(p, t, slot, z):
        acc = (OAC if p < 7 else own) + 4*t
        I(f'{MF16} {vr(acc,4)}, {vr(AW+16*(p%7)+4*t,4)}, {vr(BF+4*slot,4)}, ' + ('0' if z else vr(acc, 4)))
    def redo(p0, acc, name):
        done, retry = e.newlabel('Lnd'), e.newlabel('Lnr')
        I(f'v_cmp_u_f32 vcc, v{acc}, v{acc}')
        I(f's_cbranch_vccnz {retry}')
        e.label(done)
        def stub():
            e.label(retry)
            k.stamp(name)
            e.nop(16); e.wait_vm0()
            if p0 and not zero: init()
            sl = [4, 5, 6] if p0 == 0 else [0, 1, 2, 3, 8, 9]
            for c in range(0, 7, len(sl)):
                ps = range(p0 + c, min(p0 + c + len(sl), p0 + 7))
                for p in ps: I(f'buffer_load_dwordx4 {vr(BF+4*sl[p-p0-c],4)}, {src(p)}')
                for p in ps:
                    for t in range(4): mf(p, t, sl[p-p0-c], p == p0 and (zero or p0 == 0))
                e.nop(16)
            I(f'v_cmp_u_f32 vcc, v{acc}, v{acc}')
            spin_tail(k, retry, done)
        ool(k, stub)
    rds = [f'ds_read_b32 v{vFD}, v7 offset:32'] + [f'ds_read_b128 {vr(OAC+4*t,4)}, v6 offset:{t*1024}' for t in range(4)]
    def pchk():
        k.stamp('x' + nm + 'e')
        k.lpoll(rds, lambda: I(f'v_cmp_gt_u32 vcc, {rnd}, v{vFD}'), 'x')
        k.stamp(nm + 'e')
    if sg == 0: g_wr(k, 2*rnd)
    loads(il[0], 0)
    if -1 in hooks: hooks[-1]()
    per = -(-len(vf) // (4*(v1 - v0)))
    xw, xr = o.get('xwp', 7), o.get('xrp', 10)
    for p in range(14):
        n = il[p + 1]
        assert len(ld) < 14 - p
        r = k.sreg(nm + str(p))
        if r: e._emit(f's_memrealtime s[{r}:{r+1}]')
        for t in range(4):
            mf(p, t, p % NB, p == 0 or (p == 7 and zero))
            loads(n*(t+1)//4 - n*t//4, p + (t == 3))
            if p >= v0:
                for _ in range(per):
                    if vf: I(vf.pop(0))
                while vf and ('cselect' in vf[0] or 'vcc' in vf[0].split(',')[-1] or 's[' in vf[0].split(',')[-1]): I(vf.pop(0))
            if p == 13:
                for _ in range(2):
                    if fin: I(fin.pop(0))
        if p == 4: I(g_rd())
        if p == 6: g_chk(k, *need)
        if p == xw:
            if chk: redo(0, OAC, nm + 'r')
            for t in range(4): I(f'ds_write_b128 v5, {vr(OAC+4*t,4)} offset:{t*1024}')
            I(f'v_mov_b32 v{vFV}, {rnd}'); I(f'ds_write_b32 v{vFW}, v{vFV} offset:32')
        if p == xr:
            for t in rds: I(t)
        if p == 12: pchk()
        if p in hooks: hooks[p]()
    assert not vf and not ld and not fin
    if chk: redo(7, own, nm + 's')
    for i in range(0, 16, 2): I(f'v_pk_add_f32 {vr(own+i,2)}, {vr(own+i,2)}, {vr(OAC+i,2)}')
def g_addr(k, W, R, V, aux):
    I = k.I
    t0 = sT[0]
    I(f's_lshl_b32 s{t0}, s{sW}, 2'); I(f's_add_u32 s{t0}, s{t0}, {L_G}'); I(f'v_mov_b32 v{W}, s{t0}')
    I(f'v_and_b32 v{R}, 7, v1'); I(f'v_lshlrev_b32 v{R}, 2, v{R}'); I(f'v_add_u32 v{R}, {L_G}, v{R}')
def k0_init(k):
    k.I(f'v_mov_b32 v16, {L_G}'); k.I('v_lshl_add_u32 v16, v2, 2, v16'); k.I('ds_write_b32 v16, v13')
MFL = [vFW, vFR]
def g_wr(k, n, aux=False):
    W, V = (aFW, aFV) if aux else (MFL[0], vFV)
    k.I(f'v_mov_b32 v{V}, {n}'); k.I(f'ds_write_b32 v{W}, v{V}')
def g_rd(aux=False): return f'ds_read_b32 v{aFD}, v{aFR}' if aux else f'ds_read_b32 v{vFD}, v{MFL[1]}'
def g_chk(k, nm, na, aux=False, name=None):
    D, T = (aFD, aFT) if aux else (vFD, vFT)
    if name: k.stamp('x' + name)
    k.I(f'v_cndmask_b32 v{T}, {nm}, {na}, s[0:1]')
    k.lpoll([g_rd(aux)], lambda: k.I(f'v_cmp_gt_u32 vcc, v{T}, v{D}'), 'g')
    if name: k.stamp(name)
def g_wait(k, nm, na, name=None):
    k.I(g_rd(True)); g_chk(k, nm, na, True, name)
def poll_stats(k, tagbits, name, D, va, vb):
    I = k.I
    I(f's_or_b32 s{sN}, s{sTAG}, {tagbits}')
    def chk():
        I(f'v_cmp_ne_u32 vcc, s{sN}, v{D+2}')
        I(f'v_cmp_ne_u32 s[{sT[2]}:{sT[3]}], s{sN}, v{D+6}')
        I(f's_or_b64 vcc, vcc, s[{sT[2]}:{sT[3]}]')
    k.poll3([f'buffer_load_dwordx3 {vr(D,3)}, v{va}, {WS}, 0 offen sc1',
             f'buffer_load_dwordx3 {vr(D+4,3)}, v{vb}, {WS}, 0 offen sc1'], chk, name)

def tr2(k, dst, vb, off, step, tag=None):
    k.I(f'ds_read_b64_tr_b16 {vr(dst,2)}, v{vb} offset:{off}', tag=tag)
    k.I(f'ds_read_b64_tr_b16 {vr(dst+2,2)}, v{vb} offset:{off+step}', tag=tag)

def w3_src(k, V):
    I = k.I
    t0, t1 = sT[0], sT[1]
    I(f's_lshl_b32 s{t0}, s{sJ}, 9'); I(f's_lshr_b32 s{t1}, s{sA}, 1'); I(f's_lshl_b32 s{t1}, s{t1}, 7'); I(f's_add_u32 s{t0}, s{t0}, s{t1}')
    I(f's_and_b32 s{t1}, s{sA}, 1'); I(f's_mul_i32 s{t1}, s{t1}, {8*3584}'); I(f's_add_u32 s{t0}, s{t0}, s{t1}')
    I(f's_cmp_eq_u32 s{sJ}, 7'); I(f's_cselect_b32 s{t0}, {BIG}, s{t0}')
    I(f'v_lshrrev_b32 v15, 3, v1'); I(f'v_mul_u32_u24 v{V}, 3584, v15')
    I('v_bfe_u32 v15, v1, 4, 1'); I('v_lshlrev_b32 v15, 2, v15'); I('v_and_b32 v16, 7, v1'); I('v_xor_b32 v15, v15, v16')
    I(f'v_lshl_add_u32 v{V}, v15, 4, v{V}'); I(f'v_add_u32 v{V}, s{t0}, v{V}')
def w3_rd_base(k, V, base):
    I = k.I
    t0, t1 = sT[0], sT[1]
    I('v_lshrrev_b32 v15, 5, v1'); I('v_lshlrev_b32 v15, 3, v15')
    I('v_bfe_u32 v17, v1, 2, 2'); I('v_add_u32 v15, v15, v17')
    I('v_and_b32 v16, 3, v1')
    I(f'v_and_b32 v{V}, 1, v3'); I(f'v_lshlrev_b32 v{V}, 5, v{V}'); I(f'v_lshl_add_u32 v{V}, v16, 3, v{V}')
    I(f'v_lshl_add_u32 v{V}, v15, 7, v{V}')
    I('v_lshrrev_b32 v17, 1, v17'); I(f'v_lshl_add_u32 v{V}, v17, 6, v{V}')
    I(f's_and_b32 s{t0}, s{sA}, 1'); I(f's_lshl_b32 s{t0}, s{t0}, 6'); I(f'v_xor_b32 v{V}, s{t0}, v{V}')
    I(f's_lshr_b32 s{t0}, s{sA}, 1'); I(f's_lshl_b32 s{t0}, s{t0}, 11'); I(f's_add_u32 s{t0}, s{t0}, {base}')
    I(f'v_add_u32 v{V}, s{t0}, v{V}')
def w3_dma(k, V, sM, m, half, dest, tag):
    I = k.I
    t1 = sT[1]
    I(f's_add_u32 m0, s{sM}, {dest}')
    I(f's_mov_b32 s{t1}, {m*16*3584 + half*256}')
    I(f'buffer_load_dwordx4 v{V}, {srd("w3")}, s{t1} offen lds', tag=tag)
UR = 15*TILE
D_A, D_R, D_M = 0, RC + 3*8192, 65536
sWa, sWb, sUa, sUb = sT[4:8]
def w4_src(k, V):
    I = k.I
    t0, t1 = sT[0], sT[1]
    I(f's_mul_i32 s{t0}, s{sA}, {32*896}'); I(f's_lshl_b32 s{t1}, s{sJ}, 7'); I(f's_add_u32 s{t0}, s{t0}, s{t1}')
    I(f'v_lshrrev_b32 v15, 3, v1'); I(f'v_mul_u32_u24 v{V}, 896, v15')
    I('v_bfe_u32 v15, v1, 4, 1'); I('v_lshlrev_b32 v15, 2, v15'); I('v_and_b32 v16, 7, v1'); I('v_xor_b32 v15, v15, v16')
    I(f'v_lshl_add_u32 v{V}, v15, 4, v{V}'); I(f'v_add_u32 v{V}, s{t0}, v{V}')
    I(f'v_add_u32 v{V+1}, {7168 - 1024}, v{V}')
def rot_regs(k):
    I = k.I
    I(f's_mul_i32 s{sWa}, s{sJ}, {256*896}'); I(f's_sub_u32 s{sWb}, s{sWa}, {7*256*896}')
    I(f's_lshl_b32 s{sUa}, s{sJ}, 13'); I(f's_sub_u32 s{sUb}, s{sUa}, {7 << 13}')
def w4_dma(k, V, s, half, sM, dest, sS, tag):
    I = k.I
    i, gp = s >> 1, s & 1
    def f0():
        if k.o.get('now4'): return
        I(f's_cmp_ge_u32 s{sJ}, {7 - i}'); I(f's_cselect_b32 s{sS}, s{sWb}, s{sWa}')
        I(f's_add_u32 m0, s{sM}, {dest}')
        I(f's_add_u32 s{sS}, s{sS}, {(256*i + 128*half + 16*gp)*896}')
        I(f'buffer_load_dwordx4 v{V}, {srd("w4")}, s{sS} offen lds', tag=tag)
    def f1():
        if k.o.get('now4'): return
        I(f'buffer_load_dwordx4 v{V+1}, {srd("w4")}, s{sS} offen offset:1024 lds', tag=tag)
    return [f0, f1]
def w4_rd_base(k, V, sM, base):
    I = k.I
    I('v_lshrrev_b32 v15, 5, v1'); I('v_bfe_u32 v16, v1, 2, 2'); I('v_lshl_add_u32 v15, v15, 2, v16')
    I(f'v_and_b32 v{V}, 1, v3'); I(f'v_lshlrev_b32 v{V}, 5, v{V}'); I('v_and_b32 v16, 3, v1'); I(f'v_lshl_add_u32 v{V}, v16, 3, v{V}')
    I(f'v_lshl_add_u32 v{V}, v15, 7, v{V}')
    I('v_bfe_u32 v16, v1, 3, 1'); I(f'v_lshl_add_u32 v{V}, v16, 6, v{V}')
    I(f'v_add_u32 v{V}, s{sM}, v{V}'); I(f'v_add_u32 v{V}, {base}, v{V}')
    I(f'v_xor_b32 v{V+1}, 64, v{V}')
def w4_rd(k, V, W, off, tag):
    return [(lambda c=c, h=h: k.I(f'ds_read_b64_tr_b16 {vr(W+4*c+2*h,2)}, v{V+c} offset:{off + h*1024}', tag=tag)) for c in range(2) for h in range(2)]
def u_addrs(k, half, vUA, vPL, vFL):
    I, L = k.I, k.L
    t0, t1 = sT[0], sT[1]
    ru = half and k.o.get('ru', 1) and not k.o.get('dbg')
    b0, b1 = (L.X1, L.T0) if ru else (UR + half*8*TILE, UR + (half*8 + 4)*TILE)
    I(f's_and_b32 s{t0}, s{sA}, 1'); I(f's_lshl_b32 s{t0}, s{t0}, 12'); I(f's_lshr_b32 s{t1}, s{sA}, 1'); I(f's_mul_i32 s{t1}, s{t1}, {b1 - b0}')
    I(f's_add_u32 s{t0}, s{t0}, s{t1}'); I(f's_add_u32 s{t0}, s{t0}, s{sGB}'); I(f's_add_u32 s{t0}, s{t0}, {b0}')
    I(f'v_add_u32 v{vUA}, s{t0}, v4')
    I(f's_lshl_b32 s{t0}, s{sA}, 5'); I(f's_add_u32 s{t0}, s{t0}, s{sGB}'); I(f's_add_u32 s{t0}, s{t0}, {L.F_T}')
    I(f'v_min_u32 v15, 6, v1'); I(f'v_lshlrev_b32 v15, 2, v15'); I(f'v_add_u32 v{vPL}, s{t0}, v15')
    I(f's_lshl_b32 s{t1}, s{sJ}, 2'); I(f's_add_u32 s{t0}, s{t0}, s{t1}')
    I(f'v_add_u32 v{vFL}, s{t0}, v{vL0}')
def dump_addr(k, V, base):
    I = k.I
    t0 = sT[0]
    I(f's_lshl_b32 s{t0}, s{sA}, 14'); I(f's_add_u32 s{t0}, s{t0}, {base}')
    I(f'v_bfe_u32 v{V+1}, v1, 1, 3'); I(f'v_lshrrev_b32 v{V+2}, 5, v1'); I(f'v_xor_b32 v{V+1}, v{V+1}, v{V+2}')
    I(f'v_and_b32 v{V}, 31, v1'); I(f'v_lshlrev_b32 v{V}, 7, v{V}'); I(f'v_lshl_add_u32 v{V}, v{V+1}, 4, v{V}'); I(f'v_add_u32 v{V}, s{t0}, v{V}')
    for g in range(1, 4): I(f'v_xor_b32 v{V+g}, {g*32}, v{V}')
class R: pass
def upg(k, r, afn, ev, pre=True, only=False):
    I, e, o = k.I, k.e, k.o
    n = o.get('ud', 4)
    bm = (lambda i: (i & 1, i >> 1)) if r.alt else (lambda i: divmod(i, 29))
    def b_rd(i):
        b, m = bm(i)
        d = vr(r.BB + 4*(i % n), 4)
        if m < 28: I(f'ds_read_b128 {d}, v{r.vX} offset:{b*2*TILE + m*512}')
        else: I(f'ds_read_b128 {d}, v{r.vS} offset:{b*1024}')
    if pre:
        for i in range(n - 1): b_rd(i)
    if only: return
    gg = gelu_groups(r.AC, r.GT, r.GC, r.PK, r.pk)
    def flat(gs, tag):
        out = []
        for Lq, P, off in gs:
            out += Lq + [lambda P=P, off=off: k.stores([f'buffer_store_dwordx4 {vr(P,4)}, v{r.vUA}, {WS}, s{sUa} offen offset:{off}'], tag=tag)]
        return out
    add = [[f'v_add_f32 v{r.AC+16*b+i}, v{r.AC+16*b+i}, v{r.AX+i}' for i in range(16)] for b in range(2)]
    g0, g1 = flat(gg[:2], 'u0'), add[1] + flat(gg[2:], 'u1')
    if r.alt: g0, g1 = [], g0 + g1[16:]
    def run(x): x() if callable(x) else I(x)
    i0 = 29 + o.get('gi0', 2); per = o.get('gpm', 7)
    wt = lambda x: 2 if callable(x) else o.get('gtw', 3) if 'v_exp' in x or 'v_rcp' in x else 1
    done = 0
    for i in range(58):
        b, m = bm(i)
        if i + n - 1 < 58: b_rd(i + n - 1)
        x0 = 99 if r.alt else 2 if b else 1
        odd = m >= x0 and (m - x0) % 2 == 0
        acc = vr(r.AX if odd else r.AC + 16*b, 16)
        I(f'{MF32} {acc}, {vr(afn(m),4)}, {vr(r.BB + 4*(i % n),4)}, ' + ('0' if m in (0, x0) else acc))
        if i == 30 and not r.alt:
            for t in add[0]: I(t)
        k.stamp(f'{r.nm}u{i}')
        for f in ev.pop(i, []): f()
        while i >= i0 and g0 and done + wt(g0[0])//2 < (i - i0 + 1)*per:
            if callable(g0[0]): assert i >= r.st0
            done += wt(g0[0]); run(g0.pop(0))
    for f in ev.pop(99, []): f()
    for x in g0: run(x)
    k.stamp(r.nm + 'a')
    for i, x in enumerate(g1):
        for f in ev.pop(100 + i, []): f()
        run(x)
    assert not ev, ev.keys()
    k.stamp(r.nm + 'b')
def u_flag(k, r, b):
    k.e.wait_tag(f'u{b}')
    k.stores([f'buffer_store_dword v{r.vTG}, v{r.vFL}, {WS}, 0 offen offset:{256 + r.half*128 + b*256}'])
    k.stamp(f'{r.nm}f{b}')
def u_poll(r, b): return [f'buffer_load_dword v{r.vD}, v{r.vPL}, {WS}, 0 offen offset:{256 + r.half*128 + b*256} sc1']
def down(k, r, free, hooks, L_, stage):
    I, e, o = k.I, k.e, k.o
    sS = sT[1]
    nm, Q = r.nm, r.Q
    slot = {(b, gp): r.PK[b] + 4*gp for b in range(2) for gp in range(2)}
    free = list(free)
    def mf(s, q): I(f'{MF32} {vr(Q[q],16)}, {vr(r.W0+8*s+4*(q&1),4)}, {vr(slot[q>>1,s],4)}, ' + ('0' if s == 0 else vr(Q[q], 16)))
    todo = [(0, s) for s in range(2, 14)]
    def loads(n):
        for _ in range(n):
            if not todo or not free: return
            b, s = todo.pop(0)
            slot[b, s] = free.pop(0)
            i, gp = s >> 1, s & 1
            if gp == 0:
                I(f's_cmp_ge_u32 s{sJ}, {7 - i}'); I(f's_cselect_b32 s{sS}, s{sUb}, s{sUa}'); I(f's_add_u32 s{sS}, s{sS}, {i << 13}')
            I(f'buffer_load_dwordx4 {vr(slot[b,s],4)}, v{r.vUA}, {WS}, s{sS} offen offset:{b*2048 + gp*1024} sc1')
    chk = lambda: I(f'v_cmp_ne_u32 vcc, s{sTAG}, v{r.vD}')
    def hook(x):
        for f in hooks.pop(x, []): f()
    if o.get('uq'): k.e.vm = [dict(x, tag=None) if x['tag'] == 'u1' else x for x in k.e.vm]; u_flag(k, r, 1)
    late = o.get(nm + 'q0', 999) >= 999
    if late:
        I(u_poll(r, 0)[0])
        hook('a')
        for s in range(o.get('ow0', 1)):
            for c in range(2): mf(s, c)
        if not o.get('uq'): u_flag(k, r, 1)
    k.poll2(u_poll(r, 0), chk, nm + '0')
    k.stamp(nm + 'p')
    loads(o.get(nm + 'l0', 10 if late else 4))
    for b in range(2):
        for s in range(2):
            if not (late and b == 0 and s < o.get('ow0', 1)):
                for c in range(2): mf(s, 2*b + c)
            if (b, s) not in r.keep: free.insert(0, slot[b, s])
        if b == o.get('fb1', 1) and not o.get('uq') and not late: u_flag(k, r, 1)
    if o.get('wf', 1): free = [r.W0 + 4*i for i in range(4)] + free
    loads(o.get(nm + 'l1', 8))
    hook('a')
    loads(12)
    p1, c1 = o.get(nm + 'p1', 4), o.get(nm + 'c1', 8)
    for s in range(2, 14):
        k.stamp(f'{nm}{s}')
        hook((0, s))
        if s == p1 and nm not in o.get('nop', '-'): I(u_poll(r, 1)[0])
        if s == c1:
            assert not todo
            if nm not in o.get('nop', '-'): k.poll2(u_poll(r, 1), chk, nm + '1')
            k.stamp(nm + 'q')
            todo += [(1, s) for s in range(2, 14)]
            loads(12)
        for c in range(2): mf(s, c)
        free.append(slot[0, s])
        loads(1)
    assert not todo
    k.stamp(nm + 'h')
    seq = [(s, q) for s in range(2, 14 - L_) for q in (2, 3)] + [(s, q) for q in (2, 3) for s in range(14 - L_, 14)]
    for n, (s, q) in enumerate(seq):
        hook((1, n))
        mf(s, q)
        stage(n)
    k.stamp(nm + 'g')
    stage(24)
    assert not hooks, hooks.keys()
def pat(k, P):
    I = k.I
    I('v_lshrrev_b32 v15, 2, v2'); I('v_and_b32 v16, 1, v3'); I('v_cmp_eq_u32 vcc, v15, v16')
    I(f'v_mov_b32 v15, 0x3f803f80')
    for i in range(4): I(f'v_cndmask_b32 v{P+i}, 0, v15, vcc')
def up_addrs(k, vX, vS):
    I = k.I
    t0 = sT[0]
    I('v_bfe_u32 v15, v1, 4, 1'); I(f'v_mul_u32_u24 v{vX}, {TILE}, v15')
    I(f'v_lshl_add_u32 v{vX}, v2, 4, v{vX}')
    I('v_lshrrev_b32 v16, 5, v1'); I(f'v_lshl_add_u32 v{vX}, v16, 8, v{vX}')
    I(f'v_and_b32 v{vS}, 31, v1'); I(f'v_lshlrev_b32 v{vS}, 5, v{vS}'); I(f'v_add_u32 v{vS}, {L_STAT}, v{vS}')
def gelu_groups(acc, GT, GC, PK, pk=0):
    out = []
    for b in range(2):
        G = GC + 4*b
        for gp in range(2):
            Lq = []
            x = acc + 16*b + 8*gp; tt = GT
            if 3 - (2*b + gp) < pk:
                c = 108
                Lq.append(f'v_mov_b32 v{c}, v{G+1}')
                for i in range(0, 8, 2): Lq.append(f'v_pk_mul_f32 {vr(tt+i,2)}, {vr(x+i,2)}, {vr(x+i,2)}')
                for i in range(0, 8, 2): Lq.append(f'v_pk_fma_f32 {vr(tt+i,2)}, {vr(tt+i,2)}, {vr(c,2)}, {vr(G,2)} op_sel_hi:[1,0,0]')
                for i in range(0, 8, 2): Lq.append(f'v_pk_mul_f32 {vr(tt+i,2)}, {vr(tt+i,2)}, {vr(x+i,2)}')
                for i in range(8): Lq.append(f'v_exp_f32 v{tt+i}, v{tt+i}')
                for i in range(0, 8, 2): Lq.append(f'v_pk_fma_f32 {vr(tt+i,2)}, {vr(tt+i,2)}, {vr(G+2,2)}, {vr(G+2,2)} op_sel_hi:[1,0,0]')
                for i in range(8): Lq.append(f'v_rcp_f32 v{tt+i}, v{tt+i}')
                for i in range(0, 8, 2): Lq.append(f'v_pk_mul_f32 {vr(x+i,2)}, {vr(x+i,2)}, {vr(tt+i,2)}')
            else:
                for i in range(8): Lq.append(f'v_mul_f32 v{tt+i}, v{x+i}, v{x+i}')
                for i in range(8): Lq.append(f'v_fma_f32 v{tt+i}, v{tt+i}, v{G+1}, v{G}')
                for i in range(8): Lq.append(f'v_mul_f32 v{tt+i}, v{tt+i}, v{x+i}')
                for i in range(8): Lq.append(f'v_exp_f32 v{tt+i}, v{tt+i}')
                for i in range(8): Lq.append(f'v_fma_f32 v{tt+i}, v{tt+i}, v{G+2}, v{G+2}')
                for i in range(8): Lq.append(f'v_rcp_f32 v{tt+i}, v{tt+i}')
                for i in range(8): Lq.append(f'v_mul_f32 v{x+i}, v{x+i}, v{tt+i}')
            P = PK[b] + 4*gp
            for i in range(4): Lq.append(f'v_cvt_pk_bf16_f32 v{P+i}, v{x+2*i}, v{x+2*i+1}')
            out.append((Lq, P, b*2048 + gp*1024))
    return out
def publish_stats(k, src, sreg, tagbits, T, mid=None, thru=False, ack=True, after=None, flag=()):
    e, I = k.e, k.I
    P = T
    pack_pairs(k, src, P)
    st = [f'buffer_store_dwordx4 {vr(P,4)}, v{vST}, {WS}, s{sreg} offen',
          f'buffer_store_dwordx4 {vr(P+4,4)}, v{vST}, {WS}, s{sreg} offen offset:1024']
    if thru:
        for t in st: I(t + ' sc1')
    else: k.stores(st + list(flag), tag='ds')
    if after: after()
    S = T + 8
    I(f'v_pk_add_f32 {vr(S,2)}, {vr(src,2)}, {vr(src+2,2)}')
    I(f'v_pk_mul_f32 {vr(S+2,2)}, {vr(src,2)}, {vr(src,2)}')
    I(f'v_pk_fma_f32 {vr(S+2,2)}, {vr(src+2,2)}, {vr(src+2,2)}, {vr(S+2,2)}')
    for i in range(4, 16, 2):
        I(f'v_pk_add_f32 {vr(S,2)}, {vr(S,2)}, {vr(src+i,2)}')
        I(f'v_pk_fma_f32 {vr(S+2,2)}, {vr(src+i,2)}, {vr(src+i,2)}, {vr(S+2,2)}')
    I(f'v_add_f32 v{S+4}, v{S}, v{S+1}')
    I(f'v_add_f32 v{S+5}, v{S+2}, v{S+3}')
    k.allred2(S+4, S+5, S, 'v_add_f32')
    I(f'v_or_b32 v{S+6}, {tagbits}, v{vTAG}')
    if ack: e.wait_vm0()
    k.stores([f'buffer_store_dwordx3 {vr(S+4,3)}, v9, {WS}, 0 offen'])
    if mid: mid()

def x1_dma(k, m0_, vaddr):
    I = k.I
    t0, t1 = sT[0], sT[1]
    I(f's_mul_i32 s{t0}, s{sA}, {TILE}')
    for i in range(7):
        m = m0_ + i
        if i % 4 == 0:
            I(f's_mov_b32 s{t1}, {k.L.X1 + m*1024}')
            I(f's_add_u32 m0, s{t0}, {RA + m*1024}')
        I(f'buffer_load_dwordx4 v{vaddr}, {WS}, s{t1} offen offset:{(i&3)*1024} sc1 lds', tag='x1')

def main_rest(k):
    e, I, L, o = k.e, k.I, k.L, k.o
    t0, t1, t2, t3 = sT[0:4]
    sR = sT[8]
    sn = o.get('sn', '')
    assert 't' in sn and 'x' in sn and 'h' in sn
    il = o.get('il', '722111').split('.')
    il = il + il[-1:]*2
    sg = [int(c, 36) for c in o.get('sg', 'aaa')]
    assert o.get('tpb', 0) == 0
    b_soff(k, L.O)
    I(f's_mov_b32 s{sR}, {L.H}')
    k.k_landed()
    a_preload(k, RA, range(7))
    g_wr(k, 1)
    x_addr(k, RA)
    k.k_landed2()
    def chk(): I(f'v_cmp_ne_u32 vcc, s{sTAG}, v16')
    k.stamp('xpo')
    k.poll3([f'buffer_load_dword v16, v{vOP}, {WS}, 0 offen sc1'], chk, 'o')
    k.stamp('po')
    I(f's_setprio {o.get("gp", 1)}')
    kgemm(k, HR, b_src, il[0], sg[0], 1, (1, 0), lambda: hinit(k), nm='H', chk='o' in sn)
    k.stamp('hg')
    def mid():
        g_chk(k, 0, 1)
    D = 32
    G = D
    sl = [f'buffer_load_dwordx3 {vr(D,3)}, v{vSA}, {WS}, 0 offen sc1', f'buffer_load_dwordx3 {vr(D+4,3)}, v{vSB}, {WS}, 0 offen sc1']
    publish_stats(k, HR, sR, 1, BF, mid, False, ack=False, after=lambda: I(g_rd()),
                  flag=[f'buffer_store_dword v{vTAG}, v{vTF}, {WS}, 0 offen offset:128'])
    k.stamp('hp')
    if k.stop == 'h': return
    a_preload(k, RB, range(7))
    g_wr(k, 3)
    x_addr(k, RB)
    b_soff(k, L.H)
    I('v_lshlrev_b32 v8, 4, v3'); I(f'v_add_u32 v8, {L_CS1}, v8')
    I(f's_mov_b32 s{sR}, {L.T0}')
    I(f's_or_b32 s{sN}, s{sTAG}, 1')
    k.stamp('xph')
    k.poll3([f'buffer_load_dword v16, v{vHF}, {WS}, 0 offen offset:128 sc1'], chk, 'h')
    k.stamp('ph')
    MR, MU = 12, 10
    def tst():
        I = k.I
        row_stats(k, D)
        I(f'v_add_f32 v{D+2}, 0x3727c5ac, v{D+1}'); I(f'v_rsq_f32 v{D+4}, v{D+2}')
        I(f'v_mul_f32 v{MU}, -1.0, v{D}')
        I(f'v_mul_f32 v{D+2}, v{D+4}, v{D+4}'); I(f'v_mul_f32 v{D+2}, v{D+2}, v{D+1}')
        I(f'v_add_f32 v{D+2}, 0x3727c5ac, v{D+2}'); I(f'v_rsq_f32 v{D+2}, v{D+2}')
        I(f'v_mul_f32 v{MR}, v{MU}, v{D+4}')
        I(f'v_mul_f32 v{D+6}, v{D+4}, v{D+2}')
        gelu_consts(k, D+6, G)
        I(f'v_mov_b32 v{D+6}, v{G+1}')
    def schk():
        I(f'v_cmp_ne_u32 vcc, s{sN}, v{D+2}')
        I(f'v_cmp_ne_u32 s[{sT[2]}:{sT[3]}], s{sN}, v{D+6}')
        I(f's_or_b64 vcc, vcc, s[{sT[2]}:{sT[3]}]')
    q0, q1 = o.get('q0s', 1), o.get('q1s', 8)
    CS = BF + 16
    hooks = {q0: lambda: [I(t) for t in sl], q1: lambda: k.poll2(sl, schk, 'hs'),
             9: lambda: [I(f'ds_read_b128 {vr(CS+4*t,4)}, v8 offset:{t*64}') for t in range(4)]}
    assert len(hooks) == 3
    fin = [f'v_pk_fma_f32 {vr(OAC+i,2)}, {vr(CS+i,2)}, {vr(MU,2)}, {vr(OAC+i,2)} op_sel_hi:[1,0,1]' for i in range(0, 16, 2)]
    kgemm(k, ACC, b_src, il[1], sg[1], 2, (3, 3 if o.get('kpf', 'htx') != 'htx' else 1), None, zero=True, vf=k.capture(tst), v0=q1 + 1, nm='U', hooks=hooks, fin=fin)
    k.stamp('tg')
    T = BF
    P = T + 16
    gl = []
    for h in range(2):
        x = ACC + 8*h; tt = T + 8*h
        for i in range(0, 8, 2): gl.append(f'v_pk_mul_f32 {vr(tt+i,2)}, {vr(x+i,2)}, {vr(x+i,2)}')
        for i in range(0, 8, 2): gl.append(f'v_pk_fma_f32 {vr(tt+i,2)}, {vr(tt+i,2)}, {vr(D+6,2)}, {vr(G,2)} op_sel_hi:[1,0,0]')
        for i in range(0, 8, 2): gl.append(f'v_pk_mul_f32 {vr(tt+i,2)}, {vr(tt+i,2)}, {vr(x+i,2)}')
        for i in range(8): gl.append(f'v_exp_f32 v{tt+i}, v{tt+i}')
        for i in range(0, 8, 2): gl.append(f'v_pk_fma_f32 {vr(tt+i,2)}, {vr(tt+i,2)}, {vr(G+2,2)}, {vr(G+2,2)} op_sel_hi:[1,0,0]')
        for i in range(8): gl.append(f'v_rcp_f32 v{tt+i}, v{tt+i}')
        for i in range(0, 8, 2): gl.append(f'v_pk_mul_f32 {vr(x+i,2)}, {vr(x+i,2)}, {vr(tt+i,2)}')
        gl += k.capture(lambda: k.cvt(P+4*h, x, 8))
        gl.append(f'v_permlane16_swap_b32 v{P+4*h}, v{P+4*h+2}')
        gl.append(f'v_permlane16_swap_b32 v{P+4*h+1}, v{P+4*h+3}')
        if h == 1: gl.insert(len(gl) - 12, g_rd())
        gl.append(f'buffer_store_dwordx4 {vr(P+4*h,4)}, v{vHS}, {WS}, 0 offen offset:{h*1024} sc1')
        gl.append(lambda h=h: k.stores([f'buffer_store_dwordx4 {vr(P+4*h,4)}, v{vST}, {WS}, s{sR} offen offset:{h*1024}'] + [f'buffer_store_dword v{vTAG}, v{vTF}, {WS}, 0 offen']*h, tag='tl'))
    for n, t in enumerate(gl):
        t() if callable(t) else I(t)
    k.stamp('tp')
    def hn():
        for i in range(0, 16, 2):
            I(f'v_pk_fma_f32 {vr(ACC+i,2)}, {vr(HR+i,2)}, {vr(D+4,2)}, {vr(MR,2)} op_sel_hi:[1,0,0]')
    if k.stop == 't': return
    g_chk(k, 0, 4, name='et')
    a_preload(k, RA, [0, 1, 2, 7, 8, 9, None], True)
    g_wr(k, 5)
    x_addr(k, RA)
    hn()
    I(f's_mov_b32 s{sT[4]}, {L.T0 - TILE}'); I(f's_mov_b32 s{sT[5]}, {L.T0 - TILE + 7168}')
    I(f's_mov_b32 s{sR}, {L.X1}')
    sM, sS, sM2 = sT[9], sT[10], sT[11]
    w3_rd_base(k, 14, RC)
    I(f's_and_b32 s{t0}, s{sW}, 1'); I(f's_mul_i32 s{t0}, s{t0}, {TILE}'); I(f'v_add_u32 v{vB}, s{t0}, v{vB}')
    def x_src(p):
        i = p % 7
        return f'v{XA + 3*(p//7) + i//3}, {WS}, s{sT[4 + (3 <= i < 6)]} offen offset:{(i%3)*1024} sc1'
    pl = f'buffer_load_dword v16, v{vTP}, {WS}, 0 offen sc1'
    ph = f'buffer_load_dword v17, v{vHP}, {WS}, 0 offen sc1'
    k.stamp('xpt')
    k.poll3([pl], chk, 't')
    hooks = {}
    ho = o.get('ho', 1)
    if ho:
        hx = o.get('hx', 1)
        il[2] = '7' + '0'*(hx + 1) + o.get('ix', '322')
        hooks = {-1: lambda: I(ph), hx: lambda: (k.stamp('xhl'), k.poll2([ph], lambda: I('v_cmp_eq_u32 vcc, -1, v17'), 'hl'), k.stamp('hl'))}
    k.stamp('pt')
    kgemm(k, ACC, x_src, il[2], sg[2], 3, (5, 0), hn, nm='X', hooks=hooks)
    k.stamp('xg')
    def mid():
        for i in range(0, 16, 2):
            I(f'v_pk_add_f32 {vr(RES+i,2)}, {vr(HR+i,2)}, {vr(ACC+i,2)}')
    publish_stats(k, ACC, sR, 2, BF, mid, ack=False)
    I('s_setprio 0')
    k.stamp('xp')
    k.bar('ex')
    if k.stop == 'x1': return
    def F(m): return 128 + 4*m
    AC, BB, GT, GC, PAT, C, AXT = 44, 76, 92, 28, 108, 32, 36
    vX, vS, vUA, vW4, vPL, vFL, vWR, vDP = 5, 6, 7, 10, 12, 9, 18, 108
    I(f'v_subrev_u32 v8, {RC - RB}, v14')
    def frd(m): tr2(k, F(m), 8 if 3 <= m < 17 else 14, (m if m < 3 else m - 3 if m < 17 else m - 17)*4096, 512, tag='w3p' if m < 3 else None)
    SR = 40
    def xstats(D):
        I = k.I
        row_stats(k, D)
        I(f'v_mul_f32 v{D+3}, -1.0, v{D}')
        k.split_b(D+3, SR, D+2)
        I(f'v_add_f32 v{D+2}, 0x3727c5ac, v{D+1}'); I(f'v_rsq_f32 v{D+4}, v{D+2}')
        gelu_consts(k, D+4, SR+4)
        I(f's_lshl_b32 s{t0}, s{sW}, 9'); I(f's_add_u32 s{t0}, s{t0}, {L_STAT}')
        I('v_lshlrev_b32 v15, 5, v2'); I(f'v_add_u32 v15, s{t0}, v15')
        I(f'ds_write_b128 v15, {vr(SR,4)}'); I(f'ds_write_b128 v15, {vr(SR+4,4)} offset:16')
    def cs(m): I(f'{MF16} {vr(C,4)}, {vr(PAT,4)}, {vr(F(m),4)}, ' + ('0' if m == 0 else vr(C, 4)))
    dm = []
    for s in range(7): dm += w4_dma(k, vW4, s, 0, sM, RB + ((s + 1) % 7)*8192, sS, 'a1')
    def mdma(s): return w4_dma(k, vW4, s, 1, sM, RC + (s % 5)*8192 if s < 10 else RB + (s - 9)*8192, sS, f'w{s}')
    def mrd(s): return [lambda: e.wait_tag(f'w{s}')] + w4_rd(k, vWR, 128 + 8*s, (s % 5)*8192, f'r{s}')
    lf = o.get('lf', 11); f0 = o.get('f0', 10); f1 = o.get('f1', 17)
    assert f1 >= 17 and f1 <= 28 - lf
    D2 = 60
    sl = [f'buffer_load_dwordx3 {vr(D2,3)}, v{vSA}, {WS}, 0 offen sc1', f'buffer_load_dwordx3 {vr(D2+4,3)}, v{vSB}, {WS}, 0 offen sc1']
    for m in range(f0): frd(m)
    pat(k, PAT)
    if o.get('xw', 1): e.wait_tag('ds')
    k.stamp('xi')
    x1_dma(k, 0, vB); x1_dma(k, 7, vB)
    for t in sl: I(t)
    assert lf == 11 and f0 >= 3
    if o.get('na'):
        for m in range(f0, f1): frd(m)
        e.wait_lg0(); k.bar('xj')
    else:
        e.wait_tag('w3p'); k.bar('xj')
        for m in range(f0, f1): frd(m)
    up_addrs(k, vX, vS)
    w4_src(k, vW4); rot_regs(k)
    MFL[:] = [0, 26]
    g_addr(k, MFL[0], MFL[1], vFV, False)
    I(f's_lshl_b32 s{sM}, s{sA}, 11')
    I(f's_mul_i32 s{t0}, s{sA}, {TILE}')
    I('v_and_b32 v15, 60, v1'); I('v_lshl_add_u32 v15, v1, 6, v15'); I(f'v_add_u32 v15, s{t0}, v15')
    for m in range(f1): cs(m)
    e.wait_tag('x1')
    k.stamp('xl')
    rds = [f'ds_read_b32 v{16+i}, v15 offset:{RA + min(i*4096, TILE - 4096)}' for i in range(4)]
    def xchk():
        for t in rds: I(t)
        I('v_max3_u32 v16, v16, v17, v18'); I('v_max_u32 v16, v16, v19')
        I('v_cmp_eq_u32 vcc, -1, v16')
    done, retry = e.newlabel('Lxd'), e.newlabel('Lxr')
    xchk()
    I(f's_cbranch_vccnz {retry}')
    e.label(done)
    def stub():
        e.label(retry)
        k.stamp('xr')
        x1_dma(k, 0, vB); x1_dma(k, 7, vB)
        e.wait_vm0()
        xchk()
        spin_tail(k, retry, done)
    ool(k, stub)
    k.bar('b8')
    I(f's_setprio {o.get("pb", 0)}')
    del dm[:o.get('na', 0)]
    for _ in range(o.get('nd', 4)): dm.pop(0)()
    I(f's_or_b32 s{sN}, s{sTAG}, 2')
    def schk():
        I(f'v_cmp_ne_u32 vcc, s{sN}, v{D2+2}')
        I(f'v_cmp_ne_u32 s[{sT[2]}:{sT[3]}], s{sN}, v{D2+6}')
        I(f's_or_b64 vcc, vcc, s[{sT[2]}:{sT[3]}]')
    k.poll2(sl, schk, 'xs')
    k.stamp('px')
    dp = o.get('dp', 8)
    def paced(ts):
        for n, t in enumerate(ts):
            I(t)
            if n % dp == dp - 1 and dm: dm.pop(0)()
    xstats(D2)
    for _ in range(o.get('ne', 4)): dm.pop(0)()
    e.wait_lg0(); k.bar('f3')
    paced(k.capture(lambda: ([frd(m) for m in range(f1, 28)], w4_rd_base(k, vWR, sM, RC), u_addrs(k, 1, vUA, vPL, vFL))))
    while dm: dm.pop(0)()
    r = R()
    r.AC, r.BB, r.GT, r.GC, r.PK, r.pk, r.vX, r.vS, r.vUA, r.vPL, r.vFL, r.vTG, r.vD = AC, BB, GT, GC, [100, 76], o.get('mpk', 0), vX, vS, vUA, vPL, vFL, vTAG, 16
    r.nm, r.half, r.W0, r.Q, r.keep = 'n', 1, 128, [44, 112, 60, 92], [(0, 0), (0, 1)]
    r.AX = 112; r.alt = 0
    upg(k, r, 0, 0, only=True)
    I(f'v_mov_b32 v{AXT+2}, 0'); I(f'v_mov_b32 v{AXT+3}, 0')
    ev = {}
    def at(i, fs): ev.setdefault(i, []).extend(fs)
    r0, rd0 = o.get('mr0', 2), o.get('md0', 2)
    g_wr(k, 7)
    at(r0 - 2, [lambda: I(g_rd())]); at(r0, [lambda: g_chk(k, 7, 0, name='rc')])
    at(26, [lambda: I(f'ds_read_b128 {vr(GC,4)}, v{vS} offset:16'), lambda: I(f'ds_read_b128 {vr(GC+4,4)}, v{vS} offset:1040')])
    for i, m in enumerate(range(f1, 28)): at(2*i, [lambda m=m: cs(m)])
    at(24, [lambda: k.split_a(C, AXT, C+1)])
    xl = [f'buffer_load_dword v8, v{vPL}, {WS}, 0 offen sc1']
    at(o.get('xd', 30), [lambda: I(xl[0])])
    at(o.get('xe', 40), [lambda: k.poll2(xl, lambda: I(f'v_cmp_ne_u32 vcc, s{sN}, v8'), 'xd')])
    I(f's_or_b32 s{sN}, s{sTAG}, 3')
    r.st0 = o.get('xe', 40)
    for s in range(5): dm += mdma(s)
    for i, f in enumerate(dm): at(r0 + max(0, i - o.get('mn0', 2))*rd0, [f])
    mb = o.get('mb', 0)
    if mb < 100: at(o.get('mm2', 2), [lambda: e.wait_tag('a1'), lambda: g_wr(k, 8), lambda: k.stamp('m2')])
    r1, rs = o.get('mr1', 36), o.get('mrs', 4)
    for s in range(5):
        assert r1 + s*rs >= 29 + 2*s + 1 and r1 + s*rs + rs <= 57
        for i, f in enumerate(mrd(s)): at(r1 + s*rs + max(i - 1, 0)//2, [f])
        d = mdma(s + 5)
        at(r1 + s*rs + rs - 1, [lambda s=s: e.wait_tag(f'r{s}'), d[0]]); at(r1 + s*rs + rs, [d[1]])
    at(30, [lambda: I(f's_setprio {o.get("pv", 3)}')])
    at(99, [lambda: g_wr(k, 9), lambda: I(f's_setprio {o.get("pgb", 2)}'), lambda: k.stamp('m6')])
    at(100 + o.get('mf0', 30), [lambda: u_flag(k, r, 0)])
    if o.get('nq0', 999) < 999: at(100 + o['nq0'], [lambda: I(u_poll(r, 0)[0])])
    a3, r2 = o.get('a3', 0), o.get('mr2', 0)
    if not a3: at(100 + o.get('mg6', 104), [lambda: I(g_rd())])
    def res():
        I = k.I
        I(f's_add_u32 s{t0}, s{sM}, {D_R}')
        I('v_lshrrev_b32 v15, 1, v2'); I('v_xor_b32 v15, v15, v3'); I('v_lshlrev_b32 v15, 4, v15'); I('v_lshl_add_u32 v15, v2, 7, v15')
        I(f'v_add_u32 v15, s{t0}, v15'); I('v_xor_b32 v17, 64, v15')
        for t in range(4): I(f'ds_write_b128 v{15 + 2*(t&1)}, {vr(RES+4*t,4)} offset:{(t>>1)*8192}')
        g_wr(k, 10)
        for i in range(2): I(f'v_subrev_u32 v{vWR+i}, {RC - RB - 8192}, v{vWR+i}')
    l2 = [f for s in range(5, 10) for f in mrd(s)] + [(lambda t=t: I(t)) for t in k.capture(res)]
    if r2:
        for i, f in enumerate(l2): at(100 + r2 + 2*i, [f])
        l2 = []
    for i in sorted(ev):
        if i < 0:
            for f in ev.pop(i): f()
    I(f's_setprio {o.get("pu", 1)}')
    if mb >= 100: e.wait_tag('a1')
    if mb: k.bar('mb')
    k.stamp('mu')
    upg(k, r, lambda m: F(m) if m < 28 else AXT, ev, pre=False)
    g6 = [lambda: g_chk(k, 0, 6, name='g6')]
    hooks = {'a': ([] if a3 else g6 + [f for s in range(10, 14) for f in mdma(s)]) + l2 + [lambda: dump_addr(k, vDP, D_M)],
             (0, o.get('mr3', 8)): g6*bool(a3) + [f for s in range(10, 14) for f in mrd(s)] + [lambda: g_wr(k, 11)],
             (0, 13): [lambda: I(g_rd())]}
    if a3: hooks[0, o.get('mr3', 8) - 2] = [lambda: I(g_rd())]
    Q = r.Q
    ml, qa, qb = o.get('ml', 4), o.get('qa', 1), o.get('qb', 10)
    def dump(q):
        for g in range(4): I(f'ds_write_b128 v{vDP+g}, {vr(Q[q]+4*g,4)} offset:{q*4096}')
    def stage(n):
        if n == qa: g_chk(k, 11, 0); dump(0)
        if n == qa + 2: dump(1)
        if n == qb: e.wait_lg0(); k.bar('q0')
        if n == 24 - ml + 1: dump(2)
        if n == 23: e.wait_lg0(); k.bar('q2')
        if n == 24: dump(3); e.wait_lg0(); k.bar('q3')
    I(f's_setprio {o.get("pd", 1)}')
    down(k, r, [28, 32, 36, 40, 84, 88, 240, 244, 248, 252], hooks, ml, stage)
    MFL[:] = [vFW, vFR]
    k.stamp('me')

vT3, vT2, vT4, vTQ, vTD = 202, 203, 204, 205, 206
def touch_addrs(k):
    I, L = k.I, k.L
    t0, t1, t2 = sT[0:3]
    I(f's_and_b32 s{t0}, s{sG}, 3'); I(f's_lshl_b32 s{t0}, s{t0}, 2'); I(f's_add_u32 s{t0}, s{t0}, s{sA}')
    I(f's_mul_i32 s{t1}, s{t0}, 3584'); I(f's_lshl_b32 s{t2}, s{sJ}, 9'); I(f's_add_u32 s{t1}, s{t1}, s{t2}')
    I(f's_cmp_eq_u32 s{sJ}, 7'); I(f's_cselect_b32 s{t1}, {BIG}, s{t1}')
    I('v_lshrrev_b32 v15, 1, v1'); I(f'v_mul_u32_u24 v{vT3}, {16*3584}, v15'); I('v_and_b32 v15, 1, v1')
    I(f'v_lshl_add_u32 v{vT3}, v15, 7, v{vT3}'); I(f'v_add_u32 v{vT3}, s{t1}, v{vT3}')
    I(f's_mul_i32 s{t0}, s{t0}, 896'); I(f's_lshl_b32 s{t2}, s{sJ}, 7'); I(f's_add_u32 s{t1}, s{t0}, s{t2}')
    I(f'v_mul_u32_u24 v{vT2}, {16*896}, v1'); I(f'v_add_u32 v{vT2}, s{t1}, v{vT2}')
    I(f's_mul_i32 s{t2}, s{sJ}, {256*896}'); I(f's_add_u32 s{t1}, s{t0}, s{t2}')
    I('v_lshrrev_b32 v15, 3, v1'); I(f'v_mul_u32_u24 v{vT4}, {16*896}, v15'); I('v_and_b32 v15, 7, v1'); I('v_min_u32 v15, 6, v15')
    I(f'v_lshl_add_u32 v{vT4}, v15, 7, v{vT4}'); I(f'v_add_u32 v{vT4}, s{t1}, v{vT4}')
    I(f's_mul_i32 s{t1}, s{sJ}, {AS}'); I(f's_mul_i32 s{t2}, s{sA}, {TILE}'); I(f's_add_u32 s{t1}, s{t1}, s{t2}'); I(f's_add_u32 s{t1}, s{t1}, {L.P0}')
    I('v_min_u32 v15, 55, v1'); I(f'v_lshlrev_b32 v{vTQ}, 7, v15'); I(f'v_add_u32 v{vTQ}, s{t1}, v{vTQ}')
def touch(k, key, dflt='-'):
    I = k.I
    t1 = sT[1]
    for ch in k.o.get(key, dflt):
        if ch in 'ab': I(f'buffer_load_dword v{vTD}, v{vT3}, {srd("w3")}, 0 offen offset:{256 if ch == "b" else 0}')
        elif ch in 'o12': I(f'buffer_load_dword v{vTD}, v{vT2}, {srd("wo" if ch == "o" else "w" + ch)}, 0 offen')
        elif ch in '45':
            I(f's_mov_b32 s{t1}, {128*896 if ch == "5" else 0}')
            I(f'buffer_load_dword v{vTD}, v{vT4}, {srd("w4")}, s{t1} offen')
        elif ch in 'pq':
            I(f's_add_u32 s{t1}, s{sGB}, {7168 if ch == "q" else 0}')
            I(f'buffer_load_dword v{vTD}, v{vTQ}, {WS}, s{t1} offen sc1')
        else: continue
        k.e.vm[-1]['dst'] = set()

def aux_burst2(k):
    I, o = k.I, k.o
    touch_addrs(k)
    touch(k, 'tO')
    w3_src(k, 12)
    for m in range(o['w2a']): w3_dma(k, 12, k.sMW, m, 0, RC + m*4096, 'w3')

def aux_pre(k): pass

def aux_rest(k):
    e, I, L, o = k.e, k.I, k.L, k.o
    t0, t1, t2, t3 = sT[0:4]
    sM = k.sMW; sS = sT[5]
    A0, AC, BB, GT, GC, PAT, C, AXT, ONE = 32, 144, 176, 192, 208, 232, 236, 216, 244
    n0 = o['w2a']; nH = o.get('nH', 11); nT = 28 - n0 - nH
    assert nT <= 8 and n0 <= 10
    def rd(m0, n, s0=0):
        for i in range(n): tr2(k, A0 + 4*(m0+i), 8, (s0+i)*4096, 512)
    def cs(m0, n):
        for m in range(m0, m0 + n):
            I(f'{MF16} {vr(C,4)}, {vr(PAT,4)}, {vr(A0+4*m,4)}, ' + ('0' if m == 0 else vr(C, 4)))
    def dma(m0, n, s0=0):
        for i in range(n): w3_dma(k, 12, sM, m0 + i, 0, RC + (s0+i)*4096, 'w3')
    w3_rd_base(k, 8, RC)
    if not k.v4:
        k.o_flag()
        k.bar('eo')
        rd(0, n0)
    I('v_bfe_u32 v15, v1, 2, 2')
    I('v_lshl_add_u32 v16, v3, 3, v15'); I('v_lshlrev_b32 v16, 7, v16')
    I('v_and_b32 v17, 3, v1'); I('v_lshl_add_u32 v16, v17, 3, v16')
    I('v_lshrrev_b32 v15, 1, v15'); I('v_and_b32 v17, 1, v3'); I('v_lshl_add_u32 v15, v17, 1, v15')
    I(f'v_xor_b32 v15, s{sA}, v15')
    I('v_lshl_add_u32 v6, v15, 5, v16'); I(f'v_add_u32 v6, {RB}, v6')
    CB = 144
    if k.v4:
        for i in range(4): I(f'v_mov_b32 v{ONE+i}, 0x3f803f80')
        pat(k, PAT)
        k.o_flag('os')
        g_addr(k, aFW, aFR, aFV, True)
        k.v_landed()
        rd(0, n0)
    for m in range(14): tr2(k, CB + 4*m, 6, m*4096, 512)
    if not k.v4:
        for i in range(4): I(f'v_mov_b32 v{ONE+i}, 0x3f803f80')
        pat(k, PAT)
    for m in range(14):
        I(f'{MF16} v[248:251], {vr(ONE,4)}, {vr(CB+4*m,4)}, ' + ('0' if m == 0 else 'v[248:251]'))
    cs(0, n0)
    I(f's_lshl_b32 s{t0}, s{sA}, 6'); I(f's_add_u32 s{t0}, s{t0}, {L_CS1}')
    I('v_lshlrev_b32 v15, 2, v2'); I(f'v_add_u32 v15, s{t0}, v15')
    I('ds_write_b32 v15, v248')
    g_wr(k, 1, True)
    sD = sT[4]
    I(f'v_mov_b32 v{aPA}, v12')
    def stream(nm, m0, n, dest, tag, half=0, hk={}):
        mul, V = (14, aPA) if nm == 'w3' else (7, k.vSQ)
        rot = o.get('rot', 0) and n >= 4
        if rot:
            I(f's_and_b32 s{sD}, s{sG}, 3'); I(f's_mul_i32 s{sD}, s{sD}, {n}'); I(f's_lshr_b32 s{sD}, s{sD}, 2'); I(f's_lshl_b32 s{sD}, s{sD}, 12')
            I(f's_add_u32 s{t2}, s{sM}, {dest}')
        for i in range(n):
            if rot:
                I(f's_add_u32 m0, s{t2}, s{sD}'); I(f's_mul_i32 s{t1}, s{sD}, {mul}'); I(f's_add_u32 s{t1}, s{t1}, {m0*mul*4096 + half*256}')
            else:
                I(f's_add_u32 m0, s{sM}, {dest + i*4096}'); I(f's_mov_b32 s{t1}, {(m0+i)*mul*4096 + half*256}')
            if o.get('nost') == 2:
                I(f's_mov_b32 s{t1}, {(i % 14)*7*4096}')
                I(f'buffer_load_dwordx4 v{k.vSQ}, {srd("wo" if half else "w1")}, s{t1} offen lds', tag=tag)
            elif o.get('nost') != 1: I(f'buffer_load_dwordx4 v{V}, {srd(nm)}, s{t1} offen lds', tag=tag)
            if rot and i < n - 1:
                I(f's_add_u32 s{sD}, s{sD}, 4096'); I(f's_cmp_eq_u32 s{sD}, {n*4096}'); I(f's_cselect_b32 s{sD}, 0, s{sD}')
            if i in hk: hk[i]()
    xpa = o.get('xpa', 3)
    I(f's_mul_i32 s{t0}, s{sA}, {TILE}'); I(f's_add_u32 s{t0}, s{t0}, s{sGB}')
    I(f's_lshl_b32 s{t1}, s{sJ}, 11'); I(f's_add_u32 s{t0}, s{t0}, s{t1}')
    I(f'v_add_u32 v230, s{t0}, v4')
    for i in range(4): I(f'v_mov_b32 v{aPD+i}, -1')
    I(f's_mov_b32 s{sT[8]}, {L.T0}'); I(f's_mov_b32 s{sT[9]}, {L.X1}')
    xpf = lambda: k.stores([f'buffer_store_dwordx4 {vr(aPD,4)}, v230, {WS}, s{sT[8 + (c == "x")]} offen offset:{h*1024}' for c in 'tx' if c not in o.get('kpf', 'htx') for h in range(2)], tag='pre')
    Q = {'2': [('w2', m, RA + m*4096, 0) for m in range(14)],
         'f': [('w3', n0 + nH + i, RC + (3+i)*4096, 0) for i in range(nT)] + [('w3', i, RC + i*4096, 1) for i in range(3)],
         'b': [('w3', 3 + i, RB + i*4096, 1) for i in range(14)]}
    def run(spec, lim):
        for it in spec.split(','):
            if not it: continue
            c, n = it[0], int(it[1:])
            for _ in range(n):
                assert len(Q[c]) > lim.get(c, 0), (c, spec)
                nm, m, dest, hf = Q[c].pop(0)
                stream(nm, m, 1, dest, 'w2' if c == '2' else 'w3', hf)
    g_wait(k, 2, 1, 'sh')
    stream('w3', n0, nH, RC, 'w3')
    run(o.get('sH', '25'), {'2': 4, 'f': 99, 'b': 99})
    if o.get('kpf', 'htx') != 'htx': xpf()
    e.wait_tag('w3'); k.stamp('a6'); g_wr(k, 2, True)
    g_wait(k, 0, 2, 'b2')
    if k.stop == 'h': return
    rd(n0, nH)
    cs(n0, nH)
    e.wait_tag('pre'); g_wr(k, 3, True)
    if o.get('sh2'):
        g_wait(k, 3, 3, 'h2')
        run(o['sh2'], {'b': 4})
    g_wait(k, 4, 3, 'st')
    run('2%d' % len(Q['2']), {})
    sp = o.get('sT', 'b3,b7').split(',')
    run(sp[0], {'b': 4})
    e.wait_tag('w2'); k.stamp('a7'); g_wr(k, 4, True)
    run(','.join(sp[1:]), {'b': 4})
    if o.get('st2'):
        g_wait(k, 5, 0, 't2')
        run(o['st2'], {})
    if k.stop == 't': return
    pend = [lambda: g_wait(k, 6, 0, 'sx'), lambda: run('f%d,b%d' % (len(Q['f']), len(Q['b'])), {})]
    vX, vS, vWR, vW4, vUA, vPL, vFL, vDP = 24, 25, 5, 7, 9, 10, 11, 252
    I(f'v_mov_b32 v{AXT+2}, 0'); I(f'v_mov_b32 v{AXT+3}, 0')
    I(f'v_mov_b32 v{aPD}, v8')
    sM2, sS = sT[8], sT[9]
    I(f's_lshl_b32 s{sM2}, s{sA}, 11')
    w4_src(k, vW4)
    w4_rd_base(k, vWR, sM2, RB)
    u_addrs(k, 0, vUA, vPL, vFL)
    dump_addr(k, vDP, D_A)
    I(f'v_mov_b32 v13, s{sTAG}')
    I(f's_lshl_b32 s{t0}, s{sA}, 3'); I('v_lshrrev_b32 v15, 3, v1'); I(f'v_add_u32 v15, s{t0}, v15')
    I('v_bfe_u32 v16, v15, 1, 3'); I('v_and_b32 v17, 7, v1'); I('v_xor_b32 v16, v16, v17'); I('v_lshlrev_b32 v16, 4, v16'); I('v_lshl_add_u32 v14, v15, 7, v16')
    I(f's_lshl_b32 s{t0}, s{sG}, 6'); I(f'v_add_u32 v15, s{t0}, v15'); I('v_mul_u32_u24 v15, 896, v15'); I('v_lshl_add_u32 v12, v17, 3, v15')
    I(f's_lshl_b32 s{sT[10]}, s{sJ}, 7'); I(f's_add_u32 s{sT[11]}, s{sT[10]}, {32*896}')
    up_addrs(k, vX, vS)
    for f in pend: f()
    e.wait_vm0(); k.stamp('a8'); k.bar('ex')
    for i in range(nT): tr2(k, A0 + 4*(n0+nH+i), aPD, (3+i)*4096, 512)
    if k.stop == 'x1': return
    lf = o.get('lf', 11)
    e.wait_lg0(); k.bar('xj')
    for m in range(28 - lf, 28): w3_dma(k, aPA, sM, m, 1, RC + (m-17)*4096, 'f3')
    rot_regs(k)
    for s in range(o.get('na', 0)//2):
        for f in w4_dma(k, vW4, s, 0, sM2, RB + ((s + 1) % 7)*8192, sS, 'a1'): f()
    cs(n0 + nH, nT)
    k.split_a(C, AXT, C+1)
    I('s_setprio 2')
    k.bar('b8')
    def ard(s): return w4_rd(k, vWR, A0 + 8*s, ((s + 1) % 7)*8192, f'r{s}')
    r = R()
    r.AC, r.BB, r.GT, r.GC, r.PK, r.pk, r.vX, r.vS, r.vUA, r.vPL, r.vFL, r.vTG, r.vD = AC, BB, GT, GC, [200, 176], 0, vX, vS, vUA, vPL, vFL, 13, 15
    r.nm, r.half, r.W0, r.Q, r.keep = 'd', 0, A0, [144, 228, 160, 192], [(0, 0), (0, 1)]
    r.AX = 228; r.st0 = 0; r.alt = alt = o.get('alt', 1)
    ev = {}
    def at(i, fs): ev.setdefault(i, []).extend(fs)
    sf = o.get('sf', 16)
    assert sf <= (50 if alt else 28 - o.get('ud', 4))
    at(sf, [lambda: e.wait_tag('f3'), lambda: k.bar('f3'), lambda: I('v_or_b32 v15, 3, v13'), lambda: k.stores([f'buffer_store_dword v15, v{vFL}, {WS}, 0 offen'])])
    at(52 if alt else 26, [lambda: I(f'ds_read_b128 {vr(GC,4)}, v{vS} offset:16'), lambda: I(f'ds_read_b128 {vr(GC+4,4)}, v{vS} offset:1040')])
    at(99, [lambda: I(f's_setprio {o.get("pga", 2)}'), lambda: k.stamp('u0')])
    at(100 + 106*alt + o.get('af0', 30 + 30*alt), [lambda: u_flag(k, r, 0)])
    if o.get('dq0', 999) < 999: at(100 + 106*alt + o['dq0'], [lambda: I(u_poll(r, 0)[0])])
    g0, gs, gd = o.get('ag0', 40), o.get('ags', 8), o.get('agd', 10)
    late = []
    def at2(i, fs):
        if i < 136 + 106*alt: at(100 + i, fs)
        else: late.extend(fs)
    mb = o.get('mb', 0)
    if mb: at(mb % 100, [lambda: k.bar('mb')])
    if mb < 100: at2(g0 - 10, [lambda: I(g_rd(True))]); at2(g0, [lambda: g_chk(k, 8, 0, True, 'm2')])
    at2(g0, [lambda: e.wait_tag('a1')])
    q = []
    for s in range(7):
        for i, f in enumerate(ard(s)): q.append((g0 + s*gs + 2*i, [f]))
        d = w4_dma(k, vW4, s + 7, 0, sM2, RB + ((s + 1) % 7)*8192, sS, f'w{s+7}')
        q.append((g0 + 14 + s*gd, [lambda s=s: e.wait_tag(f'r{s}'), d[0]])); q.append((g0 + 14 + s*gd + gd//2, [d[1]]))
    assert gd >= gs
    a3 = o.get('a3', 0)
    if a3:
        assert a3 > g0 + 14 + 7*gd - 14
        for s in range(4):
            for i, f in enumerate([lambda s=s: e.wait_tag(f'w{s+7}')] + ard(s + 7)): q.append((a3 + s*gd + 2*max(i - 1, 0), [f]))
            d = w4_dma(k, vW4, s + 10, 1, sM2, RB + (s + 1)*8192, sS, 'r3')
            q.append((a3 + 14 + s*gd, [lambda s=s: e.wait_tag(f'r{s+7}'), d[0]])); q.append((a3 + 14 + s*gd + gd//2, [d[1]]))
    for i, fs in sorted(q, key=lambda x: x[0]): at2(i, fs)
    upg(k, r, lambda m: A0 + 4*m if m < 28 else AXT, ev)
    for f in late: f()
    ar2 = o.get('ar2', 3)
    hooks = {(0, 13): [lambda: I(g_rd(True))]}
    s0 = 11 if a3 else 7
    for s in range(s0, 14): hooks.setdefault((0, ar2 + (s - s0)//2) if ar2 else 'a', []).extend([lambda s=s: e.wait_tag(f'w{s}')] + ard(s) + [lambda: e.wait_tag('r3'), lambda: g_wr(k, 6, True)]*(s == 13))
    Q = r.Q
    def dump(q):
        for g in range(4): I(f'ds_write_b128 v{vDP+g}, {vr(Q[q]+4*g,4)} offset:{q*4096}')
    aqa = o.get('aqa', 12)
    if aqa > 2: hooks[(1, aqa - 2)] = hooks.pop((0, 13))
    def stage(n):
        if n == aqa: g_chk(k, 9, 6, True); dump(0)
        if n == aqa + 2: dump(1)
        if n == 23: dump(2)
        if n == 24: dump(3)
    I(f's_setprio {o.get("pda", 0)}')
    down(k, r, [16, 20, 24, 28, 184, 188, 244, 248, 208, 212, 216], hooks, 2, stage)
    I('s_setprio 0')
    g_wr(k, 7, True)
    g_wait(k, 10, 7, 'ps')
    FS, TP = 32, 48
    I(f'v_add_u32 v15, {D_R}, v14')
    for q in range(4): I(f'ds_read_b128 {vr(FS+4*q,4)}, v15 offset:{(q>>1)*4096 + (q&1)*8192}')
    for q in range(4):
        for p in range(4): I(f'ds_read_b128 {vr(TP+16*q+4*p,4)}, v14 offset:{D_A + p*16384 + q*4096}')
    def add(q, T):
        for h in range(2):
            for i in range(4): I(f'v_add_f32 v{T+8*h+i}, v{T+8*h+i}, v{T+8*h+4+i}')
        for i in range(4): I(f'v_add_f32 v{FS+4*q+i}, v{FS+4*q+i}, v{T+i}')
        for i in range(4): I(f'v_add_f32 v{FS+4*q+i}, v{FS+4*q+i}, v{T+8+i}')
    for q in range(4): add(q, TP + 16*q)
    I(f'v_add_u32 v15, {D_M}, v14')
    I(f's_setprio {o.get("pf2", 2)}')
    of = o.get('outf', '')
    for qs in ([0, 1], [2], [3]):
        k.bar(f'q{qs[0]}')
        for q in qs:
            for p in range(4): I(f'ds_read_b128 {vr(TP+16*q+4*p,4)}, v15 offset:{p*16384 + q*4096}')
        for q in qs:
            add(q, TP + 16*q)
            k.cvt(FS + 4*q, FS + 4*q, 4)
            I(f'buffer_store_dwordx2 {vr(FS+4*q,2)}, v12, {srd("out")}, s{sT[10 + (q>>1)]} offen offset:{(q&1)*64} {of}')
    k.stamp('end')

def j7_jobs(k):
    e, I, L = k.e, k.I, k.L
    t0, t1 = sT[0], sT[1]
    I(f's_and_b32 s{t0}, s{sG}, 3'); I(f's_lshl_b32 s{t0}, s{t0}, 3'); I(f's_add_u32 s{t0}, s{t0}, s{sW}')
    I(f's_mul_i32 s{t0}, s{t0}, 49'); I(f'v_add_u32 v15, s{t0}, v1')
    I('v_lshrrev_b32 v16, 1, v15'); I('v_lshlrev_b32 v16, 9, v16'); I('v_and_b32 v17, 1, v15'); I('v_lshl_add_u32 v16, v17, 7, v16')
    I('v_lshrrev_b32 v17, 5, v15'); I('v_mul_u32_u24 v17, 9363, v17'); I('v_lshrrev_b32 v17, 16, v17')
    I(f'v_mul_u32_u24 v17, {229376 - 224*128}, v17'); I('v_lshl_add_u32 v17, v15, 7, v17')
    I('v_cmp_gt_u32 vcc, 49, v1'); I(f'v_cndmask_b32 v16, v{vBIG}, v16, vcc'); I(f'v_cndmask_b32 v17, v{vBIG}, v17, vcc')
    I(f's_mul_i32 s{t0}, s{sW}, 56'); I(f'v_add_u32 v15, s{t0}, v1'); I('v_lshlrev_b32 v15, 7, v15')
    I('v_cmp_gt_u32 vcc, 56, v1'); I(f'v_cndmask_b32 v15, v{vBIG}, v15, vcc')
    k.jn = 0
    for ch in k.o.get('j7', 'b4p'):
        if ch in 'ab':
            for i in range(4):
                I(f's_mov_b32 s{t1}, {i*784*512 + (256 if ch == "b" else 0)}')
                I(f'buffer_load_dword v{32+i}, v16, {srd("w3")}, s{t1} offen'); e.barrier()
        if ch in '456':
            for b in dict(zip('456', (range(8), range(4), range(4, 8))))[ch]:
                I(f's_mov_b32 s{t1}, {b*28672}')
                I(f'buffer_load_dword v{36+b}, v17, {srd("w4")}, s{t1} offen'); e.barrier()
        if ch == '2':
            I(f's_and_b32 s{t0}, s{sG}, 3'); I(f's_lshl_b32 s{t0}, s{t0}, 3'); I(f's_add_u32 s{t0}, s{t0}, s{sW}'); I(f's_mul_i32 s{t0}, s{t0}, {49*128}')
            I('v_min_u32 v18, 48, v1'); I('v_lshlrev_b32 v18, 7, v18')
            I(f'buffer_load_dword v58, v18, {srd("w2")}, s{t0} offen'); e.barrier()
            I(f's_add_u32 s{t0}, s{t0}, {1568*128}')
            I(f'buffer_load_dword v59, v18, {srd("w2")}, s{t0} offen'); e.barrier()
        if ch in 'mn':
            I(f's_lshl_b32 s{t0}, s{sG}, 3'); I(f's_add_u32 s{t0}, s{t0}, s{sW}')
            I(f's_mul_i32 s{t1}, s{t0}, {49*128}'); I(f's_mul_i32 s{t0}, s{t0}, {13*128}')
            I('v_min_u32 v18, 48, v1'); I('v_lshlrev_b32 v18, 7, v18'); I('v_min_u32 v19, 12, v1'); I('v_lshlrev_b32 v19, 7, v19')
            if ch == 'm':
                I(f'buffer_load_dword v60, v18, {srd("w3")}, s{t1} offen'); e.barrier()
                I(f'buffer_load_dword v61, v19, {srd("w2")}, s{t0} offen'); e.barrier()
            I(f'buffer_load_dword v62, v18, {srd("w4")}, s{t1} offen'); e.barrier()
        if ch in 'HTqX':
            I(f's_add_u32 s{t1}, s{sGB}, {dict(H=L.H, T=L.T0, X=L.X1, q=PB[3] + 3*TILE)[ch]}')
            I(f'buffer_load_dword v{70+"HTqX".index(ch)}, v15, {WS}, s{t1} offen sc1'); e.barrier()
        if ch in 'UV':
            n = 'UV'.index(ch)
            for i, off in enumerate([UR + (8 - 8*n)*TILE, UR + (12 - 8*n)*TILE]):
                I(f's_add_u32 s{t1}, s{sGB}, {off}')
                I(f'buffer_load_dword v{80+2*n+i}, v15, {WS}, s{t1} offen sc1'); e.barrier()
        if ch == 'w': e.wait_vm0(); k.stamp(f'j{k.jn}'); k.jn += 1
        if ch == 'p':
            nt = 7*(4 - k.o.get('pn', 2))
            for i, off in enumerate([PB[3] + min(4*c, nt - 4)*TILE for c in reversed(range((nt + 3)//4))]):
                I(f's_add_u32 s{t1}, s{sGB}, {off}')
                I(f'buffer_load_dword v{44+i}, v15, {WS}, s{t1} offen sc1'); e.barrier()
        if ch == 'f':
            for i in range(4): I(f'v_mov_b32 v{64+i}, -1')
            I(f's_lshl_b32 s{t0}, s{sW}, 10'); I(f'v_add_u32 v18, s{t0}, v4'); I(f'v_add_u32 v18, s{sGB}, v18')
            I(f's_and_b32 s{t0}, s{sW}, 1'); I(f's_lshl_b32 s{t0}, s{t0}, 10'); I(f'v_add_u32 v19, s{t0}, v4'); I(f'v_add_u32 v19, s{sGB}, v19')
            for n in range(4):
                for i in range(13):
                    I(f's_mov_b32 s{t1}, {PB[n] + i*8192}')
                    st = f'buffer_store_dwordx4 v[64:67], v{18 if i < 12 else 19}, {WS}, s{t1} offen'
                    if n < k.o.get('pn', 2): I(st + ' sc1')
                    else: k.stores([st])
                    if k.o.get('fb', 1): e.barrier()
                e.wait_vm0()
            e.barrier()
            I(f's_add_u32 s{t1}, s{sGB}, {L.F_P}')
            k.stores([f'buffer_store_dword v{vTAG}, v{vL0}, {WS}, s{t1} offen'])
            k.stamp('jf')
    e.wait_vm0()
```

```python
from g5 import *
import g4
from g4 import GA, GB_, f32, pack_pairs, row_stats, stat_addrs, gelu_consts

vZ, vBIG, vL0, vSIG, vTAG, vB, vST = 13, 20, 21, 26, 27, 28, 29
SB = [5, 6, 7, 8]
BF = 76
AW, OAC, NB = 132, 116, 10
sOW, sOT = sX0, sX1
XS = 10*4096
L_G = 159744
vSA, vSB, vCA = 30, 31, 40
vFW, vFR, vFV, vFD, vFT = 251, 253, 23, 24, 25
aFW, aFR, aFV, aFD, aFT, aPA, aPD = 220, 221, 222, 223, 224, 225, 226
HR = 60
ACC = 44
BXT = 40
XA = 244
vTP, vHP, vHS, vTF, vOP, vHF = 250, 19, 252, 18, 254, 255
RES = 240
W3P = 228
U0, U1 = RC + 28672, RA
PB = [(36 - 7*n)*TILE for n in range(4)]
L_F2 = 162304
STEP_REG = [RB, RB + 28672, RC, RB, RB + 28672, RC, RA + 16384, RB]

def main_pre(k):
    I = k.I
    t0, t1 = sT[0:2]
    I(f's_lshl_b32 s{t0}, s{sG}, 6'); I(f's_lshl_b32 s{t1}, s{sW}, 4'); I(f's_add_u32 s{t0}, s{t0}, s{t1}')
    I(f'v_add_u32 v15, s{t0}, v2'); I('v_mul_u32_u24 v15, 896, v15')
    I(f's_lshl_b32 s{t0}, s{sJ}, 7')
    I('v_lshl_add_u32 v15, v3, 3, v15')
    for t in range(4):
        I(f'buffer_load_dwordx2 {vr(52+2*t,2)}, v15, {srd("x")}, s{t0} offen offset:{t*32}')

def main_addr1(k):
    I, L = k.I, k.L
    t0, t1, t2 = sT[0:3]
    I('v_bfe_u32 v15, v1, 2, 2')
    I('v_lshl_add_u32 v16, v3, 3, v15'); I('v_lshlrev_b32 v16, 7, v16')
    I('v_and_b32 v14, 3, v1'); I('v_lshl_add_u32 v16, v14, 3, v16')
    I('v_lshrrev_b32 v15, 1, v15'); I('v_and_b32 v14, 1, v3'); I('v_lshl_add_u32 v15, v14, 1, v15')
    I(f'v_lshl_add_u32 v39, v15, 5, v16')
    I(f's_and_b32 s{t1}, s{sW}, 2'); I(f's_and_b32 s{t2}, s{sW}, 1')
    I(f's_mul_i32 s{t0}, s{t1}, {TILE}'); I(f's_add_u32 s{t0}, s{t0}, s{sGB}')
    I(f'v_add_u32 v{vB}, s{t0}, v4')
    I(f's_mul_i32 s{sOW}, s{t2}, {TILE + 7168}'); I(f's_mul_i32 s{sOT}, s{t2}, {TILE - 7168}'); I(f's_sub_u32 s{sOT}, {TILE}, s{sOT}')
    I(f's_lshl_b32 s{t0}, s{t1}, 6'); I(f's_lshl_b32 s{t2}, s{t2}, 5'); I(f's_add_u32 s{t0}, s{t0}, s{t2}')
    I(f's_add_u32 s{t0}, s{t0}, s{sGB}'); I(f's_add_u32 s{t0}, s{t0}, {L.F_O}')
    I('v_and_b32 v15, 8, v1'); I('v_lshlrev_b32 v15, 3, v15'); I('v_and_b32 v16, 7, v1'); I('v_lshl_add_u32 v15, v16, 2, v15')
    I(f'v_add_u32 v{vOP}, s{t0}, v15')

def main_addr2(k):
    I, L = k.I, k.L
    t0, t1, t2, t3 = sT[0:4]
    assert k.o.get('hc')
    I(f's_mul_i32 s{t0}, s{sW}, {TILE}'); I(f's_add_u32 s{t0}, s{t0}, s{sGB}')
    I(f's_lshl_b32 s{t1}, s{sJ}, 11'); I(f's_add_u32 s{t0}, s{t0}, s{t1}')
    I(f'v_lshlrev_b32 v46, 8, v{vSIG}'); I('v_lshl_add_u32 v46, v2, 4, v46')
    I(f'v_add_u32 v{vST}, s{t0}, v46')
    I(f's_lshl_b32 s{t0}, s{sW}, 3'); I(f's_add_u32 s{t0}, s{t0}, s{sJ}'); I(f's_lshl_b32 s{t0}, s{t0}, 8')
    I(f's_add_u32 s{t0}, s{t0}, s{sGB}'); I(f's_add_u32 s{t0}, s{t0}, {L.ST}')
    I(f'v_add_u32 v9, s{t0}, v4')
    I('v_cmp_eq_u32 vcc, 0, v3'); I(f'v_cndmask_b32 v9, v{vBIG}, v9, vcc')
    stat_addrs(k, vSA, vSB)
    I(f'v_mov_b32 v{BXT+2}, 0'); I(f'v_mov_b32 v{BXT+3}, 0')
    I(f's_add_u32 s{t0}, s{sGB}, {L.GS + L.T0 - TILE}')
    I(f's_cmp_eq_u32 s{sG}, 31'); I(f's_cselect_b32 s{t0}, {BIG}, s{t0}')
    I(f's_sub_u32 s{t1}, s{sGB}, {L.GS - L.T0 - 4*TILE}')
    I(f's_cmp_eq_u32 s{sG}, 0'); I(f's_cselect_b32 s{t1}, {BIG}, s{t1}')
    I(f's_cmp_eq_u32 s{sW}, 3'); I(f's_cselect_b32 s{t0}, s{t0}, s{t1}')
    I(f's_cselect_b32 s{t2}, 0xc000c000, 0')
    I(f's_cmp_eq_u32 s{sW}, 0'); I(f's_cselect_b32 s{t2}, 0x00030003, s{t2}'); I(f's_mov_b32 s{t3}, s{t2}')
    I(f's_lshl_b32 s{t1}, s{sJ}, 11'); I(f's_add_u32 s{t0}, s{t0}, s{t1}')
    I('v_and_b32 v15, 1, v2'); I(f'v_lshl_add_u32 v15, v{vSIG}, 1, v15'); I('v_lshlrev_b32 v15, 4, v15'); I(f'v_add_u32 v15, s{t0}, v15')
    I(f'v_cndmask_b32 v{vHS}, v{vBIG}, v15, s[{t2}:{t3}]')
    if k.o.get('xb') == 1: I(f'v_mov_b32 v{vHS}, v{vBIG}')
    I(f's_and_b32 s{t2}, s{sW}, 1'); I(f's_lshl_b32 s{t3}, s{t2}, 1'); I(f's_sub_u32 s{t1}, s{t3}, 1')
    I('v_and_b32 v44, 1, v3'); I(f'v_add_u32 v44, s{t3}, v44')
    I('v_lshrrev_b32 v45, 1, v3')
    I('v_sub_u32 v15, v44, v3'); I('v_mul_u32_u24 v16, 28, v45'); I('v_add_u32 v15, v15, v16'); I('v_add_u32 v15, 12, v15')
    I('v_lshl_add_u32 v{0}, v15, 10, v39'.format(vCA))
    I(f's_lshl_b32 s{t2}, s{t2}, 12'); I(f's_add_u32 s{t2}, s{t2}, s{sGB}')
    for q in range(3):
        u = 'v44' if q == 2 else 'v3'
        if q == 2:
            I('v_mul_u32_u24 v16, 7168, v45'); I(f'v_add_u32 v16, s{sGB}, v16'); I('v_add_u32 v16, 3072, v16')
            I('v_add_u32 v45, 1, v45'); I(f'v_mul_i32_i24 v45, s{t1}, v45')
        elif q == 0: I(f'v_mov_b32 v16, s{t2}')
        if q != 1:
            I(f'v_lshl_add_u32 v16, {u}, 8, v16'); I(f'v_mul_i32_i24 v48, -14, {u}')
        for n in range(2):
            X = XA + 3*n + q
            I(f's_xor_b32 s{t0}, s{sW}, {1-n}'); I(f's_lshl_b32 s{t0}, s{t0}, 4'); I(f's_add_u32 s{t0}, s{t0}, 16')
            if q < 2:
                for _ in range(q + 1): I(f's_add_u32 s{t0}, s{t0}, s{t1}')
                I(f'v_add_u32 v14, s{t0}, v2')
            else: I(f'v_add3_u32 v14, s{t0}, v2, v45')
            if k.o.get('xa') == 1: I('v_mov_b32 v15, 79'); I('v_med3_i32 v14, v14, 16, v15')
            I(f'v_lshrrev_b32 v{X}, 4, v14'); I(f'v_mul_u32_u24 v{X}, {TILE}, v{X}')
            I('v_add_u32 v15, -16, v14'); I('v_cmp_lt_u32 vcc, 63, v15')
            I('v_and_b32 v15, 1, v14'); I('v_and_b32 v14, 15, v14'); I('v_add_u32 v15, v15, v48'); I('v_cndmask_b32 v14, v14, v15, vcc')
            I(f'v_lshl_add_u32 v{X}, v14, 4, v{X}')
            I(f'v_add_u32 v{X}, v{X}, v16')
    I(f's_lshl_b32 s{t0}, s{sW}, 5'); I(f's_lshl_b32 s{t2}, s{sJ}, 2'); I(f's_add_u32 s{t0}, s{t0}, s{t2}')
    I(f's_add_u32 s{t2}, s{sGB}, {L.F_T}'); I(f's_add_u32 s{t0}, s{t0}, s{t2}')
    I(f'v_add_u32 v{vTF}, s{t0}, v{vL0}')
    I(f's_and_b32 s{t0}, s{sW}, 2'); I(f's_lshl_b32 s{t0}, s{t0}, 5'); I(f's_mul_i32 s{t1}, s{t3}, 6'); I(f's_add_u32 s{t0}, s{t0}, s{t1}'); I(f's_add_u32 s{t0}, s{t0}, s{t2}')
    I('v_and_b32 v15, 4, v1'); I('v_lshlrev_b32 v15, 3, v15'); I('v_and_b32 v16, 3, v1'); I('v_lshl_add_u32 v15, v16, 2, v15')
    I(f'v_add_u32 v{vHF}, s{t0}, v15')
    I(f's_mov_b32 s{t0}, 0x66665321'); I(f's_cmp_eq_u32 s{t3}, 0'); I(f's_cselect_b32 s{t0}, 0x55554310, s{t0}')
    I('v_and_b32 v16, 7, v1'); I('v_lshlrev_b32 v16, 2, v16'); I(f'v_lshrrev_b32 v16, v16, s{t0}'); I('v_and_b32 v16, 7, v16'); I('v_lshlrev_b32 v16, 2, v16')
    I('v_lshrrev_b32 v15, 3, v1'); I('v_min_u32 v15, 2, v15'); I(f'v_add_u32 v15, s{sW}, v15'); I('v_add_u32 v15, -1, v15')
    I('v_med3_i32 v15, v15, 0, 3')
    I('v_lshl_add_u32 v15, v15, 5, v16'); I(f'v_add_u32 v{vTP}, s{t2}, v15')
    I(f's_mov_b32 s{t0}, {BIG}')
    if not k.o.get('xa'):
        I(f's_cmp_eq_u32 s{sW}, 0'); I(f's_cselect_b32 s{t0}, {L.T0 - TILE}, s{t0}')
        I(f's_cmp_eq_u32 s{sW}, 3'); I(f's_cselect_b32 s{t0}, {L.T0 + 4*TILE + 3072}, s{t0}')
    I(f's_add_u32 s{t0}, s{t0}, s{sGB}')
    I('v_and_b32 v15, 3, v1'); I('v_bfe_u32 v16, v1, 2, 1'); I('v_mul_u32_u24 v16, 7, v16'); I('v_add_u32 v15, v15, v16')
    I('v_lshlrev_b32 v15, 10, v15'); I(f'v_add_u32 v{vHP}, s{t0}, v15')

def early_addr(k):
    main_addr1(k); main_addr2(k)
    g_addr(k, vFW, vFR, vFV, False)
def hinit(k):
    for t in range(4):
        for d in range(2):
            k.I(f'v_lshlrev_b32 v{HR+4*t+2*d}, 16, v{52+2*t+d}')
            k.I(f'v_and_b32 v{HR+4*t+2*d+1}, 0xffff0000, v{52+2*t+d}')

def t_prefill(k):
    I, L = k.I, k.L
    t0, t1, t2 = sT[0:3]
    for i in range(4): I(f'v_mov_b32 v{76+i}, -1')
    I(f's_lshl_b32 s{t1}, s{sJ}, 11'); I(f's_add_u32 s{t1}, s{t1}, s{sGB}')
    I(f's_cmp_eq_u32 s{sJ}, 7'); I(f's_cselect_b32 s{t1}, {BIG}, s{t1}')
    I(f's_mul_i32 s{t0}, s{sW}, {TILE}'); I(f's_add_u32 s{t0}, s{t0}, s{t1}')
    I(f's_and_b32 s{t2}, s{sW}, 1'); I(f's_lshl_b32 s{t2}, s{t2}, 10'); I(f's_add_u32 s{t1}, s{t1}, s{t2}')
    I(f'v_add_u32 v15, s{t0}, v4'); I(f'v_add_u32 v16, s{t1}, v4')
    I(f's_mov_b32 s{t0}, {L.H}'); I(f's_mov_b32 s{t1}, {L.T0}'); I(f's_mov_b32 s{t2}, {L.X1}')
    st = []
    for so in [dict(h=f's{t0}', t=f's{t1}', x=f's{t2}')[c] for c in k.o.get('kpf', 'htx')]:
        st += [f'buffer_store_dwordx4 v[76:79], v15, {WS}, {so} offen', f'buffer_store_dwordx4 v[76:79], v15, {WS}, {so} offen offset:1024',
               f'buffer_store_dwordx4 v[76:79], v16, {WS}, {so} offen']
    k.stores(st)

def spin_tail(k, top, done):
    I = k.I
    I(f's_cbranch_vccz {done}')
    I(f's_sub_u32 s{sSPIN}, s{sSPIN}, 1')
    I(f's_cbranch_scc0 {top}')
    I(f's_mov_b32 s{sSPIN}, 0')
    I(f's_branch {done}')
def ool(k, fn):
    e = k.e
    sn = e.snap()
    save = e.out; e.out = []
    fn()
    e.ool += e.out; e.out = save
    e.restore(sn)

def a_preload(k, base, steps, comb=False):
    I = k.I
    t0 = sT[0]
    I(f's_and_b32 s{t0}, s{sW}, 1'); I(f's_mul_i32 s{t0}, s{t0}, {16384 if comb else 28672}'); I(f's_add_u32 s{t0}, s{t0}, {base}')
    I(f'v_add_u32 v{SB[0]}, s{t0}, v39')
    for t in range(1, 4): I(f'v_xor_b32 v{SB[t]}, {t*32}, v{SB[0]}')
    for i, m in enumerate(steps):
        if m is None:
            for t in range(4): I(f'v_xor_b32 v{SB[t]}, {t*32}, v{vCA}')
            m = 0
        for t in range(4):
            for h in range(2): I(f'ds_read_b64_tr_b16 {vr(AW+16*i+4*t+2*h,2)}, v{SB[t]} offset:{m*4096 + h*512}')
def x_addr(k, base):
    I = k.I
    t0 = sT[0]
    I(f's_lshl_b32 s{t0}, s{sW}, 12'); I(f's_add_u32 s{t0}, s{t0}, {base + XS}')
    I(f'v_add_u32 v5, s{t0}, v4'); I('v_xor_b32 v6, 4096, v5'); I(f'v_xor_b32 v7, 4, v{vFW}')
def b_soff(k, region):
    for i in range(4): k.I(f's_add_u32 s{sT[4+i]}, s{(sOT, sOW)[i >> 1]}, {region + (i & 1)*4096}')
def b_src(p): return f'v{vB}, {WS}, s{sT[4 + 2*(p//7) + ((p%7) >> 2)]} offen offset:{((p%7)&3)*1024} sc1'
def kgemm(k, own, src, il, sg, rnd, need, init, zero=False, vf=(), v0=0, v1=13, nm='_', hooks={}, chk=True, fin=()):
    I, e, o = k.I, k.e, k.o
    vf = list(vf); fin = list(fin)
    il = [int(c, 36) for c in il] + [0]*16
    ld = [f'buffer_load_dwordx4 {vr(BF+4*(p%NB),4)}, {src(p)}' for p in range(14)]
    def loads(n, free):
        for _ in range(n):
            if ld:
                assert 14 - len(ld) - NB < free
                I(ld.pop(0))
                if 14 - len(ld) == sg: g_wr(k, 2*rnd)
    def mf(p, t, slot, z):
        acc = (OAC if p < 7 else own) + 4*t
        I(f'{MF16} {vr(acc,4)}, {vr(AW+16*(p%7)+4*t,4)}, {vr(BF+4*slot,4)}, ' + ('0' if z else vr(acc, 4)))
    def redo(p0, acc, name):
        done, retry = e.newlabel('Lnd'), e.newlabel('Lnr')
        I(f'v_cmp_u_f32 vcc, v{acc}, v{acc}')
        I(f's_cbranch_vccnz {retry}')
        e.label(done)
        def stub():
            e.label(retry)
            k.stamp(name)
            e.nop(16); e.wait_vm0()
            if p0 and not zero: init()
            sl = [4, 5, 6] if p0 == 0 else [0, 1, 2, 3, 8, 9]
            for c in range(0, 7, len(sl)):
                ps = range(p0 + c, min(p0 + c + len(sl), p0 + 7))
                for p in ps: I(f'buffer_load_dwordx4 {vr(BF+4*sl[p-p0-c],4)}, {src(p)}')
                for p in ps:
                    for t in range(4): mf(p, t, sl[p-p0-c], p == p0 and (zero or p0 == 0))
                e.nop(16)
            I(f'v_cmp_u_f32 vcc, v{acc}, v{acc}')
            spin_tail(k, retry, done)
        ool(k, stub)
    rds = [f'ds_read_b32 v{vFD}, v7 offset:32'] + [f'ds_read_b128 {vr(OAC+4*t,4)}, v6 offset:{t*1024}' for t in range(4)]
    def pchk():
        k.stamp('x' + nm + 'e')
        k.lpoll(rds, lambda: I(f'v_cmp_gt_u32 vcc, {rnd}, v{vFD}'), 'x')
        k.stamp(nm + 'e')
    if sg == 0: g_wr(k, 2*rnd)
    loads(il[0], 0)
    if -1 in hooks: hooks[-1]()
    per = -(-len(vf) // (4*(v1 - v0)))
    xw, xr = o.get('xwp', 7), o.get('xrp', 10)
    for p in range(14):
        n = il[p + 1]
        assert len(ld) < 14 - p
        r = k.sreg(nm + str(p))
        if r: e._emit(f's_memrealtime s[{r}:{r+1}]')
        for t in range(4):
            mf(p, t, p % NB, p == 0 or (p == 7 and zero))
            loads(n*(t+1)//4 - n*t//4, p + (t == 3))
            if p >= v0:
                for _ in range(per):
                    if vf: I(vf.pop(0))
                while vf and ('cselect' in vf[0] or 'vcc' in vf[0].split(',')[-1] or 's[' in vf[0].split(',')[-1]): I(vf.pop(0))
            if p == 13:
                for _ in range(2):
                    if fin: I(fin.pop(0))
        if p == 4: I(g_rd())
        if p == 6: g_chk(k, *need)
        if p == xw:
            if chk: redo(0, OAC, nm + 'r')
            for t in range(4): I(f'ds_write_b128 v5, {vr(OAC+4*t,4)} offset:{t*1024}')
            I(f'v_mov_b32 v{vFV}, {rnd}'); I(f'ds_write_b32 v{vFW}, v{vFV} offset:32')
        if p == xr:
            for t in rds: I(t)
        if p == 12: pchk()
        if p in hooks: hooks[p]()
    assert not vf and not ld and not fin
    if chk: redo(7, own, nm + 's')
    for i in range(0, 16, 2): I(f'v_pk_add_f32 {vr(own+i,2)}, {vr(own+i,2)}, {vr(OAC+i,2)}')
def g_addr(k, W, R, V, aux):
    I = k.I
    t0 = sT[0]
    I(f's_lshl_b32 s{t0}, s{sW}, 2'); I(f's_add_u32 s{t0}, s{t0}, {L_G}'); I(f'v_mov_b32 v{W}, s{t0}')
    I(f'v_and_b32 v{R}, 7, v1'); I(f'v_lshlrev_b32 v{R}, 2, v{R}'); I(f'v_add_u32 v{R}, {L_G}, v{R}')
def k0_init(k):
    k.I(f'v_mov_b32 v16, {L_G}'); k.I('v_lshl_add_u32 v16, v2, 2, v16'); k.I('ds_write_b32 v16, v13')
MFL = [vFW, vFR]
def g_wr(k, n, aux=False):
    W, V = (aFW, aFV) if aux else (MFL[0], vFV)
    k.I(f'v_mov_b32 v{V}, {n}'); k.I(f'ds_write_b32 v{W}, v{V}')
def g_rd(aux=False): return f'ds_read_b32 v{aFD}, v{aFR}' if aux else f'ds_read_b32 v{vFD}, v{MFL[1]}'
def g_chk(k, nm, na, aux=False, name=None):
    D, T = (aFD, aFT) if aux else (vFD, vFT)
    if name: k.stamp('x' + name)
    k.I(f'v_cndmask_b32 v{T}, {nm}, {na}, s[0:1]')
    k.lpoll([g_rd(aux)], lambda: k.I(f'v_cmp_gt_u32 vcc, v{T}, v{D}'), 'g')
    if name: k.stamp(name)
def g_wait(k, nm, na, name=None):
    k.I(g_rd(True)); g_chk(k, nm, na, True, name)
def poll_stats(k, tagbits, name, D, va, vb):
    I = k.I
    I(f's_or_b32 s{sN}, s{sTAG}, {tagbits}')
    def chk():
        I(f'v_cmp_ne_u32 vcc, s{sN}, v{D+2}')
        I(f'v_cmp_ne_u32 s[{sT[2]}:{sT[3]}], s{sN}, v{D+6}')
        I(f's_or_b64 vcc, vcc, s[{sT[2]}:{sT[3]}]')
    k.poll3([f'buffer_load_dwordx3 {vr(D,3)}, v{va}, {WS}, 0 offen sc1',
             f'buffer_load_dwordx3 {vr(D+4,3)}, v{vb}, {WS}, 0 offen sc1'], chk, name)

def tr2(k, dst, vb, off, step, tag=None):
    k.I(f'ds_read_b64_tr_b16 {vr(dst,2)}, v{vb} offset:{off}', tag=tag)
    k.I(f'ds_read_b64_tr_b16 {vr(dst+2,2)}, v{vb} offset:{off+step}', tag=tag)

def w3_src(k, V):
    I = k.I
    t0, t1 = sT[0], sT[1]
    I(f's_lshl_b32 s{t0}, s{sJ}, 9'); I(f's_lshr_b32 s{t1}, s{sA}, 1'); I(f's_lshl_b32 s{t1}, s{t1}, 7'); I(f's_add_u32 s{t0}, s{t0}, s{t1}')
    I(f's_and_b32 s{t1}, s{sA}, 1'); I(f's_mul_i32 s{t1}, s{t1}, {8*3584}'); I(f's_add_u32 s{t0}, s{t0}, s{t1}')
    I(f's_cmp_eq_u32 s{sJ}, 7'); I(f's_cselect_b32 s{t0}, {BIG}, s{t0}')
    I(f'v_lshrrev_b32 v15, 3, v1'); I(f'v_mul_u32_u24 v{V}, 3584, v15')
    I('v_bfe_u32 v15, v1, 4, 1'); I('v_lshlrev_b32 v15, 2, v15'); I('v_and_b32 v16, 7, v1'); I('v_xor_b32 v15, v15, v16')
    I(f'v_lshl_add_u32 v{V}, v15, 4, v{V}'); I(f'v_add_u32 v{V}, s{t0}, v{V}')
def w3_rd_base(k, V, base):
    I = k.I
    t0, t1 = sT[0], sT[1]
    I('v_lshrrev_b32 v15, 5, v1'); I('v_lshlrev_b32 v15, 3, v15')
    I('v_bfe_u32 v17, v1, 2, 2'); I('v_add_u32 v15, v15, v17')
    I('v_and_b32 v16, 3, v1')
    I(f'v_and_b32 v{V}, 1, v3'); I(f'v_lshlrev_b32 v{V}, 5, v{V}'); I(f'v_lshl_add_u32 v{V}, v16, 3, v{V}')
    I(f'v_lshl_add_u32 v{V}, v15, 7, v{V}')
    I('v_lshrrev_b32 v17, 1, v17'); I(f'v_lshl_add_u32 v{V}, v17, 6, v{V}')
    I(f's_and_b32 s{t0}, s{sA}, 1'); I(f's_lshl_b32 s{t0}, s{t0}, 6'); I(f'v_xor_b32 v{V}, s{t0}, v{V}')
    I(f's_lshr_b32 s{t0}, s{sA}, 1'); I(f's_lshl_b32 s{t0}, s{t0}, 11'); I(f's_add_u32 s{t0}, s{t0}, {base}')
    I(f'v_add_u32 v{V}, s{t0}, v{V}')
def w3_dma(k, V, sM, m, half, dest, tag):
    I = k.I
    t1 = sT[1]
    I(f's_add_u32 m0, s{sM}, {dest}')
    I(f's_mov_b32 s{t1}, {m*16*3584 + half*256}')
    I(f'buffer_load_dwordx4 v{V}, {srd("w3")}, s{t1} offen lds', tag=tag)
UR = 15*TILE
D_R, D_3, D_M = 0, 16384, RB + 32768
D_A = [RB, RB + 16384, 16384, 32768]
PH = 140
sWa, sWb, sUa, sUb = sT[4:8]
def w4_src(k, V):
    I = k.I
    t0, t1 = sT[0], sT[1]
    I(f's_mul_i32 s{t0}, s{sA}, {32*896}'); I(f's_lshl_b32 s{t1}, s{sJ}, 7'); I(f's_add_u32 s{t0}, s{t0}, s{t1}')
    I(f'v_lshrrev_b32 v15, 3, v1'); I(f'v_mul_u32_u24 v{V}, 896, v15')
    I('v_bfe_u32 v15, v1, 4, 1'); I('v_lshlrev_b32 v15, 2, v15'); I('v_and_b32 v16, 7, v1'); I('v_xor_b32 v15, v15, v16')
    I(f'v_lshl_add_u32 v{V}, v15, 4, v{V}'); I(f'v_add_u32 v{V}, s{t0}, v{V}')
    I(f'v_add_u32 v{V+1}, {7168 - 1024}, v{V}')
def rot_regs(k):
    I = k.I
    I(f's_mul_i32 s{sWa}, s{sJ}, {256*896}'); I(f's_sub_u32 s{sWb}, s{sWa}, {7*256*896}')
    I(f's_lshl_b32 s{sUa}, s{sJ}, 13'); I(f's_sub_u32 s{sUb}, s{sUa}, {7 << 13}')
def w4_dma(k, V, s, half, sM, dest, sS, tag):
    I = k.I
    i, gp = s >> 1, s & 1
    def f0():
        if k.o.get('now4'): return
        I(f's_cmp_ge_u32 s{sJ}, {7 - i}'); I(f's_cselect_b32 s{sS}, s{sWb}, s{sWa}')
        I(f's_add_u32 m0, s{sM}, {dest}')
        I(f's_add_u32 s{sS}, s{sS}, {(256*i + 128*half + 16*gp)*896}')
        I(f'buffer_load_dwordx4 v{V}, {srd("w4")}, s{sS} offen lds', tag=tag)
    def f1():
        if k.o.get('now4'): return
        I(f'buffer_load_dwordx4 v{V+1}, {srd("w4")}, s{sS} offen offset:1024 lds', tag=tag)
    return [f0, f1]
def w4_rd_base(k, V, sM, base):
    I = k.I
    I('v_lshrrev_b32 v15, 5, v1'); I('v_bfe_u32 v16, v1, 2, 2'); I('v_lshl_add_u32 v15, v15, 2, v16')
    I(f'v_and_b32 v{V}, 1, v3'); I(f'v_lshlrev_b32 v{V}, 5, v{V}'); I('v_and_b32 v16, 3, v1'); I(f'v_lshl_add_u32 v{V}, v16, 3, v{V}')
    I(f'v_lshl_add_u32 v{V}, v15, 7, v{V}')
    I('v_bfe_u32 v16, v1, 3, 1'); I(f'v_lshl_add_u32 v{V}, v16, 6, v{V}')
    I(f'v_add_u32 v{V}, s{sM}, v{V}'); I(f'v_add_u32 v{V}, {base}, v{V}')
    I(f'v_xor_b32 v{V+1}, 64, v{V}')
def w4_rd(k, V, W, off, tag):
    return [(lambda c=c, h=h: k.I(f'ds_read_b64_tr_b16 {vr(W+4*c+2*h,2)}, v{V+c} offset:{off + h*1024}', tag=tag)) for c in range(2) for h in range(2)]
def u_addrs(k, half, vUA, vPL, vFL):
    I, L = k.I, k.L
    t0, t1 = sT[0], sT[1]
    ru = half and k.o.get('ru', 1) and not k.o.get('dbg')
    b0, b1 = (L.X1, L.T0) if ru else (UR + half*8*TILE, UR + (half*8 + 4)*TILE)
    I(f's_and_b32 s{t0}, s{sA}, 1'); I(f's_lshl_b32 s{t0}, s{t0}, 12'); I(f's_lshr_b32 s{t1}, s{sA}, 1'); I(f's_mul_i32 s{t1}, s{t1}, {b1 - b0}')
    I(f's_add_u32 s{t0}, s{t0}, s{t1}'); I(f's_add_u32 s{t0}, s{t0}, s{sGB}'); I(f's_add_u32 s{t0}, s{t0}, {b0}')
    I(f'v_add_u32 v{vUA}, s{t0}, v4')
    I(f's_lshl_b32 s{t0}, s{sA}, 5'); I(f's_add_u32 s{t0}, s{t0}, s{sGB}'); I(f's_add_u32 s{t0}, s{t0}, {L.F_T}')
    I(f'v_min_u32 v15, 6, v1'); I(f'v_lshlrev_b32 v15, 2, v15'); I(f'v_add_u32 v{vPL}, s{t0}, v15')
    I(f's_lshl_b32 s{t1}, s{sJ}, 2'); I(f's_add_u32 s{t0}, s{t0}, s{t1}')
    I(f'v_add_u32 v{vFL}, s{t0}, v{vL0}')
def dump_addr(k, V, base):
    I = k.I
    t0 = sT[0]
    I(f's_lshl_b32 s{t0}, s{sA}, 12'); I(f's_add_u32 s{t0}, s{t0}, {base}')
    I(f'v_and_b32 v{V+1}, 7, v1'); I(f'v_lshrrev_b32 v{V+2}, 5, v1'); I(f'v_xor_b32 v{V+1}, v{V+1}, v{V+2}')
    I(f'v_and_b32 v{V}, 31, v1'); I(f'v_lshlrev_b32 v{V}, 7, v{V}'); I(f'v_lshl_add_u32 v{V}, v{V+1}, 4, v{V}'); I(f'v_add_u32 v{V}, s{t0}, v{V}')
    for g in range(1, 4): I(f'v_xor_b32 v{V+g}, {g*32}, v{V}')
class Mlp:
    def __init__(r, k, nm, half, **kw):
        r.k, r.nm, r.half = k, nm, half
        r.__dict__.update(kw)
        r.ev = []; r.free = []; r.todo = []
        r.slot = {(b, gp): r.PK[b] + 4*gp for b in range(2) for gp in range(2)}
    def op(r, key, d): return r.k.o.get(r.nm.upper() + '_' + key, d)
    def at(r, t, *fs): r.ev.append((t, len(r.ev), fs))
    def seq(r, t, dt, fs):
        for i, f in enumerate(fs): r.at(t + i*dt, f)
    def tick(r, t):
        r.ev.sort(key=lambda x: x[:2])
        while r.ev and r.ev[0][0] <= t:
            for f in r.ev.pop(0)[2]: f() if callable(f) else r.k.I(f)
    def b_rd(r, i):
        b, m = divmod(i, 29)
        d = vr(r.BB + 4*(i % 4), 4)
        r.k.I(f'ds_read_b128 {d}, v{r.vX} offset:{b*2*TILE + m*512}' if m < 28 else f'ds_read_b128 {d}, v{r.vS} offset:{b*1024}')
    def pre(r):
        for i in range(3): r.b_rd(i)
    def flag(r, b, ack=True):
        if ack: r.k.e.wait_tag(f'u{b}')
        r.k.stores([f'buffer_store_dword v{r.vTG}, v{r.vFL}, {WS}, 0 offen offset:{256 + r.half*128 + b*256}'])
        r.k.stamp(f'F{b}')
    def pl(r, b): return f'buffer_load_dword v{r.vD}, v{r.vPL}, {WS}, 0 offen offset:{256 + r.half*128 + b*256} sc1'
    def chk(r, b):
        k = r.k
        k.stamp(f'xQ{b}')
        k.poll2([r.pl(b)], lambda: k.I(f'v_cmp_ne_u32 vcc, s{sTAG}, v{r.vD}'), f'{r.nm}{b}')
        k.stamp(f'Q{b}')
        r.todo += [(b, s) for s in range(2, 14)]
    def loads(r, n=1):
        I, sS = r.k.I, sT[1]
        for _ in range(n):
            if not r.todo or not r.free: return
            b, s = r.todo.pop(0)
            r.slot[b, s] = r.free.pop(0)
            i, gp = s >> 1, s & 1
            if gp == 0:
                I(f's_cmp_ge_u32 s{sJ}, {7 - i}'); I(f's_cselect_b32 s{sS}, s{sUb}, s{sUa}'); I(f's_add_u32 s{sS}, s{sS}, {i << 13}')
            I(f'buffer_load_dwordx4 {vr(r.slot[b,s],4)}, v{r.vUA}, {WS}, s{sS} offen offset:{b*2048 + gp*1024} sc1')
    def give(r, *regs): r.free.extend(regs)
    def dump(r, q):
        for g in range(4): r.k.I(f'ds_write_b128 v{r.vDP+g}, {vr(r.Q[q]+4*g,4)} offset:{r.DO[q]}')
    def run(r, afn, L_):
        k = r.k
        I, e, o = k.I, k.e, k.o
        ac2 = o.get('ac2', 0)
        gg = gelu_groups(r.AC, r.GT, r.GC, r.PK, r.op('pk', 0))
        pr = r.op('pr', r.pr)
        ov = o.get('ov', 1)
        def up(i):
            b, m = divmod(i, 29)
            if i + 3 < 58: r.b_rd(i + 3)
            x0 = 99 if not ac2 else ov + 1 if b else 1
            odd = m >= x0 and (m - x0) % 2 == 0
            acc = vr(r.AX if odd else r.AC + 16*b, 16)
            I(f'{MF32} {acc}, {vr(afn(m),4)}, {vr(r.BB + 4*(i % 4),4)}, ' + ('0' if m in (0, x0) else acc))
        def mf(s, q): I(f'{MF32} {vr(r.Q[q],16)}, {vr(r.W0+8*s+4*(q&1),4)}, {vr(r.slot[q>>1,s],4)}, ' + ('0' if s == 0 else vr(r.Q[q], 16)))
        def phase(p):
            r.tick(p*PH - 1)
            if p == 0 or pr[p] != pr[p-1]: I(f's_setprio {pr[p]}')
            k.stamp(f'P{p}')
        for b in range(2):
            phase(2*b)
            for m in range(ov*b, 29):
                up(29*b + m); r.tick(2*b*PH + 4*m)
            if b == 0:
                for m in range(ov): up(29 + m)
            phase(2*b + 1)
            g = [f'v_add_f32 v{r.AC+16*b+i}, v{r.AC+16*b+i}, v{r.AX+i}' for i in range(16)]*ac2
            for Lq, P, off in gg[2*b:2*b+2]:
                g += Lq + [lambda P=P, off=off: k.stores([f'buffer_store_dwordx4 {vr(P,4)}, v{r.vUA}, {WS}, s{sUa} offen offset:{off}'], tag=f'u{b}')]
            for n, x in enumerate(g):
                r.tick((2*b + 1)*PH + n + 16*(1 - ac2))
                x() if callable(x) else I(x)
        sq = [[(s, q) for q0 in (0, 2) for s in range(2) for q in (q0, q0 + 1)] + [(s, q) for s in range(2, 14) for q in (0, 1)],
              [(s, q) for s in range(2, 14 - L_) for q in (2, 3)] + [(s, q) for q in (2, 3) for s in range(14 - L_, 14)]]
        for b in range(2):
            phase(4 + b)
            for n, (s, q) in enumerate(sq[b]):
                mf(s, q)
                if b == 0 and q & 1 and (s > 1 or q == 3): r.give(r.slot[q >> 1, s])
                if b == 0 and q == 3: r.give(r.W0 + 8*s, r.W0 + 8*s + 4)
                r.tick((4 + b)*PH + 4*n)
                r.loads(r.op('lr', 2))
        assert not r.todo
        k.stamp('G')
        r.tick(9999)
def pat(k, P):
    I = k.I
    I('v_lshrrev_b32 v15, 2, v2'); I('v_and_b32 v16, 1, v3'); I('v_cmp_eq_u32 vcc, v15, v16')
    I(f'v_mov_b32 v15, 0x3f803f80')
    for i in range(4): I(f'v_cndmask_b32 v{P+i}, 0, v15, vcc')
def up_addrs(k, vX, vS):
    I = k.I
    t0 = sT[0]
    I('v_bfe_u32 v15, v1, 4, 1'); I(f'v_mul_u32_u24 v{vX}, {TILE}, v15')
    I(f'v_lshl_add_u32 v{vX}, v2, 4, v{vX}')
    I('v_lshrrev_b32 v16, 5, v1'); I(f'v_lshl_add_u32 v{vX}, v16, 8, v{vX}')
    I(f'v_and_b32 v{vS}, 31, v1'); I(f'v_lshlrev_b32 v{vS}, 5, v{vS}'); I(f'v_add_u32 v{vS}, {L_STAT}, v{vS}')
def gelu_groups(acc, GT, GC, PK, pk=0):
    out = []
    for b in range(2):
        G = GC + 4*b
        for gp in range(2):
            Lq = []
            x = acc + 16*b + 8*gp; tt = GT
            if 3 - (2*b + gp) < pk:
                c = 108
                Lq.append(f'v_mov_b32 v{c}, v{G+1}')
                for i in range(0, 8, 2): Lq.append(f'v_pk_mul_f32 {vr(tt+i,2)}, {vr(x+i,2)}, {vr(x+i,2)}')
                for i in range(0, 8, 2): Lq.append(f'v_pk_fma_f32 {vr(tt+i,2)}, {vr(tt+i,2)}, {vr(c,2)}, {vr(G,2)} op_sel_hi:[1,0,0]')
                for i in range(0, 8, 2): Lq.append(f'v_pk_mul_f32 {vr(tt+i,2)}, {vr(tt+i,2)}, {vr(x+i,2)}')
                for i in range(8): Lq.append(f'v_exp_f32 v{tt+i}, v{tt+i}')
                for i in range(0, 8, 2): Lq.append(f'v_pk_fma_f32 {vr(tt+i,2)}, {vr(tt+i,2)}, {vr(G+2,2)}, {vr(G+2,2)} op_sel_hi:[1,0,0]')
                for i in range(8): Lq.append(f'v_rcp_f32 v{tt+i}, v{tt+i}')
                for i in range(0, 8, 2): Lq.append(f'v_pk_mul_f32 {vr(x+i,2)}, {vr(x+i,2)}, {vr(tt+i,2)}')
            else:
                for i in range(8): Lq.append(f'v_mul_f32 v{tt+i}, v{x+i}, v{x+i}')
                for i in range(8): Lq.append(f'v_fma_f32 v{tt+i}, v{tt+i}, v{G+1}, v{G}')
                for i in range(8): Lq.append(f'v_mul_f32 v{tt+i}, v{tt+i}, v{x+i}')
                for i in range(8): Lq.append(f'v_exp_f32 v{tt+i}, v{tt+i}')
                for i in range(8): Lq.append(f'v_fma_f32 v{tt+i}, v{tt+i}, v{G+2}, v{G+2}')
                for i in range(8): Lq.append(f'v_rcp_f32 v{tt+i}, v{tt+i}')
                for i in range(8): Lq.append(f'v_mul_f32 v{x+i}, v{x+i}, v{tt+i}')
            P = PK[b] + 4*gp
            for i in range(4): Lq.append(f'v_cvt_pk_bf16_f32 v{P+i}, v{x+2*i}, v{x+2*i+1}')
            out.append((Lq, P, b*2048 + gp*1024))
    return out
def publish_stats(k, src, sreg, tagbits, T, mid=None, thru=False, ack=True, after=None, flag=()):
    e, I = k.e, k.I
    P = T
    pack_pairs(k, src, P)
    st = [f'buffer_store_dwordx4 {vr(P,4)}, v{vST}, {WS}, s{sreg} offen',
          f'buffer_store_dwordx4 {vr(P+4,4)}, v{vST}, {WS}, s{sreg} offen offset:1024']
    if thru:
        for t in st: I(t + ' sc1')
    else: k.stores(st + list(flag), tag='ds')
    if after: after()
    S = T + 8
    I(f'v_pk_add_f32 {vr(S,2)}, {vr(src,2)}, {vr(src+2,2)}')
    I(f'v_pk_mul_f32 {vr(S+2,2)}, {vr(src,2)}, {vr(src,2)}')
    I(f'v_pk_fma_f32 {vr(S+2,2)}, {vr(src+2,2)}, {vr(src+2,2)}, {vr(S+2,2)}')
    for i in range(4, 16, 2):
        I(f'v_pk_add_f32 {vr(S,2)}, {vr(S,2)}, {vr(src+i,2)}')
        I(f'v_pk_fma_f32 {vr(S+2,2)}, {vr(src+i,2)}, {vr(src+i,2)}, {vr(S+2,2)}')
    I(f'v_add_f32 v{S+4}, v{S}, v{S+1}')
    I(f'v_add_f32 v{S+5}, v{S+2}, v{S+3}')
    k.allred2(S+4, S+5, S, 'v_add_f32')
    I(f'v_or_b32 v{S+6}, {tagbits}, v{vTAG}')
    if ack: e.wait_vm0()
    k.stores([f'buffer_store_dwordx3 {vr(S+4,3)}, v9, {WS}, 0 offen'])
    if mid: mid()

def x1_dma(k, m0_, vaddr):
    I = k.I
    t0, t1 = sT[0], sT[1]
    I(f's_mul_i32 s{t0}, s{sA}, {TILE}')
    for i in range(7):
        m = m0_ + i
        if i % 4 == 0:
            I(f's_mov_b32 s{t1}, {k.L.X1 + m*1024}')
            I(f's_add_u32 m0, s{t0}, {RA + m*1024}')
        I(f'buffer_load_dwordx4 v{vaddr}, {WS}, s{t1} offen offset:{(i&3)*1024} sc1 lds', tag='x1')

def main_rest(k):
    e, I, L, o = k.e, k.I, k.L, k.o
    t0, t1, t2, t3 = sT[0:4]
    sR = sT[8]
    sn = o.get('sn', '')
    assert 't' in sn and 'x' in sn and 'h' in sn
    il = o.get('il', '722111').split('.')
    il = il + il[-1:]*2
    sg = [int(c, 36) for c in o.get('sg', 'aaa')]
    assert o.get('tpb', 0) == 0
    b_soff(k, L.O)
    I(f's_mov_b32 s{sR}, {L.H}')
    k.k_landed()
    a_preload(k, RA, range(7))
    g_wr(k, 1)
    x_addr(k, RA)
    k.k_landed2()
    def chk(): I(f'v_cmp_ne_u32 vcc, s{sTAG}, v16')
    k.stamp('xpo')
    k.poll3([f'buffer_load_dword v16, v{vOP}, {WS}, 0 offen sc1'], chk, 'o')
    k.stamp('po')
    I(f's_setprio {o.get("gp", 1)}')
    kgemm(k, HR, b_src, il[0], sg[0], 1, (1, 0), lambda: hinit(k), nm='H', chk='o' in sn)
    k.stamp('hg')
    def mid():
        g_chk(k, 0, 1)
    D = 32
    G = D
    sl = [f'buffer_load_dwordx3 {vr(D,3)}, v{vSA}, {WS}, 0 offen sc1', f'buffer_load_dwordx3 {vr(D+4,3)}, v{vSB}, {WS}, 0 offen sc1']
    publish_stats(k, HR, sR, 1, BF, mid, False, ack=False, after=lambda: I(g_rd()),
                  flag=[f'buffer_store_dword v{vTAG}, v{vTF}, {WS}, 0 offen offset:128'])
    k.stamp('hp')
    if k.stop == 'h': return
    a_preload(k, RB, range(7))
    g_wr(k, 3)
    x_addr(k, RB)
    b_soff(k, L.H)
    I('v_lshlrev_b32 v8, 4, v3'); I(f'v_add_u32 v8, {L_CS1}, v8')
    I(f's_mov_b32 s{sR}, {L.T0}')
    I(f's_or_b32 s{sN}, s{sTAG}, 1')
    k.stamp('xph')
    k.poll3([f'buffer_load_dword v16, v{vHF}, {WS}, 0 offen offset:128 sc1'], chk, 'h')
    k.stamp('ph')
    MR, MU = 12, 10
    def tst():
        I = k.I
        row_stats(k, D)
        I(f'v_add_f32 v{D+2}, 0x3727c5ac, v{D+1}'); I(f'v_rsq_f32 v{D+4}, v{D+2}')
        I(f'v_mul_f32 v{MU}, -1.0, v{D}')
        I(f'v_mul_f32 v{D+2}, v{D+4}, v{D+4}'); I(f'v_mul_f32 v{D+2}, v{D+2}, v{D+1}')
        I(f'v_add_f32 v{D+2}, 0x3727c5ac, v{D+2}'); I(f'v_rsq_f32 v{D+2}, v{D+2}')
        I(f'v_mul_f32 v{MR}, v{MU}, v{D+4}')
        I(f'v_mul_f32 v{D+6}, v{D+4}, v{D+2}')
        gelu_consts(k, D+6, G)
        I(f'v_mov_b32 v{D+6}, v{G+1}')
    def schk():
        I(f'v_cmp_ne_u32 vcc, s{sN}, v{D+2}')
        I(f'v_cmp_ne_u32 s[{sT[2]}:{sT[3]}], s{sN}, v{D+6}')
        I(f's_or_b64 vcc, vcc, s[{sT[2]}:{sT[3]}]')
    q0, q1 = o.get('q0s', 1), o.get('q1s', 8)
    CS = BF + 16
    hooks = {q0: lambda: [I(t) for t in sl], q1: lambda: k.poll2(sl, schk, 'hs'),
             9: lambda: [I(f'ds_read_b128 {vr(CS+4*t,4)}, v8 offset:{t*64}') for t in range(4)]}
    assert len(hooks) == 3
    fin = [f'v_pk_fma_f32 {vr(OAC+i,2)}, {vr(CS+i,2)}, {vr(MU,2)}, {vr(OAC+i,2)} op_sel_hi:[1,0,1]' for i in range(0, 16, 2)]
    kgemm(k, ACC, b_src, il[1], sg[1], 2, (3, 3 if o.get('kpf', 'htx') != 'htx' else 1), None, zero=True, vf=k.capture(tst), v0=q1 + 1, nm='U', hooks=hooks, fin=fin)
    k.stamp('tg')
    T = BF
    P = T + 16
    gl = []
    for h in range(2):
        x = ACC + 8*h; tt = T + 8*h
        for i in range(0, 8, 2): gl.append(f'v_pk_mul_f32 {vr(tt+i,2)}, {vr(x+i,2)}, {vr(x+i,2)}')
        for i in range(0, 8, 2): gl.append(f'v_pk_fma_f32 {vr(tt+i,2)}, {vr(tt+i,2)}, {vr(D+6,2)}, {vr(G,2)} op_sel_hi:[1,0,0]')
        for i in range(0, 8, 2): gl.append(f'v_pk_mul_f32 {vr(tt+i,2)}, {vr(tt+i,2)}, {vr(x+i,2)}')
        for i in range(8): gl.append(f'v_exp_f32 v{tt+i}, v{tt+i}')
        for i in range(0, 8, 2): gl.append(f'v_pk_fma_f32 {vr(tt+i,2)}, {vr(tt+i,2)}, {vr(G+2,2)}, {vr(G+2,2)} op_sel_hi:[1,0,0]')
        for i in range(8): gl.append(f'v_rcp_f32 v{tt+i}, v{tt+i}')
        for i in range(0, 8, 2): gl.append(f'v_pk_mul_f32 {vr(x+i,2)}, {vr(x+i,2)}, {vr(tt+i,2)}')
        gl += k.capture(lambda: k.cvt(P+4*h, x, 8))
        gl.append(f'v_permlane16_swap_b32 v{P+4*h}, v{P+4*h+2}')
        gl.append(f'v_permlane16_swap_b32 v{P+4*h+1}, v{P+4*h+3}')
        if h == 1: gl.insert(len(gl) - 12, g_rd())
        gl.append(f'buffer_store_dwordx4 {vr(P+4*h,4)}, v{vHS}, {WS}, 0 offen offset:{h*1024} sc1')
        gl.append(lambda h=h: k.stores([f'buffer_store_dwordx4 {vr(P+4*h,4)}, v{vST}, {WS}, s{sR} offen offset:{h*1024}'] + [f'buffer_store_dword v{vTAG}, v{vTF}, {WS}, 0 offen']*h, tag='tl'))
    for n, t in enumerate(gl):
        t() if callable(t) else I(t)
    k.stamp('tp')
    def hn():
        for i in range(0, 16, 2):
            I(f'v_pk_fma_f32 {vr(ACC+i,2)}, {vr(HR+i,2)}, {vr(D+4,2)}, {vr(MR,2)} op_sel_hi:[1,0,0]')
    if k.stop == 't': return
    g_chk(k, 0, 4, name='et')
    a_preload(k, RA, [0, 1, 2, 7, 8, 9, None], True)
    g_wr(k, 5)
    x_addr(k, RA)
    hn()
    I(f's_mov_b32 s{sT[4]}, {L.T0 - TILE}'); I(f's_mov_b32 s{sT[5]}, {L.T0 - TILE + 7168}')
    I(f's_mov_b32 s{sR}, {L.X1}')
    sM, sS, sM2 = sT[9], sT[10], sT[11]
    w3_rd_base(k, 14, RC)
    I(f's_and_b32 s{t0}, s{sW}, 1'); I(f's_mul_i32 s{t0}, s{t0}, {TILE}'); I(f'v_add_u32 v{vB}, s{t0}, v{vB}')
    def x_src(p):
        i = p % 7
        return f'v{XA + 3*(p//7) + i//3}, {WS}, s{sT[4 + (3 <= i < 6)]} offen offset:{(i%3)*1024} sc1'
    pl = f'buffer_load_dword v16, v{vTP}, {WS}, 0 offen sc1'
    ph = f'buffer_load_dword v17, v{vHP}, {WS}, 0 offen sc1'
    k.stamp('xpt')
    k.poll3([pl], chk, 't')
    hooks = {}
    ho = o.get('ho', 1)
    if ho:
        hx = o.get('hx', 1)
        il[2] = '7' + '0'*(hx + 1) + o.get('ix', '322')
        hooks = {-1: lambda: I(ph), hx: lambda: (k.stamp('xhl'), k.poll2([ph], lambda: I('v_cmp_eq_u32 vcc, -1, v17'), 'hl'), k.stamp('hl'))}
    k.stamp('pt')
    kgemm(k, ACC, x_src, il[2], sg[2], 3, (5, 0), hn, nm='X', hooks=hooks)
    k.stamp('xg')
    def mid():
        for i in range(0, 16, 2):
            I(f'v_pk_add_f32 {vr(RES+i,2)}, {vr(HR+i,2)}, {vr(ACC+i,2)}')
    publish_stats(k, ACC, sR, 2, BF, mid, ack=False)
    I('s_setprio 0')
    k.stamp('xp')
    k.bar('ex')
    if k.stop == 'x1': return
    def F(m): return 128 + 4*m
    AC, BB, GT, GC, PAT, C, AXT = 44, 76, 92, 28, 108, 32, 36
    vX, vS, vUA, vW4, vPL, vFL, vWR, vDP = 5, 6, 7, 10, 12, 9, 18, 108
    I(f'v_subrev_u32 v8, {RC - RB}, v14')
    def frd(m): tr2(k, F(m), 8 if 3 <= m < 17 else 14, (m if m < 3 else m - 3 if m < 17 else m - 17)*4096, 512, tag='w3p' if m < 3 else None)
    SR = 40
    def xstats(D):
        I = k.I
        row_stats(k, D)
        I(f'v_mul_f32 v{D+3}, -1.0, v{D}')
        k.split_b(D+3, SR, D+2)
        I(f'v_add_f32 v{D+2}, 0x3727c5ac, v{D+1}'); I(f'v_rsq_f32 v{D+4}, v{D+2}')
        gelu_consts(k, D+4, SR+4)
        I(f's_lshl_b32 s{t0}, s{sW}, 9'); I(f's_add_u32 s{t0}, s{t0}, {L_STAT}')
        I('v_lshlrev_b32 v15, 5, v2'); I(f'v_add_u32 v15, s{t0}, v15')
        I(f'ds_write_b128 v15, {vr(SR,4)}'); I(f'ds_write_b128 v15, {vr(SR+4,4)} offset:16')
    def cs(m): I(f'{MF16} {vr(C,4)}, {vr(PAT,4)}, {vr(F(m),4)}, ' + ('0' if m == 0 else vr(C, 4)))
    dm = []
    for s in range(7): dm += w4_dma(k, vW4, s, 0, sM, RB + ((s + 1) % 7)*8192, sS, 'a1')
    def mdma(s): return w4_dma(k, vW4, s, 1, sM, RC + (s % 5)*8192 if s < 10 else D_3 + (s - 10)*8192, sS, f'w{s}')
    def mrd(s): return [lambda: e.wait_tag(f'w{s}')] + w4_rd(k, vWR, 128 + 8*s, (s % 5)*8192, f'r{s}')
    lf = o.get('lf', 11); f0 = o.get('f0', 10); f1 = o.get('f1', 17)
    assert f1 >= 17 and f1 <= 28 - lf
    D2 = 60
    sl = [f'buffer_load_dwordx3 {vr(D2,3)}, v{vSA}, {WS}, 0 offen sc1', f'buffer_load_dwordx3 {vr(D2+4,3)}, v{vSB}, {WS}, 0 offen sc1']
    for m in range(f0): frd(m)
    pat(k, PAT)
    if o.get('xw', 1): e.wait_tag('ds')
    k.stamp('xi')
    x1_dma(k, 0, vB); x1_dma(k, 7, vB)
    for t in sl: I(t)
    assert lf == 11 and f0 >= 3
    if o.get('nA'):
        for m in range(f0, f1): frd(m)
        e.wait_lg0(); k.bar('xj')
    else:
        e.wait_tag('w3p'); k.bar('xj')
        for m in range(f0, f1): frd(m)
    up_addrs(k, vX, vS)
    w4_src(k, vW4); rot_regs(k)
    MFL[:] = [0, 26]
    g_addr(k, MFL[0], MFL[1], vFV, False)
    I(f's_lshl_b32 s{sM}, s{sA}, 11')
    w4_rd_base(k, vWR, sM, RC); u_addrs(k, 1, vUA, vPL, vFL)
    I(f'v_mov_b32 v{AXT+2}, 0'); I(f'v_mov_b32 v{AXT+3}, 0')
    I(f's_mul_i32 s{t0}, s{sA}, {TILE}')
    I('v_and_b32 v15, 60, v1'); I('v_lshl_add_u32 v15, v1, 6, v15'); I(f'v_add_u32 v15, s{t0}, v15')
    for m in range(f1): cs(m)
    e.wait_tag('x1')
    k.stamp('xl')
    rds = [f'ds_read_b32 v{40+i}, v15 offset:{RA + min(i*4096, TILE - 4096)}' for i in range(4)]
    def xchk():
        for t in rds: I(t)
        I('v_max3_u32 v16, v40, v41, v42'); I('v_max_u32 v16, v16, v43')
        I('v_cmp_eq_u32 vcc, -1, v16')
    done, retry = e.newlabel('Lxd'), e.newlabel('Lxr')
    xchk()
    I(f's_cbranch_vccnz {retry}')
    e.label(done)
    def stub():
        e.label(retry)
        k.stamp('xr')
        x1_dma(k, 0, vB); x1_dma(k, 7, vB)
        e.wait_vm0()
        xchk()
        spin_tail(k, retry, done)
    ool(k, stub)
    k.bar('b8')
    I(f's_setprio {o.get("pb", 0)}')
    del dm[:o.get('nA', 0)]
    for _ in range(o.get('nd', 4)): dm.pop(0)()
    I(f's_or_b32 s{sN}, s{sTAG}, 2')
    def schk():
        I(f'v_cmp_ne_u32 vcc, s{sN}, v{D2+2}')
        I(f'v_cmp_ne_u32 s[{sT[2]}:{sT[3]}], s{sN}, v{D2+6}')
        I(f's_or_b64 vcc, vcc, s[{sT[2]}:{sT[3]}]')
    k.poll2(sl, schk, 'xs')
    k.stamp('px')
    r = Mlp(k, 'n', 1, AC=AC, BB=BB, GT=GT, GC=GC, PK=[100, 76], vX=vX, vS=vS, vUA=vUA, vPL=vPL, vFL=vFL, vTG=vTAG, vD=16, W0=128,
            Q=[44, 112, 60, 92], AX=112, vDP=vDP, DO=[q*16384 for q in range(4)], pr='111111')
    op, at, seq = r.op, r.at, r.seq
    xstats(D2)
    r.pre()
    I(f's_or_b32 s{sN}, s{sTAG}, 3')
    for _ in range(o.get('ne', 4)): dm.pop(0)()
    e.wait_lg0(); k.bar('f3')
    fr = k.capture(lambda: [frd(m) for m in range(f1, 28)])
    nf = op('nf', 6)
    for t in fr[:nf]: I(t)
    seq(0, 2, fr[nf:]); at(2*(22 - nf), lambda: g_wr(k, 7))
    seq(op('a0', 0), op('ad', 6), dm)
    seq(op('cs', 24), 4, [(lambda m=m: cs(m)) for m in range(f1, 28)])
    at(op('cs', 24) + 56, lambda: k.split_a(C, AXT, C+1))
    at(100, f'ds_read_b128 {vr(GC,4)}, v{vS} offset:16', f'ds_read_b128 {vr(GC+4,4)}, v{vS} offset:1040')
    assert op('cs', 24) + 56 <= 96
    r0 = op('r0', 70)
    assert r0 > op('a0', 0) + op('ad', 6)*(len(dm) - 1)
    at(r0 - 8, g_rd()); at(r0, lambda: g_chk(k, 7, 0, name='rc'))
    seq(r0, op('d0', 12), [f for s in range(5) for f in mdma(s)])
    xl = f'buffer_load_dword v8, v{vPL}, {WS}, 0 offen sc1'
    at(op('xd', 110), xl); at(PH + 70, lambda: k.poll2([xl], lambda: I(f'v_cmp_ne_u32 vcc, s{sN}, v8'), 'xd'))
    at(op('m2', PH + 40), lambda: e.wait_tag('a1'), lambda: g_wr(k, 8), lambda: k.stamp('m2'))
    at(2*PH + op('f0', 32), lambda: r.flag(0))
    r1, rs = 2*PH + op('r1', 12), op('rs', 16)
    assert r1 + rs - 4 > r0 + 9*op('d0', 12)
    for s in range(5):
        assert r1 + s*rs >= 2*PH + 4*(2*s + 1)
        seq(r1 + s*rs, 2, mrd(s))
        d = mdma(s + 5)
        at(r1 + s*rs + rs, lambda s=s: e.wait_tag(f'r{s}'), d[0]); at(r1 + s*rs + rs + rs//2, d[1])
    at(3*PH - 1, lambda: g_wr(k, 9), lambda: r.give(36, 40, 84, 88))
    def res():
        I = k.I
        I(f's_add_u32 s{t0}, s{sM}, {D_R}')
        I('v_and_b32 v15, 7, v2'); I('v_xor_b32 v15, v15, v3'); I('v_lshlrev_b32 v15, 4, v15'); I('v_lshl_add_u32 v15, v2, 7, v15')
        I(f'v_add_u32 v15, s{t0}, v15'); I('v_xor_b32 v17, 64, v15')
    r3 = 3*PH + op('r3', 40)
    assert r3 > r1 + 5*rs + rs//2
    at(r3 - 12, g_rd(), res); at(r3, lambda: g_chk(k, 9, 5, name='g9'))
    seq(r3, op('d3', 6), [f for s in range(10, 14) for f in mdma(s)])
    seq(r3 + 1, 4, [f'ds_write_b128 v{15 + 2*(t&1)}, {vr(RES+4*t,4)} offset:{(t>>1)*8192}' for t in range(4)] + [lambda: (g_wr(k, 10), r.give(240, 244, 248, 252))])
    q0 = 3*PH + op('q0', 20)
    at(q0, r.pl(0)); at(q0 + op('w0', 50), lambda: r.chk(0)); seq(q0 + op('w0', 50), op('l0', 6), [r.loads]*8)
    seq(3*PH + op('r2', 84), 2, [f for s in range(5, 10) for f in mrd(s)] + [f'v_subrev_u32 v{vWR+i}, {RC - D_3}, v{vWR+i}' for i in range(2)])
    at(4*PH - 1, lambda: r.give(28, 32), lambda: dump_addr(k, vDP, D_M))
    at(4*PH + op('f1', 12), lambda: r.flag(1, not o.get('uq')))
    r4 = 4*PH + op('r4', 60)
    seq(r4, 1, [f for s in range(10, 14) for f in mrd(s)] + [lambda: g_wr(k, 11)])
    assert r4 + 20 < 4*PH + 4*24
    q1 = 4*PH + op('q1', 40)
    at(q1, r.pl(1)); at(q1 + op('w1', 40), lambda: r.chk(1), lambda: r.loads(12))
    ml, qa = o.get('ml', 4), 5*PH + op('qa', 4)
    at(qa - 12 - PH + 128, g_rd()); at(qa, lambda: g_chk(k, 11, 6), lambda: r.dump(0)); at(qa + 8, lambda: r.dump(1))
    at(5*PH + op('qb', 60), e.wait_lg0, lambda: k.bar('q0'))
    at(5*PH + 4*(24 - ml + 1), lambda: r.dump(2))
    at(5*PH + 4*23, e.wait_lg0, lambda: k.bar('q2'))
    at(6*PH, lambda: r.dump(3), e.wait_lg0, lambda: k.bar('q3'))
    r.run(lambda m: F(m) if m < 28 else AXT, ml)
    MFL[:] = [vFW, vFR]
    k.stamp('end')

vT3, vT2, vT4, vTQ, vTD = 202, 203, 204, 205, 206
def touch_addrs(k):
    I, L = k.I, k.L
    t0, t1, t2 = sT[0:3]
    I(f's_and_b32 s{t0}, s{sG}, 3'); I(f's_lshl_b32 s{t0}, s{t0}, 2'); I(f's_add_u32 s{t0}, s{t0}, s{sA}')
    I(f's_mul_i32 s{t1}, s{t0}, 3584'); I(f's_lshl_b32 s{t2}, s{sJ}, 9'); I(f's_add_u32 s{t1}, s{t1}, s{t2}')
    I(f's_cmp_eq_u32 s{sJ}, 7'); I(f's_cselect_b32 s{t1}, {BIG}, s{t1}')
    I('v_lshrrev_b32 v15, 1, v1'); I(f'v_mul_u32_u24 v{vT3}, {16*3584}, v15'); I('v_and_b32 v15, 1, v1')
    I(f'v_lshl_add_u32 v{vT3}, v15, 7, v{vT3}'); I(f'v_add_u32 v{vT3}, s{t1}, v{vT3}')
    I(f's_mul_i32 s{t0}, s{t0}, 896'); I(f's_lshl_b32 s{t2}, s{sJ}, 7'); I(f's_add_u32 s{t1}, s{t0}, s{t2}')
    I(f'v_mul_u32_u24 v{vT2}, {16*896}, v1'); I(f'v_add_u32 v{vT2}, s{t1}, v{vT2}')
    I(f's_mul_i32 s{t2}, s{sJ}, {256*896}'); I(f's_add_u32 s{t1}, s{t0}, s{t2}')
    I('v_lshrrev_b32 v15, 3, v1'); I(f'v_mul_u32_u24 v{vT4}, {16*896}, v15'); I('v_and_b32 v15, 7, v1'); I('v_min_u32 v15, 6, v15')
    I(f'v_lshl_add_u32 v{vT4}, v15, 7, v{vT4}'); I(f'v_add_u32 v{vT4}, s{t1}, v{vT4}')
    I(f's_mul_i32 s{t1}, s{sJ}, {AS}'); I(f's_mul_i32 s{t2}, s{sA}, {TILE}'); I(f's_add_u32 s{t1}, s{t1}, s{t2}'); I(f's_add_u32 s{t1}, s{t1}, {L.P0}')
    I('v_min_u32 v15, 55, v1'); I(f'v_lshlrev_b32 v{vTQ}, 7, v15'); I(f'v_add_u32 v{vTQ}, s{t1}, v{vTQ}')
def touch(k, key, dflt='-'):
    I = k.I
    t1 = sT[1]
    for ch in k.o.get(key, dflt):
        if ch in 'ab': I(f'buffer_load_dword v{vTD}, v{vT3}, {srd("w3")}, 0 offen offset:{256 if ch == "b" else 0}')
        elif ch in 'o12': I(f'buffer_load_dword v{vTD}, v{vT2}, {srd("wo" if ch == "o" else "w" + ch)}, 0 offen')
        elif ch in '45':
            I(f's_mov_b32 s{t1}, {128*896 if ch == "5" else 0}')
            I(f'buffer_load_dword v{vTD}, v{vT4}, {srd("w4")}, s{t1} offen')
        elif ch in 'pq':
            I(f's_add_u32 s{t1}, s{sGB}, {7168 if ch == "q" else 0}')
            I(f'buffer_load_dword v{vTD}, v{vTQ}, {WS}, s{t1} offen sc1')
        else: continue
        k.e.vm[-1]['dst'] = set()

def aux_burst2(k):
    I, o = k.I, k.o
    touch_addrs(k)
    touch(k, 'tO')
    w3_src(k, 12)
    for m in range(o['w2a']): w3_dma(k, 12, k.sMW, m, 0, RC + m*4096, 'w3')

def aux_pre(k): pass

def aux_rest(k):
    e, I, L, o = k.e, k.I, k.L, k.o
    t0, t1, t2, t3 = sT[0:4]
    sM = k.sMW; sS = sT[5]
    A0, AC, BB, GT, GC, PAT, C, AXT, ONE = 32, 144, 176, 192, 208, 232, 236, 216, 244
    n0 = o['w2a']; nH = o.get('nH', 11); nT = 28 - n0 - nH
    assert nT <= 8 and n0 <= 10
    def rd(m0, n, s0=0):
        for i in range(n): tr2(k, A0 + 4*(m0+i), 8, (s0+i)*4096, 512)
    def cs(m0, n):
        for m in range(m0, m0 + n):
            I(f'{MF16} {vr(C,4)}, {vr(PAT,4)}, {vr(A0+4*m,4)}, ' + ('0' if m == 0 else vr(C, 4)))
    def dma(m0, n, s0=0):
        for i in range(n): w3_dma(k, 12, sM, m0 + i, 0, RC + (s0+i)*4096, 'w3')
    w3_rd_base(k, 8, RC)
    if not k.v4:
        k.o_flag()
        k.bar('eo')
        rd(0, n0)
    I('v_bfe_u32 v15, v1, 2, 2')
    I('v_lshl_add_u32 v16, v3, 3, v15'); I('v_lshlrev_b32 v16, 7, v16')
    I('v_and_b32 v17, 3, v1'); I('v_lshl_add_u32 v16, v17, 3, v16')
    I('v_lshrrev_b32 v15, 1, v15'); I('v_and_b32 v17, 1, v3'); I('v_lshl_add_u32 v15, v17, 1, v15')
    I(f'v_xor_b32 v15, s{sA}, v15')
    I('v_lshl_add_u32 v6, v15, 5, v16'); I(f'v_add_u32 v6, {RB}, v6')
    CB = 144
    if k.v4:
        for i in range(4): I(f'v_mov_b32 v{ONE+i}, 0x3f803f80')
        pat(k, PAT)
        k.o_flag('os')
        g_addr(k, aFW, aFR, aFV, True)
        k.v_landed()
        rd(0, n0)
    for m in range(14): tr2(k, CB + 4*m, 6, m*4096, 512)
    if not k.v4:
        for i in range(4): I(f'v_mov_b32 v{ONE+i}, 0x3f803f80')
        pat(k, PAT)
    for m in range(14):
        I(f'{MF16} v[248:251], {vr(ONE,4)}, {vr(CB+4*m,4)}, ' + ('0' if m == 0 else 'v[248:251]'))
    cs(0, n0)
    I(f's_lshl_b32 s{t0}, s{sA}, 6'); I(f's_add_u32 s{t0}, s{t0}, {L_CS1}')
    I('v_lshlrev_b32 v15, 2, v2'); I(f'v_add_u32 v15, s{t0}, v15')
    I('ds_write_b32 v15, v248')
    g_wr(k, 1, True)
    sD = sT[4]
    I(f'v_mov_b32 v{aPA}, v12')
    def stream(nm, m0, n, dest, tag, half=0, hk={}):
        mul, V = (14, aPA) if nm == 'w3' else (7, k.vSQ)
        rot = o.get('rot', 0) and n >= 4
        if rot:
            I(f's_and_b32 s{sD}, s{sG}, 3'); I(f's_mul_i32 s{sD}, s{sD}, {n}'); I(f's_lshr_b32 s{sD}, s{sD}, 2'); I(f's_lshl_b32 s{sD}, s{sD}, 12')
            I(f's_add_u32 s{t2}, s{sM}, {dest}')
        for i in range(n):
            if rot:
                I(f's_add_u32 m0, s{t2}, s{sD}'); I(f's_mul_i32 s{t1}, s{sD}, {mul}'); I(f's_add_u32 s{t1}, s{t1}, {m0*mul*4096 + half*256}')
            else:
                I(f's_add_u32 m0, s{sM}, {dest + i*4096}'); I(f's_mov_b32 s{t1}, {(m0+i)*mul*4096 + half*256}')
            if o.get('nost') == 2:
                I(f's_mov_b32 s{t1}, {(i % 14)*7*4096}')
                I(f'buffer_load_dwordx4 v{k.vSQ}, {srd("wo" if half else "w1")}, s{t1} offen lds', tag=tag)
            elif o.get('nost') != 1: I(f'buffer_load_dwordx4 v{V}, {srd(nm)}, s{t1} offen lds', tag=tag)
            if rot and i < n - 1:
                I(f's_add_u32 s{sD}, s{sD}, 4096'); I(f's_cmp_eq_u32 s{sD}, {n*4096}'); I(f's_cselect_b32 s{sD}, 0, s{sD}')
            if i in hk: hk[i]()
    xpa = o.get('xpa', 3)
    I(f's_mul_i32 s{t0}, s{sA}, {TILE}'); I(f's_add_u32 s{t0}, s{t0}, s{sGB}')
    I(f's_lshl_b32 s{t1}, s{sJ}, 11'); I(f's_add_u32 s{t0}, s{t0}, s{t1}')
    I(f'v_add_u32 v230, s{t0}, v4')
    for i in range(4): I(f'v_mov_b32 v{aPD+i}, -1')
    I(f's_mov_b32 s{sT[8]}, {L.T0}'); I(f's_mov_b32 s{sT[9]}, {L.X1}')
    xpf = lambda: k.stores([f'buffer_store_dwordx4 {vr(aPD,4)}, v230, {WS}, s{sT[8 + (c == "x")]} offen offset:{h*1024}' for c in 'tx' if c not in o.get('kpf', 'htx') for h in range(2)], tag='pre')
    Q = {'2': [('w2', m, RA + m*4096, 0) for m in range(14)],
         'f': [('w3', n0 + nH + i, RC + (3+i)*4096, 0) for i in range(nT)] + [('w3', i, RC + i*4096, 1) for i in range(3)],
         'b': [('w3', 3 + i, RB + i*4096, 1) for i in range(14)]}
    def run(spec, lim):
        for it in spec.split(','):
            if not it: continue
            c, n = it[0], int(it[1:])
            for _ in range(n):
                assert len(Q[c]) > lim.get(c, 0), (c, spec)
                nm, m, dest, hf = Q[c].pop(0)
                stream(nm, m, 1, dest, 'w2' if c == '2' else 'w3', hf)
    g_wait(k, 2, 1, 'sh')
    stream('w3', n0, nH, RC, 'w3')
    run(o.get('sH', '25'), {'2': 4, 'f': 99, 'b': 99})
    if o.get('kpf', 'htx') != 'htx': xpf()
    e.wait_tag('w3'); k.stamp('a6'); g_wr(k, 2, True)
    g_wait(k, 0, 2, 'b2')
    if k.stop == 'h': return
    rd(n0, nH)
    cs(n0, nH)
    e.wait_tag('pre'); g_wr(k, 3, True)
    if o.get('sh2'):
        g_wait(k, 3, 3, 'h2')
        run(o['sh2'], {'b': 4})
    g_wait(k, 4, 3, 'st')
    run('2%d' % len(Q['2']), {})
    sp = o.get('sT', 'b3,b7').split(',')
    run(sp[0], {'b': 4})
    e.wait_tag('w2'); k.stamp('a7'); g_wr(k, 4, True)
    run(','.join(sp[1:]), {'b': 4})
    if o.get('st2'):
        g_wait(k, 5, 0, 't2')
        run(o['st2'], {})
    if k.stop == 't': return
    pend = [lambda: g_wait(k, 6, 0, 'sx'), lambda: run('f%d,b%d' % (len(Q['f']), len(Q['b'])), {})]
    vX, vS, vWR, vW4, vUA, vPL, vFL, vDP = 24, 25, 5, 7, 9, 10, 11, 252
    I(f'v_mov_b32 v{AXT+2}, 0'); I(f'v_mov_b32 v{AXT+3}, 0')
    I(f'v_mov_b32 v{aPD}, v8')
    sM2, sS = sT[8], sT[9]
    I(f's_lshl_b32 s{sM2}, s{sA}, 11')
    w4_src(k, vW4)
    w4_rd_base(k, vWR, sM2, RB)
    u_addrs(k, 0, vUA, vPL, vFL)
    dump_addr(k, vDP, D_3)
    I(f'v_mov_b32 v13, s{sTAG}')
    I(f's_lshl_b32 s{t0}, s{sA}, 3'); I('v_lshrrev_b32 v15, 3, v1'); I(f'v_add_u32 v15, s{t0}, v15')
    I('v_and_b32 v16, 7, v15'); I('v_and_b32 v17, 7, v1'); I('v_xor_b32 v16, v16, v17'); I('v_lshlrev_b32 v16, 4, v16'); I('v_lshl_add_u32 v14, v15, 7, v16')
    I(f's_lshl_b32 s{t0}, s{sG}, 6'); I(f'v_add_u32 v15, s{t0}, v15'); I('v_mul_u32_u24 v15, 896, v15'); I('v_lshl_add_u32 v12, v17, 3, v15')
    I(f's_lshl_b32 s{sT[10]}, s{sJ}, 7'); I(f's_add_u32 s{sT[11]}, s{sT[10]}, {32*896}')
    up_addrs(k, vX, vS)
    for f in pend: f()
    e.wait_vm0(); k.stamp('a8'); k.bar('ex')
    for i in range(nT): tr2(k, A0 + 4*(n0+nH+i), aPD, (3+i)*4096, 512)
    if k.stop == 'x1': return
    lf = o.get('lf', 11)
    e.wait_lg0(); k.bar('xj')
    for m in range(28 - lf, 28): w3_dma(k, aPA, sM, m, 1, RC + (m-17)*4096, 'f3')
    rot_regs(k)
    for s in range(o.get('nA', 0)//2):
        for f in w4_dma(k, vW4, s, 0, sM2, RB + ((s + 1) % 7)*8192, sS, 'a1'): f()
    cs(n0 + nH, nT)
    k.split_a(C, AXT, C+1)
    I('s_setprio 2')
    k.bar('b8')
    def ard(s): return w4_rd(k, vWR, A0 + 8*s, ((s + 1) % 7)*8192, f'r{s}')
    r = Mlp(k, 'd', 0, AC=AC, BB=BB, GT=GT, GC=GC, PK=[200, 176], vX=vX, vS=vS, vUA=vUA, vPL=vPL, vFL=vFL, vTG=13, vD=15, W0=A0,
            Q=[144, 228, 160, 192], AX=228, vDP=vDP, DO=[x - D_3 for x in D_A], pr='222222')
    op, at, seq = r.op, r.at, r.seq
    r.pre()
    sf = o.get('sf', 20)
    assert sf <= 24
    at(4*sf, lambda: e.wait_tag('f3'), lambda: k.bar('f3'), 'v_or_b32 v15, 3, v13', lambda: k.stores([f'buffer_store_dword v15, v{vFL}, {WS}, 0 offen']))
    at(100, f'ds_read_b128 {vr(GC,4)}, v{vS} offset:16', f'ds_read_b128 {vr(GC+4,4)}, v{vS} offset:1040')
    at(2*PH + op('f0', 32), lambda: r.flag(0))
    r1, rs, rd = 2*PH + op('r1', 56), op('rs', 8), op('rd', 16)
    at(r1 - 8, g_rd(True)); at(r1, lambda: g_chk(k, 8, 0, True, 'm2'), lambda: e.wait_tag('a1'))
    for s in range(7):
        assert r1 + s*rs >= 2*PH + 4*(2*s + 1) and rd >= rs
        seq(r1 + s*rs, 2, ard(s))
        d = w4_dma(k, vW4, s + 7, 0, sM2, RB + ((s + 1) % 7)*8192, sS, f'w{s+7}')
        at(r1 + 16 + s*rd, lambda s=s: e.wait_tag(f'r{s}'), d[0]); at(r1 + 16 + s*rd + rd//2, d[1])
    at(3*PH - 1, lambda: g_wr(k, 5, True), lambda: r.give(16, 20, 24, 28, 184, 188, 244, 248, 216))
    q0 = 3*PH + op('q0', 40)
    at(q0, r.pl(0)); at(q0 + op('w0', 40), lambda: r.chk(0)); seq(q0 + op('w0', 40), op('l0', 6), [r.loads]*9)
    at(4*PH - 1, lambda: r.give(208, 212))
    at(4*PH + op('f1', 12), lambda: r.flag(1, not o.get('uq')))
    r2 = 4*PH + op('r2', 16)
    seq(r2, 1, [f for s in range(7, 14) for f in [lambda s=s: e.wait_tag(f'w{s}')] + ard(s)] + [lambda: g_wr(k, 6, True)])
    assert r2 < 4*PH + 4*16
    q1 = 4*PH + op('q1', 60)
    at(q1, r.pl(1)); at(q1 + op('w1', 40), lambda: r.chk(1), lambda: r.loads(12))
    FS, TP = 144, 228
    def add(q, T):
        for h in range(2):
            for i in range(4): I(f'v_add_f32 v{T+8*h+i}, v{T+8*h+i}, v{T+8*h+4+i}')
        for i in range(4): I(f'v_add_f32 v{FS+4*q+i}, v{FS+4*q+i}, v{T+i}')
        for i in range(4): I(f'v_add_f32 v{FS+4*q+i}, v{FS+4*q+i}, v{T+8+i}')
    def rd4(T, v, off):
        for p in range(4): I(f'ds_read_b128 {vr(T+4*p,4)}, v{v} offset:{off + p*4096}')
    def half0():
        g_chk(k, 0, 6, True); r.dump(0); r.dump(1); g_wr(k, 7, True)
        I(f'v_add_u32 v5, {D_A[0]}, v14'); I(f'v_add_u32 v6, {D_M}, v14')
    def sum0():
        g_chk(k, 10, 7, True, 'p0')
        for q in range(4): I(f'ds_read_b128 {vr(FS+4*q,4)}, v14 offset:{D_R + (q>>1)*4096 + (q&1)*8192}')
        rd4(TP, 5, 0)
    at(4*PH + 116, g_rd(True)); at(5*PH - 1, half0)
    s0 = 5*PH + op('s0', 24)
    at(s0 - 8, g_rd(True)); at(s0, sum0); at(s0 + 12, lambda: add(0, TP), lambda: rd4(TP, 5, 16384)); at(s0 + 24, lambda: add(1, TP))
    at(5*PH + 80, g_rd(True)); at(5*PH + 4*23, lambda: g_chk(k, 11, 0, True), lambda: r.dump(2))
    assert s0 + 24 < 5*PH + 80
    at(6*PH, lambda: r.dump(3))
    r.run(lambda m: A0 + 4*m if m < 28 else AXT, 2)
    g_wr(k, 8, True)
    of = o.get('outf', '')
    def fin(qs):
        k.bar(f'q{qs[0]}')
        for q in qs: rd4(32 + 16*q, 6, q*16384)
        for q in qs:
            add(q, 32 + 16*q)
            k.cvt(FS + 4*q, FS + 4*q, 4)
            I(f'buffer_store_dwordx2 {vr(FS+4*q,2)}, v12, {srd("out")}, s{sT[10 + (q>>1)]} offen offset:{(q&1)*64} {of}')
    I(f's_setprio {o.get("pf2", 2)}')
    if o.get('fo', 1): fin([0, 1])
    g_wait(k, 0, 8, 'ps')
    for q in (2, 3): rd4(64 + 16*q, 14, D_A[q])
    for q in (2, 3): add(q, 64 + 16*q)
    if not o.get('fo', 1): fin([0, 1])
    fin([2]); fin([3])
    k.stamp('end')

def j7_jobs(k):
    e, I, L = k.e, k.I, k.L
    t0, t1 = sT[0], sT[1]
    I(f's_and_b32 s{t0}, s{sG}, 3'); I(f's_lshl_b32 s{t0}, s{t0}, 3'); I(f's_add_u32 s{t0}, s{t0}, s{sW}')
    I(f's_mul_i32 s{t0}, s{t0}, 49'); I(f'v_add_u32 v15, s{t0}, v1')
    I('v_lshrrev_b32 v16, 1, v15'); I('v_lshlrev_b32 v16, 9, v16'); I('v_and_b32 v17, 1, v15'); I('v_lshl_add_u32 v16, v17, 7, v16')
    I('v_lshrrev_b32 v17, 5, v15'); I('v_mul_u32_u24 v17, 9363, v17'); I('v_lshrrev_b32 v17, 16, v17')
    I(f'v_mul_u32_u24 v17, {229376 - 224*128}, v17'); I('v_lshl_add_u32 v17, v15, 7, v17')
    I('v_cmp_gt_u32 vcc, 49, v1'); I(f'v_cndmask_b32 v16, v{vBIG}, v16, vcc'); I(f'v_cndmask_b32 v17, v{vBIG}, v17, vcc')
    I(f's_mul_i32 s{t0}, s{sW}, 56'); I(f'v_add_u32 v15, s{t0}, v1'); I('v_lshlrev_b32 v15, 7, v15')
    I('v_cmp_gt_u32 vcc, 56, v1'); I(f'v_cndmask_b32 v15, v{vBIG}, v15, vcc')
    k.jn = 0
    for ch in k.o.get('j7', 'b4p'):
        if ch in 'ab':
            for i in range(4):
                I(f's_mov_b32 s{t1}, {i*784*512 + (256 if ch == "b" else 0)}')
                I(f'buffer_load_dword v{32+i}, v16, {srd("w3")}, s{t1} offen'); e.barrier()
        if ch in '456':
            for b in dict(zip('456', (range(8), range(4), range(4, 8))))[ch]:
                I(f's_mov_b32 s{t1}, {b*28672}')
                I(f'buffer_load_dword v{36+b}, v17, {srd("w4")}, s{t1} offen'); e.barrier()
        if ch == '2':
            I(f's_and_b32 s{t0}, s{sG}, 3'); I(f's_lshl_b32 s{t0}, s{t0}, 3'); I(f's_add_u32 s{t0}, s{t0}, s{sW}'); I(f's_mul_i32 s{t0}, s{t0}, {49*128}')
            I('v_min_u32 v18, 48, v1'); I('v_lshlrev_b32 v18, 7, v18')
            I(f'buffer_load_dword v58, v18, {srd("w2")}, s{t0} offen'); e.barrier()
            I(f's_add_u32 s{t0}, s{t0}, {1568*128}')
            I(f'buffer_load_dword v59, v18, {srd("w2")}, s{t0} offen'); e.barrier()
        if ch in 'mn':
            I(f's_lshl_b32 s{t0}, s{sG}, 3'); I(f's_add_u32 s{t0}, s{t0}, s{sW}')
            I(f's_mul_i32 s{t1}, s{t0}, {49*128}'); I(f's_mul_i32 s{t0}, s{t0}, {13*128}')
            I('v_min_u32 v18, 48, v1'); I('v_lshlrev_b32 v18, 7, v18'); I('v_min_u32 v19, 12, v1'); I('v_lshlrev_b32 v19, 7, v19')
            if ch == 'm':
                I(f'buffer_load_dword v60, v18, {srd("w3")}, s{t1} offen'); e.barrier()
                I(f'buffer_load_dword v61, v19, {srd("w2")}, s{t0} offen'); e.barrier()
            I(f'buffer_load_dword v62, v18, {srd("w4")}, s{t1} offen'); e.barrier()
        if ch in 'HTqX':
            I(f's_add_u32 s{t1}, s{sGB}, {dict(H=L.H, T=L.T0, X=L.X1, q=PB[3] + 3*TILE)[ch]}')
            I(f'buffer_load_dword v{70+"HTqX".index(ch)}, v15, {WS}, s{t1} offen sc1'); e.barrier()
        if ch in 'UV':
            n = 'UV'.index(ch)
            for i, off in enumerate([UR + (8 - 8*n)*TILE, UR + (12 - 8*n)*TILE]):
                I(f's_add_u32 s{t1}, s{sGB}, {off}')
                I(f'buffer_load_dword v{80+2*n+i}, v15, {WS}, s{t1} offen sc1'); e.barrier()
        if ch == 'w': e.wait_vm0(); k.stamp(f'j{k.jn}'); k.jn += 1
        if ch == 'p':
            nt = 7*(4 - k.o.get('pn', 2))
            for i, off in enumerate([PB[3] + min(4*c, nt - 4)*TILE for c in reversed(range((nt + 3)//4))]):
                I(f's_add_u32 s{t1}, s{sGB}, {off}')
                I(f'buffer_load_dword v{44+i}, v15, {WS}, s{t1} offen sc1'); e.barrier()
        if ch == 'f':
            for i in range(4): I(f'v_mov_b32 v{64+i}, -1')
            I(f's_lshl_b32 s{t0}, s{sW}, 10'); I(f'v_add_u32 v18, s{t0}, v4'); I(f'v_add_u32 v18, s{sGB}, v18')
            I(f's_and_b32 s{t0}, s{sW}, 1'); I(f's_lshl_b32 s{t0}, s{t0}, 10'); I(f'v_add_u32 v19, s{t0}, v4'); I(f'v_add_u32 v19, s{sGB}, v19')
            for n in range(4):
                for i in range(13):
                    I(f's_mov_b32 s{t1}, {PB[n] + i*8192}')
                    st = f'buffer_store_dwordx4 v[64:67], v{18 if i < 12 else 19}, {WS}, s{t1} offen'
                    if n < k.o.get('pn', 2): I(st + ' sc1')
                    else: k.stores([st])
                    if k.o.get('fb', 1): e.barrier()
                e.wait_vm0()
            e.barrier()
            I(f's_add_u32 s{t1}, s{sGB}, {L.F_P}')
            k.stores([f'buffer_store_dword v{vTAG}, v{vL0}, {WS}, s{t1} offen'])
            k.stamp('jf')
    e.wait_vm0()
```

```python
from g5 import *
import g4
from g4 import GA, GB_, f32, pack_pairs, row_stats, stat_addrs, gelu_consts

vZ, vBIG, vL0, vSIG, vTAG, vB, vST = 13, 20, 21, 26, 27, 28, 29
SB = [5, 6, 7, 8]
BF = 76
AW, OAC, NB = 132, 116, 10
sOW, sOT = sX0, sX1
XS = 10*4096
L_G = 159744
vSA, vSB, vCA = 30, 31, 40
vFW, vFR, vFV, vFD, vFT = 251, 253, 23, 24, 25
aFW, aFR, aFV, aFD, aFT, aPA, aPD = 220, 221, 222, 223, 224, 225, 226
HR = 60
ACC = 44
BXT = 40
XA = 244
vTP, vHP, vHS, vTF, vOP, vHF = 250, 19, 252, 18, 254, 255
RES = 240
W3P = 228
U0, U1 = RC + 28672, RA
PB = [(36 - 7*n)*TILE for n in range(4)]
L_F2 = 162304
STEP_REG = [RB, RB + 28672, RC, RB, RB + 28672, RC, RA + 16384, RB]

def main_pre(k):
    I = k.I
    t0, t1 = sT[0:2]
    I(f's_lshl_b32 s{t0}, s{sG}, 6'); I(f's_lshl_b32 s{t1}, s{sW}, 4'); I(f's_add_u32 s{t0}, s{t0}, s{t1}')
    I(f'v_add_u32 v15, s{t0}, v2'); I('v_mul_u32_u24 v15, 896, v15')
    I(f's_lshl_b32 s{t0}, s{sJ}, 7')
    I('v_lshl_add_u32 v15, v3, 3, v15')
    for t in range(4):
        I(f'buffer_load_dwordx2 {vr(52+2*t,2)}, v15, {srd("x")}, s{t0} offen offset:{t*32}')

def main_addr1(k):
    I, L = k.I, k.L
    t0, t1, t2 = sT[0:3]
    I('v_bfe_u32 v15, v1, 2, 2')
    I('v_lshl_add_u32 v16, v3, 3, v15'); I('v_lshlrev_b32 v16, 7, v16')
    I('v_and_b32 v14, 3, v1'); I('v_lshl_add_u32 v16, v14, 3, v16')
    I('v_lshrrev_b32 v15, 1, v15'); I('v_and_b32 v14, 1, v3'); I('v_lshl_add_u32 v15, v14, 1, v15')
    I(f'v_lshl_add_u32 v39, v15, 5, v16')
    I(f's_and_b32 s{t1}, s{sW}, 2'); I(f's_and_b32 s{t2}, s{sW}, 1')
    I(f's_mul_i32 s{t0}, s{t1}, {TILE}'); I(f's_add_u32 s{t0}, s{t0}, s{sGB}')
    I(f'v_add_u32 v{vB}, s{t0}, v4')
    I(f's_mul_i32 s{sOW}, s{t2}, {TILE + 7168}'); I(f's_mul_i32 s{sOT}, s{t2}, {TILE - 7168}'); I(f's_sub_u32 s{sOT}, {TILE}, s{sOT}')
    I(f's_lshl_b32 s{t0}, s{t1}, 6'); I(f's_lshl_b32 s{t2}, s{t2}, 5'); I(f's_add_u32 s{t0}, s{t0}, s{t2}')
    I(f's_add_u32 s{t0}, s{t0}, s{sGB}'); I(f's_add_u32 s{t0}, s{t0}, {L.F_O}')
    I('v_and_b32 v15, 8, v1'); I('v_lshlrev_b32 v15, 3, v15'); I('v_and_b32 v16, 7, v1'); I('v_lshl_add_u32 v15, v16, 2, v15')
    I(f'v_add_u32 v{vOP}, s{t0}, v15')

def main_addr2(k):
    I, L = k.I, k.L
    t0, t1, t2, t3 = sT[0:4]
    assert k.o.get('hc')
    I(f's_mul_i32 s{t0}, s{sW}, {TILE}'); I(f's_add_u32 s{t0}, s{t0}, s{sGB}')
    I(f's_lshl_b32 s{t1}, s{sJ}, 11'); I(f's_add_u32 s{t0}, s{t0}, s{t1}')
    I(f'v_lshlrev_b32 v46, 8, v{vSIG}'); I('v_lshl_add_u32 v46, v2, 4, v46')
    I(f'v_add_u32 v{vST}, s{t0}, v46')
    I(f's_lshl_b32 s{t0}, s{sW}, 3'); I(f's_add_u32 s{t0}, s{t0}, s{sJ}'); I(f's_lshl_b32 s{t0}, s{t0}, 8')
    I(f's_add_u32 s{t0}, s{t0}, s{sGB}'); I(f's_add_u32 s{t0}, s{t0}, {L.ST}')
    I(f'v_add_u32 v9, s{t0}, v4')
    I('v_cmp_eq_u32 vcc, 0, v3'); I(f'v_cndmask_b32 v9, v{vBIG}, v9, vcc')
    stat_addrs(k, vSA, vSB)
    I(f'v_mov_b32 v{BXT+2}, 0'); I(f'v_mov_b32 v{BXT+3}, 0')
    I(f's_add_u32 s{t0}, s{sGB}, {L.GS + L.T0 - TILE}')
    I(f's_cmp_eq_u32 s{sG}, 31'); I(f's_cselect_b32 s{t0}, {BIG}, s{t0}')
    I(f's_sub_u32 s{t1}, s{sGB}, {L.GS - L.T0 - 4*TILE}')
    I(f's_cmp_eq_u32 s{sG}, 0'); I(f's_cselect_b32 s{t1}, {BIG}, s{t1}')
    I(f's_cmp_eq_u32 s{sW}, 3'); I(f's_cselect_b32 s{t0}, s{t0}, s{t1}')
    I(f's_cselect_b32 s{t2}, 0xc000c000, 0')
    I(f's_cmp_eq_u32 s{sW}, 0'); I(f's_cselect_b32 s{t2}, 0x00030003, s{t2}'); I(f's_mov_b32 s{t3}, s{t2}')
    I(f's_lshl_b32 s{t1}, s{sJ}, 11'); I(f's_add_u32 s{t0}, s{t0}, s{t1}')
    I('v_and_b32 v15, 1, v2'); I(f'v_lshl_add_u32 v15, v{vSIG}, 1, v15'); I('v_lshlrev_b32 v15, 4, v15'); I(f'v_add_u32 v15, s{t0}, v15')
    I(f'v_cndmask_b32 v{vHS}, v{vBIG}, v15, s[{t2}:{t3}]')
    if k.o.get('xb') == 1: I(f'v_mov_b32 v{vHS}, v{vBIG}')
    I(f's_and_b32 s{t2}, s{sW}, 1'); I(f's_lshl_b32 s{t3}, s{t2}, 1'); I(f's_sub_u32 s{t1}, s{t3}, 1')
    I('v_and_b32 v44, 1, v3'); I(f'v_add_u32 v44, s{t3}, v44')
    I('v_lshrrev_b32 v45, 1, v3')
    I('v_sub_u32 v15, v44, v3'); I('v_mul_u32_u24 v16, 28, v45'); I('v_add_u32 v15, v15, v16'); I('v_add_u32 v15, 12, v15')
    I('v_lshl_add_u32 v{0}, v15, 10, v39'.format(vCA))
    I(f's_lshl_b32 s{t2}, s{t2}, 12'); I(f's_add_u32 s{t2}, s{t2}, s{sGB}')
    for q in range(3):
        u = 'v44' if q == 2 else 'v3'
        if q == 2:
            I('v_mul_u32_u24 v16, 7168, v45'); I(f'v_add_u32 v16, s{sGB}, v16'); I('v_add_u32 v16, 3072, v16')
            I('v_add_u32 v45, 1, v45'); I(f'v_mul_i32_i24 v45, s{t1}, v45')
        elif q == 0: I(f'v_mov_b32 v16, s{t2}')
        if q != 1:
            I(f'v_lshl_add_u32 v16, {u}, 8, v16'); I(f'v_mul_i32_i24 v48, -14, {u}')
        for n in range(2):
            X = XA + 3*n + q
            I(f's_xor_b32 s{t0}, s{sW}, {1-n}'); I(f's_lshl_b32 s{t0}, s{t0}, 4'); I(f's_add_u32 s{t0}, s{t0}, 16')
            if q < 2:
                for _ in range(q + 1): I(f's_add_u32 s{t0}, s{t0}, s{t1}')
                I(f'v_add_u32 v14, s{t0}, v2')
            else: I(f'v_add3_u32 v14, s{t0}, v2, v45')
            if k.o.get('xa') == 1: I('v_mov_b32 v15, 79'); I('v_med3_i32 v14, v14, 16, v15')
            I(f'v_lshrrev_b32 v{X}, 4, v14'); I(f'v_mul_u32_u24 v{X}, {TILE}, v{X}')
            I('v_add_u32 v15, -16, v14'); I('v_cmp_lt_u32 vcc, 63, v15')
            I('v_and_b32 v15, 1, v14'); I('v_and_b32 v14, 15, v14'); I('v_add_u32 v15, v15, v48'); I('v_cndmask_b32 v14, v14, v15, vcc')
            I(f'v_lshl_add_u32 v{X}, v14, 4, v{X}')
            I(f'v_add_u32 v{X}, v{X}, v16')
    I(f's_lshl_b32 s{t0}, s{sW}, 5'); I(f's_lshl_b32 s{t2}, s{sJ}, 2'); I(f's_add_u32 s{t0}, s{t0}, s{t2}')
    I(f's_add_u32 s{t2}, s{sGB}, {L.F_T}'); I(f's_add_u32 s{t0}, s{t0}, s{t2}')
    I(f'v_add_u32 v{vTF}, s{t0}, v{vL0}')
    I(f's_and_b32 s{t0}, s{sW}, 2'); I(f's_lshl_b32 s{t0}, s{t0}, 5'); I(f's_mul_i32 s{t1}, s{t3}, 6'); I(f's_add_u32 s{t0}, s{t0}, s{t1}'); I(f's_add_u32 s{t0}, s{t0}, s{t2}')
    I('v_and_b32 v15, 4, v1'); I('v_lshlrev_b32 v15, 3, v15'); I('v_and_b32 v16, 3, v1'); I('v_lshl_add_u32 v15, v16, 2, v15')
    I(f'v_add_u32 v{vHF}, s{t0}, v15')
    I(f's_mov_b32 s{t0}, 0x66665321'); I(f's_cmp_eq_u32 s{t3}, 0'); I(f's_cselect_b32 s{t0}, 0x55554310, s{t0}')
    I('v_and_b32 v16, 7, v1'); I('v_lshlrev_b32 v16, 2, v16'); I(f'v_lshrrev_b32 v16, v16, s{t0}'); I('v_and_b32 v16, 7, v16'); I('v_lshlrev_b32 v16, 2, v16')
    I('v_lshrrev_b32 v15, 3, v1'); I('v_min_u32 v15, 2, v15'); I(f'v_add_u32 v15, s{sW}, v15'); I('v_add_u32 v15, -1, v15')
    I('v_med3_i32 v15, v15, 0, 3')
    I('v_lshl_add_u32 v15, v15, 5, v16'); I(f'v_add_u32 v{vTP}, s{t2}, v15')
    I(f's_mov_b32 s{t0}, {BIG}')
    if not k.o.get('xa'):
        I(f's_cmp_eq_u32 s{sW}, 0'); I(f's_cselect_b32 s{t0}, {L.T0 - TILE}, s{t0}')
        I(f's_cmp_eq_u32 s{sW}, 3'); I(f's_cselect_b32 s{t0}, {L.T0 + 4*TILE + 3072}, s{t0}')
    I(f's_add_u32 s{t0}, s{t0}, s{sGB}')
    I('v_and_b32 v15, 3, v1'); I('v_bfe_u32 v16, v1, 2, 1'); I('v_mul_u32_u24 v16, 7, v16'); I('v_add_u32 v15, v15, v16')
    I('v_lshlrev_b32 v15, 10, v15'); I(f'v_add_u32 v{vHP}, s{t0}, v15')

def early_addr(k):
    main_addr1(k); main_addr2(k)
    g_addr(k, vFW, vFR, vFV, False)
def hinit(k):
    for t in range(4):
        for d in range(2):
            k.I(f'v_lshlrev_b32 v{HR+4*t+2*d}, 16, v{52+2*t+d}')
            k.I(f'v_and_b32 v{HR+4*t+2*d+1}, 0xffff0000, v{52+2*t+d}')

def t_prefill(k):
    I, L = k.I, k.L
    t0, t1, t2 = sT[0:3]
    for i in range(4): I(f'v_mov_b32 v{76+i}, -1')
    I(f's_lshl_b32 s{t1}, s{sJ}, 11'); I(f's_add_u32 s{t1}, s{t1}, s{sGB}')
    I(f's_cmp_eq_u32 s{sJ}, 7'); I(f's_cselect_b32 s{t1}, {BIG}, s{t1}')
    I(f's_mul_i32 s{t0}, s{sW}, {TILE}'); I(f's_add_u32 s{t0}, s{t0}, s{t1}')
    I(f's_and_b32 s{t2}, s{sW}, 1'); I(f's_lshl_b32 s{t2}, s{t2}, 10'); I(f's_add_u32 s{t1}, s{t1}, s{t2}')
    I(f'v_add_u32 v15, s{t0}, v4'); I(f'v_add_u32 v16, s{t1}, v4')
    I(f's_mov_b32 s{t0}, {L.H}'); I(f's_mov_b32 s{t1}, {L.T0}'); I(f's_mov_b32 s{t2}, {L.X1}')
    st = []
    for so in [dict(h=f's{t0}', t=f's{t1}', x=f's{t2}')[c] for c in k.o.get('kpf', 'htx')]:
        st += [f'buffer_store_dwordx4 v[76:79], v15, {WS}, {so} offen', f'buffer_store_dwordx4 v[76:79], v15, {WS}, {so} offen offset:1024',
               f'buffer_store_dwordx4 v[76:79], v16, {WS}, {so} offen']
    k.stores(st)

def spin_tail(k, top, done):
    I = k.I
    I(f's_cbranch_vccz {done}')
    I(f's_sub_u32 s{sSPIN}, s{sSPIN}, 1')
    I(f's_cbranch_scc0 {top}')
    I(f's_mov_b32 s{sSPIN}, 0')
    I(f's_branch {done}')
def ool(k, fn):
    e = k.e
    sn = e.snap()
    save = e.out; e.out = []
    fn()
    e.ool += e.out; e.out = save
    e.restore(sn)

def a_preload(k, base, steps, comb=False):
    I = k.I
    t0 = sT[0]
    I(f's_and_b32 s{t0}, s{sW}, 1'); I(f's_mul_i32 s{t0}, s{t0}, {16384 if comb else 28672}'); I(f's_add_u32 s{t0}, s{t0}, {base}')
    I(f'v_add_u32 v{SB[0]}, s{t0}, v39')
    for t in range(1, 4): I(f'v_xor_b32 v{SB[t]}, {t*32}, v{SB[0]}')
    for i, m in enumerate(steps):
        if m is None:
            for t in range(4): I(f'v_xor_b32 v{SB[t]}, {t*32}, v{vCA}')
            m = 0
        for t in range(4):
            for h in range(2): I(f'ds_read_b64_tr_b16 {vr(AW+16*i+4*t+2*h,2)}, v{SB[t]} offset:{m*4096 + h*512}')
def x_addr(k, base):
    I = k.I
    t0 = sT[0]
    I(f's_lshl_b32 s{t0}, s{sW}, 12'); I(f's_add_u32 s{t0}, s{t0}, {base + XS}')
    I(f'v_add_u32 v5, s{t0}, v4'); I('v_xor_b32 v6, 4096, v5'); I(f'v_xor_b32 v7, 4, v{vFW}')
def b_soff(k, region):
    for i in range(4): k.I(f's_add_u32 s{sT[4+i]}, s{(sOT, sOW)[i >> 1]}, {region + (i & 1)*4096}')
def b_src(p): return f'v{vB}, {WS}, s{sT[4 + 2*(p//7) + ((p%7) >> 2)]} offen offset:{((p%7)&3)*1024} sc1'
def kgemm(k, own, src, il, sg, rnd, need, init, zero=False, vf=(), v0=0, v1=13, nm='_', hooks={}, chk=True, fin=()):
    I, e, o = k.I, k.e, k.o
    vf = list(vf); fin = list(fin)
    il = [int(c, 36) for c in il] + [0]*16
    ld = [f'buffer_load_dwordx4 {vr(BF+4*(p%NB),4)}, {src(p)}' for p in range(14)]
    def loads(n, free):
        for _ in range(n):
            if ld:
                assert 14 - len(ld) - NB < free
                I(ld.pop(0))
                if 14 - len(ld) == sg: g_wr(k, 2*rnd)
    def mf(p, t, slot, z):
        acc = (OAC if p < 7 else own) + 4*t
        I(f'{MF16} {vr(acc,4)}, {vr(AW+16*(p%7)+4*t,4)}, {vr(BF+4*slot,4)}, ' + ('0' if z else vr(acc, 4)))
    def redo(p0, acc, name):
        done, retry = e.newlabel('Lnd'), e.newlabel('Lnr')
        I(f'v_cmp_u_f32 vcc, v{acc}, v{acc}')
        I(f's_cbranch_vccnz {retry}')
        e.label(done)
        def stub():
            e.label(retry)
            k.stamp(name)
            e.nop(16); e.wait_vm0()
            if p0 and not zero: init()
            sl = [4, 5, 6] if p0 == 0 else [0, 1, 2, 3, 8, 9]
            for c in range(0, 7, len(sl)):
                ps = range(p0 + c, min(p0 + c + len(sl), p0 + 7))
                for p in ps: I(f'buffer_load_dwordx4 {vr(BF+4*sl[p-p0-c],4)}, {src(p)}')
                for p in ps:
                    for t in range(4): mf(p, t, sl[p-p0-c], p == p0 and (zero or p0 == 0))
                e.nop(16)
            I(f'v_cmp_u_f32 vcc, v{acc}, v{acc}')
            spin_tail(k, retry, done)
        ool(k, stub)
    rds = [f'ds_read_b32 v{vFD}, v7 offset:32'] + [f'ds_read_b128 {vr(OAC+4*t,4)}, v6 offset:{t*1024}' for t in range(4)]
    def pchk():
        k.stamp('x' + nm + 'e')
        k.lpoll(rds, lambda: I(f'v_cmp_gt_u32 vcc, {rnd}, v{vFD}'), 'x')
        k.stamp(nm + 'e')
    if sg == 0: g_wr(k, 2*rnd)
    loads(il[0], 0)
    if -1 in hooks: hooks[-1]()
    per = -(-len(vf) // (4*(v1 - v0)))
    xw, xr = o.get('xwp', 7), o.get('xrp', 10)
    for p in range(14):
        n = il[p + 1]
        assert len(ld) < 14 - p
        r = k.sreg(nm + str(p))
        if r: e._emit(f's_memrealtime s[{r}:{r+1}]')
        for t in range(4):
            mf(p, t, p % NB, p == 0 or (p == 7 and zero))
            loads(n*(t+1)//4 - n*t//4, p + (t == 3))
            if p >= v0:
                for _ in range(per):
                    if vf: I(vf.pop(0))
                while vf and ('cselect' in vf[0] or 'vcc' in vf[0].split(',')[-1] or 's[' in vf[0].split(',')[-1]): I(vf.pop(0))
            if p == 13:
                for _ in range(2):
                    if fin: I(fin.pop(0))
        if p == 4: I(g_rd())
        if p == 6: g_chk(k, *need)
        if p == xw:
            if chk: redo(0, OAC, nm + 'r')
            for t in range(4): I(f'ds_write_b128 v5, {vr(OAC+4*t,4)} offset:{t*1024}')
            I(f'v_mov_b32 v{vFV}, {rnd}'); I(f'ds_write_b32 v{vFW}, v{vFV} offset:32')
        if p == xr:
            for t in rds: I(t)
        if p == 12: pchk()
        if p in hooks: hooks[p]()
    assert not vf and not ld and not fin
    if chk: redo(7, own, nm + 's')
    for i in range(0, 16, 2): I(f'v_pk_add_f32 {vr(own+i,2)}, {vr(own+i,2)}, {vr(OAC+i,2)}')
def g_addr(k, W, R, V, aux):
    I = k.I
    t0 = sT[0]
    I(f's_lshl_b32 s{t0}, s{sW}, 2'); I(f's_add_u32 s{t0}, s{t0}, {L_G}'); I(f'v_mov_b32 v{W}, s{t0}')
    I(f'v_and_b32 v{R}, 7, v1'); I(f'v_lshlrev_b32 v{R}, 2, v{R}'); I(f'v_add_u32 v{R}, {L_G}, v{R}')
def k0_init(k):
    k.I(f'v_mov_b32 v16, {L_G}'); k.I('v_lshl_add_u32 v16, v2, 2, v16'); k.I('ds_write_b32 v16, v13')
MFL = [vFW, vFR]
def g_wr(k, n, aux=False):
    W, V = (aFW, aFV) if aux else (MFL[0], vFV)
    k.I(f'v_mov_b32 v{V}, {n}'); k.I(f'ds_write_b32 v{W}, v{V}')
def g_rd(aux=False): return f'ds_read_b32 v{aFD}, v{aFR}' if aux else f'ds_read_b32 v{vFD}, v{MFL[1]}'
def g_chk(k, nm, na, aux=False, name=None):
    D, T = (aFD, aFT) if aux else (vFD, vFT)
    if name: k.stamp('x' + name)
    k.I(f'v_cndmask_b32 v{T}, {nm}, {na}, s[0:1]')
    k.lpoll([g_rd(aux)], lambda: k.I(f'v_cmp_gt_u32 vcc, v{T}, v{D}'), 'g')
    if name: k.stamp(name)
def g_wait(k, nm, na, name=None):
    k.I(g_rd(True)); g_chk(k, nm, na, True, name)
def poll_stats(k, tagbits, name, D, va, vb):
    I = k.I
    I(f's_or_b32 s{sN}, s{sTAG}, {tagbits}')
    def chk():
        I(f'v_cmp_ne_u32 vcc, s{sN}, v{D+2}')
        I(f'v_cmp_ne_u32 s[{sT[2]}:{sT[3]}], s{sN}, v{D+6}')
        I(f's_or_b64 vcc, vcc, s[{sT[2]}:{sT[3]}]')
    k.poll3([f'buffer_load_dwordx3 {vr(D,3)}, v{va}, {WS}, 0 offen sc1',
             f'buffer_load_dwordx3 {vr(D+4,3)}, v{vb}, {WS}, 0 offen sc1'], chk, name)

def tr2(k, dst, vb, off, step, tag=None):
    k.I(f'ds_read_b64_tr_b16 {vr(dst,2)}, v{vb} offset:{off}', tag=tag)
    k.I(f'ds_read_b64_tr_b16 {vr(dst+2,2)}, v{vb} offset:{off+step}', tag=tag)

def w3_src(k, V):
    I = k.I
    t0, t1 = sT[0], sT[1]
    I(f's_lshl_b32 s{t0}, s{sJ}, 9'); I(f's_lshr_b32 s{t1}, s{sA}, 1'); I(f's_lshl_b32 s{t1}, s{t1}, 7'); I(f's_add_u32 s{t0}, s{t0}, s{t1}')
    I(f's_and_b32 s{t1}, s{sA}, 1'); I(f's_mul_i32 s{t1}, s{t1}, {8*3584}'); I(f's_add_u32 s{t0}, s{t0}, s{t1}')
    I(f's_cmp_eq_u32 s{sJ}, 7'); I(f's_cselect_b32 s{t0}, {BIG}, s{t0}')
    I(f'v_lshrrev_b32 v15, 3, v1'); I(f'v_mul_u32_u24 v{V}, 3584, v15')
    I('v_bfe_u32 v15, v1, 4, 1'); I('v_lshlrev_b32 v15, 2, v15'); I('v_and_b32 v16, 7, v1'); I('v_xor_b32 v15, v15, v16')
    I(f'v_lshl_add_u32 v{V}, v15, 4, v{V}'); I(f'v_add_u32 v{V}, s{t0}, v{V}')
def w3_rd_base(k, V, base):
    I = k.I
    t0, t1 = sT[0], sT[1]
    I('v_lshrrev_b32 v15, 5, v1'); I('v_lshlrev_b32 v15, 3, v15')
    I('v_bfe_u32 v17, v1, 2, 2'); I('v_add_u32 v15, v15, v17')
    I('v_and_b32 v16, 3, v1')
    I(f'v_and_b32 v{V}, 1, v3'); I(f'v_lshlrev_b32 v{V}, 5, v{V}'); I(f'v_lshl_add_u32 v{V}, v16, 3, v{V}')
    I(f'v_lshl_add_u32 v{V}, v15, 7, v{V}')
    I('v_lshrrev_b32 v17, 1, v17'); I(f'v_lshl_add_u32 v{V}, v17, 6, v{V}')
    I(f's_and_b32 s{t0}, s{sA}, 1'); I(f's_lshl_b32 s{t0}, s{t0}, 6'); I(f'v_xor_b32 v{V}, s{t0}, v{V}')
    I(f's_lshr_b32 s{t0}, s{sA}, 1'); I(f's_lshl_b32 s{t0}, s{t0}, 11'); I(f's_add_u32 s{t0}, s{t0}, {base}')
    I(f'v_add_u32 v{V}, s{t0}, v{V}')
def w3_dma(k, V, sM, m, half, dest, tag):
    I = k.I
    t1 = sT[1]
    I(f's_add_u32 m0, s{sM}, {dest}')
    I(f's_mov_b32 s{t1}, {m*16*3584 + half*256}')
    I(f'buffer_load_dwordx4 v{V}, {srd("w3")}, s{t1} offen lds', tag=tag)
UR = 15*TILE
D_R, D_M = 40960, RB + 32768
D_A = [RB, RB + 16384, 0, 16384]
PH = 140
sWa, sWb, sUa, sUb = sT[4:8]
def w4_src(k, V):
    I = k.I
    t0, t1 = sT[0], sT[1]
    I(f's_mul_i32 s{t0}, s{sA}, {32*896}'); I(f's_lshl_b32 s{t1}, s{sJ}, 7'); I(f's_add_u32 s{t0}, s{t0}, s{t1}')
    I(f'v_lshrrev_b32 v15, 3, v1'); I(f'v_mul_u32_u24 v{V}, 896, v15')
    I('v_bfe_u32 v15, v1, 4, 1'); I('v_lshlrev_b32 v15, 2, v15'); I('v_and_b32 v16, 7, v1'); I('v_xor_b32 v15, v15, v16')
    I(f'v_lshl_add_u32 v{V}, v15, 4, v{V}'); I(f'v_add_u32 v{V}, s{t0}, v{V}')
    I(f'v_add_u32 v{V+1}, {7168 - 1024}, v{V}')
def rot_regs(k):
    I = k.I
    I(f's_mul_i32 s{sWa}, s{sJ}, {256*896}'); I(f's_sub_u32 s{sWb}, s{sWa}, {7*256*896}')
    I(f's_lshl_b32 s{sUa}, s{sJ}, 13'); I(f's_sub_u32 s{sUb}, s{sUa}, {7 << 13}')
def w4_dma(k, V, s, half, sM, dest, sS, tag):
    I = k.I
    i, gp = s >> 1, s & 1
    def f0():
        if k.o.get('now4'): return
        I(f's_cmp_ge_u32 s{sJ}, {7 - i}'); I(f's_cselect_b32 s{sS}, s{sWb}, s{sWa}')
        I(f's_add_u32 m0, s{sM}, {dest}')
        I(f's_add_u32 s{sS}, s{sS}, {(256*i + 128*half + 16*gp)*896}')
        I(f'buffer_load_dwordx4 v{V}, {srd("w4")}, s{sS} offen lds', tag=tag)
    def f1():
        if k.o.get('now4'): return
        I(f'buffer_load_dwordx4 v{V+1}, {srd("w4")}, s{sS} offen offset:1024 lds', tag=tag)
    return [f0, f1]
def w4_rd_base(k, V, sM, base):
    I = k.I
    I('v_lshrrev_b32 v15, 5, v1'); I('v_bfe_u32 v16, v1, 2, 2'); I('v_lshl_add_u32 v15, v15, 2, v16')
    I(f'v_and_b32 v{V}, 1, v3'); I(f'v_lshlrev_b32 v{V}, 5, v{V}'); I('v_and_b32 v16, 3, v1'); I(f'v_lshl_add_u32 v{V}, v16, 3, v{V}')
    I(f'v_lshl_add_u32 v{V}, v15, 7, v{V}')
    I('v_bfe_u32 v16, v1, 3, 1'); I(f'v_lshl_add_u32 v{V}, v16, 6, v{V}')
    I(f'v_add_u32 v{V}, s{sM}, v{V}'); I(f'v_add_u32 v{V}, {base}, v{V}')
    I(f'v_xor_b32 v{V+1}, 64, v{V}')
def w4_rd(k, V, W, off, tag):
    return [(lambda c=c, h=h: k.I(f'ds_read_b64_tr_b16 {vr(W+4*c+2*h,2)}, v{V+c} offset:{off + h*1024}', tag=tag)) for c in range(2) for h in range(2)]
def u_addrs(k, half, vUA, vPL, vFL):
    I, L = k.I, k.L
    t0, t1 = sT[0], sT[1]
    ru = half and k.o.get('ru', 1) and not k.o.get('dbg')
    b0, b1 = (L.X1, L.T0) if ru else (UR + half*8*TILE, UR + (half*8 + 4)*TILE)
    I(f's_and_b32 s{t0}, s{sA}, 1'); I(f's_lshl_b32 s{t0}, s{t0}, 12'); I(f's_lshr_b32 s{t1}, s{sA}, 1'); I(f's_mul_i32 s{t1}, s{t1}, {b1 - b0}')
    I(f's_add_u32 s{t0}, s{t0}, s{t1}'); I(f's_add_u32 s{t0}, s{t0}, s{sGB}'); I(f's_add_u32 s{t0}, s{t0}, {b0}')
    I(f'v_add_u32 v{vUA}, s{t0}, v4')
    I(f's_lshl_b32 s{t0}, s{sA}, 5'); I(f's_add_u32 s{t0}, s{t0}, s{sGB}'); I(f's_add_u32 s{t0}, s{t0}, {L.F_T}')
    I(f'v_min_u32 v15, 6, v1'); I(f'v_lshlrev_b32 v15, 2, v15'); I(f'v_add_u32 v{vPL}, s{t0}, v15')
    I(f's_lshl_b32 s{t1}, s{sJ}, 2'); I(f's_add_u32 s{t0}, s{t0}, s{t1}')
    I(f'v_add_u32 v{vFL}, s{t0}, v{vL0}')
def dump_addr(k, V, base):
    I = k.I
    t0 = sT[0]
    I(f's_lshl_b32 s{t0}, s{sA}, 12'); I(f's_add_u32 s{t0}, s{t0}, {base}')
    I(f'v_and_b32 v{V+1}, 7, v1'); I(f'v_lshrrev_b32 v{V+2}, 5, v1'); I(f'v_xor_b32 v{V+1}, v{V+1}, v{V+2}')
    I(f'v_and_b32 v{V}, 31, v1'); I(f'v_lshlrev_b32 v{V}, 7, v{V}'); I(f'v_lshl_add_u32 v{V}, v{V+1}, 4, v{V}'); I(f'v_add_u32 v{V}, s{t0}, v{V}')
    for g in range(1, 4): I(f'v_xor_b32 v{V+g}, {g*32}, v{V}')
class Mlp:
    def __init__(r, k, nm, half, **kw):
        r.k, r.nm, r.half = k, nm, half
        r.__dict__.update(kw)
        r.ev = []; r.free = []; r.todo = []; r.keep = set()
        r.slot = {(b, gp): r.PK[b] + 4*gp for b in range(2) for gp in range(2)}
    def op(r, key, d): return r.k.o.get(r.nm.upper() + '_' + key, d)
    def at(r, t, *fs): r.ev.append((t, len(r.ev), fs))
    def seq(r, t, dt, fs):
        for i, f in enumerate(fs): r.at(t + i*dt, f)
    def tick(r, t):
        r.ev.sort(key=lambda x: x[:2])
        while r.ev and r.ev[0][0] <= t:
            for f in r.ev.pop(0)[2]: f() if callable(f) else r.k.I(f)
    def b_rd(r, i):
        b, m = divmod(i, 29)
        d = vr(r.BB + 4*(i % 4), 4)
        r.k.I(f'ds_read_b128 {d}, v{r.vX} offset:{b*2*TILE + m*512}' if m < 28 else f'ds_read_b128 {d}, v{r.vS} offset:{b*1024}')
    def pre(r):
        for i in range(3): r.b_rd(i)
    def flag(r, b, ack=True):
        if ack: r.k.e.wait_tag(f'u{b}')
        r.k.stores([f'buffer_store_dword v{r.vTG}, v{r.vFL}, {WS}, 0 offen offset:{256 + r.half*128 + b*256}'])
        r.k.stamp(f'F{b}')
    def pl(r, b): return f'buffer_load_dword v{r.vD}, v{r.vPL}, {WS}, 0 offen offset:{256 + r.half*128 + b*256} sc1'
    def chk(r, b):
        k = r.k
        k.stamp(f'xQ{b}')
        k.poll2([r.pl(b)], lambda: k.I(f'v_cmp_ne_u32 vcc, s{sTAG}, v{r.vD}'), f'{r.nm}{b}')
        k.stamp(f'Q{b}')
        r.todo += [(b, s) for s in range(2, 14)]
    def loads(r, n=1):
        I, sS = r.k.I, sT[1]
        for _ in range(n):
            if not r.todo or not r.free: return
            b, s = r.todo.pop(0)
            r.slot[b, s] = r.free.pop(0)
            i, gp = s >> 1, s & 1
            if gp == 0:
                I(f's_cmp_ge_u32 s{sJ}, {7 - i}'); I(f's_cselect_b32 s{sS}, s{sUb}, s{sUa}'); I(f's_add_u32 s{sS}, s{sS}, {i << 13}')
            I(f'buffer_load_dwordx4 {vr(r.slot[b,s],4)}, v{r.vUA}, {WS}, s{sS} offen offset:{b*2048 + gp*1024} sc1')
    def give(r, *regs): r.free.extend(regs)
    def lend(r, *regs): r.free.extend(regs); r.keep |= set(regs)
    def dump(r, q):
        for g in range(4): r.k.I(f'ds_write_b128 v{r.vDP+g}, {vr(r.Q[q]+4*g,4)} offset:{r.DO[q]}')
    def run(r, afn, L_):
        k = r.k
        I, e, o = k.I, k.e, k.o
        ac2 = o.get('ac2', 0)
        gg = gelu_groups(r.AC, r.GT, r.GC, r.PK, r.op('pk', 0))
        pr = r.op('pr', r.pr)
        ov = o.get('ov', 1)
        def up(i):
            b, m = divmod(i, 29)
            if i + 3 < 58: r.b_rd(i + 3)
            x0 = 99 if not ac2 else ov + 1 if b else 1
            odd = m >= x0 and (m - x0) % 2 == 0
            acc = vr(r.AX if odd else r.AC + 16*b, 16)
            I(f'{MF32} {acc}, {vr(afn(m),4)}, {vr(r.BB + 4*(i % 4),4)}, ' + ('0' if m in (0, x0) else acc))
        def mf(s, q): I(f'{MF32} {vr(r.Q[q],16)}, {vr(r.W(s)+4*(q&1),4)}, {vr(r.slot[q>>1,s],4)}, ' + ('0' if s == 0 else vr(r.Q[q], 16)))
        def phase(p):
            r.tick(p*PH - 1)
            if p == 0 or pr[p] != pr[p-1]: I(f's_setprio {pr[p]}')
            k.stamp(f'P{p}')
        for b in range(2):
            phase(2*b)
            for m in range(ov*b, 29):
                up(29*b + m); r.tick(2*b*PH + 4*m)
            if b == 0:
                for m in range(ov): up(29 + m)
            phase(2*b + 1)
            g = [f'v_add_f32 v{r.AC+16*b+i}, v{r.AC+16*b+i}, v{r.AX+i}' for i in range(16)]*ac2
            for Lq, P, off in gg[2*b:2*b+2]:
                g += Lq + [lambda P=P, off=off: k.stores([f'buffer_store_dwordx4 {vr(P,4)}, v{r.vUA}, {WS}, s{sUa} offen offset:{off}'], tag=f'u{b}')]
            for n, x in enumerate(g):
                r.tick((2*b + 1)*PH + n + 16*(1 - ac2))
                x() if callable(x) else I(x)
        sq = [[(s, q) for q0 in (0, 2) for s in range(2) for q in (q0, q0 + 1)] + [(s, q) for s in range(2, 14) for q in (0, 1)],
              [(s, q) for s in range(2, 14 - L_) for q in (2, 3)] + [(s, q) for q in (2, 3) for s in range(14 - L_, 14)]]
        for b in range(2):
            phase(4 + b)
            for n, (s, q) in enumerate(sq[b]):
                mf(s, q)
                if b == 0 and q & 1 and (s > 1 or q == 3) and r.slot[q >> 1, s] not in r.keep: r.give(r.slot[q >> 1, s])
                if b == 0 and q == 3: r.give(r.W(s), r.W(s) + 4)
                r.tick((4 + b)*PH + 4*n)
                r.loads(r.op('lr', 2))
        assert not r.todo
        k.stamp('G')
        r.tick(9999)
def pat(k, P):
    I = k.I
    I('v_lshrrev_b32 v15, 2, v2'); I('v_and_b32 v16, 1, v3'); I('v_cmp_eq_u32 vcc, v15, v16')
    I(f'v_mov_b32 v15, 0x3f803f80')
    for i in range(4): I(f'v_cndmask_b32 v{P+i}, 0, v15, vcc')
def up_addrs(k, vX, vS):
    I = k.I
    t0 = sT[0]
    I('v_bfe_u32 v15, v1, 4, 1'); I(f'v_mul_u32_u24 v{vX}, {TILE}, v15')
    I(f'v_lshl_add_u32 v{vX}, v2, 4, v{vX}')
    I('v_lshrrev_b32 v16, 5, v1'); I(f'v_lshl_add_u32 v{vX}, v16, 8, v{vX}')
    I(f'v_and_b32 v{vS}, 31, v1'); I(f'v_lshlrev_b32 v{vS}, 5, v{vS}'); I(f'v_add_u32 v{vS}, {L_STAT}, v{vS}')
def gelu_groups(acc, GT, GC, PK, pk=0):
    out = []
    for b in range(2):
        G = GC + 4*b
        for gp in range(2):
            Lq = []
            x = acc + 16*b + 8*gp; tt = GT
            if 3 - (2*b + gp) < pk:
                c = 108
                Lq.append(f'v_mov_b32 v{c}, v{G+1}')
                for i in range(0, 8, 2): Lq.append(f'v_pk_mul_f32 {vr(tt+i,2)}, {vr(x+i,2)}, {vr(x+i,2)}')
                for i in range(0, 8, 2): Lq.append(f'v_pk_fma_f32 {vr(tt+i,2)}, {vr(tt+i,2)}, {vr(c,2)}, {vr(G,2)} op_sel_hi:[1,0,0]')
                for i in range(0, 8, 2): Lq.append(f'v_pk_mul_f32 {vr(tt+i,2)}, {vr(tt+i,2)}, {vr(x+i,2)}')
                for i in range(8): Lq.append(f'v_exp_f32 v{tt+i}, v{tt+i}')
                for i in range(0, 8, 2): Lq.append(f'v_pk_fma_f32 {vr(tt+i,2)}, {vr(tt+i,2)}, {vr(G+2,2)}, {vr(G+2,2)} op_sel_hi:[1,0,0]')
                for i in range(8): Lq.append(f'v_rcp_f32 v{tt+i}, v{tt+i}')
                for i in range(0, 8, 2): Lq.append(f'v_pk_mul_f32 {vr(x+i,2)}, {vr(x+i,2)}, {vr(tt+i,2)}')
            else:
                for i in range(8): Lq.append(f'v_mul_f32 v{tt+i}, v{x+i}, v{x+i}')
                for i in range(8): Lq.append(f'v_fma_f32 v{tt+i}, v{tt+i}, v{G+1}, v{G}')
                for i in range(8): Lq.append(f'v_mul_f32 v{tt+i}, v{tt+i}, v{x+i}')
                for i in range(8): Lq.append(f'v_exp_f32 v{tt+i}, v{tt+i}')
                for i in range(8): Lq.append(f'v_fma_f32 v{tt+i}, v{tt+i}, v{G+2}, v{G+2}')
                for i in range(8): Lq.append(f'v_rcp_f32 v{tt+i}, v{tt+i}')
                for i in range(8): Lq.append(f'v_mul_f32 v{x+i}, v{x+i}, v{tt+i}')
            P = PK[b] + 4*gp
            for i in range(4): Lq.append(f'v_cvt_pk_bf16_f32 v{P+i}, v{x+2*i}, v{x+2*i+1}')
            out.append((Lq, P, b*2048 + gp*1024))
    return out
def publish_stats(k, src, sreg, tagbits, T, mid=None, thru=False, ack=True, after=None, flag=()):
    e, I = k.e, k.I
    P = T
    pack_pairs(k, src, P)
    st = [f'buffer_store_dwordx4 {vr(P,4)}, v{vST}, {WS}, s{sreg} offen',
          f'buffer_store_dwordx4 {vr(P+4,4)}, v{vST}, {WS}, s{sreg} offen offset:1024']
    if thru:
        for t in st: I(t + ' sc1')
    else: k.stores(st + list(flag), tag='ds')
    if after: after()
    S = T + 8
    I(f'v_pk_add_f32 {vr(S,2)}, {vr(src,2)}, {vr(src+2,2)}')
    I(f'v_pk_mul_f32 {vr(S+2,2)}, {vr(src,2)}, {vr(src,2)}')
    I(f'v_pk_fma_f32 {vr(S+2,2)}, {vr(src+2,2)}, {vr(src+2,2)}, {vr(S+2,2)}')
    for i in range(4, 16, 2):
        I(f'v_pk_add_f32 {vr(S,2)}, {vr(S,2)}, {vr(src+i,2)}')
        I(f'v_pk_fma_f32 {vr(S+2,2)}, {vr(src+i,2)}, {vr(src+i,2)}, {vr(S+2,2)}')
    I(f'v_add_f32 v{S+4}, v{S}, v{S+1}')
    I(f'v_add_f32 v{S+5}, v{S+2}, v{S+3}')
    k.allred2(S+4, S+5, S, 'v_add_f32')
    I(f'v_or_b32 v{S+6}, {tagbits}, v{vTAG}')
    if ack: e.wait_vm0()
    k.stores([f'buffer_store_dwordx3 {vr(S+4,3)}, v9, {WS}, 0 offen'])
    if mid: mid()

def x1_dma(k, m0_, vaddr):
    I = k.I
    t0, t1 = sT[0], sT[1]
    I(f's_mul_i32 s{t0}, s{sA}, {TILE}')
    for i in range(7):
        m = m0_ + i
        if i % 4 == 0:
            I(f's_mov_b32 s{t1}, {k.L.X1 + m*1024}')
            I(f's_add_u32 m0, s{t0}, {RA + m*1024}')
        I(f'buffer_load_dwordx4 v{vaddr}, {WS}, s{t1} offen offset:{(i&3)*1024} sc1 lds', tag='x1')

def main_rest(k):
    e, I, L, o = k.e, k.I, k.L, k.o
    t0, t1, t2, t3 = sT[0:4]
    sR = sT[8]
    sn = o.get('sn', '')
    assert 't' in sn and 'x' in sn and 'h' in sn
    il = o.get('il', '722111').split('.')
    il = il + il[-1:]*2
    sg = [int(c, 36) for c in o.get('sg', 'aaa')]
    assert o.get('tpb', 0) == 0
    b_soff(k, L.O)
    I(f's_mov_b32 s{sR}, {L.H}')
    k.k_landed()
    a_preload(k, RA, range(7))
    g_wr(k, 1)
    x_addr(k, RA)
    k.k_landed2()
    def chk(): I(f'v_cmp_ne_u32 vcc, s{sTAG}, v16')
    k.stamp('xpo')
    k.poll3([f'buffer_load_dword v16, v{vOP}, {WS}, 0 offen sc1'], chk, 'o')
    k.stamp('po')
    I(f's_setprio {o.get("gp", 1)}')
    kgemm(k, HR, b_src, il[0], sg[0], 1, (1, 0), lambda: hinit(k), nm='H', chk='o' in sn)
    k.stamp('hg')
    def mid():
        g_chk(k, 0, 1)
    D = 32
    G = D
    sl = [f'buffer_load_dwordx3 {vr(D,3)}, v{vSA}, {WS}, 0 offen sc1', f'buffer_load_dwordx3 {vr(D+4,3)}, v{vSB}, {WS}, 0 offen sc1']
    publish_stats(k, HR, sR, 1, BF, mid, False, ack=False, after=lambda: I(g_rd()),
                  flag=[f'buffer_store_dword v{vTAG}, v{vTF}, {WS}, 0 offen offset:128'])
    k.stamp('hp')
    if k.stop == 'h': return
    a_preload(k, RB, range(7))
    g_wr(k, 3)
    x_addr(k, RB)
    b_soff(k, L.H)
    I('v_lshlrev_b32 v8, 4, v3'); I(f'v_add_u32 v8, {L_CS1}, v8')
    I(f's_mov_b32 s{sR}, {L.T0}')
    I(f's_or_b32 s{sN}, s{sTAG}, 1')
    k.stamp('xph')
    k.poll3([f'buffer_load_dword v16, v{vHF}, {WS}, 0 offen offset:128 sc1'], chk, 'h')
    k.stamp('ph')
    MR, MU = 12, 10
    def tst():
        I = k.I
        row_stats(k, D)
        I(f'v_add_f32 v{D+2}, 0x3727c5ac, v{D+1}'); I(f'v_rsq_f32 v{D+4}, v{D+2}')
        I(f'v_mul_f32 v{MU}, -1.0, v{D}')
        I(f'v_mul_f32 v{D+2}, v{D+4}, v{D+4}'); I(f'v_mul_f32 v{D+2}, v{D+2}, v{D+1}')
        I(f'v_add_f32 v{D+2}, 0x3727c5ac, v{D+2}'); I(f'v_rsq_f32 v{D+2}, v{D+2}')
        I(f'v_mul_f32 v{MR}, v{MU}, v{D+4}')
        I(f'v_mul_f32 v{D+6}, v{D+4}, v{D+2}')
        gelu_consts(k, D+6, G)
        I(f'v_mov_b32 v{D+6}, v{G+1}')
    def schk():
        I(f'v_cmp_ne_u32 vcc, s{sN}, v{D+2}')
        I(f'v_cmp_ne_u32 s[{sT[2]}:{sT[3]}], s{sN}, v{D+6}')
        I(f's_or_b64 vcc, vcc, s[{sT[2]}:{sT[3]}]')
    q0, q1 = o.get('q0s', 1), o.get('q1s', 8)
    CS = BF + 16
    hooks = {q0: lambda: [I(t) for t in sl], q1: lambda: k.poll2(sl, schk, 'hs'),
             9: lambda: [I(f'ds_read_b128 {vr(CS+4*t,4)}, v8 offset:{t*64}') for t in range(4)]}
    assert len(hooks) == 3
    fin = [f'v_pk_fma_f32 {vr(OAC+i,2)}, {vr(CS+i,2)}, {vr(MU,2)}, {vr(OAC+i,2)} op_sel_hi:[1,0,1]' for i in range(0, 16, 2)]
    kgemm(k, ACC, b_src, il[1], sg[1], 2, (3, 3 if o.get('kpf', 'htx') != 'htx' else 1), None, zero=True, vf=k.capture(tst), v0=q1 + 1, nm='U', hooks=hooks, fin=fin)
    k.stamp('tg')
    T = BF
    P = T + 16
    gl = []
    for h in range(2):
        x = ACC + 8*h; tt = T + 8*h
        for i in range(0, 8, 2): gl.append(f'v_pk_mul_f32 {vr(tt+i,2)}, {vr(x+i,2)}, {vr(x+i,2)}')
        for i in range(0, 8, 2): gl.append(f'v_pk_fma_f32 {vr(tt+i,2)}, {vr(tt+i,2)}, {vr(D+6,2)}, {vr(G,2)} op_sel_hi:[1,0,0]')
        for i in range(0, 8, 2): gl.append(f'v_pk_mul_f32 {vr(tt+i,2)}, {vr(tt+i,2)}, {vr(x+i,2)}')
        for i in range(8): gl.append(f'v_exp_f32 v{tt+i}, v{tt+i}')
        for i in range(0, 8, 2): gl.append(f'v_pk_fma_f32 {vr(tt+i,2)}, {vr(tt+i,2)}, {vr(G+2,2)}, {vr(G+2,2)} op_sel_hi:[1,0,0]')
        for i in range(8): gl.append(f'v_rcp_f32 v{tt+i}, v{tt+i}')
        for i in range(0, 8, 2): gl.append(f'v_pk_mul_f32 {vr(x+i,2)}, {vr(x+i,2)}, {vr(tt+i,2)}')
        gl += k.capture(lambda: k.cvt(P+4*h, x, 8))
        gl.append(f'v_permlane16_swap_b32 v{P+4*h}, v{P+4*h+2}')
        gl.append(f'v_permlane16_swap_b32 v{P+4*h+1}, v{P+4*h+3}')
        if h == 1: gl.insert(len(gl) - 12, g_rd())
        gl.append(f'buffer_store_dwordx4 {vr(P+4*h,4)}, v{vHS}, {WS}, 0 offen offset:{h*1024} sc1')
        gl.append(lambda h=h: k.stores([f'buffer_store_dwordx4 {vr(P+4*h,4)}, v{vST}, {WS}, s{sR} offen offset:{h*1024}'] + [f'buffer_store_dword v{vTAG}, v{vTF}, {WS}, 0 offen']*h, tag='tl'))
    for n, t in enumerate(gl):
        t() if callable(t) else I(t)
    k.stamp('tp')
    def hn():
        for i in range(0, 16, 2):
            I(f'v_pk_fma_f32 {vr(ACC+i,2)}, {vr(HR+i,2)}, {vr(D+4,2)}, {vr(MR,2)} op_sel_hi:[1,0,0]')
    if k.stop == 't': return
    g_chk(k, 0, 4, name='et')
    a_preload(k, RA, [0, 1, 2, 7, 8, 9, None], True)
    g_wr(k, 5)
    x_addr(k, RA)
    hn()
    I(f's_mov_b32 s{sT[4]}, {L.T0 - TILE}'); I(f's_mov_b32 s{sT[5]}, {L.T0 - TILE + 7168}')
    I(f's_mov_b32 s{sR}, {L.X1}')
    sM, sS, sM2 = sT[9], sT[10], sT[11]
    w3_rd_base(k, 14, RC)
    I(f's_and_b32 s{t0}, s{sW}, 1'); I(f's_mul_i32 s{t0}, s{t0}, {TILE}'); I(f'v_add_u32 v{vB}, s{t0}, v{vB}')
    def x_src(p):
        i = p % 7
        return f'v{XA + 3*(p//7) + i//3}, {WS}, s{sT[4 + (3 <= i < 6)]} offen offset:{(i%3)*1024} sc1'
    pl = f'buffer_load_dword v16, v{vTP}, {WS}, 0 offen sc1'
    ph = f'buffer_load_dword v17, v{vHP}, {WS}, 0 offen sc1'
    k.stamp('xpt')
    k.poll3([pl], chk, 't')
    hooks = {}
    ho = o.get('ho', 1)
    if ho:
        hx = o.get('hx', 1)
        il[2] = '7' + '0'*(hx + 1) + o.get('ix', '322')
        hooks = {-1: lambda: I(ph), hx: lambda: (k.stamp('xhl'), k.poll2([ph], lambda: I('v_cmp_eq_u32 vcc, -1, v17'), 'hl'), k.stamp('hl'))}
    k.stamp('pt')
    kgemm(k, ACC, x_src, il[2], sg[2], 3, (5, 0), hn, nm='X', hooks=hooks)
    k.stamp('xg')
    def mid():
        for i in range(0, 16, 2):
            I(f'v_pk_add_f32 {vr(RES+i,2)}, {vr(HR+i,2)}, {vr(ACC+i,2)}')
    publish_stats(k, ACC, sR, 2, BF, mid, ack=False)
    I('s_setprio 0')
    k.stamp('xp')
    k.bar('ex')
    if k.stop == 'x1': return
    def F(m): return 128 + 4*m
    AC, BB, GT, GC, PAT, C, AXT = 44, 76, 92, 28, 108, 32, 36
    vX, vS, vUA, vW4, vPL, vFL, vWR, vDP = 5, 6, 7, 10, 12, 9, 18, 108
    I(f'v_subrev_u32 v8, {RC - RB}, v14'); I(f'v_subrev_u32 v17, {RC - RA}, v14')
    def frd(m): tr2(k, F(m), 14 if m < 3 or m == 27 else 8 if m < 17 else 17, (m if m < 3 else m - 3 if m < 17 else m - 17)*4096, 512)
    SR = 40
    def xstats(D):
        I = k.I
        row_stats(k, D)
        I(f'v_mul_f32 v{D+3}, -1.0, v{D}')
        k.split_b(D+3, SR, D+2)
        I(f'v_add_f32 v{D+2}, 0x3727c5ac, v{D+1}'); I(f'v_rsq_f32 v{D+4}, v{D+2}')
        gelu_consts(k, D+4, SR+4)
        I(f's_lshl_b32 s{t0}, s{sW}, 9'); I(f's_add_u32 s{t0}, s{t0}, {L_STAT}')
        I('v_lshlrev_b32 v15, 5, v2'); I(f'v_add_u32 v15, s{t0}, v15')
        I(f'ds_write_b128 v15, {vr(SR,4)}'); I(f'ds_write_b128 v15, {vr(SR+4,4)} offset:16')
    def cs(m): I(f'{MF16} {vr(C,4)}, {vr(PAT,4)}, {vr(F(m),4)}, ' + ('0' if m == 17 else vr(C, 4)))
    dm = []
    for s in range(7): dm += w4_dma(k, vW4, s, 0, sM, RB + s*8192, sS, 'a1')
    def mloc(s): return RC + s*8192 if s < 5 else (s - 5)*8192 if s < 8 else RC + (s - 8)*8192 if s < 13 else 0
    def mdma(s): return w4_dma(k, vW4, s, 1, sM, mloc(s), sS, f'w{s}')
    def mrd(s): return [lambda: e.wait_tag(f'w{s}')] + w4_rd(k, vWR if mloc(s) >= RC else PAT, 128 + 8*s, mloc(s) % RC, f'r{s}')
    f0 = o.get('f0', 10)
    D2 = 60
    sl = [f'buffer_load_dwordx3 {vr(D2,3)}, v{vSA}, {WS}, 0 offen sc1', f'buffer_load_dwordx3 {vr(D2+4,3)}, v{vSB}, {WS}, 0 offen sc1']
    for m in range(17, 28): frd(m)
    pat(k, PAT)
    MFL[:] = [0, 26]
    g_addr(k, MFL[0], MFL[1], vFV, False)
    e.wait_lg0(); k.bar('xj')
    for m in range(f0): frd(m)
    if o.get('xw', 1): e.wait_tag('ds')
    k.stamp('xi')
    x1_dma(k, 0, vB); x1_dma(k, 7, vB)
    for t in sl: I(t)
    for m in range(f0, 17): frd(m)
    g_wr(k, 7)
    up_addrs(k, vX, vS)
    w4_src(k, vW4); rot_regs(k)
    I(f's_lshl_b32 s{sM}, s{sA}, 11')
    w4_rd_base(k, vWR, sM, RC); u_addrs(k, 1, vUA, vPL, vFL)
    I(f'v_mov_b32 v{AXT+2}, 0'); I(f'v_mov_b32 v{AXT+3}, 0')
    I(f's_mul_i32 s{t0}, s{sA}, {TILE}')
    I('v_and_b32 v15, 60, v1'); I('v_lshl_add_u32 v15, v1, 6, v15'); I(f'v_add_u32 v15, s{t0}, v15')
    for m in list(range(17, 28)) + list(range(17)): cs(m)
    k.split_a(C, AXT, C+1)
    for i in range(2): I(f'v_subrev_u32 v{PAT+i}, {RC}, v{vWR+i}')
    e.wait_tag('x1')
    k.stamp('xl')
    rds = [f'ds_read_b32 v{40+i}, v15 offset:{RA + min(i*4096, TILE - 4096)}' for i in range(4)]
    def xchk():
        for t in rds: I(t)
        I('v_max3_u32 v16, v40, v41, v42'); I('v_max_u32 v16, v16, v43')
        I('v_cmp_eq_u32 vcc, -1, v16')
    done, retry = e.newlabel('Lxd'), e.newlabel('Lxr')
    xchk()
    I(f's_cbranch_vccnz {retry}')
    e.label(done)
    def stub():
        e.label(retry)
        k.stamp('xr')
        x1_dma(k, 0, vB); x1_dma(k, 7, vB)
        e.wait_vm0()
        xchk()
        spin_tail(k, retry, done)
    ool(k, stub)
    k.bar('b8')
    I(f's_setprio {o.get("pb", 0)}')
    del dm[:o.get('nA', 4)]
    na1 = len(dm)
    dm += [f for s in range(5) for f in mdma(s)]
    for _ in range(o.get('nd', 0)): dm.pop(0)()
    I(f's_or_b32 s{sN}, s{sTAG}, 2')
    def schk():
        I(f'v_cmp_ne_u32 vcc, s{sN}, v{D2+2}')
        I(f'v_cmp_ne_u32 s[{sT[2]}:{sT[3]}], s{sN}, v{D2+6}')
        I(f's_or_b64 vcc, vcc, s[{sT[2]}:{sT[3]}]')
    k.poll2(sl, schk, 'xs')
    k.stamp('px')
    r = Mlp(k, 'n', 1, AC=AC, BB=BB, GT=GT, GC=GC, PK=[100, 76], vX=vX, vS=vS, vUA=vUA, vPL=vPL, vFL=vFL, vTG=vTAG, vD=16, W=lambda s: 128 + 8*s,
            Q=[44, 112, 60, 92], AX=112, vDP=vDP, DO=[q*16384 for q in range(4)], pr='111111')
    op, at, seq = r.op, r.at, r.seq
    xs = k.capture(lambda: xstats(D2))
    nx = o.get('nx', 4)
    for i, t in enumerate(xs):
        if nx and i % (len(xs)//nx) == 0 and i//(len(xs)//nx) < nx and not t.startswith('s_'): dm.pop(0)()
        I(t)
    g_wr(k, 8)
    r.pre()
    I(f's_or_b32 s{sN}, s{sTAG}, 3')
    for _ in range(o.get('ne', 8)): dm.pop(0)()
    k.stamp('f3')
    seq(op('a0', 0), op('ad', 12), dm)
    assert op('a0', 0) + op('ad', 12)*(len(dm) - 1) < PH + op('r0', 30)
    at(88, g_rd()); at(96, lambda: g_chk(k, 8, 0))
    at(100, f'ds_read_b128 {vr(GC,4)}, v{vS} offset:16', f'ds_read_b128 {vr(GC+4,4)}, v{vS} offset:1040')
    at(PH - 1, lambda: e.wait_tag('a1'), lambda: g_wr(k, 9), lambda: k.stamp('m2'))
    xl = f'buffer_load_dword v8, v{vPL}, {WS}, 0 offen sc1'
    at(op('xd', 110), xl); at(PH + 70, lambda: k.poll2([xl], lambda: I(f'v_cmp_ne_u32 vcc, s{sN}, v8'), 'xd'))
    r0, d0 = PH + op('r0', 30), op('d0', 16)
    at(r0 - 10, g_rd()); at(r0, lambda: g_chk(k, 9, 5, name='rc'))
    seq(r0, d0, [f for s in range(5, 8) for f in mdma(s)])
    at(2*PH + op('f0', 32), lambda: r.flag(0))
    r1, rs, rd, dd = 2*PH + op('r1', 8), op('rs', 12), 2*PH + op('rd', 24), op('dd', 20)
    assert rd > r0 + 5*d0 and rd >= r1 + 8 and dd >= rs
    for s in range(8):
        assert r1 + s*rs >= 2*PH + 4*(2*s + 1)
        seq(r1 + s*rs, 2, mrd(s))
        if s < 6:
            d = mdma(s + 8)
            at(rd + s*dd, lambda s=s: e.wait_tag(f'r{s}'), d[0]); at(rd + s*dd + dd//2, d[1])
    at(3*PH - 1, lambda: g_wr(k, 10), lambda: r.lend(*range(208, 240, 4)), lambda: r.give(36, 40, 84, 88))
    def res():
        I = k.I
        I(f's_add_u32 s{t0}, s{sM}, {D_R}')
        I('v_and_b32 v15, 7, v2'); I('v_xor_b32 v15, v15, v3'); I('v_lshlrev_b32 v15, 4, v15'); I('v_lshl_add_u32 v15, v2, 7, v15')
        I(f'v_add_u32 v15, s{t0}, v15'); I('v_xor_b32 v17, 64, v15')
    r3 = 3*PH + op('r3', 60)
    at(r3 - 12, g_rd(), res); at(r3, lambda: g_chk(k, 10, 6, name='g9'))
    seq(r3 + 1, 4, [f'ds_write_b128 v{15 + 2*(t&1)}, {vr(RES+4*t,4)} offset:{(t>>1)*8192}' for t in range(4)] + [lambda: (g_wr(k, 11), r.give(240, 244, 248, 252))])
    q0, c0 = 2*PH + op('q0', 100), 3*PH + op('c0', 20)
    at(q0, r.pl(0)); at(c0, lambda: r.chk(0)); seq(c0, op('l0', 10), [r.loads]*12)
    seq(3*PH + op('r2', 110), 2, [f for s in range(8, 10) for f in mrd(s)])
    at(4*PH - 1, lambda: r.give(28, 32))
    at(4*PH + op('f1', 12), lambda: r.flag(1, not o.get('uq')))
    seq(4*PH + 4*15, 1, [f for s in (10, 11) for f in mrd(s)])
    seq(4*PH + 4*23, 0, [f for s in (12, 13) for f in mrd(s)] + [lambda: g_wr(k, 12), lambda: dump_addr(k, vDP, D_M)])
    q1 = 4*PH + op('q1', 40)
    at(q1, r.pl(1)); at(q1 + op('w1', 40), lambda: r.chk(1), lambda: r.loads(op('n1', 4)))
    ml, qa = o.get('ml', 4), 5*PH + op('qa', 4)
    at(qa - 12 - PH + 128, g_rd()); at(qa, lambda: g_chk(k, 12, 7), lambda: r.dump(0)); at(qa + 8, lambda: r.dump(1))
    at(5*PH + op('qb', 60), e.wait_lg0, lambda: k.bar('q0'))
    at(5*PH + 4*(24 - ml + 1), lambda: r.dump(2))
    at(5*PH + 4*23, e.wait_lg0, lambda: k.bar('q2'))
    at(6*PH, lambda: r.dump(3), e.wait_lg0, lambda: k.bar('q3'))
    r.run(lambda m: F(m) if m < 28 else AXT, ml)
    MFL[:] = [vFW, vFR]
    k.stamp('end')

vT3, vT2, vT4, vTQ, vTD = 202, 203, 204, 205, 206
def touch_addrs(k):
    I, L = k.I, k.L
    t0, t1, t2 = sT[0:3]
    I(f's_and_b32 s{t0}, s{sG}, 3'); I(f's_lshl_b32 s{t0}, s{t0}, 2'); I(f's_add_u32 s{t0}, s{t0}, s{sA}')
    I(f's_mul_i32 s{t1}, s{t0}, 3584'); I(f's_lshl_b32 s{t2}, s{sJ}, 9'); I(f's_add_u32 s{t1}, s{t1}, s{t2}')
    I(f's_cmp_eq_u32 s{sJ}, 7'); I(f's_cselect_b32 s{t1}, {BIG}, s{t1}')
    I('v_lshrrev_b32 v15, 1, v1'); I(f'v_mul_u32_u24 v{vT3}, {16*3584}, v15'); I('v_and_b32 v15, 1, v1')
    I(f'v_lshl_add_u32 v{vT3}, v15, 7, v{vT3}'); I(f'v_add_u32 v{vT3}, s{t1}, v{vT3}')
    I(f's_mul_i32 s{t0}, s{t0}, 896'); I(f's_lshl_b32 s{t2}, s{sJ}, 7'); I(f's_add_u32 s{t1}, s{t0}, s{t2}')
    I(f'v_mul_u32_u24 v{vT2}, {16*896}, v1'); I(f'v_add_u32 v{vT2}, s{t1}, v{vT2}')
    I(f's_mul_i32 s{t2}, s{sJ}, {256*896}'); I(f's_add_u32 s{t1}, s{t0}, s{t2}')
    I('v_lshrrev_b32 v15, 3, v1'); I(f'v_mul_u32_u24 v{vT4}, {16*896}, v15'); I('v_and_b32 v15, 7, v1'); I('v_min_u32 v15, 6, v15')
    I(f'v_lshl_add_u32 v{vT4}, v15, 7, v{vT4}'); I(f'v_add_u32 v{vT4}, s{t1}, v{vT4}')
    I(f's_mul_i32 s{t1}, s{sJ}, {AS}'); I(f's_mul_i32 s{t2}, s{sA}, {TILE}'); I(f's_add_u32 s{t1}, s{t1}, s{t2}'); I(f's_add_u32 s{t1}, s{t1}, {L.P0}')
    I('v_min_u32 v15, 55, v1'); I(f'v_lshlrev_b32 v{vTQ}, 7, v15'); I(f'v_add_u32 v{vTQ}, s{t1}, v{vTQ}')
def touch(k, key, dflt='-'):
    I = k.I
    t1 = sT[1]
    for ch in k.o.get(key, dflt):
        if ch in 'ab': I(f'buffer_load_dword v{vTD}, v{vT3}, {srd("w3")}, 0 offen offset:{256 if ch == "b" else 0}')
        elif ch in 'o12': I(f'buffer_load_dword v{vTD}, v{vT2}, {srd("wo" if ch == "o" else "w" + ch)}, 0 offen')
        elif ch in '45':
            I(f's_mov_b32 s{t1}, {128*896 if ch == "5" else 0}')
            I(f'buffer_load_dword v{vTD}, v{vT4}, {srd("w4")}, s{t1} offen')
        elif ch in 'pq':
            I(f's_add_u32 s{t1}, s{sGB}, {7168 if ch == "q" else 0}')
            I(f'buffer_load_dword v{vTD}, v{vTQ}, {WS}, s{t1} offen sc1')
        else: continue
        k.e.vm[-1]['dst'] = set()

def aux_burst2(k):
    I, o = k.I, k.o
    touch_addrs(k)
    touch(k, 'tO')
    w3_src(k, 12)
    for m in range(o['w2a']): w3_dma(k, 12, k.sMW, m, 0, RC + m*4096, 'w3')

def aux_pre(k): pass

def aux_rest(k):
    e, I, L, o = k.e, k.I, k.L, k.o
    t0, t1, t2, t3 = sT[0:4]
    sM = k.sMW; sS = sT[5]
    A0, AC, BB, GT, GC, PAT, C, AXT, ONE = 32, 144, 176, 192, 208, 232, 236, 216, 244
    n0 = o['w2a']; nH = 12; nT = 28 - n0 - nH
    assert nT <= 8 and n0 <= 10
    def rd(m0, n, s0=0):
        for i in range(n): tr2(k, A0 + 4*(m0+i), 8, (s0+i)*4096, 512)
    def cs(m0, n):
        for m in range(m0, m0 + n):
            I(f'{MF16} {vr(C,4)}, {vr(PAT,4)}, {vr(A0+4*m,4)}, ' + ('0' if m == 0 else vr(C, 4)))
    def dma(m0, n, s0=0):
        for i in range(n): w3_dma(k, 12, sM, m0 + i, 0, RC + (s0+i)*4096, 'w3')
    w3_rd_base(k, 8, RC)
    if not k.v4:
        k.o_flag()
        k.bar('eo')
        rd(0, n0)
    I('v_bfe_u32 v15, v1, 2, 2')
    I('v_lshl_add_u32 v16, v3, 3, v15'); I('v_lshlrev_b32 v16, 7, v16')
    I('v_and_b32 v17, 3, v1'); I('v_lshl_add_u32 v16, v17, 3, v16')
    I('v_lshrrev_b32 v15, 1, v15'); I('v_and_b32 v17, 1, v3'); I('v_lshl_add_u32 v15, v17, 1, v15')
    I(f'v_xor_b32 v15, s{sA}, v15')
    I('v_lshl_add_u32 v6, v15, 5, v16'); I(f'v_add_u32 v6, {RB}, v6')
    CB = 144
    if k.v4:
        for i in range(4): I(f'v_mov_b32 v{ONE+i}, 0x3f803f80')
        pat(k, PAT)
        k.o_flag('os')
        g_addr(k, aFW, aFR, aFV, True)
        k.v_landed()
        rd(0, n0)
    for m in range(14): tr2(k, CB + 4*m, 6, m*4096, 512)
    if not k.v4:
        for i in range(4): I(f'v_mov_b32 v{ONE+i}, 0x3f803f80')
        pat(k, PAT)
    for m in range(14):
        I(f'{MF16} v[248:251], {vr(ONE,4)}, {vr(CB+4*m,4)}, ' + ('0' if m == 0 else 'v[248:251]'))
    cs(0, n0)
    I(f's_lshl_b32 s{t0}, s{sA}, 6'); I(f's_add_u32 s{t0}, s{t0}, {L_CS1}')
    I('v_lshlrev_b32 v15, 2, v2'); I(f'v_add_u32 v15, s{t0}, v15')
    I('ds_write_b32 v15, v248')
    g_wr(k, 1, True)
    sD = sT[4]
    I(f'v_mov_b32 v{aPA}, v12')
    def stream(nm, m0, n, dest, tag, half=0, hk={}):
        mul, V = (14, aPA) if nm == 'w3' else (7, k.vSQ)
        rot = o.get('rot', 0) and n >= 4
        if rot:
            I(f's_and_b32 s{sD}, s{sG}, 3'); I(f's_mul_i32 s{sD}, s{sD}, {n}'); I(f's_lshr_b32 s{sD}, s{sD}, 2'); I(f's_lshl_b32 s{sD}, s{sD}, 12')
            I(f's_add_u32 s{t2}, s{sM}, {dest}')
        for i in range(n):
            if rot:
                I(f's_add_u32 m0, s{t2}, s{sD}'); I(f's_mul_i32 s{t1}, s{sD}, {mul}'); I(f's_add_u32 s{t1}, s{t1}, {m0*mul*4096 + half*256}')
            else:
                I(f's_add_u32 m0, s{sM}, {dest + i*4096}'); I(f's_mov_b32 s{t1}, {(m0+i)*mul*4096 + half*256}')
            if o.get('nost') == 2:
                I(f's_mov_b32 s{t1}, {(i % 14)*7*4096}')
                I(f'buffer_load_dwordx4 v{k.vSQ}, {srd("wo" if half else "w1")}, s{t1} offen lds', tag=tag)
            elif o.get('nost') != 1: I(f'buffer_load_dwordx4 v{V}, {srd(nm)}, s{t1} offen lds', tag=tag)
            if rot and i < n - 1:
                I(f's_add_u32 s{sD}, s{sD}, 4096'); I(f's_cmp_eq_u32 s{sD}, {n*4096}'); I(f's_cselect_b32 s{sD}, 0, s{sD}')
            if i in hk: hk[i]()
    xpa = o.get('xpa', 3)
    I(f's_mul_i32 s{t0}, s{sA}, {TILE}'); I(f's_add_u32 s{t0}, s{t0}, s{sGB}')
    I(f's_lshl_b32 s{t1}, s{sJ}, 11'); I(f's_add_u32 s{t0}, s{t0}, s{t1}')
    I(f'v_add_u32 v230, s{t0}, v4')
    for i in range(4): I(f'v_mov_b32 v{aPD+i}, -1')
    I(f's_mov_b32 s{sT[8]}, {L.T0}'); I(f's_mov_b32 s{sT[9]}, {L.X1}')
    xpf = lambda: k.stores([f'buffer_store_dwordx4 {vr(aPD,4)}, v230, {WS}, s{sT[8 + (c == "x")]} offen offset:{h*1024}' for c in 'tx' if c not in o.get('kpf', 'htx') for h in range(2)], tag='pre')
    Q = {'2': [('w2', m, RA + m*4096, 0) for m in range(14)],
         'f': [('w3', n0 + nH + i, RC + (3+i)*4096, 0) for i in range(nT)] + [('w3', i, RC + i*4096, 1) for i in range(3)],
         'b': [('w3', 3 + i, RB + i*4096, 1) for i in range(14)],
         'c': [('w3', 17 + i, (RA if i < 10 else RC) + i*4096, 1) for i in range(11)]}
    def run(spec, lim):
        for it in spec.split(','):
            if not it: continue
            c, n = it[0], int(it[1:])
            for _ in range(n):
                assert len(Q[c]) > lim.get(c, 0), (c, spec)
                nm, m, dest, hf = Q[c].pop(0)
                stream(nm, m, 1, dest, dict(b='wb').get(c, 'w3') if c != '2' else 'w2', hf)
    g_wait(k, 2, 1, 'sh')
    stream('w3', n0, 11, RC, 'w3'); stream('w3', n0 + 11, 1, RA + 9*4096, 'w3')
    run(o.get('sH', '25'), {'2': 5, 'f': 99, 'b': 99})
    if o.get('kpf', 'htx') != 'htx': xpf()
    e.wait_tag('w3'); k.stamp('a6'); g_wr(k, 2, True)
    g_wait(k, 0, 2, 'b2')
    if k.stop == 'h': return
    rd(n0, 11)
    I(f'v_subrev_u32 v15, {RC - RA}, v8'); tr2(k, A0 + 4*(n0 + 11), 15, 9*4096, 512)
    cs(n0, nH)
    e.wait_tag('pre'); g_wr(k, 3, True)
    if o.get('sh2'):
        g_wait(k, 3, 3, 'h2')
        run(o['sh2'], {'b': 4})
    g_wait(k, 4, 3, 'st')
    run('2%d' % len(Q['2']), {})
    sp = o.get('sT', 'b3,b7').split(',')
    run(sp[0], {'b': 4})
    e.wait_tag('w2'); k.stamp('a7'); g_wr(k, 4, True)
    run(','.join(sp[1:]), {'b': 4})
    if o.get('st2'):
        g_wait(k, 5, 0, 't2')
        run(o['st2'], {})
    if k.stop == 't': return
    pend = [lambda: g_wait(k, 6, 0, 'sx'), lambda: run('f%d,c11,b%d' % (len(Q['f']), len(Q['b'])), {})]
    vX, vS, vWR, vW4, vUA, vPL, vFL, vDP = 24, 25, 5, 7, 9, 10, 11, 252
    I(f'v_mov_b32 v{AXT+2}, 0'); I(f'v_mov_b32 v{AXT+3}, 0')
    I(f'v_mov_b32 v{aPD}, v8')
    sM2, sS = sT[8], sT[9]
    I(f's_lshl_b32 s{sM2}, s{sA}, 11')
    w4_src(k, vW4)
    w4_rd_base(k, vWR, sM2, RB)
    u_addrs(k, 0, vUA, vPL, vFL)
    dump_addr(k, vDP, RB)
    I(f'v_mov_b32 v13, s{sTAG}')
    I(f's_lshl_b32 s{t0}, s{sA}, 3'); I('v_lshrrev_b32 v15, 3, v1'); I(f'v_add_u32 v15, s{t0}, v15')
    I('v_and_b32 v16, 7, v15'); I('v_and_b32 v17, 7, v1'); I('v_xor_b32 v16, v16, v17'); I('v_lshlrev_b32 v16, 4, v16'); I('v_lshl_add_u32 v14, v15, 7, v16')
    I(f's_lshl_b32 s{t0}, s{sG}, 6'); I(f'v_add_u32 v15, s{t0}, v15'); I('v_mul_u32_u24 v15, 896, v15'); I('v_lshl_add_u32 v12, v17, 3, v15')
    I(f's_lshl_b32 s{sT[10]}, s{sJ}, 7'); I(f's_add_u32 s{sT[11]}, s{sT[10]}, {32*896}')
    up_addrs(k, vX, vS)
    for f in pend: f()
    assert nT <= 7
    e.wait_tag('w3'); k.stamp('a8'); k.bar('ex')
    for i in range(nT): tr2(k, A0 + 4*(n0+nH+i), aPD, (3+i)*4096, 512)
    if k.stop == 'x1': return
    rot_regs(k)
    e.wait_all(); k.bar('xj')
    cs(n0 + nH, nT)
    k.split_a(C, AXT, C+1)
    def adma(s, tag): return w4_dma(k, vW4, s, 0, sM2, RB + (s % 7)*8192, sS, tag)
    nA = o.get('nA', 4)
    assert nA >= 4 and nA % 2 == 0
    g_wait(k, 7, 0, 'g7')
    for s in range(nA//2):
        for f in adma(s, 'a0' if s < 2 else 'a1'): f()
    I('s_setprio 2')
    I('v_or_b32 v15, 3, v13')
    k.bar('b8')
    W = lambda s: (16, 244)[s] if s < 2 else A0 + 8*s
    def ard(s): return w4_rd(k, vWR, W(s), (s % 7)*8192, f'r{s}')
    r = Mlp(k, 'd', 0, AC=AC, BB=BB, GT=GT, GC=GC, PK=[200, 176], vX=vX, vS=vS, vUA=vUA, vPL=vPL, vFL=vFL, vTG=13, vD=15, W=W,
            Q=[144, 228, 160, 192], AX=228, vDP=vDP, DO=[0, 16384]*2, pr='222222')
    op, at, seq = r.op, r.at, r.seq
    r.pre()
    at(op('xf', 0), lambda: k.stores([f'buffer_store_dword v15, v{vFL}, {WS}, 0 offen']))
    seq(op('e0', 60), 2, [lambda: e.wait_tag('a0')] + ard(0) + ard(1))
    at(88, g_rd(True)); at(96, lambda: g_chk(k, 8, 0, True, 'f3'))
    at(100, f'ds_read_b128 {vr(GC,4)}, v{vS} offset:16', f'ds_read_b128 {vr(GC+4,4)}, v{vS} offset:1040')
    at(PH - 1, lambda: g_wr(k, 5, True))
    e1, ed = PH + op('e1', 30), op('ed', 20)
    seq(e1, ed, adma(7, 'w7') + adma(8, 'w8'))
    at(2*PH + op('f0', 32), lambda: r.flag(0))
    r1, rs, rd, dd = 2*PH + op('r1', 24), op('rs', 12), 2*PH + op('rd', 40), op('dd', 20)
    assert rd > e1 + 3*ed and rd >= r1 + 8 and dd >= rs
    at(r1 - 8, g_rd(True)); at(r1, lambda: g_chk(k, 9, 0, True, 'm2'), lambda: e.wait_tag('a1'))
    for s in range(2, 9):
        t = r1 + (s - 2)*rs
        assert t >= 2*PH + 4*(2*s + 1)
        seq(t, 2, [lambda s=s: e.wait_tag(f'w{s}')] + ard(s))
        if s < 7:
            d = adma(s + 7, f'w{s+7}')
            at(rd + (s-2)*dd, lambda s=s: e.wait_tag(f'r{s}'), d[0]); at(rd + (s-2)*dd + dd//2, d[1])
    at(2*PH + 16, lambda: r.give(32, 36, 40, 44))
    at(3*PH - 1, lambda: g_wr(k, 6, True), lambda: r.lend(*range(128, 144, 4)), lambda: r.give(24, 28, 184, 188, 216))
    q0, c0 = 2*PH + op('q0', 100), 3*PH + op('c0', 20)
    at(q0, r.pl(0)); at(c0, lambda: r.chk(0)); seq(c0, op('l0', 10), [r.loads]*12)
    at(4*PH - 1, lambda: r.give(208, 212))
    at(4*PH + op('f1', 12), lambda: r.flag(1, not o.get('uq')))
    r2 = 4*PH + op('r2', 16)
    seq(r2, 1, [f for s in range(9, 12) for f in [lambda s=s: e.wait_tag(f'w{s}')] + ard(s)])
    seq(4*PH + 4*23, 0, [f for s in (12, 13) for f in [lambda s=s: e.wait_tag(f'w{s}')] + ard(s)] + [lambda: g_wr(k, 7, True)])
    assert r2 < 4*PH + 4*16
    q1 = 4*PH + op('q1', 60)
    at(q1, r.pl(1)); at(q1 + op('w1', 40), lambda: r.chk(1), lambda: r.loads(op('n1', 4)))
    FS, TP = 144, 228
    def add(q, T):
        for h in range(2):
            for i in range(4): I(f'v_add_f32 v{T+8*h+i}, v{T+8*h+i}, v{T+8*h+4+i}')
        for i in range(4): I(f'v_add_f32 v{FS+4*q+i}, v{FS+4*q+i}, v{T+i}')
        for i in range(4): I(f'v_add_f32 v{FS+4*q+i}, v{FS+4*q+i}, v{T+8+i}')
    def rd4(T, v, off):
        for p in range(4): I(f'ds_read_b128 {vr(T+4*p,4)}, v{v} offset:{off + p*4096}')
    def half0():
        g_chk(k, 0, 7, True); r.dump(0); r.dump(1); g_wr(k, 8, True)
        for g in range(4): I(f'v_subrev_u32 v{vDP+g}, {RB}, v{vDP+g}')
        I(f'v_add_u32 v5, {D_A[0]}, v14'); I(f'v_add_u32 v6, {D_M}, v14')
    def sum0():
        g_chk(k, 11, 8, True, 'p0')
        for q in range(4): I(f'ds_read_b128 {vr(FS+4*q,4)}, v14 offset:{D_R + (q>>1)*4096 + (q&1)*8192}')
        rd4(TP, 5, 0)
    at(4*PH + 116, g_rd(True)); at(5*PH - 1, half0)
    s0 = 5*PH + op('s0', 24)
    at(s0 - 8, g_rd(True)); at(s0, sum0); at(s0 + 12, lambda: add(0, TP), lambda: rd4(TP, 5, 16384)); at(s0 + 24, lambda: add(1, TP))
    at(5*PH + 80, g_rd(True)); at(5*PH + 4*23, lambda: g_chk(k, 12, 0, True), lambda: r.dump(2))
    assert s0 + 24 < 5*PH + 80
    at(6*PH, lambda: r.dump(3))
    r.run(lambda m: A0 + 4*m if m < 28 else AXT, 2)
    g_wr(k, 9, True)
    of = o.get('outf', '')
    def fin(qs):
        k.bar(f'q{qs[0]}')
        for q in qs: rd4(32 + 16*q, 6, q*16384)
        for q in qs:
            add(q, 32 + 16*q)
            k.cvt(FS + 4*q, FS + 4*q, 4)
            I(f'buffer_store_dwordx2 {vr(FS+4*q,2)}, v12, {srd("out")}, s{sT[10 + (q>>1)]} offen offset:{(q&1)*64} {of}')
    I(f's_setprio {o.get("pf2", 2)}')
    if o.get('fo', 1): fin([0, 1])
    g_wait(k, 0, 9, 'ps')
    for q in (2, 3): rd4(64 + 16*q, 14, D_A[q])
    for q in (2, 3): add(q, 64 + 16*q)
    if not o.get('fo', 1): fin([0, 1])
    fin([2]); fin([3])
    k.stamp('end')

def j7_jobs(k):
    e, I, L = k.e, k.I, k.L
    t0, t1 = sT[0], sT[1]
    I(f's_and_b32 s{t0}, s{sG}, 3'); I(f's_lshl_b32 s{t0}, s{t0}, 3'); I(f's_add_u32 s{t0}, s{t0}, s{sW}')
    I(f's_mul_i32 s{t0}, s{t0}, 49'); I(f'v_add_u32 v15, s{t0}, v1')
    I('v_lshrrev_b32 v16, 1, v15'); I('v_lshlrev_b32 v16, 9, v16'); I('v_and_b32 v17, 1, v15'); I('v_lshl_add_u32 v16, v17, 7, v16')
    I('v_lshrrev_b32 v17, 5, v15'); I('v_mul_u32_u24 v17, 9363, v17'); I('v_lshrrev_b32 v17, 16, v17')
    I(f'v_mul_u32_u24 v17, {229376 - 224*128}, v17'); I('v_lshl_add_u32 v17, v15, 7, v17')
    I('v_cmp_gt_u32 vcc, 49, v1'); I(f'v_cndmask_b32 v16, v{vBIG}, v16, vcc'); I(f'v_cndmask_b32 v17, v{vBIG}, v17, vcc')
    I(f's_mul_i32 s{t0}, s{sW}, 56'); I(f'v_add_u32 v15, s{t0}, v1'); I('v_lshlrev_b32 v15, 7, v15')
    I('v_cmp_gt_u32 vcc, 56, v1'); I(f'v_cndmask_b32 v15, v{vBIG}, v15, vcc')
    k.jn = 0
    for ch in k.o.get('j7', 'b4p'):
        if ch in 'ab':
            for i in range(4):
                I(f's_mov_b32 s{t1}, {i*784*512 + (256 if ch == "b" else 0)}')
                I(f'buffer_load_dword v{32+i}, v16, {srd("w3")}, s{t1} offen'); e.barrier()
        if ch in '456':
            for b in dict(zip('456', (range(8), range(4), range(4, 8))))[ch]:
                I(f's_mov_b32 s{t1}, {b*28672}')
                I(f'buffer_load_dword v{36+b}, v17, {srd("w4")}, s{t1} offen'); e.barrier()
        if ch == '2':
            I(f's_and_b32 s{t0}, s{sG}, 3'); I(f's_lshl_b32 s{t0}, s{t0}, 3'); I(f's_add_u32 s{t0}, s{t0}, s{sW}'); I(f's_mul_i32 s{t0}, s{t0}, {49*128}')
            I('v_min_u32 v18, 48, v1'); I('v_lshlrev_b32 v18, 7, v18')
            I(f'buffer_load_dword v58, v18, {srd("w2")}, s{t0} offen'); e.barrier()
            I(f's_add_u32 s{t0}, s{t0}, {1568*128}')
            I(f'buffer_load_dword v59, v18, {srd("w2")}, s{t0} offen'); e.barrier()
        if ch in 'mn':
            I(f's_lshl_b32 s{t0}, s{sG}, 3'); I(f's_add_u32 s{t0}, s{t0}, s{sW}')
            I(f's_mul_i32 s{t1}, s{t0}, {49*128}'); I(f's_mul_i32 s{t0}, s{t0}, {13*128}')
            I('v_min_u32 v18, 48, v1'); I('v_lshlrev_b32 v18, 7, v18'); I('v_min_u32 v19, 12, v1'); I('v_lshlrev_b32 v19, 7, v19')
            if ch == 'm':
                I(f'buffer_load_dword v60, v18, {srd("w3")}, s{t1} offen'); e.barrier()
                I(f'buffer_load_dword v61, v19, {srd("w2")}, s{t0} offen'); e.barrier()
            I(f'buffer_load_dword v62, v18, {srd("w4")}, s{t1} offen'); e.barrier()
        if ch in 'HTqX':
            I(f's_add_u32 s{t1}, s{sGB}, {dict(H=L.H, T=L.T0, X=L.X1, q=PB[3] + 3*TILE)[ch]}')
            I(f'buffer_load_dword v{70+"HTqX".index(ch)}, v15, {WS}, s{t1} offen sc1'); e.barrier()
        if ch in 'UV':
            n = 'UV'.index(ch)
            for i, off in enumerate([UR + (8 - 8*n)*TILE, UR + (12 - 8*n)*TILE]):
                I(f's_add_u32 s{t1}, s{sGB}, {off}')
                I(f'buffer_load_dword v{80+2*n+i}, v15, {WS}, s{t1} offen sc1'); e.barrier()
        if ch == 'w': e.wait_vm0(); k.stamp(f'j{k.jn}'); k.jn += 1
        if ch == 'p':
            nt = 7*(4 - k.o.get('pn', 2))
            for i, off in enumerate([PB[3] + min(4*c, nt - 4)*TILE for c in reversed(range((nt + 3)//4))]):
                I(f's_add_u32 s{t1}, s{sGB}, {off}')
                I(f'buffer_load_dword v{44+i}, v15, {WS}, s{t1} offen sc1'); e.barrier()
        if ch == 'f':
            for i in range(4): I(f'v_mov_b32 v{64+i}, -1')
            I(f's_lshl_b32 s{t0}, s{sW}, 10'); I(f'v_add_u32 v18, s{t0}, v4'); I(f'v_add_u32 v18, s{sGB}, v18')
            I(f's_and_b32 s{t0}, s{sW}, 1'); I(f's_lshl_b32 s{t0}, s{t0}, 10'); I(f'v_add_u32 v19, s{t0}, v4'); I(f'v_add_u32 v19, s{sGB}, v19')
            for n in range(4):
                for i in range(13):
                    I(f's_mov_b32 s{t1}, {PB[n] + i*8192}')
                    st = f'buffer_store_dwordx4 v[64:67], v{18 if i < 12 else 19}, {WS}, s{t1} offen'
                    if n < k.o.get('pn', 2): I(st + ' sc1')
                    else: k.stores([st])
                    if k.o.get('fb', 1): e.barrier()
                e.wait_vm0()
            e.barrier()
            I(f's_add_u32 s{t1}, s{sGB}, {L.F_P}')
            k.stores([f'buffer_store_dword v{vTAG}, v{vL0}, {WS}, s{t1} offen'])
            k.stamp('jf')
    e.wait_vm0()
```

```python
import sys
from emit import Emit, parse
import g3
from g3 import (KN, MF16, MF32, WS_HELLO, WS_KVP, WS_G, TILE, AS, WS_STAMP, BIG, Lay, SRD, PTR, SIZE, srd, WS, vr,
                sL, sRB, sH, sG, sJ, sW, sTAG, sMODE, sSPIN, sGB, sODD, sC448, sL2E, sA, sN, sX0, sX1, sM0, sM1, sT)

RA, RB, RC = 0, 57344, 114688
RXA, MISC = 114688, 147456
L_PHI = 161792
L_CS = RXA + 7168
L_CSQ = 162816
L_KVR = 158720
L_CS1 = 163328
L_STAT = 160256
LDS_BYTES = 163840
NONSTR = 0xD5AB

class K(g3.K):
    v4 = False
    def __init__(self, stop=None, force_slow=False, opts=None):
        self.e = Emit(); self.stop = stop; self.force_slow = force_slow
        self.o = dict(pf='o123g', n1=14, w2a=6); self.o.update(opts or {})
        self.L = Lay(self.o.get('dbg'), self.o.get('mlp', 7) >= 9)
        if 'h' in self.o.get('sn', '') and not self.o.get('dbg'): self.L.H = 15*TILE
        if self.o.get('mlp', 0) >= 11:
            self.o.setdefault('gtr', 'O')
            if not self.o.get('dbg'): self.L.O = 19*TILE
        self.nbar = 0

    def dump_stamps(self):
        if not self.o.get('dst'): return g3.K.dump_stamps(self)
        I = self.I
        self.e.wait_all()
        I('v_mov_b32 v15, 0')
        I('s_not_b32 s101, s100')
        I('v_writelane_b32 v15, s101, 11')
        for k in range(11):
            r = 100 if k == 0 else 14 + 2*k
            I(f'v_writelane_b32 v15, s{r}, {k}')
        I('v_mbcnt_lo_u32_b32 v16, -1, 0'); I('v_mbcnt_hi_u32_b32 v16, -1, v16')
        I('v_min_u32 v16, 15, v16')
        I('v_lshlrev_b32 v16, 2, v16')
        I('v_subrev_u32 v17, s100, v15'); I('v_cmp_gt_u32 vcc, 100000, v17')
        I('s_or_b32 vcc_lo, vcc_lo, 0x800')
        I('s_nop 4')
        I('v_cndmask_b32 v15, 0, v15, vcc')
        self.e.raw('  global_atomic_umax v16, v15, s[36:37] sc1')

    def stamp(self, name):
        g3.K.stamp(self, name)
        st = self.o.get('stamps')
        if st and 'T' + str(name) in st.split('+'):
            r = 14 + 2*(1 + st.split('+').index('T' + str(name)))
            self.I(f's_memtime s[{r}:{r+1}]')

    def sreg(self, name):
        st = self.o.get('stamps')
        if not st or name not in st.split('+'): return None
        return 14 + 2*(1 + st.split('+').index(name))

    def bar(self, name=None):
        if name: self.stamp(f'x{name}')
        self.e.barrier(); self.nbar += 1
        if name: self.stamp(name)

    def softmax2(self, P, OUT, T, vM, C):
        I = self.I
        X, Y, Z = T, T+2, T+1
        E = T+4
        I(f'v_max3_f32 v{X}, v{P}, v{P+1}, v{P+2}')
        I(f'v_max3_f32 v{Y}, -v{P}, -v{P+1}, -v{P+2}')
        I(f'v_max3_f32 v{X}, v{X}, v{P+3}, v{P+4}')
        I(f'v_max3_f32 v{Y}, v{Y}, -v{P+3}, -v{P+4}')
        I(f'v_max3_f32 v{X}, v{X}, v{P+5}, v{P+6}')
        I(f'v_max3_f32 v{Y}, v{Y}, -v{P+5}, -v{P+6}')
        I(f'v_max_f32 v{X}, v{X}, v{P+7}')
        I(f'v_max_f32_e64 v{Y}, v{Y}, -v{P+7}')
        self.allred2(X, Y, Z, 'v_max_f32')
        I(f'v_mul_f32_e64 v{X}, -v{X}, v{C}'); I(f'v_mul_f32_e64 v{Y}, -v{Y}, v{C}')
        for i in range(0, 8, 2):
            I(f'v_pk_fma_f32 {vr(E+i,2)}, {vr(P+i,2)}, {vr(C,2)}, {vr(X,2)} op_sel_hi:[1,0,0]')
            I(f'v_pk_fma_f32 {vr(E+8+i,2)}, {vr(P+i,2)}, {vr(C,2)}, {vr(Y,2)} op_sel_hi:[1,0,0] neg_lo:[1,0,0] neg_hi:[1,0,0]')
        for i in range(16):
            I(f'v_exp_f32 v{E+i}, v{E+i}')
        A, B = T+20, T+22
        for (S, b) in ((X, E), (Y, E+8)):
            I(f'v_pk_add_f32 {vr(A,2)}, {vr(b,2)}, {vr(b+2,2)}')
            I(f'v_pk_add_f32 {vr(B,2)}, {vr(b+4,2)}, {vr(b+6,2)}')
            I(f'v_pk_fma_f32 {vr(A,2)}, {vr(B,2)}, {vr(vM,2)}, {vr(A,2)} op_sel_hi:[1,0,1]')
            I(f'v_add_f32 v{S}, v{A}, v{A+1}')
        self.allred2(X, Y, Z, 'v_add_f32')
        I(f'v_rcp_f32 v{X}, v{X}')
        I(f'v_rcp_f32 v{Y}, v{Y}')
        I(f'v_mul_f32 v{A}, v{X}, v{vM}'); I(f'v_mul_f32 v{B}, v{Y}, v{vM}')
        for i in range(0, 8, 2):
            I(f'v_pk_mul_f32 {vr(E+i,2)}, {vr(E+i,2)}, {vr(X if i < 4 else A,2)} op_sel_hi:[1,0]')
            I(f'v_pk_mul_f32 {vr(E+8+i,2)}, {vr(E+8+i,2)}, {vr(Y if i < 4 else B,2)} op_sel_hi:[1,0]')
        self.cvt(OUT, E, 16)

    def softmax2s(self, P, OUT, T, vM, C):
        I = self.I
        X, Y, Z = T, T+1, T+2
        E = T+4
        I(f'v_max3_f32 v{X}, v{P}, v{P+1}, v{P+2}')
        I(f'v_max3_f32 v{Y}, -v{P}, -v{P+1}, -v{P+2}')
        I(f'v_max3_f32 v{X}, v{X}, v{P+3}, v{P+4}')
        I(f'v_max3_f32 v{Y}, v{Y}, -v{P+3}, -v{P+4}')
        I(f'v_max3_f32 v{X}, v{X}, v{P+5}, v{P+6}')
        I(f'v_max3_f32 v{Y}, v{Y}, -v{P+5}, -v{P+6}')
        I(f'v_max_f32 v{X}, v{X}, v{P+7}')
        I(f'v_max_f32_e64 v{Y}, v{Y}, -v{P+7}')
        self.allred2(X, Y, Z, 'v_max_f32')
        I(f'v_mul_f32_e64 v{X}, -v{X}, v{C}'); I(f'v_mul_f32_e64 v{Y}, -v{Y}, v{C}')
        for i in range(8):
            I(f'v_fma_f32 v{E+i}, v{P+i}, v{C}, v{X}')
            I(f'v_fma_f32 v{E+8+i}, -v{P+i}, v{C}, v{Y}')
        for i in range(16):
            I(f'v_exp_f32 v{E+i}, v{E+i}')
        A, B = T+20, T+22
        for n, (S, b) in enumerate(((X, E), (Y, E+8))):
            I(f'v_add_f32 v{A+n}, v{b}, v{b+1}'); I(f'v_add_f32 v{B+n}, v{b+4}, v{b+5}')
        for n, (S, b) in enumerate(((X, E), (Y, E+8))):
            I(f'v_add_f32 v{A+n}, v{A+n}, v{b+2}'); I(f'v_add_f32 v{B+n}, v{B+n}, v{b+6}')
        for n, (S, b) in enumerate(((X, E), (Y, E+8))):
            I(f'v_add_f32 v{A+n}, v{A+n}, v{b+3}'); I(f'v_add_f32 v{B+n}, v{B+n}, v{b+7}')
        for n, (S, b) in enumerate(((X, E), (Y, E+8))):
            I(f'v_fma_f32 v{S}, v{B+n}, v{vM}, v{A+n}')
        self.allred2(X, Y, Z, 'v_add_f32')
        I(f'v_rcp_f32 v{X}, v{X}')
        I(f'v_rcp_f32 v{Y}, v{Y}')
        I(f'v_mul_f32 v{A}, v{X}, v{vM}'); I(f'v_mul_f32 v{A+1}, v{Y}, v{vM}')
        for i in range(8):
            I(f'v_mul_f32 v{E+i}, v{E+i}, v{X if i < 4 else A}')
            I(f'v_mul_f32 v{E+8+i}, v{E+8+i}, v{Y if i < 4 else A+1}')
        self.cvt(OUT, E, 16)

    def prologue(self):
        e, I, L = self.e, self.I, self.L
        t0, t1, t2, t3 = sT[0:4]
        I('s_load_dwordx4 s[16:19], s[0:1], 0')
        I('s_cmp_ge_u32 s2, 256')
        I('s_cbranch_scc1 Lend')
        self.stamp(0)
        I('s_load_dwordx4 s[36:39], s[0:1], 80')
        I('s_load_dwordx8 s[20:27], s[0:1], 16')
        I('s_load_dwordx8 s[28:35], s[0:1], 48')
        I('v_lshrrev_b32 v5, 6, v0')
        I('v_and_b32 v1, 63, v0')
        I(f's_and_b32 s{t0}, s2, 7')
        I(f's_lshr_b32 s{t1}, s2, 3')
        I(f'v_readfirstlane_b32 s{sW}, v5')
        I(f's_lshl_b32 s{sL}, s{t0}, 5')
        I(f's_or_b32 s{sL}, s{sL}, s{t1}')
        I(f's_cmp_lg_u32 s{sW}, 7')
        I('s_cbranch_scc1 Lnopf')
        I(f's_getpc_b64 s[{sM1}:{sM1+1}]')
        e.label('Lpc')
        I(f's_add_u32 s{sM1}, s{sM1}, {KN}-Lpc')
        I(f's_addc_u32 s{sM1+1}, s{sM1+1}, -1')
        I(f's_lshl_b32 s{t0}, s{t1}, 11')
        I('v_and_b32 v15, 15, v1'); I('v_lshlrev_b32 v15, 7, v15'); I(f'v_add_u32 v15, s{t0}, v15')
        I(f'v_min_u32 v15, Lcodeend-{KN}, v15')
        I(f'global_load_dword v251, v15, s[{sM1}:{sM1+1}]', maybe=True)
        e.label('Lnopf')
        I(f's_and_b32 s{sA}, s{sW}, 3')
        I(f's_lshr_b32 s{sRB}, s{sL}, 4')
        I(f's_and_b32 s{sH}, s{sL}, 15')
        I('v_and_b32 v2, 15, v1')
        I('v_lshrrev_b32 v3, 4, v1')
        sCx, sCw, sMX, sMW = self.sCx, self.sCw, self.sMX, self.sMW
        I(f's_and_b32 s{t0}, s{sRB}, 1'); I(f's_mul_i32 s{t0}, s{t0}, 3'); I(f's_add_u32 s{t0}, s{t0}, s{sH}')
        if self.o.get('rx'):
            I(f's_lshr_b32 s{t1}, s{sL}, 5'); I(f's_add_u32 s{t0}, s{t0}, s{t1}')
        I(f's_mul_i32 s{t1}, s{t0}, 37'); I(f's_lshr_b32 s{t1}, s{t1}, 8'); I(f's_mul_i32 s{t1}, s{t1}, 7')
        I(f's_sub_u32 s{t0}, s{t0}, s{t1}')
        if self.o.get('norot'): I(f's_mov_b32 s{t0}, 0')
        if self.o.get('ncls') == 2:
            I(f's_add_u32 s{t0}, s{sRB}, s{sH}'); I(f's_and_b32 s{t0}, s{t0}, 1'); I(f's_mul_i32 s{t0}, s{t0}, {self.o.get("cst", 3)}')
        if self.o.get('ncls') == 4:
            I(f's_add_u32 s{t0}, s{sRB}, s{sH}'); I(f's_and_b32 s{t0}, s{t0}, 3'); I(f's_mul_i32 s{t0}, s{t0}, {self.o.get("cst", 2)}')
        I(f's_lshl_b32 s{sCx}, s{t0}, 7')
        I(f's_mov_b32 s{self.sCb}, s{sCx}')
        I('v_lshrrev_b32 v9, 2, v1')
        I('v_mul_u32_u24 v9, 2688, v9')
        I('v_lshrrev_b32 v10, 5, v1')
        I('v_lshlrev_b32 v10, 1, v10')
        I('v_and_b32 v11, 3, v1')
        I('v_xor_b32 v10, v10, v11')
        I('v_lshl_add_u32 v9, v10, 4, v9')
        I(f's_mul_i32 s{t0}, s{sH}, 56'); I(f's_andn2_b32 s{t0}, s{t0}, 15')
        I(f's_mul_i32 s{t1}, s{sA}, 43008'); I(f's_add_u32 s{t0}, s{t0}, s{t1}')
        I(f'v_add_u32 v9, s{t0}, v9')
        I(f's_lshl_b32 s{t0}, s{sRB}, 7'); I(f's_lshl_b32 s{t1}, s{sW}, 4'); I(f's_add_u32 s{t0}, s{t0}, s{t1}')
        if self.o.get('mlp') == 10:
            I(f's_and_b32 s{t1}, s{sL}, 8'); I(f's_lshl_b32 s{t1}, s{t1}, 3'); I(f's_xor_b32 s{t0}, s{t0}, s{t1}')
        I('v_lshrrev_b32 v10, 3, v1'); I(f'v_add_u32 v10, s{t0}, v10'); I('v_mul_u32_u24 v10, 896, v10')
        I('v_and_b32 v11, 7, v1'); I('v_xor_b32 v11, v11, v3')
        I('v_lshl_add_u32 v10, v11, 4, v10')
        I('v_xor_b32 v11, 64, v10'); I(f'v_add_u32 v11, {8*896-1024}, v11')
        I(f's_lshl_b32 s{sMW}, s{sA}, 10')
        sRA, sRBB = sT[9], sT[10]
        I(f's_lshl_b32 s{sRA}, s{sA}, 13'); I(f's_add_u32 s{sRA}, s{sRA}, {RXA}')
        I(f's_mul_i32 s{sRBB}, s{sA}, 14336'); I(f's_add_u32 s{sRBB}, s{sRBB}, {RB}')
        I(f's_cmp_ge_u32 s{sW}, 4')
        I(f's_cselect_b32 s{sMX}, s{sRBB}, s{sRA}')
        I('v_lshlrev_b32 v4, 4, v1')
        I('v_mov_b32 v13, 0')
        I(f's_lshr_b32 s{sG}, s{sL}, 3')
        I(f's_and_b32 s{sJ}, s{sL}, 7')
        if self.v4: self.pre_srd()
        e.wait_lg0()
        if self.v4: I(f's_load_dword s{sTAG}, s[38:39], 0')
        self.build_srd('x'); self.build_srd('wqkv')
        self.stamp('pr')
        wf = self.o.get('wf', 0)
        if not wf:
            self.xdma(0, 0, 'c0')
            self.build_srd('ws')
        I(f's_cmp_ge_u32 s{sW}, 4')
        I('s_cbranch_scc1 LB0')
        sn = e.snap()
        if wf:
            self.xdma(0, 0, 'c0')
            self.build_srd('ws')
        NR = 180 if self.o.get('nl') else 24
        for i in range(4): I(f'v_mov_b32 v{NR+i}, -1')
        if not self.o.get('nl'):
            I(f's_lshl_b32 s{t0}, s{sH}, 4'); I(f's_or_b32 s{t0}, s{t0}, s{sRB}'); I(f's_lshl_b32 s{t0}, s{t0}, 12')
            I(f's_add_u32 s{t0}, s{t0}, s{self.sMW}'); I(f's_add_u32 s{t0}, s{t0}, {WS_KVP}')
            I(f'buffer_store_dwordx4 v[24:27], v4, {WS}, s{t0} offen sc1')
        if self.o.get('x0', 2) == 2: self.xdma(1, 1, 'c1')
        if self.o.get('stlb'):
            I(f's_mul_i32 s{sGB}, s{sG}, {L.GS}'); I(f's_add_u32 s{sGB}, s{sGB}, {WS_G}')
            for n in ('wo', 'w1', 'w3', 'w2', 'w4', 'out'): e.raw(f'  s_load_dword s2, s[{PTR[n]}:{PTR[n]+1}], 0')
            e.raw(f'  s_load_dword s2, s[38:39], s{sGB}')
            I(f's_add_u32 s{sGB}, s{sGB}, {L.GS - 64}')
            e.raw(f'  s_load_dword s2, s[38:39], s{sGB}')
        I(f's_cmp_lt_u32 s{sW}, 2'); I('s_cbranch_scc1 Lrphi')
        I(f's_cmp_eq_u32 s{sW}, 2'); I('s_cbranch_scc1 Lrnon')
        sr = e.snap()
        self.halo_addr(44, 45, 46)
        I('s_nop 1')
        for i in range(4): I(f'v_cndmask_b32 v{48+i}, -1, v13, vcc')
        I(f'buffer_store_dwordx4 v[48:51], v44, {WS}, 0 offen sc1')
        I('s_branch Lcom')
        e.restore(sr); e.label('Lrphi')
        self.build_srd('phi')
        I(f's_mul_i32 s{t2}, s{sH}, 1568'); I(f's_add_u32 s{t2}, s{t2}, s{self.sMW}')
        I(f's_add_u32 m0, s{self.sMW}, {L_PHI}')
        I(f'buffer_load_dwordx4 v4, {srd("phi")}, s{t2} offen lds')
        I('s_branch Lcom')
        e.restore(sr); e.label('Lrnon')
        if self.v4:
            I(f's_lshl_b32 s{t0}, s{sH}, 12'); I(f's_lshl_b32 s{t1}, s{sRB}, 8'); I(f's_add_u32 s{t0}, s{t0}, s{t1}'); I(f's_add_u32 s{t0}, s{t0}, {0x1F0000}')
            I('v_lshlrev_b32 v15, 4, v2')
            I(f'buffer_store_dwordx4 {vr(NR,4)}, v15, {WS}, s{t0} offen sc1', tag='role')
        else: I(f'buffer_load_dword v14, v13, {WS}, 0 offen sc1', tag='role')
        self.vmA = e.vm
        I('s_branch Lcom')
        e.restore(sn)
        e.label('LB0')
        I('v_add_u32 v9, 896, v9')
        rpp = self.o.get('rpp', 1) if self.v4 else -1
        if rpp == 0: self.rp_loads()
        self.wdma(0, 0, 'c0')
        if wf:
            self.xdma(0, 0, 'c0')
            self.build_srd('ws')
        if rpp == 1: self.rp_loads()
        self.wdma(1, 0, 'c1')
        if rpp == 2: self.rp_loads()
        if self.o.get('xb0', 1) == 2: self.xdma(1, 1, 'c1')
        self.vmB = e.vm
        e.vm = []; e.hist = []
        e.label('Lcom')
        self.stamp('is')
        self.init_jobs()
        assert not e.vm
        if self.o.get('s0'):
            I(f's_and_b32 s{t0}, s{sL}, 31'); I(f's_lshl_b32 s{t0}, s{t0}, 3'); I(f's_add_u32 s{t0}, s{t0}, s{sW}')
            I(f's_mul_i32 s{t0}, s{t0}, {25*64}')
            I(f's_lshl_b32 s{t1}, s{sL}, 3'); I(f's_add_u32 s{t1}, s{t1}, s{sW}'); I(f's_lshl_b32 s{t2}, s{t1}, 8'); I(f's_mul_i32 s{t1}, s{t1}, {7*128}')
            for ch in self.o['s0']:
                if ch in 'OI':
                    for i in range(25): e.raw(f'  s_buffer_load_dword s2, {srd("wo" if ch == "O" else "w1")}, s{t0} offset:{i*64}')
                if ch in 'o12':
                    for i in range(2): e.raw(f'  s_buffer_load_dword s2, {srd("wo" if ch == "o" else "w" + ch)}, s{t2} offset:{i*128}')
                if ch in '34':
                    for i in range(7): e.raw(f'  s_buffer_load_dword s2, {srd("w" + ch)}, s{t1} offset:{i*128}')
            e.lg.append(dict(dst=set(), tag=None, smem=True))
        I(f's_cmp_ge_u32 s{sW}, 4')
        I('s_cbranch_scc1 LB')

    sCx, sCw, sMX, sMW = sT[4], sT[5], sT[6], sT[7]

    sCb = sT[8]
    def adv(self, sc=None):
        I = self.I
        sc = sc or self.sCx
        I(f's_add_u32 s{sc}, s{sc}, 128'); I(f's_cmp_eq_u32 s{sc}, 896'); I(f's_cselect_b32 s{sc}, 0, s{sc}')
    def xdma(self, i, slot, tag):
        I = self.I
        sc = self.sCb
        I(f's_add_u32 m0, s{self.sMX}, {slot*2048}')
        I(f'buffer_load_dwordx4 v10, {srd("x")}, s{sc} offen lds', tag=tag)
        I(f'buffer_load_dwordx4 v11, {srd("x")}, s{sc} offen offset:1024 lds', tag=tag)
        self.adv(sc)
    def wdma(self, i, mat, tag):
        I = self.I
        I(f's_add_u32 m0, s{self.sMW}, {i*4096 + mat*(28672-896)}')
        I(f's_mul_i32 s{self.sCw}, s{self.sCx}, 1344')
        I(f'buffer_load_dwordx4 v9, {srd("wqkv")}, s{self.sCw} offen offset:{mat*896} lds', tag=tag)
        self.adv()

    def halo_addr(self, *a):
        txt = self.capture(lambda: g3.K.halo_addr(self, *a))
        if self.o.get('hc'):
            V, T1 = a[0], a[1]
            rep = {f'v_lshl_add_u32 v{V}, v{T1}, 8, v{V}': f'v_lshl_add_u32 v{V}, v{T1}, 4, v{V}',
                   f'v_lshl_add_u32 v{V}, v{T1}, 4, v{V}': f'v_lshl_add_u32 v{V}, v{T1}, 10, v{V}',
                   f's_lshl_b32 s{sT[2]}, s{sJ}, 3': f's_lshl_b32 s{sT[2]}, s{sJ}, 7',
                   f's_add_u32 s{sT[0]}, s{sT[0]}, {WS_G+self.L.T0-TILE+14*16}': f's_add_u32 s{sT[0]}, s{sT[0]}, {WS_G+self.L.T0-TILE}'}
            assert all(r in txt for r in rep)
            txt = [rep.get(t, t) for t in txt]
        for t in txt: self.I(t.replace(f's_cmp_eq_u32 s{sW}, 7', f's_cmp_eq_u32 s{sW}, 3'))

    def init_jobs(self):
        e, I, L = self.e, self.I, self.L
        t0, t1, t2, t3 = sT[0:4]
        I(f's_and_b32 s{sODD}, s{sL}, 1')
        for i in range(4): I(f'v_mov_b32 v{32+i}, 0x3f803f80')
        I('v_bfe_u32 v28, v1, 2, 2')
        I('v_and_b32 v29, 3, v1')
        I('v_lshl_add_u32 v15, v3, 3, v28')
        I('v_lshlrev_b32 v15, 6, v15')
        I('v_lshl_add_u32 v15, v29, 3, v15')
        I('v_and_b32 v16, 1, v3')
        I('v_lshl_add_u32 v5, v16, 5, v15')
        I('v_xor_b32 v6, 32, v5')
        I('v_lshrrev_b32 v15, 1, v2'); I('v_xor_b32 v15, v15, v3'); I('v_lshlrev_b32 v15, 4, v15')
        I('v_lshl_add_u32 v15, v2, 7, v15')
        I(f'v_add_u32 v12, s{sT[9]}, v15'); I('v_xor_b32 v21, 64, v12')
        I(f'v_add_u32 v44, s{sT[10]}, v15'); I('v_xor_b32 v45, 64, v44')
        self.init2()

    def init_B(self):
        I = self.I
        t0 = sT[0]
        I('ds_write_b64 v28, v[210:211]'); I('ds_write_b64 v28, v[210:211] offset:8')
        I(f's_and_b32 s{t0}, s{sA}, 1'); I(f's_lshl_b32 s{t0}, s{t0}, 5')
        I(f'v_xor_b32 v7, s{t0}, v5')
        I(f's_lshr_b32 s{t0}, s{sA}, 1'); I(f's_lshl_b32 s{t0}, s{t0}, 11'); I(f's_add_u32 s{t0}, s{t0}, 28672')
        I(f'v_add_u32 v7, s{t0}, v7')
        I('v_and_b32 v15, 1, v3'); I('v_mul_u32_u24 v15, 7168, v15'); I('v_mul_u32_u24 v8, 224, v2')
        I(f'v_add_u32 v15, {MISC+208}, v15'); I('v_add_u32 v8, v8, v15')
        I('v_and_b32 v47, 3, v1'); I('v_mul_u32_u24 v47, 3584, v47'); I(f'v_add_u32 v47, {MISC+192}, v47')
        if self.o.get('vq'):
            I('v_and_b32 v15, 4, v1'); I('v_add_u32 v47, v47, v15')
        tv = self.o.get('tv', 1)
        if tv:
            t1 = sT[1]
            I('v_mul_u32_u24 v15, 37, v1'); I('v_lshrrev_b32 v15, 8, v15')
            I(f'v_mul_u32_u24 v15, {2688-896}, v15'); I('v_lshl_add_u32 v50, v1, 7, v15')
            I(f's_and_b32 s{t0}, s{sL}, 31'); I(f's_lshl_b32 s{t0}, s{t0}, 1'); I(f's_and_b32 s{t1}, s{sA}, 1'); I(f's_add_u32 s{t0}, s{t0}, s{t1}')
            I(f's_mul_i32 s{t0}, s{t0}, {7*2688}')
            I(f's_cmp_lt_u32 s{sA}, 2'); I(f's_cselect_b32 s{t1}, 0, {-1792 if tv == 2 else BIG}'); I(f's_add_u32 s{t0}, s{t0}, s{t1}'); I(f's_add_u32 s{t0}, s{t0}, 1792')
            I(f'v_add_u32 v50, s{t0}, v50'); I(f'v_mov_b32 v15, {BIG}')
            I('v_cmp_gt_u32 vcc, 49, v1'); I('v_cndmask_b32 v50, v15, v50, vcc')

    def init2(self):
        e, I, L = self.e, self.I, self.L
        t0, t1, t2, t3 = sT[0:4]
        for n in ('wo', 'w1', 'w2', 'w3', 'w4', 'out'): self.build_srd(n)
        I(f's_mul_i32 s{sGB}, s{sG}, {L.GS}')
        I(f's_add_u32 s{sGB}, s{sGB}, {WS_G}')
        I(f's_mov_b32 s{sSPIN}, 0x8000')
        I(f's_mov_b32 s{sC448}, 0x3b124925')
        I(f's_mov_b32 s{sL2E}, 0x3fb8aa3b')
        if not self.v4:
            I(f's_lshl_b32 s{t0}, s{sH}, 4'); I(f's_or_b32 s{t0}, s{t0}, s{sRB}'); I(f's_lshl_b32 s{t0}, s{t0}, 12')
            I(f's_lshl_b32 s{t1}, s{sW}, 9'); I(f's_add_u32 s{t0}, s{t0}, s{t1}'); I(f's_add_u32 s{t0}, s{t0}, {WS_KVP}')
            I('v_lshrrev_b32 v15, 1, v3'); I('v_lshlrev_b32 v15, 8, v15'); I('v_lshl_add_u32 v15, v2, 4, v15')
            I('v_and_b32 v16, 1, v3'); I('v_lshl_add_u32 v15, v16, 3, v15')
            I(f'v_add_u32 v31, s{t0}, v15')
        I('v_lshl_add_u32 v15, v3, 2, v28')
        I(f's_lshl_b32 s{t0}, s{sODD}, 2')
        I(f'v_subrev_u32 v15, s{t0}, v15')
        I('v_mul_i32_i24 v15, 56, v15')
        I(f'v_add_u32 v15, {L_PHI}, v15')
        I('v_lshl_add_u32 v17, v29, 3, v15')
        I('v_add_u32 v16, 4, v29'); I('v_min_u32 v16, 6, v16')
        I('v_lshl_add_u32 v18, v16, 3, v15')
        I('v_add_u32 v19, 896, v17'); I('v_add_u32 v20, 896, v18')
        I('v_cmp_ne_u32 vcc, 3, v3')
        I('v_cndmask_b32 v22, 0, 1.0, vcc')
        I('v_mul_u32_u24 v16, 224, v2')
        I('v_xor_b32 v15, v28, v3')
        I('v_lshl_add_u32 v15, v15, 3, v16')
        I(f's_mul_i32 s{t0}, s{sA}, 3584'); I(f's_add_u32 s{t0}, s{t0}, {MISC}')
        I(f'v_add_u32 v23, s{t0}, v15')
        I(f'v_subrev_u32 v46, {MISC-RA}, v23' if self.o.get('w1v') else f'v_add_u32 v46, s{sT[10]}, v15')
        I(f's_add_u32 s{t0}, s{t0}, 192'); I(f'v_add_u32 v28, s{t0}, v16')
        I('v_lshrrev_b32 v15, 2, v1')
        I('v_mul_u32_u24 v15, 224, v15')
        I('v_xor_b32 v16, v29, v3')
        I('v_lshl_add_u32 v15, v16, 3, v15')
        if self.v4:
            I(f's_lshr_b32 s{t0}, s{sA}, 1'); I(f's_lshl_b32 s{t0}, s{t0}, 6'); I(f's_add_u32 s{t0}, s{t0}, {MISC}')
            I(f'v_add_u32 v24, s{t0}, v15')
            I(f's_and_b32 s{t0}, s{sA}, 1'); I(f's_lshl_b32 s{t0}, s{t0}, 5'); I(f's_add_u32 s{t0}, s{t0}, {MISC+128}')
            I(f'v_add_u32 v25, s{t0}, v15')
        else:
            I(f's_lshr_b32 s{t0}, s{sW}, 1'); I(f's_lshl_b32 s{t0}, s{t0}, 5'); I(f's_add_u32 s{t0}, s{t0}, {MISC}')
            I(f'v_add_u32 v24, s{t0}, v15')
            I(f's_and_b32 s{t0}, s{sW}, 1'); I(f's_lshl_b32 s{t0}, s{t0}, 5'); I(f's_add_u32 s{t0}, s{t0}, {MISC+128}')
            I(f'v_add_u32 v25, s{t0}, v15')
        rg = RA if self.o.get('w1v') else RB
        I(f'v_subrev_u32 v26, {MISC-rg}, v24'); I(f'v_subrev_u32 v27, {MISC-rg}, v25')
        I(f's_lshr_b32 s{t0}, s{sW}, 2')
        I(f'v_cmp_ge_u32 vcc, s{t0}, v3'); I('v_mov_b32 v15, 0xbb124925')
        I('v_cndmask_b32 v29, 0, v15, vcc')
        I('v_lshlrev_b32 v15, 2, v3'); I('v_sub_u32 v15, v2, v15')
        for r in range(4):
            I(f'v_cmp_eq_u32 vcc, {r}, v15'); I(f'v_cndmask_b32 v{252+r}, 0, 1.0, vcc')
        AX, BX = 208, 224
        for t in range(4): I(f'v_mov_b32 v{AX+4*t+2}, 0'); I(f'v_mov_b32 v{AX+4*t+3}, 0')
        I(f'v_mov_b32 v{BX+2}, 0'); I(f'v_mov_b32 v{BX+3}, 0')
        I(f's_cmp_eq_u32 s{sODD}, 1')
        I(f's_cselect_b32 s{sM0}, 0xffff, 0'); I(f's_mov_b32 s{sM0+1}, 0')
        I(f's_cselect_b32 s{sM1+1}, 0, 0xffff0000'); I(f's_mov_b32 s{sM1}, 0')

    def init_A(self):
        I, L = self.I, self.L
        t0, t1, t2, t3 = sT[0:4]
        I('v_lshrrev_b32 v47, 3, v1'); I('v_mul_u32_u24 v47, 896, v47')
        I('v_bfe_u32 v15, v1, 4, 1'); I('v_lshlrev_b32 v15, 1, v15')
        I('v_and_b32 v16, 7, v1'); I('v_xor_b32 v15, v15, v16')
        I('v_lshl_add_u32 v47, v15, 4, v47')
        I(f's_lshl_b32 s{t0}, s{sJ}, 7'); I(f's_cmp_eq_u32 s{sJ}, 7'); I(f's_cselect_b32 s{t0}, {BIG}, s{t0}')
        I(f'v_add_u32 v47, s{t0}, v47')
        if True:
            I(f's_lshl_b32 s{t0}, 1, s{sH}'); I(f's_sub_u32 s{t1}, s{t0}, 1'); I(f's_and_b32 s{t1}, s{t1}, {NONSTR}')
            I(f's_bcnt1_i32_b32 s{t1}, s{t1}')
            I(f's_and_b32 s{t2}, s{sRB}, 1'); I(f's_mul_i32 s{t2}, s{t2}, 10'); I(f's_add_u32 s{t1}, s{t1}, s{t2}')
            I(f's_lshl_b32 s{t1}, s{t1}, 2'); I(f's_add_u32 s{t1}, s{t1}, s{sA}'); I(f's_mul_i32 s{t1}, s{t1}, 40')
            I(f's_and_b32 s{t0}, s{t0}, {NONSTR}')
            I(f's_cselect_b32 s{t2}, 40, 0')
            I(f'v_add_u32 v15, s{t1}, v1')
            I('v_lshlrev_b32 v50, 7, v15')
            I('v_lshlrev_b32 v51, 9, v15')
            I(f'v_mov_b32 v16, {BIG}')
            I(f'v_cmp_gt_u32 vcc, s{t2}, v1')
            I('v_cndmask_b32 v50, v16, v50, vcc'); I('v_cndmask_b32 v51, v16, v51, vcc')
            if self.o.get('mw'):
                I(f's_lshl_b32 s{t0}, s{sL}, 2'); I(f's_add_u32 s{t0}, s{t0}, s{sA}')
                I(f's_lshl_b32 s{t1}, s{t0}, 9'); I(f's_mul_i32 s{t2}, s{t0}, {13*128}')
                I('v_lshlrev_b32 v15, 7, v1'); I(f'v_add_u32 v50, s{t1}, v15'); I(f'v_add_u32 v51, s{t2}, v15')
                I('v_cmp_gt_u32 vcc, 4, v1'); I('v_cndmask_b32 v50, v16, v50, vcc')
                I('v_cmp_gt_u32 vcc, 13, v1'); I('v_cndmask_b32 v51, v16, v51, vcc')
            I(f's_lshl_b32 s{t0}, s{sJ}, 2'); I(f's_add_u32 s{t0}, s{t0}, s{sA}')
            I(f's_mul_i32 s{t1}, s{t0}, {14*128}'); I(f's_mul_i32 s{t2}, s{t0}, 384'); I(f's_min_u32 s{t2}, s{t2}, {69*128}')
            I(f's_add_u32 s{t2}, s{t2}, {L.FLG}')
            I('v_min_u32 v15, 13, v2'); I('v_lshlrev_b32 v15, 7, v15'); I(f'v_add_u32 v15, s{t1}, v15')
            I('v_and_b32 v16, 1, v3'); I(f'v_mul_u32_u24 v16, {AS}, v16'); I('v_add_u32 v15, v15, v16')
            I('v_min_u32 v16, 2, v2'); I('v_lshlrev_b32 v16, 7, v16'); I(f'v_add_u32 v16, s{t2}, v16')
            I('v_cmp_gt_u32 vcc, 32, v1'); I('v_cndmask_b32 v0, v16, v15, vcc')

    def get_tag(self):
        I = self.I
        if not self.v4: I(f'v_readfirstlane_b32 s{sTAG}, v14')
        I(f's_add_u32 s{sTAG}, s{sTAG}, 0x9E3779B9')
        I(f's_andn2_b32 s{sTAG}, s{sTAG}, 15')
        I(f's_getreg_b32 s{sMODE}, hwreg(HW_REG_XCC_ID)')
        I(f's_and_b32 s{sMODE}, s{sMODE}, 15')
        I(f's_or_b32 s{sMODE}, s{sMODE}, s{sTAG}')

    def phi_frags(self):
        I = self.I
        I('ds_read_b64_tr_b16 v[36:37], v17'); I('ds_read_b64_tr_b16 v[38:39], v19')
        I('ds_read_b64_tr_b16 v[40:41], v18'); I('ds_read_b64_tr_b16 v[42:43], v20')
    def phi_mask(self):
        I = self.I
        for r in (36, 37, 40, 41): I(f'v_cndmask_b32 v{r}, v{r}, v13, s[{sM0}:{sM0+1}]')
        for r in (38, 39, 42, 43): I(f'v_cndmask_b32 v{r}, v{r}, v13, s[{sM1}:{sM1+1}]')

    X, AR, CF, CSA, AX, BX, T = 76, 132, 196, 204, 208, 224, 228
    def xread(self, i, slot):
        for ee in range(2):
            self.I(f'ds_read_b128 {vr(self.X+4*(2*i+ee),4)}, v{(12,21)[ee]} offset:{slot*2048}', tag=f'xr{i}')
    def wread(self, m):
        for ti in range(4):
            b = self.AR + 16*(m & 3) + 4*ti
            off = (ti >> 1)*28672 + m*2048
            self.I(f'ds_read_b64_tr_b16 {vr(b,2)}, v{5+(ti&1)} offset:{off}')
            self.I(f'ds_read_b64_tr_b16 {vr(b+2,2)}, v{5+(ti&1)} offset:{off+256}')
    def kstep(self, m):
        I = self.I
        xb = vr(self.X+4*m, 4)
        z = m == 0
        I(f'{MF16} v[72:75], {xb}, {xb}, ' + ('0' if z else 'v[72:75]'))
        I(f'{MF16} v[68:71], v[32:35], {xb}, ' + ('0' if z else 'v[68:71]'))
        for ti in range(4):
            acc = vr(52 + 4*ti, 4)
            I(f'{MF16} {acc}, {vr(self.AR+16*(m&3)+4*ti,4)}, {xb}, ' + ('0' if z else acc))

    def post_kv(self, B):
        e, I = self.e, self.I
        AX, BX, T = self.AX, self.BX, self.T
        ACCK, ACCV = 52, 60
        I(f'v_mul_f32 v{T}, v68, v29')
        self.split_b(T, BX, T+1)
        for i in range(4): I(f'v_mul_f32 v{72+i}, v{72+i}, v{252+i}')
        for ti in range(4):
            acc = vr(ACCK + 4*ti, 4)
            I(f'{MF16} {acc}, {vr(AX+4*ti,4)}, {vr(BX,4)}, {acc}')
        I('v_add_f32 v72, v72, v73'); I('v_add_f32 v74, v74, v75')
        I('v_add_f32 v72, v72, v74')
        I('v_mov_b32 v73, v72')
        I('v_permlane32_swap_b32 v72, v73'); I('v_add_f32 v72, v72, v73'); I('v_mov_b32 v73, v72')
        I('v_permlane16_swap_b32 v72, v73'); I('v_add_f32 v72, v72, v73')
        self.cvt(T+4, ACCK, 8)
        I(f'{MF16} v[52:55], v[36:39], {vr(T+4,4)}, 0')
        I(f'{MF16} v[56:59], v[40:43], {vr(T+4,4)}, 0')
        I(f'v_mul_f32 v73, s{sC448}, v68')
        I('v_mul_f32 v74, v73, v73')
        I(f'v_fma_f32 v74, v72, s{sC448}, -v74')
        I('v_add_f32 v74, 0x3727c5ac, v74')
        I('v_rsq_f32 v70, v74')
        I(f'v_mul_f32 v30, s{sL2E}, v70')
        if B:
            for i in range(0, 8, 2):
                I(f'v_pk_mul_f32 {vr(ACCV+i,2)}, {vr(ACCV+i,2)}, v[70:71] op_sel_hi:[1,0]')
        else:
            for i in range(8): I(f'v_mul_f32 v{ACCV+i}, v{ACCV+i}, v70')
        I(f'v_cndmask_b32 v60, v60, 1.0, s[{sM0}:{sM0+1}]')
        I(f'v_cndmask_b32 v64, v64, 1.0, s[{sM1}:{sM1+1}]')
        self.cvt(72, ACCV, 8)
        I('ds_write_b64 v23, v[72:73] offset:128')
        I('ds_write_b64 v23, v[74:75] offset:160')
        PH = 60
        (self.softmax2 if B else self.softmax2s)(52, PH, T, 22, 30)
        for t in range(4):
            I(f'ds_write_b64 v23, {vr(PH+2*t,2)} offset:{t*32}')

    vSQ = 11
    def sq_src(self):
        I = lambda t: self.I(t.replace('v11', f'v{self.vSQ}'))
        t0 = sT[0]
        I('v_lshrrev_b32 v11, 3, v1'); I(f's_lshl_b32 s{t0}, s{sA}, 3'); I(f'v_add_u32 v11, s{t0}, v11')
        I('v_mul_u32_u24 v11, 896, v11')
        I('v_bfe_u32 v15, v1, 4, 1'); I('v_lshlrev_b32 v15, 1, v15')
        I(f's_and_b32 s{t0}, s{sA}, 1'); I(f's_lshl_b32 s{t0}, s{t0}, 2')
        I('v_and_b32 v16, 7, v1'); I('v_xor_b32 v15, v15, v16'); I(f'v_xor_b32 v15, s{t0}, v15')
        I('v_lshl_add_u32 v11, v15, 4, v11')
        I(f's_lshl_b32 s{t0}, s{sJ}, 7'); I(f's_cmp_eq_u32 s{sJ}, 7'); I(f's_cselect_b32 s{t0}, {BIG}, s{t0}')
        I(f'v_add_u32 v11, s{t0}, v11')
    def sq_dma(self, name, region, m, tag):
        I = self.I
        if name in self.o.get('skip', ''): return
        t1 = self.sCw
        I(f's_add_u32 m0, s{self.sMW}, {region + m*4096}')
        I(f's_mov_b32 s{t1}, {m*32*896}')
        I(f'buffer_load_dwordx4 v{self.vSQ}, {srd(name)}, s{t1} offen lds', tag=tag)

    def pre_b3(self, B):
        I = self.I
        t0, t1, t2 = sT[0:3]
        self.sq_src()
        I(f's_lshl_b32 s{t0}, s{sRB}, 4')
        I(f'v_add_u32 v15, s{t0}, v2')
        I('v_lshlrev_b32 v16, 4, v2'); I(f'v_add_u32 v16, s{sH}, v16')
        I('v_cmp_eq_u32 vcc, 1, v3')
        I('v_cndmask_b32 v15, v15, v16, vcc')
        I('v_and_b32 v16, 8, v2'); I('v_lshlrev_b32 v16, 1, v16')
        I('v_and_b32 v17, 7, v2'); I('v_add_u32 v16, v16, v17')
        I(f's_lshl_b32 s{t0}, s{sG}, 3'); I(f's_sub_u32 s{t0}, s{t0}, 8')
        I(f'v_add_u32 v16, s{t0}, v16'); I('v_and_b32 v16, 255, v16')
        I('v_cmp_eq_u32 vcc, 2, v3')
        I('v_cndmask_b32 v15, v15, v16, vcc')
        I('v_lshlrev_b32 v14, 6, v15'); I(f'v_add_u32 v14, {WS_HELLO}, v14')

    def kv_pub(self, B):
        e, I = self.e, self.I
        t0, t1, t2 = sT[0:3]
        KA, KB = 132, 148
        for ks in range(4):
            a, b = (24, 25) if ks < 2 else (26, 27)
            st = 3584 if ks < 2 else 14336
            for ee in range(2):
                I(f'ds_read_b64_tr_b16 {vr(KA+4*ks+2*ee,2)}, v{a} offset:{((2*ks+ee)&3)*st}')
            for ee in range(2):
                I(f'ds_read_b64_tr_b16 {vr(KB+4*ks+2*ee,2)}, v{b} offset:{((2*ks+ee)&3)*st}')
        I('v_lshrrev_b32 v15, 1, v3'); I(f'v_mul_u32_u24 v15, 7168, v15'); I(f'v_add_u32 v15, {RXA}, v15')
        I('v_add_u32 v5, v5, v15'); I('v_add_u32 v6, v6, v15')
        for ks in range(4):
            I(f'{MF16} v[52:55], {vr(KA+4*ks,4)}, {vr(KB+4*ks,4)}, ' + ('0' if ks == 0 else 'v[52:55]'))
        I(f's_and_b32 s{t0}, s{sW}, 1'); I(f's_lshl_b32 s{t1}, s{t0}, 5')
        I(f'v_xor_b32 v7, s{t1}, v5')
        I(f's_lshr_b32 s{t1}, s{sA}, 1'); I(f's_lshl_b32 s{t2}, s{t1}, 14')
        I(f'v_add_u32 v7, s{t2}, v7')
        self.cvt(56, 52, 4)
        I(f'buffer_store_dwordx2 v[56:57], v31, {WS}, 0 offen sc1')
        self.stamp(4)
        I(f's_lshl_b32 s{t0}, s{t0}, 9'); I(f's_lshr_b32 s{t1}, s{sW}, 1'); I(f's_lshl_b32 s{t1}, s{t1}, 7'); I(f's_add_u32 s{t0}, s{t0}, s{t1}')
        I(f's_add_u32 s{t0}, s{t0}, {L_CSQ}')
        I(f'v_lshlrev_b32 v8, 3, v2'); I(f'v_add_u32 v8, s{t0}, v8')

    def q_phase(self, B, fill):
        e, I = self.e, self.I
        X, CF, CSA, AX, BX, T = self.X, self.CF, self.CSA, self.AX, self.BX, self.T
        QC = 164
        ci = [4, 5, 6] if B else [0, 1, 2, 3]
        QR = [132, 140, 148, 156, 180, 188]
        def qread(m):
            for t in range(2):
                b = QR[m % 6] + 4*t
                off = (m & 1)*16384 + (m >> 1)*1024
                I(f'ds_read_b64_tr_b16 {vr(b,2)}, v{5+t} offset:{off}')
                I(f'ds_read_b64_tr_b16 {vr(b+2,2)}, v{5+t} offset:{off+256}')
        for n, i in enumerate(ci):
            I(f'ds_read_b64_tr_b16 {vr(QC+4*n,2)}, v7 offset:{i*1024}')
            I(f'ds_read_b64_tr_b16 {vr(QC+4*n+2,2)}, v7 offset:{i*1024+256}')
        qread(0); qread(1); qread(2)
        I(f'v_mul_f32 v{T}, 0xbb124925, v68')
        self.split_b(T, BX, T+1)
        I('v_lshlrev_b32 v28, 3, v1'); I(f'v_add_u32 v28, {L_CSQ}, v28')
        for n in range(len(ci)):
            I(f'{MF16} {vr(CSA,4)}, v[32:35], {vr(QC+4*n,4)}, ' + ('0' if n == 0 else vr(CSA, 4)))
        qread(3); qread(4)
        fill = list(fill)
        vf = self.capture(lambda: (self.o_addr(), self.sel_mat(self.SEL, 15)))
        per = (len(vf) + 27) // 28
        for m in range(14):
            if m + 5 < 14: qread(m + 5)
            for t in range(2):
                acc = vr(44 + 4*t, 4)
                I(f'{MF16} {acc}, {vr(QR[m%6]+4*t,4)}, {vr(X+4*m,4)}, ' + ('0' if m == 0 else acc))
                for _ in range(per):
                    if vf: I(vf.pop(0))
                while vf and ('cselect' in vf[0] or 'vcc' in vf[0].split(',')[-1]): I(vf.pop(0))
            if m == 1:
                self.split_a(CSA, CF, CF+2)
                I(f'ds_write_b64 v8, {vr(CF,2)}')
            if fill: fill.pop(0)()
        for f in fill: f()

    def hello_chk(self):
        I = self.I
        ld = f'buffer_load_dword v0, v14, {WS}, 0 offen sc1'
        def chk():
            I('v_and_b32 v17, -16, v0')
            I(f'v_cmp_ne_u32 vcc, s{sTAG}, v17')
        self.poll2([ld], chk, 'hello')
        I(f'v_cmp_ne_u32 vcc, s{sMODE}, v0')
        I(f's_and_b32 s{sMODE}, vcc_lo, 0xffff')
        if self.force_slow: I(f's_mov_b32 s{sMODE}, 1')
        self.stamp(5)

    G, SEL, GAC = 76, 252, 144
    def gather_loads(self):
        return [f'buffer_load_dwordx4 {vr(self.G+4*p,4)}, v{200 + (p & 1)}, {WS}, s{sT[8+(p>>1)]} offen sc1' for p in range(8)]

    def o_addr(self):
        I, L = self.I, self.L
        t0, t1, t2 = sT[0:3]
        I(f'v_add_u32 v23, {L_KVR}, v4')
        I(f's_cmp_eq_u32 s{sODD}, 1')
        I(f's_cselect_b32 s{t0}, 0, {1024+12*16}'); I(f's_add_u32 s{t0}, s{t0}, {L_KVR}')
        I('v_lshlrev_b32 v24, 8, v3'); I(f'v_add_u32 v24, s{t0}, v24')
        I(f's_lshr_b32 s{t0}, s{sW}, 2'); I(f's_lshl_b32 s{t0}, s{t0}, 11'); I(f's_and_b32 s{t1}, s{sW}, 1'); I(f's_lshl_b32 s{t1}, s{t1}, 10')
        I(f's_add_u32 s{t0}, s{t0}, s{t1}'); I(f's_and_b32 s{t1}, s{sW}, 2'); I(f's_lshl_b32 s{t1}, s{t1}, 2'); I(f's_add_u32 s{t0}, s{t0}, s{t1}')
        I(f'v_add_u32 v25, s{t0}, v23')
        I(f's_mul_i32 s{t0}, s{sH}, 7'); I(f's_lshr_b32 s{t0}, s{t0}, 1')
        I('v_and_b32 v18, 1, v3'); I('v_lshrrev_b32 v19, 1, v3'); I('v_lshl_add_u32 v26, v18, 1, v19')
        I(f'v_add_u32 v18, s{t0}, v26')
        I('v_lshlrev_b32 v18, 8, v18'); I('v_lshl_add_u32 v18, v2, 4, v18')
        sOG = sX0
        I(f's_lshl_b32 s{t1}, s{sRB}, 1'); I(f's_lshr_b32 s{t2}, s{sW}, 2'); I(f's_add_u32 s{t1}, s{t1}, s{t2}')
        I(f's_mul_i32 s{sOG}, s{t1}, {L.GS}'); I(f's_add_u32 s{sOG}, s{sOG}, {WS_G}')
        I(f's_mul_i32 s{t0}, s{sA}, {TILE}'); I(f's_add_u32 s{t0}, s{t0}, {L.O}')
        I(f'v_add_u32 v18, s{t0}, v18')
        I('v_add_u32 v19, 8, v18')
        I(f'v_mov_b32 v20, {BIG}')
        I(f'v_cndmask_b32 v18, v18, v20, s[{sM0}:{sM0+1}]')
        I(f'v_cndmask_b32 v19, v19, v20, s[{sM1}:{sM1+1}]')
        I('v_cmp_eq_u32 vcc, 0, v1'); I('v_cndmask_b32 v21, v20, v13, vcc')
        I(f's_lshl_b32 s{t0}, s{sA}, 6'); I(f's_lshl_b32 s{t1}, s{sH}, 2'); I(f's_add_u32 s{t0}, s{t0}, s{t1}')
        I(f's_add_u32 s{t0}, s{t0}, {L.F_O}'); I(f's_add_u32 s{sX1}, s{t0}, s{sOG}')
        I(f'v_mov_b32 v27, s{sTAG}')

    def tail_p1(self, B, burst2, shadow):
        e, I = self.e, self.I
        AX, BX, T = self.AX, self.BX, self.T
        t0, t1 = sT[0:2]
        e.wait_lg0(); self.bar(3)
        self.kv_pub(B)
        if B: self.pre_b3(B)
        I(f'buffer_load_dword v0, v14, {WS}, 0 offen sc1')
        if not B: self.touches('t3')
        fill = [(lambda m=m: self.sq_dma('wo', RA, m, 'wo')) for m in range(B, 14, 2)]
        for _ in range(self.o.get('wo0', 3)): fill.pop(0)()
        I(f's_lshl_b32 s{t0}, s{sW}, 9'); I(f's_lshl_b32 s{t1}, s{sH}, 16'); I(f's_add_u32 s{t0}, s{t0}, s{t1}')
        I(f's_add_u32 s{t0}, s{t0}, {WS_KVP}')
        I('v_and_b32 v15, 31, v1'); I('v_lshlrev_b32 v15, 4, v15'); I('v_lshrrev_b32 v16, 5, v1')
        I('v_lshl_add_u32 v15, v16, 15, v15'); I(f'v_add_u32 v200, s{t0}, v15')
        I('v_add_u32 v201, 4096, v200')
        e.wait_tag('wq')
        self.bar('3q')
        w1g = self.o.get('w1g', -1)
        w1l = [(lambda m=m: self.sq_dma('w1', RB, m, 'w1')) for m in range(B, 14, 2)] if w1g >= 0 else []
        if w1g >= 0: fill += w1l[:w1g]; w1l = w1l[w1g:]
        elif not B: fill += [(lambda i=i: self.w1p(i)) for i in list(range(4)) + list(range(self.nw1, 14))]
        if self.o.get('fsp', 1) and len(fill) <= 7: fill = [f for x in fill for f in (x, lambda: None)]
        self.q_phase(B, fill)
        I(f's_and_b32 s{t0}, s{sRB}, {self.o.get("grot", 1)}'); I(f's_lshl_b32 s{t0}, s{t0}, 14')
        for p in range(4): I(f's_xor_b32 s{sT[8+p]}, s{t0}, {p*8192}')
        self.hello_chk()
        loads = self.gather_loads()
        for t in loads: I(t)
        if not B: self.touches('t4')
        for _ in range(self.o.get('w1h', 7)):
            if w1l: w1l.pop(0)()
        e.wait_lg0(); self.bar('3b')
        for t in range(2): I(f'ds_read_b64 {vr(AX+4*t,2)}, v28 offset:{t*512}')
        burst2()
        for t in range(2):
            acc = vr(44 + 4*t, 4)
            I(f'{MF16} {acc}, {vr(AX+4*t,4)}, {vr(BX,4)}, {acc}')
        self.cvt(T+4, 44, 8)
        I(f'{MF16} v[44:47], v[36:39], {vr(T+4,4)}, 0')
        I(f'{MF16} v[48:51], v[40:43], {vr(T+4,4)}, 0')
        shadow()
        sm = self.capture(lambda: self.softmax2(44, 60, T, 22, 30))
        for n, t in enumerate(sm):
            I(t)
            if n % 8 == 7 and w1l: w1l.pop(0)()
        assert not w1l
        self.stamp(6)
        AC = self.GAC
        def chk3():
            for p in range(8):
                I(f'{MF16} {vr(AC,4)}, {vr(self.SEL,4)}, {vr(self.G+4*p,4)}, ' + ('0' if p == 0 else vr(AC, 4)))
            I(f'v_cmp_u_f32 vcc, v{AC}, v{AC}')
        self.poll2(loads, chk3, 'kvg')
        self.stamp(7)
        self.cvt(152, AC, 4)
        I('ds_write_b64 v25, v[152:153]')
        e.wait_lg0(); self.bar()
        self.o_phase()

    def capture(self, fn):
        out = []
        self.I = lambda t, **k: out.append(t)
        try: fn()
        finally: del self.I
        return out

    def poll2(self, loads, check, name):
        e = self.e
        done, retry = e.newlabel('Lpd' + name), e.newlabel('Lpr' + name)
        check()
        self.I(f's_cbranch_vccnz {retry}')
        e.label(done)
        sn = e.snap()
        save = e.out; e.out = []
        e.label(retry)
        e.wait_vm0()
        for t in loads: self.I(t)
        check()
        self.I(f's_cbranch_vccz {done}')
        self.I(f's_sub_u32 s{sSPIN}, s{sSPIN}, 1')
        self.I(f's_cbranch_scc0 {retry}')
        self.I(f's_mov_b32 s{sSPIN}, 0')
        self.I(f's_branch {done}')
        e.ool += e.out; e.out = save
        e.restore(sn)

    def poll3(self, loads, check, name):
        e = self.e
        top, done = e.newlabel('Lpoll' + name), e.newlabel('Lpd' + name)
        e.label(top)
        for t in loads: self.I(t)
        e.wait_vm0()
        check()
        self.I(f's_cbranch_vccz {done}')
        self.I(f's_sub_u32 s{sSPIN}, s{sSPIN}, 1')
        self.I(f's_cbranch_scc0 {top}')
        self.I(f's_mov_b32 s{sSPIN}, 0')
        e.label(done)

    def o_flag(self, tag=None):
        if tag: self.e.wait_tag(tag)
        else: self.e.wait_vm0()
        self.stores([f'buffer_store_dword v27, v21, {WS}, s{sX1} offen'])
        self.stamp(9)

    def mix(self, mf, other, lead=0):
        other = list(other)
        def run(x): x() if callable(x) else self.I(*x) if isinstance(x, tuple) else self.I(x)
        for _ in range(lead):
            if other: run(other.pop(0))
        n = len(other); done = 0
        for k, t in enumerate(mf):
            self.I(t)
            want = -(-n * (k + 1) // max(1, len(mf) - 1))
            while done < min(n, want): run(other[done]); done += 1
        while done < n: run(other[done]); done += 1
    def lpoll(self, reads, check, name):
        e = self.e
        done, retry = e.newlabel('Lld' + name), e.newlabel('Llr' + name)
        check()
        self.I(f's_cbranch_vccnz {retry}')
        e.label(done)
        sn = e.snap()
        save = e.out; e.out = []
        e.label(retry)
        e.wait_lg0()
        for t in reads: self.I(t)
        e.wait_lg0()
        check()
        self.I(f's_cbranch_vccz {done}')
        self.I(f's_sub_u32 s{sSPIN}, s{sSPIN}, 1')
        self.I(f's_cbranch_scc0 {retry}')
        self.I(f's_mov_b32 s{sSPIN}, 0')
        self.I(f's_branch {done}')
        e.ool += e.out; e.out = save
        e.restore(sn)
    def xrd(self, dst, m, ring, tag=None):
        va = ((12, 21), (44, 45))[ring][m & 1]
        slot = (m >> 1) if ring else (m >> 1) & 3
        return (f'ds_read_b128 {vr(dst,4)}, v{va} offset:{slot*2048}', tag)
    def wrd(self, dst, m, mat):
        return [f'ds_read_b64_tr_b16 {vr(dst+2*n,2)}, v{5+(n>>1)} offset:{mat*28672 + m*2048 + (n&1)*256}' for n in range(4)]
    def hello(self):
        I = self.I
        t0 = sT[0]
        I(f'v_mov_b32 v15, s{sMODE}')
        I(f's_lshl_b32 s{t0}, s{sL}, 6'); I(f's_add_u32 s{t0}, s{t0}, {WS_HELLO}')
        I(f's_cmp_eq_u32 s{sW}, 0'); I(f's_cselect_b32 s{t0}, s{t0}, {BIG}')
        I(f'v_mov_b32 v16, s{t0}')
        I(f'buffer_store_dword v15, v16, {WS}, 0 offen sc1')

    def p1_A(self, burst2, shadow):
        e, I = self.e, self.I
        X, AX = self.X, self.AX
        e.vm = self.vmA
        self.init_A()
        self.stamp('su')
        if self.o.get('x0', 2) < 2: self.xdma(1, 1, 'c1')
        I('s_setprio 1')
        WR, X2 = 132, 164
        def kreads(m):
            return [self.xrd(X + 4*m, m, 0, f'xr{m>>1}'), self.xrd(X2 + 4*(m % 3), m, 1)] + self.wrd(WR + 8*(m & 3), m, 0)
        def kstep(m):
            xa, xb = vr(X + 4*m, 4), vr(X2 + 4*(m % 3), 4)
            w = [vr(WR + 8*(m & 3) + 4*t, 4) for t in range(2)]
            ops = [(68, 'v[32:35]', xa), (72, 'v[32:35]', xb), (196, 'v[32:35]', w[0]), (200, 'v[32:35]', w[1]),
                   (52, w[0], xa), (60, w[0], xb), (56, w[1], xa), (64, w[1], xb)]
            return [f'{MF16} {vr(c,4)}, {p}, {q}, ' + ('0' if m == 0 else vr(c, 4)) for c, p, q in ops]
        def mwarm(p):
            if self.o.get('mw') and self.o.get('km', 99) == p:
                for ch in self.o['mw']:
                    I(f'buffer_load_dword v{7 if p < 6 else 10}, v{50 if ch in "o12" else 51}, {srd("wo" if ch == "o" else "w" + ch)}, 0 offen')
                    e.vm[-1]['dst'] = set()
        mwarm(-1)
        e.wait_tag('c0'); self.bar('c0')
        self.mix([], kreads(0))
        self.xdma(2, 2, 'c2')
        for m in range(14):
            i = m >> 1
            if m & 1 and i < 6:
                e.wait_tag(f'xr{i}'); e.wait_tag('nw'); e.wait_tag(f'c{i+1}'); self.bar(f'c{i+1}')
            self.mix(kstep(m), kreads(m + 1) if m < 13 else [], 2)
            if not m & 1 and i + 3 < 7: self.xdma(i + 3, (i + 3) & 3, f'c{i+3}')
            mwarm(m)
            if m == 5: I('ds_write_b32 v28, v14 offset:24', tag='nw')
            if m == 8: self.phi_frags(); self.tag_read()
            if m == 10: self.phi_mask(); self.get_tag()
        self.stamp(2)
        if self.o.get('vq'): I('ds_write_b32 v28, v32 offset:4')
        if not self.o.get('aprio', 1): I('s_setprio 0')
        def wq(i):
            I(f's_mul_i32 s{self.sCw}, s{self.sCx}, 1344')
            I(f's_add_u32 m0, s{self.sMX}, {i*1024}')
            I(f'buffer_load_dwordx4 v9, {srd("wqkv")}, s{self.sCw} offen lds', tag='wq')
            self.adv()
        def touch(ch):
            if ch in 'o12': I(f'buffer_load_dword v12, v218, {srd("wo" if ch == "o" else "w"+ch)}, 0 offen')
            if ch in '34bc': I(f'buffer_load_dword v12, v219, {srd("w3")}, 0 offen offset:{128*"34bc".index(ch)}')
            if ch == '5': I(f'buffer_load_dword v12, v219, {srd("w4")}, 0 offen')
            if ch == 'g': I(f'buffer_load_dword v12, v0, {WS}, s{sGB} offen sc1')
            e.vm[-1]['dst'] = set()
        def touches(key):
            for ch in self.o.get(key, '-'):
                if ch != '-': touch(ch)
        def w1p(i):
            I(f's_add_u32 m0, s{sT[10]}, {i*1024}')
            I(f's_add_u32 s{self.sCw}, s{sT[9]}, {i*7168}')
            I(f'buffer_load_dwordx4 v{216+(i&1)}, {srd("w1")}, s{self.sCw} offen lds', tag='w1')
        self.w1p = w1p
        BXS = [224, 216]
        for n in range(2):
            I(f'v_mul_f32 v{228+2*n}, v{68+4*n}, v29')
        la = [self.capture(lambda n=n: self.split_b(228+2*n, BXS[n], 229+2*n)) for n in range(2)]
        la += [self.capture(lambda n=n: self.split_a(196+4*n, AX+4*n, 197+4*n)) for n in range(2)]
        for r in zip(*la):
            for t in r: I(t)
        srd_ = 'ds_read_b64 v[48:49], v28 offset:8'
        for n in range(2):
            for t in range(2):
                acc = vr(52 + 8*n + 4*t, 4)
                I(f'{MF16} {acc}, {vr(AX+4*t,4)}, {vr(BXS[n],4)}, {acc}')
        KC = [204, 220]
        for n in range(2):
            self.cvt(KC[n], 52 + 8*n, 8)
            for t in range(2): I(f'{MF16} {vr(52+8*n+4*t,4)}, {vr(36+4*t,4)}, {vr(KC[n],4)}, 0')
        I(srd_)
        I('v_mov_b32 v216, v47'); I('v_xor_b32 v217, 64, v47'); I('v_mov_b32 v218, v50'); I('v_mov_b32 v219, v51')
        I(f's_mul_i32 s{sT[9]}, s{sA}, {14*7168}')
        pkA = self.o.get('pka', 0)
        smf = self.softmax2 if pkA else self.softmax2s
        sm = [self.capture(lambda n=n: (smf(52 + 8*n, 132 + 8*n, (228, 172)[n], 22, (48, 148 if pkA else 49)[n]),
                  [self.I(f'ds_write_b64 v{(23,46)[n]}, {vr(132+8*n+2*t,2)} offset:{t*32}') for t in range(4)])) for n in range(2)]
        pk = [t for r in zip(*sm) for t in r]
        if self.o.get('nosm'): pk = pk[:34] + pk[-8:]
        first = min(n for n, t in enumerate(pk) if t.endswith('v48') or 'v[48:49]' in t)
        qd = self.o.get('qd', 10)
        jobs = []; nq = 0; self.nw1 = 4
        for ch in self.o.get('kj', 'hgqqqqqqqwwwwwwwwww'):
            if ch == 'h': jobs.append(self.hello)
            elif ch == 'q': jobs.append(lambda i=nq: wq(i)); nq += 1
            elif ch == 'w': jobs.append(lambda i=self.nw1: w1p(i)); self.nw1 += 1
            else: jobs.append(lambda ch=ch: touch(ch))
        assert nq == (0 if self.o.get('vq') else 7) and 'h' in self.o.get('kj', 'h')
        for n, t in enumerate(pk):
            if n == first:
                self.lpoll([srd_], lambda: I('v_cmp_eq_u32 vcc, 0, v49'), 'sc')
                self.stamp('k1')
                if pkA: I('v_mov_b32 v148, v49')
            if n >= first + self.o.get('q0', 0) and (n - first) % qd == 0 and jobs: jobs.pop(0)()
            I(t)
        self.stamp('k2')
        for f in jobs: f()
        I('v_mov_b32 v30, v48')
        I('s_setprio 0')
        self.touches = touches
        self.pre_b3(False)
        self.stamp('sa')
        self.tail_p1(False, burst2, shadow)

    def tag_read(self):
        self.I(f'v_mov_b32 v14, {MISC + 2*3584 + 192 + 24}')
        self.I('ds_read_b32 v14, v14')

    def p1_B(self, burst2, shadow):
        e, I = self.e, self.I
        X, AX = self.X, self.AX
        X2, WR, CF, CSA = 132, 228, 196, 220
        e.vm = self.vmB
        self.init_B()
        self.stamp('su')
        if self.o.get('xb0', 1) < 2: self.xdma(1, 1, 'c1')
        tch = f'buffer_load_dword v51, v50, {srd("wqkv")}, 0 offen'
        tp = self.o.get('tvp', -1) if self.o.get('tv', 1) else 99
        if tp < 0: I(tch)
        e.wait_lg0()
        grp = [0, 0, 0, 1, 1, 2, 2]
        vs = [int(ch) for ch in self.o.get('vs', '5555666')]
        XT = [X2, X]; RS = [188, 68]; XX = [192, 72]
        for i in range(7):
            e.wait_tag(f'c{i}'); self.bar(f'c{i}')
            for m in (2*i, 2*i + 1):
                for n in range(2): I(*self.xrd(XT[n] + 4*m, m, n))
            dm = []
            if i + 2 < 7: dm += [lambda i=i: self.wdma(i + 2, 0, f'c{i+2}'), lambda i=i: self.xdma(i + 2, i + 2, f'c{i+2}')]
            if tp == i: dm.append(tch)
            dm += [lambda c=c: self.wdma(c, 1, f'v{grp[c]}') for c in range(7) if vs[c] == i]
            mf = []
            for m in (2*i, 2*i + 1):
                for n in range(2):
                    x = vr(XT[n] + 4*m, 4)
                    mf.append(f'{MF16} {vr(XX[n],4)}, {x}, {x}, ' + ('0' if m == 0 else vr(XX[n], 4)))
                    mf.append(f'{MF16} {vr(RS[n],4)}, v[32:35], {x}, ' + ('0' if m == 0 else vr(RS[n], 4)))
            self.mix(mf, dm, self.o.get('dlead', 2))
            if i == 4: self.phi_frags(); self.tag_read()
            if i == 5: self.phi_mask(); self.get_tag()
        self.stamp(2)
        BXS = [216, 224]
        def stats():
            I = self.I
            for n in range(2):
                for r in range(4): I(f'v_mul_f32 v{XX[n]+r}, v{XX[n]+r}, v{252+r}')
            for n in range(2):
                x = XX[n]
                I(f'v_add_f32 v{x}, v{x}, v{x+1}'); I(f'v_add_f32 v{x+2}, v{x+2}, v{x+3}')
                I(f'v_mul_f32 v{x+1}, s{sC448}, v{RS[n]}')
            for n in range(2): I(f'v_add_f32 v{XX[n]}, v{XX[n]}, v{XX[n]+2}')
            for n in range(2): I(f'v_mul_f32 v{XX[n]+1}, v{XX[n]+1}, v{XX[n]+1}')
            self.allred2(XX[0], XX[1], XX[0]+2, 'v_add_f32')
            for n in range(2): I(f'v_fma_f32 v{XX[n]}, v{XX[n]}, s{sC448}, -v{XX[n]+1}')
            for n in range(2): I(f'v_add_f32 v{XX[n]}, 0x3727c5ac, v{XX[n]}')
            for n in range(2): I(f'v_rsq_f32 v{RS[n]+2}, v{XX[n]}')
            for n in range(2): I(f'v_mul_f32 v{204+n}, s{sL2E}, v{RS[n]+2}')
            I('ds_write_b64 v28, v[204:205] offset:8')
            I('v_mov_b32 v30, v205')
            for n in range(2):
                I(f'v_mul_f32 v{XX[n]}, v{RS[n]}, v29')
                self.split_b(XX[n], BXS[n], XX[n]+1)
        frd = 'ds_read_b32 v15, v47'
        def fwr(n, tag=None):
            if tag: e.wait_tag(tag)
            I(f'v_mov_b32 v16, {n}'); I('ds_write_b32 v28, v16')
        def fchk(n, extra=()):
            self.lpoll([frd] + list(extra), lambda: I(f'v_cmp_gt_u32 vcc, {n}, v15'), f'vf{n}')
        csr = lambda c: [f'ds_read_b64_tr_b16 {vr(CF+4*(c&1)+2*n,2)}, v7 offset:{c*4096+n*256}' for n in range(2)]
        csm = lambda c: f'{MF16} {vr(CSA,4)}, v[32:35], {vr(CF+4*(c&1),4)}, ' + ('0' if c == 0 else vr(CSA, 4))
        axr = [f'ds_read_b64 {vr(AX+4*t,2)}, v8 offset:{t*3584}' for t in range(2)]
        st = self.capture(stats)
        n0 = self.o.get('st00', 34)
        if self.o.get('sprio', 1): I('s_setprio 2')
        for t in st[:n0]: I(t)
        if self.o.get('sprio', 1): I('s_setprio 0')
        st = st[n0:]
        n0 = self.o.get('st0', 18)
        fwr(1, 'v0'); I(frd)
        for t in st[:n0]: I(t)
        st = st[n0:]
        fchk(1)
        self.stamp('v1')
        vq = self.o.get('vq', '')
        def wq(i):
            if i == 0: I('v_subrev_u32 v9, 896, v9')
            I(f's_mul_i32 s{self.sCw}, s{self.sCx}, 1344')
            I(f's_add_u32 m0, s{sT[9]}, {i*1024}')
            I(f'buffer_load_dwordx4 v9, {srd("wqkv")}, s{self.sCw} offen lds', tag='wq')
            self.adv()
        for i, ch in enumerate(vq):
            if ch == '_': wq(i)
        if self.o.get('bprio', 0): I('s_setprio 2')
        wr = lambda m: self.wrd(WR + 8*(m % 3), m, 1)
        for t in wr(0) + wr(1) + csr(0): I(t)
        n1 = self.o.get('st1', 12)
        for t in st[:n1]: I(t)
        st = st[n1:]
        extra = {m: [] for m in range(14)}; xm = {m: [] for m in range(14)}
        extra[0] = csr(1); xm[1] = [csm(0)]; extra[2] = csr(2); xm[2] = [csm(1)]; xm[3] = [csm(2)]
        extra[1].append(lambda: fwr(2, 'v1')); extra[2].append(frd); extra[3].append(lambda: fchk(2))
        extra[4] = csr(3) + csr(4); xm[6] = [csm(3)]; xm[7] = [csm(4)]
        extra[5].append(lambda: fwr(3, 'v2')); extra[6].append(frd); extra[7].append(lambda: fchk(3))
        extra[8] = csr(5) + csr(6); xm[9] = [csm(5), csm(6)]
        extra[10] = self.capture(lambda: self.split_a(CSA, 206, CF)) + ['ds_write_b64 v28, v[206:207] offset:16', lambda: fwr(4)]
        extra[12] = [frd] + axr
        for i, ch in enumerate(vq):
            if ch not in '_z': extra[int(ch, 16)].append(lambda i=i: wq(i))
        for m in range(14):
            mf = []
            for t in range(2):
                for n in range(2):
                    c = vr(52 + 8*n + 4*t, 4)
                    mf.append(f'{MF16} {c}, {vr(WR+8*(m%3)+4*t,4)}, {vr(XT[n]+4*m,4)}, ' + ('0' if m == 0 else c))
            ot = (wr(m + 2) if m + 2 < 14 else []) + extra[m]
            ot += st[:6]; st = st[6:]
            if m in (8,): ot = extra[m] + wr(m + 2)
            self.mix(mf + xm[m], ot)
            self.stamp(f'w{m}')
        assert not st
        fchk(4, axr)
        self.stamp('sb')
        for i, ch in enumerate(vq):
            if ch == 'z': wq(i)
        for n in range(2):
            for t in range(2):
                acc = vr(52 + 8*n + 4*t, 4)
                I(f'{MF16} {acc}, {vr(AX+4*t,4)}, {vr(BXS[n],4)}, {acc}')
        for n in range(2):
            c = 52 + 8*n
            for i in range(0, 8, 2):
                I(f'v_pk_mul_f32 {vr(c+i,2)}, {vr(c+i,2)}, {vr(RS[n]+2,2)} op_sel_hi:[1,0]')
            I(f'v_cndmask_b32 v{c}, v{c}, 1.0, s[{sM0}:{sM0+1}]')
            I(f'v_cndmask_b32 v{c+4}, v{c+4}, 1.0, s[{sM1}:{sM1+1}]')
            self.cvt(c, c, 8)
            I(f'ds_write_b64 v{(23,46)[n]}, {vr(c,2)} offset:128')
            I(f'ds_write_b64 v{(23,46)[n]}, {vr(c+2,2)} offset:160')
        I('s_setprio 0')
        self.tail_p1(True, burst2, shadow)

    def build(self):
        e, I = self.e, self.I
        if self.o.get('mlp', 7) == 7:
            import g7 as g6
            if self.o['w2a'] < 9: self.o['w2a'] = 9
        elif self.o['mlp'] == 9:
            import g9 as g6
            self.o['w2a'] = 9
        elif self.o['mlp'] == 10:
            import g10 as g6
            self.o['w2a'] = 9
        elif self.o['mlp'] == 11:
            import g11 as g6
            self.o['w2a'] = 9
        elif self.o['mlp'] == 12:
            import g12 as g6
            self.o['w2a'] = 9
        elif self.o['mlp'] == 15:
            import g15 as g6
            self.o['w2a'] = 9
        elif self.o['mlp'] == 14:
            import g14 as g6
            self.o['w2a'] = 9
        elif self.o['mlp'] == 13:
            import g13 as g6
            self.o['w2a'] = 9
        else: import g6
        self.prologue()
        sn = e.snap()
        self.nbar = 0
        if self.v4: self.p1_A(g6)
        else: self.p1_A(lambda: None, lambda: g6.main_pre(self))
        I(f's_cmp_eq_u32 s{sJ}, 7')
        I('s_cbranch_scc1 ' + ('Lj7b' if self.v4 else 'Lj7'))
        if self.stop != 'o': g6.main_rest(self)
        elif not self.v4: self.o_flag()
        self.finish()
        na = self.nbar
        e.restore(sn)
        e.label('LB')
        self.nbar = 0
        if self.v4: self.p1_B(g6)
        else: self.p1_B(lambda: g6.aux_burst2(self), lambda: g6.aux_pre(self))
        I(f's_cmp_eq_u32 s{sJ}, 7')
        I('s_cbranch_scc1 Lj7')
        if self.stop != 'o': g6.aux_rest(self)
        else: self.o_flag()
        self.dump_stamps()
        I('s_branch Lend')
        assert na == self.nbar, (na, self.nbar)
        e.label('Lj7')
        e.hist = []; e.nop(4)
        self.o_flag()
        e.label('Lj7b')
        e.hist = []; e.nop(4); e.wait_all()
        e.barrier()
        g6.j7_jobs(self)
        self.dump_stamps()
        e.label('Lend')
        e.raw('  s_endpgm')
        head = f"""; fused persistent kernel (generated) {'stamps=' + self.o['stamps'] if self.o.get('stamps') else ''}
; @launch grid=(256,1,1) block=(512,1,1) lds={LDS_BYTES}
.amdgcn_target "amdgcn-amd-amdhsa--gfx950"
.text
.globl {KN}
.p2align 8
.type {KN},@function
{KN}:
"""
        tail = f"""
  s_endpgm
Lcodeend:
.fill {self.o.get('pad', 64)}, 4, 0xbf800000
.section .rodata,"a"
.p2align 6
.amdhsa_kernel {KN}
  .amdhsa_next_free_vgpr 256
  .amdhsa_next_free_sgpr 102
  .amdhsa_accum_offset 256
  .amdhsa_group_segment_fixed_size 0
  .amdhsa_kernarg_size 96
  .amdhsa_user_sgpr_count 2
  .amdhsa_user_sgpr_kernarg_segment_ptr 1
  .amdhsa_system_sgpr_workgroup_id_x 1
.end_amdhsa_kernel
"""
        return head + e.text() + tail

def main(K):
    import argparse
    ap = argparse.ArgumentParser()
    ap.add_argument('-o', default='k.s'); ap.add_argument('--stop'); ap.add_argument('--slow', action='store_true')
    ap.add_argument('--opt', action='append', default=[])
    a = ap.parse_args()
    opts = {}
    for kv in a.opt:
        k, v = kv.split('='); opts[k] = int(v) if v.lstrip('-').isdigit() and k not in ('stamps', 'pf', 'j7', 'xs', 'vs', 'kj', 't3', 't4', 'vq', 'tO', 'tH', 'tT', 'tX', 'mw', 'kw', 'k2', 'k5', 'k6', 'k7', 's0', 'qn', 'kt', 'bs', 'sn', 'sw', 'sk', 'k4', 'k9', 'ka', 'kb', 'kc', 'kd', 'bt', 'il', 'j7e', 'jb', 'sg', 'kpf', 'ix', 'sH', 'sT', 'sX', 'sh2', 'st2', 'bf', 'npr', 'dpr') else v
    k = K(stop=a.stop, force_slow=a.slow, opts=opts)
    s = k.build()
    open(a.o, 'w').write(s)
    print('instrs', k.e.nins, 'nops', k.e.nnop, 'bytes(src)', len(s))

if __name__ == '__main__':
    main(K)
```

```python
import sys
import g5
from g5 import *
WS_PK = 0x110000
MATS = 16*448*64
L_MODE = L_PHI + 1024
L_PART = L_PHI
WS_KVR = WS_PK + 2*MATS
L_KV4 = 155648
L_FL = MISC + 2*3584 + 192
W1SAFE = [1, 2, 5, 6, 8, 9, 12, 13]
W1REST = [0, 3, 4, 7, 10, 11]

class K(g5.K):
    v4 = True
    @property
    def fa(self): return self.o.get('mlp') == 10
    def pre_srd(self):
        I = self.I
        t0, t1, t2 = sT[0:3]
        I(f's_and_b32 s{t0}, s{sA}, 1'); I(f's_lshl_b32 s{t0}, s{t0}, 3')
        I('v_lshrrev_b32 v15, 3, v1'); I(f'v_add_u32 v15, s{t0}, v15')
        I('v_mul_u32_u24 v48, 56, v15'); I('v_and_b32 v48, -16, v48')
        I('v_bfe_u32 v16, v1, 2, 1'); I('v_mul_u32_u24 v16, 2688, v16'); I('v_add_u32 v48, v48, v16')
        I('v_and_b32 v16, 3, v1'); I('v_lshl_add_u32 v48, v16, 4, v48')
        I(f's_mul_i32 s{t0}, s{sL}, 5376'); I(f's_add_u32 s{t1}, s{t0}, 1792')
        I(f's_cmp_lt_u32 s{sA}, 2'); I(f's_cselect_b32 s{t0}, s{t1}, s{t0}')
        I(f's_cselect_b32 s{t1}, 0, {MATS}')
        I(f's_lshl_b32 s{t2}, s{sL}, 7'); I(f's_add_u32 s{t1}, s{t1}, s{t2}'); I(f's_add_u32 s{t1}, s{t1}, {WS_PK}')
        I(f's_cmp_lt_u32 s{sL}, 224'); I(f's_cselect_b32 s{t1}, s{t1}, {BIG}')
        I(f'v_add_u32 v48, s{t0}, v48')
        I(f'v_mul_u32_u24 v49, {448*64}, v15'); I('v_and_b32 v16, 7, v1'); I('v_lshl_add_u32 v49, v16, 4, v49')
        I(f'v_add_u32 v49, s{t1}, v49')
    def rp_loads(self):
        I = self.I
        I(f'buffer_load_dwordx4 v[52:55], v48, {srd("wqkv")}, 0 offen', tag='rp')

    def kv_addrs(self):
        pass

    def init_B(self):
        I = self.I
        t0, t1, t2 = sT[0:3]
        I('ds_write_b64 v28, v[210:211]'); I('ds_write_b64 v28, v[210:211] offset:8'); I('ds_write_b64 v28, v[210:211] offset:16')
        I(f's_and_b32 s{t0}, s{sA}, 1'); I(f's_lshl_b32 s{t0}, s{t0}, 5')
        I(f'v_xor_b32 v7, s{t0}, v5')
        I(f's_lshr_b32 s{t0}, s{sA}, 1'); I(f's_lshl_b32 s{t0}, s{t0}, 11'); I(f's_add_u32 s{t0}, s{t0}, 28672')
        I(f'v_add_u32 v7, s{t0}, v7')
        I('v_and_b32 v15, 1, v3'); I('v_lshlrev_b32 v15, 8, v15'); I('v_lshl_add_u32 v8, v2, 3, v15')
        I(f'v_add_u32 v8, {L_PART}, v8')
        self.fl_addr()
    def fl_addr(self):
        I = self.I
        I('v_and_b32 v47, 3, v1'); I('v_mul_u32_u24 v47, 224, v47'); I(f'v_add_u32 v47, {L_FL}, v47')
        I('v_and_b32 v15, 4, v1'); I('v_add_u32 v47, v47, v15')
        I('s_mov_b32 s0, 0xf0f0f0f0'); I('s_mov_b32 s1, 0xf0f0f0f0')
    def own_fl(self):
        t0 = sT[0]
        self.I(f's_mul_i32 s{t0}, s{sA}, 224'); self.I(f's_add_u32 s{t0}, s{t0}, {L_FL}'); self.I(f'v_mov_b32 v17, s{t0}')
    frd = 'ds_read_b32 v15, v47'
    def fwr(self, n):
        self.I(f'v_mov_b32 v16, {n}'); self.I(f'ds_write_b32 v17, v16 offset:{4 if n >= 16 else 0}')
    def fchk(self, nv, nk=0, extra=()):
        I = self.I
        if nk: I(f'v_cndmask_b32 v16, {nv}, {nk}, s[0:1]')
        self.lpoll([self.frd] + list(extra), lambda: I(f'v_cmp_gt_u32 vcc, {"v16" if nk else nv}, v15'), f'f{nv}')
    def repack(self):
        I = self.I
        t0, t1 = sT[0:2]
        self.get_tag()
        I(f's_and_b32 s{sN}, s{sTAG}, 0xbfffbfff'); I(f'v_mov_b32 v15, s{sN}')
        I(f's_mov_b32 s{t0}, 0x00880088'); I(f's_mov_b32 s{t1}, 0x00880088')
        I(f'v_cndmask_b32 v55, v55, v15, s[{t0}:{t1}]')
        I(f's_mov_b32 s{t0}, 0x11001100'); I(f's_mov_b32 s{t1}, 0x11001100')
        I(f'v_cndmask_b32 v52, v52, v15, s[{t0}:{t1}]')
        I(f'buffer_store_dwordx4 v[52:55], v49, {WS}, 0 offen sc1')
    def v_addr1(self):
        I = self.I
        t0, t1, t2 = sT[0:3]
        I('v_lshrrev_b32 v15, 5, v1'); I('v_lshlrev_b32 v15, 5, v15'); I('v_xor_b32 v48, v15, v4')
        I(f's_mul_i32 s{t0}, s{sH}, {448*64}'); I(f's_add_u32 s{t0}, s{t0}, s{self.sMW}'); I(f's_add_u32 s{t0}, s{t0}, {WS_PK}')
        I(f'v_add_u32 v48, s{t0}, v48')
        I(f's_cmp_eq_u32 s{sODD}, 1'); I(f's_cselect_b32 s{t0}, 0, 60')
        I('v_and_b32 v15, 8, v1'); I('v_lshlrev_b32 v15, 2, v15'); I(f'v_xor_b32 v15, s{t0}, v15')
        I('v_lshl_add_u32 v15, v2, 6, v15')
        I(f's_add_u32 s{t0}, s{self.sMW}, 28672')
        I('v_lshl_add_u32 v49, v3, 12, v15'); I(f'v_add_u32 v49, s{t0}, v49')
        I('v_lshl_add_u32 v50, v3, 10, v15'); I(f'v_add_u32 v50, s{sT[9]}, v50')
        if self.o.get('mw', '-') != '-': self.warm_addr(51, 0)
    def warm_addr(self, A, B):
        I = self.I
        t0, t1, t2 = sT[0:3]
        I(f's_lshl_b32 s{t0}, s{sL}, 2'); I(f's_add_u32 s{t0}, s{t0}, s{sA}')
        I(f's_lshl_b32 s{t1}, s{t0}, 9'); I(f's_mul_i32 s{t2}, s{t0}, {13*128}')
        I('v_lshlrev_b32 v15, 7, v1'); I(f'v_add_u32 v{A}, s{t1}, v15'); I(f'v_add_u32 v{B}, s{t2}, v15')
        I(f'v_mov_b32 v16, {BIG}')
        I('v_cmp_gt_u32 vcc, 4, v1'); I(f'v_cndmask_b32 v{A}, v16, v{A}, vcc')
        I('v_cmp_gt_u32 vcc, 13, v1'); I(f'v_cndmask_b32 v{B}, v16, v{B}, vcc')
    def warm(self, ch, A, B, D):
        self.I(f'buffer_load_dword v{D}, v{A if ch in "o12" else B}, {srd("wo" if ch == "o" else "w" + ch)}, 0 offen')
        self.e.vm[-1]['dst'] = set()
    def swarm(self, key):
        e, I = self.e, self.I
        sp = self.o.get(key, '')
        if not sp: return
        t0, t1, t2 = sT[0:3]
        st = self.o.get('sst', 128)
        I(f's_lshl_b32 s{t1}, s{sL}, 2'); I(f's_add_u32 s{t1}, s{t1}, s{sA}'); I(f's_lshl_b32 s{t2}, s{t1}, 9'); I(f's_mul_i32 s{t1}, s{t1}, {13*128}')
        for ch in sp:
            n, r = (4, t2) if ch in 'o12' else (13, t1)
            for i in range(n*128//st): e._emit(f's_buffer_load_dword s2, {srd("wo" if ch == "o" else "w" + ch)}, s{r} offset:{i*st}')
        e.lg.append(dict(dst=set(), tag=None, smem=True))
    def common_addr(self):
        I = self.I
        I('v_and_b32 v15, 1, v3'); I('v_lshrrev_b32 v16, 1, v3'); I('v_lshl_add_u32 v26, v15, 1, v16')
        I(f'v_mov_b32 v20, {BIG}')
        I('v_cmp_eq_u32 vcc, 0, v1'); I('v_cndmask_b32 v21, v20, v13, vcc')
        I(f'v_mov_b32 v27, s{sTAG}')
    def v_addr2(self):
        I, L = self.I, self.L
        t0, t1, t2 = sT[0:3]
        I('v_lshrrev_b32 v15, 1, v3'); I('v_mul_u32_u24 v15, 7168, v15'); I(f'v_add_u32 v15, {RXA}, v15')
        I('v_add_u32 v10, v5, v15'); I('v_add_u32 v11, v6, v15')
        I(f's_and_b32 s{t0}, s{sA}, 1'); I(f's_lshl_b32 s{t1}, s{t0}, 5')
        I(f'v_xor_b32 v31, s{t1}, v10')
        I(f's_lshr_b32 s{t1}, s{sA}, 1'); I(f's_lshl_b32 s{t2}, s{t1}, 14')
        I(f'v_add_u32 v31, s{t2}, v31')
        I(f'v_add_u32 v24, {L_KV4}, v4')
        I(f's_cmp_eq_u32 s{sODD}, 1')
        I(f's_cselect_b32 s{t0}, 0, {1024+12*16}'); I(f's_add_u32 s{t0}, s{t0}, {L_KV4}')
        I('v_lshlrev_b32 v25, 8, v3'); I(f'v_add_u32 v25, s{t0}, v25')
        I(f's_mul_i32 s{t0}, s{sH}, 7'); I(f's_lshr_b32 s{t0}, s{t0}, 1')
        I('v_and_b32 v18, 1, v3'); I('v_lshrrev_b32 v19, 1, v3'); I('v_lshl_add_u32 v26, v18, 1, v19')
        I(f'v_add_u32 v18, s{t0}, v26')
        I('v_lshlrev_b32 v18, 8, v18'); I('v_lshl_add_u32 v18, v2, 4, v18')
        I(f's_mul_i32 s{sX0}, s{sRB}, {2*L.GS}'); I(f's_add_u32 s{sX0}, s{sX0}, {WS_G}'); I(f's_add_u32 s{sX1}, s{sX0}, {L.GS}')
        I(f's_mul_i32 s{t0}, s{sA}, {TILE}'); I(f's_add_u32 s{t0}, s{t0}, {L.O}')
        I(f'v_add_u32 v18, s{t0}, v18')
        I('v_add_u32 v19, 8, v18')
        I(f'v_mov_b32 v20, {BIG}')
        I(f'v_cndmask_b32 v18, v18, v20, s[{sM0}:{sM0+1}]')
        I(f'v_cndmask_b32 v19, v19, v20, s[{sM1}:{sM1+1}]')
        I(f's_lshl_b32 s{t0}, s{sA}, 6'); I(f's_lshl_b32 s{t1}, s{sH}, 2'); I(f's_add_u32 s{t0}, s{t0}, s{t1}')
        I(f's_add_u32 s{t0}, s{t0}, {L.F_O}')
        I(f's_add_u32 s{t0}, s{t0}, s{sX0}')
        I(f'v_mul_u32_u24 v14, {L.GS}, v1'); I(f'v_add_u32 v14, s{t0}, v14')
        I('v_cmp_gt_u32 vcc, 2, v1'); I('v_cndmask_b32 v14, v20, v14, vcc')
        if self.fa:
            I(f's_add_u32 s{sX1}, s{sX1}, s{sX0}'); I(f's_sub_u32 s{sX1}, s{sX1}, s{sGB}'); I(f's_mov_b32 s{sX0}, s{sGB}')
        I(f'v_mov_b32 v27, s{sTAG}')
        self.own_fl()

    def pdma(self, i, mat, sc=None):
        I = self.I
        if sc is None: sc = 'sc1' if self.o.get('psc', 1) else ''
        if mat == 0: I(f's_add_u32 m0, s{self.sMW}, {28672 + i*4096}')
        else: I(f's_add_u32 m0, s{sT[9]}, {i*1024}')
        I(f's_lshl_b32 s{self.sCw}, s{self.sCx}, 5')
        if mat: I(f's_add_u32 s{self.sCw}, s{self.sCw}, {MATS}')
        I(f'buffer_load_dwordx4 v48, {WS}, s{self.sCw} offen {sc} lds', tag=('wv', 'wq')[mat])
        self.adv()
    def tag_reads(self, mat, D):
        return [f'ds_read_b32 v{D+n}, v{49+mat} offset:{3*n*(4096, 1024)[mat]}' for n in range(2)]
    def tag_chk(self, mat, D):
        e, I = self.e, self.I
        done, retry = e.newlabel('Ltd'), e.newlabel('Ltr')
        def check():
            I(f'v_cmp_ne_u32 vcc, s{sN}, v{D}')
            I(f'v_cmp_ne_u32 s[{sT[2]}:{sT[3]}], s{sN}, v{D+1}')
            I(f's_or_b64 vcc, vcc, s[{sT[2]}:{sT[3]}]')
        check()
        I(f's_cbranch_vccnz {retry}')
        e.label(done)
        sn = e.snap()
        save = e.out; e.out = []
        e.label(retry)
        e.wait_all()
        for i in range(7): self.pdma(i, mat, 'sc1')
        e.wait_vm0()
        for t in self.tag_reads(mat, D): I(t)
        e.wait_lg0()
        check()
        I(f's_cbranch_vccz {done}')
        I(f's_sub_u32 s{sSPIN}, s{sSPIN}, 1')
        I(f's_cbranch_scc0 {retry}')
        I(f's_mov_b32 s{sSPIN}, 0')
        I(f's_branch {done}')
        e.ool += e.out; e.out = save
        e.restore(sn)

    def init_A(self):
        I, L = self.I, self.L
        t0, t1, t2, t3 = sT[0:4]
        I(f's_lshl_b32 s{t0}, s{sJ}, 2'); I(f's_add_u32 s{t0}, s{t0}, s{sA}')
        I(f's_mul_i32 s{t1}, s{t0}, {14*128}'); I(f's_mul_i32 s{t2}, s{t0}, 384'); I(f's_min_u32 s{t2}, s{t2}, {69*128}')
        I(f's_add_u32 s{t2}, s{t2}, {L.FLG}')
        I('v_min_u32 v15, 13, v2'); I('v_lshlrev_b32 v15, 7, v15'); I(f'v_add_u32 v15, s{t1}, v15')
        I('v_and_b32 v16, 1, v3'); I(f'v_mul_u32_u24 v16, {AS}, v16'); I('v_add_u32 v15, v15, v16')
        I('v_min_u32 v16, 2, v2'); I('v_lshlrev_b32 v16, 7, v16'); I(f'v_add_u32 v16, s{t2}, v16')
        if 'o' in self.o.get('sn', ''): I(f'v_add_u32 v184, s{t1}, v4')
        fu = self.o.get('fu', '')
        if self.o.get('mlp', 7) >= 9: fu = 'o' if 't' in self.o.get('sn', '') else ''
        gt = self.o.get('gtr')
        if gt:
            I('v_and_b32 v14, 1, v3'); I(f'v_mul_u32_u24 v14, {AS}, v14'); I('v_sub_u32 v15, v15, v14')
            I('v_mov_b32 v0, v16')
            for i, ch in enumerate(gt):
                I(f'v_add_u32 v14, {dict(O=L.O, T=L.T0, H=L.H)[ch]}, v15')
                I(f'v_cmp_eq_u32 vcc, {i}, v3'); I('v_cndmask_b32 v0, v0, v14, vcc')
        elif fu == 'oh': I('v_mov_b32 v0, v16')
        else:
            I({'': 'v_cmp_gt_u32 vcc, 2, v3', 'o': 'v_cmp_eq_u32 vcc, 0, v3', 'h': 'v_cmp_eq_u32 vcc, 1, v3'}[fu]); I('v_cndmask_b32 v0, v16, v15, vcc')
        self.fl_addr()
        self.warm_addr(30, 9)
        I(f's_lshl_b32 s{t0}, s{sH}, 16'); I(f's_lshl_b32 s{t1}, s{sRB}, 8'); I(f's_add_u32 s{t0}, s{t0}, s{t1}'); I(f's_add_u32 s{t0}, s{t0}, {WS_KVP}')
        I('v_lshlrev_b32 v15, 4, v2'); I('v_lshl_add_u32 v50, v3, 12, v15'); I(f'v_add_u32 v50, s{t0}, v50')
        I(f's_lshl_b32 s{t0}, s{sH}, 12'); I(f's_add_u32 s{t0}, s{t0}, s{t1}'); I(f's_add_u32 s{t0}, s{t0}, {WS_KVR}')
        I('v_lshl_add_u32 v51, v3, 3, v15'); I(f'v_add_u32 v51, s{t0}, v51')
        I('v_cmp_gt_u32 vcc, 32, v1'); I('v_cndmask_b32 v51, v16, v51, vcc')
        I('v_and_b32 v15, 1, v2'); I('v_lshlrev_b32 v15, 4, v15')
        I('v_mov_b32 v16, 0x3f80'); I('v_lshlrev_b32 v15, v15, v16')
        I('v_lshrrev_b32 v16, 1, v2')
        for i in range(4):
            I(f'v_cmp_eq_u32 vcc, {i}, v16'); I(f'v_cndmask_b32 v{self.SEL+i}, 0, v15, vcc')
        I(f's_lshl_b32 s{t0}, s{sH}, 4'); I(f's_or_b32 s{t0}, s{t0}, s{sRB}'); I(f's_lshl_b32 s{t0}, s{t0}, 12')
        I(f's_add_u32 s{t0}, s{t0}, s{self.sMW}'); I(f's_add_u32 s{t0}, s{t0}, {WS_KVP}')
        I(f'v_add_u32 v31, s{t0}, v4')
        I(f's_lshl_b32 s{t0}, s{sRB}, 4')
        I(f'v_add_u32 v15, s{t0}, v2')
        I('v_lshlrev_b32 v16, 4, v2'); I(f'v_add_u32 v16, s{sH}, v16')
        I('v_cmp_eq_u32 vcc, 1, v3')
        I('v_cndmask_b32 v15, v15, v16, vcc')
        if self.fa:
            I('v_xor_b32 v16, 8, v16'); I('v_cmp_eq_u32 vcc, 3, v3'); I('v_cndmask_b32 v15, v15, v16, vcc')
        I('v_and_b32 v16, 8, v2'); I('v_lshlrev_b32 v16, 1, v16')
        I('v_and_b32 v8, 7, v2'); I('v_add_u32 v16, v16, v8')
        I(f's_lshl_b32 s{t0}, s{sG}, 3'); I(f's_sub_u32 s{t0}, s{t0}, 8')
        I(f'v_add_u32 v16, s{t0}, v16'); I('v_and_b32 v16, 255, v16')
        I('v_cmp_eq_u32 vcc, 2, v3')
        I('v_cndmask_b32 v15, v15, v16, vcc')
        I('v_lshlrev_b32 v8, 6, v15'); I(f'v_add_u32 v8, {WS_HELLO}, v8')
        if self.fa:
            self.w01_base(t0)
            I(f's_add_u32 s{t0}, s{t0}, s{self.sMW}')
            I('v_and_b32 v14, 0x1ff, v4'); I(f'v_add_u32 v14, s{t0}, v14')
    def w01_base(self, t0):
        I = self.I
        t1 = sT[1]
        I(f's_mul_i32 s{t0}, s{sJ}, 57344'); I(f's_lshr_b32 s{t1}, s{sG}, 1'); I(f's_lshl_b32 s{t1}, s{t1}, 12'); I(f's_add_u32 s{t0}, s{t0}, s{t1}')
        I(f's_and_b32 s{t1}, s{sG}, 1'); I(f's_lshl_b32 s{t1}, s{t1}, 9'); I(f's_add_u32 s{t0}, s{t0}, s{t1}'); I(f's_add_u32 s{t0}, s{t0}, {0x1800000}')
        I(f's_cmp_lt_u32 s{sG}, 28'); I(f's_cselect_b32 s{t0}, s{t0}, {BIG}')
        I(f's_cmp_lt_u32 s{sJ}, 7'); I(f's_cselect_b32 s{t0}, s{t0}, {BIG}')
    SBX, ARX, TA, PF, PA = 32, 148, 132, 196, 60
    def gx_addr(self):
        I = self.I
        I('v_bfe_u32 v15, v1, 2, 2')
        I('v_lshl_add_u32 v16, v3, 3, v15'); I('v_lshlrev_b32 v16, 7, v16')
        I('v_and_b32 v32, 3, v1'); I('v_lshl_add_u32 v16, v32, 3, v16')
        I('v_lshrrev_b32 v15, 1, v15'); I('v_and_b32 v32, 1, v3'); I('v_lshl_add_u32 v15, v32, 1, v15')
        I('v_lshl_add_u32 v32, v15, 5, v16'); I(f'v_add_u32 v32, {RB}, v32')
        for t in range(1, 4): I(f'v_xor_b32 v{32+t}, {t*32}, v32')
    def gemmx(self, prod, fill=()):
        I = self.I
        fill = list(fill)
        def rd(m, t):
            b = self.ARX + 16*(m % 3) + 4*t
            for h in range(2): I(f'ds_read_b64_tr_b16 {vr(b+2*h,2)}, v{self.SBX+t} offset:{m*4096 + h*512}')
        for m in range(3):
            for t in range(4): rd(m, t)
        n = len(fill); done = 0
        for m in range(14):
            for t in range(4):
                w = vr(self.ARX + 16*(m % 3) + 4*t, 4)
                if prod != 'only': c = vr(self.TA + 4*t, 4); I(f'{MF16} {c}, {w}, {vr(self.X+4*m,4)}, ' + ('0' if m == 0 else c))
                if prod: c = vr(self.PA + 4*t, 4); I(f'{MF16} {c}, {vr(self.PF+4*m,4)}, {w}, ' + ('0' if m == 0 else c))
                if m + 3 < 14: rd(m + 3, t)
                want = -(-n * (4*m + t + 1) // self.o.get('gxs', 56))
                while done < min(n, want): fill[done](); done += 1

    def p1_A(self, g6):
        e, I, o = self.e, self.I, self.o
        X, AX = self.X, self.AX
        t0, t1 = sT[0:2]
        e.vm = self.vmA
        self.init_A()
        self.get_tag()
        self.stamp('su')
        if o.get('x0', 2) < 2: self.xdma(1, 1, 'c1')
        I('s_setprio 1')
        WR, X2 = 132, 164
        def kreads(m):
            return [self.xrd(X + 4*m, m, 0, f'xr{m>>1}'), self.xrd(X2 + 4*(m % 3), m, 1)] + self.wrd(WR + 8*(m & 3), m, 0)
        def kstep(m):
            xa, xb = vr(X + 4*m, 4), vr(X2 + 4*(m % 3), 4)
            w = [vr(WR + 8*(m & 3) + 4*t, 4) for t in range(2)]
            ops = [(68, 'v[32:35]', xa), (72, 'v[32:35]', xb), (196, 'v[32:35]', w[0]), (200, 'v[32:35]', w[1]),
                   (52, w[0], xa), (60, w[0], xb), (56, w[1], xa), (64, w[1], xb)]
            return [f'{MF16} {vr(c,4)}, {p}, {q}, ' + ('0' if m == 0 else vr(c, 4)) for c, p, q in ops]
        e.wait_tag('c0'); self.bar('c0')
        if o.get('stlb'): e.lg.append(dict(dst=set(), tag=None, smem=True))
        self.mix([], kreads(0))
        if o.get('nl'): I(f'buffer_store_dwordx4 v[180:183], v31, {WS}, 0 offen sc1')
        if self.fa: I(f'buffer_store_dwordx4 v[180:183], v14, {WS}, 0 offen sc1')
        if 'o' in o.get('sn', ''):
            assert self.L.O == 0
            for of in (0, 768): I(f'buffer_store_dwordx4 v[180:183], v184, {WS}, s{sGB} offen offset:{of} sc1')
        self.xdma(2, 2, 'c2')
        for m in range(14):
            i = m >> 1
            if m & 1 and i < 6:
                e.wait_tag(f'xr{i}'); e.wait_tag('nw'); e.wait_tag(f'c{i+1}'); self.bar(f'c{i+1}')
            self.mix(kstep(m), kreads(m + 1) if m < 13 else [], 2)
            if not m & 1 and i + 3 < 7: self.xdma(i + 3, (i + 3) & 3, f'c{i+3}')
            if m == o.get('km', 6):
                for ch in o.get('kw', '-'):
                    if ch == 'g':
                        I(f'buffer_load_dword v10, v0, {WS}, s{sGB} offen sc1'); e.vm[-1]['dst'] = set()
                    elif ch != '-': self.warm(ch, 30, 9, 10)
            ch = (o.get('kt', '') + '-'*14)[m]
            if ch == 'g':
                I(f'buffer_load_dword v7, v0, {WS}, s{sGB} offen sc1'); e.vm[-1]['dst'] = set()
            elif ch == 's':
                for c2 in 'o12': self.warm(c2, 30, 9, 7)
            elif ch != '-': self.warm(ch, 30, 9, 7)
            if m == 8: self.phi_frags()
            if m == 10: self.phi_mask()
            if m == 11: self.sq_src(); self.own_fl()
            if m >= 9:
                for ch in o.get('k' + '9abcd'[m - 9], ''):
                    if ch == 'g':
                        I(f'buffer_load_dword v7, v0, {WS}, s{sGB} offen sc1'); e.vm[-1]['dst'] = set()
                    else: self.warm('o123'['OISA'.index(ch)], 176, 177, 7)
            if m == 7:
                na = o.get('na', 16)
                I(f's_and_b32 s{t0}, s{sL}, 31'); I(f's_lshl_b32 s{t0}, s{t0}, 2'); I(f's_add_u32 s{t0}, s{t0}, s{sA}')
                I(f's_mul_i32 s{t1}, s{t0}, 25'); I(f'v_add_u32 v176, s{t1}, v1'); I('v_lshlrev_b32 v176, 7, v176')
                I(f's_mul_i32 s{t1}, s{t0}, {na}'); I(f'v_add_u32 v15, s{t1}, v1')
                I('v_lshrrev_b32 v177, 1, v15'); I('v_lshlrev_b32 v177, 9, v177'); I('v_and_b32 v15, 1, v15'); I('v_lshl_add_u32 v177, v15, 7, v177')
                I(f'v_mov_b32 v16, {BIG}')
                I('v_cmp_gt_u32 vcc, 25, v1'); I('v_cndmask_b32 v176, v16, v176, vcc')
                I(f'v_cmp_gt_u32 vcc, {na}, v1'); I('v_cndmask_b32 v177, v16, v177, vcc')
            if m == 13 and 'x' in o.get('kj', ''):
                t2 = sT[2]
                I(f's_lshl_b32 s{t0}, s{sH}, 16'); I(f's_lshl_b32 s{t1}, s{sRB}, 8'); I(f's_add_u32 s{t0}, s{t0}, s{t1}')
                I(f's_lshl_b32 s{t1}, s{sA}, 15'); I(f's_add_u32 s{t0}, s{t0}, s{t1}'); I(f's_add_u32 s{t0}, s{t0}, {WS_KVP}')
                I(f's_lshl_b32 s{t1}, s{sH}, 12'); I(f's_lshl_b32 s{t2}, s{sA}, 11'); I(f's_add_u32 s{t1}, s{t1}, s{t2}'); I(f's_add_u32 s{t1}, s{t1}, {WS_KVR - 4096}')
                I(f's_cmp_lt_u32 s{sA}, 2'); I(f's_cselect_b32 s{t0}, s{t0}, s{t1}'); I(f's_cselect_b32 s{t1}, 12, 8')
                I('v_lshrrev_b32 v78, 1, v2'); I(f'v_lshlrev_b32 v78, s{t1}, v78'); I('v_and_b32 v15, 1, v2')
                I('v_lshl_add_u32 v78, v15, 7, v78'); I(f'v_add_u32 v78, s{t0}, v78')
        assert o.get('km', 6) >= 6
        self.stamp(2)
        self.fwr(16)
        I('v_mov_b32 v44, v176'); I('v_mov_b32 v45, v177')
        I(f's_setprio {o.get("aprio", 0)}')
        BXS = [224, 216]
        for n in range(2):
            I(f'v_mul_f32 v{228+2*n}, v{68+4*n}, v29')
        la = [self.capture(lambda n=n: self.split_b(228+2*n, BXS[n], 229+2*n)) for n in range(2)]
        la += [self.capture(lambda n=n: self.split_a(196+4*n, AX+4*n, 197+4*n)) for n in range(2)]
        for r in zip(*la):
            for t in r: I(t)
        srd_ = 'ds_read_b64 v[48:49], v28 offset:8'
        for n in range(2):
            for t in range(2):
                acc = vr(52 + 8*n + 4*t, 4)
                I(f'{MF16} {acc}, {vr(AX+4*t,4)}, {vr(BXS[n],4)}, {acc}')
        KC = [204, 220]
        for n in range(2):
            self.cvt(KC[n], 52 + 8*n, 8)
            for t in range(2): I(f'{MF16} {vr(52+8*n+4*t,4)}, {vr(36+4*t,4)}, {vr(KC[n],4)}, 0')
        I(srd_)
        sm = [self.capture(lambda n=n: (self.softmax2s(52 + 8*n, 132 + 8*n, (228, 172)[n], 22, 48 + n),
                  [self.I(f'ds_write_b64 v{(23,46)[n]}, {vr(132+8*n+2*t,2)} offset:{t*32}') for t in range(4)])) for n in range(2)]
        pk = [t for r in zip(*sm) for t in r]
        first = min(n for n, t in enumerate(pk) if t.endswith('v48'))
        hl = f'buffer_load_dword v14, v8, {WS}, 0 offen sc1'
        def gt():
            I(f'buffer_load_dword v12, v0, {WS}, s{sGB} offen sc1'); e.vm[-1]['dst'] = set()
        dl = [('wo', RA, m) for m in range(7)] + [('w1', RB, m) for m in W1SAFE]
        def dma(n):
            for _ in range(n):
                if dl: nm, rg, m = dl.pop(0); self.sq_dma(nm, rg, m, nm)
        def job(ch):
            if ch == 'h': I(hl)
            elif ch == 'g': gt()
            elif ch in 'OIS': self.warm('o12'['OIS'.index(ch)], 44, 45, 12)
            elif ch == 'A': self.warm('3', 44, 45, 12)
            elif ch in 'o1234': self.warm(ch, 30, 9, 12)
            elif ch == 'x':
                I(f'buffer_load_dword v12, v78, {WS}, 0 offen sc1'); e.vm[-1]['dst'] = set()
            elif ch == 'f': I(self.frd)
            elif ch == 'c': self.fchk(1)
            elif ch == 'd': dma(1)
        for ch in o.get('k2', ''): job(ch)
        jobs = [(lambda ch=ch: job(ch)) for ch in o.get('kj', 'hg')]
        assert 'h' in o.get('kj', 'h')
        w1v = o.get('w1v')
        assert not w1v or ('fc' in o['kj'] and self.fa)
        for n, t in enumerate(pk):
            if n == first:
                self.lpoll([srd_], lambda: I('v_cmp_eq_u32 vcc, 0, v49'), 'sc')
                self.stamp('k1')
                self.swarm('sk')
            if n >= first + o.get('q0', 0) and (n - first) % o.get('qd', 8) == 0 and jobs: jobs.pop(0)()
            I(t)
        self.stamp('k2')
        self.fwr(32)
        I(self.frd)
        for f in jobs: f()
        self.fchk(3, 32)
        I(f's_setprio {o.get("kvprio", 3)}')
        self.stamp(3)
        KB, KA = 132, 148
        for ks in range(4):
            a, b = (24, 25) if ks < 2 else (26, 27)
            st = 3584 if ks < 2 or o.get('w1v') else 14336
            for ee in range(2): I(f'ds_read_b64_tr_b16 {vr(KB+4*ks+2*ee,2)}, v{b} offset:{((2*ks+ee)&3)*st}')
            for t in range(2):
                for ee in range(2): I(f'ds_read_b64_tr_b16 {vr(KA+16*t+4*ks+2*ee,2)}, v{a} offset:{((2*ks+ee)&3)*st + 32*t}')
            if ks:
                for t in range(2): I(f'{MF16} {vr(52+4*t,4)}, {vr(KA+16*t+4*ks-4,4)}, {vr(KB+4*ks-4,4)}, ' + ('0' if ks == 1 else vr(52+4*t, 4)))
        for t in range(2): I(f'{MF16} {vr(52+4*t,4)}, {vr(KA+16*t+12,4)}, {vr(KB+12,4)}, {vr(52+4*t,4)}')
        self.fwr(48)
        for p in range(4): I(f's_mov_b32 s{sT[8+p]}, {p*16384}')
        self.cvt(60, 52, 8)
        I(f'buffer_store_dwordx4 v[60:63], v31, {WS}, 0 offen sc1')
        self.stamp(4)
        for ch in o.get('k4', ''): job(ch)
        I(self.frd)
        def chk():
            I('v_and_b32 v16, -16, v14')
            I(f'v_cmp_ne_u32 vcc, s{sTAG}, v16')
        self.poll2([hl], chk, 'hello')
        I(f'v_cmp_ne_u32 vcc, s{sMODE}, v14')
        I(f's_and_b32 s{sMODE}, vcc_lo, 0xffff')
        if self.force_slow: I(f's_mov_b32 s{sMODE}, 1')
        dl[:] = [x for x in dl if x[0] == 'wo'] + [('wo', RA, m) for m in range(7, 14)] + [x for x in dl if x[0] == 'w1'] + [('w1', RB, m) for m in W1REST]
        self.rest = []
        G, AC, CV = (196, 212, 216) if self.fa else (self.G, self.GAC, 152)
        sk, jn = e.newlabel('Lns1'), e.newlabel('Lkj')
        I(f's_cmp_lg_u32 s{sW}, 0'); I(f's_cbranch_scc1 {sk}')
        sn = e.snap()
        tok = ['v_add_u32 v5, 1, v5', 'ds_write_b32 v17, v5 offset:16']
        I('v_mov_b32 v5, 0')
        loads = [f'buffer_load_dwordx4 {vr(G+4*p,4)}, v50, {WS}, s{sT[8+p]} offen sc1' for p in range(4)] + tok
        def chk3():
            for p in range(4):
                I(f'{MF16} {vr(AC,4)}, {vr(self.SEL,4)}, {vr(G+4*p,4)}, ' + ('0' if p == 0 else vr(AC, 4)))
            I(f'v_cmp_u_f32 vcc, v{AC}, v{AC}')
        for t in loads: I(t)
        self.fchk(3, 48)
        I(f'v_mov_b32 v7, s{sMODE}'); I(f'v_mov_b32 v16, {L_MODE}'); I('ds_write_b32 v16, v7')
        if hasattr(g6, 'k0_init'): g6.k0_init(self)
        I(f's_lshl_b32 s{t0}, s{sH}, 12'); I(f's_add_u32 s{t0}, s{t0}, {WS_KVR}')
        I(f'v_add_u32 v6, {L_KV4}, v4')
        I(f's_mov_b32 s{sT[4]}, s{t0}')
        g6.main_pre(self)
        self.common_addr()
        if self.fa: self.fwr(52); self.gx_addr()
        self.poll2(loads, chk3, 's1')
        self.cvt(CV, AC, 4)
        I(f'buffer_store_dwordx2 {vr(CV,2)}, v51, {WS}, 0 offen sc1')
        self.stamp(7)
        loads = [f'buffer_load_dwordx4 {vr(G+4*p,4)}, v4, {WS}, s{sT[4]} offen offset:{p*1024} sc1' for p in range(4)] + tok
        def chk4():
            I(f'v_max3_u32 v{AC}, v{G}, v{G+2}, v{G+4}'); I(f'v_max3_u32 v{AC+1}, v{G+6}, v{G+8}, v{G+10}')
            I(f'v_max3_u32 v{AC}, v{AC}, v{G+12}, v{G+14}'); I(f'v_max_u32 v{AC}, v{AC}, v{AC+1}')
            I(f'v_cmp_eq_u32 vcc, -1, v{AC}')
        if self.fa and not o.get('sep'):
            for t in loads: I(t)
            I(self.frd); self.fchk(*((4, 48) if w1v else (0, 52)))
            self.stamp('x0')
            self.gemmx(False)
            self.stamp('x1')
            self.poll2(loads, chk4, 's2')
        elif hasattr(g6, 'early_addr'):
            for t in loads: I(t)
            g6.early_addr(self); g6.hinit(self)
            self.poll2(loads, chk4, 's2')
        else: self.poll3(loads, chk4, 's2')
        for p in range(4): I(f'ds_write_b128 v6, {vr(G+4*p,4)} offset:{p*1024}')
        self.fwr(60)
        if o.get('gs2'): I('v_mov_b32 v5, 64'); I(tok[1])
        self.stamp('s2')
        I('s_setprio 0')
        if o.get('sep'):
            I(self.frd); self.fchk(0, 52)
            self.gemmx(False)
            self.stamp('x2')
        I(f's_branch {jn}')
        e.restore(sn)
        e.label(sk)
        I('s_setprio 0')
        assert len(dl) == 28
        I(f's_and_b32 s{t0}, s{sA}, 1'); I(f's_lshl_b32 s{t0}, s{t0}, 6'); I(f'v_xor_b32 v10, s{t0}, v11')
        I(f's_mul_i32 s{t0}, s{sA}, 7168'); I(f'v_subrev_u32 v10, s{t0}, v10')
        self.fchk(3, 48)
        I(f'v_mov_b32 v5, {L_FL}')
        def gate(n):
            top, dn = e.newlabel('Lgt'), e.newlabel('Lgd')
            e.wait_lg0()
            e.label(top)
            I('ds_read_b32 v15, v5 offset:16')
            I(f'v_cmp_gt_u32 vcc, {n}, v15')
            I(f's_cbranch_vccz {dn}')
            I(f's_sub_u32 s{sSPIN}, s{sSPIN}, 1')
            I(f's_cbranch_scc0 {top}')
            I(f's_mov_b32 s{sSPIN}, 0')
            e.label(dn)
        if o.get('j7e'):
            je = e.newlabel('Lj7e')
            I(f's_cmp_eq_u32 s{sJ}, 7'); I(f's_cbranch_scc1 {je}')
            sn2 = e.snap(); save = e.out; e.out = []
            e.label(je)
            self.j7_early(gate)
            I(f's_branch {jn}')
            e.ool += e.out; e.out = save; e.restore(sn2)
        ins = []
        def rot(r, mod):
            I(f's_cmp_ge_u32 s{r}, {mod}'); I(f's_cselect_b32 s{t1}, {mod}, 0'); I(f's_sub_u32 s{r}, s{r}, s{t1}')
        def own(nm, rg, m):
            if not (self.fa and nm == 'w1'): return self.sq_dma(nm, rg, m, nm)
            I(f's_add_u32 m0, s{self.sMW}, {rg + m*4096}')
            I(f's_add_u32 s{self.sCw}, s{sN}, {m*32*896}'); rot(self.sCw, 448*896)
            I(f'buffer_load_dwordx4 v{self.vSQ}, {srd(nm)}, s{self.sCw} offen lds', tag=nm)
        def ext(nm, rg, m):
            I(f's_add_u32 s{t0}, s{sA}, {m - 2}'); I(f's_min_u32 s{t0}, s{t0}, 13')
            I(f's_mul_i32 s{self.sCw}, s{t0}, {32*896}'); I(f's_lshl_b32 s{t0}, s{t0}, 12'); I(f's_add_u32 m0, s{t0}, {rg}')
            if self.fa and nm == 'w1': I(f's_add_u32 s{self.sCw}, s{self.sCw}, s{sN}'); rot(self.sCw, 448*896)
            I(f'buffer_load_dwordx4 v10, {srd(nm)}, s{self.sCw} offen lds', tag=nm)
        def ext3(m):
            I(f's_add_u32 s{t0}, s{sA}, {m - 2}')
            I(f's_mul_i32 s{self.sCw}, s{t0}, {16*3584}'); I(f's_lshl_b32 s{t0}, s{t0}, 12'); I(f's_add_u32 m0, s{t0}, {RC}')
            I(f'buffer_load_dwordx4 v7, {srd("w3")}, s{self.sCw} offen lds', tag='w3')
        if self.fa: I(f's_mul_i32 s{sN}, s{self.sCx}, 448')
        for nm, rg in (('wo', RA),) if w1v else (('w1', RB), ('wo', RA)) if self.fa else (('wo', RA), ('w1', RB)):
            for m in range(14):
                ins.append(lambda nm=nm, rg=rg, m=m: own(nm, rg, m))
                if m % 3 == 1: ins.append(lambda nm=nm, rg=rg, m=m: ext(nm, rg, m))
        if o.get('w3k', 1):
            for m in range(9):
                ins.append(lambda m=m: g6.w3_dma(self, 6, self.sMW, m, 0, RC + m*4096, 'w3'))
                if m % 3 == 1: ins.append(lambda m=m: ext3(m))
        def pfrags():
            lo, jo = e.newlabel('Lpo'), e.newlabel('Lpj')
            I(f's_cmp_lg_u32 s{sW}, 1'); I(f's_cbranch_scc1 {lo}')
            I(f's_lshl_b32 s{t0}, s{sG}, 4'); I(f'v_add_u32 v15, s{t0}, v2'); I('v_mul_u32_u24 v15, 896, v15'); I('v_lshl_add_u32 v15, v3, 4, v15')
            for m in range(0, 14, 2):
                I(f's_add_u32 s{self.sCw}, s{self.sCx}, {m*64}'); rot(self.sCw, 896)
                for h in range(2): I(f'buffer_load_dwordx4 {vr(self.PF+4*(m+h),4)}, v15, {srd("wo")}, s{self.sCw} offen offset:{h*64}', maybe=True)
            e.label(jo)
            e.ool.append(lo + ':')
            for i in range(56): e.ool.append(f'  v_mov_b32 v{self.PF+i}, 0x3f803f80')
            e.ool.append(f'  s_branch {jo}')
        bs = [int(c, 36) for c in o.get('bs', 'a9a' if self.fa else 'a9a9c')]
        n = 0; wol = False
        i3 = 19 if w1v else 38
        if self.fa and o.get('pfb', 0) < 0: pfrags()
        for b, cnt in enumerate(bs):
            if not self.fa and n >= 19 and not wol and b >= o.get('wlb', 3):
                e.wait_tag('wo'); self.fwr(56); wol = True
            if n <= i3 < n + cnt:
                I(self.frd); self.fchk(6)
            if o.get('gate', 1) and not (self.fa and b >= 2 and not o.get('sep')): gate(b + 1)
            for f in ins[n:n + cnt]: f()
            n += cnt
            self.stamp(f'd{b}')
            if b == 0:
                g6.main_pre(self)
                self.common_addr()
                g6.w3_src(self, 6)
                I(f's_lshr_b32 s{t0}, s{sA}, 1'); I(f's_lshl_b32 s{t0}, s{t0}, 7'); I(f's_and_b32 s{t1}, s{sA}, 1'); I(f's_mul_i32 s{t1}, s{t1}, {8*3584}')
                I(f's_add_u32 s{t0}, s{t0}, s{t1}'); I(f'v_subrev_u32 v7, s{t0}, v6')
                if self.fa: self.gx_addr()
            if b == o.get('tpb', 0) and 't' in o.get('sn', ''): g6.t_prefill(self)
            if self.fa and b == o.get('pfb', 0): pfrags()
            if hasattr(g6, 'early_addr'):
                if b == o.get('eab', 1): g6.early_addr(self)
                if b == o.get('eah', 2): g6.hinit(self)
        if self.fa:
            if w1v: I(self.frd); self.fchk(4, 48)
            else:
                assert n >= 19
                e.wait_tag('w1'); self.fwr(52); I(self.frd); self.fchk(0, 52)
            self.stamp('x0')
            fill = []
            for q in range(n, len(ins)):
                if q == i3: fill += [lambda: I(self.frd), lambda: self.fchk(6)]
                fill.append(ins[q])
            nin = 0 if o.get('sep') else o.get('gxn', len(fill))
            self.gemmx('only' if o.get('sep') else True, fill[:nin])
            self.stamp('x1')
            self.w01_base(t0)
            I(f's_cmp_eq_u32 s{sW}, 1'); I(f's_cselect_b32 s{t0}, s{t0}, {BIG}')
            I('v_and_b32 v15, 1, v3'); I('v_lshlrev_b32 v15, 10, v15'); I('v_lshrrev_b32 v16, 1, v3'); I('v_lshl_add_u32 v15, v16, 8, v15')
            I('v_lshl_add_u32 v15, v2, 4, v15'); I(f'v_add_u32 v15, s{t0}, v15')
            g6.pack_pairs(self, self.PA, self.ARX)
            for pp in range(2): I(f'buffer_store_dwordx4 {vr(self.ARX+4*pp,4)}, v15, {WS}, 0 offen offset:{pp*2048} sc1')
            sk2 = e.newlabel('Lcs')
            I(f'v_lshlrev_b32 v15, 2, v2'); I(f'v_add_u32 v15, {L_CS1}, v15')
            I(f's_cmp_lg_u32 s{sW}, 2'); I(f's_cbranch_scc1 {sk2}')
            for t in range(4): I(f'ds_write_b32 v15, v{self.PA+4*t} offset:{t*64}')
            e.label(sk2)
            e.wait_lg0()
            if o.get('sep'):
                b2 = [int(c, 36) for c in o.get('bt', '9')]
                for b, cnt in enumerate(b2):
                    if o.get('gate', 1): gate(len(bs) + b + 1)
                    for _ in range(cnt):
                        if fill: fill.pop(0)()
                    if b == o.get('xb', 0):
                        if o.get('tpb', 0) < 0: g6.t_prefill(self)
                        self.gemmx(False); self.stamp('x2')
                assert not fill
            else:
                for f in fill[nin:]: f()
                if o.get('tpb', 0) < 0: g6.t_prefill(self)
        else: assert n >= len(ins)
        if not wol: e.wait_tag('wo'); self.fwr(56)
        for ch in o.get('k5', ''): job(ch)
        self.stamp(5)
        e.label(jn)
        e.hist = []; e.nop(2)
        e.lg.append(dict(dst=set(), tag=None, smem=True))
    def j7_early(self, gate):
        e, I, L = self.e, self.I, self.L
        t0, t1, t2 = sT[0:3]
        q3, q12, q96 = sT[4], sT[5], sT[6]
        I(f's_sub_u32 s{q3}, s{sW}, 1')
        I(f's_mul_i32 s{q96}, s{sG}, 3'); I(f's_add_u32 s{q96}, s{q96}, s{q3}')
        I(f's_and_b32 s{q12}, s{sG}, 3'); I(f's_mul_i32 s{q12}, s{q12}, 3'); I(f's_add_u32 s{q12}, s{q12}, s{q3}')
        def split(tot, nw, mx=64):
            n = -(-tot // (nw*mx)); per = -(-tot // (nw*n))
            return [(i*nw*per, per) for i in range(n)]
        lists = {}
        for ch, off, tot in (('O', L.O, 448), ('T', L.T0, 448), ('H', L.H, 448), ('F', L.FLG, 72)):
            lists[ch] = [('g', off, q3, a, n) for a, n in split(tot, 3)]
        for ch, nm, off, tot in (('a', 'w3', 144*3584, 4256), ('b', 'w3', 256, 6272), ('2', 'w2', 0, 3136), ('4', 'w4', 0, 12544), ('o', 'wo', 0, 3136), ('1', 'w1', 0, 3136)):
            lists[ch] = [(nm, off, q12, a, n) for a, n in split(tot, 12)]
            lists[dict(a='A', b='B').get(ch, chr(ord(ch) + 4))] = [(nm, off, q96, a, n) for a, n in split(tot, 96)]
        n = 0
        self.common_addr()
        for b, bt in enumerate(self.o['j7e'].split('.')):
            pend = []
            gn = 64 if '!' in bt else b + 1
            bt = bt.replace('!', '')
            if not bt: continue
            for i, ch in enumerate(bt):
                nm, off, q, a, cnt = lists[ch].pop(0)
                V = 64 + i
                I(f's_mul_i32 s{t0}, s{q}, {cnt}'); I(f's_add_u32 s{t0}, s{t0}, {a}')
                I(f'v_min_u32 v{V}, {cnt - 1}, v1'); I(f'v_add_u32 v{V}, s{t0}, v{V}')
                if nm == 'w3':
                    I(f'v_and_b32 v15, 1, v{V}'); I(f'v_lshrrev_b32 v{V}, 1, v{V}'); I(f'v_lshlrev_b32 v{V}, 9, v{V}'); I(f'v_lshl_add_u32 v{V}, v15, 7, v{V}')
                else: I(f'v_lshlrev_b32 v{V}, 7, v{V}')
                I(f'v_add_u32 v{V}, {off}, v{V}')
                pend.append(f'buffer_load_dword v{80+n}, v{V}, {WS}, s{sGB} offen sc1' if nm == 'g' else f'buffer_load_dword v{80+n}, v{V}, {srd(nm)}, 0 offen')
                n += 1
            gate(gn)
            for t in pend: I(t)
            self.stamp(f'd{b}')
    def k_landed(self):
        self.I(self.frd)
        self.fchk(0, 56)
        self.stamp('b4')
    def k_landed2(self):
        self.own_fl()
        self.e.wait_vm0()
        self.fwr(60)

    def p1_B(self, g6):
        e, I, o = self.e, self.I, self.o
        X, AX = self.X, self.AX
        X2, WR, CF, CSA = 132, 228, 196, 220
        e.vm = self.vmB
        self.init_B()
        if o.get('xb0', 1) < 2: self.xdma(1, 1, 'c1')
        self.stamp('su')
        rpi = o.get('rpi', 0)
        if rpi < 0: self.repack(); self.stamp('rp')
        e.wait_lg0()
        vs = [int(ch) for ch in o.get('vs', '4444555')]
        XT = [X2, X]; RS = [188, 68]; XX = [192, 72]
        for i in range(7):
            e.wait_tag(f'c{i}'); self.bar(f'c{i}')
            for m in (2*i, 2*i + 1):
                for n in range(2): I(*self.xrd(XT[n] + 4*m, m, n))
            dm = []
            if i + 2 < 7: dm += [lambda i=i: self.wdma(i + 2, 0, f'c{i+2}'), lambda i=i: self.xdma(i + 2, i + 2, f'c{i+2}')]
            dm += [lambda c=c: self.pdma(c, 0) for c in range(7) if vs[c] == i]
            mf = []
            for m in (2*i, 2*i + 1):
                for n in range(2):
                    x = vr(XT[n] + 4*m, 4)
                    mf.append(f'{MF16} {vr(XX[n],4)}, {x}, {x}, ' + ('0' if m == 0 else vr(XX[n], 4)))
                    mf.append(f'{MF16} {vr(RS[n],4)}, v[32:35], {x}, ' + ('0' if m == 0 else vr(RS[n], 4)))
            self.mix(mf, dm, o.get('dlead', 2))
            if i == rpi: self.repack(); self.stamp('rp')
            if i == 1: self.v_addr1()
            if i == 2: self.vSQ = 51; self.sq_src()
            if i == 3:
                self.phi_frags()
                for t in self.capture(self.hello): I(t.replace(f's_cmp_eq_u32 s{sW}, 0', f's_cmp_eq_u32 s{sW}, 4'))
            if i == 4: self.phi_mask()
            if i == 5: self.v_addr2()
        self.stamp(2)
        BXS = [216, 224]
        def stats():
            I = self.I
            for n in range(2):
                for r in range(4): I(f'v_mul_f32 v{XX[n]+r}, v{XX[n]+r}, v{252+r}')
            for n in range(2):
                x = XX[n]
                I(f'v_add_f32 v{x}, v{x}, v{x+1}'); I(f'v_add_f32 v{x+2}, v{x+2}, v{x+3}')
                I(f'v_mul_f32 v{x+1}, s{sC448}, v{RS[n]}')
            for n in range(2): I(f'v_add_f32 v{XX[n]}, v{XX[n]}, v{XX[n]+2}')
            for n in range(2): I(f'v_mul_f32 v{XX[n]+1}, v{XX[n]+1}, v{XX[n]+1}')
            self.allred2(XX[0], XX[1], XX[0]+2, 'v_add_f32')
            for n in range(2): I(f'v_fma_f32 v{XX[n]}, v{XX[n]}, s{sC448}, -v{XX[n]+1}')
            for n in range(2): I(f'v_add_f32 v{XX[n]}, 0x3727c5ac, v{XX[n]}')
            for n in range(2): I(f'v_rsq_f32 v{RS[n]+2}, v{XX[n]}')
            for n in range(2): I(f'v_mul_f32 v{204+n}, s{sL2E}, v{RS[n]+2}')
            I('ds_write_b64 v28, v[204:205] offset:8')
            I('v_mov_b32 v30, v205')
            for n in range(2):
                I(f'v_mul_f32 v{XX[n]}, v{RS[n]}, v29')
                self.split_b(XX[n], BXS[n], XX[n]+1)
            I('v_cmp_eq_u32 vcc, 0, v1'); I('v_cndmask_b32 v21, v20, v13, vcc')
            I(f's_lshl_b32 s{sT[0]}, s{sA}, 7'); I(f's_add_u32 s{sT[0]}, s{sT[0]}, {L_PART}')
            I('v_lshlrev_b32 v12, 3, v2'); I(f'v_add_u32 v12, s{sT[0]}, v12')
        frd, fwr = self.frd, self.fwr
        def fchk(n, extra=()): self.fchk(n, 0, extra)
        CB = [196, 200, 192, 72]
        def csr(c, mat): return [f'ds_read_b64_tr_b16 {vr(CB[c&3]+2*n,2)}, v{(7,31)[mat]} offset:{c*(4096,1024)[mat]+n*256}' for n in range(2)]
        csm = lambda c: f'{MF16} {vr(CSA,4)}, v[32:35], {vr(CB[c&3],4)}, ' + ('0' if c == 0 else vr(CSA, 4))
        axr = lambda mat: [f'ds_read_b64 {vr(AX+4*t,2)}, v8 offset:{mat*512 + t*128}' for t in range(2)]
        def wr(m, mat):
            d = WR + 8*(m % 3)
            if mat == 0: return self.wrd(d, m, 1)
            return [f'ds_read_b64_tr_b16 {vr(d+2*n,2)}, v{10+(n>>1)} offset:{(m&1)*16384 + (m>>1)*1024 + (n&1)*256}' for n in range(4)]
        st = self.capture(stats)
        TD = 44
        if o.get('sprio', 1): I('s_setprio 2')
        nt = o.get('stt', 14)
        for t in st[:nt]: I(t)
        e.wait_tag('wv')
        for t in self.tag_reads(0, TD): I(t)
        for t in st[nt:34]: I(t)
        st = st[34:]
        I(f's_setprio {o.get("vprio", 2)}')
        self.tag_chk(0, TD)
        fwr(1); I(frd)
        for t in st: I(t)
        fchk(1)
        self.stamp('v1')
        for t in wr(0, 0) + wr(1, 0) + csr(0, 0): I(t)
        jobs = [(lambda i=i: self.pdma(i, 1)) for i in range(7)] + [(lambda ch=ch: self.warm(ch, 51, 0, 9)) for ch in o.get('mw', '-') if ch != '-']
        late = []
        if o.get('nq0', 4) < 0: late, jobs = jobs, []
        for _ in range(o.get('nq0', 4)): jobs.pop(0)()
        def gemm(mat, fl, ACC, more):
            extra = {m: [] for m in range(14)}; xm = {m: [] for m in range(14)}
            for c in range(1, 7): extra[c - 1] += csr(c, mat)
            for c in range(7): xm[c + 1].append(csm(c))
            extra[10] += self.capture(lambda: self.split_a(CSA, 206, CF)) + [f'ds_write_b64 v12, v[206:207] offset:{mat*512}']
            for m, f in more: extra[m].append(f)
            extra[10].append(lambda: fwr(fl))
            extra[12] += [frd] + axr(mat)
            for m in range(14):
                mf = []
                for t in range(2):
                    for n in range(2):
                        c = vr(ACC + 8*n + 4*t, 4)
                        mf.append(f'{MF16} {c}, {vr(WR+8*(m%3)+4*t,4)}, {vr(XT[n]+4*m,4)}, ' + ('0' if m == 0 else c))
                ot = (wr(m + 2, mat) if m + 2 < 14 else []) + extra[m]
                self.mix(mf + xm[m], ot)
                self.stamp(f'{"vq"[mat]}g{m}')
            fchk(fl, axr(mat))
            for n in range(2):
                for t in range(2):
                    acc = vr(ACC + 8*n + 4*t, 4)
                    I(f'{MF16} {acc}, {vr(AX+4*t,4)}, {vr(BXS[n],4)}, {acc}')
        more = [(min(13, o.get('jq', 0) + n // o.get('jr', 2)), f) for n, f in enumerate(jobs)]
        def qw():
            e.wait_tag('wq')
            for t in self.tag_reads(1, TD): I(t)
        wqm = o.get('wqm', 0)
        if wqm: more += [(9, qw), (10, lambda: self.tag_chk(1, TD))]
        gemm(0, 2, 52, more)
        self.stamp('sb')
        if wqm:
            for t in wr(0, 1) + wr(1, 1) + csr(0, 1): I(t)
        for n in range(2):
            c = 52 + 8*n
            for i in range(8): I(f'v_mul_f32 v{c+i}, v{c+i}, v{RS[n]+2}')
            I(f'v_cndmask_b32 v{c}, v{c}, 1.0, s[{sM0}:{sM0+1}]')
            I(f'v_cndmask_b32 v{c+4}, v{c+4}, 1.0, s[{sM1}:{sM1+1}]')
            self.cvt(188 + 4*n if n == 0 else 68, c, 8)
            d = 188 if n == 0 else 68
            I(f'ds_write_b64 v{(23,46)[n]}, {vr(d,2)} offset:128')
            I(f'ds_write_b64 v{(23,46)[n]}, {vr(d+2,2)} offset:160')
        fwr(3)
        self.stamp('sv')
        I(f's_setprio {o.get("qprio", 0)}')
        dl = self.rest
        nsafe = len([x for x in dl if x[0] == 'wo' or x[2] in W1SAFE])
        def dma():
            nm, rg, m = dl.pop(0); self.sq_dma(nm, rg, m, nm)
        assert not wqm
        for f in late: f()
        if o.get('w1v'):
            I(f's_mul_i32 s{sT[11]}, s{self.sCx}, 448')
            for m in range(14):
                I(f's_add_u32 m0, s{self.sMW}, {RB + m*4096}')
                I(f'buffer_load_dwordx4 v{self.vSQ}, {srd("w1")}, s{sT[11]} offen lds', tag='w1')
                if m < 13:
                    I(f's_add_u32 s{sT[11]}, s{sT[11]}, {32*896}'); I(f's_cmp_eq_u32 s{sT[11]}, {448*896}'); I(f's_cselect_b32 s{sT[11]}, 0, s{sT[11]}')
            self.stamp('w1')
        qw()
        for _ in range(o.get('qa', 0)):
            assert dl[0][2] < 7 or dl[0][0] == 'w1'
            dma(); nsafe -= 1
        self.tag_chk(1, TD); e.wait_tag('w1'); fwr(4); I(frd); fchk(4)
        self.stamp('q4')
        for _ in range(o.get('qb', 0)): dma(); nsafe -= 1
        for t in wr(0, 1) + wr(1, 1) + csr(0, 1): I(t)
        more = [(11, lambda: g6.w3_src(self, 48))]
        for m, ch in enumerate(o.get('qn', '0')):
            for _ in range(int(ch)):
                if nsafe: more.append((m, dma)); nsafe -= 1
        gemm(1, 5, 52, more)
        fwr(6)
        self.stamp('sq')
        self.swarm('sw')
        KC = [192, 72]
        for n in range(2):
            self.cvt(KC[n], 52 + 8*n, 8)
            for t in range(2): I(f'{MF16} {vr(52+8*n+4*t,4)}, {vr(36+4*t,4)}, {vr(KC[n],4)}, 0')
        PH = [132, 140]
        smf = self.softmax2 if o.get('pkq', 1) else self.softmax2s
        sm = [self.capture(lambda n=n: smf(52 + 8*n, PH[n], (148, 172)[n], 22, (204, 30)[n])) for n in range(2)]
        assert o['w2a'] == 9
        w3l = [(lambda m=m: g6.w3_dma(self, 48, self.sMW, m, 0, RC + m*4096, 'w3')) for m in range(0 if o.get('w3k', 1) else 9)]
        n3 = o.get('w3p', 9)
        jobs = [lambda: I(frd), lambda: self.fchk(6, 48)] + w3l[:n3]
        self.w3l = w3l[n3:]
        pk = [t for r in zip(*sm) for t in r]
        for n, t in enumerate(pk):
            if n >= o.get('w0', len(pk) - 20) and n % o.get('wd', 8) == 0 and jobs: jobs.pop(0)()
            I(t)
        for f in jobs: f()
        self.stamp(6)
        KF = 76
        I(f'v_mov_b32 v0, {L_FL}')
        rds = ['ds_read_b32 v15, v0 offset:4', f'ds_read_b32 v9, v0 offset:{L_MODE - L_FL}']
        for a in range(2):
            rds.append(f'ds_read_b128 {vr(KF+16+4*a,4)}, v25 offset:{a*2048}')
            for dt in range(2): rds.append(f'ds_read_b128 {vr(KF+4*(2*a+dt),4)}, v24 offset:{a*2048 + dt*1024}')
        top = e.newlabel('Lkvw'); dn = e.newlabel('Lkvd')
        e.wait_lg0()
        e.label(top)
        I(rds[0])
        I('v_cmp_gt_u32 vcc, 60, v15')
        I(f's_cbranch_vccz {dn}')
        I(f's_sub_u32 s{sSPIN}, s{sSPIN}, 1')
        I(f's_cbranch_scc0 {top}')
        I(f's_mov_b32 s{sSPIN}, 0')
        e.label(dn)
        I(f's_setprio {o.get("oprio", 2)}')
        for t in rds[1:]: I(t)
        self.stamp('s2')
        I(f'v_readfirstlane_b32 s{sMODE}, v9')
        ACO = [100, 112]
        for a in range(2):
            for n in range(2):
                ac = ACO[n]
                I(f'{MF16} {vr(ac+8,4)}, {vr(KF+16+4*a,4)}, {vr(PH[n]+4*a,4)}, ' + ('0' if a == 0 else vr(ac+8, 4)))
            for dt in range(2):
                for n in range(2):
                    ac = ACO[n]
                    I(f'{MF16} {vr(ac+4*dt,4)}, {vr(KF+4*(2*a+dt),4)}, {vr(PH[n]+4*a,4)}, ' + ('0' if a == 0 else vr(ac+4*dt, 4)))
        for n in range(2): I(f'v_add_f32 v{ACO[n]+8}, 0x358637bd, v{ACO[n]+8}')
        for n in range(2): I(f'v_rcp_f32 v{ACO[n]+8}, v{ACO[n]+8}')
        for n in range(2):
            ac = ACO[n]; pk = 124 + 4*n
            for i in range(0, 8, 2): I(f'v_pk_mul_f32 {vr(ac+i,2)}, {vr(ac+i,2)}, {vr(ac+8,2)} op_sel_hi:[1,0]')
            self.cvt(pk, ac, 8)
        for n in range(2):
            pk = 124 + 4*n
            I(f'v_permlane16_swap_b32 v{pk}, v{pk+2}'); I(f'v_permlane16_swap_b32 v{pk+1}, v{pk+3}')
        self.stamp(8)
        ost = [f'buffer_store_dwordx2 {vr(124+4*n+2*hh,2)}, v{18+hh}, {WS}, s{(sX0, sX1)[n]} offen' for n in range(2) for hh in range(2)]
        if 'o' in o.get('fu', ''):
            for t in ost: I(t + ' sc1', tag='os')
        elif 'o' in o.get('sn', ''):
            self.stores(ost + [f'buffer_store_dword v27, v14, {WS}, 0 offen']); self.stamp(9)
        else: self.stores(ost, tag='os')
        I('v_mov_b32 v16, 64'); I('ds_write_b32 v17, v16 offset:16')
        I('s_setprio 0')
        for f in self.w3l: f()
        I('v_mov_b32 v11, v51'); self.vSQ = 11
        I('v_mov_b32 v12, v48')
    def v_landed(self):
        e = self.e
        self.own_fl()
        e.wait_vm0()
        self.fwr(8); self.I(self.frd)
        self.fchk(8, 60)
        self.stamp('b4')

    def o_flag(self, tag=None):
        if 'o' in self.o.get('sn', ''): return
        if tag: self.e.wait_tag(tag)
        else: self.e.wait_vm0()
        self.stores([f'buffer_store_dword v27, v14, {WS}, 0 offen'])
        self.stamp(9)

if __name__ == '__main__':
    g5.main(K)
```
